```python
import torch

def _softmax(x, axis=-1):
    return torch.softmax(x, dim=axis)
def _gelu(x):
    return torch.nn.functional.gelu(x, approximate="tanh")
def _silu(x):
    return torch.nn.functional.silu(x)
def _sigmoid(x):
    return torch.sigmoid(x)
def _layernorm(x, axis=-1, eps=1e-5):
    m = x.mean(dim=axis, keepdim=True)
    v = x.var(dim=axis, keepdim=True, unbiased=False)
    return (x - m) / torch.sqrt(v + eps)
def _scatter_add(tgt, idx, src, axis=0):
    return tgt.clone().index_add_(axis, idx, src)
def _segment_sum(src, seg, n):
    out = torch.zeros((n,) + src.shape[1:], dtype=src.dtype)
    return out.index_add_(0, seg, src)
def _pad(x, pw):
    flat = tuple(v for pair in reversed(pw) for v in pair)
    return torch.nn.functional.pad(x, flat)

kernel_name = 'gated_mix__spectral_gfnet__swiglu_ffn__prompt'

def setup_inputs():

    _w = (lambda a: (lambda t: t.to(torch.bfloat16) if t.is_floating_point() else t)(torch.as_tensor(a)))
    def _A_setup():
        B, S, D = 1, 2048, 640
        Df = D // 2 + 1
        return {
            "x": _w((lambda *s: torch.randn(*s, dtype=torch.bfloat16) * 0.05)(B, S, D)),
            "w_r": _w((lambda *s: torch.randn(*s, dtype=torch.bfloat16) * 0.8)(S, Df) * 0.02),
            "w_i": _w((lambda *s: torch.randn(*s, dtype=torch.bfloat16) * 0.8)(S, Df) * 0.02),
        }
    _A_in = _A_setup()

    def _B_setup():
        B, S, D, F = 1, 2048, 640, 1536
        return {
            "x": _w((lambda *s: torch.randn(*s, dtype=torch.bfloat16) * 0.05)(B, S, D)),
            "w_gate": _w((lambda *s: torch.randn(*s, dtype=torch.bfloat16) * 0.05)(D, F)),
            "w_up": _w((lambda *s: torch.randn(*s, dtype=torch.bfloat16) * 0.05)(D, F)),
            "w_down": _w((lambda *s: torch.randn(*s, dtype=torch.bfloat16) * 0.05)(F, D)),
        }
    _B_in = _B_setup()

    return {
        "A_x": _A_in["x"],
        "A_w_r": _A_in["w_r"],
        "A_w_i": _A_in["w_i"],
        "B_x": _B_in["x"],
        "B_w_gate": _B_in["w_gate"],
        "B_w_up": _B_in["w_up"],
        "B_w_down": _B_in["w_down"],
        "gate_w": _w((lambda *s: torch.randn(*s, dtype=torch.bfloat16) * 0.05)(640) * 16.0),
    }

def reference(A_x, A_w_r, A_w_i, B_x, B_w_gate, B_w_up, B_w_down, gate_w):
    def _A_ref(x, w_r, w_i):
        B, S, D = x.shape
        X = (lambda x, axes=(-2,-1): torch.fft.rfft2(x.float(), dim=axes))(x, axes=(-2, -1))
        W = w_r + 1j * w_i
        X = X * W
        y = (lambda x, s, axes=(-2,-1): torch.fft.irfft2(x, s=s, dim=axes).to(torch.bfloat16))(X, (S, D), axes=(-2, -1))
        return y

    def _B_ref(x, w_gate, w_up, w_down):
        g = _silu(x @ w_gate)
        u = x @ w_up
        return (g * u) @ w_down

    x = A_x
    g = _sigmoid((x * gate_w).sum(-1, keepdims=True))
    a = _A_ref(x, A_w_r, A_w_i)
    b = _B_ref(x, B_w_gate, B_w_up, B_w_down)
    return g * a + (1 - g) * b
```

```python
def v(i, n=1):  return f"v{i}" if n == 1 else f"v[{i}:{i+n-1}]"
def a(i, n=1):  return f"a{i}" if n == 1 else f"a[{i}:{i+n-1}]"
def s(i, n=1):  return f"s{i}" if n == 1 else f"s[{i}:{i+n-1}]"

class Asm:
    def __init__(self, prefix="L"):
        self.l = []
        self._lab = 0
        self.prefix = prefix
    def __call__(self, txt):
        if isinstance(txt, (list, tuple)):
            for t in txt: self(t)
            return
        for ln in txt.split("\n"):
            ln = ln.strip()
            if ln: self.l.append(("" if ln.endswith(":") else "  ") + ln)
    def c(self, txt): self.l.append("  ; " + txt)
    def label(self, base="x"):
        self._lab += 1
        return f"{self.prefix}_{base}{self._lab}"
    def text(self): return "\n".join(self.l) + "\n"
    def nop(self, n):
        while n > 0:
            k = min(n, 16); self(f"s_nop {k-1}"); n -= k
    def srd(self, d, lo, nbytes, off=0):
        if off:
            self(f"s_add_u32 s{d}, s{lo}, {hex(off)}")
            self(f"s_addc_u32 s{d+1}, s{lo+1}, 0")
            self(f"s_and_b32 s{d+1}, s{d+1}, 0xffff")
        else:
            self(f"s_mov_b32 s{d}, s{lo}")
            self(f"s_and_b32 s{d+1}, s{lo+1}, 0xffff")
        self(f"s_mov_b32 s{d+2}, {hex(nbytes)}")
        self(f"s_mov_b32 s{d+3}, 0x20000")

def srd(d): return f"s[{d}:{d+3}]"

class VM:
    def __init__(self): self.q = []
    def issue(self, tag, n=1):
        self.q += [tag]*n
    def wait(self, tags):
        last = -1
        for i, t in enumerate(self.q):
            if t in tags: last = i
        n = len(self.q) - 1 - last
        self.q = self.q[last+1:]
        return min(n, 63)
    def pending(self, tags): return any(t in tags for t in self.q)

def place(main, groups):
    out = []
    for i, m in enumerate(main):
        out.append(m)
        if i < len(groups): out += groups[i]
    for g in groups[len(main):]: out += g
    return out
```

```python
from asmlib import *
from layout import *
import struct
def fb(x): return hex(struct.unpack('<I', struct.pack('<f', x))[0])

class R:
    vl = 1
    vn = 2
    vh = 3
    CRe, CIm = 128, 144
    TWr, TWi = 160, 176
    t3r, t3i = 192, 198
    F10 = 204
    T2r, T2i = 212, 228
    sw = 20
    sc = 21
    srdAX, srdX1, srdWR, srdWI, srdWF, srdWD, srdWT, srdGW, srdG, srdFT, srdZ = 8, 12, 16, 36, 40, 44, 48, 52, 56, 60, 64
    st = 24

L_Z    = 0
ZROW, ZWAVE = 3072, 6208
L_WP   = 25088
L_WD   = 29184
L_X    = 40960

def setup(A, s_c, pAX, pWR, pWI, pWD, pGW, pWS):
    A.c("---- aux setup ----")
    A(f"v_lshrrev_b32 v4, 6, v0")
    A(f"v_and_b32 v{R.vl}, 63, v0")
    A(f"v_readfirstlane_b32 s{R.sw}, v4")
    A(f"s_mov_b32 s{R.sc}, s{s_c}")
    A(f"v_and_b32 v{R.vn}, 31, v{R.vl}")
    A(f"v_lshrrev_b32 v{R.vh}, 5, v{R.vl}")
    A.srd(R.srdAX, pAX, 2048*640*2)
    A.srd(R.srdWR, pWR, 2048*321*2)
    A.srd(R.srdWI, pWI, 2048*321*2)
    A.srd(R.srdWD, pWD, 1536*640*2)
    A.srd(R.srdGW, pGW, 640*2)
    A.srd(R.srdX1, pWS, SZ_X1, OFF_X1)
    A.srd(R.srdWF, pWS, SZ_WF, OFF_WF)
    A.srd(R.srdWT, pWS, SZ_WT, OFF_WT)
    A.srd(R.srdG, pWS, 8192, OFF_G)
    A.srd(R.srdFT, pWS, SZ_FT, OFF_FT)
    A.srd(R.srdZ, pWS, SZ_Z, OFF_Z)

XA = 16
GX = 64
WPV = 80
WPI = 112
def issue_loads(A, vm):
    st = R.st
    A.c("A1 operand loads")
    A(f"s_lshl_b32 s{st}, s{R.sc}, 2")
    A(f"s_add_u32 s{st}, s{st}, s{R.sw}")
    A(f"s_mul_i32 s{st+1}, s{st}, 1280")
    A(f"v_bfe_u32 v4, v{R.vl}, 4, 1")
    A(f"v_mul_u32_u24 v4, {1024*1280}, v4")
    A(f"v_and_b32 v5, 15, v{R.vl}")
    A(f"v_lshl_add_u32 v4, v5, 2, v4")
    A(f"v_mul_u32_u24 v5, 160, v{R.vh}")
    A(f"v_add3_u32 v4, v4, v5, s{st+1}")
    for i in range(4):
        for q in range(4):
            A(f"buffer_load_dword v{XA+4*i+q}, v4, {srd(R.srdAX)}, 0 offen offset:{320*i+40*q}")
    vm.issue('xa', 16)
    A.c("gate loads")
    A(f"v_lshlrev_b32 v5, 2, v{R.vl}")
    A(f"s_add_u32 s{st+2}, s{st+1}, {1024*1280}")
    for t in range(5):
        A(f"buffer_load_dword v{GX+t}, v5, {srd(R.srdAX)}, s{st+1} offen offset:{256*t}")
        A(f"buffer_load_dword v{GX+5+t}, v5, {srd(R.srdAX)}, s{st+2} offen offset:{256*t}")
        A(f"buffer_load_dword v{GX+10+t}, v5, {srd(R.srdGW)}, 0 offen offset:{256*t}")
    vm.issue('gx', 15)
    A.c("Wd tile DMA (workgroups >= 240 fall off the end of the buffer and get zeros)")
    A(f"s_mul_i32 s{st+2}, s{R.sc}, 52429")
    A(f"s_lshr_b32 s{st+2}, s{st+2}, 18")
    A(f"s_mul_i32 s{st+3}, s{st+2}, 5")
    A(f"s_sub_u32 s{st+3}, s{R.sc}, s{st+3}")
    A(f"s_lshl_b32 s{st+4}, s{st+2}, 5")
    A(f"s_lshl_b32 s{st+5}, s{R.sw}, 3")
    A(f"s_add_u32 s{st+4}, s{st+4}, s{st+5}")
    A(f"s_mul_i32 s{st+4}, s{st+4}, 1280")
    A(f"s_lshl_b32 s{st+5}, s{st+3}, 8")
    A(f"s_add_u32 s{st+4}, s{st+4}, s{st+5}")
    A(f"v_lshrrev_b32 v5, 4, v{R.vl}")
    A(f"v_mul_u32_u24 v5, 1280, v5")
    A(f"v_and_b32 v6, 15, v{R.vl}")
    A(f"v_lshl_add_u32 v5, v6, 4, v5")
    A(f"s_lshl_b32 s{st+5}, s{R.sw}, 11")
    A(f"s_add_u32 m0, s{st+5}, {L_WD}")
    A(f"v_add_u32 v6, {4*1280-1024}, v5")
    A(f"buffer_load_dwordx4 v5, {srd(R.srdWD)}, s{st+4} offen lds")
    A(f"buffer_load_dwordx4 v6, {srd(R.srdWD)}, s{st+4} offen offset:1024 lds")
    vm.issue('wd', 2)
    A.c("W filter loads: rowgroup rho=c&63 (t=rho>>3, a8=rho&7), cq=c>>6")
    A(f"s_and_b32 s{st+2}, s{R.sc}, 63")
    A(f"s_lshr_b32 s{st+3}, s{st+2}, 3")
    A(f"s_and_b32 s{st+2}, s{st+2}, 7")
    A(f"s_lshl_b32 s{st+3}, s{st+3}, 8")
    A(f"s_lshl_b32 s{st+2}, s{st+2}, 3")
    A(f"s_add_u32 s{st+2}, s{st+2}, s{st+3}")
    A(f"s_and_b32 s{st+3}, s{R.sw}, 1")
    A(f"s_add_u32 s{st+2}, s{st+2}, s{st+3}")
    A(f"s_mul_i32 s{st+2}, s{st+2}, 321")
    A(f"s_lshr_b32 s{st+3}, s{R.sc}, 6")
    A(f"s_mul_i32 s{st+3}, s{st+3}, 81")
    A(f"s_lshr_b32 s{st+4}, s{R.sw}, 1")
    A(f"s_lshl_b32 s{st+4}, s{st+4}, 4")
    A(f"s_add_u32 s{st+3}, s{st+3}, s{st+4}")
    A(f"s_add_u32 s{st+2}, s{st+2}, s{st+3}")
    A(f"s_lshl_b32 s{st+2}, s{st+2}, 1")
    A(f"v_lshrrev_b32 v5, 4, v{R.vl}")
    A(f"v_mul_u32_u24 v5, {2*321}, v5")
    A(f"v_and_b32 v6, 15, v{R.vl}")
    A(f"v_add_u32 v5, v5, v6")
    A(f"v_lshl_add_u32 v5, v5, 1, s{st+2}")
    for rnd in range(3):
        for j in range(4):
            A(f"s_mov_b32 s{st+4}, {j*64*642}")
            A(f"buffer_load_ushort v{WPV+4*rnd+j}, v5, {srd(R.srdWR)}, s{st+4} offen offset:{64*rnd}")
            A(f"buffer_load_ushort v{WPI+4*rnd+j}, v5, {srd(R.srdWI)}, s{st+4} offen offset:{64*rnd}")
    vm.issue('wp', 24)

def consts_a1(A):
    A.c("constants: F32 interleaved, tw320, F10")
    n, h = R.vn, R.vh
    A(f"v_cvt_f32_u32 v4, v{n}")
    A(f"v_cvt_f32_u32 v5, v{h}")
    A(f"v_mul_f32 v6, {fb(1/32)}, v4")
    A(f"v_mul_f32 v7, 4.0, v5")
    A(f"v_mul_f32 v8, v7, v6")
    for i in range(4):
        for q in range(4):
            A(f"v_fmamk_f32 v9, v6, {fb(float(8*i+q))}, v8")
            A(f"v_fract_f32 v9, v9")
            A(f"v_sin_f32 v10, v9")
            A(f"v_cos_f32 v11, v9")
            A("s_nop 0")
            A(f"v_cvt_pk_bf16_f32 v{R.CRe+4*i+q}, v11, v10")
            A(f"v_cvt_pk_bf16_f32 v{R.CIm+4*i+q}, -v10, v11")
    A(f"v_mul_f32 v6, {fb(1/320)}, v4")
    A(f"v_mul_f32 v8, v7, v6")
    for idx, (e, j) in enumerate([(0,0),(0,1),(0,2),(0,3),(1,0),(1,1)]):
        A(f"v_fmamk_f32 v9, v6, {fb(float(8*e+j))}, v8")
        A(f"v_cos_f32 v{R.t3r+idx}, v9")
        A(f"v_sin_f32 v{R.t3i+idx}, -v9")
    A(f"v_lshrrev_b32 v9, 3, v{n}")
    A(f"v_lshlrev_b32 v9, 2, v9")
    A(f"v_bfe_u32 v10, v{n}, 2, 1")
    A(f"v_lshl_add_u32 v9, v10, 1, v9")
    A(f"v_bfe_u32 v10, v{n}, 1, 1")
    A(f"v_add_u32 v9, v9, v10")
    A(f"v_cmp_gt_u32 s[{R.st}:{R.st+1}], 10, v9")
    A(f"v_cvt_f32_u32 v9, v9")
    A(f"v_mul_f32 v9, {fb(0.1)}, v9")
    A(f"v_and_b32 v10, 1, v{n}")
    A(f"v_cvt_f32_u32 v10, v10")
    A(f"v_mul_f32 v10, 0.25, v10" if False else f"v_mul_f32 v10, {fb(0.25)}, v10")
    A(f"v_fma_f32 v10, v7, v9, v10")
    A(f"v_cmp_eq_u32 vcc, 0, v{h}")
    A(f"s_and_b64 s[{R.st+2}:{R.st+3}], vcc, s[{R.st}:{R.st+1}]")
    for e in range(2):
        for q in range(4):
            d = R.F10 + 4*e + q
            if e == 1 and q >= 2:
                A(f"v_mov_b32 v{d}, 0"); continue
            A(f"v_fmamk_f32 v11, v9, {fb(float(8*e+q))}, v10")
            A(f"v_fract_f32 v11, v11")
            A(f"v_cos_f32 v12, v11")
            A(f"v_sin_f32 v13, v11")
            A("s_nop 0")
            A(f"v_cvt_pk_bf16_f32 v12, v12, v13")
            m = R.st if e == 0 else R.st+2
            A(f"v_cndmask_b32 v{d}, 0, v12, s[{m}:{m+1}]")

def consts_a2(A):
    A.c("constants: tw1024, tw2048")
    n, h = R.vn, R.vh
    A(f"v_cvt_f32_u32 v4, v{n}")
    A(f"v_cvt_f32_u32 v5, v{h}")
    A(f"v_mul_f32 v7, 4.0, v5")
    A(f"v_mul_f32 v6, {fb(1/1024)}, v4")
    A(f"v_mul_f32 v8, v7, v6")
    for i in range(4):
        for j in range(4):
            A(f"v_fmamk_f32 v9, v6, {fb(float(8*i+j))}, v8")
            A(f"v_cos_f32 v{R.TWr+4*i+j}, v9")
            A(f"v_sin_f32 v{R.TWi+4*i+j}, -v9")
    A(f"v_mul_f32 v6, {fb(1/2048)}, v4")
    A(f"v_fmamk_f32 v8, v7, {fb(1/64)}, v6")
    for i in range(4):
        for j in range(4):
            A(f"v_add_f32 v9, {fb((8*i+j)/64)}, v8")
            A(f"v_cos_f32 v{R.T2r+4*i+j}, v9")
            A(f"v_sin_f32 v{R.T2i+4*i+j}, -v9")

def cmul(A, dr, di, ar, ai, br, bi, t):
    A(f"v_mul_f32 v{t}, v{ai}, v{bi}")
    A(f"v_mul_f32 v{di}, v{ai}, v{br}") if di == ai else A(f"v_mul_f32 v{di}, v{ai}, v{br}")
    A(f"v_fmac_f32 v{di}, v{ar}, v{bi}")
    A(f"v_fma_f32 v{dr}, v{ar}, v{br}, -v{t}")

D1r, D1i, PK, D2 = 32, 48, 96, (32, 48)
def fft320_core(A, xa=XA):
    for i in range(4):
        c = "0" if i == 0 else f"v[{D1r}:{D1r+15}]"
        A(f"v_mfma_f32_32x32x16_bf16 v[{D1r}:{D1r+15}], v[{xa+4*i}:{xa+4*i+3}], v[{R.CRe+4*i}:{R.CRe+4*i+3}], {c}")
        c = "0" if i == 0 else f"v[{D1i}:{D1i+15}]"
        A(f"v_mfma_f32_32x32x16_bf16 v[{D1i}:{D1i+15}], v[{xa+4*i}:{xa+4*i+3}], v[{R.CIm+4*i}:{R.CIm+4*i+3}], {c}")
    for r in range(2):
        A(f"v_mov_b32 v{PK+8*r+6}, 0")
        A(f"v_mov_b32 v{PK+8*r+7}, 0")
    A.nop(10)
    for r in range(2):
        for idx, (e, j) in enumerate([(0,0),(0,1),(0,2),(0,3),(1,0),(1,1)]):
            reg = 4*(2*r+e) + j
            ar, ai = D1r+reg, D1i+reg
            tr, ti = R.t3r+idx, R.t3i+idx
            A(f"v_mul_f32 v4, v{ai}, v{ti}")
            A(f"v_mul_f32 v5, v{ai}, v{tr}")
            A(f"v_fma_f32 v4, v{ar}, v{tr}, -v4")
            A(f"v_fmac_f32 v5, v{ar}, v{ti}")
            A(f"v_cvt_pk_bf16_f32 v{PK+8*r+4*e+j}, v4, v5")
    A.nop(2)
    for r in range(2):
        for e in range(2):
            c = "0" if e == 0 else f"v[{D2[r]}:{D2[r]+15}]"
            A(f"v_mfma_f32_32x32x16_bf16 v[{D2[r]}:{D2[r]+15}], v[{R.F10+4*e}:{R.F10+4*e+3}], v[{PK+8*r+4*e}:{PK+8*r+4*e+3}], {c}")
    A.nop(12)

def a1_core(A, vm):
    st = R.st
    A.c("---- A1 core ----")
    A(f"s_waitcnt vmcnt({vm.wait({'xa'})})")
    fft320_core(A)
    A(f"s_mul_i32 s{st}, s{R.sw}, {ZWAVE}")
    A(f"v_lshl_add_u32 v4, v{R.vh}, 6, v{R.vn}")
    A(f"v_lshl_add_u32 v4, v4, 3, s{st}")
    for r in range(2):
        for i in range(3):
            for jj in range(2):
                d = D2[r] + 4*i + 2*jj
                A(f"ds_write_b64 v4, v[{d}:{d+1}] offset:{L_Z + r*ZROW + (128*i + 32*jj)*8}")

def a1_elem(A, vm):
    st = R.st
    A.c("---- A1 elementwise ----")
    A("s_waitcnt lgkmcnt(0)")
    A("s_barrier")
    A(f"v_and_b32 v4, 3, v0")
    A(f"v_mul_u32_u24 v5, {ZWAVE}, v4")
    A(f"s_lshl_b32 s{st}, s{R.sc}, 2")
    A(f"v_add_u32 v6, s{st}, v4")
    A(f"v_cvt_f32_u32 v7, v6")
    A(f"v_mul_f32 v7, {fb(1/2048)}, v7")
    A(f"v_cos_f32 v12, v7")
    A(f"v_sin_f32 v13, -v7")
    A(f"v_lshlrev_b32 v6, 4, v6")
    A(f"v_lshrrev_b32 v7, 2, v0")
    Zp0, Zq0, Zp1, Zq1 = 32, 34, 36, 38
    for rnd in range(3):
        A.c(f"A1 elementwise round {rnd}")
        A(f"v_add_u32 v8, {64*rnd}, v7")
        A(f"v_sub_u32 v9, 320, v8")
        A(f"v_cmp_eq_u32 vcc, 320, v9")
        A(f"v_lshl_add_u32 v10, v8, 3, v5")
        A(f"v_cndmask_b32 v9, v9, 0, vcc" if False else f"v_cndmask_b32_e64 v9, v9, 0, vcc")
        A(f"v_lshl_add_u32 v11, v9, 3, v5")
        A(f"ds_read_b64 v[{Zp0}:{Zp0+1}], v10 offset:{L_Z}")
        A(f"ds_read_b64 v[{Zq0}:{Zq0+1}], v11 offset:{L_Z}")
        A(f"ds_read_b64 v[{Zp1}:{Zp1+1}], v10 offset:{L_Z+ZROW}")
        A(f"ds_read_b64 v[{Zq1}:{Zq1+1}], v11 offset:{L_Z+ZROW}")
        A(f"v_cvt_f32_u32 v14, v8")
        A(f"v_mul_f32 v14, {fb(1/640)}, v14")
        A(f"v_sin_f32 v15, -v14")
        A(f"v_cos_f32 v14, v14")
        A(f"v_lshrrev_b32 v10, 1, v8")
        A(f"v_lshlrev_b32 v10, 15, v10")
        A(f"v_and_b32 v11, 1, v8")
        A(f"v_lshl_add_u32 v10, v11, 3, v10")
        A(f"v_add_u32 v10, v10, v6")
        A(f"v_cmp_gt_u32 vcc, 162, v8")
        A(f"v_cndmask_b32 v10, {0x40000000}, v10, vcc" if False else f"v_mov_b32 v11, 0x40000000")
        A(f"v_cndmask_b32 v10, v11, v10, vcc")
        A("s_waitcnt lgkmcnt(0)")
        Up, Uq, Vp, Vq = 40, 42, 44, 46
        for (u, vv, z0, z1) in ((Up, Vp, Zp0, Zp1), (Uq, Vq, Zq0, Zq1)):
            A(f"v_pk_add_f32 v[{u}:{u+1}], v[{z0}:{z0+1}], v[{z1}:{z1+1}]")
            A(f"v_pk_add_f32 v[{vv}:{vv+1}], v[{z0}:{z0+1}], v[{z1}:{z1+1}] neg_lo:[0,1] neg_hi:[0,1]")
        out = []
        for pi, (P, Q) in enumerate(((Up, Uq), (Vp, Vq))):
            E, O, T = 48, 50, 52
            Xp, Xq = 54 + 4*pi, 56 + 4*pi
            A(f"v_pk_add_f32 v[{E}:{E+1}], v[{P}:{P+1}], v[{Q}:{Q+1}] neg_hi:[0,1]")
            A(f"v_pk_add_f32 v[{O}:{O+1}], v[{P}:{P+1}], v[{Q}:{Q+1}] neg_lo:[0,1]")
            A(f"v_mul_f32 v{T}, v15, v{O}")
            A(f"v_mul_f32 v{T+1}, v15, v{O+1}")
            A(f"v_fmac_f32 v{T}, v14, v{O+1}")
            A(f"v_fma_f32 v{T+1}, -v14, v{O}, v{T+1}")
            A(f"v_pk_add_f32 v[{Xp}:{Xp+1}], v[{E}:{E+1}], v[{T}:{T+1}]")
            A(f"v_pk_add_f32 v[{Xq}:{Xq+1}], v[{E}:{E+1}], v[{T}:{T+1}] neg_lo:[0,1] neg_hi:[1,0]")
            if pi == 1:
                for X in (Xp, Xq):
                    A(f"v_mul_f32 v{T}, v{X+1}, v13")
                    A(f"v_mul_f32 v{T+1}, v{X+1}, v12")
                    A(f"v_fmac_f32 v{T+1}, v{X}, v13")
                    A(f"v_fma_f32 v{X}, v{X}, v12, -v{T}")
                    A(f"v_mov_b32 v{X+1}, v{T+1}")
            o = 62 + 2*pi
            A(f"v_cvt_pk_bf16_f32 v{o}, v{Xp}, v{Xp+1}")
            A(f"v_cvt_pk_bf16_f32 v{o+1}, v{Xq}, v{Xq+1}")
        if rnd == 2:
            A(f"v_cmp_eq_u32 vcc, 161, v8")
            for o in range(62, 66): A(f"v_cndmask_b32_e64 v{o}, v{o}, 0, vcc")
        A(f"buffer_store_dwordx2 v[62:63], v10, {srd(R.srdX1)}, 0 offen sc1")
        A(f"s_mov_b32 s{st+1}, 16384")
        A(f"buffer_store_dwordx2 v[64:65], v10, {srd(R.srdX1)}, s{st+1} offen sc1")
        vm.issue('st', 2)

def gate(A, vm):
    st = R.st
    A.c("---- gate ----")
    A(f"s_waitcnt vmcnt({vm.wait({'gx'})})")
    for r in range(2):
        acc = 4 + r
        for t in range(5):
            x, g = GX + 5*r + t, GX + 10 + t
            A(f"v_lshlrev_b32 v6, 16, v{x}")
            A(f"v_and_b32 v7, 0xffff0000, v{x}")
            A(f"v_lshlrev_b32 v8, 16, v{g}")
            A(f"v_and_b32 v9, 0xffff0000, v{g}")
            A(f"v_mul_f32 v6, v6, v8")
            A(f"v_mul_f32 v7, v7, v9")
            A(f"v_cvt_pk_bf16_f32 v6, v6, v7")
            A(f"v_and_b32 v7, 0xffff0000, v6")
            A(f"v_lshlrev_b32 v6, 16, v6")
            if t == 0: A(f"v_add_f32 v{acc}, v6, v7")
            else:
                A(f"v_add_f32 v{acc}, v{acc}, v6")
                A(f"v_add_f32 v{acc}, v{acc}, v7")
    for mod in ("quad_perm:[1,0,3,2]", "quad_perm:[2,3,0,1]", "row_half_mirror", "row_mirror"):
        for r in range(2):
            A(f"v_add_f32_dpp v{4+r}, v{4+r}, v{4+r} {mod} row_mask:0xf bank_mask:0xf")
    for r in range(2):
        for k in range(4): A(f"v_readlane_b32 s{st+4*r+k}, v{4+r}, {16*k}")
    for r in range(2):
        b = st + 4*r
        A(f"v_mov_b32 v{4+r}, s{b}")
        for k in range(1, 4): A(f"v_add_f32 v{4+r}, s{b+k}, v{4+r}")
    A(f"v_and_b32 v6, 1, v{R.vl}")
    A(f"v_cmp_eq_u32 vcc, 1, v6")
    A(f"v_cndmask_b32 v4, v4, v5, vcc")
    A(f"v_cvt_pk_bf16_f32 v4, v4, v4")
    A(f"v_and_b32 v4, 0xffff0000, v4")
    A(f"v_mul_f32 v4, 0xbfb8aa3b, v4")
    A(f"v_exp_f32 v4, v4")
    A(f"v_add_f32 v4, 1.0, v4")
    A(f"v_rcp_f32 v4, v4")
    A(f"v_cvt_pk_bf16_f32 v4, v4, v4")
    A(f"v_and_b32 v4, 0xffff0000, v4")
    A(f"s_lshl_b32 s{st}, s{R.sc}, 2")
    A(f"s_add_u32 s{st}, s{st}, s{R.sw}")
    A(f"s_lshl_b32 s{st}, s{st}, 2")
    A(f"v_lshlrev_b32 v6, 12, v6")
    A(f"v_add_u32 v6, s{st}, v6")
    A(f"v_mov_b32 v7, 0x40000000")
    A(f"v_cmp_gt_u32 vcc, 2, v{R.vl}")
    A(f"v_cndmask_b32 v6, v7, v6, vcc")
    A(f"buffer_store_dword v4, v6, {srd(R.srdG)}, 0 offen sc1")
    vm.issue('st')

def wprep(A, vm):
    st = R.st
    A.c("---- filter prep ----")
    A(f"s_waitcnt vmcnt({vm.wait({'wp'})})")
    A(f"s_lshl_b32 s{st}, s{R.sw}, 10")
    A(f"s_add_u32 s{st}, s{st}, {L_WP}")
    A(f"v_and_b32 v4, 15, v{R.vl}")
    A(f"v_lshrrev_b32 v5, 4, v{R.vl}")
    A(f"v_lshl_add_u32 v4, v4, 2, v5")
    A(f"v_lshl_add_u32 v4, v4, 4, s{st}")
    A(f"v_lshl_add_u32 v5, v{R.vl}, 4, s{st}")
    A(f"s_lshr_b32 s{st+1}, s{R.sc}, 6")
    A(f"s_mul_i32 s{st+1}, s{st+1}, 81")
    A(f"s_lshr_b32 s{st+2}, s{R.sw}, 1")
    A(f"s_lshl_b32 s{st+2}, s{st+2}, 4")
    A(f"v_lshrrev_b32 v6, 2, v{R.vl}")
    A(f"v_add_u32 v6, s{st+2}, v6")
    A(f"s_and_b32 s{st+2}, s{R.sw}, 1")
    A(f"s_lshl_b32 s{st+2}, s{st+2}, 14")
    A(f"s_bfe_u32 s{st+3}, s{R.sc}, {4 | (2 << 16)}")
    A(f"s_lshl_b32 s{st+3}, s{st+3}, 10")
    A(f"s_add_u32 s{st+2}, s{st+2}, s{st+3}")
    A(f"s_bfe_u32 s{st+3}, s{R.sc}, {3 | (1 << 16)}")
    A(f"s_lshl_b32 s{st+3}, s{st+3}, 9")
    A(f"s_add_u32 s{st+2}, s{st+2}, s{st+3}")
    A(f"s_and_b32 s{st+3}, s{R.sc}, 7")
    A(f"s_lshl_b32 s{st+3}, s{st+3}, 6")
    A(f"s_add_u32 s{st+2}, s{st+2}, s{st+3}")
    A(f"v_and_b32 v7, 3, v{R.vl}")
    A(f"v_lshl_add_u32 v7, v7, 4, s{st+2}")
    for rnd in range(3):
        w = WPV + 4*rnd
        for j in range(4): A(f"v_lshl_or_b32 v{w+j}, v{WPI+4*rnd+j}, 16, v{w+j}")
        A(f"ds_write_b128 v4, v[{w}:{w+3}]")
        A(f"v_add_u32 v8, {32*rnd}, v6")
        A(f"v_add_u32 v9, s{st+1}, v8")
        A(f"v_sub_u32 v10, 320, v9")
        A(f"v_cmp_lt_u32 vcc, 160, v9")
        A(f"v_cndmask_b32 v11, v9, v10, vcc")
        A(f"v_cndmask_b32_e64 v12, 0, 1, vcc")
        A(f"v_and_b32 v13, 1, v11")
        A(f"v_lshl_add_u32 v12, v13, 1, v12")
        A(f"v_lshrrev_b32 v11, 1, v11")
        A(f"v_lshl_add_u32 v11, v11, 3, v12")
        A(f"v_subrev_u32 v12, 320, v9")
        A(f"v_add_u32 v12, {80*8}, v12")
        A(f"v_cmp_lt_u32 vcc, 320, v9")
        A(f"v_cndmask_b32 v11, v11, v12, vcc")
        A(f"v_lshl_add_u32 v11, v11, 12, v7")
        A(f"v_mov_b32 v12, 0x40000000")
        A(f"v_cmp_gt_u32 vcc, 81, v8")
        A(f"v_cndmask_b32 v11, v12, v11, vcc")
        A("s_waitcnt lgkmcnt(0)")
        A(f"ds_read_b128 v[16:19], v5")
        A("s_waitcnt lgkmcnt(0)")
        A(f"buffer_store_dwordx4 v[16:19], v11, {srd(R.srdWF)}, 0 offen sc1")
        vm.issue('st')

def wtprep(A, vm):
    st = R.st
    A.c("---- Wd fragment prep ----")
    A(f"s_mul_i32 s{st+2}, s{R.sc}, 52429")
    A(f"s_lshr_b32 s{st+2}, s{st+2}, 18")
    A(f"s_mul_i32 s{st+3}, s{st+2}, 5")
    A(f"s_sub_u32 s{st+3}, s{R.sc}, s{st+3}")
    A(f"v_bfe_u32 v4, v{R.vl}, 5, 1")
    A(f"v_lshlrev_b32 v4, 4, v4")
    A(f"v_bfe_u32 v5, v{R.vl}, 4, 1")
    A(f"v_lshl_add_u32 v4, v5, 2, v4")
    A(f"v_bfe_u32 v5, v{R.vl}, 2, 2")
    A(f"v_add_u32 v4, v4, v5")
    A(f"v_lshlrev_b32 v4, 8, v4")
    A(f"v_and_b32 v5, 3, v{R.vl}")
    A(f"v_lshl_add_u32 v4, v5, 3, v4")
    A(f"s_lshl_b32 s{st+4}, s{R.sw}, 6")
    A(f"v_add_u32 v4, s{st+4}, v4")
    for k in range(2):
        A(f"ds_read_b64_tr_b16 v[{16+4*k}:{17+4*k}], v4 offset:{L_WD + 32*k}")
        A(f"ds_read_b64_tr_b16 v[{18+4*k}:{19+4*k}], v4 offset:{L_WD + 32*k + 8*256}")
    A(f"s_mul_i32 s{st+2}, s{st+2}, 40")
    A(f"s_lshl_b32 s{st+3}, s{st+3}, 3")
    A(f"s_add_u32 s{st+2}, s{st+2}, s{st+3}")
    A(f"s_lshl_b32 s{st+3}, s{R.sw}, 1")
    A(f"s_add_u32 s{st+2}, s{st+2}, s{st+3}")
    A(f"s_lshl_b32 s{st+2}, s{st+2}, 10")
    A(f"v_lshlrev_b32 v5, 4, v{R.vl}")
    A("s_waitcnt lgkmcnt(0)")
    A(f"buffer_store_dwordx4 v[16:19], v5, {srd(R.srdWT)}, s{st+2} offen sc1")
    A(f"buffer_store_dwordx4 v[20:23], v5, {srd(R.srdWT)}, s{st+2} offen offset:1024 sc1")
    vm.issue('st', 2)

def ftgen(A, vm):
    st = R.st
    A.c("---- F table ----")
    lab = A.label("noft")
    A(f"s_lshl_b32 s{st}, s{R.sw}, 8")
    A(f"s_add_u32 s{st}, s{st}, s{R.sc}")
    A(f"s_cmp_ge_u32 s{st}, 840")
    A(f"s_cbranch_scc1 {lab}")
    A(f"s_mul_i32 s{st+1}, s{st}, 52429")
    A(f"s_lshr_b32 s{st+1}, s{st+1}, 21")
    A(f"s_mul_i32 s{st+2}, s{st+1}, 40")
    A(f"s_sub_u32 s{st+2}, s{st}, s{st+2}")
    A(f"s_lshl_b32 s{st+2}, s{st+2}, 4")
    A(f"v_and_b32 v4, 15, v{R.vl}")
    A(f"v_add_u32 v4, s{st+2}, v4")
    A(f"s_lshl_b32 s{st+1}, s{st+1}, 2")
    A(f"v_lshrrev_b32 v5, 4, v{R.vl}")
    A(f"v_add_u32 v5, s{st+1}, v5")
    A(f"v_lshlrev_b32 v6, 1, v5")
    A(f"s_mov_b32 s{st+3}, 6710887")
    for c in range(4):
        if c == 0: A(f"v_mov_b32 v7, v6")
        if c == 1: A(f"v_sub_u32 v7, 320, v6")
        if c == 2: A(f"v_add_u32 v7, 1, v6")
        if c == 3: A(f"v_sub_u32 v7, 319, v6")
        A(f"v_mul_u32_u24 v8, v7, v4")
        A(f"v_mul_hi_u32 v9, v8, s{st+3}")
        A(f"v_mul_u32_u24 v9, 640, v9")
        A(f"v_sub_u32 v8, v8, v9")
        A(f"v_cvt_f32_u32 v8, v8")
        A(f"v_mul_f32 v8, {fb(1/640)}, v8")
        A(f"v_cos_f32 v9, v8")
        A(f"v_sin_f32 v10, -v8")
        if c < 2:
            A(f"v_cmp_eq_u32 vcc, 0, v5")
            A(f"v_mul_f32 v11, 0.5, v9")
            A(f"v_cndmask_b32 v9, v9, v11, vcc")
            A(f"v_cndmask_b32_e64 v10, v10, 0, vcc")
        A(f"v_cvt_pk_bf16_f32 v{16+c}, v9, v10")
        A(f"v_cmp_gt_u32 vcc, {81 if c == 0 else 80}, v5")
        A(f"v_cndmask_b32 v{16+c}, 0, v{16+c}, vcc")
    A(f"s_lshl_b32 s{st}, s{st}, 10")
    A(f"v_lshlrev_b32 v5, 4, v{R.vl}")
    A(f"buffer_store_dwordx4 v[16:19], v5, {srd(R.srdFT)}, s{st} offen sc1")
    A(f"{lab}:")

WFV = 112
def a2_loads(A, vm):
    st = R.st
    A.c("---- A2 loads ----")
    A(f"s_lshl_b32 s{st}, s{R.sc}, 14")
    A(f"s_lshl_b32 s{st+1}, s{R.sw}, 12")
    A(f"s_add_u32 s{st}, s{st}, s{st+1}")
    A(f"s_add_u32 m0, s{st+1}, {L_X}")
    A(f"v_lshlrev_b32 v4, 4, v{R.vl}")
    for j in range(4):
        A(f"buffer_load_dwordx4 v4, {srd(R.srdX1)}, s{st} offen offset:{1024*j} sc1 lds")
    vm.issue('x1', 4)
    for i in range(4):
        A(f"buffer_load_dwordx4 v[{WFV+4*i}:{WFV+4*i+3}], v4, {srd(R.srdWF)}, s{st} offen offset:{1024*i} sc1")
    vm.issue('wf', 4)

def a2(A, vm):
    st = R.st
    A.c("---- A2 ----")
    Dr, Di, P = 32, 48, 64
    A(f"s_waitcnt vmcnt({vm.wait({'x1'})})")
    A("s_barrier")
    A(f"v_lshlrev_b32 v4, 11, v{R.vh}")
    A(f"v_lshl_add_u32 v4, v{R.vn}, 4, v4")
    A(f"s_lshl_b32 s{st}, s{R.sw}, 2")
    A(f"v_add_u32 v4, s{st}, v4")
    for i in range(4):
        for q in range(4):
            A(f"ds_read_b32 v{16+4*i+q}, v4 offset:{L_X + (8*i+q)*512}")
    def mm(data_is_a, src):
        for i in range(4):
            for (dst, cc) in ((Dr, R.CRe), (Di, R.CIm)):
                c = "0" if i == 0 else f"v[{dst}:{dst+15}]"
                d, k = f"v[{src+4*i}:{src+4*i+3}]", f"v[{cc+4*i}:{cc+4*i+3}]"
                a_, b_ = (d, k) if data_is_a else (k, d)
                A(f"v_mfma_f32_32x32x16_bf16 v[{dst}:{dst+15}], {a_}, {b_}, {c}")
    def twiddle(tr, ti, dst):
        for x in range(16):
            A(f"v_mul_f32 v4, v{Di+x}, v{ti+x}")
            A(f"v_mul_f32 v5, v{Di+x}, v{tr+x}")
            A(f"v_fma_f32 v4, v{Dr+x}, v{tr+x}, -v4")
            A(f"v_fmac_f32 v5, v{Dr+x}, v{ti+x}")
            A(f"v_cvt_pk_bf16_f32 v{dst+x}, v4, v5")
    A("s_waitcnt lgkmcnt(0)")
    mm(True, 16)
    twiddle(R.TWr, R.TWi, P)
    mm(False, P)
    A(f"s_waitcnt vmcnt({vm.wait({'wf'})})")
    for x in range(16):
        wv = WFV + x
        A(f"v_lshlrev_b32 v6, 16, v{wv}")
        A(f"v_and_b32 v7, 0xffff0000, v{wv}")
        A(f"v_mul_f32 v4, v{Di+x}, v7")
        A(f"v_mul_f32 v5, v{Di+x}, v6")
        A(f"v_fma_f32 v4, v{Dr+x}, v6, -v4")
        A(f"v_fmac_f32 v5, v{Dr+x}, v7")
        A(f"v_cvt_pk_bf16_f32 v{P+x}, v4, -v5")
    mm(True, P)
    twiddle(R.TWr, R.TWi, P)
    mm(False, P)
    lab, lab2 = A.label("pi0"), A.label("pid")
    A(f"s_and_b32 s{st}, s{R.sc}, 1")
    A(f"s_cmp_eq_u32 s{st}, 0")
    A(f"s_cbranch_scc1 {lab}")
    for x in range(16):
        A(f"v_mul_f32 v4, v{Di+x}, v{R.T2i+x}")
        A(f"v_mul_f32 v5, v{Di+x}, v{R.T2r+x}")
        A(f"v_fma_f32 v4, v{Dr+x}, v{R.T2r+x}, -v4")
        A(f"v_fmac_f32 v5, v{Dr+x}, v{R.T2i+x}")
        A(f"v_cvt_pk_bf16_f32 v{P+x}, v4, -v5")
    A(f"s_branch {lab2}")
    A(f"{lab}:")
    A.nop(12)
    for x in range(16): A(f"v_cvt_pk_bf16_f32 v{P+x}, v{Dr+x}, -v{Di+x}")
    A(f"{lab2}:")
    A("s_barrier")
    A(f"v_lshlrev_b32 v4, 11, v{R.vh}")
    A(f"v_lshl_add_u32 v4, v{R.vn}, 4, v4")
    A(f"s_lshl_b32 s{st}, s{R.sw}, 2")
    A(f"v_add_u32 v4, s{st}, v4")
    for i in range(4):
        for j in range(4):
            A(f"ds_write_b32 v4, v{P+4*i+j} offset:{L_X + (8*i+j)*512}")
    A("s_waitcnt lgkmcnt(0)")
    A("s_barrier")
    A(f"s_lshl_b32 s{st+1}, s{R.sw}, 12")
    A(f"v_lshl_add_u32 v4, v{R.vl}, 4, s{st+1}")
    for j in range(4):
        A(f"ds_read_b128 v[{16+4*j}:{19+4*j}], v4 offset:{L_X + 1024*j}")
    A(f"s_lshl_b32 s{st}, s{R.sc}, 14")
    A(f"s_add_u32 s{st}, s{st}, s{st+1}")
    A(f"v_lshlrev_b32 v5, 4, v{R.vl}")
    A("s_waitcnt lgkmcnt(0)")
    for j in range(4):
        A(f"buffer_store_dwordx4 v[{16+4*j}:{19+4*j}], v5, {srd(R.srdZ)}, s{st} offen offset:{1024*j} sc1")
    vm.issue('st', 4)
```

```python
from asmlib import *
from layout import *

NST = 20
XSLOT, WBASE, WSLOT = 16384, 32768, 12288
ACC = 64

class R:
    vxo = (1, 2, 3, 4)
    vwo = (5, 6, 7)
    vx = (8, 9, 10, 11)
    vw, vw2 = 12, 13
    vt = 56
    opA = (16, 36)
    opB = (28, 48)
    srdX, srdW, srdH = 8, 12, 16
    sw = 20
    skx, skw = 21, 22
    smx, smw = 23, 24
    smt, sft = 25, 26
    st = 28

def setup(A, s_b, pBX, pWG, pWU, pWS):
    st, t = R.st, R.vt
    A.c("---- F1 setup ----")
    A(f"v_lshrrev_b32 v{t}, 6, v0")
    A(f"s_and_b32 s{st}, s{s_b}, 1")
    A(f"v_readfirstlane_b32 s{R.sw}, v{t}")
    A(f"s_lshl_b32 s{st}, s{st}, 3")
    A(f"s_lshr_b32 s{st+1}, s{s_b}, 3")
    A(f"s_and_b32 s{st+1}, s{st+1}, 7")
    A(f"s_add_u32 s{R.smt}, s{st}, s{st+1}")
    A(f"s_lshr_b32 s{st+1}, s{s_b}, 1")
    A(f"s_and_b32 s{st+1}, s{st+1}, 3")
    A(f"s_lshl_b32 s{st+1}, s{st+1}, 2")
    A(f"s_lshr_b32 s{st+2}, s{s_b}, 6")
    A(f"s_add_u32 s{R.sft}, s{st+1}, s{st+2}")
    A.srd(R.srdX, pBX, 2048*640*2)
    A(f"s_cmp_lt_u32 s{R.sw}, 2")
    A(f"s_cselect_b32 s{R.srdW}, s{pWG}, s{pWU}")
    A(f"s_cselect_b32 s{R.srdW+1}, s{pWG+1}, s{pWU+1}")
    A(f"s_and_b32 s{R.srdW+1}, s{R.srdW+1}, 0xffff")
    A(f"s_mov_b32 s{R.srdW+2}, {hex(640*1536*2)}")
    A(f"s_mov_b32 s{R.srdW+3}, 0x20000")
    A(f"v_and_b32 v{t}, 63, v0")
    A(f"s_lshl_b32 s{st}, s{R.smt}, 7")
    A(f"s_lshl_b32 s{st+1}, s{R.sw}, 5")
    A(f"s_add_u32 s{st}, s{st}, s{st+1}")
    A(f"s_mul_i32 s{st}, s{st}, 1280")
    A(f"v_lshrrev_b32 v{t+1}, 3, v{t}")
    A(f"v_mul_u32_u24 v{t+1}, 1280, v{t+1}")
    A(f"v_add_u32 v{t+1}, s{st}, v{t+1}")
    A(f"v_lshrrev_b32 v{t+2}, 4, v{t}")
    A(f"v_xor_b32 v{t+2}, v{t+2}, v{t}")
    A(f"v_and_b32 v{t+2}, 7, v{t+2}")
    A(f"v_lshl_add_u32 v{R.vxo[0]}, v{t+2}, 4, v{t+1}")
    A(f"v_xor_b32 v{t+2}, 4, v{t+2}")
    A(f"v_lshl_add_u32 v{R.vxo[1]}, v{t+2}, 4, v{t+1}")
    A(f"v_add_u32 v{R.vxo[1]}, {8*1280-1024}, v{R.vxo[1]}")
    A(f"v_add_u32 v{R.vxo[2]}, {16*1280-2048}, v{R.vxo[0]}")
    A(f"v_add_u32 v{R.vxo[3]}, {16*1280-2048}, v{R.vxo[1]}")
    A(f"s_and_b32 s{st}, s{R.sw}, 1")
    A(f"s_mul_i32 s{st}, s{st}, {16*3072}")
    A(f"s_mul_i32 s{st+1}, s{R.sft}, 192")
    A(f"s_add_u32 s{st}, s{st}, s{st+1}")
    A(f"s_lshr_b32 s{st+1}, s{R.sw}, 1")
    A(f"s_mul_i32 s{st+1}, s{st+1}, 10")
    for j in range(3):
        A(f"v_add_u32 v{t+1}, {64*j}, v{t}")
        A(f"v_mul_u32_u24 v{t+2}, 5462, v{t+1}")
        A(f"v_lshrrev_b32 v{t+2}, 16, v{t+2}")
        A(f"v_mul_u32_u24 v{t+3}, 12, v{t+2}")
        A(f"v_sub_u32 v{t+3}, v{t+1}, v{t+3}")
        A(f"v_add_u32 v{t+3}, s{st+1}, v{t+3}")
        A(f"v_subrev_u32 v{t+4}, 12, v{t+3}")
        A(f"v_min_u32 v{t+3}, v{t+3}, v{t+4}")
        A(f"v_mul_u32_u24 v{t+2}, 3072, v{t+2}")
        A(f"v_lshl_add_u32 v{t+2}, v{t+3}, 4, v{t+2}")
        A(f"v_add_u32 v{t+2}, s{st}, v{t+2}")
        A(f"v_subrev_u32 v{R.vwo[j]}, {1024*j}, v{t+2}")
    A(f"s_lshl_b32 s{R.smx}, s{R.sw}, 12")
    A(f"s_mul_i32 s{R.smw}, s{R.sw}, 3072")
    A(f"s_add_u32 s{R.smw}, s{R.smw}, {WBASE}")

def setup_reads(A):
    st, t = R.st, R.vt
    A(f"v_and_b32 v{t}, 63, v0")
    A(f"s_lshr_b32 s{st}, s{R.sw}, 1")
    A(f"s_lshl_b32 s{st}, s{st}, 13")
    A(f"v_and_b32 v{t+1}, 31, v{t}")
    A(f"v_lshrrev_b32 v{t+2}, 5, v{t}")
    A(f"v_bfe_u32 v{t+3}, v{t+1}, 1, 3")
    A(f"v_xor_b32 v{t+3}, v{t+3}, v{t+2}")
    A(f"v_lshlrev_b32 v{t+4}, 7, v{t+1}")
    A(f"v_add_u32 v{t+4}, s{st}, v{t+4}")
    A(f"v_lshl_add_u32 v{R.vx[0]}, v{t+3}, 4, v{t+4}")
    for k in range(1, 4): A(f"v_xor_b32 v{R.vx[k]}, {32*k}, v{R.vx[0]}")
    A(f"s_and_b32 s{st}, s{R.sw}, 1")
    A(f"s_mul_i32 s{st+1}, s{st}, 96")
    A(f"s_add_u32 s{st+1}, s{st+1}, {WBASE}")
    A(f"v_lshrrev_b32 v{t+1}, 5, v{t}")
    A(f"v_lshlrev_b32 v{t+1}, 3, v{t+1}")
    A(f"v_bfe_u32 v{t+2}, v{t}, 2, 2")
    A(f"v_add_u32 v{t+1}, v{t+1}, v{t+2}")
    A(f"v_mul_u32_u24 v{t+1}, 192, v{t+1}")
    A(f"v_bfe_u32 v{t+2}, v{t}, 4, 1")
    A(f"v_lshl_add_u32 v{t+1}, v{t+2}, 4, v{t+1}")
    A(f"v_and_b32 v{t+2}, 1, v{t}")
    A(f"v_lshl_add_u32 v{t+1}, v{t+2}, 3, v{t+1}")
    A(f"v_bfe_u32 v{t+2}, v{t}, 1, 1")
    A(f"v_mul_u32_u24 v{t+3}, {6144+32}, v{t+2}")
    A(f"v_add_u32 v{t+1}, v{t+1}, v{t+3}")
    A(f"v_add_u32 v{R.vw}, s{st+1}, v{t+1}")
    A(f"s_mul_i32 s{st+1}, s{st}, 192")
    A(f"v_mul_u32_u24 v{t+3}, s{st+1}, v{t+2}")
    A(f"v_sub_u32 v{R.vw2}, v{R.vw}, v{t+3}")

def dma_x(c):
    L = [[f"s_add_u32 m0, s{R.smx}, {(c & 1)*XSLOT}", f"s_mov_b32 s{R.skx}, {c*128}",
          f"buffer_load_dwordx4 v{R.vxo[0]}, {srd(R.srdX)}, s{R.skx} offen lds"]]
    for j in range(1, 4):
        L.append([f"buffer_load_dwordx4 v{R.vxo[j]}, {srd(R.srdX)}, s{R.skx} offen offset:{1024*j} lds"])
    return L
def dma_w(t):
    L = [[f"s_add_u32 m0, s{R.smw}, {(t & 3)*WSLOT}", f"s_mov_b32 s{R.skw}, {t*32*3072}",
          f"buffer_load_dwordx4 v{R.vwo[0]}, {srd(R.srdW)}, s{R.skw} offen lds"]]
    for j in range(1, 3):
        L.append([f"buffer_load_dwordx4 v{R.vwo[j]}, {srd(R.srdW)}, s{R.skw} offen offset:{1024*j} lds"])
    return L

def reads(t, kk, setn):
    a0, b0 = R.opA[setn], R.opB[setn]
    vx = R.vx[2*(t & 1) + kk]
    xs = ((t >> 1) & 1)*XSLOT
    wsl = (t & 3)*WSLOT
    def rdA(tt):
        vw = R.vw2 if tt == 2 else R.vw
        return [f"ds_read_b64_tr_b16 v[{a0+4*tt+2*rd}:{a0+4*tt+2*rd+1}], v{vw} offset:{wsl + kk*3072 + rd*768 + tt*32}" for rd in range(2)]
    def rdB(tt):
        return [f"ds_read_b128 v[{b0+4*tt}:{b0+4*tt+3}], v{vx} offset:{xs + 4096*tt}"]
    return rdA(0) + rdB(0) + rdB(1) + rdA(1) + rdA(2)

def mfmas(setn, first=False):
    a0, b0 = R.opA[setn], R.opB[setn]
    L = []
    for tt in range(3):
        for t in range(2):
            d = ACC + (tt*2 + t)*16
            L.append(f"v_mfma_f32_32x32x16_bf16 v[{d}:{d+15}], v[{a0+4*tt}:{a0+4*tt+3}], v[{b0+4*t}:{b0+4*t+3}], " + ("0" if first else f"v[{d}:{d+15}]"))
    return L

def prologue(A, vm):
    A.c("---- F1 prologue ----")
    for g in dma_x(0): A(g)
    vm.issue('x0', 4)
    for t in (0, 1):
        for g in dma_w(t): A(g)
        vm.issue(f'w{t}', 3)
    setup_reads(A)
    for g in dma_x(1): A(g)
    vm.issue('x1', 4)
    for t in (2, 3):
        for g in dma_w(t): A(g)
        vm.issue(f'w{t}', 3)

def main(A, vm, stamp=None, nodma=False):
    A(f"s_waitcnt vmcnt({vm.wait({'x0','w0'})})")
    A("s_barrier")
    if stamp: stamp(2)
    A(reads(0, 0, 0))
    rdpos = ((0, 3), (1, 3), (2, 2))
    def split(rd):
        g = [[] for _ in range(6)]
        k = 0
        for gi, n in rdpos:
            g[gi] += rd[k:k+n]; k += n
        return g
    pend = []
    for t in range(NST):
        A.c(f"F1 stage {t}")
        g = split(reads(t, 1, 1))
        for gi, ins, tag in pend:
            g[gi-6] += ins; vm.issue(tag)
        pend = []
        A("s_waitcnt lgkmcnt(0)")
        A(place(mfmas(0, first=(t == 0)), g))
        if t + 1 < NST:
            need = {f'w{t+1}'}
            if (t + 1) % 2 == 0: need.add(f'x{(t+1)//2}')
            A(f"s_waitcnt vmcnt({vm.wait(need)}) lgkmcnt(0)")
            A("s_barrier")
            g = split(reads(t+1, 0, 0))
            atoms = []
            if not nodma:
                if (t & 1) and (t >> 1) + 2 < NST//2:
                    atoms += [(ins, f'x{(t>>1)+2}') for ins in dma_x((t >> 1) + 2)]
                if t + 4 < NST:
                    atoms += [(ins, f'w{t+4}') for ins in dma_w(t + 4)]
            n = len(atoms)
            posn = {7: (0, 1, 3, 4, 6, 8, 10), 3: (1, 5, 9), 4: (1, 4, 7, 10), 0: ()}[n]
            for p, (ins, tag) in zip(posn, atoms):
                if p < 6:
                    g[p] += ins; vm.issue(tag)
                else: pend.append((p, ins, tag))
            A(place(mfmas(1), g))
        else:
            A("s_waitcnt lgkmcnt(0)")
            A(mfmas(1))

def epilogue(A, vm, pWS, sc=" sc1"):
    st, t = R.st, R.vt
    A.c("---- F1 epilogue ----")
    A.srd(R.srdH, pWS, SZ_H, OFF_H)
    A(f"s_lshr_b32 s{st}, s{R.sw}, 1")
    A(f"s_lshl_b32 s{st}, s{st}, 1")
    A(f"s_lshl_b32 s{st+1}, s{R.smt}, 2")
    A(f"s_add_u32 s{st}, s{st}, s{st+1}")
    A(f"s_mul_i32 s{st}, s{st}, 96")
    A(f"s_mul_i32 s{st+1}, s{R.sft}, 6")
    A(f"s_add_u32 s{st}, s{st}, s{st+1}")
    A(f"s_and_b32 s{st+1}, s{R.sw}, 1")
    A(f"s_mul_i32 s{st+1}, s{st+1}, 3")
    A(f"s_add_u32 s{st}, s{st}, s{st+1}")
    A(f"s_lshl_b32 s{st}, s{st}, 10")
    A(f"v_and_b32 v{t}, 63, v0")
    A(f"v_lshlrev_b32 v{t}, 4, v{t}")
    A(f"s_mov_b32 s{st+2}, 0xbfb8aa3b")
    A(f"s_mov_b32 s{st+3}, 0xbfb8aa3b")
    A.nop(4)
    E, O = 16, 32
    for tt in range(3):
        for tc in range(2):
            d = ACC + (tt*2 + tc)*16
            o = O + 4*((tt*2+tc) & 1)
            gi = [0, 2, 8, 10]
            for k, g in enumerate(gi): A(f"v_pk_mul_f32 v[{E+2*k}:{E+2*k+1}], v[{d+g}:{d+g+1}], s[{st+2}:{st+3}]")
            for k in range(8): A(f"v_exp_f32 v{E+k}, v{E+k}")
            for k, g in enumerate(gi): A(f"v_pk_mul_f32 v[{d+g+4}:{d+g+5}], v[{d+g}:{d+g+1}], v[{d+g+4}:{d+g+5}]")
            for k in range(4): A(f"v_pk_add_f32 v[{E+2*k}:{E+2*k+1}], v[{E+2*k}:{E+2*k+1}], 1.0 op_sel_hi:[1,0]")
            for k in range(8): A(f"v_rcp_f32 v{E+k}, v{E+k}")
            A("s_nop 0")
            for k, g in enumerate(gi): A(f"v_pk_mul_f32 v[{d+g+4}:{d+g+5}], v[{d+g+4}:{d+g+5}], v[{E+2*k}:{E+2*k+1}]")
            for k, g in enumerate(gi): A(f"v_cvt_pk_bf16_f32 v{o+k}, v{d+g+4}, v{d+g+5}")
            off = (tc*96 + tt)*1024
            A(f"s_add_u32 s{st+1}, s{st}, {off}")
            A(f"buffer_store_dwordx4 v[{o}:{o+3}], v{t}, {srd(R.srdH)}, s{st+1} offen{sc}")
            vm.issue('hst')
```

```python
from asmlib import *
from layout import *

SLOT = 20480
NA3, NF2 = 6, 12
NSTG = NA3 + NF2

class R:
    vl16 = 1
    vz, vh = 2, 3
    vrd = (4, 5)
    vout = 6
    vg0, vg1 = 7, 8
    vt = 10
    opW = (16, 36)
    act = 56
    accA = 120
    accB = 160
    srdFT, srdWT, srdZ, srdH, srdO, srdG = 8, 12, 16, 36, 40, 44
    sw, smh, skh, sT, sdt = 20, 21, 22, 23, 24
    sm0 = 25
    sWoff = 26
    sAoff = 27
    st = 28

def setup(A, s_b, pWS, pOUT):
    st, t = R.st, R.vt
    A.c("---- G2 setup ----")
    A(f"v_lshrrev_b32 v{t}, 6, v0")
    A(f"s_and_b32 s{st}, s{s_b}, 3")
    A(f"v_readfirstlane_b32 s{R.sw}, v{t}")
    A(f"s_lshl_b32 s{st}, s{st}, 3")
    A(f"s_lshr_b32 s{st+1}, s{s_b}, 3")
    A(f"s_and_b32 s{st+1}, s{st+1}, 7")
    A(f"s_add_u32 s{R.sT}, s{st}, s{st+1}")
    A(f"s_lshr_b32 s{st}, s{s_b}, 2")
    A(f"s_and_b32 s{st}, s{st}, 1")
    A(f"s_lshl_b32 s{st}, s{st}, 2")
    A(f"s_lshr_b32 s{st+1}, s{s_b}, 6")
    A(f"s_add_u32 s{R.sdt}, s{st}, s{st+1}")
    A(f"s_and_b32 s{R.smh}, s{R.sw}, 1")
    A(f"s_lshr_b32 s{R.skh}, s{R.sw}, 1")
    A.srd(R.srdFT, pWS, SZ_FT, OFF_FT)
    A.srd(R.srdWT, pWS, SZ_WT, OFF_WT)
    A.srd(R.srdZ, pWS, SZ_Z, OFF_Z)
    A.srd(R.srdH, pWS, SZ_H, OFF_H)
    A.srd(R.srdO, pOUT, 2048*640*2)
    A.srd(R.srdG, pWS, 8192, OFF_G)
    A(f"v_and_b32 v{t}, 63, v0")
    A(f"v_lshlrev_b32 v{R.vl16}, 4, v{t}")
    A(f"s_mul_i32 s{R.sm0}, s{R.sw}, 5120")
    A(f"v_and_b32 v{t+1}, 15, v{t}")
    A(f"v_lshrrev_b32 v{t+2}, 4, v{t}")
    A(f"s_lshl_b32 s{st}, s{R.sT}, 5")
    A(f"s_lshl_b32 s{st+1}, s{R.smh}, 4")
    A(f"s_add_u32 s{st}, s{st}, s{st+1}")
    A(f"v_lshl_add_u32 v{t+3}, v{t+2}, 11, v{t+1}")
    A(f"v_add_u32 v{t+3}, s{st}, v{t+3}")
    A(f"v_lshlrev_b32 v{R.vz}, 4, v{t+3}")
    A(f"v_lshl_add_u32 v{t+3}, v{t+2}, 5, v{t+1}")
    A(f"v_add_u32 v{t+3}, s{st+1}, v{t+3}")
    A(f"v_lshlrev_b32 v{t+3}, 4, v{t+3}")
    A(f"s_mul_i32 s{st+2}, s{R.sT}, {96*1024}")
    A(f"v_add_u32 v{R.vh}, s{st+2}, v{t+3}")
    A(f"s_mul_i32 s{st+2}, s{R.skh}, 10240")
    A(f"v_add_u32 v{R.vrd[0]}, s{st+2}, v{R.vl16}")
    A(f"v_add_u32 v{R.vrd[1]}, {2*SLOT}, v{R.vrd[0]}")
    A(f"s_lshl_b32 s{st+2}, s{R.skh}, 10")
    A(f"s_add_u32 s{st+2}, s{st+2}, s{st}")
    A(f"v_add_u32 v{t+3}, s{st+2}, v{t+1}")
    A(f"v_mul_u32_u24 v{t+3}, 1280, v{t+3}")
    A(f"s_mul_i32 s{st+2}, s{R.sdt}, 160")
    A(f"v_lshl_add_u32 v{t+3}, v{t+2}, 3, v{t+3}")
    A(f"v_add_u32 v{R.vout}, s{st+2}, v{t+3}")
    A(f"v_add_u32 v{t+3}, s{st}, v{t+1}")
    A(f"v_lshlrev_b32 v{R.vg0}, 2, v{t+3}")

ORDER = "AB"
def stages():
    L = []
    for k in ORDER:
        L += [(k, i) for i in range(NA3 if k == "A" else NF2)]
    return L
STG = stages()

def dma_w(sg):
    kind, i = STG[sg]
    sr = R.srdFT if kind == "A" else R.srdWT
    base = (2*i)*8*5120
    so = R.st
    L = [[f"s_add_u32 m0, s{R.sm0}, {(sg & 3)*SLOT}", f"s_add_u32 s{so}, s{R.sWoff}, {base}",
          f"buffer_load_dwordx4 v{R.vl16}, {srd(sr)}, s{so} offen sc1 lds"]]
    for j in range(1, 4):
        L.append([f"buffer_load_dwordx4 v{R.vl16}, {srd(sr)}, s{so} offen offset:{1024*j} sc1 lds"])
    L.append([f"s_add_u32 m0, m0, 4096", f"s_add_u32 s{so}, s{so}, 4096",
              f"buffer_load_dwordx4 v{R.vl16}, {srd(sr)}, s{so} offen sc1 lds"])
    return L

def set_phase_offsets(A, kind):
    st = R.st
    a3 = kind == "A"
    khm = 12 if a3 else 24
    A(f"s_mul_i32 s{st+1}, s{R.skh}, {khm}")
    A(f"s_add_u32 s{st+2}, s{st+1}, s{R.smh}")
    A(f"s_lshl_b32 s{st+2}, s{st+2}, 3")
    A(f"s_add_u32 s{st+2}, s{st+2}, s{R.sdt}")
    A(f"s_mul_i32 s{R.sWoff}, s{st+2}, 5120")
    A(f"s_mul_i32 s{R.sAoff}, s{st+1}, {131072 if a3 else 2048}")

def load_act(sg, sc=" sc1"):
    kind, i = STG[sg]
    L = []
    so = R.st + 1
    for r in range(2):
        S = 2*i + r
        for tau in range(2):
            d = R.act + (sg & 3)*16 + (r*2 + tau)*4
            if kind == "A":
                o = S*131072 + tau*16384
                L.append([f"s_add_u32 s{so}, s{R.sAoff}, {o}", f"buffer_load_dwordx4 v[{d}:{d+3}], v{R.vz}, {srd(R.srdZ)}, s{so} offen{sc}"])
            else:
                o = S*2048 + tau*32*96*1024
                L.append([f"s_add_u32 s{so}, s{R.sAoff}, {o}", f"buffer_load_dwordx4 v[{d}:{d+3}], v{R.vh}, {srd(R.srdH)}, s{so} offen{sc}"])
    return L

def reads(sg, r, setn):
    base = R.vrd[(sg & 3) >> 1]
    o = ((sg & 3) & 1)*SLOT + r*5120
    w = R.opW[setn]
    return [f"ds_read_b128 v[{w+4*mt}:{w+4*mt+3}], v{base} offset:{o + mt*1024}" for mt in range(5)]

def mfmas(sg, r, setn):
    kind, i = STG[sg]
    acc = R.accA if kind == "A" else R.accB
    first = i == 0 and r == 0
    w = R.opW[setn]
    L = []
    for mt in range(5):
        for tau in range(2):
            d = acc + tau*20 + mt*4
            b = R.act + (sg & 3)*16 + (r*2 + tau)*4
            L.append(f"v_mfma_f32_16x16x32_bf16 v[{d}:{d+3}], v[{w+4*mt}:{w+4*mt+3}], v[{b}:{b+3}], " + ("0" if first else f"v[{d}:{d+3}]"))
    return L

def main(A, vm, dep=None, stamp=None):
    n_all = len(STG)
    k0 = STG[0][0]
    set_phase_offsets(A, k0)
    if dep: dep(k0); vm.q = []
    for sg in range(3):
        A(dma_w(sg)); vm.issue(f'w{sg}', 5)
        A(load_act(sg)); vm.issue(f'a{sg}', 4)
    A(f"s_waitcnt vmcnt({vm.wait({'w0','a0'})})")
    A("s_barrier")
    A(reads(0, 0, 0))
    for sg in range(n_all):
        A.c(f"G2 stage {sg} {STG[sg]}")
        if stamp and sg > 0 and STG[sg][0] != STG[sg-1][0]: stamp()
        rd = reads(sg, 1, 1)
        A("s_waitcnt lgkmcnt(0)")
        A(place(mfmas(sg, 0, 0), [rd[0:2], rd[2:4], rd[4:5]]))
        if sg + 1 < n_all:
            A(f"s_waitcnt vmcnt({vm.wait({f'w{sg+1}', f'a{sg+1}'})}) lgkmcnt(0)")
            A("s_barrier")
            rd = reads(sg+1, 0, 0)
            g = [rd[0:2], rd[2:4], rd[4:5]] + [[] for _ in range(7)]
            n = sg + 3
            if n < n_all:
                if STG[n][0] != STG[n-1][0]:
                    set_phase_offsets(A, STG[n][0])
                    if dep: dep(STG[n][0]); vm.q = []
                atoms = dma_w(n) + load_act(n)
                for k, ins in enumerate(atoms): g[min(9, 1 + k)] += ins
                vm.issue(f'w{n}', 5); vm.issue(f'a{n}', 4)
            A(place(mfmas(sg, 1, 1), g))
        else:
            A("s_waitcnt lgkmcnt(0)")
            A(mfmas(sg, 1, 1))

def epilogue(A, vm, lds_base=0):
    st, t = R.st, R.vt
    A.c("---- G2 epilogue ----")
    g0, g1, og0, og1 = 16, 17, 18, 19
    A(f"buffer_load_dword v{g0}, v{R.vg0}, {srd(R.srdG)}, 0 offen sc1")
    A(f"s_mov_b32 s{st}, 4096")
    A(f"buffer_load_dword v{g1}, v{R.vg0}, {srd(R.srdG)}, s{st} offen sc1")
    A("s_waitcnt vmcnt(0)")
    kap = 1.0/(2048*640)
    import struct
    kb = struct.unpack('<I', struct.pack('<f', kap))[0]
    for g, og in ((g0, og0), (g1, og1)):
        A(f"v_sub_f32 v{og}, 1.0, v{g}")
        A(f"v_cvt_pk_bf16_f32 v{og}, v{og}, v{og}")
        A(f"v_and_b32 v{og}, 0xffff0000, v{og}")
        A(f"v_mul_f32 v{g}, {hex(kb)}, v{g}")
    A.nop(4)
    for i in range(20):
        u, vv, b0, b1 = R.accA+i, R.accA+20+i, R.accB+i, R.accB+20+i
        A(f"v_add_f32 v{t}, v{u}, v{vv}")
        A(f"v_sub_f32 v{t+1}, v{u}, v{vv}")
        A(f"v_mul_f32 v{b0}, v{og0}, v{b0}")
        A(f"v_mul_f32 v{b1}, v{og1}, v{b1}")
        A(f"v_fma_f32 v{u}, v{g0}, v{t}, v{b0}")
        A(f"v_fma_f32 v{vv}, v{g1}, v{t+1}, v{b1}")
    A("s_barrier")
    A(f"s_mul_i32 s{st}, s{R.sw}, 5120")
    A(f"v_add_u32 v{t}, s{st}, v{R.vl16}")
    A(f"s_xor_b32 s{st+1}, s{R.sw}, 2")
    A(f"s_mul_i32 s{st+1}, s{st+1}, 5120")
    A(f"v_add_u32 v{t+1}, s{st+1}, v{R.vl16}")
    lk, le = A.label("k1"), A.label("k")
    A(f"s_cmp_eq_u32 s{R.skh}, 0")
    A(f"s_cbranch_scc1 {lk}")
    for i in range(20): A(f"v_swap_b32 v{R.accA+i}, v{R.accA+20+i}")
    A(f"{lk}:")
    for mt in range(5):
        A(f"ds_write_b128 v{t}, v[{R.accA+20+4*mt}:{R.accA+23+4*mt}] offset:{lds_base + mt*1024}")
    A("s_waitcnt lgkmcnt(0)")
    A("s_barrier")
    for mt in range(5):
        A(f"ds_read_b128 v[{R.accB+4*mt}:{R.accB+3+4*mt}], v{t+1} offset:{lds_base + mt*1024}")
    A("s_waitcnt lgkmcnt(0)")
    for mt in range(5):
        x = R.accA + 4*mt
        for j in range(4): A(f"v_add_f32 v{x+j}, v{x+j}, v{R.accB+4*mt+j}")
        A(f"v_cvt_pk_bf16_f32 v{R.accB+20+2*mt}, v{x}, v{x+1}")
        A(f"v_cvt_pk_bf16_f32 v{R.accB+21+2*mt}, v{x+2}, v{x+3}")
        A(f"buffer_store_dwordx2 v[{R.accB+20+2*mt}:{R.accB+21+2*mt}], v{R.vout}, {srd(R.srdO)}, 0 offen offset:{32*mt}")
```

```python
import re
TRANS = ("v_exp_", "v_log_", "v_rcp_", "v_rsq_", "v_sqrt_", "v_sin_", "v_cos_")
REG = re.compile(r"-?\|?\b([vas])(?:(\d+)|\[(\d+):(\d+)\])|\b(vcc|m0|exec)(?:_lo|_hi)?\b")
def regs(tok):
    out = []
    for m in REG.finditer(tok):
        if m.group(5):
            n = m.group(5)
            out += {"vcc": ["vcc"], "m0": ["m0"], "exec": ["exec"]}[n]
        else:
            f = m.group(1)
            if m.group(2) is not None: out.append(f + m.group(2))
            else: out += [f + str(i) for i in range(int(m.group(3)), int(m.group(4)) + 1)]
    return out
def split_ops(rest):
    ops, depth, cur = [], 0, ""
    for ch in rest:
        if ch == "[": depth += 1
        if ch == "]": depth -= 1
        if ch == "," and depth == 0: ops.append(cur.strip()); cur = ""
        else: cur += ch
    if cur.strip(): ops.append(cur.strip())
    return ops

class Ins:
    def __init__(self, line):
        self.line = line
        t = line.strip()
        self.label = t.endswith(":")
        self.skip = (not t) or t.startswith(";") or t.startswith(".") or self.label
        if self.skip: return
        t = t.split(";")[0].strip()
        p = t.split(None, 1)
        self.mn = mn = p[0]
        rest = p[1] if len(p) > 1 else ""
        ops = split_ops(rest)
        self.ops = ops
        self.mfma = mn.startswith("v_mfma")
        self.valu = mn.startswith("v_") and not self.mfma
        self.trans = mn.startswith(TRANS)
        self.vmem = mn.startswith(("buffer_", "global_"))
        self.ds = mn.startswith("ds_")
        self.salu = mn.startswith("s_") and not mn.startswith(("s_waitcnt", "s_nop", "s_barrier", "s_cbranch", "s_branch", "s_endpgm", "s_sleep", "s_setprio", "s_load", "s_memtime", "s_memrealtime"))
        self.dpp = any(k in rest for k in ("quad_perm", "row_shr", "row_shl", "row_ror", "row_mirror", "row_half_mirror", "row_bcast", "row_newbcast"))
        self.perml = mn.startswith("v_permlane")
        self.states = 1
        if mn == "s_nop": self.states = int(ops[0], 0) + 1
        R = [regs(o.split(" ")[0]) if i == len(ops)-1 else regs(o) for i, o in enumerate(ops)]
        self.w, self.r, self.srcC, self.ab = [], [], [], []
        self.lds_dma = self.vmem and rest.rstrip().endswith(" lds")
        self.store = self.vmem and ("store" in mn or "atomic" in mn)
        if self.mfma:
            self.w = R[0]; self.ab = R[1] + R[2]; self.srcC = R[3] if len(R) > 3 else []
            self.r = self.ab + self.srcC
            self.passes = 8 if "32x32" in mn else 4
        elif self.valu:
            if mn.startswith(("v_cmp",)):
                self.w = R[0]; self.r = sum(R[1:], [])
            elif mn.startswith(("v_swap", "v_permlane16_swap", "v_permlane32_swap")):
                self.w = R[0] + R[1]; self.r = R[0] + R[1]
            elif mn.startswith(("v_add_co", "v_sub_co", "v_addc_co", "v_subb_co")):
                self.w = R[0] + R[1]; self.r = sum(R[2:], [])
            else:
                self.w = R[0]; self.r = sum(R[1:], [])
                if mn.startswith(("v_fmac", "v_pk_fmac", "v_dot2c", "v_writelane")) : self.r += R[0]
                if mn.startswith("v_cndmask") and len(ops) == 3: self.r.append("vcc")
                if mn.startswith("v_cndmask_b32") and len(ops) == 4 and ops[3].split(" ")[0] == "vcc": self.r.append("vcc")
        elif self.vmem:
            if mn.startswith("buffer_inv") or mn.startswith("buffer_wbl2"): pass
            elif self.lds_dma: self.r = sum(R, []) + ["m0"]
            elif self.store: self.r = sum(R, [])
            else:
                self.w = R[0]; self.r = sum(R[1:], [])
                if "d16" in mn: self.r += R[0]
        elif self.ds:
            if mn.startswith(("ds_read", "ds_bpermute", "ds_permute", "ds_swizzle")):
                self.w = R[0]; self.r = sum(R[1:], [])
            else: self.r = sum(R, [])
        elif self.salu:
            if mn.startswith(("s_cmp", "s_bitcmp")): self.r = sum(R, [])
            else:
                self.w = R[0] if R else []; self.r = sum(R[1:], [])
        elif mn.startswith("s_load") or mn.startswith("s_mem"):
            self.w = R[0] if R else []; self.r = sum(R[1:], [])

def need(p, c):
    n = 0
    pw, cr, cw = set(p.w), set(c.r), set(c.w)
    vg = lambda s: {x for x in s if x[0] in "va" and x != "vcc"}
    sg = lambda s: {x for x in s if x[0] == "s" or x in ("vcc",)}
    if p.valu:
        if c.mfma and vg(pw) & cr: n = max(n, 2)
        if c.valu and sg(pw) & cr:
            n = max(n, 4 if c.mn.startswith(("v_readlane", "v_writelane")) else 2)
        if c.vmem and sg(pw) & cr: n = max(n, 5)
        if c.salu and sg(pw) & cr: n = max(n, 1)
        if c.valu and c.mn.startswith(("v_readlane", "v_readfirstlane")) and vg(pw) & cr: n = max(n, 1)
        if c.valu and (c.dpp or c.perml) and vg(pw) & cr: n = max(n, 2)
        if p.trans and c.valu and not c.trans and vg(pw) & cr: n = max(n, 1)
        if p.trans and (c.ds or c.vmem) and vg(pw) & cr: n = max(n, 1)
    if p.valu and p.mn.startswith('v_dot') and pw & (cr | cw) and c.mn != p.mn: n = max(n, 3)
    if p.mfma:
        big = p.passes == 8
        if (c.valu or c.vmem or c.ds) and pw & (cr | cw): n = max(n, 12 if big else 8)
        if c.mfma:
            if pw & set(c.ab): n = max(n, 12 if big else 8)
            if pw & set(c.srcC) and not (c.srcC == p.w and c.passes == p.passes): n = max(n, 10 if big else 6)
            if pw & cw and not (c.w == p.w and c.srcC == p.w) and not (pw & set(c.srcC)): n = max(n, 12 if big else 8)
        if c.valu and set(p.srcC) & cw: n = max(n, 7 if big else 3)
    if p.salu and "m0" in pw and c.lds_dma: n = max(n, 1)
    if p.vmem and p.store and ("x4" in p.mn or "x3" in p.mn):
        data = set(regs(p.ops[0])) if p.mn.startswith("buffer_") else set(regs(p.ops[1]))
        if c.valu and data & cw: n = max(n, 2)
        elif (c.ds or c.vmem) and data & cw: n = max(n, 1)
    return n

WINDOW = 14
def fix(lines, verbose=False):
    out = []
    hist = []
    snap = {}
    inserted = 0
    for ln in lines:
        I = Ins(ln)
        if I.label:
            name = ln.strip()[:-1]
            hs = snap.pop(name, [])
            if hs:
                merged = {}
                for h in hs + [hist]:
                    for (p, d) in h:
                        k = id(p)
                        if k not in merged or merged[k][1] > d: merged[k] = (p, d)
                hist = list(merged.values())
            out.append(ln); continue
        if I.skip:
            out.append(ln); continue
        req = 0
        for (p, d) in hist:
            n = need(p, I)
            if n > d: req = max(req, n - d)
        if req:
            inserted += 1
            if verbose: print("hazard: +%d before: %s" % (req, ln.strip()))
            k = req
            while k > 0:
                m = min(k, 16); out.append(f"  s_nop {m-1}"); k -= m
            hist = [(p, d + req) for (p, d) in hist]
        out.append(ln)
        if I.mn.startswith(("s_cbranch", "s_branch")):
            tgt = I.ops[0]
            snap.setdefault(tgt, []).append([(p, d + 1) for (p, d) in hist if d + 1 < WINDOW])
            if I.mn == "s_branch":
                hist = []
                continue
        hist = [(p, d + I.states) for (p, d) in hist if d + I.states < WINDOW]
        if I.mfma or I.valu or I.salu or I.vmem: hist.append((I, 0))
    return out, inserted
```

```python
OFF_EPOCH = 0
OFF_FLAG1 = 1024
OFF_FLAG2 = 2048
OFF_FLAG3 = 3072
OFF_G     = 8192
OFF_H     = 1 << 20
SZ_H      = 2048*1536*2
OFF_X1    = 8 << 20
SZ_X1     = 81*2*16384
OFF_WF    = 12 << 20
SZ_WF     = 81*2*16384
OFF_Z     = 16 << 20
SZ_Z      = 81*2*16384
OFF_FT    = 20 << 20
SZ_FT     = 21*8*5120
OFF_WT    = 22 << 20
SZ_WT     = 48*8*5120
KA_AX, KA_WR, KA_WI, KA_BX, KA_WG, KA_WU, KA_WD, KA_GW, KA_OUT, KA_DBG, KA_WS = [8*i for i in range(11)]
```

```python
import sys, os
sys.path.insert(0, os.path.dirname(os.path.abspath(__file__)))
from asmlib import *
from layout import *
import f1, g2, aux, hazard

NAME = "gated_mix__spectral_gfnet__swiglu_ffn__prompt_kernel"
pAX, pWR, pWI, pBX, pWG, pWU, pWD, pGW, pOUT, pDBG, pWS = 68, 70, 72, 74, 76, 78, 80, 82, 84, 86, 88
sNONCE, srdF, sSPIN, sTMP, sID = 90, 92, 96, 97, 98
SPIN_MAX = 20000

class Gen:
    def __init__(self, stamps=False, order="AB", gemm_first=True):
        self.A = Asm("K"); self.stamps = stamps; self.ns = 0; self.names = {}
        self.gemm_first = gemm_first
        g2.ORDER = order; g2.STG = g2.stages()
    def stamp(self, name=None):
        if not self.stamps: return
        A = self.A
        A("s_memrealtime s[100:101]")
        A("s_waitcnt lgkmcnt(0)")
        A(f"v_writelane_b32 v255, s100, {self.ns}")
        self.names.setdefault(self.role, []).append((self.ns, name))
        self.ns += 1
    def dump_stamps(self):
        if not self.stamps: return
        A = self.A
        A("s_waitcnt vmcnt(0) lgkmcnt(0)")
        A.srd(8, pDBG, 1 << 20)
        A("v_lshlrev_b32 v1, 2, v0")
        A("s_lshl_b32 s3, s2, 10")
        A("buffer_store_dword v255, v1, s[8:11], s3 offen")
    def signal(self, off, s_idx):
        A = self.A
        lab = A.label("sig")
        A("s_waitcnt vmcnt(0)")
        A("s_barrier")
        A(f"s_cmp_lg_u32 s20, 0")
        A(f"s_cbranch_scc1 {lab}")
        A(f"s_lshl_b32 s{sTMP}, s{s_idx}, 2")
        A(f"s_add_u32 s{sTMP}, s{sTMP}, {off}")
        A(f"v_mov_b32 v14, s{sNONCE}")
        A(f"v_mov_b32 v15, 0")
        A("s_mov_b64 exec, 1")
        A(f"buffer_store_dword v14, v15, {srd(srdF)}, s{sTMP} offen sc1")
        A("s_mov_b64 exec, -1")
        A(f"{lab}:")
    def wait_all(self, off):
        A = self.A
        lo, ok = A.label("w"), A.label("wok")
        A(f"v_and_b32 v14, 63, v0")
        A(f"v_lshlrev_b32 v14, 4, v14")
        A(f"s_mov_b32 s{sSPIN}, 0")
        A(f"s_mov_b32 s{sTMP}, {off}")
        A(f"{lo}:")
        A(f"buffer_load_dwordx4 v[10:13], v14, {srd(srdF)}, s{sTMP} offen sc1")
        A("s_waitcnt vmcnt(0)")
        A(f"v_xor_b32 v10, s{sNONCE}, v10")
        A(f"v_xor_b32 v11, s{sNONCE}, v11")
        A(f"v_xor_b32 v12, s{sNONCE}, v12")
        A(f"v_xor_b32 v13, s{sNONCE}, v13")
        A(f"v_or3_b32 v10, v10, v11, v12")
        A(f"v_or_b32 v10, v10, v13")
        A(f"v_cmp_ne_u32 vcc, 0, v10")
        A(f"s_cbranch_vccz {ok}")
        A(f"s_add_u32 s{sSPIN}, s{sSPIN}, 1")
        A(f"s_cmp_gt_u32 s{sSPIN}, {SPIN_MAX}")
        A(f"s_cbranch_scc1 {ok}")
        A("s_sleep 2")
        A(f"s_branch {lo}")
        A(f"{ok}:")
    def wait_idx(self, off, v_idx_code):
        A = self.A
        lo, ok = A.label("w"), A.label("wok")
        v_idx_code()
        A(f"s_mov_b32 s{sSPIN}, 0")
        A(f"s_mov_b32 s{sTMP}, {off}")
        A(f"{lo}:")
        A(f"buffer_load_dword v10, v14, {srd(srdF)}, s{sTMP} offen sc1")
        A("s_waitcnt vmcnt(0)")
        A(f"v_cmp_ne_u32 vcc, s{sNONCE}, v10")
        A(f"s_cbranch_vccz {ok}")
        A(f"s_add_u32 s{sSPIN}, s{sSPIN}, 1")
        A(f"s_cmp_gt_u32 s{sSPIN}, {SPIN_MAX}")
        A(f"s_cbranch_scc1 {ok}")
        A("s_sleep 2")
        A(f"s_branch {lo}")
        A(f"{ok}:")

    def gemm_role(self):
        A = self.A; self.role = "gemm"; self.ns = 0
        vm = VM()
        self.stamp("start")
        f1.setup(A, sID, pAX, pWG, pWU, pWS)
        f1.prologue(A, vm)
        self.stamp("f1 issued")
        f1.main(A, vm)
        self.stamp("f1 loop end")
        f1.epilogue(A, vm, pWS)
        A(f"s_lshl_b32 s{sTMP}, s{f1.R.smt}, 4")
        A(f"s_add_u32 s99, s{sTMP}, s{f1.R.sft}")
        self.stamp("f1 epi")
        self.signal(OFF_FLAG3, 99)
        self.stamp("h published")
        vm.q = []
        g2.setup(A, sID, pWS, pOUT)
        self.wait_all(OFF_FLAG1)
        def dep(kind):
            if kind == "A": self.wait_all(OFF_FLAG2)
            else:
                def code():
                    A(f"v_and_b32 v14, 15, v0")
                    A(f"v_bfe_u32 v10, v0, 4, 1")
                    A(f"v_lshl_add_u32 v14, v10, 7, v14")
                    A(f"s_lshr_b32 s{sTMP}, s{g2.R.sT}, 2")
                    A(f"s_lshl_b32 s{sTMP}, s{sTMP}, 4")
                    A(f"v_add_u32 v14, s{sTMP}, v14")
                    A(f"v_lshlrev_b32 v14, 2, v14")
                self.wait_idx(OFF_FLAG3, code)
            self.stamp("dep " + kind)
        g2.main(A, vm, dep, lambda: self.stamp("kind switch"))
        self.stamp("g2 loop end")
        g2.epilogue(A, vm)
        self.stamp("g2 epi")
        lab = A.label("noep")
        A(f"s_or_b32 s{sTMP}, s{sID}, s20")
        A(f"s_cmp_lg_u32 s{sTMP}, 0")
        A(f"s_cbranch_scc1 {lab}")
        self.wait_all(OFF_FLAG3)
        A(f"v_mov_b32 v14, s{sNONCE}")
        A(f"v_mov_b32 v15, 0")
        A("s_mov_b64 exec, 1")
        A(f"buffer_store_dword v14, v15, {srd(srdF)}, 0 offen sc1")
        A("s_mov_b64 exec, -1")
        A(f"{lab}:")
        self.dump_stamps()
        A("s_endpgm")

    def aux_role(self):
        A = self.A; self.role = "aux"; self.ns = 32
        vm = VM()
        self.stamp("start")
        aux.setup(A, sID, pAX, pWR, pWI, pWD, pGW, pWS)
        aux.issue_loads(A, vm)
        aux.consts_a1(A)
        self.stamp("consts")
        aux.a1_core(A, vm)
        aux.gate(A, vm)
        A(f"s_waitcnt vmcnt({vm.wait({'wd'})})")
        aux.a1_elem(A, vm)
        self.stamp("a1")
        aux.wprep(A, vm)
        aux.wtprep(A, vm)
        aux.ftgen(A, vm)
        self.stamp("preps")
        self.signal(OFF_FLAG1, sID)
        self.stamp("flag1")
        vm.q = []
        lab = A.label("noa2")
        A(f"s_cmp_ge_u32 s{sID}, 162")
        A(f"s_cbranch_scc1 {lab}")
        aux.consts_a2(A)
        self.wait_all(OFF_FLAG1)
        self.stamp("dep1")
        vm.q = []
        aux.a2_loads(A, vm)
        aux.a2(A, vm)
        self.stamp("a2")
        A(f"{lab}:")
        self.signal(OFF_FLAG2, sID)
        self.stamp("flag2")
        self.dump_stamps()
        A("s_endpgm")

    def build(self):
        A = self.A
        A(f"s_cmp_ge_u32 s2, 512")
        A(f"s_cbranch_scc1 K_exit")
        A(f"s_load_dwordx16 s[68:83], s[0:1], 0")
        A(f"s_load_dwordx4 s[84:87], s[0:1], 64")
        A(f"s_load_dwordx2 s[88:89], s[0:1], 80")
        if self.stamps: A("v_mov_b32 v255, 0")
        A(f"s_and_b32 s{sID}, s2, 255")
        A("s_waitcnt lgkmcnt(0)")
        A(f"s_load_dword s{sNONCE}, s[{pWS}:{pWS+1}], {OFF_EPOCH}")
        A.srd(srdF, pWS, 4096)
        A("s_waitcnt lgkmcnt(0)")
        A(f"s_add_u32 s{sNONCE}, s{sNONCE}, 1")
        A(f"s_cmp_ge_u32 s2, 256")
        A(f"s_cbranch_scc{1 if self.gemm_first else 0} K_aux")
        self.gemm_role()
        A("K_aux:")
        self.aux_role()
        A("K_exit:")
        A("s_endpgm")
        lines, n = hazard.fix(A.l)
        return lines

HEADER = open(os.path.join(os.path.dirname(os.path.abspath(__file__)), "header.txt")).read()
def full_source(**kw):
    g = Gen(**kw)
    body = "\n".join(g.build())
    src = HEADER + f"""; @launch grid=(512,1,1) block=(256,1,1) lds=81920
.amdgcn_target "amdgcn-amd-amdhsa--gfx950"
.text
.globl {NAME}
.p2align 8
.type {NAME},@function
{NAME}:
{body}
.section .rodata,"a"
.p2align 6
.amdhsa_kernel {NAME}
  .amdhsa_next_free_vgpr 256
  .amdhsa_next_free_sgpr 102
  .amdhsa_accum_offset 256
  .amdhsa_group_segment_fixed_size 0
  .amdhsa_kernarg_size 88
  .amdhsa_user_sgpr_count 2
  .amdhsa_user_sgpr_kernarg_segment_ptr 1
  .amdhsa_system_sgpr_workgroup_id_x 1
.end_amdhsa_kernel
"""
    return src, g
if __name__ == "__main__":
    src, g = full_source()
    out = sys.argv[1] if len(sys.argv) > 1 else "gated_mix__spectral_gfnet__swiglu_ffn__prompt.s"
    open(out, "w").write(src)
    print("wrote", out, len(src), "bytes")
```

```python
import sys, os
sys.path.insert(0, os.path.dirname(os.path.abspath(__file__)))
from asmlib import *
from layout import *
import f1, g2, aux, hazard

NAME = "gated_mix__spectral_gfnet__swiglu_ffn__prompt_kernel"
pAX, pWR, pWI, pBX, pWG, pWU, pWD, pGW, pOUT, pDBG, pWS = 68, 70, 72, 74, 76, 78, 80, 82, 84, 86, 88
sNONCE, srdF, sSPIN, sTMP, sID = 90, 92, 96, 97, 98
SPIN_MAX = 20000

class Gen:
    def __init__(self, stamps=False, order="AB", gemm_first=True):
        self.A = Asm("K"); self.stamps = stamps; self.ns = 0; self.names = {}
        self.gemm_first = gemm_first
        self.dbg_sel = {"gemm": [(0,"start",1),(1,"f1 issued",0),(2,"f1 loop end",0),(3,"h published",0),(4,"dep A",0),(5,"dep B",0),(6,"g2 loop end",0),(7,"g2 epi",0)],
                        "aux": [(8,"consts",0),(9,"a1",0),(10,"preps",0),(11,"flag1",0),(12,"dep1",0),(13,"a2",0),(14,"flag2",0),(15,"start",1)]}
        g2.ORDER = order; g2.STG = g2.stages()
    def stamp(self, name=None):
        if not self.stamps: return
        A = self.A
        A("s_memrealtime s[100:101]")
        A("s_waitcnt lgkmcnt(0)")
        A(f"v_writelane_b32 v255, s100, {self.ns}")
        self.names.setdefault(self.role, []).append((self.ns, name))
        self.ns += 1
    def dump_stamps(self):
        if not self.stamps: return
        A = self.A
        if self.stamps == "dbg":
            sel = self.dbg_sel[self.role]
            A("s_waitcnt vmcnt(0) lgkmcnt(0)")
            A.srd(8, pDBG, 256)
            lab = A.label("nd")
            A("s_cmp_lg_u32 s20, 0")
            A(f"s_cbranch_scc1 {lab}")
            names = {nm: idx for idx, nm in self.names[self.role]}
            A("v_mov_b32 v2, 0")
            A("v_mov_b32 v3, 0x40000000")
            for slot, nm, inv in sel:
                A(f"v_readlane_b32 s30, v255, {names[nm]}")
                if inv: A("s_not_b32 s30, s30")
                A(f"s_mov_b32 s31, {4*slot}")
                A(f"v_writelane_b32 v2, s30, {slot}")
                A(f"v_writelane_b32 v3, s31, {slot}")
            A("buffer_atomic_umax v2, v3, s[8:11], 0 offen")
            A(f"{lab}:")
            return
        A("s_waitcnt vmcnt(0) lgkmcnt(0)")
        A.srd(8, pDBG, 1 << 20)
        A("v_lshlrev_b32 v1, 2, v0")
        A("s_lshl_b32 s3, s2, 10")
        A("buffer_store_dword v255, v1, s[8:11], s3 offen")
    def signal(self, off, s_idx):
        A = self.A
        lab = A.label("sig")
        A("s_waitcnt vmcnt(0)")
        A("s_barrier")
        A(f"s_cmp_lg_u32 s20, 0")
        A(f"s_cbranch_scc1 {lab}")
        A(f"s_lshl_b32 s{sTMP}, s{s_idx}, 2")
        A(f"s_add_u32 s{sTMP}, s{sTMP}, {off}")
        A(f"v_mov_b32 v14, s{sNONCE}")
        A(f"v_mov_b32 v15, 0")
        A("s_mov_b64 exec, 1")
        A(f"buffer_store_dword v14, v15, {srd(srdF)}, s{sTMP} offen sc1")
        A("s_mov_b64 exec, -1")
        A(f"{lab}:")
    def wait_all(self, off):
        A = self.A
        lo, ok = A.label("w"), A.label("wok")
        A(f"v_and_b32 v14, 63, v0")
        A(f"v_lshlrev_b32 v14, 4, v14")
        A(f"s_mov_b32 s{sSPIN}, 0")
        A(f"s_mov_b32 s{sTMP}, {off}")
        A(f"{lo}:")
        A(f"buffer_load_dwordx4 v[10:13], v14, {srd(srdF)}, s{sTMP} offen sc1")
        A("s_waitcnt vmcnt(0)")
        A(f"v_xor_b32 v10, s{sNONCE}, v10")
        A(f"v_xor_b32 v11, s{sNONCE}, v11")
        A(f"v_xor_b32 v12, s{sNONCE}, v12")
        A(f"v_xor_b32 v13, s{sNONCE}, v13")
        A(f"v_or3_b32 v10, v10, v11, v12")
        A(f"v_or_b32 v10, v10, v13")
        A(f"v_cmp_ne_u32 vcc, 0, v10")
        A(f"s_cbranch_vccz {ok}")
        A(f"s_add_u32 s{sSPIN}, s{sSPIN}, 1")
        A(f"s_cmp_gt_u32 s{sSPIN}, {SPIN_MAX}")
        A(f"s_cbranch_scc1 {ok}")
        A("s_sleep 2")
        A(f"s_branch {lo}")
        A(f"{ok}:")
    def wait_idx(self, off, v_idx_code):
        A = self.A
        lo, ok = A.label("w"), A.label("wok")
        v_idx_code()
        A(f"s_mov_b32 s{sSPIN}, 0")
        A(f"s_mov_b32 s{sTMP}, {off}")
        A(f"{lo}:")
        A(f"buffer_load_dword v10, v14, {srd(srdF)}, s{sTMP} offen sc1")
        A("s_waitcnt vmcnt(0)")
        A(f"v_cmp_ne_u32 vcc, s{sNONCE}, v10")
        A(f"s_cbranch_vccz {ok}")
        A(f"s_add_u32 s{sSPIN}, s{sSPIN}, 1")
        A(f"s_cmp_gt_u32 s{sSPIN}, {SPIN_MAX}")
        A(f"s_cbranch_scc1 {ok}")
        A("s_sleep 2")
        A(f"s_branch {lo}")
        A(f"{ok}:")

    def gemm_role(self):
        A = self.A; self.role = "gemm"; self.ns = 0
        vm = VM()
        self.stamp("start")
        f1.setup(A, sID, pAX, pWG, pWU, pWS)
        f1.prologue(A, vm)
        self.stamp("f1 issued")
        f1.main(A, vm)
        self.stamp("f1 loop end")
        f1.epilogue(A, vm, pWS)
        A(f"s_lshl_b32 s{sTMP}, s{f1.R.smt}, 4")
        A(f"s_add_u32 s99, s{sTMP}, s{f1.R.sft}")
        self.stamp("f1 epi")
        self.signal(OFF_FLAG3, 99)
        self.stamp("h published")
        vm.q = []
        g2.setup(A, sID, pWS, pOUT)
        self.wait_all(OFF_FLAG1)
        def dep(kind):
            if kind == "A": self.wait_all(OFF_FLAG2)
            else:
                def code():
                    A(f"v_and_b32 v14, 15, v0")
                    A(f"v_bfe_u32 v10, v0, 4, 1")
                    A(f"v_lshl_add_u32 v14, v10, 7, v14")
                    A(f"s_lshr_b32 s{sTMP}, s{g2.R.sT}, 2")
                    A(f"s_lshl_b32 s{sTMP}, s{sTMP}, 4")
                    A(f"v_add_u32 v14, s{sTMP}, v14")
                    A(f"v_lshlrev_b32 v14, 2, v14")
                self.wait_idx(OFF_FLAG3, code)
            self.stamp("dep " + kind)
        g2.main(A, vm, dep, lambda: self.stamp("kind switch"))
        self.stamp("g2 loop end")
        g2.epilogue(A, vm)
        self.stamp("g2 epi")
        lab = A.label("noep")
        A(f"s_or_b32 s{sTMP}, s{sID}, s20")
        A(f"s_cmp_lg_u32 s{sTMP}, 0")
        A(f"s_cbranch_scc1 {lab}")
        self.wait_all(OFF_FLAG3)
        A(f"v_mov_b32 v14, s{sNONCE}")
        A(f"v_mov_b32 v15, 0")
        A("s_mov_b64 exec, 1")
        A(f"buffer_store_dword v14, v15, {srd(srdF)}, 0 offen sc1")
        A("s_mov_b64 exec, -1")
        A(f"{lab}:")
        self.dump_stamps()
        A("s_endpgm")

    def aux_role(self):
        A = self.A; self.role = "aux"; self.ns = 32
        vm = VM()
        self.stamp("start")
        aux.setup(A, sID, pAX, pWR, pWI, pWD, pGW, pWS)
        aux.issue_loads(A, vm)
        aux.consts_a1(A)
        self.stamp("consts")
        aux.a1_core(A, vm)
        aux.gate(A, vm)
        A(f"s_waitcnt vmcnt({vm.wait({'wd'})})")
        aux.a1_elem(A, vm)
        self.stamp("a1")
        aux.wprep(A, vm)
        aux.wtprep(A, vm)
        aux.ftgen(A, vm)
        self.stamp("preps")
        self.signal(OFF_FLAG1, sID)
        self.stamp("flag1")
        vm.q = []
        lab = A.label("noa2")
        A(f"s_cmp_ge_u32 s{sID}, 162")
        A(f"s_cbranch_scc1 {lab}")
        aux.consts_a2(A)
        self.wait_all(OFF_FLAG1)
        self.stamp("dep1")
        vm.q = []
        aux.a2_loads(A, vm)
        aux.a2(A, vm)
        self.stamp("a2")
        A(f"{lab}:")
        self.signal(OFF_FLAG2, sID)
        self.stamp("flag2")
        self.dump_stamps()
        A("s_endpgm")

    def build(self):
        A = self.A
        A(f"s_cmp_ge_u32 s2, 512")
        A(f"s_cbranch_scc1 K_exit")
        A(f"s_load_dwordx16 s[68:83], s[0:1], 0")
        A(f"s_load_dwordx4 s[84:87], s[0:1], 64")
        A(f"s_load_dwordx2 s[88:89], s[0:1], 80")
        if self.stamps: A("v_mov_b32 v255, 0")
        A(f"s_and_b32 s{sID}, s2, 255")
        A("s_waitcnt lgkmcnt(0)")
        A(f"s_load_dword s{sNONCE}, s[{pWS}:{pWS+1}], {OFF_EPOCH}")
        A.srd(srdF, pWS, 4096)
        A("s_waitcnt lgkmcnt(0)")
        A(f"s_add_u32 s{sNONCE}, s{sNONCE}, 1")
        A(f"s_cmp_ge_u32 s2, 256")
        A(f"s_cbranch_scc{1 if self.gemm_first else 0} K_aux")
        self.gemm_role()
        A("K_aux:")
        self.aux_role()
        A("K_exit:")
        A("s_endpgm")
        lines, n = hazard.fix(A.l)
        return lines

HEADER = open(os.path.join(os.path.dirname(os.path.abspath(__file__)), "header.txt")).read()
def full_source(**kw):
    g = Gen(**kw)
    body = "\n".join(g.build())
    src = HEADER + f"""; @launch grid=(512,1,1) block=(256,1,1) lds=81920
.amdgcn_target "amdgcn-amd-amdhsa--gfx950"
.text
.globl {NAME}
.p2align 8
.type {NAME},@function
{NAME}:
{body}
.section .rodata,"a"
.p2align 6
.amdhsa_kernel {NAME}
  .amdhsa_next_free_vgpr 256
  .amdhsa_next_free_sgpr 102
  .amdhsa_accum_offset 256
  .amdhsa_group_segment_fixed_size 0
  .amdhsa_kernarg_size 88
  .amdhsa_user_sgpr_count 2
  .amdhsa_user_sgpr_kernarg_segment_ptr 1
  .amdhsa_system_sgpr_workgroup_id_x 1
.end_amdhsa_kernel
"""
    return src, g
if __name__ == "__main__":
    kw = {}
    for o in sys.argv[2:]:
        k, v_ = o.split("="); kw[k] = eval(v_)
    src, g = full_source(**kw)
    out = sys.argv[1] if len(sys.argv) > 1 else "gated_mix__spectral_gfnet__swiglu_ffn__prompt.s"
    open(out, "w").write(src)
    print("wrote", out, len(src), "bytes")
```

```python
from asmlib import *
from layout import *
import struct
def fb(x): return hex(struct.unpack('<I', struct.pack('<f', x))[0])

import os
SC = os.environ.get('AUXSC', ' sc1')
class R:
    vl = 1
    vn = 2
    vh = 3
    TWr, TWi = 160, 176
    t3r, t3i = 192, 198
    T2r, T2i = 0, 16
    CRe, CIm, F10 = 216, 232, 248
    sw = 20
    sc = 98
    srdAX, srdX1, srdWR, srdWI, srdWF, srdWD, srdWT, srdGW, srdG, srdFT, srdZ = 32, 36, 40, 44, 48, 52, 56, 60, 64, 4, 4
    st = 28
    st2 = 99

AUXB   = 122880
L_XR   = AUXB
L_GW   = AUXB + 12288
L_WS   = AUXB + 14336
L_WD   = AUXB + 32768
L_Z    = 49152 + 4*12288
ZROW, ZWAVE = 2560, 5184
L_X    = AUXB
L_F    = AUXB + 16384

def setup(A, pAX, pWR, pWI, pWD, pGW, pWS):
    A.c("---- aux setup ----")
    A(f"v_and_b32 v{R.vl}, 63, v0")
    A(f"v_and_b32 v{R.vn}, 31, v{R.vl}")
    A(f"v_lshrrev_b32 v{R.vh}, 5, v{R.vl}")
    A.srd(R.srdAX, pAX, 2048*640*2)
    A.srd(R.srdWR, pWR, 2048*321*2)
    A.srd(R.srdWI, pWI, 2048*321*2)
    A.srd(R.srdWD, pWD, 1536*640*2)
    A.srd(R.srdGW, pGW, 640*2)

def setup_out(A, pWS):
    A.srd(R.srdX1, pWS, SZ_X1, OFF_X1)
    A.srd(R.srdWF, pWS, SZ_WF, OFF_WF)
    A.srd(R.srdWT, pWS, SZ_WT, OFF_WT)
    A.srd(R.srdG, pWS, 8192, OFF_G)

XA = 16
def issue_loads(A, vm, mid=None):
    st = R.st
    A.c("x rows: chunk i = 64j + l ; i<80 row s', i<160 row s'+1024, else out of range (zeros)")
    A(f"s_lshl_b32 s{st}, s{R.sc}, 2")
    A(f"s_add_u32 s{st}, s{st}, s{R.sw}")
    A(f"s_mul_i32 s{st}, s{st}, 1280")
    A(f"s_mul_i32 s{st+1}, s{R.sw}, 3072")
    A(f"s_add_u32 m0, s{st+1}, {L_XR}")
    A(f"v_lshlrev_b32 v4, 4, v{R.vl}")
    A(f"buffer_load_dwordx4 v4, {srd(R.srdAX)}, s{st} offen lds")
    A(f"v_add_u32 v5, {1024-1024}, v4")
    A(f"v_add_u32 v6, {1024*1280 - 256 - 1024}, v4")
    A(f"v_cmp_gt_u32 vcc, 16, v{R.vl}")
    A(f"v_cndmask_b32 v5, v6, v5, vcc")
    A(f"buffer_load_dwordx4 v5, {srd(R.srdAX)}, s{st} offen offset:1024 lds")
    A(f"v_add_u32 v5, {1024*1280 + 48*16 - 2048}, v4")
    A(f"v_mov_b32 v6, 0x40000000")
    A(f"v_cmp_gt_u32 vcc, 32, v{R.vl}")
    A(f"v_cndmask_b32 v5, v6, v5, vcc")
    A(f"buffer_load_dwordx4 v5, {srd(R.srdAX)}, s{st} offen offset:2048 lds")
    vm.issue('xr', 3)
    A.c("filter staging: rho=b&63 (rows 32 rho + e), cq=b>>6 ; wave: array = w>>1, rows 16(w&1) + i/12, chunk i%12")
    A(f"s_and_b32 s{st}, s{R.sc}, 63")
    A(f"s_lshl_b32 s{st}, s{st}, 5")
    A(f"s_and_b32 s{st+1}, s{R.sw}, 1")
    A(f"s_lshl_b32 s{st+1}, s{st+1}, 4")
    A(f"s_add_u32 s{st}, s{st}, s{st+1}")
    A(f"s_lshr_b32 s{st+1}, s{R.sc}, 6")
    A(f"s_mul_i32 s{st+1}, s{st+1}, 162")
    A(f"s_mul_i32 s{st+2}, s{R.sw}, 3072")
    A(f"s_add_u32 m0, s{st+2}, {L_WS}")
    A(f"s_cmp_lt_u32 s{R.sw}, 2")
    A(f"s_cselect_b32 s4, s{R.srdWR}, s{R.srdWI}")
    A(f"s_cselect_b32 s5, s{R.srdWR+1}, s{R.srdWI+1}")
    A(f"s_mov_b32 s6, {hex(2048*321*2)}")
    A(f"s_mov_b32 s7, 0x20000")
    for j in range(3):
        A(f"v_add_u32 v5, {64*j}, v{R.vl}")
        A(f"v_mul_u32_u24 v6, 5462, v5")
        A(f"v_lshrrev_b32 v6, 16, v6")
        A(f"v_mul_u32_u24 v7, 12, v6")
        A(f"v_sub_u32 v7, v5, v7")
        A(f"v_add_u32 v6, s{st}, v6")
        A(f"v_mul_u32_u24 v6, 642, v6")
        A(f"v_add_u32 v6, s{st+1}, v6")
        A(f"v_and_b32 v6, -16, v6")
        A(f"v_lshl_add_u32 v6, v7, 4, v6")
        if j: A(f"v_subrev_u32 v6, {1024*j}, v6")
        A(f"buffer_load_dwordx4 v6, s[4:7], 0 offen" + (f" offset:{1024*j}" if j else "") + " lds")
    vm.issue('ws', 3)
    A.c("gate_w: 80 chunks ; wave w loads chunks 64w.. (out of range -> zeros)")
    A(f"s_lshl_b32 s{st}, s{R.sw}, 10")
    A(f"s_min_u32 s{st}, s{st}, 1024")
    A(f"s_add_u32 m0, s{st}, {L_GW}")
    A(f"buffer_load_dwordx4 v4, {srd(R.srdGW)}, s{st} offen lds")
    vm.issue('gw', 1)
    if mid: mid()
    A.c("Wd tile DMA (workgroups >= 240 fall off the end of the buffer and get zeros)")
    A(f"s_mul_i32 s{st+2}, s{R.sc}, 52429")
    A(f"s_lshr_b32 s{st+2}, s{st+2}, 18")
    A(f"s_mul_i32 s{st+3}, s{st+2}, 5")
    A(f"s_sub_u32 s{st+3}, s{R.sc}, s{st+3}")
    A(f"s_lshl_b32 s{st}, s{st+2}, 5")
    A(f"s_lshl_b32 s{st+1}, s{R.sw}, 3")
    A(f"s_add_u32 s{st}, s{st}, s{st+1}")
    A(f"s_mul_i32 s{st}, s{st}, 1280")
    A(f"s_lshl_b32 s{st+1}, s{st+3}, 8")
    A(f"s_add_u32 s{st}, s{st}, s{st+1}")
    A(f"v_lshrrev_b32 v5, 4, v{R.vl}")
    A(f"v_mul_u32_u24 v5, 1280, v5")
    A(f"v_and_b32 v6, 15, v{R.vl}")
    A(f"v_lshl_add_u32 v5, v6, 4, v5")
    A(f"s_lshl_b32 s{st+1}, s{R.sw}, 11")
    A(f"s_add_u32 m0, s{st+1}, {L_WD}")
    A(f"v_add_u32 v6, {4*1280-1024}, v5")
    A(f"buffer_load_dwordx4 v5, {srd(R.srdWD)}, s{st} offen lds")
    A(f"buffer_load_dwordx4 v6, {srd(R.srdWD)}, s{st} offen offset:1024 lds")
    vm.issue('wd', 2)

def consts_a1(A):
    A.c("constants: F32 interleaved, tw320, F10")
    n, h = R.vn, R.vh
    A(f"v_cvt_f32_u32 v4, v{n}")
    A(f"v_cvt_f32_u32 v5, v{h}")
    A(f"v_mul_f32 v6, {fb(1/32)}, v4")
    A(f"v_mul_f32 v7, 4.0, v5")
    A(f"v_mul_f32 v8, v7, v6")
    for i in range(4):
        for q in range(4):
            A(f"v_fmamk_f32 v9, v6, {fb(float(8*i+q))}, v8")
            A(f"v_fract_f32 v9, v9")
            A(f"v_sin_f32 v10, v9")
            A(f"v_cos_f32 v11, v9")
            A("s_nop 0")
            A(f"v_cvt_pk_bf16_f32 v12, v11, v10")
            A(f"v_cvt_pk_bf16_f32 v13, -v10, v11")
            A(f"v_accvgpr_write_b32 a{R.CRe+4*i+q}, v12")
            A(f"v_accvgpr_write_b32 a{R.CIm+4*i+q}, v13")
    A(f"v_mul_f32 v6, {fb(1/320)}, v4")
    A(f"v_mul_f32 v8, v7, v6")
    for idx, (e, j) in enumerate([(0,0),(0,1),(0,2),(0,3),(1,0),(1,1)]):
        A(f"v_fmamk_f32 v9, v6, {fb(float(8*e+j))}, v8")
        A(f"v_cos_f32 v{R.t3r+idx}, v9")
        A(f"v_sin_f32 v{R.t3i+idx}, -v9")
    A(f"v_lshrrev_b32 v9, 3, v{n}")
    A(f"v_lshlrev_b32 v9, 2, v9")
    A(f"v_bfe_u32 v10, v{n}, 2, 1")
    A(f"v_lshl_add_u32 v9, v10, 1, v9")
    A(f"v_bfe_u32 v10, v{n}, 1, 1")
    A(f"v_add_u32 v9, v9, v10")
    A(f"v_cmp_gt_u32 s[{R.st}:{R.st+1}], 10, v9")
    A(f"v_cvt_f32_u32 v9, v9")
    A(f"v_mul_f32 v9, {fb(0.1)}, v9")
    A(f"v_and_b32 v10, 1, v{n}")
    A(f"v_cvt_f32_u32 v10, v10")
    A(f"v_mul_f32 v10, 0.25, v10" if False else f"v_mul_f32 v10, {fb(0.25)}, v10")
    A(f"v_fma_f32 v10, v7, v9, v10")
    A(f"v_cmp_eq_u32 vcc, 0, v{h}")
    A(f"s_and_b64 s[{R.st+2}:{R.st+3}], vcc, s[{R.st}:{R.st+1}]")
    for e in range(2):
        for q in range(4):
            d = R.F10 + 4*e + q
            if e == 1 and q >= 2:
                A(f"v_accvgpr_write_b32 a{d}, 0"); continue
            A(f"v_fmamk_f32 v11, v9, {fb(float(8*e+q))}, v10")
            A(f"v_fract_f32 v11, v11")
            A(f"v_cos_f32 v12, v11")
            A(f"v_sin_f32 v13, v11")
            A("s_nop 0")
            A(f"v_cvt_pk_bf16_f32 v12, v12, v13")
            m = R.st if e == 0 else R.st+2
            A(f"v_cndmask_b32 v12, 0, v12, s[{m}:{m+1}]")
            A(f"v_accvgpr_write_b32 a{d}, v12")

def consts_a2_fill():
    n, h = R.vn, R.vh
    t0, t1, t2, t3, t4, t5 = 243, 244, 245, 246, 247, 248
    L = [f"v_cvt_f32_u32 v{t0}, v{n}", f"v_cvt_f32_u32 v{t1}, v{h}", f"v_mul_f32 v{t1}, 4.0, v{t1}",
         f"v_mul_f32 v{t2}, {fb(1/1024)}, v{t0}", f"v_mul_f32 v{t3}, v{t1}, v{t2}"]
    for i in range(4):
        for j in range(4):
            L += [f"v_fmamk_f32 v{t4}, v{t2}, {fb(float(8*i+j))}, v{t3}",
                  f"v_cos_f32 v{R.TWr+4*i+j}, v{t4}", f"v_sin_f32 v{R.TWi+4*i+j}, -v{t4}"]
    return L

def cmul(A, dr, di, ar, ai, br, bi, t):
    A(f"v_mul_f32 v{t}, v{ai}, v{bi}")
    A(f"v_mul_f32 v{di}, v{ai}, v{br}") if di == ai else A(f"v_mul_f32 v{di}, v{ai}, v{br}")
    A(f"v_fmac_f32 v{di}, v{ar}, v{bi}")
    A(f"v_fma_f32 v{dr}, v{ar}, v{br}, -v{t}")

D1r, D1i, PK, D2 = 32, 48, 96, (32, 48)
def fft320_core(A, xa=XA, tmp=(4, 5)):
    for i in range(4):
        c = "0" if i == 0 else f"v[{D1r}:{D1r+15}]"
        A(f"v_mfma_f32_32x32x16_bf16 v[{D1r}:{D1r+15}], v[{xa+4*i}:{xa+4*i+3}], a[{R.CRe+4*i}:{R.CRe+4*i+3}], {c}")
        c = "0" if i == 0 else f"v[{D1i}:{D1i+15}]"
        A(f"v_mfma_f32_32x32x16_bf16 v[{D1i}:{D1i+15}], v[{xa+4*i}:{xa+4*i+3}], a[{R.CIm+4*i}:{R.CIm+4*i+3}], {c}")
    for r in range(2):
        A(f"v_mov_b32 v{PK+8*r+6}, 0")
        A(f"v_mov_b32 v{PK+8*r+7}, 0")
    A.nop(10)
    for r in range(2):
        for idx, (e, j) in enumerate([(0,0),(0,1),(0,2),(0,3),(1,0),(1,1)]):
            reg = 4*(2*r+e) + j
            ar, ai = D1r+reg, D1i+reg
            tr, ti = R.t3r+idx, R.t3i+idx
            t0, t1 = tmp
            A(f"v_mul_f32 v{t0}, v{ai}, v{ti}")
            A(f"v_mul_f32 v{t1}, v{ai}, v{tr}")
            A(f"v_fma_f32 v{t0}, v{ar}, v{tr}, -v{t0}")
            A(f"v_fmac_f32 v{t1}, v{ar}, v{ti}")
            A(f"v_cvt_pk_bf16_f32 v{PK+8*r+4*e+j}, v{t0}, v{t1}")
    A.nop(2)
    for r in range(2):
        for e in range(2):
            c = "0" if e == 0 else f"v[{D2[r]}:{D2[r]+15}]"
            A(f"v_mfma_f32_32x32x16_bf16 v[{D2[r]}:{D2[r]+15}], a[{R.F10+4*e}:{R.F10+4*e+3}], v[{PK+8*r+4*e}:{PK+8*r+4*e+3}], {c}")
    A.nop(12)

def a1_core(A, vm):
    st = R.st
    A.c("---- A1 core ----")
    A(f"s_waitcnt vmcnt({vm.wait({'xr'})})")
    A(f"v_bfe_u32 v4, v{R.vl}, 4, 1")
    A(f"v_mul_u32_u24 v4, 1280, v4")
    A(f"v_and_b32 v5, 15, v{R.vl}")
    A(f"v_lshl_add_u32 v4, v5, 2, v4")
    A(f"v_mul_u32_u24 v5, 160, v{R.vh}")
    A(f"s_mul_i32 s{st}, s{R.sw}, 3072")
    A(f"s_add_u32 s{st}, s{st}, {L_XR}")
    A(f"v_add3_u32 v4, v4, v5, s{st}")
    for i in range(4):
        for q in range(4):
            A(f"ds_read_b32 v{XA+4*i+q}, v4 offset:{320*i+40*q}")
    A("s_waitcnt lgkmcnt(0)")
    fft320_core(A)
    A(f"s_mul_i32 s{st}, s{R.sw}, {ZWAVE}")
    A(f"s_add_u32 s{st}, s{st}, {L_Z}")
    A(f"v_lshl_add_u32 v4, v{R.vh}, 6, v{R.vn}")
    A(f"v_lshl_add_u32 v4, v4, 3, s{st}")
    for i in range(3):
        if i == 2: A("s_mov_b64 exec, 0xffffffff")
        for r in range(2):
            for jj in range(2):
                d = D2[r] + 4*i + 2*jj
                A(f"ds_write_b64 v4, v[{d}:{d+1}] offset:{r*ZROW + (128*i + 32*jj)*8}")
    A("s_mov_b64 exec, -1")

def a1_elem(A, vm):
    st = R.st
    A.c("---- A1 elementwise ----")
    A("s_waitcnt lgkmcnt(0)")
    A("s_barrier")
    A(f"v_and_b32 v4, 3, v0")
    A(f"v_mul_u32_u24 v5, {ZWAVE}, v4")
    A(f"v_add_u32 v5, {L_Z}, v5")
    A(f"s_lshl_b32 s{st}, s{R.sc}, 2")
    A(f"v_add_u32 v6, s{st}, v4")
    A(f"v_cvt_f32_u32 v7, v6")
    A(f"v_mul_f32 v7, {fb(1/2048)}, v7")
    A(f"v_cos_f32 v12, v7")
    A(f"v_sin_f32 v13, -v7")
    A(f"v_lshlrev_b32 v6, 4, v6")
    A(f"v_lshrrev_b32 v7, 2, v0")
    Zp0, Zq0, Zp1, Zq1 = 32, 34, 36, 38
    for rnd in range(3):
        A.c(f"A1 elementwise round {rnd}")
        A(f"v_add_u32 v8, {64*rnd}, v7")
        A(f"v_sub_u32 v9, 320, v8")
        A(f"v_cmp_eq_u32 vcc, 320, v9")
        A(f"v_lshl_add_u32 v10, v8, 3, v5")
        A(f"v_cndmask_b32 v9, v9, 0, vcc" if False else f"v_cndmask_b32_e64 v9, v9, 0, vcc")
        A(f"v_lshl_add_u32 v11, v9, 3, v5")
        A(f"ds_read_b64 v[{Zp0}:{Zp0+1}], v10")
        A(f"ds_read_b64 v[{Zq0}:{Zq0+1}], v11")
        A(f"ds_read_b64 v[{Zp1}:{Zp1+1}], v10 offset:{ZROW}")
        A(f"ds_read_b64 v[{Zq1}:{Zq1+1}], v11 offset:{ZROW}")
        A(f"v_cvt_f32_u32 v14, v8")
        A(f"v_mul_f32 v14, {fb(1/640)}, v14")
        A(f"v_sin_f32 v15, -v14")
        A(f"v_cos_f32 v14, v14")
        A(f"v_lshrrev_b32 v10, 1, v8")
        A(f"v_lshlrev_b32 v10, 15, v10")
        A(f"v_and_b32 v11, 1, v8")
        A(f"v_lshl_add_u32 v10, v11, 3, v10")
        A(f"v_add_u32 v10, v10, v6")
        A(f"v_cmp_gt_u32 vcc, 162, v8")
        A(f"v_cndmask_b32 v10, {0x40000000}, v10, vcc" if False else f"v_mov_b32 v11, 0x40000000")
        A(f"v_cndmask_b32 v10, v11, v10, vcc")
        A("s_waitcnt lgkmcnt(0)")
        Up, Uq, Vp, Vq = 40, 42, 44, 46
        for (u, vv, z0, z1) in ((Up, Vp, Zp0, Zp1), (Uq, Vq, Zq0, Zq1)):
            A(f"v_pk_add_f32 v[{u}:{u+1}], v[{z0}:{z0+1}], v[{z1}:{z1+1}]")
            A(f"v_pk_add_f32 v[{vv}:{vv+1}], v[{z0}:{z0+1}], v[{z1}:{z1+1}] neg_lo:[0,1] neg_hi:[0,1]")
        out = []
        for pi, (P, Q) in enumerate(((Up, Uq), (Vp, Vq))):
            E, O, T = 48, 50, 52
            Xp, Xq = 54 + 4*pi, 56 + 4*pi
            A(f"v_pk_add_f32 v[{E}:{E+1}], v[{P}:{P+1}], v[{Q}:{Q+1}] neg_hi:[0,1]")
            A(f"v_pk_add_f32 v[{O}:{O+1}], v[{P}:{P+1}], v[{Q}:{Q+1}] neg_lo:[0,1]")
            A(f"v_mul_f32 v{T}, v15, v{O}")
            A(f"v_mul_f32 v{T+1}, v15, v{O+1}")
            A(f"v_fmac_f32 v{T}, v14, v{O+1}")
            A(f"v_fma_f32 v{T+1}, -v14, v{O}, v{T+1}")
            A(f"v_pk_add_f32 v[{Xp}:{Xp+1}], v[{E}:{E+1}], v[{T}:{T+1}]")
            A(f"v_pk_add_f32 v[{Xq}:{Xq+1}], v[{E}:{E+1}], v[{T}:{T+1}] neg_lo:[0,1] neg_hi:[1,0]")
            if pi == 1:
                for X in (Xp, Xq):
                    A(f"v_mul_f32 v{T}, v{X+1}, v13")
                    A(f"v_mul_f32 v{T+1}, v{X+1}, v12")
                    A(f"v_fmac_f32 v{T+1}, v{X}, v13")
                    A(f"v_fma_f32 v{X}, v{X}, v12, -v{T}")
                    A(f"v_mov_b32 v{X+1}, v{T+1}")
            o = 62 + 2*pi
            A(f"v_cvt_pk_bf16_f32 v{o}, v{Xp}, v{Xp+1}")
            A(f"v_cvt_pk_bf16_f32 v{o+1}, v{Xq}, v{Xq+1}")
        if rnd == 2:
            A(f"v_cmp_eq_u32 vcc, 161, v8")
            for o in range(62, 66): A(f"v_cndmask_b32_e64 v{o}, v{o}, 0, vcc")
        A(f"buffer_store_dwordx2 v[62:63], v10, {srd(R.srdX1)}, 0 offen{SC}")
        A(f"s_mov_b32 s{st+1}, 16384")
        A(f"buffer_store_dwordx2 v[64:65], v10, {srd(R.srdX1)}, s{st+1} offen{SC}")
        vm.issue('st', 2)

sG0, sG1 = 27, 91
def gate(A, vm):
    st = R.st
    GX = 64
    A.c("---- gate ----")
    A(f"s_mul_i32 s{st}, s{R.sw}, 3072")
    A(f"s_add_u32 s{st}, s{st}, {L_XR}")
    A(f"v_lshl_add_u32 v6, v{R.vl}, 2, s{st}")
    A(f"v_lshlrev_b32 v7, 2, v{R.vl}")
    A(f"v_add_u32 v7, {L_GW}, v7")
    for t in range(5):
        A(f"ds_read_b32 v{GX+t}, v6 offset:{256*t}")
        A(f"ds_read_b32 v{GX+5+t}, v6 offset:{1280+256*t}")
        A(f"ds_read_b32 v{GX+10+t}, v7 offset:{256*t}")
    A("s_waitcnt lgkmcnt(0)")
    for r in range(2):
        acc = 4 + r
        for t in range(5):
            x, g = GX + 5*r + t, GX + 10 + t
            A(f"v_lshlrev_b32 v6, 16, v{x}")
            A(f"v_and_b32 v7, 0xffff0000, v{x}")
            A(f"v_lshlrev_b32 v8, 16, v{g}")
            A(f"v_and_b32 v9, 0xffff0000, v{g}")
            A(f"v_mul_f32 v6, v6, v8")
            A(f"v_mul_f32 v7, v7, v9")
            A(f"v_cvt_pk_bf16_f32 v6, v6, v7")
            A(f"v_and_b32 v7, 0xffff0000, v6")
            A(f"v_lshlrev_b32 v6, 16, v6")
            if t == 0: A(f"v_add_f32 v{acc}, v6, v7")
            else:
                A(f"v_add_f32 v{acc}, v{acc}, v6")
                A(f"v_add_f32 v{acc}, v{acc}, v7")
    for mod in ("quad_perm:[1,0,3,2]", "quad_perm:[2,3,0,1]", "row_half_mirror", "row_mirror"):
        for r in range(2):
            A(f"v_add_f32_dpp v{4+r}, v{4+r}, v{4+r} {mod} row_mask:0xf bank_mask:0xf")
    for r in range(2):
        for k in range(4): A(f"v_readlane_b32 s{16+k}, v{4+r}, {16*k}")
        A(f"v_mov_b32 v{4+r}, s16")
        for k in range(1, 4): A(f"v_add_f32 v{4+r}, s{16+k}, v{4+r}")
    A(f"v_and_b32 v6, 1, v{R.vl}")
    A(f"v_cmp_eq_u32 vcc, 1, v6")
    A(f"v_cndmask_b32 v4, v4, v5, vcc")
    A(f"v_cvt_pk_bf16_f32 v4, v4, v4")
    A(f"v_and_b32 v4, 0xffff0000, v4")
    A(f"v_mul_f32 v4, 0xbfb8aa3b, v4")
    A(f"v_exp_f32 v4, v4")
    A(f"v_add_f32 v4, 1.0, v4")
    A(f"v_rcp_f32 v4, v4")
    A(f"v_cvt_pk_bf16_f32 v4, v4, v4")
    A(f"v_and_b32 v4, 0xffff0000, v4")
    A(f"v_readlane_b32 s{sG0}, v4, 0")
    A(f"v_readlane_b32 s{sG1}, v4, 1")
    A(f"s_lshl_b32 s{st}, s{R.sc}, 2")
    A(f"s_add_u32 s{st}, s{st}, s{R.sw}")
    A(f"s_lshl_b32 s{st}, s{st}, 2")
    A(f"v_lshlrev_b32 v6, 12, v6")
    A(f"v_add_u32 v6, s{st}, v6")
    A(f"v_mov_b32 v7, 0x40000000")
    A(f"v_cmp_gt_u32 vcc, 2, v{R.vl}")
    A(f"v_cndmask_b32 v6, v7, v6, vcc")
    A(f"buffer_store_dword v4, v6, {srd(R.srdG)}, 0 offen{SC}")
    vm.issue('st')

def wprep(A, vm):
    st = R.st
    A.c("---- filter prep ----")
    A(f"v_and_b32 v4, 3, v0")
    A(f"v_bfe_u32 v5, v0, 2, 1")
    A(f"v_lshrrev_b32 v6, 3, v0")
    A(f"v_lshl_add_u32 v7, v4, 3, v5")
    A(f"v_mul_u32_u24 v7, 192, v7")
    A(f"v_lshl_add_u32 v7, v6, 1, v7")
    A(f"v_add_u32 v7, {L_WS}, v7")
    A(f"s_lshr_b32 s{st}, s{R.sc}, 6")
    A(f"v_add_u32 v8, s{st}, v5")
    A(f"v_lshlrev_b32 v8, 1, v8")
    for jj in range(4):
        A(f"v_add_u32 v9, {4*jj}, v8")
        A(f"v_and_b32 v9, 15, v9")
        A(f"v_add_u32 v{10+jj}, v7, v9")
    A(f"s_mul_i32 s{st+1}, s{st}, 81")
    A(f"s_and_b32 s{st+2}, s{R.sc}, 63")
    A(f"s_lshl_b32 s{st+2}, s{st+2}, 6")
    A(f"v_lshlrev_b32 v7, 14, v5")
    A(f"v_lshl_add_u32 v7, v4, 4, v7")
    A(f"v_add_u32 v7, s{st+2}, v7")
    for rnd in range(3):
        for jj in range(4):
            A(f"ds_read_u16 v{16+jj}, v{10+jj} offset:{2*192*jj + 64*rnd}")
            A(f"ds_read_u16 v{20+jj}, v{10+jj} offset:{6144 + 2*192*jj + 64*rnd}")
        A(f"v_add_u32 v8, {32*rnd}, v6")
        A(f"v_add_u32 v9, s{st+1}, v8")
        A(f"v_sub_u32 v14, 320, v9")
        A(f"v_cmp_lt_u32 vcc, 160, v9")
        A(f"v_cndmask_b32 v15, v9, v14, vcc")
        A(f"v_cndmask_b32_e64 v14, 0, 1, vcc")
        A(f"v_and_b32 v24, 1, v15")
        A(f"v_lshl_add_u32 v14, v24, 1, v14")
        A(f"v_lshrrev_b32 v15, 1, v15")
        A(f"v_lshl_add_u32 v15, v15, 3, v14")
        A(f"v_lshl_add_u32 v15, v15, 12, v7")
        A(f"v_mov_b32 v14, 0x40000000")
        A(f"v_cmp_gt_u32 vcc, 81, v8")
        A(f"v_cndmask_b32 v15, v14, v15, vcc")
        A(f"v_cmp_ge_u32 vcc, 320, v9")
        A(f"v_cndmask_b32 v15, v14, v15, vcc")
        A("s_waitcnt lgkmcnt(0)")
        for jj in range(4): A(f"v_lshl_or_b32 v{16+jj}, v{20+jj}, 16, v{16+jj}")
        A(f"buffer_store_dwordx4 v[16:19], v15, {srd(R.srdWF)}, 0 offen{SC}")
        vm.issue('st')
        if rnd == 2:
            A(f"v_add_u32 v15, 4096, v15")
            A(f"v_mov_b32 v14, 0x40000000")
            A(f"v_cmp_eq_u32 vcc, 160, v9")
            A(f"v_cndmask_b32 v15, v14, v15, vcc")
            A(f"buffer_store_dwordx4 v[16:19], v15, {srd(R.srdWF)}, 0 offen{SC}")
            vm.issue('st')

def wtprep(A, vm):
    st = R.st
    A.c("---- Wd fragment prep ----")
    A(f"s_mul_i32 s{st+2}, s{R.sc}, 52429")
    A(f"s_lshr_b32 s{st+2}, s{st+2}, 18")
    A(f"s_mul_i32 s{st+3}, s{st+2}, 5")
    A(f"s_sub_u32 s{st+3}, s{R.sc}, s{st+3}")
    A(f"v_bfe_u32 v4, v{R.vl}, 5, 1")
    A(f"v_lshlrev_b32 v4, 4, v4")
    A(f"v_bfe_u32 v5, v{R.vl}, 4, 1")
    A(f"v_lshl_add_u32 v4, v5, 2, v4")
    A(f"v_bfe_u32 v5, v{R.vl}, 2, 2")
    A(f"v_add_u32 v4, v4, v5")
    A(f"v_lshlrev_b32 v4, 8, v4")
    A(f"v_and_b32 v5, 3, v{R.vl}")
    A(f"v_lshl_add_u32 v4, v5, 3, v4")
    A(f"s_lshl_b32 s{st}, s{R.sw}, 6")
    A(f"s_add_u32 s{st}, s{st}, {L_WD}")
    A(f"v_add_u32 v4, s{st}, v4")
    for k in range(2):
        A(f"ds_read_b64_tr_b16 v[{16+4*k}:{17+4*k}], v4 offset:{32*k}")
        A(f"ds_read_b64_tr_b16 v[{18+4*k}:{19+4*k}], v4 offset:{32*k + 8*256}")
    A(f"s_mul_i32 s{st+2}, s{st+2}, 40")
    A(f"s_lshl_b32 s{st+3}, s{st+3}, 3")
    A(f"s_add_u32 s{st+2}, s{st+2}, s{st+3}")
    A(f"s_lshl_b32 s{st+3}, s{R.sw}, 1")
    A(f"s_add_u32 s{st+2}, s{st+2}, s{st+3}")
    A(f"s_lshl_b32 s{st+2}, s{st+2}, 10")
    A(f"v_lshlrev_b32 v5, 4, v{R.vl}")
    A("s_waitcnt lgkmcnt(0)")
    A(f"buffer_store_dwordx4 v[16:19], v5, {srd(R.srdWT)}, s{st+2} offen{SC}")
    A(f"buffer_store_dwordx4 v[20:23], v5, {srd(R.srdWT)}, s{st+2} offen offset:1024{SC}")
    vm.issue('st', 2)

def ftgen(A, vm, pWS):
    st = R.st
    A.c("---- F table ----")
    A.srd(R.srdFT, pWS, SZ_FT, OFF_FT)
    lab = A.label("noft")
    A(f"s_lshl_b32 s{st}, s{R.sw}, 8")
    A(f"s_add_u32 s{st}, s{st}, s{R.sc}")
    A(f"s_cmp_ge_u32 s{st}, 840")
    A(f"s_cbranch_scc1 {lab}")
    A(f"s_mul_i32 s{st+1}, s{st}, 52429")
    A(f"s_lshr_b32 s{st+1}, s{st+1}, 21")
    A(f"s_mul_i32 s{st+2}, s{st+1}, 40")
    A(f"s_sub_u32 s{st+2}, s{st}, s{st+2}")
    A(f"s_lshl_b32 s{st+2}, s{st+2}, 4")
    A(f"v_and_b32 v4, 15, v{R.vl}")
    A(f"v_add_u32 v4, s{st+2}, v4")
    A(f"s_lshl_b32 s{st+1}, s{st+1}, 2")
    A(f"v_lshrrev_b32 v5, 4, v{R.vl}")
    A(f"v_add_u32 v5, s{st+1}, v5")
    A(f"v_lshlrev_b32 v6, 1, v5")
    A(f"s_mov_b32 s{st+3}, 6710887")
    for c in range(4):
        if c == 0: A(f"v_mov_b32 v7, v6")
        if c == 1: A(f"v_sub_u32 v7, 320, v6")
        if c == 2: A(f"v_add_u32 v7, 1, v6")
        if c == 3: A(f"v_sub_u32 v7, 319, v6")
        A(f"v_mul_u32_u24 v8, v7, v4")
        A(f"v_mul_hi_u32 v9, v8, s{st+3}")
        A(f"v_mul_u32_u24 v9, 640, v9")
        A(f"v_sub_u32 v8, v8, v9")
        A(f"v_cvt_f32_u32 v8, v8")
        A(f"v_mul_f32 v8, {fb(1/640)}, v8")
        A(f"v_cos_f32 v9, v8")
        A(f"v_sin_f32 v10, -v8")
        if c < 2:
            A(f"v_cmp_eq_u32 vcc, 0, v5")
            A(f"v_mul_f32 v11, 0.5, v9")
            A(f"v_cndmask_b32 v9, v9, v11, vcc")
            A(f"v_cndmask_b32_e64 v10, v10, 0, vcc")
        A(f"v_cvt_pk_bf16_f32 v{16+c}, v9, v10")
        A(f"v_cmp_gt_u32 vcc, {81 if c == 0 else 80}, v5")
        A(f"v_cndmask_b32 v{16+c}, 0, v{16+c}, vcc")
    A(f"s_lshl_b32 s{st}, s{st}, 10")
    A(f"v_lshlrev_b32 v5, 4, v{R.vl}")
    A(f"buffer_store_dwordx4 v[16:19], v5, {srd(R.srdFT)}, s{st} offen{SC}")
    A(f"{lab}:")

def a2_loads(A, vm, pWS):
    st = R.st
    A.c("---- A2 loads ----")
    A(f"s_lshl_b32 s{st}, s{R.sc}, 14")
    A(f"s_lshl_b32 s{st+1}, s{R.sw}, 12")
    A(f"s_add_u32 s{st}, s{st}, s{st+1}")
    A(f"s_add_u32 m0, s{st+1}, {L_X}")
    A(f"v_lshlrev_b32 v4, 4, v{R.vl}")
    for j in range(4):
        A(f"buffer_load_dwordx4 v4, {srd(R.srdX1)}, s{st} offen offset:{1024*j} sc1 lds")
    A(f"s_add_u32 m0, s{st+1}, {L_F}")
    A("s_nop 0")
    for j in range(4):
        A(f"buffer_load_dwordx4 v4, {srd(R.srdWF)}, s{st} offen offset:{1024*j} sc1 lds")
    vm.issue('a2in', 8)

def a2(A0, vm, pWS, waited=False, weave=None):
    st = R.st
    A = Asm(A0.prefix + 'a2')
    A.c("---- A2 ----")
    D0r, D0i, D1r, D1i, XA_, WQ = 32, 48, 204, 16, 16, (220, 224)
    A.srd(R.srdZ, pWS, SZ_Z, OFF_Z)
    if not waited: A(f"s_waitcnt vmcnt({vm.wait({'a2in'})})")
    A("s_barrier")
    A(f"v_lshlrev_b32 v4, 11, v{R.vh}")
    A(f"v_lshl_add_u32 v4, v{R.vn}, 4, v4")
    A(f"s_lshl_b32 s{st}, s{R.sw}, 2")
    A(f"s_add_u32 s{st}, s{st}, {L_X}")
    A(f"v_add_u32 v8, s{st}, v4")
    for i in range(4):
        for q in range(4):
            A(f"ds_read_b32 v{XA_+4*i+q}, v8 offset:{(8*i+q)*512}")
    A(f"s_lshl_b32 s{st}, s{R.sw}, 12")
    A(f"s_add_u32 s{st}, s{st}, {L_F}")
    A(f"v_lshlrev_b32 v5, 9, v{R.vh}")
    A(f"v_lshl_add_u32 v5, v{R.vn}, 2, v5")
    A(f"v_add_u32 v5, s{st}, v5")
    def mm(i, data_is_a, src, Dr, Di):
        for (dst, cc) in ((Dr, R.CRe), (Di, R.CIm)):
            c = "0" if i == 0 else f"v[{dst}:{dst+15}]"
            d, k = f"v[{src+4*i}:{src+4*i+3}]", f"a[{cc+4*i}:{cc+4*i+3}]"
            a_, b_ = (d, k) if data_is_a else (k, d)
            A(f"v_mfma_f32_32x32x16_bf16 v[{dst}:{dst+15}], {a_}, {b_}, {c}")
    def tw_quad(i, Dr, Di):
        for h2 in range(2):
            x = 4*i + 2*h2
            t, u = (6, 10) if h2 == 0 else (12, 14)
            A(f"v_pk_mul_f32 v[{t}:{t+1}], v[{Di+x}:{Di+x+1}], v[{R.TWi+x}:{R.TWi+x+1}]")
            A(f"v_pk_mul_f32 v[{u}:{u+1}], v[{Di+x}:{Di+x+1}], v[{R.TWr+x}:{R.TWr+x+1}]")
            A(f"v_pk_fma_f32 v[{t}:{t+1}], v[{Dr+x}:{Dr+x+1}], v[{R.TWr+x}:{R.TWr+x+1}], v[{t}:{t+1}] neg_lo:[0,0,1] neg_hi:[0,0,1]")
            A(f"v_pk_fma_f32 v[{u}:{u+1}], v[{Dr+x}:{Dr+x+1}], v[{R.TWi+x}:{R.TWi+x+1}], v[{u}:{u+1}]")
        for h2 in range(2):
            x = 4*i + 2*h2
            t, u = (6, 10) if h2 == 0 else (12, 14)
            A(f"v_cvt_pk_bf16_f32 v{Dr+x}, v{t}, v{u}")
            A(f"v_cvt_pk_bf16_f32 v{Dr+x+1}, v{t+1}, v{u+1}")
    def wf_read(i):
        for j in range(4): A(f"ds_read_b32 v{WQ[i & 1]+j}, v5 offset:{(8*i+j)*128}")
    def filt_quad(i, Dr, Di):
        w = WQ[i & 1]
        for h2 in range(2):
            x = 4*i + 2*h2
            ww = w + 2*h2
            A(f"v_lshlrev_b32 v6, 16, v{ww}");     A(f"v_lshlrev_b32 v7, 16, v{ww+1}")
            A(f"v_and_b32 v10, 0xffff0000, v{ww}"); A(f"v_and_b32 v11, 0xffff0000, v{ww+1}")
            A(f"v_pk_mul_f32 v[12:13], v[{Di+x}:{Di+x+1}], v[10:11]")
            A(f"v_pk_mul_f32 v[14:15], v[{Di+x}:{Di+x+1}], v[6:7]")
            A(f"v_pk_fma_f32 v[12:13], v[{Dr+x}:{Dr+x+1}], v[6:7], v[12:13] neg_lo:[0,0,1] neg_hi:[0,0,1]")
            A(f"v_pk_fma_f32 v[14:15], v[{Dr+x}:{Dr+x+1}], v[10:11], v[14:15]")
            A(f"v_cvt_pk_bf16_f32 v{Dr+x}, v12, -v14")
            A(f"v_cvt_pk_bf16_f32 v{Dr+x+1}, v13, -v15")
    A("s_waitcnt lgkmcnt(0)")
    for i in range(4): mm(i, True, XA_, D0r, D0i)
    wf_read(0)
    for i in range(4):
        tw_quad(i, D0r, D0i); mm(i, False, D0r, D1r, D1i)
    for i in range(4):
        if i < 3: wf_read(i+1)
        A(f"s_waitcnt lgkmcnt({4 if i < 3 else 0})")
        filt_quad(i, D1r, D1i); mm(i, True, D1r, D0r, D0i)
    for i in range(4):
        tw_quad(i, D0r, D0i); mm(i, False, D0r, D1r, D1i)
    A("s_barrier")
    for x in range(16):
        A(f"v_cvt_pk_bf16_f32 v{D0r+x}, v{D1r+x}, -v{D1i+x}")
        A(f"ds_write_b32 v8, v{D0r+x} offset:{(8*(x>>2)+(x&3))*512}")
    A("s_waitcnt lgkmcnt(0)")
    A("s_barrier")
    A(f"s_lshl_b32 s{st+1}, s{R.sw}, 12")
    A(f"s_add_u32 s{st+2}, s{st+1}, {L_X}")
    A(f"v_lshl_add_u32 v4, v{R.vl}, 4, s{st+2}")
    for j in range(4):
        A(f"ds_read_b128 v[{16+4*j}:{19+4*j}], v4 offset:{1024*j}")
    A(f"s_lshl_b32 s{st}, s{R.sc}, 14")
    A(f"s_add_u32 s{st}, s{st}, s{st+1}")
    A(f"v_lshlrev_b32 v5, 4, v{R.vl}")
    A("s_waitcnt lgkmcnt(0)")
    for j in range(4):
        A(f"buffer_store_dwordx4 v[{16+4*j}:{19+4*j}], v5, {srd(R.srdZ)}, s{st} offen offset:{1024*j}{SC}")
    vm.issue('zst', 4)
    lines = A.l
    if weave:
        first = next(i for i, l in enumerate(lines) if "v_mfma" in l)
        last = max(i for i, l in enumerate(lines) if "ds_write_b32" in l)
        n = len(weave); out = lines[:first]
        span = last - first
        k = 0
        for j in range(first, len(lines)):
            out.append(lines[j])
            while k < n and j < last and (j - first + 1)*n >= (k + 1)*span:
                out += ["  " + x for x in weave[k]]; k += 1
        out += ["  " + x for w in weave[k:] for x in w]
        assert k == n
        lines = out
    A0.l += lines

ZL = 204
L_ZB, ZBW = AUXB, 3104
L_GO = AUXB + 12800
sG0, sG1 = 27, 91
def a3_loads(A, vm, pWS):
    st = R.st
    A.c("---- A3 loads ----")
    A.srd(R.srdZ, pWS, SZ_Z, OFF_Z)
    A(f"v_lshrrev_b32 v4, 2, v0")
    A(f"v_lshrrev_b32 v5, 1, v4")
    A(f"v_lshlrev_b32 v5, 15, v5")
    A(f"v_and_b32 v4, 1, v4")
    A(f"v_lshl_add_u32 v5, v4, 3, v5")
    A(f"v_and_b32 v4, 3, v0")
    A(f"s_lshl_b32 s{st}, s{R.sc}, 2")
    A(f"v_add_u32 v4, s{st}, v4")
    A(f"v_lshl_add_u32 v5, v4, 4, v5")
    for rnd in range(3):
        for pi in range(2):
            A(f"s_mov_b32 s{st}, {(rnd << 20) + pi*16384}")
            A(f"buffer_load_dwordx2 v[{ZL+4*rnd+2*pi}:{ZL+4*rnd+2*pi+1}], v5, {srd(R.srdZ)}, s{st} offen sc1")
    vm.issue('zl', 6)

def a3_elem(A, vm, extra=None):
    st = R.st
    A.c("---- A3 elementwise ----")
    A(f"v_and_b32 v{R.vl}, 63, v0")
    A(f"v_and_b32 v{R.vn}, 31, v{R.vl}")
    A(f"v_lshrrev_b32 v{R.vh}, 5, v{R.vl}")
    A(f"v_and_b32 v4, 3, v0")
    A(f"v_mul_u32_u24 v5, {ZBW}, v4")
    A(f"v_add_u32 v5, {L_ZB}, v5")
    A(f"s_mul_i32 s{st}, s{R.sw}, {ZBW}")
    A(f"s_add_u32 s{st}, s{st}, {L_ZB + 2560}")
    A(f"v_and_b32 v6, 7, v{R.vl}")
    A(f"v_lshl_add_u32 v6, v6, 2, s{st}")
    A(f"v_mov_b32 v7, 0")
    A(f"ds_write_b32 v6, v7")
    A(f"s_lshl_b32 s{st}, s{R.sc}, 2")
    A(f"v_add_u32 v6, s{st}, v4")
    A(f"v_cvt_f32_u32 v7, v6")
    A(f"v_mul_f32 v7, {fb(1/2048)}, v7")
    A(f"v_cos_f32 v12, v7")
    A(f"v_sin_f32 v13, v7")
    A(f"v_lshrrev_b32 v7, 2, v0")
    A(f"s_waitcnt vmcnt({vm.wait({'zl'})})")
    for rnd in range(3):
        z = ZL + 4*rnd
        if extra: extra(rnd)
        A(f"v_add_u32 v8, {64*rnd}, v7")
        A(f"v_cvt_f32_u32 v14, v8")
        A(f"v_mul_f32 v14, {fb(1/640)}, v14")
        A(f"v_sin_f32 v15, -v14")
        A(f"v_cos_f32 v14, v14")
        Up, Uq, Vp, Vq = 32, 34, 36, 38
        for (d, src) in ((Up, z), (Uq, z+1), (Vp, z+2), (Vq, z+3)):
            A(f"v_lshlrev_b32 v{d}, 16, v{src}")
            A(f"v_and_b32 v{d+1}, 0xffff0000, v{src}")
        for X in (Vp, Vq):
            A(f"v_mul_f32 v52, v{X+1}, v13")
            A(f"v_mul_f32 v53, v{X+1}, v12")
            A(f"v_fmac_f32 v53, v{X}, v13")
            A(f"v_fma_f32 v{X}, v{X}, v12, -v52")
            A(f"v_mov_b32 v{X+1}, v53")
        A(f"v_sub_u32 v9, 320, v8")
        A(f"v_cmp_eq_u32 vcc, 0, v8")
        A(f"v_lshl_add_u32 v10, v8, 2, v5")
        A(f"v_cndmask_b32_e64 v9, v9, 0, vcc")
        A(f"v_lshl_add_u32 v11, v9, 2, v5")
        Ap0, Aq0, Ap1, Aq1 = 40, 42, 44, 46
        A(f"v_pk_add_f32 v[{Ap0}:{Ap0+1}], v[{Up}:{Up+1}], v[{Vp}:{Vp+1}]")
        A(f"v_pk_add_f32 v[{Aq0}:{Aq0+1}], v[{Uq}:{Uq+1}], v[{Vq}:{Vq+1}]")
        A(f"v_pk_add_f32 v[{Ap1}:{Ap1+1}], v[{Up}:{Up+1}], v[{Vp}:{Vp+1}] neg_lo:[0,1] neg_hi:[0,1]")
        A(f"v_pk_add_f32 v[{Aq1}:{Aq1+1}], v[{Uq}:{Uq+1}], v[{Vq}:{Vq+1}] neg_lo:[0,1] neg_hi:[0,1]")
        if rnd == 0:
            for X in (Ap0, Aq0, Ap1, Aq1): A(f"v_cndmask_b32_e64 v{X+1}, v{X+1}, 0, vcc")
        if rnd == 2:
            A(f"v_mov_b32 v9, {L_ZB + 4*ZBW}")
            A(f"v_cmp_lt_u32 vcc, 160, v8")
            A(f"v_cndmask_b32 v10, v10, v9, vcc")
            A(f"v_cndmask_b32 v11, v11, v9, vcc")
        for r, (P, Q) in enumerate(((Ap0, Aq0), (Ap1, Aq1))):
            E, O, T = 48, 50, 52
            A(f"v_pk_add_f32 v[{E}:{E+1}], v[{P}:{P+1}], v[{Q}:{Q+1}] neg_hi:[0,1]")
            A(f"v_pk_add_f32 v[{O}:{O+1}], v[{P}:{P+1}], v[{Q}:{Q+1}] neg_lo:[0,1]")
            A(f"v_mul_f32 v{T}, v15, v{O}")
            A(f"v_mul_f32 v{T+1}, v15, v{O+1}")
            A(f"v_fma_f32 v{T}, -v14, v{O+1}, v{T}")
            A(f"v_fmac_f32 v{T+1}, v14, v{O}")
            A(f"v_pk_add_f32 v[54:55], v[{E}:{E+1}], v[{T}:{T+1}] neg_hi:[1,1]")
            A(f"v_pk_add_f32 v[56:57], v[{E}:{E+1}], v[{T}:{T+1}] neg_lo:[0,1] neg_hi:[0,1]")
            A(f"v_cvt_pk_bf16_f32 v58, v54, v55")
            A(f"v_cvt_pk_bf16_f32 v59, v56, v57")
            off = f" offset:{1280*r}" if r else ""
            A(f"ds_write_b32 v10, v58{off}")
            A(f"ds_write_b32 v11, v59{off}")
    A("s_waitcnt lgkmcnt(0)")

def a3_core(A, vm, pWS):
    st = R.st
    A.c("---- A3 core ----")
    A(f"v_bfe_u32 v4, v{R.vl}, 4, 1")
    A(f"v_mul_u32_u24 v4, 1280, v4")
    A(f"v_and_b32 v5, 15, v{R.vl}")
    A(f"v_lshl_add_u32 v4, v5, 2, v4")
    A(f"v_mul_u32_u24 v5, 160, v{R.vh}")
    A(f"s_mul_i32 s{st}, s{R.sw}, {ZBW}")
    A(f"s_add_u32 s{st}, s{st}, {L_ZB}")
    A(f"v_add3_u32 v4, v4, v5, s{st}")
    for i in range(4):
        for q in range(4):
            A(f"ds_read_b32 v{XA+4*i+q}, v4 offset:{320*i+40*q}")
    A(f"v_mov_b32 v6, {fb(0.5/(2048*640))}")
    A(f"v_mul_f32 v8, s{sG0}, v6")
    A(f"v_mul_f32 v10, s{sG1}, v6")
    A(f"v_sub_f32 v9, 0, v8")
    A(f"v_sub_f32 v11, 0, v10")
    A("s_waitcnt lgkmcnt(0)")
    fft320_core(A, tmp=(12, 13))
    A(f"s_mul_i32 s{st}, s{R.sw}, 2560")
    A(f"s_add_u32 s{st}, s{st}, {L_GO}")
    A(f"v_lshl_add_u32 v4, v{R.vh}, 6, v{R.vn}")
    A(f"v_lshl_add_u32 v4, v4, 2, s{st}")
    for i in range(3):
        if i == 2: A("s_mov_b64 exec, 0xffffffff")
        for r in range(2):
            sc = 8 + 2*r
            for jj in range(2):
                d = D2[r] + 4*i + 2*jj
                A(f"v_pk_mul_f32 v[{d}:{d+1}], v[{d}:{d+1}], v[{sc}:{sc+1}]")
                A(f"v_cvt_pk_bf16_f32 v{d}, v{d}, v{d+1}")
                A(f"ds_write_b32 v4, v{d} offset:{r*1280 + (128*i + 32*jj)*4}")
    A("s_mov_b64 exec, -1")
    A.srd(R.srdZ, pWS, SZ_GA, OFF_GA)
    A(f"v_lshl_add_u32 v4, v{R.vl}, 4, s{st}")
    A("s_waitcnt lgkmcnt(0)")
    for j in range(3): A(f"ds_read_b128 v[{16+4*j}:{19+4*j}], v4 offset:{1024*j}")
    A(f"s_lshl_b32 s{st}, s{R.sc}, 2")
    A(f"s_add_u32 s{st}, s{st}, s{R.sw}")
    A(f"s_mul_i32 s{st}, s{st}, 1280")
    A(f"v_lshlrev_b32 v4, 4, v{R.vl}")
    A(f"v_add_u32 v5, 1024, v4")
    A(f"v_add_u32 v6, {1024*1280 - 256}, v4")
    A(f"v_cmp_gt_u32 vcc, 16, v{R.vl}")
    A(f"v_cndmask_b32 v5, v6, v5, vcc")
    A(f"v_add_u32 v7, {1024*1280 + 48*16}, v4")
    A(f"v_mov_b32 v6, 0x40000000")
    A(f"v_cmp_gt_u32 vcc, 32, v{R.vl}")
    A(f"v_cndmask_b32 v7, v6, v7, vcc")
    A("s_waitcnt lgkmcnt(0)")
    A(f"buffer_store_dwordx4 v[16:19], v4, {srd(R.srdZ)}, s{st} offen{SC}")
    A(f"buffer_store_dwordx4 v[20:23], v5, {srd(R.srdZ)}, s{st} offen{SC}")
    A(f"buffer_store_dwordx4 v[24:27], v7, {srd(R.srdZ)}, s{st} offen{SC}")
    vm.issue('gast', 3)
```

```python
from asmlib import *
from layout import *

NST = 20
XSLOT, WBASE, WSLOT = 16384, 49152, 12288
NXS, NWS = 3, 6
ACC = 64

class R:
    vxo = (230, 231, 232, 233)
    vwo = (234, 235, 236)
    vx = (237, 238, 239, 240)
    vw, vw2 = 241, 242
    vt = 56
    opA = (16, 36)
    opB = (28, 48)
    srdX, srdW, srdH = 8, 12, 16
    sw = 20
    skx, skw = 21, 22
    smx, smw = 23, 24
    smt, sft = 25, 26
    st = 28

def setup(A, s_b, pBX, pWG, pWU, pWS):
    st, t = R.st, R.vt
    A.c("---- F1 setup ----")
    A(f"v_lshrrev_b32 v{t}, 6, v0")
    A(f"s_and_b32 s{st}, s{s_b}, 1")
    A(f"v_readfirstlane_b32 s{R.sw}, v{t}")
    A(f"s_lshl_b32 s{st}, s{st}, 3")
    A(f"s_lshr_b32 s{st+1}, s{s_b}, 3")
    A(f"s_and_b32 s{st+1}, s{st+1}, 7")
    A(f"s_add_u32 s{R.smt}, s{st}, s{st+1}")
    A(f"s_lshr_b32 s{st+1}, s{s_b}, 1")
    A(f"s_and_b32 s{st+1}, s{st+1}, 3")
    A(f"s_lshl_b32 s{st+1}, s{st+1}, 2")
    A(f"s_lshr_b32 s{st+2}, s{s_b}, 6")
    A(f"s_add_u32 s{R.sft}, s{st+1}, s{st+2}")
    A.srd(R.srdX, pBX, 2048*640*2)
    A(f"s_cmp_lt_u32 s{R.sw}, 2")
    A(f"s_cselect_b32 s{R.srdW}, s{pWG}, s{pWU}")
    A(f"s_cselect_b32 s{R.srdW+1}, s{pWG+1}, s{pWU+1}")
    A(f"s_and_b32 s{R.srdW+1}, s{R.srdW+1}, 0xffff")
    A(f"s_mov_b32 s{R.srdW+2}, {hex(640*1536*2)}")
    A(f"s_mov_b32 s{R.srdW+3}, 0x20000")
    A(f"v_and_b32 v{t}, 63, v0")
    A(f"s_lshl_b32 s{st}, s{R.smt}, 7")
    A(f"s_lshl_b32 s{st+1}, s{R.sw}, 5")
    A(f"s_add_u32 s{st}, s{st}, s{st+1}")
    A(f"s_mul_i32 s{st}, s{st}, 1280")
    A(f"v_lshrrev_b32 v{t+1}, 3, v{t}")
    A(f"v_mul_u32_u24 v{t+1}, 1280, v{t+1}")
    A(f"v_add_u32 v{t+1}, s{st}, v{t+1}")
    A(f"v_lshrrev_b32 v{t+2}, 4, v{t}")
    A(f"v_xor_b32 v{t+2}, v{t+2}, v{t}")
    A(f"v_and_b32 v{t+2}, 7, v{t+2}")
    A(f"v_lshl_add_u32 v{R.vxo[0]}, v{t+2}, 4, v{t+1}")
    A(f"v_xor_b32 v{t+2}, 4, v{t+2}")
    A(f"v_lshl_add_u32 v{R.vxo[1]}, v{t+2}, 4, v{t+1}")
    A(f"v_add_u32 v{R.vxo[1]}, {8*1280-1024}, v{R.vxo[1]}")
    A(f"v_add_u32 v{R.vxo[2]}, {16*1280-2048}, v{R.vxo[0]}")
    A(f"v_add_u32 v{R.vxo[3]}, {16*1280-2048}, v{R.vxo[1]}")
    A(f"s_and_b32 s{st}, s{R.sw}, 1")
    A(f"s_mul_i32 s{st}, s{st}, {16*3072}")
    A(f"s_mul_i32 s{st+1}, s{R.sft}, 192")
    A(f"s_add_u32 s{st}, s{st}, s{st+1}")
    A(f"s_lshr_b32 s{st+1}, s{R.sw}, 1")
    A(f"s_mul_i32 s{st+1}, s{st+1}, 10")
    for j in range(3):
        A(f"v_add_u32 v{t+1}, {64*j}, v{t}")
        A(f"v_mul_u32_u24 v{t+2}, 5462, v{t+1}")
        A(f"v_lshrrev_b32 v{t+2}, 16, v{t+2}")
        A(f"v_mul_u32_u24 v{t+3}, 12, v{t+2}")
        A(f"v_sub_u32 v{t+3}, v{t+1}, v{t+3}")
        A(f"v_add_u32 v{t+3}, s{st+1}, v{t+3}")
        A(f"v_subrev_u32 v{t+4}, 12, v{t+3}")
        A(f"v_min_u32 v{t+3}, v{t+3}, v{t+4}")
        A(f"v_mul_u32_u24 v{t+2}, 3072, v{t+2}")
        A(f"v_lshl_add_u32 v{t+2}, v{t+3}, 4, v{t+2}")
        A(f"v_add_u32 v{t+2}, s{st}, v{t+2}")
        A(f"v_subrev_u32 v{R.vwo[j]}, {1024*j}, v{t+2}")
    A(f"s_lshl_b32 s{R.smx}, s{R.sw}, 12")
    A(f"s_mul_i32 s{R.smw}, s{R.sw}, 3072")
    A(f"s_add_u32 s{R.smw}, s{R.smw}, {WBASE}")

def setup_reads(A):
    st, t = R.st, R.vt
    A(f"v_and_b32 v{t}, 63, v0")
    A(f"s_lshr_b32 s{st}, s{R.sw}, 1")
    A(f"s_lshl_b32 s{st}, s{st}, 13")
    A(f"v_and_b32 v{t+1}, 31, v{t}")
    A(f"v_lshrrev_b32 v{t+2}, 5, v{t}")
    A(f"v_bfe_u32 v{t+3}, v{t+1}, 1, 3")
    A(f"v_xor_b32 v{t+3}, v{t+3}, v{t+2}")
    A(f"v_lshlrev_b32 v{t+4}, 7, v{t+1}")
    A(f"v_add_u32 v{t+4}, s{st}, v{t+4}")
    A(f"v_lshl_add_u32 v{R.vx[0]}, v{t+3}, 4, v{t+4}")
    for k in range(1, 4): A(f"v_xor_b32 v{R.vx[k]}, {32*k}, v{R.vx[0]}")
    A(f"s_and_b32 s{st}, s{R.sw}, 1")
    A(f"s_mul_i32 s{st+1}, s{st}, 96")
    A(f"s_add_u32 s{st+1}, s{st+1}, {WBASE}")
    A(f"v_lshrrev_b32 v{t+1}, 5, v{t}")
    A(f"v_lshlrev_b32 v{t+1}, 3, v{t+1}")
    A(f"v_bfe_u32 v{t+2}, v{t}, 2, 2")
    A(f"v_add_u32 v{t+1}, v{t+1}, v{t+2}")
    A(f"v_mul_u32_u24 v{t+1}, 192, v{t+1}")
    A(f"v_bfe_u32 v{t+2}, v{t}, 4, 1")
    A(f"v_lshl_add_u32 v{t+1}, v{t+2}, 4, v{t+1}")
    A(f"v_and_b32 v{t+2}, 1, v{t}")
    A(f"v_lshl_add_u32 v{t+1}, v{t+2}, 3, v{t+1}")
    A(f"v_bfe_u32 v{t+2}, v{t}, 1, 1")
    A(f"v_mul_u32_u24 v{t+3}, {6144+32}, v{t+2}")
    A(f"v_add_u32 v{t+1}, v{t+1}, v{t+3}")
    A(f"v_add_u32 v{R.vw}, s{st+1}, v{t+1}")
    A(f"s_mul_i32 s{st+1}, s{st}, 192")
    A(f"v_mul_u32_u24 v{t+3}, s{st+1}, v{t+2}")
    A(f"v_sub_u32 v{R.vw2}, v{R.vw}, v{t+3}")

def dma_x(c):
    L = [[f"s_add_u32 m0, s{R.smx}, {(c % NXS)*XSLOT}", f"s_mov_b32 s{R.skx}, {c*128}",
          f"buffer_load_dwordx4 v{R.vxo[0]}, {srd(R.srdX)}, s{R.skx} offen lds"]]
    for j in range(1, 4):
        L.append([f"buffer_load_dwordx4 v{R.vxo[j]}, {srd(R.srdX)}, s{R.skx} offen offset:{1024*j} lds"])
    return L
def dma_w(t):
    L = [[f"s_add_u32 m0, s{R.smw}, {(t % NWS)*WSLOT}", f"s_mov_b32 s{R.skw}, {t*32*3072}",
          f"buffer_load_dwordx4 v{R.vwo[0]}, {srd(R.srdW)}, s{R.skw} offen lds"]]
    for j in range(1, 3):
        L.append([f"buffer_load_dwordx4 v{R.vwo[j]}, {srd(R.srdW)}, s{R.skw} offen offset:{1024*j} lds"])
    return L

def reads(t, kk, setn):
    a0, b0 = R.opA[setn], R.opB[setn]
    vx = R.vx[2*(t & 1) + kk]
    xs = ((t >> 1) % NXS)*XSLOT
    wsl = (t % NWS)*WSLOT
    def rdA(tt):
        vw = R.vw2 if tt == 2 else R.vw
        return [f"ds_read_b64_tr_b16 v[{a0+4*tt+2*rd}:{a0+4*tt+2*rd+1}], v{vw} offset:{wsl + kk*3072 + rd*768 + tt*32}" for rd in range(2)]
    def rdB(tt):
        return [f"ds_read_b128 v[{b0+4*tt}:{b0+4*tt+3}], v{vx} offset:{xs + 4096*tt}"]
    return rdA(0) + rdB(0) + rdB(1) + rdA(1) + rdA(2)

def mfmas(setn, first=False):
    a0, b0 = R.opA[setn], R.opB[setn]
    L = []
    for tt in range(3):
        for t in range(2):
            d = ACC + (tt*2 + t)*16
            L.append(f"v_mfma_f32_32x32x16_bf16 v[{d}:{d+15}], v[{a0+4*tt}:{a0+4*tt+3}], v[{b0+4*t}:{b0+4*t+3}], " + ("0" if first else f"v[{d}:{d+15}]"))
    return L

def issue(A, vm, kind, i):
    for g in (dma_x(i) if kind == "x" else dma_w(i)): A(g)
    vm.issue(f"{kind}{i}", 4 if kind == "x" else 3)

def l2_prefetch(A, vm, pWG, pWU, do_x=True):
    st, t = R.st, R.vt
    A.c("---- L2 prefetch ----")
    A(f"s_lshr_b32 s{st}, s98, 3")
    A(f"s_lshl_b32 s{st}, s{st}, 2")
    A(f"s_add_u32 s{st}, s{st}, s{R.sw}")
    A(f"v_and_b32 v{t}, 63, v0")
    A(f"s_lshl_b32 s{st+1}, s{st}, 6")
    A(f"v_add_u32 v{t+1}, s{st+1}, v{t}")
    A(f"v_mul_u32_u24 v{t+2}, 5462, v{t+1}")
    A(f"v_lshrrev_b32 v{t+2}, 16, v{t+2}")
    A(f"v_mul_u32_u24 v{t+3}, 12, v{t+2}")
    A(f"v_sub_u32 v{t+3}, v{t+1}, v{t+3}")
    A(f"v_cmp_le_u32 vcc, 6, v{t+3}")
    A(f"v_subrev_u32 v{t+4}, 6, v{t+3}")
    A(f"v_cndmask_b32 v{t+3}, v{t+3}, v{t+4}, vcc")
    A(f"v_mul_u32_u24 v{t+2}, 3072, v{t+2}")
    A(f"v_lshl_add_u32 v{t+2}, v{t+3}, 7, v{t+2}")
    A(f"s_lshr_b32 s{st+1}, s98, 1")
    A(f"s_and_b32 s{st+1}, s{st+1}, 3")
    A(f"s_mul_i32 s{st+1}, s{st+1}, 768")
    A(f"v_add_u32 v{t+2}, s{st+1}, v{t+2}")
    A(f"v_mov_b32 v{t+4}, 0x40000000")
    A(f"v_cndmask_b32 v{t+5}, v{t+2}, v{t+4}, vcc")
    A(f"v_cndmask_b32 v{t+6}, v{t+4}, v{t+2}, vcc")
    A.srd(4, pWG, 640*1536*2)
    A(f"buffer_load_dword v229, v{t+5}, s[4:7], 0 offen")
    A.srd(4, pWU, 640*1536*2)
    A(f"buffer_load_dword v229, v{t+6}, s[4:7], 0 offen")
    vm.issue('pf', 2)
    if not do_x: return
    A(f"s_mul_i32 s{st+1}, s{st}, 80")
    A(f"s_and_b32 s{st+2}, s98, 1")
    A(f"s_mul_i32 s{st+2}, s{st+2}, {1024*1280}")
    for n in range(2):
        A(f"v_add_u32 v{t+1}, s{st+1}, v{t}")
        if n: A(f"v_add_u32 v{t+1}, 64, v{t+1}")
        A(f"v_lshrrev_b32 v{t+2}, 10, v{t+1}")
        A(f"v_and_b32 v{t+3}, 1023, v{t+1}")
        A(f"v_mul_u32_u24 v{t+3}, 1280, v{t+3}")
        A(f"v_lshl_add_u32 v{t+3}, v{t+2}, 7, v{t+3}")
        A(f"v_add_u32 v{t+3}, s{st+2}, v{t+3}")
        if n:
            A(f"v_cmp_gt_u32 vcc, 16, v{t}")
            A(f"v_cndmask_b32 v{t+3}, v{t+4}, v{t+3}, vcc")
        A(f"buffer_load_dword v229, v{t+3}, {srd(R.srdX)}, 0 offen")
    vm.issue('pf', 2)

def main(A, vm, issued, fill=None, after_barrier=None, pause=None, late=None, extra_need=None, before_barrier=None):
    fill = list(fill or []); after_barrier = after_barrier or {}; pause = pause or {}; extra_need = extra_need or {}; before_barrier = before_barrier or {}
    A(f"s_waitcnt vmcnt({vm.wait({'x0','w0'})})")
    A("s_barrier")
    if -1 in after_barrier: after_barrier[-1]()
    A(reads(0, 0, 0))
    rdpos = ((0, 3), (1, 3), (2, 2))
    def split(rd):
        g = [[] for _ in range(6)]
        k = 0
        for gi, n in rdpos:
            g[gi] += rd[k:k+n]; k += n
        return g
    def addfill(g, n=2, start=0):
        for gi in range(start, 6):
            k = n if len(g[gi]) < 2 else max(0, n - 1)
            for _ in range(k):
                if fill: g[gi].append(fill.pop(0))
    queue = []
    def enqueue(kind, i):
        atoms = dma_x(i) if kind == "x" else dma_w(i)
        queue.extend((ins, f"{kind}{i}") for ins in atoms)
        issued.add((kind, i))
    for k in (late or []): enqueue(*k)
    def drain(g, slots):
        for gi in slots:
            if queue:
                ins, tag = queue.pop(0); g[gi] += ins; vm.issue(tag)
    need_reads0 = False
    for t in range(NST):
        A.c(f"F1 stage {t}")
        if need_reads0:
            A(reads(t, 0, 0)); need_reads0 = False
        g = split(reads(t, 1, 1))
        many = len(queue) > 4
        drain(g, (0, 1, 2, 3, 4, 5) if many else (1, 3, 5))
        addfill(g)
        A("s_waitcnt lgkmcnt(0)")
        A(place(mfmas(0, first=(t == 0)), g))
        if t + 1 < NST:
            need = {f'w{t+1}'}
            if (t + 1) % 2 == 0: need.add(f'x{(t+1)//2}')
            need |= set(extra_need.get(t, ()))
            while any(tag in need for _, tag in queue):
                ins, tag = queue.pop(0); A(ins); vm.issue(tag)
            A(f"s_waitcnt vmcnt({vm.wait(need)}) lgkmcnt(0)")
            if t in before_barrier: before_barrier[t]()
            A("s_barrier")
            if t in after_barrier: after_barrier[t]()
            paused = t in pause
            g = [[] for _ in range(6)] if paused else split(reads(t+1, 0, 0))
            if (t & 1) and (t >> 1) + NXS < NST//2 and ("x", (t >> 1) + NXS) not in issued: enqueue("x", (t >> 1) + NXS)
            if t + NWS < NST and ("w", t + NWS) not in issued: enqueue("w", t + NWS)
            many = len(queue) > 4
            drain(g, (0, 1, 2, 3, 4, 5) if many else (1, 3, 5))
            addfill(g)
            A(place(mfmas(1), g))
            if paused:
                pause[t](); need_reads0 = True
        else:
            A("s_waitcnt lgkmcnt(0)")
            A(mfmas(1))
    assert not queue and not fill, (len(queue), len(fill))

def epilogue(A, vm, pWS, sc=" sc1", between=None):
    st, t = R.st, R.vt
    A.c("---- F1 epilogue ----")
    A.srd(R.srdH, pWS, SZ_H, OFF_H)
    A(f"s_lshr_b32 s{st}, s{R.sw}, 1")
    A(f"s_lshl_b32 s{st}, s{st}, 1")
    A(f"s_lshl_b32 s{st+1}, s{R.smt}, 2")
    A(f"s_add_u32 s{st}, s{st}, s{st+1}")
    A(f"s_mul_i32 s{st}, s{st}, 96")
    A(f"s_mul_i32 s{st+1}, s{R.sft}, 6")
    A(f"s_add_u32 s{st}, s{st}, s{st+1}")
    A(f"s_and_b32 s{st+1}, s{R.sw}, 1")
    A(f"s_mul_i32 s{st+1}, s{st+1}, 3")
    A(f"s_add_u32 s{st}, s{st}, s{st+1}")
    A(f"s_lshl_b32 s{st}, s{st}, 10")
    A(f"v_and_b32 v{t}, 63, v0")
    A(f"v_lshlrev_b32 v{t}, 4, v{t}")
    A(f"s_mov_b32 s{st+2}, 0xbfb8aa3b")
    A(f"s_mov_b32 s{st+3}, 0xbfb8aa3b")
    A.nop(4)
    E, O = 16, 32
    for tt in range(3):
        for tc in range(2):
            d = ACC + (tt*2 + tc)*16
            o = O + 4*((tt*2+tc) & 1)
            gi = [0, 2, 8, 10]
            for k, g in enumerate(gi): A(f"v_pk_mul_f32 v[{E+2*k}:{E+2*k+1}], v[{d+g}:{d+g+1}], s[{st+2}:{st+3}]")
            for k in range(8): A(f"v_exp_f32 v{E+k}, v{E+k}")
            for k, g in enumerate(gi): A(f"v_pk_mul_f32 v[{d+g+4}:{d+g+5}], v[{d+g}:{d+g+1}], v[{d+g+4}:{d+g+5}]")
            for k in range(4): A(f"v_pk_add_f32 v[{E+2*k}:{E+2*k+1}], v[{E+2*k}:{E+2*k+1}], 1.0 op_sel_hi:[1,0]")
            for k in range(8): A(f"v_rcp_f32 v{E+k}, v{E+k}")
            A("s_nop 0")
            for k, g in enumerate(gi): A(f"v_pk_mul_f32 v[{d+g+4}:{d+g+5}], v[{d+g+4}:{d+g+5}], v[{E+2*k}:{E+2*k+1}]")
            for k, g in enumerate(gi): A(f"v_cvt_pk_bf16_f32 v{o+k}, v{d+g+4}, v{d+g+5}")
            off = (tc*96 + tt)*1024
            A(f"s_add_u32 s{st+1}, s{st}, {off}")
            A(f"buffer_store_dwordx4 v[{o}:{o+3}], v{t}, {srd(R.srdH)}, s{st+1} offen{sc}")
            vm.issue('hst')
            if between: between(tt*2 + tc)
```

```python
from asmlib import *
from layout import *

class R:
    acc = 64
    vh = 8
    vl16 = 243
    vout = 10
    vog = 11
    vt = 12
    GAV = 244
    srdWT, srdH, srdGA, srdO, srdG = 64, 12, 16, 36, 40
    sw, sT, sdt = 20, 21, 22
    sWoff, sHoff = 61, 24
    st = 28
NRING = 9
def hslot(i):
    k = i % NRING
    return 16 + 16*k if k < 3 else 144 + 16*(k-3)

def setup_w(A, s_b, pWS):
    A.srd(R.srdWT, pWS, SZ_WT, OFF_WT)
    A(f"s_lshr_b32 s60, s{s_b}, 2")
    A(f"s_and_b32 s60, s60, 1")
    A(f"s_lshl_b32 s60, s60, 2")
    A(f"s_lshr_b32 s62, s{s_b}, 6")
    A(f"s_add_u32 s60, s60, s62")
    A(f"s_mul_i32 s62, s{R.sw}, 96")
    A(f"s_add_u32 s60, s60, s62")
    A(f"s_mul_i32 s{R.sWoff}, s60, 5120")
    A(f"v_and_b32 v{R.vl16}, 63, v0")
    A(f"v_lshlrev_b32 v{R.vl16}, 4, v{R.vl16}")

def setup(A, s_b, pWS, pOUT):
    st, t = R.st, R.vt
    A.c("---- F2 setup ----")
    A(f"s_and_b32 s{st}, s{s_b}, 3")
    A(f"s_lshl_b32 s{st}, s{st}, 3")
    A(f"s_lshr_b32 s{st+1}, s{s_b}, 3")
    A(f"s_and_b32 s{st+1}, s{st+1}, 7")
    A(f"s_add_u32 s{R.sT}, s{st}, s{st+1}")
    A(f"s_lshr_b32 s{st}, s{s_b}, 2")
    A(f"s_and_b32 s{st}, s{st}, 1")
    A(f"s_lshl_b32 s{st}, s{st}, 2")
    A(f"s_lshr_b32 s{st+1}, s{s_b}, 6")
    A(f"s_add_u32 s{R.sdt}, s{st}, s{st+1}")

def w_loads(steps):
    L = []
    so = 60
    for i in steps:
        for mt in range(5):
            d = 20*i + 4*mt
            pre = []
            if mt == 0: pre = [f"s_add_u32 s{so}, s{R.sWoff}, {i*8*5120}"]
            if mt == 4: pre = [f"s_add_u32 s{so}, s{so}, 4096"]
            off = f" offset:{1024*mt}" if 0 < mt < 4 else ""
            L.append(pre + [f"buffer_load_dwordx4 a[{d}:{d+3}], v{R.vl16}, {srd(R.srdWT)}, s{so} offen{off} sc1"])
    return L

def setup2(A, pWS, pOUT):
    st, t = R.st, R.vt
    A.srd(R.srdH, pWS, SZ_H, OFF_H)
    A.srd(R.srdGA, pWS, SZ_GA, OFF_GA)
    A.srd(R.srdO, pOUT, 2048*640*2)
    A.srd(R.srdG, pWS, 8192, OFF_G)
    A(f"v_and_b32 v{t}, 63, v0")
    A(f"v_and_b32 v{t+1}, 15, v{t}")
    A(f"v_lshrrev_b32 v{t+2}, 4, v{t}")
    A(f"v_lshl_add_u32 v{t+3}, v{t+2}, 5, v{t+1}")
    A(f"v_lshlrev_b32 v{R.vh}, 4, v{t+3}")
    A(f"s_mul_i32 s{st}, s{R.sT}, {2*96*1024}")
    A(f"s_mul_i32 s{st+1}, s{R.sw}, {12*2048}")
    A(f"s_add_u32 s{R.sHoff}, s{st}, s{st+1}")
    for lam in range(4):
        A(f"s_add_u32 s{st}, s{R.sw}, {lam}")
        A(f"s_and_b32 s{st}, s{st}, 3")
        A(f"s_lshr_b32 s{st+1}, s{st}, 1")
        A(f"s_mul_i32 s{st+1}, s{st+1}, {96*1024}")
        A(f"s_and_b32 s{st}, s{st}, 1")
        A(f"s_lshl_b32 s{st}, s{st}, 8")
        A(f"s_add_u32 s{st}, s{st}, s{st+1}")
        A(f"s_add_u32 s{44+lam}, s{st}, s{R.sHoff}")
    A(f"s_lshl_b32 s{st}, s{R.sT}, 6")
    A(f"s_lshl_b32 s{st+1}, s{R.sw}, 4")
    A(f"s_add_u32 s{st}, s{st}, s{st+1}")
    A(f"v_add_u32 v{t+3}, s{st}, v{t+1}")
    A(f"v_lshlrev_b32 v{R.vog}, 2, v{t+3}")
    A(f"v_mul_u32_u24 v{t+3}, 1280, v{t+3}")
    A(f"s_mul_i32 s{st}, s{R.sdt}, 160")
    A(f"v_lshl_add_u32 v{t+3}, v{t+2}, 3, v{t+3}")
    A(f"v_add_u32 v{R.vout}, s{st}, v{t+3}")

def h_loads(i):
    so = R.st + 2
    L = []
    for lam in range(4):
        d = hslot(i) + 4*lam
        L.append([f"s_add_u32 s{so}, s{44+lam}, {i*2048}", f"buffer_load_dwordx4 v[{d}:{d+3}], v{R.vh}, {srd(R.srdH)}, s{so} offen sc1"])
    return L

def mfmas(i):
    L = []
    for mt in range(5):
        for lam in range(4):
            d = R.acc + lam*20 + mt*4
            b = hslot(i) + 4*lam
            L.append(f"v_mfma_f32_16x16x32_bf16 v[{d}:{d+3}], a[{20*i+4*mt}:{20*i+4*mt+3}], v[{b}:{b+3}], " + ("0" if i == 0 else f"v[{d}:{d+3}]"))
    return L

AHEAD = 4
def main(A, vm, hooks=None, pre_issued=0):
    for i in range(pre_issued, AHEAD):
        A(h_loads(i)); vm.issue(f"h{i}", 4)
    for i in range(12):
        A.c(f"F2 step {i}")
        if hooks and i in hooks: hooks[i]()
        A(f"s_waitcnt vmcnt({vm.wait({f'h{i}', f'W{i}'})})")
        m = mfmas(i)
        n = i + AHEAD
        g = [[] for _ in m]
        if n < 12 and n >= pre_issued:
            for k, ins in enumerate(h_loads(n)): g[1 + 5*k] = ins
            vm.issue(f"h{n}", 4)
        A(place(m, g))

def final_loads(A, vm):
    A(f"buffer_load_dword v{R.vog}, v{R.vog}, {srd(R.srdG)}, 0 offen sc1")
    for mt in range(5):
        A(f"buffer_load_dwordx2 v[{R.GAV+2*mt}:{R.GAV+2*mt+1}], v{R.vout}, {srd(R.srdGA)}, 0 offen offset:{32*mt} sc1")
    vm.issue("ga", 6)

def epilogue(A, vm, lds_base=0):
    st, t = R.st, R.vt
    A.c("---- F2 reduction and output ----")
    for lam in range(1, 4):
        A(f"s_add_u32 s{st}, s{R.sw}, {lam}")
        A(f"s_and_b32 s{st}, s{st}, 3")
        A(f"s_mul_i32 s{st}, s{st}, {3*5120}")
        A(f"s_add_u32 s{st}, s{st}, {lds_base + (lam-1)*5120}")
        A(f"v_add_u32 v{t+lam-1}, s{st}, v{R.vl16}")
    for lam in range(1, 4):
        for mt in range(5):
            d = R.acc + lam*20 + mt*4
            A(f"ds_write_b128 v{t+lam-1}, v[{d}:{d+3}] offset:{mt*1024}")
    A(f"s_mul_i32 s{st}, s{R.sw}, {3*5120}")
    A(f"s_add_u32 s{st}, s{st}, {lds_base}")
    A(f"v_add_u32 v{t+3}, s{st}, v{R.vl16}")
    A("s_waitcnt lgkmcnt(0)")
    A("s_barrier")
    P = R.acc + 20
    for k in range(3):
        for mt in range(5):
            A(f"ds_read_b128 v[{P+20*k+4*mt}:{P+20*k+4*mt+3}], v{t+3} offset:{k*5120 + mt*1024}")
    A(f"s_waitcnt vmcnt({vm.wait({'ga'})})")
    A(f"v_sub_f32 v{R.vog}, 1.0, v{R.vog}")
    A(f"v_cvt_pk_bf16_f32 v{R.vog}, v{R.vog}, v{R.vog}")
    A(f"v_and_b32 v{R.vog}, 0xffff0000, v{R.vog}")
    for mt in range(5):
        A(f"s_waitcnt lgkmcnt({min(15, 14-mt if False else 0)})") if mt == 0 else None
        x = R.acc + 4*mt
        for k in range(3):
            y = P + 20*k + 4*mt
            A(f"v_pk_add_f32 v[{x}:{x+1}], v[{x}:{x+1}], v[{y}:{y+1}]")
            A(f"v_pk_add_f32 v[{x+2}:{x+3}], v[{x+2}:{x+3}], v[{y+2}:{y+3}]")
        g = R.GAV + 2*mt
        A(f"v_lshlrev_b32 v16, 16, v{g}")
        A(f"v_and_b32 v17, 0xffff0000, v{g}")
        A(f"v_lshlrev_b32 v18, 16, v{g+1}")
        A(f"v_and_b32 v19, 0xffff0000, v{g+1}")
        for j in range(4): A(f"v_fmac_f32 v{16+j}, v{R.vog}, v{x+j}")
        o = 20 + 2*mt
        A(f"v_cvt_pk_bf16_f32 v{o}, v16, v17")
        A(f"v_cvt_pk_bf16_f32 v{o+1}, v18, v19")
        A(f"buffer_store_dwordx2 v[{o}:{o+1}], v{R.vout}, {srd(R.srdO)}, 0 offen offset:{32*mt}")
```

```python
OFF_EPOCH = 0
OFF_FLAG1 = 32768
OFF_FLAG2 = 40960
OFF_FLAG3 = 4096
OFF_G     = 16384
OFF_H     = 1 << 20
SZ_H      = 2048*1536*2
OFF_X1    = 8 << 20
SZ_X1     = 81*2*16384
OFF_WF    = 12 << 20
SZ_WF     = 81*2*16384
OFF_Z     = 16 << 20
SZ_Z      = 81*2*16384
OFF_FT    = 20 << 20
SZ_FT     = 21*8*5120
OFF_WT    = 22 << 20
SZ_WT     = 48*8*5120
KA_AX, KA_WR, KA_WI, KA_BX, KA_WG, KA_WU, KA_WD, KA_GW, KA_OUT, KA_DBG, KA_WS = [8*i for i in range(11)]
OFF_FLAG4 = 8192
OFF_FLAG1B = 49152
SZ_FLAGS  = 57344
OFF_GA    = 24 << 20
SZ_GA     = 2048*640*2
```

```python
import sys, os
sys.path.insert(0, os.path.dirname(os.path.abspath(__file__)))
from asmlib import *
from layout import *
import f1, f2, g2, aux, hazard

NAME = "gated_mix__spectral_gfnet__swiglu_ffn__prompt_kernel"
pAX, pWR, pWI, pBX, pWG, pWU, pWD, pGW, pOUT, pDBG, pWS = 68, 70, 72, 74, 76, 78, 80, 82, 84, 86, 88
sNONCE, srdF, sSPIN, sTMP, sID = 90, 92, 96, 97, 98
srdD = 0
SPIN_MAX = 20000
import os
if os.environ.get('NOSPIN'): SPIN_MAX = 0

class Gen:
    def __init__(self, stamps=False, order="AB", gemm_first=True, exp="", ta2=10, tf1=1, d2=2, nwa2=5):
        self.exp = exp; self.ta2 = ta2; self.tf1 = tf1; self.d2 = d2; self.nwa2 = nwa2
        self.A = Asm("K"); self.stamps = stamps; self.ns = 0; self.names = {}
        self.gemm_first = gemm_first
        self.dbg_sel = {"gemm": [(0,"start",1),(1,"issued",0),(2,"consts",0),(3,"a1",0),(4,"preps",0),(5,"flag1",0),(6,"dep1",0),(7,"a2 start",0),(8,"a2 end",0),
                                 (9,"f1 loop end",0),(10,"f1 epi",0),(11,"a3 elem",0),(12,"a3 core",0),(13,"dep3",0),(14,"f2 loop end",0),(15,"end",0)]}
        g2.ORDER = order; g2.STG = g2.stages()
    def stamp(self, name=None):
        if not self.stamps: return
        if self.stamps == "min" and name not in ("start", "end"): return
        A = self.A
        A("s_memrealtime s[100:101]")
        A("s_waitcnt lgkmcnt(0)")
        A(f"v_writelane_b32 v255, s100, {self.ns}")
        self.names.setdefault(self.role, []).append((self.ns, name))
        self.ns += 1
    def dump_stamps(self):
        if not self.stamps: return
        A = self.A
        if self.stamps == "dbg":
            sel = self.dbg_sel[self.role]
            A("s_waitcnt vmcnt(0) lgkmcnt(0)")
            A.srd(8, pDBG, 256)
            lab = A.label("nd")
            A("s_cmp_lg_u32 s20, 0")
            A(f"s_cbranch_scc1 {lab}")
            names = {nm: idx for idx, nm in self.names[self.role]}
            A("v_mov_b32 v2, 0")
            A("v_mov_b32 v3, 0x40000000")
            for slot, nm, inv in sel:
                A(f"v_readlane_b32 s30, v255, {names[nm]}")
                if inv: A("s_not_b32 s30, s30")
                A(f"s_mov_b32 s31, {4*slot}")
                A(f"v_writelane_b32 v2, s30, {slot}")
                A(f"v_writelane_b32 v3, s31, {slot}")
            A("buffer_atomic_umax v2, v3, s[8:11], 0 offen")
            A(f"{lab}:")
            return
        A("s_waitcnt vmcnt(0) lgkmcnt(0)")
        A.srd(8, pDBG, 1 << 20)
        A("v_lshlrev_b32 v1, 2, v0")
        A(f"s_lshl_b32 s30, s{sID}, 10")
        A("s_add_u32 s30, s30, 4096")
        A("buffer_store_dword v255, v1, s[8:11], s30 offen")
    def flag_store(self, off, s_idx):
        A = self.A
        lab = A.label("sig")
        A(f"s_cmp_lg_u32 s20, 0")
        A(f"s_cbranch_scc1 {lab}")
        A(f"s_lshl_b32 s{sTMP}, s{s_idx}, 2")
        A(f"s_add_u32 s{sTMP}, s{sTMP}, {off}")
        A(f"v_mov_b32 v249, s{sNONCE}")
        A(f"v_mov_b32 v254, 0")
        A("s_mov_b64 exec, 1")
        A(f"buffer_store_dword v249, v254, {srd(srdF)}, s{sTMP} offen sc1")
        A("s_mov_b64 exec, -1")
        A(f"{lab}:")
    def flag_store_all(self, vm, off, s_idx):
        A = self.A
        A(f"s_lshl_b32 s{sTMP}, s{s_idx}, 2")
        A(f"s_add_u32 s{sTMP}, s{sTMP}, {off}")
        A(f"s_cmp_eq_u32 s20, 0")
        A(f"s_cselect_b32 s{sTMP}, s{sTMP}, 0x40000000")
        A(f"v_mov_b32 v249, s{sNONCE}")
        A(f"v_mov_b32 v254, 0")
        A("s_mov_b64 exec, 1")
        A(f"buffer_store_dword v249, v254, {srd(srdF)}, s{sTMP} offen sc1")
        A("s_mov_b64 exec, -1")
        vm.issue("flag")
    def arrive(self, vm, phase):
        A = self.A
        off = (OFF_FLAG1, OFF_FLAG2)[phase]
        A(f"s_lshl_b32 s{sTMP}, s{sID}, 2")
        A(f"s_add_u32 s{sTMP}, s{sTMP}, {off}")
        A(f"s_cmp_eq_u32 s20, 0")
        A(f"s_cselect_b32 s{sTMP}, s{sTMP}, 0x40000000")
        A(f"v_mov_b32 v249, s{sNONCE}")
        A(f"v_and_b32 v254, 7, v0")
        A(f"v_lshlrev_b32 v254, 10, v254")
        A("s_mov_b64 exec, 0xff")
        A(f"buffer_store_dword v249, v254, {srd(srdF)}, s{sTMP} offen sc1")
        A("s_mov_b64 exec, -1")
        vm.issue("flag")
    def cpoll_issue(self, vm, phase):
        A = self.A
        off = (OFF_FLAG1, OFF_FLAG2)[phase]
        A(f"v_and_b32 v254, 63, v0")
        A(f"v_lshlrev_b32 v254, 4, v254")
        A(f"s_and_b32 s{sTMP}, s{sID}, 7")
        A(f"s_lshl_b32 s{sTMP}, s{sTMP}, 10")
        A(f"s_add_u32 s{sTMP}, s{sTMP}, {off}")
        A(f"s_cmp_eq_u32 s20, 0")
        A(f"s_cselect_b32 s{sTMP}, s{sTMP}, 0x40000000")
        A(f"buffer_load_dwordx4 v[250:253], v254, {srd(srdF)}, s{sTMP} offen sc1")
        vm.issue("cpoll")
    def cpoll_check(self, vm, phase):
        A = self.A
        off = (OFF_FLAG1, OFF_FLAG2)[phase]
        lo, ok = A.label("w"), A.label("wok")
        A(f"s_waitcnt vmcnt({vm.wait({'cpoll'})})")
        A(f"s_cmp_lg_u32 s20, 0")
        A(f"s_cbranch_scc1 {ok}")
        A(f"s_mov_b32 s{sSPIN}, 0")
        A(f"{lo}:")
        for k in range(4): A(f"v_xor_b32 v{250+k}, s{sNONCE}, v{250+k}")
        A(f"v_or3_b32 v250, v250, v251, v252")
        A(f"v_or_b32 v250, v250, v253")
        A(f"v_cmp_ne_u32 vcc, 0, v250")
        A(f"s_cbranch_vccz {ok}")
        A(f"s_add_u32 s{sSPIN}, s{sSPIN}, 1")
        A(f"s_cmp_gt_u32 s{sSPIN}, {SPIN_MAX}")
        A(f"s_cbranch_scc1 {ok}")
        A("s_sleep 8")
        A(f"s_and_b32 s{sTMP}, s{sID}, 7")
        A(f"s_lshl_b32 s{sTMP}, s{sTMP}, 10")
        A(f"s_add_u32 s{sTMP}, s{sTMP}, {off}")
        A(f"buffer_load_dwordx4 v[250:253], v254, {srd(srdF)}, s{sTMP} offen sc1")
        A("s_waitcnt vmcnt(0)")
        A(f"s_branch {lo}")
        A(f"{ok}:")
    def flag_store_wave(self, vm, off, s_idx):
        A = self.A
        A(f"s_lshl_b32 s{sTMP}, s{s_idx}, 2")
        A(f"s_add_u32 s{sTMP}, s{sTMP}, {off}")
        A(f"v_mov_b32 v249, s{sNONCE}")
        A(f"v_mov_b32 v254, 0")
        A("s_mov_b64 exec, 1")
        A(f"buffer_store_dword v249, v254, {srd(srdF)}, s{sTMP} offen sc1")
        A("s_mov_b64 exec, -1")
        vm.issue("flag")
    def signal(self, vm, off, s_idx):
        A = self.A
        A("s_waitcnt vmcnt(0)")
        A("s_barrier")
        vm.q = []
        self.flag_store_all(vm, off, s_idx)
    def poll_issue(self, vm, off):
        A = self.A
        A(f"v_and_b32 v254, 63, v0")
        A(f"v_lshlrev_b32 v254, 4, v254")
        A(f"s_mov_b32 s{sTMP}, {off}")
        A(f"buffer_load_dwordx4 v[250:253], v254, {srd(srdF)}, s{sTMP} offen sc1")
        vm.issue("poll")
    def poll_check(self, vm, off):
        A = self.A
        lo, ok = A.label("w"), A.label("wok")
        A(f"s_waitcnt vmcnt({vm.wait({'poll'})})")
        A(f"s_mov_b32 s{sSPIN}, 0")
        A(f"{lo}:")
        for k in range(4): A(f"v_xor_b32 v{250+k}, s{sNONCE}, v{250+k}")
        A(f"v_or3_b32 v250, v250, v251, v252")
        A(f"v_or_b32 v250, v250, v253")
        A(f"v_cmp_ne_u32 vcc, 0, v250")
        A(f"s_cbranch_vccz {ok}")
        A(f"s_add_u32 s{sSPIN}, s{sSPIN}, 1")
        A(f"s_cmp_gt_u32 s{sSPIN}, {SPIN_MAX}")
        A(f"s_cbranch_scc1 {ok}")
        A("s_sleep 4")
        A(f"s_mov_b32 s{sTMP}, {off}")
        A(f"buffer_load_dwordx4 v[250:253], v254, {srd(srdF)}, s{sTMP} offen sc1")
        A("s_waitcnt vmcnt(0)")
        A(f"s_branch {lo}")
        A(f"{ok}:")
    def wait_all(self, vm, off):
        self.poll_issue(vm, off); self.poll_check(vm, off)
    def wait_idx(self, vm, off, v_idx_code):
        A = self.A
        lo, ok = A.label("w"), A.label("wok")
        v_idx_code()
        A(f"s_mov_b32 s{sSPIN}, 0")
        A(f"s_mov_b32 s{sTMP}, {off}")
        A(f"{lo}:")
        A(f"buffer_load_dword v250, v254, {srd(srdF)}, s{sTMP} offen sc1")
        A("s_waitcnt vmcnt(0)")
        A(f"v_cmp_ne_u32 vcc, s{sNONCE}, v250")
        A(f"s_cbranch_vccz {ok}")
        A(f"s_add_u32 s{sSPIN}, s{sSPIN}, 1")
        A(f"s_cmp_gt_u32 s{sSPIN}, {SPIN_MAX}")
        A(f"s_cbranch_scc1 {ok}")
        A("s_sleep 4")
        A(f"s_branch {lo}")
        A(f"{ok}:")
        vm.q = []

    def body(self):
        A = self.A; self.role = "gemm"; self.ns = 0
        vm = VM()
        TA2 = self.ta2
        self.stamp("start")
        X = self.exp.split("+")
        aux.setup(A, pAX, pWR, pWI, pWD, pGW, pWS)
        issued = set()
        def iss(*ks):
            for k in ks:
                f1.issue(A, vm, *k); issued.add(k)
        def mid():
            f1.setup(A, sID, pAX, pWG, pWU, pWS)
            if "nopf" not in X: f1.l2_prefetch(A, vm, pWG, pWU, do_x=False)
        aux.issue_loads(A, vm, mid)
        self.stamp("issued")
        aux.setup_out(A, pWS)
        f1.setup_reads(A)
        aux.consts_a1(A)
        A(aux.consts_a2_fill())
        self.stamp("consts")
        aux.a1_core(A, vm)
        self.stamp("core")
        A("s_waitcnt lgkmcnt(0)")
        A(f"s_add_u32 s{sNONCE}, s{sNONCE}, 1")
        A(f"s_waitcnt vmcnt({vm.wait({'ws', 'gw'})})")
        aux.a1_elem(A, vm)
        self.stamp("a1")
        if "nop1" not in self.exp and "nopreps" not in self.exp:
            iss(("x", 0), ("w", 0))
            aux.wprep(A, vm)
            iss(("w", 1))
            A(f"s_waitcnt vmcnt({vm.wait({'wd'})})")
            A("s_barrier")
            aux.wtprep(A, vm)
            self.stamp("wprep")
            iss(("x", 1), ("w", 2))
            aux.gate(A, vm)

        if 'nop1' in self.exp: A('s_waitcnt vmcnt(0)')
        self.stamp("preps")
        after, pause, extra, before = {}, {}, {}, {}
        extra[self.tf1] = {'st'}
        after[self.tf1] = lambda: (self.arrive(vm, 0), self.stamp("flag1"))
        def a2_issue():
            A(f"s_or_b32 s{sTMP}, s{sID}, s20")
            A(f"s_cmp_eq_u32 s{sTMP}, 0")
            A(f"s_cselect_b32 s{sTMP}, 0, 0x40000000")
            A(f"v_mov_b32 v249, s{sNONCE}")
            A(f"v_mov_b32 v254, 0")
            A("s_mov_b64 exec, 1")
            A(f"buffer_store_dword v249, v254, {srd(srdF)}, s{sTMP} offen sc1")
            A("s_mov_b64 exec, -1")
            vm.issue("flag")
            self.stamp("dep1")
            aux.a2_loads(A, vm, pWS)
            f2.setup_w(A, sID, pWS)
        NW_A2 = self.nwa2
        watoms = f2.w_loads(range(NW_A2))
        def a2_run():
            lab, lab2 = A.label("noa2"), A.label("a2d")
            self.stamp("a2 start")
            A(f"s_waitcnt vmcnt({vm.wait({'a2in'})})")
            A(f"s_cmp_ge_u32 s{sID}, {0 if 'noa2' in self.exp else 162}")
            A(f"s_cbranch_scc1 {lab}")
            v2 = VM()
            aux.a2(A, v2, pWS, waited=True, weave=list(watoms))
            A(f"s_branch {lab2}")
            A(f"{lab}:")
            for ins in watoms: A(ins)
            A(f"{lab2}:")
            for k in range(len(watoms)): vm.issue(f"W{k//5}")
            vm.issue('zst', 4)
            self.stamp("a2 end")
        after[TA2-4] = lambda: self.cpoll_issue(vm, 0)
        before[TA2-1] = lambda: self.cpoll_check(vm, 0)
        after[TA2-1] = a2_issue
        pause[TA2] = a2_run
        extra[TA2+self.d2] = {'zst'}
        after[TA2+self.d2] = lambda: self.arrive(vm, 1)
        after[16] = lambda: self.cpoll_issue(vm, 1)
        before[18] = lambda: self.cpoll_check(vm, 1)
        if "fine" in self.exp:
            for t in range(0, 19, 2):
                def mk(t, old):
                    def f():
                        if old: old()
                        self.stamp(f"bar{t}")
                    return f
                after[t] = mk(t, after.get(t))
        fl = []
        f1.main(A, vm, issued, fill=fl, after_barrier=after, pause=pause, late=[("w", 3), ("x", 2), ("w", 4), ("w", 5)], extra_need=extra, before_barrier=before)
        self.stamp("f1 loop end")
        f2.setup(A, sID, pWS, pOUT)
        self.stamp("dep2")
        aux.a3_loads(A, vm, pWS)
        atoms = [(ins, f"W{self.nwa2 + k//5}") for k, ins in enumerate(f2.w_loads(range(self.nwa2, 10)))]
        def put(n):
            for _ in range(n):
                if atoms:
                    ins, tag = atoms.pop(0); A(ins); vm.issue(tag)
        f1.epilogue(A, vm, pWS, between=lambda k: put(2))
        self.stamp("f1 epi")
        A(f"s_lshl_b32 s{sTMP}, s{f1.R.smt}, 1")
        A(f"s_lshr_b32 s99, s20, 1")
        A(f"s_add_u32 s{sTMP}, s{sTMP}, s99")
        A(f"s_lshl_b32 s{sTMP}, s{sTMP}, 5")
        A(f"s_lshl_b32 s99, s{f1.R.sft}, 1")
        A(f"s_add_u32 s{sTMP}, s{sTMP}, s99")
        A(f"s_and_b32 s99, s20, 1")
        A(f"s_add_u32 s99, s{sTMP}, s99")
        def extra(rnd):
            put(4)
            if rnd == 1:
                A(f"s_waitcnt vmcnt({vm.wait({'hst'})})")
                self.flag_store_wave(vm, OFF_FLAG3, 99)
        aux.a3_elem(A, vm, extra)
        put(100)
        A("s_barrier")
        self.stamp("a3 elem")
        aux.a3_core(A, vm, pWS)
        for k, ins in enumerate(f2.w_loads((10, 11))):
            A(ins); vm.issue(f"W{10 + k//5}")
        self.stamp("a3 core")
        f2.setup2(A, pWS, pOUT)
        def code3():
            A(f"v_and_b32 v254, 31, v0")
            A(f"s_lshl_b32 s{sTMP}, s{f2.R.sT}, 5")
            A(f"v_add_u32 v254, s{sTMP}, v254")
            A(f"v_lshlrev_b32 v254, 2, v254")
        A(f"s_waitcnt vmcnt({vm.wait({'gast'})})")
        A(f"s_lshl_b32 s99, s{sID}, 2")
        A(f"s_add_u32 s99, s99, s20")
        self.flag_store_wave(vm, OFF_FLAG4, 99)
        self.wait_idx(vm, OFF_FLAG3, code3)
        self.stamp("dep3")
        def code4():
            A(f"v_and_b32 v254, 63, v0")
            A(f"s_and_b32 s{sTMP}, s{f2.R.sT}, 15")
            A(f"s_lshl_b32 s{sTMP}, s{sTMP}, 6")
            A(f"v_add_u32 v254, s{sTMP}, v254")
            A(f"v_lshlrev_b32 v254, 2, v254")
        def h_issue4():
            code4()
            A(f"s_mov_b32 s{sTMP}, {OFF_FLAG4}")
            A(f"buffer_load_dword v250, v254, {srd(srdF)}, s{sTMP} offen sc1")
            vm.issue("poll4")
        def h_check4():
            lo, ok = A.label("w"), A.label("wok")
            A(f"s_waitcnt vmcnt({vm.wait({'poll4'})})")
            A(f"s_mov_b32 s{sSPIN}, 0")
            A(f"{lo}:")
            A(f"v_cmp_ne_u32 vcc, s{sNONCE}, v250")
            A(f"s_cbranch_vccz {ok}")
            A(f"s_add_u32 s{sSPIN}, s{sSPIN}, 1")
            A(f"s_cmp_gt_u32 s{sSPIN}, {SPIN_MAX}")
            A(f"s_cbranch_scc1 {ok}")
            A("s_sleep 4")
            A(f"s_mov_b32 s{sTMP}, {OFF_FLAG4}")
            A(f"buffer_load_dword v250, v254, {srd(srdF)}, s{sTMP} offen sc1")
            A("s_waitcnt vmcnt(0)")
            A(f"s_branch {lo}")
            A(f"{ok}:")
            f2.final_loads(A, vm)
        f2.main(A, vm, hooks={5: h_issue4, 9: h_check4})
        self.stamp("f2 loop end")
        A("s_barrier")
        f2.epilogue(A, vm)
        self.stamp("end")
        self.dump_stamps()
        A("s_endpgm")

    def build(self):
        A = self.A
        A(f"s_cmp_ge_u32 s2, 256")
        A(f"s_cbranch_scc1 K_exit")
        A(f"s_load_dwordx16 s[68:83], s[0:1], 0")
        A(f"s_load_dwordx4 s[84:87], s[0:1], 64")
        A(f"s_load_dwordx2 s[88:89], s[0:1], 80")
        if self.stamps: A("v_mov_b32 v255, 0")
        A(f"s_mov_b32 s{sID}, s2")
        A(f"v_lshrrev_b32 v4, 6, v0")
        A("s_nop 0")
        A(f"v_readfirstlane_b32 s20, v4")
        A("s_waitcnt lgkmcnt(0)")
        A(f"s_load_dword s{sNONCE}, s[{pWS}:{pWS+1}], {OFF_EPOCH}")
        A.srd(srdF, pWS, SZ_FLAGS)
        self.body()
        A("K_exit:")
        A("s_endpgm")
        lines, n = hazard.fix(A.l)
        return lines

HEADER = open(os.path.join(os.path.dirname(os.path.abspath(__file__)), "header.txt")).read()
def full_source(**kw):
    g = Gen(**kw)
    body = "\n".join(g.build())
    src = HEADER + f"""; @launch grid=(256,1,1) block=(256,1,1) lds=163840
.amdgcn_target "amdgcn-amd-amdhsa--gfx950"
.text
.globl {NAME}
.p2align 8
.type {NAME},@function
{NAME}:
{body}
.section .rodata,"a"
.p2align 6
.amdhsa_kernel {NAME}
  .amdhsa_next_free_vgpr 512
  .amdhsa_next_free_sgpr 102
  .amdhsa_accum_offset 256
  .amdhsa_group_segment_fixed_size 0
  .amdhsa_kernarg_size 88
  .amdhsa_user_sgpr_count 2
  .amdhsa_user_sgpr_kernarg_segment_ptr 1
  .amdhsa_system_sgpr_workgroup_id_x 1
.end_amdhsa_kernel
"""
    return src, g
if __name__ == "__main__":
    kw = {}
    for o in sys.argv[2:]:
        k, v_ = o.split("="); kw[k] = eval(v_)
    src, g = full_source(**kw)
    out = sys.argv[1] if len(sys.argv) > 1 else "gated_mix__spectral_gfnet__swiglu_ffn__prompt.s"
    open(out, "w").write(src)
    print("wrote", out, len(src), "bytes")
```

```python
from asmlib import *
from layout import *
import struct
def fb(x): return hex(struct.unpack('<I', struct.pack('<f', x))[0])

import os
SC = os.environ.get('AUXSC', ' sc1')
class R:
    vl = 1
    vn = 2
    vh = 3
    TWr, TWi = 160, 176
    t3r, t3i = 192, 198
    T2r, T2i = 0, 16
    CRe, CIm, F10 = 216, 232, 248
    sw = 20
    sc = 98
    srdAX, srdX1, srdWR, srdWI, srdWF, srdWD, srdWT, srdGW, srdG, srdFT, srdZ = 32, 36, 40, 44, 48, 52, 56, 60, 64, 4, 4
    st = 28
    st2 = 99

AUXB   = 122880
L_XR   = AUXB
L_GW   = AUXB + 12288
L_WS   = AUXB + 14336
L_WD   = AUXB + 32768
L_Z    = 49152 + 4*12288
ZROW, ZWAVE = 2560, 5184
L_X    = AUXB
L_F    = AUXB + 16384

def setup(A, pAX, pWR, pWI, pWD, pGW, pWS):
    A.c("---- aux setup ----")
    A(f"v_and_b32 v{R.vl}, 63, v0")
    A(f"v_and_b32 v{R.vn}, 31, v{R.vl}")
    A(f"v_lshrrev_b32 v{R.vh}, 5, v{R.vl}")
    A.srd(R.srdAX, pAX, 2048*640*2)

def setup_out(A, pWS):
    A.srd(R.srdX1, pWS, SZ_X1, OFF_X1)
    A.srd(R.srdWF, pWS, SZ_WF, OFF_WF)
    A.srd(R.srdWT, pWS, SZ_WT, OFF_WT)
    A.srd(R.srdG, pWS, 8192, OFF_G)

XA = 16
def issue_wd(A, vm, pWD=80):
    st = R.st
    A.c("Wd tile DMA (workgroups >= 240 fall off the end of the buffer and get zeros)")
    A.srd(R.srdWD, pWD, 1536*640*2)
    A(f"s_mul_i32 s{st+2}, s{R.sc}, 52429")
    A(f"s_lshr_b32 s{st+2}, s{st+2}, 18")
    A(f"s_mul_i32 s{st+3}, s{st+2}, 5")
    A(f"s_sub_u32 s{st+3}, s{R.sc}, s{st+3}")
    A(f"s_lshl_b32 s{st}, s{st+2}, 5")
    A(f"s_lshl_b32 s{st+1}, s{R.sw}, 3")
    A(f"s_add_u32 s{st}, s{st}, s{st+1}")
    A(f"s_mul_i32 s{st}, s{st}, 1280")
    A(f"s_lshl_b32 s{st+1}, s{st+3}, 8")
    A(f"s_add_u32 s{st}, s{st}, s{st+1}")
    A(f"v_lshrrev_b32 v5, 4, v{R.vl}")
    A(f"v_mul_u32_u24 v5, 1280, v5")
    A(f"v_and_b32 v6, 15, v{R.vl}")
    A(f"v_lshl_add_u32 v5, v6, 4, v5")
    A(f"s_lshl_b32 s{st+1}, s{R.sw}, 11")
    A(f"s_add_u32 m0, s{st+1}, {L_WD}")
    A(f"v_add_u32 v6, {4*1280-1024}, v5")
    A(f"buffer_load_dwordx4 v5, {srd(R.srdWD)}, s{st} offen lds")
    A(f"buffer_load_dwordx4 v6, {srd(R.srdWD)}, s{st} offen offset:1024 lds")
    vm.issue('wd', 2)

def issue_loads(A, vm, mid=None, pWR=70, pWI=72, pWD=80, pGW=82, wd=True):
    st = R.st
    A.c("x rows: chunk i = 64j + l ; i<80 row s', i<160 row s'+1024, else out of range (zeros)")
    A(f"s_lshl_b32 s{st}, s{R.sc}, 2")
    A(f"s_add_u32 s{st}, s{st}, s{R.sw}")
    A(f"s_mul_i32 s{st}, s{st}, 1280")
    A(f"s_mul_i32 s{st+1}, s{R.sw}, 3072")
    A(f"s_add_u32 m0, s{st+1}, {L_XR}")
    A(f"v_lshlrev_b32 v4, 4, v{R.vl}")
    A(f"buffer_load_dwordx4 v4, {srd(R.srdAX)}, s{st} offen lds")
    A(f"v_add_u32 v5, {1024-1024}, v4")
    A(f"v_add_u32 v6, {1024*1280 - 256 - 1024}, v4")
    A(f"v_cmp_gt_u32 vcc, 16, v{R.vl}")
    A(f"v_cndmask_b32 v5, v6, v5, vcc")
    A(f"buffer_load_dwordx4 v5, {srd(R.srdAX)}, s{st} offen offset:1024 lds")
    A(f"v_add_u32 v5, {1024*1280 + 48*16 - 2048}, v4")
    A(f"v_mov_b32 v6, 0x40000000")
    A(f"v_cmp_gt_u32 vcc, 32, v{R.vl}")
    A(f"v_cndmask_b32 v5, v6, v5, vcc")
    A(f"buffer_load_dwordx4 v5, {srd(R.srdAX)}, s{st} offen offset:2048 lds")
    vm.issue('xr', 3)
    A.srd(R.srdWR, pWR, 2048*321*2)
    A.srd(R.srdWI, pWI, 2048*321*2)
    A.c("filter staging: rho=b&63 (rows 32 rho + e), cq=b>>6 ; wave: array = w>>1, rows 16(w&1) + i/12, chunk i%12")
    A(f"s_and_b32 s{st}, s{R.sc}, 63")
    A(f"s_lshl_b32 s{st}, s{st}, 5")
    A(f"s_and_b32 s{st+1}, s{R.sw}, 1")
    A(f"s_lshl_b32 s{st+1}, s{st+1}, 4")
    A(f"s_add_u32 s{st}, s{st}, s{st+1}")
    A(f"s_lshr_b32 s{st+1}, s{R.sc}, 6")
    A(f"s_mul_i32 s{st+1}, s{st+1}, 162")
    A(f"s_mul_i32 s{st+2}, s{R.sw}, 3072")
    A(f"s_add_u32 m0, s{st+2}, {L_WS}")
    A(f"s_cmp_lt_u32 s{R.sw}, 2")
    A(f"s_cselect_b32 s4, s{R.srdWR}, s{R.srdWI}")
    A(f"s_cselect_b32 s5, s{R.srdWR+1}, s{R.srdWI+1}")
    A(f"s_mov_b32 s6, {hex(2048*321*2)}")
    A(f"s_mov_b32 s7, 0x20000")
    for j in range(3):
        A(f"v_add_u32 v5, {64*j}, v{R.vl}")
        A(f"v_mul_u32_u24 v6, 5462, v5")
        A(f"v_lshrrev_b32 v6, 16, v6")
        A(f"v_mul_u32_u24 v7, 12, v6")
        A(f"v_sub_u32 v7, v5, v7")
        A(f"v_add_u32 v6, s{st}, v6")
        A(f"v_mul_u32_u24 v6, 642, v6")
        A(f"v_add_u32 v6, s{st+1}, v6")
        A(f"v_and_b32 v6, -16, v6")
        A(f"v_lshl_add_u32 v6, v7, 4, v6")
        if j: A(f"v_subrev_u32 v6, {1024*j}, v6")
        A(f"buffer_load_dwordx4 v6, s[4:7], 0 offen" + (f" offset:{1024*j}" if j else "") + " lds")
    vm.issue('ws', 3)
    if wd: issue_wd(A, vm, pWD)
    A.c("gate_w: 80 chunks ; wave w loads chunks 64w.. (out of range -> zeros)")
    A.srd(R.srdGW, pGW, 640*2)
    A(f"s_lshl_b32 s{st}, s{R.sw}, 10")
    A(f"s_min_u32 s{st}, s{st}, 1024")
    A(f"s_add_u32 m0, s{st}, {L_GW}")
    A(f"buffer_load_dwordx4 v4, {srd(R.srdGW)}, s{st} offen lds")
    vm.issue('gw', 1)
    if mid: mid()

def consts_a1(A):
    A.c("constants: F32 interleaved, tw320, F10")
    n, h = R.vn, R.vh
    A(f"v_cvt_f32_u32 v4, v{n}")
    A(f"v_cvt_f32_u32 v5, v{h}")
    A(f"v_mul_f32 v6, {fb(1/32)}, v4")
    A(f"v_mul_f32 v7, 4.0, v5")
    A(f"v_mul_f32 v8, v7, v6")
    for i in range(4):
        for q in range(4):
            A(f"v_fmamk_f32 v9, v6, {fb(float(8*i+q))}, v8")
            A(f"v_fract_f32 v9, v9")
            A(f"v_sin_f32 v10, v9")
            A(f"v_cos_f32 v11, v9")
            A("s_nop 0")
            A(f"v_cvt_pk_bf16_f32 v12, v11, v10")
            A(f"v_cvt_pk_bf16_f32 v13, -v10, v11")
            A(f"v_accvgpr_write_b32 a{R.CRe+4*i+q}, v12")
            A(f"v_accvgpr_write_b32 a{R.CIm+4*i+q}, v13")
    A(f"v_mul_f32 v6, {fb(1/320)}, v4")
    A(f"v_mul_f32 v8, v7, v6")
    for idx, (e, j) in enumerate([(0,0),(0,1),(0,2),(0,3),(1,0),(1,1)]):
        A(f"v_fmamk_f32 v9, v6, {fb(float(8*e+j))}, v8")
        A(f"v_cos_f32 v{R.t3r+idx}, v9")
        A(f"v_sin_f32 v{R.t3i+idx}, -v9")
    A(f"v_lshrrev_b32 v9, 3, v{n}")
    A(f"v_lshlrev_b32 v9, 2, v9")
    A(f"v_bfe_u32 v10, v{n}, 2, 1")
    A(f"v_lshl_add_u32 v9, v10, 1, v9")
    A(f"v_bfe_u32 v10, v{n}, 1, 1")
    A(f"v_add_u32 v9, v9, v10")
    A(f"v_cmp_gt_u32 s[{R.st}:{R.st+1}], 10, v9")
    A(f"v_cvt_f32_u32 v9, v9")
    A(f"v_mul_f32 v9, {fb(0.1)}, v9")
    A(f"v_and_b32 v10, 1, v{n}")
    A(f"v_cvt_f32_u32 v10, v10")
    A(f"v_mul_f32 v10, 0.25, v10" if False else f"v_mul_f32 v10, {fb(0.25)}, v10")
    A(f"v_fma_f32 v10, v7, v9, v10")
    A(f"v_cmp_eq_u32 vcc, 0, v{h}")
    A(f"s_and_b64 s[{R.st+2}:{R.st+3}], vcc, s[{R.st}:{R.st+1}]")
    for e in range(2):
        for q in range(4):
            d = R.F10 + 4*e + q
            if e == 1 and q >= 2:
                A(f"v_accvgpr_write_b32 a{d}, 0"); continue
            A(f"v_fmamk_f32 v11, v9, {fb(float(8*e+q))}, v10")
            A(f"v_fract_f32 v11, v11")
            A(f"v_cos_f32 v12, v11")
            A(f"v_sin_f32 v13, v11")
            A("s_nop 0")
            A(f"v_cvt_pk_bf16_f32 v12, v12, v13")
            m = R.st if e == 0 else R.st+2
            A(f"v_cndmask_b32 v12, 0, v12, s[{m}:{m+1}]")
            A(f"v_accvgpr_write_b32 a{d}, v12")

def consts_a2_fill():
    n, h = R.vn, R.vh
    t0, t1, t2, t3, t4, t5 = 243, 244, 245, 246, 247, 248
    L = [f"v_cvt_f32_u32 v{t0}, v{n}", f"v_cvt_f32_u32 v{t1}, v{h}", f"v_mul_f32 v{t1}, 4.0, v{t1}",
         f"v_mul_f32 v{t2}, {fb(1/1024)}, v{t0}", f"v_mul_f32 v{t3}, v{t1}, v{t2}"]
    for i in range(4):
        for j in range(4):
            L += [f"v_fmamk_f32 v{t4}, v{t2}, {fb(float(8*i+j))}, v{t3}",
                  f"v_cos_f32 v{R.TWr+4*i+j}, v{t4}", f"v_sin_f32 v{R.TWi+4*i+j}, -v{t4}"]
    return L

def cmulp(A, d, a, c, t, conj_out=False):
    A(f"v_pk_mul_f32 v[{t}:{t+1}], v[{a}:{a+1}], v[{c}:{c+1}] op_sel:[1,1] op_sel_hi:[1,0]")
    A(f"v_pk_fma_f32 v[{d}:{d+1}], v[{a}:{a+1}], v[{c}:{c+1}], v[{t}:{t+1}] op_sel:[0,0,0] op_sel_hi:[0,1,1] neg_lo:[0,0,1]")

def cmul(A, dr, di, ar, ai, br, bi, t):
    A(f"v_mul_f32 v{t}, v{ai}, v{bi}")
    A(f"v_mul_f32 v{di}, v{ai}, v{br}") if di == ai else A(f"v_mul_f32 v{di}, v{ai}, v{br}")
    A(f"v_fmac_f32 v{di}, v{ar}, v{bi}")
    A(f"v_fma_f32 v{dr}, v{ar}, v{br}, -v{t}")

D1r, D1i, PK, D2 = 32, 48, 96, (32, 48)
def fft320_core(A, xa=XA, tmp=(4, 6), mid=None):
    for i in range(4):
        c = "0" if i == 0 else f"v[{D1r}:{D1r+15}]"
        A(f"v_mfma_f32_32x32x16_bf16 v[{D1r}:{D1r+15}], v[{xa+4*i}:{xa+4*i+3}], a[{R.CRe+4*i}:{R.CRe+4*i+3}], {c}")
        c = "0" if i == 0 else f"v[{D1i}:{D1i+15}]"
        A(f"v_mfma_f32_32x32x16_bf16 v[{D1i}:{D1i+15}], v[{xa+4*i}:{xa+4*i+3}], a[{R.CIm+4*i}:{R.CIm+4*i+3}], {c}")
    for r in range(2):
        A(f"v_mov_b32 v{PK+8*r+6}, 0")
        A(f"v_mov_b32 v{PK+8*r+7}, 0")
    if mid: mid()
    t0, t1 = tmp
    for r in range(2):
        for idx, (e, j) in ((0, (0, 0)), (2, (0, 2)), (4, (1, 0))):
            reg = 4*(2*r+e) + j
            ar, ai = D1r+reg, D1i+reg
            tr, ti = R.t3r+idx, R.t3i+idx
            A(f"v_pk_mul_f32 v[{t0}:{t0+1}], v[{ai}:{ai+1}], v[{ti}:{ti+1}]")
            A(f"v_pk_mul_f32 v[{t1}:{t1+1}], v[{ai}:{ai+1}], v[{tr}:{tr+1}]")
            A(f"v_pk_fma_f32 v[{t0}:{t0+1}], v[{ar}:{ar+1}], v[{tr}:{tr+1}], v[{t0}:{t0+1}] neg_lo:[0,0,1] neg_hi:[0,0,1]")
            A(f"v_pk_fma_f32 v[{t1}:{t1+1}], v[{ar}:{ar+1}], v[{ti}:{ti+1}], v[{t1}:{t1+1}]")
            A(f"v_cvt_pk_bf16_f32 v{PK+8*r+4*e+j}, v{t0}, v{t1}")
            A(f"v_cvt_pk_bf16_f32 v{PK+8*r+4*e+j+1}, v{t0+1}, v{t1+1}")
    for r in range(2):
        for e in range(2):
            c = "0" if e == 0 else f"v[{D2[r]}:{D2[r]+15}]"
            A(f"v_mfma_f32_32x32x16_bf16 v[{D2[r]}:{D2[r]+15}], a[{R.F10+4*e}:{R.F10+4*e+3}], v[{PK+8*r+4*e}:{PK+8*r+4*e+3}], {c}")

def a1_core(A, vm):
    st = R.st
    A.c("---- A1 core ----")
    A(f"s_waitcnt vmcnt({vm.wait({'xr'})})")
    A(f"v_bfe_u32 v4, v{R.vl}, 4, 1")
    A(f"v_mul_u32_u24 v4, 1280, v4")
    A(f"v_and_b32 v5, 15, v{R.vl}")
    A(f"v_lshl_add_u32 v4, v5, 2, v4")
    A(f"v_mul_u32_u24 v5, 160, v{R.vh}")
    A(f"s_mul_i32 s{st}, s{R.sw}, 3072")
    A(f"s_add_u32 s{st}, s{st}, {L_XR}")
    A(f"v_add3_u32 v4, v4, v5, s{st}")
    for i in range(4):
        for q in range(4):
            A(f"ds_read_b32 v{XA+4*i+q}, v4 offset:{320*i+40*q}")
    A("s_waitcnt lgkmcnt(0)")
    fft320_core(A)
    A(f"s_mul_i32 s{st}, s{R.sw}, {ZWAVE}")
    A(f"s_add_u32 s{st}, s{st}, {L_Z}")
    A(f"v_lshl_add_u32 v4, v{R.vh}, 6, v{R.vn}")
    A(f"v_lshl_add_u32 v4, v4, 3, s{st}")
    for i in range(3):
        if i == 2: A("s_mov_b64 exec, 0xffffffff")
        for r in range(2):
            for jj in range(2):
                d = D2[r] + 4*i + 2*jj
                A(f"ds_write_b64 v4, v[{d}:{d+1}] offset:{r*ZROW + (128*i + 32*jj)*8}")
    A("s_mov_b64 exec, -1")

def a1_elem(A, vm):
    st = R.st
    A.c("---- A1 elementwise ----")
    A("s_waitcnt lgkmcnt(0)")
    A("s_barrier")
    A(f"v_and_b32 v4, 3, v0")
    A(f"v_mul_u32_u24 v5, {ZWAVE}, v4")
    A(f"v_add_u32 v5, {L_Z}, v5")
    A(f"s_lshl_b32 s{st}, s{R.sc}, 2")
    A(f"v_add_u32 v6, s{st}, v4")
    A(f"v_cvt_f32_u32 v7, v6")
    A(f"v_mul_f32 v7, {fb(1/2048)}, v7")
    A(f"v_cos_f32 v12, v7")
    A(f"v_sin_f32 v13, -v7")
    A(f"v_lshlrev_b32 v6, 4, v6")
    A(f"v_lshrrev_b32 v7, 2, v0")
    Zp0, Zq0, Zp1, Zq1 = 32, 34, 36, 38
    for rnd in range(3):
        A.c(f"A1 elementwise round {rnd}")
        A(f"v_add_u32 v8, {64*rnd}, v7")
        A(f"v_sub_u32 v9, 320, v8")
        A(f"v_cmp_eq_u32 vcc, 320, v9")
        A(f"v_lshl_add_u32 v10, v8, 3, v5")
        A(f"v_cndmask_b32 v9, v9, 0, vcc" if False else f"v_cndmask_b32_e64 v9, v9, 0, vcc")
        A(f"v_lshl_add_u32 v11, v9, 3, v5")
        A(f"ds_read_b64 v[{Zp0}:{Zp0+1}], v10")
        A(f"ds_read_b64 v[{Zq0}:{Zq0+1}], v11")
        A(f"ds_read_b64 v[{Zp1}:{Zp1+1}], v10 offset:{ZROW}")
        A(f"ds_read_b64 v[{Zq1}:{Zq1+1}], v11 offset:{ZROW}")
        A(f"v_cvt_f32_u32 v15, v8")
        A(f"v_mul_f32 v15, {fb(1/640)}, v15")
        A(f"v_sin_f32 v14, -v15")
        A(f"v_cos_f32 v15, v15")
        A(f"v_sub_f32 v15, 0, v15")
        A(f"v_lshrrev_b32 v10, 1, v8")
        A(f"v_lshlrev_b32 v10, 15, v10")
        A(f"v_and_b32 v11, 1, v8")
        A(f"v_lshl_add_u32 v10, v11, 3, v10")
        A(f"v_add_u32 v10, v10, v6")
        A(f"v_cmp_gt_u32 vcc, 162, v8")
        A(f"v_cndmask_b32 v10, {0x40000000}, v10, vcc" if False else f"v_mov_b32 v11, 0x40000000")
        A(f"v_cndmask_b32 v10, v11, v10, vcc")
        A("s_waitcnt lgkmcnt(0)")
        Up, Uq, Vp, Vq = 40, 42, 44, 46
        for (u, vv, z0, z1) in ((Up, Vp, Zp0, Zp1), (Uq, Vq, Zq0, Zq1)):
            A(f"v_pk_add_f32 v[{u}:{u+1}], v[{z0}:{z0+1}], v[{z1}:{z1+1}]")
            A(f"v_pk_add_f32 v[{vv}:{vv+1}], v[{z0}:{z0+1}], v[{z1}:{z1+1}] neg_lo:[0,1] neg_hi:[0,1]")
        out = []
        for pi, (P, Q) in enumerate(((Up, Uq), (Vp, Vq))):
            E, O, T = 48, 50, 52
            Xp, Xq = 54 + 4*pi, 56 + 4*pi
            A(f"v_pk_add_f32 v[{E}:{E+1}], v[{P}:{P+1}], v[{Q}:{Q+1}] neg_hi:[0,1]")
            A(f"v_pk_add_f32 v[{O}:{O+1}], v[{P}:{P+1}], v[{Q}:{Q+1}] neg_lo:[0,1]")
            cmulp(A, T, O, 14, 66)
            A(f"v_pk_add_f32 v[{Xp}:{Xp+1}], v[{E}:{E+1}], v[{T}:{T+1}]")
            A(f"v_pk_add_f32 v[{Xq}:{Xq+1}], v[{E}:{E+1}], v[{T}:{T+1}] neg_lo:[0,1] neg_hi:[1,0]")
            if pi == 1:
                for X in (Xp, Xq): cmulp(A, X, X, 12, 66)
            o = 62 + 2*pi
            A(f"v_cvt_pk_bf16_f32 v{o}, v{Xp}, v{Xp+1}")
            A(f"v_cvt_pk_bf16_f32 v{o+1}, v{Xq}, v{Xq+1}")
        if rnd == 2:
            A(f"v_cmp_eq_u32 vcc, 161, v8")
            for o in range(62, 66): A(f"v_cndmask_b32_e64 v{o}, v{o}, 0, vcc")
        A(f"buffer_store_dwordx2 v[62:63], v10, {srd(R.srdX1)}, 0 offen{SC}")
        A(f"s_mov_b32 s{st+1}, 16384")
        A(f"buffer_store_dwordx2 v[64:65], v10, {srd(R.srdX1)}, s{st+1} offen{SC}")
        vm.issue('st', 2)

sG0, sG1 = 27, 91
def gate(A, vm):
    st = R.st
    GX = 64
    A.c("---- gate ----")
    A(f"s_mul_i32 s{st}, s{R.sw}, 3072")
    A(f"s_add_u32 s{st}, s{st}, {L_XR}")
    A(f"v_lshl_add_u32 v6, v{R.vl}, 2, s{st}")
    A(f"v_lshlrev_b32 v7, 2, v{R.vl}")
    A(f"v_add_u32 v7, {L_GW}, v7")
    for t in range(5):
        A(f"ds_read_b32 v{GX+t}, v6 offset:{256*t}")
        A(f"ds_read_b32 v{GX+5+t}, v6 offset:{1280+256*t}")
        A(f"ds_read_b32 v{GX+10+t}, v7 offset:{256*t}")
    A("s_waitcnt lgkmcnt(0)")
    for r in range(2):
        A(f"v_mov_b32 v{4+r}, 0")
        for t in range(5):
            A(f"v_dot2c_f32_bf16 v{4+r}, v{GX+5*r+t}, v{GX+10+t}")
    for mod in ("quad_perm:[1,0,3,2]", "quad_perm:[2,3,0,1]", "row_half_mirror", "row_mirror"):
        for r in range(2):
            A(f"v_add_f32_dpp v{4+r}, v{4+r}, v{4+r} {mod} row_mask:0xf bank_mask:0xf")
    for r in range(2):
        for k in range(4): A(f"v_readlane_b32 s{16+k}, v{4+r}, {16*k}")
        A(f"v_mov_b32 v{4+r}, s16")
        for k in range(1, 4): A(f"v_add_f32 v{4+r}, s{16+k}, v{4+r}")
    A(f"v_and_b32 v6, 1, v{R.vl}")
    A(f"v_cmp_eq_u32 vcc, 1, v6")
    A(f"v_cndmask_b32 v4, v4, v5, vcc")
    A(f"v_cvt_pk_bf16_f32 v4, v4, v4")
    A(f"v_and_b32 v4, 0xffff0000, v4")
    A(f"v_mul_f32 v4, 0xbfb8aa3b, v4")
    A(f"v_exp_f32 v4, v4")
    A(f"v_add_f32 v4, 1.0, v4")
    A(f"v_rcp_f32 v4, v4")
    A(f"v_cvt_pk_bf16_f32 v4, v4, v4")
    A(f"v_and_b32 v4, 0xffff0000, v4")
    A(f"v_readlane_b32 s{sG0}, v4, 0")
    A(f"v_readlane_b32 s{sG1}, v4, 1")
    A(f"s_lshl_b32 s{st}, s{R.sc}, 2")
    A(f"s_add_u32 s{st}, s{st}, s{R.sw}")
    A(f"s_lshl_b32 s{st}, s{st}, 2")
    A(f"v_lshlrev_b32 v6, 12, v6")
    A(f"v_add_u32 v6, s{st}, v6")
    A(f"v_mov_b32 v7, 0x40000000")
    A(f"v_cmp_gt_u32 vcc, 2, v{R.vl}")
    A(f"v_cndmask_b32 v6, v7, v6, vcc")
    A(f"buffer_store_dword v4, v6, {srd(R.srdG)}, 0 offen{SC}")
    vm.issue('st')

def wprep(A, vm):
    st = R.st
    A.c("---- filter prep ----")
    A(f"v_and_b32 v4, 3, v0")
    A(f"v_bfe_u32 v5, v0, 2, 1")
    A(f"v_lshrrev_b32 v6, 3, v0")
    A(f"v_lshl_add_u32 v7, v4, 3, v5")
    A(f"v_mul_u32_u24 v7, 192, v7")
    A(f"v_lshl_add_u32 v7, v6, 1, v7")
    A(f"v_add_u32 v7, {L_WS}, v7")
    A(f"s_lshr_b32 s{st}, s{R.sc}, 6")
    A(f"v_add_u32 v8, s{st}, v5")
    A(f"v_lshlrev_b32 v8, 1, v8")
    for jj in range(4):
        A(f"v_add_u32 v9, {4*jj}, v8")
        A(f"v_and_b32 v9, 15, v9")
        A(f"v_add_u32 v{10+jj}, v7, v9")
    A(f"s_mul_i32 s{st+1}, s{st}, 81")
    A(f"s_and_b32 s{st+2}, s{R.sc}, 63")
    A(f"s_lshl_b32 s{st+2}, s{st+2}, 6")
    A(f"v_lshlrev_b32 v7, 14, v5")
    A(f"v_lshl_add_u32 v7, v4, 4, v7")
    A(f"v_add_u32 v7, s{st+2}, v7")
    for rnd in range(3):
        for jj in range(4):
            A(f"ds_read_u16 v{16+jj}, v{10+jj} offset:{2*192*jj + 64*rnd}")
            A(f"ds_read_u16 v{20+jj}, v{10+jj} offset:{6144 + 2*192*jj + 64*rnd}")
        A(f"v_add_u32 v8, {32*rnd}, v6")
        A(f"v_add_u32 v9, s{st+1}, v8")
        A(f"v_sub_u32 v14, 320, v9")
        A(f"v_cmp_lt_u32 vcc, 160, v9")
        A(f"v_cndmask_b32 v15, v9, v14, vcc")
        A(f"v_cndmask_b32_e64 v14, 0, 1, vcc")
        A(f"v_and_b32 v24, 1, v15")
        A(f"v_lshl_add_u32 v14, v24, 1, v14")
        A(f"v_lshrrev_b32 v15, 1, v15")
        A(f"v_lshl_add_u32 v15, v15, 3, v14")
        A(f"v_lshl_add_u32 v15, v15, 12, v7")
        A(f"v_mov_b32 v14, 0x40000000")
        A(f"v_cmp_gt_u32 vcc, 81, v8")
        A(f"v_cndmask_b32 v15, v14, v15, vcc")
        A(f"v_cmp_ge_u32 vcc, 320, v9")
        A(f"v_cndmask_b32 v15, v14, v15, vcc")
        A("s_waitcnt lgkmcnt(0)")
        for jj in range(4): A(f"v_lshl_or_b32 v{16+jj}, v{20+jj}, 16, v{16+jj}")
        A(f"buffer_store_dwordx4 v[16:19], v15, {srd(R.srdWF)}, 0 offen{SC}")
        vm.issue('st')
        if rnd == 2:
            A(f"v_add_u32 v15, 4096, v15")
            A(f"v_mov_b32 v14, 0x40000000")
            A(f"v_cmp_eq_u32 vcc, 160, v9")
            A(f"v_cndmask_b32 v15, v14, v15, vcc")
            A(f"buffer_store_dwordx4 v[16:19], v15, {srd(R.srdWF)}, 0 offen{SC}")
            vm.issue('st')

def wtprep(A, vm):
    st = R.st
    A.c("---- Wd fragment prep ----")
    A(f"s_mul_i32 s{st+2}, s{R.sc}, 52429")
    A(f"s_lshr_b32 s{st+2}, s{st+2}, 18")
    A(f"s_mul_i32 s{st+3}, s{st+2}, 5")
    A(f"s_sub_u32 s{st+3}, s{R.sc}, s{st+3}")
    A(f"v_bfe_u32 v4, v{R.vl}, 5, 1")
    A(f"v_lshlrev_b32 v4, 4, v4")
    A(f"v_bfe_u32 v5, v{R.vl}, 4, 1")
    A(f"v_lshl_add_u32 v4, v5, 2, v4")
    A(f"v_bfe_u32 v5, v{R.vl}, 2, 2")
    A(f"v_add_u32 v4, v4, v5")
    A(f"v_lshlrev_b32 v4, 8, v4")
    A(f"v_and_b32 v5, 3, v{R.vl}")
    A(f"v_lshl_add_u32 v4, v5, 3, v4")
    A(f"s_lshl_b32 s{st}, s{R.sw}, 6")
    A(f"s_add_u32 s{st}, s{st}, {L_WD}")
    A(f"v_add_u32 v4, s{st}, v4")
    for k in range(2):
        A(f"ds_read_b64_tr_b16 v[{16+4*k}:{17+4*k}], v4 offset:{32*k}")
        A(f"ds_read_b64_tr_b16 v[{18+4*k}:{19+4*k}], v4 offset:{32*k + 8*256}")
    A(f"s_mul_i32 s{st+2}, s{st+2}, 40")
    A(f"s_lshl_b32 s{st+3}, s{st+3}, 3")
    A(f"s_add_u32 s{st+2}, s{st+2}, s{st+3}")
    A(f"s_lshl_b32 s{st+3}, s{R.sw}, 1")
    A(f"s_add_u32 s{st+2}, s{st+2}, s{st+3}")
    A(f"s_lshl_b32 s{st+2}, s{st+2}, 10")
    A(f"v_lshlrev_b32 v5, 4, v{R.vl}")
    A("s_waitcnt lgkmcnt(0)")
    A(f"buffer_store_dwordx4 v[16:19], v5, {srd(R.srdWT)}, s{st+2} offen{SC}")
    A(f"buffer_store_dwordx4 v[20:23], v5, {srd(R.srdWT)}, s{st+2} offen offset:1024{SC}")
    vm.issue('st', 2)

def ftgen(A, vm, pWS):
    st = R.st
    A.c("---- F table ----")
    A.srd(R.srdFT, pWS, SZ_FT, OFF_FT)
    lab = A.label("noft")
    A(f"s_lshl_b32 s{st}, s{R.sw}, 8")
    A(f"s_add_u32 s{st}, s{st}, s{R.sc}")
    A(f"s_cmp_ge_u32 s{st}, 840")
    A(f"s_cbranch_scc1 {lab}")
    A(f"s_mul_i32 s{st+1}, s{st}, 52429")
    A(f"s_lshr_b32 s{st+1}, s{st+1}, 21")
    A(f"s_mul_i32 s{st+2}, s{st+1}, 40")
    A(f"s_sub_u32 s{st+2}, s{st}, s{st+2}")
    A(f"s_lshl_b32 s{st+2}, s{st+2}, 4")
    A(f"v_and_b32 v4, 15, v{R.vl}")
    A(f"v_add_u32 v4, s{st+2}, v4")
    A(f"s_lshl_b32 s{st+1}, s{st+1}, 2")
    A(f"v_lshrrev_b32 v5, 4, v{R.vl}")
    A(f"v_add_u32 v5, s{st+1}, v5")
    A(f"v_lshlrev_b32 v6, 1, v5")
    A(f"s_mov_b32 s{st+3}, 6710887")
    for c in range(4):
        if c == 0: A(f"v_mov_b32 v7, v6")
        if c == 1: A(f"v_sub_u32 v7, 320, v6")
        if c == 2: A(f"v_add_u32 v7, 1, v6")
        if c == 3: A(f"v_sub_u32 v7, 319, v6")
        A(f"v_mul_u32_u24 v8, v7, v4")
        A(f"v_mul_hi_u32 v9, v8, s{st+3}")
        A(f"v_mul_u32_u24 v9, 640, v9")
        A(f"v_sub_u32 v8, v8, v9")
        A(f"v_cvt_f32_u32 v8, v8")
        A(f"v_mul_f32 v8, {fb(1/640)}, v8")
        A(f"v_cos_f32 v9, v8")
        A(f"v_sin_f32 v10, -v8")
        if c < 2:
            A(f"v_cmp_eq_u32 vcc, 0, v5")
            A(f"v_mul_f32 v11, 0.5, v9")
            A(f"v_cndmask_b32 v9, v9, v11, vcc")
            A(f"v_cndmask_b32_e64 v10, v10, 0, vcc")
        A(f"v_cvt_pk_bf16_f32 v{16+c}, v9, v10")
        A(f"v_cmp_gt_u32 vcc, {81 if c == 0 else 80}, v5")
        A(f"v_cndmask_b32 v{16+c}, 0, v{16+c}, vcc")
    A(f"s_lshl_b32 s{st}, s{st}, 10")
    A(f"v_lshlrev_b32 v5, 4, v{R.vl}")
    A(f"buffer_store_dwordx4 v[16:19], v5, {srd(R.srdFT)}, s{st} offen{SC}")
    A(f"{lab}:")

def a2_loads(A, vm, pWS):
    st = R.st
    A.c("---- A2 loads ----")
    A(f"s_lshl_b32 s{st}, s{R.sc}, 14")
    A(f"s_lshl_b32 s{st+1}, s{R.sw}, 12")
    A(f"s_add_u32 s{st}, s{st}, s{st+1}")
    A(f"s_add_u32 m0, s{st+1}, {L_X}")
    A(f"v_lshlrev_b32 v4, 4, v{R.vl}")
    for j in range(4):
        A(f"buffer_load_dwordx4 v4, {srd(R.srdX1)}, s{st} offen offset:{1024*j} sc1 lds")
    A(f"s_add_u32 m0, s{st+1}, {L_F}")
    A("s_nop 0")
    for j in range(4):
        A(f"buffer_load_dwordx4 v4, {srd(R.srdWF)}, s{st} offen offset:{1024*j} sc1 lds")
    vm.issue('a2in', 8)

def a2(A0, vm, pWS, waited=False, weave=None):
    st = R.st
    A = Asm(A0.prefix + 'a2')
    A.c("---- A2 ----")
    D0r, D0i, D1r, D1i, XA_, WQ = 32, 48, 204, 16, 16, (220, 224)
    A.srd(R.srdZ, pWS, SZ_Z, OFF_Z)
    if not waited: A(f"s_waitcnt vmcnt({vm.wait({'a2in'})})")
    A("s_barrier")
    A(f"v_lshlrev_b32 v4, 11, v{R.vh}")
    A(f"v_lshl_add_u32 v4, v{R.vn}, 4, v4")
    A(f"s_lshl_b32 s{st}, s{R.sw}, 2")
    A(f"s_add_u32 s{st}, s{st}, {L_X}")
    A(f"v_add_u32 v8, s{st}, v4")
    for i in range(4):
        for q in range(4):
            A(f"ds_read_b32 v{XA_+4*i+q}, v8 offset:{(8*i+q)*512}")
    A(f"s_lshl_b32 s{st}, s{R.sw}, 12")
    A(f"s_add_u32 s{st}, s{st}, {L_F}")
    A(f"v_lshlrev_b32 v5, 9, v{R.vh}")
    A(f"v_lshl_add_u32 v5, v{R.vn}, 2, v5")
    A(f"v_add_u32 v5, s{st}, v5")
    def mm(i, data_is_a, src, Dr, Di):
        for (dst, cc) in ((Dr, R.CRe), (Di, R.CIm)):
            c = "0" if i == 0 else f"v[{dst}:{dst+15}]"
            d, k = f"v[{src+4*i}:{src+4*i+3}]", f"a[{cc+4*i}:{cc+4*i+3}]"
            a_, b_ = (d, k) if data_is_a else (k, d)
            A(f"v_mfma_f32_32x32x16_bf16 v[{dst}:{dst+15}], {a_}, {b_}, {c}")
    def tw_quad(i, Dr, Di):
        for h2 in range(2):
            x = 4*i + 2*h2
            t, u = (6, 10) if h2 == 0 else (12, 14)
            A(f"v_pk_mul_f32 v[{t}:{t+1}], v[{Di+x}:{Di+x+1}], v[{R.TWi+x}:{R.TWi+x+1}]")
            A(f"v_pk_mul_f32 v[{u}:{u+1}], v[{Di+x}:{Di+x+1}], v[{R.TWr+x}:{R.TWr+x+1}]")
            A(f"v_pk_fma_f32 v[{t}:{t+1}], v[{Dr+x}:{Dr+x+1}], v[{R.TWr+x}:{R.TWr+x+1}], v[{t}:{t+1}] neg_lo:[0,0,1] neg_hi:[0,0,1]")
            A(f"v_pk_fma_f32 v[{u}:{u+1}], v[{Dr+x}:{Dr+x+1}], v[{R.TWi+x}:{R.TWi+x+1}], v[{u}:{u+1}]")
        for h2 in range(2):
            x = 4*i + 2*h2
            t, u = (6, 10) if h2 == 0 else (12, 14)
            A(f"v_cvt_pk_bf16_f32 v{Dr+x}, v{t}, v{u}")
            A(f"v_cvt_pk_bf16_f32 v{Dr+x+1}, v{t+1}, v{u+1}")
    def wf_read(i):
        for j in range(4): A(f"ds_read_b32 v{WQ[i & 1]+j}, v5 offset:{(8*i+j)*128}")
    def filt_quad(i, Dr, Di):
        w = WQ[i & 1]
        for h2 in range(2):
            x = 4*i + 2*h2
            ww = w + 2*h2
            A(f"v_lshlrev_b32 v6, 16, v{ww}");     A(f"v_lshlrev_b32 v7, 16, v{ww+1}")
            A(f"v_and_b32 v10, 0xffff0000, v{ww}"); A(f"v_and_b32 v11, 0xffff0000, v{ww+1}")
            A(f"v_pk_mul_f32 v[12:13], v[{Di+x}:{Di+x+1}], v[10:11]")
            A(f"v_pk_mul_f32 v[14:15], v[{Di+x}:{Di+x+1}], v[6:7]")
            A(f"v_pk_fma_f32 v[12:13], v[{Dr+x}:{Dr+x+1}], v[6:7], v[12:13] neg_lo:[0,0,1] neg_hi:[0,0,1]")
            A(f"v_pk_fma_f32 v[14:15], v[{Dr+x}:{Dr+x+1}], v[10:11], v[14:15]")
            A(f"v_cvt_pk_bf16_f32 v{Dr+x}, v12, -v14")
            A(f"v_cvt_pk_bf16_f32 v{Dr+x+1}, v13, -v15")
    A("s_waitcnt lgkmcnt(0)")
    for i in range(4): mm(i, True, XA_, D0r, D0i)
    wf_read(0)
    for i in range(4):
        tw_quad(i, D0r, D0i); mm(i, False, D0r, D1r, D1i)
    for i in range(4):
        if i < 3: wf_read(i+1)
        A(f"s_waitcnt lgkmcnt({4 if i < 3 else 0})")
        filt_quad(i, D1r, D1i); mm(i, True, D1r, D0r, D0i)
    for i in range(4):
        tw_quad(i, D0r, D0i); mm(i, False, D0r, D1r, D1i)
    A("s_barrier")
    for x in range(16):
        A(f"v_cvt_pk_bf16_f32 v{D0r+x}, v{D1r+x}, -v{D1i+x}")
        A(f"ds_write_b32 v8, v{D0r+x} offset:{(8*(x>>2)+(x&3))*512}")
    A("s_waitcnt lgkmcnt(0)")
    A("s_barrier")
    A(f"s_lshl_b32 s{st+1}, s{R.sw}, 12")
    A(f"s_add_u32 s{st+2}, s{st+1}, {L_X}")
    A(f"v_lshl_add_u32 v4, v{R.vl}, 4, s{st+2}")
    for j in range(4):
        A(f"ds_read_b128 v[{16+4*j}:{19+4*j}], v4 offset:{1024*j}")
    A(f"s_lshl_b32 s{st}, s{R.sc}, 14")
    A(f"s_add_u32 s{st}, s{st}, s{st+1}")
    A(f"v_lshlrev_b32 v5, 4, v{R.vl}")
    A("s_waitcnt lgkmcnt(0)")
    for j in range(4):
        A(f"buffer_store_dwordx4 v[{16+4*j}:{19+4*j}], v5, {srd(R.srdZ)}, s{st} offen offset:{1024*j}{SC}")
    vm.issue('zst', 4)
    lines = A.l
    if weave:
        first = next(i for i, l in enumerate(lines) if "v_mfma" in l)
        last = max(i for i, l in enumerate(lines) if "ds_write_b32" in l)
        n = len(weave); out = lines[:first]
        span = last - first
        k = 0
        for j in range(first, len(lines)):
            out.append(lines[j])
            while k < n and j < last and (j - first + 1)*n >= (k + 1)*span:
                out += ["  " + x for x in weave[k]]; k += 1
        out += ["  " + x for w in weave[k:] for x in w]
        assert k == n
        lines = out
    A0.l += lines

ZL = 204
L_ZB, ZBW = AUXB, 3104
L_GO = AUXB + 12800
sG0, sG1 = 27, 91
def a3_loads(A, vm, pWS):
    st = R.st
    A.c("---- A3 loads ----")
    A.srd(R.srdZ, pWS, SZ_Z, OFF_Z)
    st = 62
    A(f"v_lshrrev_b32 v4, 2, v0")
    A(f"v_lshrrev_b32 v5, 1, v4")
    A(f"v_lshlrev_b32 v5, 15, v5")
    A(f"v_and_b32 v4, 1, v4")
    A(f"v_lshl_add_u32 v5, v4, 3, v5")
    A(f"v_and_b32 v4, 3, v0")
    A(f"s_lshl_b32 s{st}, s{R.sc}, 2")
    A(f"v_add_u32 v4, s{st}, v4")
    A(f"v_lshl_add_u32 v5, v4, 4, v5")
    for rnd in range(3):
        for pi in range(2):
            A(f"s_mov_b32 s{st}, {(rnd << 20) + pi*16384}")
            A(f"buffer_load_dwordx2 v[{ZL+4*rnd+2*pi}:{ZL+4*rnd+2*pi+1}], v5, {srd(R.srdZ)}, s{st} offen sc1")
    vm.issue('zl', 6)

def a3_elem(A, vm, extra=None):
    st = R.st
    A.c("---- A3 elementwise ----")
    A(f"v_and_b32 v{R.vl}, 63, v0")
    A(f"v_and_b32 v{R.vn}, 31, v{R.vl}")
    A(f"v_lshrrev_b32 v{R.vh}, 5, v{R.vl}")
    A(f"v_and_b32 v4, 3, v0")
    A(f"v_mul_u32_u24 v5, {ZBW}, v4")
    A(f"v_add_u32 v5, {L_ZB}, v5")
    A(f"s_mul_i32 s{st}, s{R.sw}, {ZBW}")
    A(f"s_add_u32 s{st}, s{st}, {L_ZB + 2560}")
    A(f"v_and_b32 v6, 7, v{R.vl}")
    A(f"v_lshl_add_u32 v6, v6, 2, s{st}")
    A(f"v_mov_b32 v7, 0")
    A(f"ds_write_b32 v6, v7")
    A(f"s_lshl_b32 s{st}, s{R.sc}, 2")
    A(f"v_add_u32 v6, s{st}, v4")
    A(f"v_cvt_f32_u32 v7, v6")
    A(f"v_mul_f32 v7, {fb(1/2048)}, v7")
    A(f"v_cos_f32 v12, v7")
    A(f"v_sin_f32 v13, v7")
    A(f"v_lshrrev_b32 v7, 2, v0")
    A(f"s_waitcnt vmcnt({vm.wait({'zl'})})")
    for rnd in range(3):
        z = ZL + 4*rnd
        if extra: extra(rnd)
        A(f"v_add_u32 v8, {64*rnd}, v7")
        A(f"v_cvt_f32_u32 v15, v8")
        A(f"v_mul_f32 v15, {fb(1/640)}, v15")
        A(f"v_sin_f32 v14, -v15")
        A(f"v_cos_f32 v15, v15")
        Up, Uq, Vp, Vq = 32, 34, 36, 38
        for (d, src) in ((Up, z), (Uq, z+1), (Vp, z+2), (Vq, z+3)):
            A(f"v_lshlrev_b32 v{d}, 16, v{src}")
            A(f"v_and_b32 v{d+1}, 0xffff0000, v{src}")
        for X in (Vp, Vq): cmulp(A, X, X, 12, 60)
        A(f"v_sub_u32 v9, 320, v8")
        A(f"v_cmp_eq_u32 vcc, 0, v8")
        A(f"v_lshl_add_u32 v10, v8, 2, v5")
        A(f"v_cndmask_b32_e64 v9, v9, 0, vcc")
        A(f"v_lshl_add_u32 v11, v9, 2, v5")
        Ap0, Aq0, Ap1, Aq1 = 40, 42, 44, 46
        A(f"v_pk_add_f32 v[{Ap0}:{Ap0+1}], v[{Up}:{Up+1}], v[{Vp}:{Vp+1}]")
        A(f"v_pk_add_f32 v[{Aq0}:{Aq0+1}], v[{Uq}:{Uq+1}], v[{Vq}:{Vq+1}]")
        A(f"v_pk_add_f32 v[{Ap1}:{Ap1+1}], v[{Up}:{Up+1}], v[{Vp}:{Vp+1}] neg_lo:[0,1] neg_hi:[0,1]")
        A(f"v_pk_add_f32 v[{Aq1}:{Aq1+1}], v[{Uq}:{Uq+1}], v[{Vq}:{Vq+1}] neg_lo:[0,1] neg_hi:[0,1]")
        if rnd == 0:
            for X in (Ap0, Aq0, Ap1, Aq1): A(f"v_cndmask_b32_e64 v{X+1}, v{X+1}, 0, vcc")
        if rnd == 2:
            A(f"v_mov_b32 v9, {L_ZB + 4*ZBW}")
            A(f"v_cmp_lt_u32 vcc, 160, v8")
            A(f"v_cndmask_b32 v10, v10, v9, vcc")
            A(f"v_cndmask_b32 v11, v11, v9, vcc")
        for r, (P, Q) in enumerate(((Ap0, Aq0), (Ap1, Aq1))):
            E, O, T = 48, 50, 52
            A(f"v_pk_add_f32 v[{E}:{E+1}], v[{P}:{P+1}], v[{Q}:{Q+1}] neg_hi:[0,1]")
            A(f"v_pk_add_f32 v[{O}:{O+1}], v[{P}:{P+1}], v[{Q}:{Q+1}] neg_lo:[0,1]")
            cmulp(A, T, O, 14, 60)
            A(f"v_pk_add_f32 v[54:55], v[{E}:{E+1}], v[{T}:{T+1}] neg_hi:[1,1]")
            A(f"v_pk_add_f32 v[56:57], v[{E}:{E+1}], v[{T}:{T+1}] neg_lo:[0,1] neg_hi:[0,1]")
            A(f"v_cvt_pk_bf16_f32 v58, v54, v55")
            A(f"v_cvt_pk_bf16_f32 v59, v56, v57")
            off = f" offset:{1280*r}" if r else ""
            A(f"ds_write_b32 v10, v58{off}")
            A(f"ds_write_b32 v11, v59{off}")
    A("s_waitcnt lgkmcnt(0)")

def a3_core(A, vm, pWS, mid=None):
    st = R.st
    A.c("---- A3 core ----")
    A(f"v_bfe_u32 v4, v{R.vl}, 4, 1")
    A(f"v_mul_u32_u24 v4, 1280, v4")
    A(f"v_and_b32 v5, 15, v{R.vl}")
    A(f"v_lshl_add_u32 v4, v5, 2, v4")
    A(f"v_mul_u32_u24 v5, 160, v{R.vh}")
    A(f"s_mul_i32 s{st}, s{R.sw}, {ZBW}")
    A(f"s_add_u32 s{st}, s{st}, {L_ZB}")
    A(f"v_add3_u32 v4, v4, v5, s{st}")
    for i in range(4):
        for q in range(4):
            A(f"ds_read_b32 v{XA+4*i+q}, v4 offset:{320*i+40*q}")
    A(f"v_mov_b32 v6, {fb(0.5/(2048*640))}")
    A(f"v_mul_f32 v8, s{sG0}, v6")
    A(f"v_mul_f32 v10, s{sG1}, v6")
    A(f"v_sub_f32 v9, 0, v8")
    A(f"v_sub_f32 v11, 0, v10")
    A("s_waitcnt lgkmcnt(0)")
    fft320_core(A, tmp=(12, 14), mid=mid)
    A(f"s_mul_i32 s{st}, s{R.sw}, 2560")
    A(f"s_add_u32 s{st}, s{st}, {L_GO}")
    A(f"v_lshl_add_u32 v4, v{R.vh}, 6, v{R.vn}")
    A(f"v_lshl_add_u32 v4, v4, 2, s{st}")
    for i in range(3):
        if i == 2: A("s_mov_b64 exec, 0xffffffff")
        for r in range(2):
            sc = 8 + 2*r
            for jj in range(2):
                d = D2[r] + 4*i + 2*jj
                A(f"v_pk_mul_f32 v[{d}:{d+1}], v[{d}:{d+1}], v[{sc}:{sc+1}]")
                A(f"v_cvt_pk_bf16_f32 v{d}, v{d}, v{d+1}")
                A(f"ds_write_b32 v4, v{d} offset:{r*1280 + (128*i + 32*jj)*4}")
    A("s_mov_b64 exec, -1")
    A.srd(R.srdZ, pWS, SZ_GA, OFF_GA)
    A(f"v_lshl_add_u32 v4, v{R.vl}, 4, s{st}")
    A("s_waitcnt lgkmcnt(0)")
    for j in range(3): A(f"ds_read_b128 v[{16+4*j}:{19+4*j}], v4 offset:{1024*j}")
    A(f"s_lshl_b32 s{st}, s{R.sc}, 2")
    A(f"s_add_u32 s{st}, s{st}, s{R.sw}")
    A(f"s_mul_i32 s{st}, s{st}, 1280")
    A(f"v_lshlrev_b32 v4, 4, v{R.vl}")
    A(f"v_add_u32 v5, 1024, v4")
    A(f"v_add_u32 v6, {1024*1280 - 256}, v4")
    A(f"v_cmp_gt_u32 vcc, 16, v{R.vl}")
    A(f"v_cndmask_b32 v5, v6, v5, vcc")
    A(f"v_add_u32 v7, {1024*1280 + 48*16}, v4")
    A(f"v_mov_b32 v6, 0x40000000")
    A(f"v_cmp_gt_u32 vcc, 32, v{R.vl}")
    A(f"v_cndmask_b32 v7, v6, v7, vcc")
    A("s_waitcnt lgkmcnt(0)")
    A(f"buffer_store_dwordx4 v[16:19], v4, {srd(R.srdZ)}, s{st} offen{SC}")
    A(f"buffer_store_dwordx4 v[20:23], v5, {srd(R.srdZ)}, s{st} offen{SC}")
    A(f"buffer_store_dwordx4 v[24:27], v7, {srd(R.srdZ)}, s{st} offen{SC}")
    vm.issue('gast', 3)
```

```python
from asmlib import *
from layout import *

NST = 20
XSLOT, WBASE, WSLOT = 16384, 49152, 12288
NXS, NWS = 3, 6
ACC = 64

class R:
    vxo = (230, 231, 232, 233)
    vwo = (234, 235, 236)
    vx = (237, 238, 239, 240)
    vw, vw2 = 241, 242
    vt = 56
    opA = (16, 36)
    opB = (28, 48)
    srdX, srdW, srdH = 8, 12, 16
    sw = 20
    skx, skw = 21, 22
    smx, smw = 23, 24
    smt, sft = 25, 26
    st = 28

def setup(A, s_b, pBX, pWG, pWU, pWS):
    st, t = R.st, R.vt
    A.c("---- F1 setup ----")
    A(f"s_and_b32 s{st}, s{s_b}, 1")
    A(f"s_lshl_b32 s{st}, s{st}, 3")
    A(f"s_lshr_b32 s{st+1}, s{s_b}, 3")
    A(f"s_and_b32 s{st+1}, s{st+1}, 7")
    A(f"s_add_u32 s{R.smt}, s{st}, s{st+1}")
    A(f"s_lshr_b32 s{st+1}, s{s_b}, 1")
    A(f"s_and_b32 s{st+1}, s{st+1}, 3")
    A(f"s_lshl_b32 s{st+1}, s{st+1}, 2")
    A(f"s_lshr_b32 s{st+2}, s{s_b}, 6")
    A(f"s_add_u32 s{R.sft}, s{st+1}, s{st+2}")
    A.srd(R.srdX, pBX, 2048*640*2)
    A(f"s_cmp_lt_u32 s{R.sw}, 2")
    A(f"s_cselect_b32 s{R.srdW}, s{pWG}, s{pWU}")
    A(f"s_cselect_b32 s{R.srdW+1}, s{pWG+1}, s{pWU+1}")
    A(f"s_and_b32 s{R.srdW+1}, s{R.srdW+1}, 0xffff")
    A(f"s_mov_b32 s{R.srdW+2}, {hex(640*1536*2)}")
    A(f"s_mov_b32 s{R.srdW+3}, 0x20000")
    A(f"v_and_b32 v{t}, 63, v0")
    A(f"s_lshl_b32 s{st}, s{R.smt}, 7")
    A(f"s_lshl_b32 s{st+1}, s{R.sw}, 5")
    A(f"s_add_u32 s{st}, s{st}, s{st+1}")
    A(f"s_mul_i32 s{st}, s{st}, 1280")
    A(f"v_lshrrev_b32 v{t+1}, 3, v{t}")
    A(f"v_mul_u32_u24 v{t+1}, 1280, v{t+1}")
    A(f"v_add_u32 v{t+1}, s{st}, v{t+1}")
    A(f"v_lshrrev_b32 v{t+2}, 4, v{t}")
    A(f"v_xor_b32 v{t+2}, v{t+2}, v{t}")
    A(f"v_and_b32 v{t+2}, 7, v{t+2}")
    A(f"v_lshl_add_u32 v{R.vxo[0]}, v{t+2}, 4, v{t+1}")
    A(f"v_xor_b32 v{t+2}, 4, v{t+2}")
    A(f"v_lshl_add_u32 v{R.vxo[1]}, v{t+2}, 4, v{t+1}")
    A(f"v_add_u32 v{R.vxo[1]}, {8*1280-1024}, v{R.vxo[1]}")
    A(f"v_add_u32 v{R.vxo[2]}, {16*1280-2048}, v{R.vxo[0]}")
    A(f"v_add_u32 v{R.vxo[3]}, {16*1280-2048}, v{R.vxo[1]}")
    A(f"s_and_b32 s{st}, s{R.sw}, 1")
    A(f"s_mul_i32 s{st}, s{st}, {16*3072}")
    A(f"s_mul_i32 s{st+1}, s{R.sft}, 192")
    A(f"s_add_u32 s{st}, s{st}, s{st+1}")
    A(f"s_lshr_b32 s{st+1}, s{R.sw}, 1")
    A(f"s_mul_i32 s{st+1}, s{st+1}, 10")
    for j in range(3):
        A(f"v_add_u32 v{t+1}, {64*j}, v{t}")
        A(f"v_mul_u32_u24 v{t+2}, 5462, v{t+1}")
        A(f"v_lshrrev_b32 v{t+2}, 16, v{t+2}")
        A(f"v_mul_u32_u24 v{t+3}, 12, v{t+2}")
        A(f"v_sub_u32 v{t+3}, v{t+1}, v{t+3}")
        A(f"v_add_u32 v{t+3}, s{st+1}, v{t+3}")
        A(f"v_subrev_u32 v{t+4}, 12, v{t+3}")
        A(f"v_min_u32 v{t+3}, v{t+3}, v{t+4}")
        A(f"v_mul_u32_u24 v{t+2}, 3072, v{t+2}")
        A(f"v_lshl_add_u32 v{t+2}, v{t+3}, 4, v{t+2}")
        A(f"v_add_u32 v{t+2}, s{st}, v{t+2}")
        A(f"v_subrev_u32 v{R.vwo[j]}, {1024*j}, v{t+2}")
    A(f"s_lshl_b32 s{R.smx}, s{R.sw}, 12")
    A(f"s_mul_i32 s{R.smw}, s{R.sw}, 3072")
    A(f"s_add_u32 s{R.smw}, s{R.smw}, {WBASE}")

def setup_reads(A):
    st, t = R.st, R.vt
    A(f"v_and_b32 v{t}, 63, v0")
    A(f"s_lshr_b32 s{st}, s{R.sw}, 1")
    A(f"s_lshl_b32 s{st}, s{st}, 13")
    A(f"v_and_b32 v{t+1}, 31, v{t}")
    A(f"v_lshrrev_b32 v{t+2}, 5, v{t}")
    A(f"v_bfe_u32 v{t+3}, v{t+1}, 1, 3")
    A(f"v_xor_b32 v{t+3}, v{t+3}, v{t+2}")
    A(f"v_lshlrev_b32 v{t+4}, 7, v{t+1}")
    A(f"v_add_u32 v{t+4}, s{st}, v{t+4}")
    A(f"v_lshl_add_u32 v{R.vx[0]}, v{t+3}, 4, v{t+4}")
    for k in range(1, 4): A(f"v_xor_b32 v{R.vx[k]}, {32*k}, v{R.vx[0]}")
    A(f"s_and_b32 s{st}, s{R.sw}, 1")
    A(f"s_mul_i32 s{st+1}, s{st}, 96")
    A(f"s_add_u32 s{st+1}, s{st+1}, {WBASE}")
    A(f"v_lshrrev_b32 v{t+1}, 5, v{t}")
    A(f"v_lshlrev_b32 v{t+1}, 3, v{t+1}")
    A(f"v_bfe_u32 v{t+2}, v{t}, 2, 2")
    A(f"v_add_u32 v{t+1}, v{t+1}, v{t+2}")
    A(f"v_mul_u32_u24 v{t+1}, 192, v{t+1}")
    A(f"v_bfe_u32 v{t+2}, v{t}, 4, 1")
    A(f"v_lshl_add_u32 v{t+1}, v{t+2}, 4, v{t+1}")
    A(f"v_and_b32 v{t+2}, 1, v{t}")
    A(f"v_lshl_add_u32 v{t+1}, v{t+2}, 3, v{t+1}")
    A(f"v_bfe_u32 v{t+2}, v{t}, 1, 1")
    A(f"v_mul_u32_u24 v{t+3}, {6144+32}, v{t+2}")
    A(f"v_add_u32 v{t+1}, v{t+1}, v{t+3}")
    A(f"v_add_u32 v{R.vw}, s{st+1}, v{t+1}")
    A(f"s_mul_i32 s{st+1}, s{st}, 192")
    A(f"v_mul_u32_u24 v{t+3}, s{st+1}, v{t+2}")
    A(f"v_sub_u32 v{R.vw2}, v{R.vw}, v{t+3}")

def dma_x(c):
    L = [[f"s_add_u32 m0, s{R.smx}, {(c % NXS)*XSLOT}", f"s_mov_b32 s{R.skx}, {c*128}",
          f"buffer_load_dwordx4 v{R.vxo[0]}, {srd(R.srdX)}, s{R.skx} offen lds"]]
    for j in range(1, 4):
        L.append([f"buffer_load_dwordx4 v{R.vxo[j]}, {srd(R.srdX)}, s{R.skx} offen offset:{1024*j} lds"])
    return L
def dma_w(t):
    L = [[f"s_add_u32 m0, s{R.smw}, {(t % NWS)*WSLOT}", f"s_mov_b32 s{R.skw}, {t*32*3072}",
          f"buffer_load_dwordx4 v{R.vwo[0]}, {srd(R.srdW)}, s{R.skw} offen lds"]]
    for j in range(1, 3):
        L.append([f"buffer_load_dwordx4 v{R.vwo[j]}, {srd(R.srdW)}, s{R.skw} offen offset:{1024*j} lds"])
    return L

def reads(t, kk, setn):
    a0, b0 = R.opA[setn], R.opB[setn]
    vx = R.vx[2*(t & 1) + kk]
    xs = ((t >> 1) % NXS)*XSLOT
    wsl = (t % NWS)*WSLOT
    def rdA(tt):
        vw = R.vw2 if tt == 2 else R.vw
        return [f"ds_read_b64_tr_b16 v[{a0+4*tt+2*rd}:{a0+4*tt+2*rd+1}], v{vw} offset:{wsl + kk*3072 + rd*768 + tt*32}" for rd in range(2)]
    def rdB(tt):
        return [f"ds_read_b128 v[{b0+4*tt}:{b0+4*tt+3}], v{vx} offset:{xs + 4096*tt}"]
    return rdA(0) + rdB(0) + rdB(1) + rdA(1) + rdA(2)

def mfmas(setn, first=False):
    a0, b0 = R.opA[setn], R.opB[setn]
    L = []
    for tt in range(3):
        for t in range(2):
            d = ACC + (tt*2 + t)*16
            L.append(f"v_mfma_f32_32x32x16_bf16 v[{d}:{d+15}], v[{a0+4*tt}:{a0+4*tt+3}], v[{b0+4*t}:{b0+4*t+3}], " + ("0" if first else f"v[{d}:{d+15}]"))
    return L

def issue(A, vm, kind, i):
    for g in (dma_x(i) if kind == "x" else dma_w(i)): A(g)
    vm.issue(f"{kind}{i}", 4 if kind == "x" else 3)

def l2_prefetch(A, vm, pWG, pWU):
    A.c("---- L2 prefetch of Wg / Wu ----")
    A(f"s_cmp_lt_u32 s{R.sw}, 2")
    A(f"s_cselect_b32 s4, s{pWG}, s{pWU}")
    A(f"s_cselect_b32 s5, s{pWG+1}, s{pWU+1}")
    A(f"s_and_b32 s5, s5, 0xffff")
    A(f"s_mov_b32 s6, {hex(640*1536*2)}")
    A(f"s_mov_b32 s7, 0x20000")
    A(f"s_lshr_b32 s28, s98, 3")
    A(f"s_lshl_b32 s28, s28, 1")
    A(f"s_and_b32 s29, s{R.sw}, 1")
    A(f"s_add_u32 s28, s28, s29")
    A(f"s_mul_i32 s28, s28, 60")
    A(f"v_and_b32 v56, 63, v0")
    A(f"v_min_u32 v56, 59, v56")
    A(f"v_add_u32 v56, s28, v56")
    A(f"v_mul_u32_u24 v57, 10923, v56")
    A(f"v_lshrrev_b32 v57, 16, v57")
    A(f"v_mul_u32_u24 v58, 6, v57")
    A(f"v_sub_u32 v58, v56, v58")
    A(f"v_mul_u32_u24 v57, 3072, v57")
    A(f"v_lshl_add_u32 v57, v58, 7, v57")
    A(f"s_lshr_b32 s28, s98, 1")
    A(f"s_and_b32 s28, s28, 3")
    A(f"s_mul_i32 s28, s28, 768")
    A(f"buffer_load_dword v229, v57, s[4:7], s28 offen")
    vm.issue('pf', 1)

def main(A, vm, issued, fill=None, after_barrier=None, pause=None, late=None, extra_need=None, before_barrier=None):
    fill = list(fill or []); after_barrier = after_barrier or {}; pause = pause or {}; extra_need = extra_need or {}; before_barrier = before_barrier or {}
    A(f"s_waitcnt vmcnt({vm.wait({'x0','w0'} | set(extra_need.get(-1, ())))})")
    A("s_barrier")
    if -1 in after_barrier: after_barrier[-1]()
    A(reads(0, 0, 0))
    rdpos = ((0, 3), (1, 3), (2, 2))
    def split(rd):
        g = [[] for _ in range(6)]
        k = 0
        for gi, n in rdpos:
            g[gi] += rd[k:k+n]; k += n
        return g
    def addfill(g, n=2, start=0):
        for gi in range(start, 6):
            k = n if len(g[gi]) < 2 else max(0, n - 1)
            for _ in range(k):
                if fill: g[gi].append(fill.pop(0))
    queue = []
    def enqueue(kind, i):
        atoms = dma_x(i) if kind == "x" else dma_w(i)
        queue.extend((ins, f"{kind}{i}") for ins in atoms)
        issued.add((kind, i))
    for k in (late or []): enqueue(*k)
    def drain(g, slots):
        for gi in slots:
            if queue:
                ins, tag = queue.pop(0); g[gi] += ins; vm.issue(tag)
    need_reads0 = False
    for t in range(NST):
        A.c(f"F1 stage {t}")
        if need_reads0:
            A(reads(t, 0, 0)); need_reads0 = False
        g = split(reads(t, 1, 1))
        many = len(queue) > 4
        drain(g, (0, 1, 2, 3, 4, 5) if many else (1, 3, 5))
        addfill(g)
        A("s_waitcnt lgkmcnt(0)")
        A(place(mfmas(0, first=(t == 0)), g))
        if t + 1 < NST:
            need = {f'w{t+1}'}
            if (t + 1) % 2 == 0: need.add(f'x{(t+1)//2}')
            need |= set(extra_need.get(t, ()))
            while any(tag in need for _, tag in queue):
                ins, tag = queue.pop(0); A(ins); vm.issue(tag)
            A(f"s_waitcnt vmcnt({vm.wait(need)}) lgkmcnt(0)")
            if t in before_barrier: before_barrier[t]()
            A("s_barrier")
            if t in after_barrier: after_barrier[t]()
            paused = t in pause
            g = [[] for _ in range(6)] if paused else split(reads(t+1, 0, 0))
            if (t & 1) and (t >> 1) + NXS < NST//2 and ("x", (t >> 1) + NXS) not in issued: enqueue("x", (t >> 1) + NXS)
            if t + NWS < NST and ("w", t + NWS) not in issued: enqueue("w", t + NWS)
            many = len(queue) > 4
            drain(g, (0, 1, 2, 3, 4, 5) if many else (1, 3, 5))
            addfill(g)
            A(place(mfmas(1), g))
            if paused:
                pause[t](); need_reads0 = True
        else:
            A("s_waitcnt lgkmcnt(0)")
            A(mfmas(1))
    assert not queue and not fill, (len(queue), len(fill))

def epilogue(A, vm, pWS, sc=" sc1", between=None):
    st, t = R.st, R.vt
    A.c("---- F1 epilogue ----")
    A.srd(R.srdH, pWS, SZ_H, OFF_H)
    A(f"s_lshr_b32 s{st}, s{R.sw}, 1")
    A(f"s_lshl_b32 s{st}, s{st}, 1")
    A(f"s_lshl_b32 s{st+1}, s{R.smt}, 2")
    A(f"s_add_u32 s{st}, s{st}, s{st+1}")
    A(f"s_mul_i32 s{st}, s{st}, 96")
    A(f"s_mul_i32 s{st+1}, s{R.sft}, 6")
    A(f"s_add_u32 s{st}, s{st}, s{st+1}")
    A(f"s_and_b32 s{st+1}, s{R.sw}, 1")
    A(f"s_mul_i32 s{st+1}, s{st+1}, 3")
    A(f"s_add_u32 s{st}, s{st}, s{st+1}")
    A(f"s_lshl_b32 s{st}, s{st}, 10")
    A(f"v_and_b32 v{t}, 63, v0")
    A(f"v_lshlrev_b32 v{t}, 4, v{t}")
    A(f"s_mov_b32 s{st+2}, 0xbfb8aa3b")
    A(f"s_mov_b32 s{st+3}, 0xbfb8aa3b")
    A.nop(4)
    E, O = 16, 32
    for tt in range(3):
        for tc in range(2):
            d = ACC + (tt*2 + tc)*16
            o = O + 4*((tt*2+tc) & 1)
            gi = [0, 2, 8, 10]
            for k, g in enumerate(gi): A(f"v_pk_mul_f32 v[{E+2*k}:{E+2*k+1}], v[{d+g}:{d+g+1}], s[{st+2}:{st+3}]")
            for k in range(8): A(f"v_exp_f32 v{E+k}, v{E+k}")
            for k, g in enumerate(gi): A(f"v_pk_mul_f32 v[{d+g+4}:{d+g+5}], v[{d+g}:{d+g+1}], v[{d+g+4}:{d+g+5}]")
            for k in range(4): A(f"v_pk_add_f32 v[{E+2*k}:{E+2*k+1}], v[{E+2*k}:{E+2*k+1}], 1.0 op_sel_hi:[1,0]")
            for k in range(8): A(f"v_rcp_f32 v{E+k}, v{E+k}")
            A("s_nop 0")
            for k, g in enumerate(gi): A(f"v_pk_mul_f32 v[{d+g+4}:{d+g+5}], v[{d+g+4}:{d+g+5}], v[{E+2*k}:{E+2*k+1}]")
            for k, g in enumerate(gi): A(f"v_cvt_pk_bf16_f32 v{o+k}, v{d+g+4}, v{d+g+5}")
            off = (tc*96 + tt)*1024
            A(f"s_add_u32 s{st+1}, s{st}, {off}")
            A(f"buffer_store_dwordx4 v[{o}:{o+3}], v{t}, {srd(R.srdH)}, s{st+1} offen{sc}")
            vm.issue('hst')
            if between: between(tt*2 + tc)
```

```python
from asmlib import *
from layout import *

class R:
    acc = 64
    vh = 230
    vl16 = 243
    vout = 231
    vog = 232
    vt = 233
    GAV = 244
    srdWT, srdH, srdGA, srdO, srdG = 64, 12, 8, 36, 40
    sw, sT, sdt = 20, 21, 22
    sWoff, sHoff = 61, 24
    st = 28
NRING = 8
def hslot(i):
    k = i % NRING
    return 144 + 16*k if k < 3 else (16 + 16*(k-3) if k < 6 else 192 + 16*(k-6))

def setup_w(A, s_b, pWS):
    A.srd(R.srdWT, pWS, SZ_WT, OFF_WT)
    A(f"s_lshr_b32 s60, s{s_b}, 2")
    A(f"s_and_b32 s60, s60, 1")
    A(f"s_lshl_b32 s60, s60, 2")
    A(f"s_lshr_b32 s62, s{s_b}, 6")
    A(f"s_add_u32 s60, s60, s62")
    A(f"s_mul_i32 s62, s{R.sw}, 96")
    A(f"s_add_u32 s60, s60, s62")
    A(f"s_mul_i32 s{R.sWoff}, s60, 5120")
    A(f"v_and_b32 v{R.vl16}, 63, v0")
    A(f"v_lshlrev_b32 v{R.vl16}, 4, v{R.vl16}")

def setup(A, s_b, pWS, pOUT):
    st, t = R.st, R.vt
    A.c("---- F2 setup ----")
    A(f"s_and_b32 s{st}, s{s_b}, 3")
    A(f"s_lshl_b32 s{st}, s{st}, 3")
    A(f"s_lshr_b32 s{st+1}, s{s_b}, 3")
    A(f"s_and_b32 s{st+1}, s{st+1}, 7")
    A(f"s_add_u32 s{R.sT}, s{st}, s{st+1}")
    A(f"s_lshr_b32 s{st}, s{s_b}, 2")
    A(f"s_and_b32 s{st}, s{st}, 1")
    A(f"s_lshl_b32 s{st}, s{st}, 2")
    A(f"s_lshr_b32 s{st+1}, s{s_b}, 6")
    A(f"s_add_u32 s{R.sdt}, s{st}, s{st+1}")

def w_loads(steps):
    L = []
    so = 60
    for i in steps:
        for mt in range(5):
            d = 20*i + 4*mt
            pre = []
            if mt == 0: pre = [f"s_add_u32 s{so}, s{R.sWoff}, {i*8*5120}"]
            if mt == 4: pre = [f"s_add_u32 s{so}, s{so}, 4096"]
            off = f" offset:{1024*mt}" if 0 < mt < 4 else ""
            L.append(pre + [f"buffer_load_dwordx4 a[{d}:{d+3}], v{R.vl16}, {srd(R.srdWT)}, s{so} offen{off} sc1"])
    return L

def setup2(A, pWS, pOUT):
    st, t = R.st, R.vt
    A.srd(R.srdH, pWS, SZ_H, OFF_H)
    A.srd(R.srdGA, pWS, SZ_GA, OFF_GA)
    A.srd(R.srdO, pOUT, 2048*640*2)
    A.srd(R.srdG, pWS, 8192, OFF_G)
    A(f"v_and_b32 v{t}, 63, v0")
    A(f"v_and_b32 v{t+1}, 15, v{t}")
    A(f"v_lshrrev_b32 v{t+2}, 4, v{t}")
    A(f"v_lshl_add_u32 v{t+3}, v{t+2}, 5, v{t+1}")
    A(f"v_lshlrev_b32 v{R.vh}, 4, v{t+3}")
    A(f"s_mul_i32 s{st}, s{R.sT}, {2*96*1024}")
    A(f"s_mul_i32 s{st+1}, s{R.sw}, {12*2048}")
    A(f"s_add_u32 s{R.sHoff}, s{st}, s{st+1}")
    for lam in range(4):
        A(f"s_add_u32 s{st}, s{R.sw}, {lam}")
        A(f"s_and_b32 s{st}, s{st}, 3")
        A(f"s_lshr_b32 s{st+1}, s{st}, 1")
        A(f"s_mul_i32 s{st+1}, s{st+1}, {96*1024}")
        A(f"s_and_b32 s{st}, s{st}, 1")
        A(f"s_lshl_b32 s{st}, s{st}, 8")
        A(f"s_add_u32 s{st}, s{st}, s{st+1}")
        A(f"s_add_u32 s{44+lam}, s{st}, s{R.sHoff}")
    A(f"s_lshl_b32 s{st}, s{R.sT}, 6")
    A(f"s_lshl_b32 s{st+1}, s{R.sw}, 4")
    A(f"s_add_u32 s{st}, s{st}, s{st+1}")
    A(f"v_add_u32 v{t+3}, s{st}, v{t+1}")
    A(f"v_lshlrev_b32 v{R.vog}, 2, v{t+3}")
    A(f"v_mul_u32_u24 v{t+3}, 1280, v{t+3}")
    A(f"s_mul_i32 s{st}, s{R.sdt}, 160")
    A(f"v_lshl_add_u32 v{t+3}, v{t+2}, 3, v{t+3}")
    A(f"v_add_u32 v{R.vout}, s{st}, v{t+3}")

def h_loads(i):
    so = R.st + 2
    L = []
    for lam in range(4):
        d = hslot(i) + 4*lam
        L.append([f"s_add_u32 s{so}, s{44+lam}, {i*2048}", f"buffer_load_dwordx4 v[{d}:{d+3}], v{R.vh}, {srd(R.srdH)}, s{so} offen sc1"])
    return L

def mfmas(i):
    L = []
    for mt in range(5):
        for lam in range(4):
            d = R.acc + lam*20 + mt*4
            b = hslot(i) + 4*lam
            L.append(f"v_mfma_f32_16x16x32_bf16 v[{d}:{d+3}], a[{20*i+4*mt}:{20*i+4*mt+3}], v[{b}:{b+3}], " + ("0" if i == 0 else f"v[{d}:{d+3}]"))
    return L

AHEAD = 4
def main(A, vm, hooks=None, pre_issued=0):
    for i in range(pre_issued, AHEAD):
        A(h_loads(i)); vm.issue(f"h{i}", 4)
    for i in range(12):
        A.c(f"F2 step {i}")
        if hooks and i in hooks: hooks[i]()
        A(f"s_waitcnt vmcnt({vm.wait({f'h{i}', f'W{i}'})})")
        m = mfmas(i)
        n = i + AHEAD
        g = [[] for _ in m]
        if n < 12 and n >= pre_issued:
            for k, ins in enumerate(h_loads(n)): g[1 + 5*k] = ins
            vm.issue(f"h{n}", 4)
        A(place(m, g))

def final_loads(A, vm):
    A(f"buffer_load_dword v{R.vog}, v{R.vog}, {srd(R.srdG)}, 0 offen sc1")
    for mt in range(5):
        A(f"buffer_load_dwordx2 v[{R.GAV+2*mt}:{R.GAV+2*mt+1}], v{R.vout}, {srd(R.srdGA)}, 0 offen offset:{32*mt} sc1")
    vm.issue("ga", 6)

def epilogue(A, vm, lds_base=0):
    st, t = R.st, R.vt
    A.c("---- F2 reduction and output ----")
    for lam in range(1, 4):
        A(f"s_add_u32 s{st}, s{R.sw}, {lam}")
        A(f"s_and_b32 s{st}, s{st}, 3")
        A(f"s_mul_i32 s{st}, s{st}, {3*5120}")
        A(f"s_add_u32 s{st}, s{st}, {lds_base + (lam-1)*5120}")
        A(f"v_add_u32 v{t+lam-1}, s{st}, v{R.vl16}")
    for lam in range(1, 4):
        for mt in range(5):
            d = R.acc + lam*20 + mt*4
            A(f"ds_write_b128 v{t+lam-1}, v[{d}:{d+3}] offset:{mt*1024}")
    A(f"s_mul_i32 s{st}, s{R.sw}, {3*5120}")
    A(f"s_add_u32 s{st}, s{st}, {lds_base}")
    A(f"v_add_u32 v{t+3}, s{st}, v{R.vl16}")
    A("s_waitcnt lgkmcnt(0)")
    A("s_barrier")
    P = R.acc + 20
    for k in range(3):
        for mt in range(5):
            A(f"ds_read_b128 v[{P+20*k+4*mt}:{P+20*k+4*mt+3}], v{t+3} offset:{k*5120 + mt*1024}")
    A(f"s_waitcnt vmcnt({vm.wait({'ga'})})")
    A(f"v_sub_f32 v{R.vog}, 1.0, v{R.vog}")
    A(f"v_cvt_pk_bf16_f32 v{R.vog}, v{R.vog}, v{R.vog}")
    A(f"v_and_b32 v{R.vog}, 0xffff0000, v{R.vog}")
    for mt in range(5):
        A(f"s_waitcnt lgkmcnt({min(15, 14-mt if False else 0)})") if mt == 0 else None
        x = R.acc + 4*mt
        for k in range(3):
            y = P + 20*k + 4*mt
            A(f"v_pk_add_f32 v[{x}:{x+1}], v[{x}:{x+1}], v[{y}:{y+1}]")
            A(f"v_pk_add_f32 v[{x+2}:{x+3}], v[{x+2}:{x+3}], v[{y+2}:{y+3}]")
        g = R.GAV + 2*mt
        A(f"v_lshlrev_b32 v16, 16, v{g}")
        A(f"v_and_b32 v17, 0xffff0000, v{g}")
        A(f"v_lshlrev_b32 v18, 16, v{g+1}")
        A(f"v_and_b32 v19, 0xffff0000, v{g+1}")
        for j in range(4): A(f"v_fmac_f32 v{16+j}, v{R.vog}, v{x+j}")
        o = 20 + 2*mt
        A(f"v_cvt_pk_bf16_f32 v{o}, v16, v17")
        A(f"v_cvt_pk_bf16_f32 v{o+1}, v18, v19")
        A(f"buffer_store_dwordx2 v[{o}:{o+1}], v{R.vout}, {srd(R.srdO)}, 0 offen offset:{32*mt}")
```

```python
import sys, os
sys.path.insert(0, os.path.dirname(os.path.abspath(__file__)))
from asmlib import *
from layout import *
import f1, f2, g2, aux, hazard

NAME = "gated_mix__spectral_gfnet__swiglu_ffn__prompt_kernel"
pAX, pWR, pWI, pBX, pWG, pWU, pWD, pGW, pOUT, pDBG, pWS = 68, 70, 72, 74, 76, 78, 80, 82, 84, 86, 88
sNONCE, srdF, sSPIN, sTMP, sID = 90, 92, 96, 97, 98
srdD = 0
SPIN_MAX = 20000
import os
if os.environ.get('NOSPIN'): SPIN_MAX = 0

class Gen:
    def __init__(self, stamps=False, order="AB", gemm_first=True, exp="", ta2=13, tf1=1, d2=2, nwa2=5, early3=True, npre=3, dep2at=3):
        self.dep2at = dep2at
        self.early3 = early3; self.npre = npre
        self.exp = exp; self.ta2 = ta2; self.tf1 = tf1; self.d2 = d2; self.nwa2 = nwa2
        self.A = Asm("K"); self.stamps = stamps; self.ns = 0; self.names = {}
        self.gemm_first = gemm_first
        self.dbg_sel = {"gemm": [(0,"start",1),(1,"issued",0),(2,"consts",0),(3,"a1",0),(4,"preps",0),(5,"flag1",0),(6,"dep1",0),(7,"a2 start",0),(8,"a2 end",0),
                                 (9,"f1 loop end",0),(10,"f1 epi",0),(11,"a3 elem",0),(12,"a3 core",0),(13,"dep3",0),(14,"f2 loop end",0),(15,"end",0)]}
        g2.ORDER = order; g2.STG = g2.stages()
    def stamp(self, name=None):
        if not self.stamps: return
        if self.stamps == "min" and name not in ("start", "end"): return
        A = self.A
        A("s_memrealtime s[100:101]")
        A("s_waitcnt lgkmcnt(0)")
        A(f"v_writelane_b32 v255, s100, {self.ns}")
        self.names.setdefault(self.role, []).append((self.ns, name))
        self.ns += 1
    def dump_stamps(self):
        if not self.stamps: return
        A = self.A
        if self.stamps == "dbg":
            sel = self.dbg_sel[self.role]
            A("s_waitcnt vmcnt(0) lgkmcnt(0)")
            A.srd(8, pDBG, 256)
            lab = A.label("nd")
            A("s_cmp_lg_u32 s20, 0")
            A(f"s_cbranch_scc1 {lab}")
            names = {nm: idx for idx, nm in self.names[self.role]}
            A("v_mov_b32 v2, 0")
            A("v_mov_b32 v3, 0x40000000")
            for slot, nm, inv in sel:
                A(f"v_readlane_b32 s30, v255, {names[nm]}")
                if inv: A("s_not_b32 s30, s30")
                A(f"s_mov_b32 s31, {4*slot}")
                A(f"v_writelane_b32 v2, s30, {slot}")
                A(f"v_writelane_b32 v3, s31, {slot}")
            A("buffer_atomic_umax v2, v3, s[8:11], 0 offen")
            A(f"{lab}:")
            return
        A("s_waitcnt vmcnt(0) lgkmcnt(0)")
        A.srd(8, pDBG, 1 << 20)
        A("v_lshlrev_b32 v1, 2, v0")
        A(f"s_lshl_b32 s30, s{sID}, 10")
        A("s_add_u32 s30, s30, 4096")
        A("buffer_store_dword v255, v1, s[8:11], s30 offen")
    def flag_store(self, off, s_idx):
        A = self.A
        lab = A.label("sig")
        A(f"s_cmp_lg_u32 s20, 0")
        A(f"s_cbranch_scc1 {lab}")
        A(f"s_lshl_b32 s{sTMP}, s{s_idx}, 2")
        A(f"s_add_u32 s{sTMP}, s{sTMP}, {off}")
        A(f"v_mov_b32 v249, s{sNONCE}")
        A(f"v_mov_b32 v254, 0")
        A("s_mov_b64 exec, 1")
        A(f"buffer_store_dword v249, v254, {srd(srdF)}, s{sTMP} offen sc1")
        A("s_mov_b64 exec, -1")
        A(f"{lab}:")
    def flag_store_all(self, vm, off, s_idx):
        A = self.A
        A(f"s_lshl_b32 s{sTMP}, s{s_idx}, 2")
        A(f"s_add_u32 s{sTMP}, s{sTMP}, {off}")
        A(f"s_cmp_eq_u32 s20, 0")
        A(f"s_cselect_b32 s{sTMP}, s{sTMP}, 0x40000000")
        A(f"v_mov_b32 v249, s{sNONCE}")
        A(f"v_mov_b32 v254, 0")
        A("s_mov_b64 exec, 1")
        A(f"buffer_store_dword v249, v254, {srd(srdF)}, s{sTMP} offen sc1")
        A("s_mov_b64 exec, -1")
        vm.issue("flag")
    def arrive(self, vm, phase):
        A = self.A
        off = (OFF_FLAG1, OFF_FLAG2)[phase]
        A(f"s_lshl_b32 s{sTMP}, s{sID}, 2")
        A(f"s_add_u32 s{sTMP}, s{sTMP}, {off}")
        A(f"s_cmp_eq_u32 s20, 0")
        A(f"s_cselect_b32 s{sTMP}, s{sTMP}, 0x40000000")
        A(f"v_mov_b32 v249, s{sNONCE}")
        A(f"v_and_b32 v254, 7, v0")
        A(f"v_lshlrev_b32 v254, 10, v254")
        A("s_mov_b64 exec, 0xff")
        A(f"buffer_store_dword v249, v254, {srd(srdF)}, s{sTMP} offen sc1")
        A("s_mov_b64 exec, -1")
        vm.issue("flag")
    def cpoll_issue(self, vm, phase):
        A = self.A
        off = (OFF_FLAG1, OFF_FLAG2)[phase]
        A(f"v_and_b32 v254, 63, v0")
        A(f"v_lshlrev_b32 v254, 4, v254")
        A(f"s_and_b32 s{sTMP}, s{sID}, 7")
        A(f"s_lshl_b32 s{sTMP}, s{sTMP}, 10")
        A(f"s_add_u32 s{sTMP}, s{sTMP}, {off}")
        A(f"s_cmp_eq_u32 s20, 0")
        A(f"s_cselect_b32 s{sTMP}, s{sTMP}, 0x40000000")
        A(f"buffer_load_dwordx4 v[250:253], v254, {srd(srdF)}, s{sTMP} offen sc1")
        vm.issue("cpoll")
    def cpoll_check(self, vm, phase):
        A = self.A
        off = (OFF_FLAG1, OFF_FLAG2)[phase]
        lo, ok = A.label("w"), A.label("wok")
        A(f"s_waitcnt vmcnt({vm.wait({'cpoll'})})")
        A(f"s_cmp_lg_u32 s20, 0")
        A(f"s_cbranch_scc1 {ok}")
        A(f"s_mov_b32 s{sSPIN}, 0")
        A(f"{lo}:")
        for k in range(4): A(f"v_xor_b32 v{250+k}, s{sNONCE}, v{250+k}")
        A(f"v_or3_b32 v250, v250, v251, v252")
        A(f"v_or_b32 v250, v250, v253")
        A(f"v_cmp_ne_u32 vcc, 0, v250")
        A(f"s_cbranch_vccz {ok}")
        A(f"s_add_u32 s{sSPIN}, s{sSPIN}, 1")
        A(f"s_cmp_gt_u32 s{sSPIN}, {SPIN_MAX}")
        A(f"s_cbranch_scc1 {ok}")
        A("s_sleep 2")
        A(f"s_and_b32 s{sTMP}, s{sID}, 7")
        A(f"s_lshl_b32 s{sTMP}, s{sTMP}, 10")
        A(f"s_add_u32 s{sTMP}, s{sTMP}, {off}")
        A(f"buffer_load_dwordx4 v[250:253], v254, {srd(srdF)}, s{sTMP} offen sc1")
        A("s_waitcnt vmcnt(0)")
        A(f"s_branch {lo}")
        A(f"{ok}:")
    def flag_store_wave(self, vm, off, s_idx):
        A = self.A
        A(f"s_lshl_b32 s{sTMP}, s{s_idx}, 2")
        A(f"s_add_u32 s{sTMP}, s{sTMP}, {off}")
        A(f"v_mov_b32 v249, s{sNONCE}")
        A(f"v_mov_b32 v254, 0")
        A("s_mov_b64 exec, 1")
        A(f"buffer_store_dword v249, v254, {srd(srdF)}, s{sTMP} offen sc1")
        A("s_mov_b64 exec, -1")
        vm.issue("flag")
    def signal(self, vm, off, s_idx):
        A = self.A
        A("s_waitcnt vmcnt(0)")
        A("s_barrier")
        vm.q = []
        self.flag_store_all(vm, off, s_idx)
    def poll_issue(self, vm, off):
        A = self.A
        A(f"v_and_b32 v254, 63, v0")
        A(f"v_lshlrev_b32 v254, 4, v254")
        A(f"s_mov_b32 s{sTMP}, {off}")
        A(f"buffer_load_dwordx4 v[250:253], v254, {srd(srdF)}, s{sTMP} offen sc1")
        vm.issue("poll")
    def poll_check(self, vm, off):
        A = self.A
        lo, ok = A.label("w"), A.label("wok")
        A(f"s_waitcnt vmcnt({vm.wait({'poll'})})")
        A(f"s_mov_b32 s{sSPIN}, 0")
        A(f"{lo}:")
        for k in range(4): A(f"v_xor_b32 v{250+k}, s{sNONCE}, v{250+k}")
        A(f"v_or3_b32 v250, v250, v251, v252")
        A(f"v_or_b32 v250, v250, v253")
        A(f"v_cmp_ne_u32 vcc, 0, v250")
        A(f"s_cbranch_vccz {ok}")
        A(f"s_add_u32 s{sSPIN}, s{sSPIN}, 1")
        A(f"s_cmp_gt_u32 s{sSPIN}, {SPIN_MAX}")
        A(f"s_cbranch_scc1 {ok}")
        A("s_sleep 4")
        A(f"s_mov_b32 s{sTMP}, {off}")
        A(f"buffer_load_dwordx4 v[250:253], v254, {srd(srdF)}, s{sTMP} offen sc1")
        A("s_waitcnt vmcnt(0)")
        A(f"s_branch {lo}")
        A(f"{ok}:")
    def wait_all(self, vm, off):
        self.poll_issue(vm, off); self.poll_check(vm, off)
    def wait_idx(self, vm, off, v_idx_code):
        A = self.A
        lo, ok = A.label("w"), A.label("wok")
        v_idx_code()
        A(f"s_mov_b32 s{sSPIN}, 0")
        A(f"s_mov_b32 s{sTMP}, {off}")
        A(f"{lo}:")
        A(f"buffer_load_dword v250, v254, {srd(srdF)}, s{sTMP} offen sc1")
        A("s_waitcnt vmcnt(0)")
        A(f"v_cmp_ne_u32 vcc, s{sNONCE}, v250")
        A(f"s_cbranch_vccz {ok}")
        A(f"s_add_u32 s{sSPIN}, s{sSPIN}, 1")
        A(f"s_cmp_gt_u32 s{sSPIN}, {SPIN_MAX}")
        A(f"s_cbranch_scc1 {ok}")
        A("s_sleep 4")
        A(f"s_branch {lo}")
        A(f"{ok}:")
        vm.q = []

    def body(self):
        A = self.A; self.role = "gemm"; self.ns = 0
        vm = VM()
        TA2 = self.ta2
        self.stamp("start")
        X = self.exp.split("+")
        aux.setup(A, pAX, pWR, pWI, pWD, pGW, pWS)
        issued = set()
        def iss(*ks):
            for k in ks:
                f1.issue(A, vm, *k); issued.add(k)
        def mid():
            if "nopf" not in X and "pflate" not in X: f1.l2_prefetch(A, vm, pWG, pWU)
        aux.issue_loads(A, vm, mid, wd=("wdlate" not in X))
        self.stamp("issued")
        aux.consts_a1(A)
        f1.setup(A, sID, pAX, pWG, pWU, pWS)
        aux.setup_out(A, pWS)
        f1.setup_reads(A)
        A(aux.consts_a2_fill())
        self.stamp("consts")
        aux.a1_core(A, vm)
        self.stamp("core")
        if "wdlate" in X: aux.issue_wd(A, vm)
        if "pflate" in X: f1.l2_prefetch(A, vm, pWG, pWU)
        A("s_waitcnt lgkmcnt(0)")
        A(f"s_add_u32 s{sNONCE}, s{sNONCE}, 1")
        A(f"s_waitcnt vmcnt({vm.wait({'ws', 'gw'} | (set() if 'wdlate' in X else {'wd'}))})")
        aux.a1_elem(A, vm)
        self.stamp("a1")
        if "nop1" not in self.exp and "nopreps" not in self.exp:
            iss(("x", 0), ("w", 0))
            aux.wprep(A, vm)
            iss(("w", 1))
            if "wdlate" in X:
                A(f"s_waitcnt vmcnt({vm.wait({'wd'})})")
                A("s_barrier")
            aux.wtprep(A, vm)
            self.stamp("wprep")
            iss(("x", 1), ("w", 2))
            aux.gate(A, vm)

        if 'nop1' in self.exp: A('s_waitcnt vmcnt(0)')
        self.stamp("preps")
        after, pause, extra, before = {}, {}, {}, {}
        extra[self.tf1] = {'st'}
        after[self.tf1] = lambda: (self.arrive(vm, 0), self.stamp("flag1"))
        def a2_issue():
            A(f"s_or_b32 s{sTMP}, s{sID}, s20")
            A(f"s_cmp_eq_u32 s{sTMP}, 0")
            A(f"s_cselect_b32 s{sTMP}, 0, 0x40000000")
            A(f"v_mov_b32 v249, s{sNONCE}")
            A(f"v_mov_b32 v254, 0")
            A("s_mov_b64 exec, 1")
            A(f"buffer_store_dword v249, v254, {srd(srdF)}, s{sTMP} offen sc1")
            A("s_mov_b64 exec, -1")
            vm.issue("flag")
            self.stamp("dep1")
            aux.a2_loads(A, vm, pWS)
            f2.setup_w(A, sID, pWS)
        NW_A2 = self.nwa2
        watoms = f2.w_loads(range(NW_A2))
        def a2_run():
            lab, lab2 = A.label("noa2"), A.label("a2d")
            self.stamp("a2 start")
            A(f"s_waitcnt vmcnt({vm.wait({'a2in'})})")
            A(f"s_cmp_ge_u32 s{sID}, {0 if 'noa2' in self.exp else 162}")
            A(f"s_cbranch_scc1 {lab}")
            v2 = VM()
            aux.a2(A, v2, pWS, waited=True, weave=list(watoms))
            A(f"s_branch {lab2}")
            A(f"{lab}:")
            for ins in watoms: A(ins)
            A(f"{lab2}:")
            for k in range(len(watoms)): vm.issue(f"W{k//5}")
            vm.issue('zst', 4)
            self.stamp("a2 end")
        after[TA2-3] = lambda: self.cpoll_issue(vm, 0)
        before[TA2-1] = lambda: self.cpoll_check(vm, 0)
        after[TA2-1] = a2_issue
        pause[TA2] = a2_run
        extra[TA2+self.d2] = {'zst'}
        after[TA2+self.d2] = lambda: self.arrive(vm, 1)
        if self.dep2at < 0:
            after[16] = lambda: self.cpoll_issue(vm, 1)
            before[18] = lambda: self.cpoll_check(vm, 1)
        if "fine" in self.exp:
            for t in range(0, 19, 2):
                def mk(t, old):
                    def f():
                        if old: old()
                        self.stamp(f"bar{t}")
                    return f
                after[t] = mk(t, after.get(t))
        fl = []
        f1.main(A, vm, issued, fill=fl, after_barrier=after, pause=pause, late=[("w", 3), ("x", 2), ("w", 4), ("w", 5)], extra_need=extra, before_barrier=before)
        self.stamp("f1 loop end")
        f2.setup(A, sID, pWS, pOUT)
        if self.dep2at < 0:
            self.stamp("dep2")
            aux.a3_loads(A, vm, pWS)
        atoms = [(ins, f"W{self.nwa2 + k//5}") for k, ins in enumerate(f2.w_loads(range(self.nwa2, 10)))]
        def put(n):
            for _ in range(n):
                if atoms:
                    ins, tag = atoms.pop(0); A(ins); vm.issue(tag)
        def btw(k):
            put(2)
            if self.dep2at >= 0:
                if k == max(0, self.dep2at - 2): self.cpoll_issue(vm, 1)
                if k == self.dep2at:
                    self.cpoll_check(vm, 1)
                    A("s_barrier")
                    self.stamp("dep2")
                    aux.a3_loads(A, vm, pWS)
        f1.epilogue(A, vm, pWS, between=btw)
        self.stamp("f1 epi")
        A(f"s_lshl_b32 s{sTMP}, s{f1.R.smt}, 1")
        A(f"s_lshr_b32 s99, s20, 1")
        A(f"s_add_u32 s{sTMP}, s{sTMP}, s99")
        A(f"s_lshl_b32 s{sTMP}, s{sTMP}, 5")
        A(f"s_lshl_b32 s99, s{f1.R.sft}, 1")
        A(f"s_add_u32 s{sTMP}, s{sTMP}, s99")
        A(f"s_and_b32 s99, s20, 1")
        A(f"s_add_u32 s99, s{sTMP}, s99")
        def extra(rnd):
            put(4)
            if rnd == 1:
                A(f"s_waitcnt vmcnt({vm.wait({'hst'})})")
                self.flag_store_wave(vm, OFF_FLAG3, 99)
        aux.a3_elem(A, vm, extra)
        put(100)
        A("s_barrier")
        self.stamp("a3 elem")
        f2.setup2(A, pWS, pOUT)
        def poll3_issue():
            A(f"v_and_b32 v254, 31, v0")
            A(f"s_lshl_b32 s{sTMP}, s{f2.R.sT}, 5")
            A(f"v_add_u32 v254, s{sTMP}, v254")
            A(f"v_lshlrev_b32 v254, 2, v254")
            A(f"s_mov_b32 s{sTMP}, {OFF_FLAG3}")
            A(f"buffer_load_dword v250, v254, {srd(srdF)}, s{sTMP} offen sc1")
            vm.issue("poll3")
        def check_one(tag, off):
            lo, ok = A.label("w"), A.label("wok")
            A(f"s_waitcnt vmcnt({vm.wait({tag})})")
            A(f"s_mov_b32 s{sSPIN}, 0")
            A(f"{lo}:")
            A(f"v_cmp_ne_u32 vcc, s{sNONCE}, v250")
            A(f"s_cbranch_vccz {ok}")
            A(f"s_add_u32 s{sSPIN}, s{sSPIN}, 1")
            A(f"s_cmp_gt_u32 s{sSPIN}, {SPIN_MAX}")
            A(f"s_cbranch_scc1 {ok}")
            A("s_sleep 4")
            A(f"s_mov_b32 s{sTMP}, {off}")
            A(f"buffer_load_dword v250, v254, {srd(srdF)}, s{sTMP} offen sc1")
            A("s_waitcnt vmcnt(0)")
            A(f"s_branch {lo}")
            A(f"{ok}:")
        npre = self.npre
        if self.early3:
            poll3_issue()
            def mid():
                check_one("poll3", OFF_FLAG3)
                for i in range(npre):
                    A(f2.h_loads(i)); vm.issue(f"h{i}", 4)
            aux.a3_core(A, vm, pWS, mid=mid)
        else:
            aux.a3_core(A, vm, pWS, mid=poll3_issue)
        for k, ins in enumerate(f2.w_loads((10, 11))):
            A(ins); vm.issue(f"W{10 + k//5}")
        self.stamp("a3 core")
        if not self.early3:
            check_one("poll3", OFF_FLAG3)
            npre = 0
        self.stamp("dep3")
        def flag4():
            A(f"s_waitcnt vmcnt({vm.wait({'gast'})})")
            A(f"s_lshl_b32 s99, s{sID}, 2")
            A(f"s_add_u32 s99, s99, s20")
            self.flag_store_wave(vm, OFF_FLAG4, 99)
        def code4():
            A(f"v_and_b32 v254, 63, v0")
            A(f"s_and_b32 s{sTMP}, s{f2.R.sT}, 15")
            A(f"s_lshl_b32 s{sTMP}, s{sTMP}, 6")
            A(f"v_add_u32 v254, s{sTMP}, v254")
            A(f"v_lshlrev_b32 v254, 2, v254")
        def h_issue4():
            code4()
            A(f"s_mov_b32 s{sTMP}, {OFF_FLAG4}")
            A(f"buffer_load_dword v250, v254, {srd(srdF)}, s{sTMP} offen sc1")
            vm.issue("poll4")
        def h_check4():
            check_one("poll4", OFF_FLAG4)
            f2.final_loads(A, vm)
        f2.main(A, vm, hooks={1: flag4, 6: h_issue4, 10: h_check4}, pre_issued=npre)
        self.stamp("f2 loop end")
        f2.epilogue(A, vm)
        self.stamp("end")
        self.dump_stamps()
        A("s_endpgm")

    def build(self):
        A = self.A
        A(f"s_cmp_ge_u32 s2, 256")
        A(f"s_cbranch_scc1 K_exit")
        A(f"s_load_dwordx16 s[68:83], s[0:1], 0")
        A(f"s_load_dwordx4 s[84:87], s[0:1], 64")
        A(f"s_load_dwordx2 s[88:89], s[0:1], 80")
        if self.stamps: A("v_mov_b32 v255, 0")
        A(f"s_mov_b32 s{sID}, s2")
        A(f"v_lshrrev_b32 v4, 6, v0")
        A("s_nop 0")
        A(f"v_readfirstlane_b32 s20, v4")
        A("s_waitcnt lgkmcnt(0)")
        A(f"s_load_dword s{sNONCE}, s[{pWS}:{pWS+1}], {OFF_EPOCH}")
        A.srd(srdF, pWS, SZ_FLAGS)
        self.body()
        A("K_exit:")
        A("s_endpgm")
        lines, n = hazard.fix(A.l)
        return lines

HEADER = open(os.path.join(os.path.dirname(os.path.abspath(__file__)), "header.txt")).read()
def full_source(**kw):
    g = Gen(**kw)
    body = "\n".join(g.build())
    src = HEADER + f"""; @launch grid=(256,1,1) block=(256,1,1) lds=163840
.amdgcn_target "amdgcn-amd-amdhsa--gfx950"
.text
.globl {NAME}
.p2align 8
.type {NAME},@function
{NAME}:
{body}
.section .rodata,"a"
.p2align 6
.amdhsa_kernel {NAME}
  .amdhsa_next_free_vgpr 512
  .amdhsa_next_free_sgpr 102
  .amdhsa_accum_offset 256
  .amdhsa_group_segment_fixed_size 0
  .amdhsa_kernarg_size 88
  .amdhsa_user_sgpr_count 2
  .amdhsa_user_sgpr_kernarg_segment_ptr 1
  .amdhsa_system_sgpr_workgroup_id_x 1
.end_amdhsa_kernel
"""
    return src, g
if __name__ == "__main__":
    kw = {}
    for o in sys.argv[2:]:
        k, v_ = o.split("="); kw[k] = eval(v_)
    src, g = full_source(**kw)
    out = sys.argv[1] if len(sys.argv) > 1 else "gated_mix__spectral_gfnet__swiglu_ffn__prompt.s"
    open(out, "w").write(src)
    print("wrote", out, len(src), "bytes")
```

```python
from asmlib import *
from layout import *
import struct
def fb(x): return hex(struct.unpack('<I', struct.pack('<f', x))[0])

import os
SC = os.environ.get('AUXSC', ' sc1')
class R:
    vl = 1
    vn = 2
    vh = 3
    TWr, TWi = 160, 176
    t3r, t3i = 192, 198
    T2r, T2i = 0, 16
    CRe, CIm, F10 = 216, 232, 248
    sw = 20
    sc = 98
    srdAX, srdX1, srdWR, srdWI, srdWF, srdWD, srdWT, srdGW, srdG, srdFT, srdZ = 32, 36, 40, 44, 48, 52, 56, 60, 64, 4, 4
    st = 28
    st2 = 99

AUXB   = 122880
L_XR   = AUXB
L_GW   = AUXB + 12288
L_WS   = AUXB + 14336
L_WD   = AUXB + 32768
L_Z    = 49152 + 4*12288
ZROW, ZWAVE = 2560, 5184
L_X    = AUXB
L_F    = AUXB + 16384

def setup(A, pAX, pWR, pWI, pWD, pGW, pWS):
    A.c("---- aux setup ----")
    A(f"v_and_b32 v{R.vl}, 63, v0")
    A(f"v_and_b32 v{R.vn}, 31, v{R.vl}")
    A(f"v_lshrrev_b32 v{R.vh}, 5, v{R.vl}")
    A.srd(R.srdAX, pAX, 2048*640*2)

def setup_out(A, pWS):
    A.srd(R.srdX1, pWS, SZ_X1, OFF_X1)
    A.srd(R.srdWF, pWS, SZ_WF, OFF_WF)
    A.srd(R.srdWT, pWS, SZ_WT, OFF_WT)
    A.srd(R.srdG, pWS, 8192, OFF_G)

XA = 16
def issue_wd(A, vm, pWD=80):
    st = R.st
    A.c("Wd tile DMA (workgroups >= 240 fall off the end of the buffer and get zeros)")
    A.srd(R.srdWD, pWD, 1536*640*2)
    A(f"s_mul_i32 s{st+2}, s{R.sc}, 52429")
    A(f"s_lshr_b32 s{st+2}, s{st+2}, 18")
    A(f"s_mul_i32 s{st+3}, s{st+2}, 5")
    A(f"s_sub_u32 s{st+3}, s{R.sc}, s{st+3}")
    A(f"s_lshl_b32 s{st}, s{st+2}, 5")
    A(f"s_lshl_b32 s{st+1}, s{R.sw}, 3")
    A(f"s_add_u32 s{st}, s{st}, s{st+1}")
    A(f"s_mul_i32 s{st}, s{st}, 1280")
    A(f"s_lshl_b32 s{st+1}, s{st+3}, 8")
    A(f"s_add_u32 s{st}, s{st}, s{st+1}")
    A(f"v_lshrrev_b32 v5, 4, v{R.vl}")
    A(f"v_mul_u32_u24 v5, 1280, v5")
    A(f"v_and_b32 v6, 15, v{R.vl}")
    A(f"v_lshl_add_u32 v5, v6, 4, v5")
    A(f"s_lshl_b32 s{st+1}, s{R.sw}, 11")
    A(f"s_add_u32 m0, s{st+1}, {L_WD}")
    A(f"v_add_u32 v6, {4*1280-1024}, v5")
    A(f"buffer_load_dwordx4 v5, {srd(R.srdWD)}, s{st} offen lds")
    A(f"buffer_load_dwordx4 v6, {srd(R.srdWD)}, s{st} offen offset:1024 lds")
    vm.issue('wd', 2)

def issue_loads(A, vm, mid=None, pWR=70, pWI=72, pWD=80, pGW=82, wd=True):
    st = R.st
    A.c("x rows: chunk i = 64j + l ; i<80 row s', i<160 row s'+1024, else out of range (zeros)")
    A(f"s_lshl_b32 s{st}, s{R.sc}, 2")
    A(f"s_add_u32 s{st}, s{st}, s{R.sw}")
    A(f"s_mul_i32 s{st}, s{st}, 1280")
    A(f"s_mul_i32 s{st+1}, s{R.sw}, 3072")
    A(f"s_add_u32 m0, s{st+1}, {L_XR}")
    A(f"v_lshlrev_b32 v4, 4, v{R.vl}")
    A(f"buffer_load_dwordx4 v4, {srd(R.srdAX)}, s{st} offen lds")
    A(f"v_add_u32 v5, {1024-1024}, v4")
    A(f"v_add_u32 v6, {1024*1280 - 256 - 1024}, v4")
    A(f"v_cmp_gt_u32 vcc, 16, v{R.vl}")
    A(f"v_cndmask_b32 v5, v6, v5, vcc")
    A(f"buffer_load_dwordx4 v5, {srd(R.srdAX)}, s{st} offen offset:1024 lds")
    A(f"v_add_u32 v5, {1024*1280 + 48*16 - 2048}, v4")
    A(f"v_mov_b32 v6, 0x40000000")
    A(f"v_cmp_gt_u32 vcc, 32, v{R.vl}")
    A(f"v_cndmask_b32 v5, v6, v5, vcc")
    A(f"buffer_load_dwordx4 v5, {srd(R.srdAX)}, s{st} offen offset:2048 lds")
    vm.issue('xr', 3)
    A.srd(R.srdWR, pWR, 2048*321*2)
    A.srd(R.srdWI, pWI, 2048*321*2)
    A.c("filter staging: rho=b&63 (rows 32 rho + e), cq=b>>6 ; wave: array = w>>1, rows 16(w&1) + i/12, chunk i%12")
    A(f"s_and_b32 s{st}, s{R.sc}, 63")
    A(f"s_lshl_b32 s{st}, s{st}, 5")
    A(f"s_and_b32 s{st+1}, s{R.sw}, 1")
    A(f"s_lshl_b32 s{st+1}, s{st+1}, 4")
    A(f"s_add_u32 s{st}, s{st}, s{st+1}")
    A(f"s_lshr_b32 s{st+1}, s{R.sc}, 6")
    A(f"s_mul_i32 s{st+1}, s{st+1}, 162")
    A(f"s_mul_i32 s{st+2}, s{R.sw}, 3072")
    A(f"s_add_u32 m0, s{st+2}, {L_WS}")
    A(f"s_cmp_lt_u32 s{R.sw}, 2")
    A(f"s_cselect_b32 s4, s{R.srdWR}, s{R.srdWI}")
    A(f"s_cselect_b32 s5, s{R.srdWR+1}, s{R.srdWI+1}")
    A(f"s_mov_b32 s6, {hex(2048*321*2)}")
    A(f"s_mov_b32 s7, 0x20000")
    for j in range(3):
        A(f"v_add_u32 v5, {64*j}, v{R.vl}")
        A(f"v_mul_u32_u24 v6, 5462, v5")
        A(f"v_lshrrev_b32 v6, 16, v6")
        A(f"v_mul_u32_u24 v7, 12, v6")
        A(f"v_sub_u32 v7, v5, v7")
        A(f"v_add_u32 v6, s{st}, v6")
        A(f"v_mul_u32_u24 v6, 642, v6")
        A(f"v_add_u32 v6, s{st+1}, v6")
        A(f"v_and_b32 v6, -16, v6")
        A(f"v_lshl_add_u32 v6, v7, 4, v6")
        if j: A(f"v_subrev_u32 v6, {1024*j}, v6")
        A(f"buffer_load_dwordx4 v6, s[4:7], 0 offen" + (f" offset:{1024*j}" if j else "") + " lds")
    vm.issue('ws', 3)
    if wd: issue_wd(A, vm, pWD)
    A.c("gate_w: 80 chunks ; wave w loads chunks 64w.. (out of range -> zeros)")
    A.srd(R.srdGW, pGW, 640*2)
    A(f"s_lshl_b32 s{st}, s{R.sw}, 10")
    A(f"s_min_u32 s{st}, s{st}, 1024")
    A(f"s_add_u32 m0, s{st}, {L_GW}")
    A(f"buffer_load_dwordx4 v4, {srd(R.srdGW)}, s{st} offen lds")
    vm.issue('gw', 1)
    if mid: mid()

def consts_a1(A):
    A.c("constants: F32 interleaved, tw320, F10")
    n, h = R.vn, R.vh
    A(f"v_cvt_f32_u32 v4, v{n}")
    A(f"v_cvt_f32_u32 v5, v{h}")
    A(f"v_mul_f32 v6, {fb(1/32)}, v4")
    A(f"v_mul_f32 v7, 4.0, v5")
    A(f"v_mul_f32 v8, v7, v6")
    for i in range(4):
        for q in range(4):
            A(f"v_fmamk_f32 v9, v6, {fb(float(8*i+q))}, v8")
            A(f"v_fract_f32 v9, v9")
            A(f"v_sin_f32 v10, v9")
            A(f"v_cos_f32 v11, v9")
            A("s_nop 0")
            A(f"v_cvt_pk_bf16_f32 v12, v11, v10")
            A(f"v_cvt_pk_bf16_f32 v13, -v10, v11")
            A(f"v_accvgpr_write_b32 a{R.CRe+4*i+q}, v12")
            A(f"v_accvgpr_write_b32 a{R.CIm+4*i+q}, v13")
    A(f"v_mul_f32 v6, {fb(1/320)}, v4")
    A(f"v_mul_f32 v8, v7, v6")
    for idx, (e, j) in enumerate([(0,0),(0,1),(0,2),(0,3),(1,0),(1,1)]):
        A(f"v_fmamk_f32 v9, v6, {fb(float(8*e+j))}, v8")
        A(f"v_cos_f32 v{R.t3r+idx}, v9")
        A(f"v_sin_f32 v{R.t3i+idx}, -v9")
    A(f"v_lshrrev_b32 v9, 3, v{n}")
    A(f"v_lshlrev_b32 v9, 2, v9")
    A(f"v_bfe_u32 v10, v{n}, 2, 1")
    A(f"v_lshl_add_u32 v9, v10, 1, v9")
    A(f"v_bfe_u32 v10, v{n}, 1, 1")
    A(f"v_add_u32 v9, v9, v10")
    A(f"v_cmp_gt_u32 s[{R.st}:{R.st+1}], 10, v9")
    A(f"v_cvt_f32_u32 v9, v9")
    A(f"v_mul_f32 v9, {fb(0.1)}, v9")
    A(f"v_and_b32 v10, 1, v{n}")
    A(f"v_cvt_f32_u32 v10, v10")
    A(f"v_mul_f32 v10, 0.25, v10" if False else f"v_mul_f32 v10, {fb(0.25)}, v10")
    A(f"v_fma_f32 v10, v7, v9, v10")
    A(f"v_cmp_eq_u32 vcc, 0, v{h}")
    A(f"s_and_b64 s[{R.st+2}:{R.st+3}], vcc, s[{R.st}:{R.st+1}]")
    for e in range(2):
        for q in range(4):
            d = R.F10 + 4*e + q
            if e == 1 and q >= 2:
                A(f"v_accvgpr_write_b32 a{d}, 0"); continue
            A(f"v_fmamk_f32 v11, v9, {fb(float(8*e+q))}, v10")
            A(f"v_fract_f32 v11, v11")
            A(f"v_cos_f32 v12, v11")
            A(f"v_sin_f32 v13, v11")
            A("s_nop 0")
            A(f"v_cvt_pk_bf16_f32 v12, v12, v13")
            m = R.st if e == 0 else R.st+2
            A(f"v_cndmask_b32 v12, 0, v12, s[{m}:{m+1}]")
            A(f"v_accvgpr_write_b32 a{d}, v12")

def consts_a2_fill():
    n, h = R.vn, R.vh
    t0, t1, t2, t3, t4, t5 = 243, 244, 245, 246, 247, 248
    L = [f"v_cvt_f32_u32 v{t0}, v{n}", f"v_cvt_f32_u32 v{t1}, v{h}", f"v_mul_f32 v{t1}, 4.0, v{t1}",
         f"v_mul_f32 v{t2}, {fb(1/1024)}, v{t0}", f"v_mul_f32 v{t3}, v{t1}, v{t2}"]
    for i in range(4):
        for j in range(4):
            L += [f"v_fmamk_f32 v{t4}, v{t2}, {fb(float(8*i+j))}, v{t3}",
                  f"v_cos_f32 v{R.TWr+4*i+j}, v{t4}", f"v_sin_f32 v{R.TWi+4*i+j}, -v{t4}"]
    return L

def cmulp(A, d, a, c, t, conj_out=False):
    A(f"v_pk_mul_f32 v[{t}:{t+1}], v[{a}:{a+1}], v[{c}:{c+1}] op_sel:[1,1] op_sel_hi:[1,0]")
    A(f"v_pk_fma_f32 v[{d}:{d+1}], v[{a}:{a+1}], v[{c}:{c+1}], v[{t}:{t+1}] op_sel:[0,0,0] op_sel_hi:[0,1,1] neg_lo:[0,0,1]")

def cmul(A, dr, di, ar, ai, br, bi, t):
    A(f"v_mul_f32 v{t}, v{ai}, v{bi}")
    A(f"v_mul_f32 v{di}, v{ai}, v{br}") if di == ai else A(f"v_mul_f32 v{di}, v{ai}, v{br}")
    A(f"v_fmac_f32 v{di}, v{ar}, v{bi}")
    A(f"v_fma_f32 v{dr}, v{ar}, v{br}, -v{t}")

D1r, D1i, PK, D2 = 32, 48, 96, (32, 48)
def fft320_core(A, xa=XA, tmp=(4, 6), mid=None):
    for i in range(4):
        c = "0" if i == 0 else f"v[{D1r}:{D1r+15}]"
        A(f"v_mfma_f32_32x32x16_bf16 v[{D1r}:{D1r+15}], v[{xa+4*i}:{xa+4*i+3}], a[{R.CRe+4*i}:{R.CRe+4*i+3}], {c}")
        c = "0" if i == 0 else f"v[{D1i}:{D1i+15}]"
        A(f"v_mfma_f32_32x32x16_bf16 v[{D1i}:{D1i+15}], v[{xa+4*i}:{xa+4*i+3}], a[{R.CIm+4*i}:{R.CIm+4*i+3}], {c}")
    for r in range(2):
        A(f"v_mov_b32 v{PK+8*r+6}, 0")
        A(f"v_mov_b32 v{PK+8*r+7}, 0")
    if mid: mid()
    t0, t1 = tmp
    for r in range(2):
        for idx, (e, j) in ((0, (0, 0)), (2, (0, 2)), (4, (1, 0))):
            reg = 4*(2*r+e) + j
            ar, ai = D1r+reg, D1i+reg
            tr, ti = R.t3r+idx, R.t3i+idx
            A(f"v_pk_mul_f32 v[{t0}:{t0+1}], v[{ai}:{ai+1}], v[{ti}:{ti+1}]")
            A(f"v_pk_mul_f32 v[{t1}:{t1+1}], v[{ai}:{ai+1}], v[{tr}:{tr+1}]")
            A(f"v_pk_fma_f32 v[{t0}:{t0+1}], v[{ar}:{ar+1}], v[{tr}:{tr+1}], v[{t0}:{t0+1}] neg_lo:[0,0,1] neg_hi:[0,0,1]")
            A(f"v_pk_fma_f32 v[{t1}:{t1+1}], v[{ar}:{ar+1}], v[{ti}:{ti+1}], v[{t1}:{t1+1}]")
            A(f"v_cvt_pk_bf16_f32 v{PK+8*r+4*e+j}, v{t0}, v{t1}")
            A(f"v_cvt_pk_bf16_f32 v{PK+8*r+4*e+j+1}, v{t0+1}, v{t1+1}")
    for r in range(2):
        for e in range(2):
            c = "0" if e == 0 else f"v[{D2[r]}:{D2[r]+15}]"
            A(f"v_mfma_f32_32x32x16_bf16 v[{D2[r]}:{D2[r]+15}], a[{R.F10+4*e}:{R.F10+4*e+3}], v[{PK+8*r+4*e}:{PK+8*r+4*e+3}], {c}")

def a1_core(A, vm):
    st = R.st
    A.c("---- A1 core ----")
    A(f"s_waitcnt vmcnt({vm.wait({'xr'})})")
    A(f"v_bfe_u32 v4, v{R.vl}, 4, 1")
    A(f"v_mul_u32_u24 v4, 1280, v4")
    A(f"v_and_b32 v5, 15, v{R.vl}")
    A(f"v_lshl_add_u32 v4, v5, 2, v4")
    A(f"v_mul_u32_u24 v5, 160, v{R.vh}")
    A(f"s_mul_i32 s{st}, s{R.sw}, 3072")
    A(f"s_add_u32 s{st}, s{st}, {L_XR}")
    A(f"v_add3_u32 v4, v4, v5, s{st}")
    for i in range(4):
        for q in range(4):
            A(f"ds_read_b32 v{XA+4*i+q}, v4 offset:{320*i+40*q}")
    A("s_waitcnt lgkmcnt(0)")
    fft320_core(A)
    A(f"s_mul_i32 s{st}, s{R.sw}, {ZWAVE}")
    A(f"s_add_u32 s{st}, s{st}, {L_Z}")
    A(f"v_lshl_add_u32 v4, v{R.vh}, 6, v{R.vn}")
    A(f"v_lshl_add_u32 v4, v4, 3, s{st}")
    for i in range(3):
        if i == 2: A("s_mov_b64 exec, 0xffffffff")
        for r in range(2):
            for jj in range(2):
                d = D2[r] + 4*i + 2*jj
                A(f"ds_write_b64 v4, v[{d}:{d+1}] offset:{r*ZROW + (128*i + 32*jj)*8}")
    A("s_mov_b64 exec, -1")

P_AP, P_AQ0, P_AQ, P_ST0, P_ST2 = 112, 113, 114, 115, 116
P_C = 118
P_TAU = 124
P_WA = 126
P_WS = 130
P_WD = 228
P_GA, P_GB = 135, 136
def phase1_pre(A):
    st = R.st
    A.c("---- phase 1: addresses and constants prepared ahead ----")
    A(f"v_and_b32 v4, 3, v0")
    A(f"v_mul_u32_u24 v5, {ZWAVE}, v4")
    A(f"v_add_u32 v5, {L_Z}, v5")
    A(f"v_lshrrev_b32 v7, 2, v0")
    A(f"v_lshl_add_u32 v{P_AP}, v7, 3, v5")
    A(f"v_sub_u32 v8, 192, v7")
    A(f"v_lshl_add_u32 v{P_AQ}, v8, 3, v5")
    A(f"v_add_u32 v9, {128*8}, v{P_AQ}")
    A(f"v_cmp_eq_u32 vcc, 0, v7")
    A(f"v_cndmask_b32 v{P_AQ0}, v9, v5, vcc")
    A(f"s_lshl_b32 s{st}, s{R.sc}, 2")
    A(f"v_add_u32 v6, s{st}, v4")
    A(f"v_cvt_f32_u32 v9, v6")
    A(f"v_mul_f32 v9, {fb(1/2048)}, v9")
    A(f"v_cos_f32 v{P_TAU}, v9")
    A(f"v_sin_f32 v{P_TAU+1}, -v9")
    A(f"v_lshrrev_b32 v10, 1, v7")
    A(f"v_lshlrev_b32 v10, 15, v10")
    A(f"v_and_b32 v11, 1, v7")
    A(f"v_lshl_add_u32 v10, v11, 3, v10")
    A(f"v_lshl_add_u32 v{P_ST0}, v6, 4, v10")
    A(f"v_mov_b32 v11, 0x40000000")
    A(f"v_cmp_gt_u32 vcc, 34, v7")
    A(f"v_cndmask_b32 v{P_ST2}, v11, v{P_ST0}, vcc")
    A(f"v_cvt_f32_u32 v9, v7")
    for rnd in range(3):
        A(f"v_add_f32 v10, {fb(64.0*rnd)}, v9")
        A(f"v_mul_f32 v10, {fb(1/640)}, v10")
        A(f"v_sin_f32 v{P_C+2*rnd}, -v10")
        A(f"v_cos_f32 v10, v10")
        A(f"v_sub_f32 v{P_C+2*rnd+1}, 0, v10")
    A(f"v_bfe_u32 v5, v0, 2, 1")
    A(f"v_lshrrev_b32 v6, 3, v0")
    A(f"v_lshl_add_u32 v7, v4, 3, v5")
    A(f"v_mul_u32_u24 v7, 192, v7")
    A(f"v_lshl_add_u32 v7, v6, 1, v7")
    A(f"v_add_u32 v7, {L_WS}, v7")
    A(f"s_lshr_b32 s{st}, s{R.sc}, 6")
    A(f"v_add_u32 v8, s{st}, v5")
    A(f"v_lshlrev_b32 v8, 1, v8")
    for jj in range(4):
        A(f"v_add_u32 v9, {4*jj}, v8")
        A(f"v_and_b32 v9, 15, v9")
        A(f"v_add_u32 v{P_WA+jj}, v7, v9")
    A(f"s_mul_i32 s{st+1}, s{st}, 81")
    A(f"s_and_b32 s{st+2}, s{R.sc}, 63")
    A(f"s_lshl_b32 s{st+2}, s{st+2}, 6")
    A(f"v_lshlrev_b32 v7, 14, v5")
    A(f"v_lshl_add_u32 v7, v4, 4, v7")
    A(f"v_add_u32 v7, s{st+2}, v7")
    A(f"v_mov_b32 v14, 0x40000000")
    for rnd in range(3):
        A(f"v_add_u32 v8, {32*rnd}, v6")
        A(f"v_add_u32 v9, s{st+1}, v8")
        A(f"v_sub_u32 v10, 320, v9")
        A(f"v_cmp_lt_u32 vcc, 160, v9")
        A(f"v_cndmask_b32 v11, v9, v10, vcc")
        A(f"v_cndmask_b32_e64 v10, 0, 1, vcc")
        A(f"v_and_b32 v12, 1, v11")
        A(f"v_lshl_add_u32 v10, v12, 1, v10")
        A(f"v_lshrrev_b32 v11, 1, v11")
        A(f"v_lshl_add_u32 v11, v11, 3, v10")
        A(f"v_lshl_add_u32 v11, v11, 12, v7")
        if rnd == 2:
            A(f"v_cmp_gt_u32 vcc, 81, v8")
            A(f"v_cndmask_b32 v11, v14, v11, vcc")
            A(f"v_cmp_ge_u32 vcc, 320, v9")
            A(f"v_cndmask_b32 v{P_WS+2}, v14, v11, vcc")
            A(f"v_add_u32 v11, 4096, v11")
            A(f"v_cmp_eq_u32 vcc, 160, v9")
            A(f"v_cndmask_b32 v{P_WS+3}, v14, v11, vcc")
        else:
            A(f"v_mov_b32 v{P_WS+rnd}, v11")
    A(f"v_bfe_u32 v4, v{R.vl}, 5, 1")
    A(f"v_lshlrev_b32 v4, 4, v4")
    A(f"v_bfe_u32 v5, v{R.vl}, 4, 1")
    A(f"v_lshl_add_u32 v4, v5, 2, v4")
    A(f"v_bfe_u32 v5, v{R.vl}, 2, 2")
    A(f"v_add_u32 v4, v4, v5")
    A(f"v_lshlrev_b32 v4, 8, v4")
    A(f"v_and_b32 v5, 3, v{R.vl}")
    A(f"v_lshl_add_u32 v4, v5, 3, v4")
    A(f"s_lshl_b32 s{st}, s{R.sw}, 6")
    A(f"s_add_u32 s{st}, s{st}, {L_WD}")
    A(f"v_add_u32 v{P_WD}, s{st}, v4")
    A(f"s_mul_i32 s{st}, s{R.sw}, 3072")
    A(f"s_add_u32 s{st}, s{st}, {L_XR}")
    A(f"v_lshl_add_u32 v{P_GA}, v{R.vl}, 2, s{st}")
    A(f"v_lshlrev_b32 v7, 2, v{R.vl}")
    A(f"v_add_u32 v{P_GB}, {L_GW}, v7")

def a1_elem(A, vm):
    st = R.st
    A.c("---- A1 elementwise ----")
    A("s_waitcnt lgkmcnt(0)")
    A("s_barrier")
    ZB = 16
    for rnd in range(3):
        z = ZB + 8*rnd
        aq, oq = (P_AQ0, 0) if rnd == 0 else (P_AQ, 512*(2-rnd))
        A(f"ds_read_b64 v[{z}:{z+1}], v{P_AP} offset:{512*rnd}")
        A(f"ds_read_b64 v[{z+2}:{z+3}], v{aq} offset:{oq}")
        A(f"ds_read_b64 v[{z+4}:{z+5}], v{P_AP} offset:{512*rnd + ZROW}")
        A(f"ds_read_b64 v[{z+6}:{z+7}], v{aq} offset:{oq + ZROW}")
    for rnd in range(3):
        z = ZB + 8*rnd
        Zp0, Zq0, Zp1, Zq1 = z, z+2, z+4, z+6
        A(f"s_waitcnt lgkmcnt({8 - 4*rnd})")
        Up, Uq, Vp, Vq = 40, 42, 44, 46
        for (u, vv, z0, z1) in ((Up, Vp, Zp0, Zp1), (Uq, Vq, Zq0, Zq1)):
            A(f"v_pk_add_f32 v[{u}:{u+1}], v[{z0}:{z0+1}], v[{z1}:{z1+1}]")
            A(f"v_pk_add_f32 v[{vv}:{vv+1}], v[{z0}:{z0+1}], v[{z1}:{z1+1}] neg_lo:[0,1] neg_hi:[0,1]")
        E, O, T, X = (48, 50), (52, 54), (56, 58), ((60, 62), (64, 66))
        for pi, (P, Q) in enumerate(((Up, Uq), (Vp, Vq))):
            A(f"v_pk_add_f32 v[{E[pi]}:{E[pi]+1}], v[{P}:{P+1}], v[{Q}:{Q+1}] neg_hi:[0,1]")
            A(f"v_pk_add_f32 v[{O[pi]}:{O[pi]+1}], v[{P}:{P+1}], v[{Q}:{Q+1}] neg_lo:[0,1]")
        c = P_C + 2*rnd
        for pi in range(2): A(f"v_pk_mul_f32 v[{T[pi]}:{T[pi]+1}], v[{O[pi]}:{O[pi]+1}], v[{c}:{c+1}] op_sel:[1,1] op_sel_hi:[1,0]")
        for pi in range(2): A(f"v_pk_fma_f32 v[{T[pi]}:{T[pi]+1}], v[{O[pi]}:{O[pi]+1}], v[{c}:{c+1}], v[{T[pi]}:{T[pi]+1}] op_sel:[0,0,0] op_sel_hi:[0,1,1] neg_lo:[0,0,1]")
        for pi in range(2):
            Xp, Xq = X[pi]
            A(f"v_pk_add_f32 v[{Xp}:{Xp+1}], v[{E[pi]}:{E[pi]+1}], v[{T[pi]}:{T[pi]+1}]")
            A(f"v_pk_add_f32 v[{Xq}:{Xq+1}], v[{E[pi]}:{E[pi]+1}], v[{T[pi]}:{T[pi]+1}] neg_lo:[0,1] neg_hi:[1,0]")
        for k, Xr in enumerate(X[1]): A(f"v_pk_mul_f32 v[{E[k]}:{E[k]+1}], v[{Xr}:{Xr+1}], v[{P_TAU}:{P_TAU+1}] op_sel:[1,1] op_sel_hi:[1,0]")
        for k, Xr in enumerate(X[1]): A(f"v_pk_fma_f32 v[{Xr}:{Xr+1}], v[{Xr}:{Xr+1}], v[{P_TAU}:{P_TAU+1}], v[{E[k]}:{E[k]+1}] op_sel:[0,0,0] op_sel_hi:[0,1,1] neg_lo:[0,0,1]")
        o = 68 + 4*rnd
        for pi in range(2):
            Xp, Xq = X[pi]
            A(f"v_cvt_pk_bf16_f32 v{o+2*pi}, v{Xp}, v{Xp+1}")
            A(f"v_cvt_pk_bf16_f32 v{o+2*pi+1}, v{Xq}, v{Xq+1}")
        if rnd == 2:
            A(f"v_lshrrev_b32 v7, 2, v0")
            A(f"v_cmp_eq_u32 vcc, 33, v7")
            for k in range(4): A(f"v_cndmask_b32_e64 v{o+k}, v{o+k}, 0, vcc")
        va = P_ST2 if rnd == 2 else P_ST0
        A(f"s_mov_b32 s{st}, {rnd << 20}")
        A(f"buffer_store_dwordx2 v[{o}:{o+1}], v{va}, {srd(R.srdX1)}, s{st} offen{SC}")
        A(f"s_mov_b32 s{st+1}, {(rnd << 20) + 16384}")
        A(f"buffer_store_dwordx2 v[{o+2}:{o+3}], v{va}, {srd(R.srdX1)}, s{st+1} offen{SC}")
        vm.issue('st', 2)

sG0, sG1 = 27, 91
def gate(A, vm):
    st = R.st
    GX = 80
    A.c("---- gate ----")
    for t in range(5):
        A(f"ds_read_b32 v{GX+t}, v{P_GA} offset:{256*t}")
        A(f"ds_read_b32 v{GX+5+t}, v{P_GA} offset:{1280+256*t}")
        A(f"ds_read_b32 v{GX+10+t}, v{P_GB} offset:{256*t}")
    A("s_waitcnt lgkmcnt(0)")
    for r in range(2):
        A(f"v_mov_b32 v{4+r}, 0")
        for t in range(5):
            A(f"v_dot2c_f32_bf16 v{4+r}, v{GX+5*r+t}, v{GX+10+t}")
    for mod in ("quad_perm:[1,0,3,2]", "quad_perm:[2,3,0,1]", "row_half_mirror", "row_mirror"):
        for r in range(2):
            A(f"v_add_f32_dpp v{4+r}, v{4+r}, v{4+r} {mod} row_mask:0xf bank_mask:0xf")
    for r in range(2):
        for k in range(4): A(f"v_readlane_b32 s{16+k}, v{4+r}, {16*k}")
        A(f"v_mov_b32 v{4+r}, s16")
        for k in range(1, 4): A(f"v_add_f32 v{4+r}, s{16+k}, v{4+r}")
    A(f"v_and_b32 v6, 1, v{R.vl}")
    A(f"v_cmp_eq_u32 vcc, 1, v6")
    A(f"v_cndmask_b32 v4, v4, v5, vcc")
    A(f"v_cvt_pk_bf16_f32 v4, v4, v4")
    A(f"v_and_b32 v4, 0xffff0000, v4")
    A(f"v_mul_f32 v4, 0xbfb8aa3b, v4")
    A(f"v_exp_f32 v4, v4")
    A(f"v_add_f32 v4, 1.0, v4")
    A(f"v_rcp_f32 v4, v4")
    A(f"v_cvt_pk_bf16_f32 v4, v4, v4")
    A(f"v_and_b32 v4, 0xffff0000, v4")
    A(f"v_readlane_b32 s{sG0}, v4, 0")
    A(f"v_readlane_b32 s{sG1}, v4, 1")
    A(f"s_lshl_b32 s{st}, s{R.sc}, 2")
    A(f"s_add_u32 s{st}, s{st}, s{R.sw}")
    A(f"s_lshl_b32 s{st}, s{st}, 2")
    A(f"v_lshlrev_b32 v6, 12, v6")
    A(f"v_add_u32 v6, s{st}, v6")
    A(f"v_mov_b32 v7, 0x40000000")
    A(f"v_cmp_gt_u32 vcc, 2, v{R.vl}")
    A(f"v_cndmask_b32 v6, v7, v6, vcc")
    A(f"buffer_store_dword v4, v6, {srd(R.srdG)}, 0 offen{SC}")
    vm.issue('gst')

def wprep(A, vm):
    A.c("---- filter prep ----")
    W = 16
    for rnd in range(3):
        for jj in range(4):
            A(f"ds_read_u16 v{W+8*rnd+jj}, v{P_WA+jj} offset:{2*192*jj + 64*rnd}")
            A(f"ds_read_u16 v{W+8*rnd+4+jj}, v{P_WA+jj} offset:{6144 + 2*192*jj + 64*rnd}")
        if rnd == 0: pass
    for rnd in range(3):
        A(f"s_waitcnt lgkmcnt({min(15, 16 - 8*rnd) if rnd < 2 else 0})")
        w = W + 8*rnd
        for jj in range(4): A(f"v_lshl_or_b32 v{w+jj}, v{w+4+jj}, 16, v{w+jj}")
        A(f"buffer_store_dwordx4 v[{w}:{w+3}], v{P_WS+rnd}, {srd(R.srdWF)}, 0 offen{SC}")
        vm.issue('st')
        if rnd == 2:
            A(f"buffer_store_dwordx4 v[{w}:{w+3}], v{P_WS+3}, {srd(R.srdWF)}, 0 offen{SC}")
            vm.issue('st')

def wtprep(A, vm, tag='st'):
    st = R.st
    A.c("---- Wd fragment prep ----")
    A(f"s_mul_i32 s{st+2}, s{R.sc}, 52429")
    A(f"s_lshr_b32 s{st+2}, s{st+2}, 18")
    A(f"s_mul_i32 s{st+3}, s{st+2}, 5")
    A(f"s_sub_u32 s{st+3}, s{R.sc}, s{st+3}")
    for k in range(2):
        A(f"ds_read_b64_tr_b16 v[{40+4*k}:{41+4*k}], v{P_WD} offset:{32*k}")
        A(f"ds_read_b64_tr_b16 v[{42+4*k}:{43+4*k}], v{P_WD} offset:{32*k + 8*256}")
    A(f"s_mul_i32 s{st+2}, s{st+2}, 40")
    A(f"s_lshl_b32 s{st+3}, s{st+3}, 3")
    A(f"s_add_u32 s{st+2}, s{st+2}, s{st+3}")
    A(f"s_lshl_b32 s{st+3}, s{R.sw}, 1")
    A(f"s_add_u32 s{st+2}, s{st+2}, s{st+3}")
    A(f"s_lshl_b32 s{st+2}, s{st+2}, 10")
    A(f"v_lshlrev_b32 v5, 4, v{R.vl}")
    A("s_waitcnt lgkmcnt(0)")
    A(f"buffer_store_dwordx4 v[40:43], v5, {srd(R.srdWT)}, s{st+2} offen{SC}")
    A(f"buffer_store_dwordx4 v[44:47], v5, {srd(R.srdWT)}, s{st+2} offen offset:1024{SC}")
    vm.issue(tag, 2)

def ftgen(A, vm, pWS):
    st = R.st
    A.c("---- F table ----")
    A.srd(R.srdFT, pWS, SZ_FT, OFF_FT)
    lab = A.label("noft")
    A(f"s_lshl_b32 s{st}, s{R.sw}, 8")
    A(f"s_add_u32 s{st}, s{st}, s{R.sc}")
    A(f"s_cmp_ge_u32 s{st}, 840")
    A(f"s_cbranch_scc1 {lab}")
    A(f"s_mul_i32 s{st+1}, s{st}, 52429")
    A(f"s_lshr_b32 s{st+1}, s{st+1}, 21")
    A(f"s_mul_i32 s{st+2}, s{st+1}, 40")
    A(f"s_sub_u32 s{st+2}, s{st}, s{st+2}")
    A(f"s_lshl_b32 s{st+2}, s{st+2}, 4")
    A(f"v_and_b32 v4, 15, v{R.vl}")
    A(f"v_add_u32 v4, s{st+2}, v4")
    A(f"s_lshl_b32 s{st+1}, s{st+1}, 2")
    A(f"v_lshrrev_b32 v5, 4, v{R.vl}")
    A(f"v_add_u32 v5, s{st+1}, v5")
    A(f"v_lshlrev_b32 v6, 1, v5")
    A(f"s_mov_b32 s{st+3}, 6710887")
    for c in range(4):
        if c == 0: A(f"v_mov_b32 v7, v6")
        if c == 1: A(f"v_sub_u32 v7, 320, v6")
        if c == 2: A(f"v_add_u32 v7, 1, v6")
        if c == 3: A(f"v_sub_u32 v7, 319, v6")
        A(f"v_mul_u32_u24 v8, v7, v4")
        A(f"v_mul_hi_u32 v9, v8, s{st+3}")
        A(f"v_mul_u32_u24 v9, 640, v9")
        A(f"v_sub_u32 v8, v8, v9")
        A(f"v_cvt_f32_u32 v8, v8")
        A(f"v_mul_f32 v8, {fb(1/640)}, v8")
        A(f"v_cos_f32 v9, v8")
        A(f"v_sin_f32 v10, -v8")
        if c < 2:
            A(f"v_cmp_eq_u32 vcc, 0, v5")
            A(f"v_mul_f32 v11, 0.5, v9")
            A(f"v_cndmask_b32 v9, v9, v11, vcc")
            A(f"v_cndmask_b32_e64 v10, v10, 0, vcc")
        A(f"v_cvt_pk_bf16_f32 v{16+c}, v9, v10")
        A(f"v_cmp_gt_u32 vcc, {81 if c == 0 else 80}, v5")
        A(f"v_cndmask_b32 v{16+c}, 0, v{16+c}, vcc")
    A(f"s_lshl_b32 s{st}, s{st}, 10")
    A(f"v_lshlrev_b32 v5, 4, v{R.vl}")
    A(f"buffer_store_dwordx4 v[16:19], v5, {srd(R.srdFT)}, s{st} offen{SC}")
    A(f"{lab}:")

def a2_loads(A, vm, pWS):
    st = R.st
    A.c("---- A2 loads ----")
    A(f"s_lshl_b32 s{st}, s{R.sc}, 14")
    A(f"s_lshl_b32 s{st+1}, s{R.sw}, 12")
    A(f"s_add_u32 s{st}, s{st}, s{st+1}")
    A(f"s_add_u32 m0, s{st+1}, {L_X}")
    A(f"v_lshlrev_b32 v4, 4, v{R.vl}")
    for j in range(4):
        A(f"buffer_load_dwordx4 v4, {srd(R.srdX1)}, s{st} offen offset:{1024*j} sc1 lds")
    A(f"s_add_u32 m0, s{st+1}, {L_F}")
    A("s_nop 0")
    for j in range(4):
        A(f"buffer_load_dwordx4 v4, {srd(R.srdWF)}, s{st} offen offset:{1024*j} sc1 lds")
    vm.issue('a2in', 8)

def a2(A0, vm, pWS, waited=False, weave=None):
    st = R.st
    A = Asm(A0.prefix + 'a2')
    A.c("---- A2 ----")
    D0r, D0i, D1r, D1i, XA_, WQ = 32, 48, 204, 16, 16, (220, 224)
    A.srd(R.srdZ, pWS, SZ_Z, OFF_Z)
    if not waited: A(f"s_waitcnt vmcnt({vm.wait({'a2in'})})")
    A("s_barrier")
    A(f"v_lshlrev_b32 v4, 11, v{R.vh}")
    A(f"v_lshl_add_u32 v4, v{R.vn}, 4, v4")
    A(f"s_lshl_b32 s{st}, s{R.sw}, 2")
    A(f"s_add_u32 s{st}, s{st}, {L_X}")
    A(f"v_add_u32 v8, s{st}, v4")
    for i in range(4):
        for q in range(4):
            A(f"ds_read_b32 v{XA_+4*i+q}, v8 offset:{(8*i+q)*512}")
    A(f"s_lshl_b32 s{st}, s{R.sw}, 12")
    A(f"s_add_u32 s{st}, s{st}, {L_F}")
    A(f"v_lshlrev_b32 v5, 9, v{R.vh}")
    A(f"v_lshl_add_u32 v5, v{R.vn}, 2, v5")
    A(f"v_add_u32 v5, s{st}, v5")
    def mm(i, data_is_a, src, Dr, Di):
        for (dst, cc) in ((Dr, R.CRe), (Di, R.CIm)):
            c = "0" if i == 0 else f"v[{dst}:{dst+15}]"
            d, k = f"v[{src+4*i}:{src+4*i+3}]", f"a[{cc+4*i}:{cc+4*i+3}]"
            a_, b_ = (d, k) if data_is_a else (k, d)
            A(f"v_mfma_f32_32x32x16_bf16 v[{dst}:{dst+15}], {a_}, {b_}, {c}")
    def tw_quad(i, Dr, Di):
        for h2 in range(2):
            x = 4*i + 2*h2
            t, u = (6, 10) if h2 == 0 else (12, 14)
            A(f"v_pk_mul_f32 v[{t}:{t+1}], v[{Di+x}:{Di+x+1}], v[{R.TWi+x}:{R.TWi+x+1}]")
            A(f"v_pk_mul_f32 v[{u}:{u+1}], v[{Di+x}:{Di+x+1}], v[{R.TWr+x}:{R.TWr+x+1}]")
            A(f"v_pk_fma_f32 v[{t}:{t+1}], v[{Dr+x}:{Dr+x+1}], v[{R.TWr+x}:{R.TWr+x+1}], v[{t}:{t+1}] neg_lo:[0,0,1] neg_hi:[0,0,1]")
            A(f"v_pk_fma_f32 v[{u}:{u+1}], v[{Dr+x}:{Dr+x+1}], v[{R.TWi+x}:{R.TWi+x+1}], v[{u}:{u+1}]")
        for h2 in range(2):
            x = 4*i + 2*h2
            t, u = (6, 10) if h2 == 0 else (12, 14)
            A(f"v_cvt_pk_bf16_f32 v{Dr+x}, v{t}, v{u}")
            A(f"v_cvt_pk_bf16_f32 v{Dr+x+1}, v{t+1}, v{u+1}")
    def wf_read(i):
        for j in range(4): A(f"ds_read_b32 v{WQ[i & 1]+j}, v5 offset:{(8*i+j)*128}")
    def filt_quad(i, Dr, Di):
        w = WQ[i & 1]
        for h2 in range(2):
            x = 4*i + 2*h2
            ww = w + 2*h2
            A(f"v_lshlrev_b32 v6, 16, v{ww}");     A(f"v_lshlrev_b32 v7, 16, v{ww+1}")
            A(f"v_and_b32 v10, 0xffff0000, v{ww}"); A(f"v_and_b32 v11, 0xffff0000, v{ww+1}")
            A(f"v_pk_mul_f32 v[12:13], v[{Di+x}:{Di+x+1}], v[10:11]")
            A(f"v_pk_mul_f32 v[14:15], v[{Di+x}:{Di+x+1}], v[6:7]")
            A(f"v_pk_fma_f32 v[12:13], v[{Dr+x}:{Dr+x+1}], v[6:7], v[12:13] neg_lo:[0,0,1] neg_hi:[0,0,1]")
            A(f"v_pk_fma_f32 v[14:15], v[{Dr+x}:{Dr+x+1}], v[10:11], v[14:15]")
            A(f"v_cvt_pk_bf16_f32 v{Dr+x}, v12, -v14")
            A(f"v_cvt_pk_bf16_f32 v{Dr+x+1}, v13, -v15")
    A("s_waitcnt lgkmcnt(0)")
    for i in range(4): mm(i, True, XA_, D0r, D0i)
    wf_read(0)
    for i in range(4):
        tw_quad(i, D0r, D0i); mm(i, False, D0r, D1r, D1i)
    for i in range(4):
        if i < 3: wf_read(i+1)
        A(f"s_waitcnt lgkmcnt({4 if i < 3 else 0})")
        filt_quad(i, D1r, D1i); mm(i, True, D1r, D0r, D0i)
    for i in range(4):
        tw_quad(i, D0r, D0i); mm(i, False, D0r, D1r, D1i)
    A("s_barrier")
    for x in range(16):
        A(f"v_cvt_pk_bf16_f32 v{D0r+x}, v{D1r+x}, -v{D1i+x}")
        A(f"ds_write_b32 v8, v{D0r+x} offset:{(8*(x>>2)+(x&3))*512}")
    A("s_waitcnt lgkmcnt(0)")
    A("s_barrier")
    A(f"s_lshl_b32 s{st+1}, s{R.sw}, 12")
    A(f"s_add_u32 s{st+2}, s{st+1}, {L_X}")
    A(f"v_lshl_add_u32 v4, v{R.vl}, 4, s{st+2}")
    for j in range(4):
        A(f"ds_read_b128 v[{16+4*j}:{19+4*j}], v4 offset:{1024*j}")
    A(f"s_lshl_b32 s{st}, s{R.sc}, 14")
    A(f"s_add_u32 s{st}, s{st}, s{st+1}")
    A(f"v_lshlrev_b32 v5, 4, v{R.vl}")
    A("s_waitcnt lgkmcnt(0)")
    for j in range(4):
        A(f"buffer_store_dwordx4 v[{16+4*j}:{19+4*j}], v5, {srd(R.srdZ)}, s{st} offen offset:{1024*j}{SC}")
    vm.issue('zst', 4)
    lines = A.l
    if weave:
        first = next(i for i, l in enumerate(lines) if "v_mfma" in l)
        last = max(i for i, l in enumerate(lines) if "ds_write_b32" in l)
        n = len(weave); out = lines[:first]
        span = last - first
        k = 0
        for j in range(first, len(lines)):
            out.append(lines[j])
            while k < n and j < last and (j - first + 1)*n >= (k + 1)*span:
                out += ["  " + x for x in weave[k]]; k += 1
        out += ["  " + x for w in weave[k:] for x in w]
        assert k == n
        lines = out
    A0.l += lines

ZL = 204
L_ZB, ZBW = AUXB, 3104
L_GO = AUXB + 12800
sG0, sG1 = 27, 91
def a3_loads(A, vm, pWS):
    st = R.st
    A.c("---- A3 loads ----")
    A.srd(R.srdZ, pWS, SZ_Z, OFF_Z)
    st = 62
    A(f"v_lshrrev_b32 v4, 2, v0")
    A(f"v_lshrrev_b32 v5, 1, v4")
    A(f"v_lshlrev_b32 v5, 15, v5")
    A(f"v_and_b32 v4, 1, v4")
    A(f"v_lshl_add_u32 v5, v4, 3, v5")
    A(f"v_and_b32 v4, 3, v0")
    A(f"s_lshl_b32 s{st}, s{R.sc}, 2")
    A(f"v_add_u32 v4, s{st}, v4")
    A(f"v_lshl_add_u32 v5, v4, 4, v5")
    for rnd in range(3):
        for pi in range(2):
            A(f"s_mov_b32 s{st}, {(rnd << 20) + pi*16384}")
            A(f"buffer_load_dwordx2 v[{ZL+4*rnd+2*pi}:{ZL+4*rnd+2*pi+1}], v5, {srd(R.srdZ)}, s{st} offen sc1")
    vm.issue('zl', 6)

def a3_elem(A, vm, extra=None):
    st = R.st
    A.c("---- A3 elementwise ----")
    A(f"v_and_b32 v{R.vl}, 63, v0")
    A(f"v_and_b32 v{R.vn}, 31, v{R.vl}")
    A(f"v_lshrrev_b32 v{R.vh}, 5, v{R.vl}")
    A(f"v_and_b32 v4, 3, v0")
    A(f"v_mul_u32_u24 v5, {ZBW}, v4")
    A(f"v_add_u32 v5, {L_ZB}, v5")
    A(f"s_mul_i32 s{st}, s{R.sw}, {ZBW}")
    A(f"s_add_u32 s{st}, s{st}, {L_ZB + 2560}")
    A(f"v_and_b32 v6, 7, v{R.vl}")
    A(f"v_lshl_add_u32 v6, v6, 2, s{st}")
    A(f"v_mov_b32 v7, 0")
    A(f"ds_write_b32 v6, v7")
    A(f"s_lshl_b32 s{st}, s{R.sc}, 2")
    A(f"v_add_u32 v6, s{st}, v4")
    A(f"v_cvt_f32_u32 v7, v6")
    A(f"v_mul_f32 v7, {fb(1/2048)}, v7")
    A(f"v_cos_f32 v12, v7")
    A(f"v_sin_f32 v13, v7")
    A(f"v_lshrrev_b32 v7, 2, v0")
    A(f"s_waitcnt vmcnt({vm.wait({'zl'})})")
    for rnd in range(3):
        z = ZL + 4*rnd
        if extra: extra(rnd)
        A(f"v_add_u32 v8, {64*rnd}, v7")
        A(f"v_cvt_f32_u32 v15, v8")
        A(f"v_mul_f32 v15, {fb(1/640)}, v15")
        A(f"v_sin_f32 v14, -v15")
        A(f"v_cos_f32 v15, v15")
        Up, Uq, Vp, Vq = 32, 34, 36, 38
        for (d, src) in ((Up, z), (Uq, z+1), (Vp, z+2), (Vq, z+3)):
            A(f"v_lshlrev_b32 v{d}, 16, v{src}")
            A(f"v_and_b32 v{d+1}, 0xffff0000, v{src}")
        for X in (Vp, Vq): cmulp(A, X, X, 12, 60)
        A(f"v_sub_u32 v9, 320, v8")
        A(f"v_cmp_eq_u32 vcc, 0, v8")
        A(f"v_lshl_add_u32 v10, v8, 2, v5")
        A(f"v_cndmask_b32_e64 v9, v9, 0, vcc")
        A(f"v_lshl_add_u32 v11, v9, 2, v5")
        Ap0, Aq0, Ap1, Aq1 = 40, 42, 44, 46
        A(f"v_pk_add_f32 v[{Ap0}:{Ap0+1}], v[{Up}:{Up+1}], v[{Vp}:{Vp+1}]")
        A(f"v_pk_add_f32 v[{Aq0}:{Aq0+1}], v[{Uq}:{Uq+1}], v[{Vq}:{Vq+1}]")
        A(f"v_pk_add_f32 v[{Ap1}:{Ap1+1}], v[{Up}:{Up+1}], v[{Vp}:{Vp+1}] neg_lo:[0,1] neg_hi:[0,1]")
        A(f"v_pk_add_f32 v[{Aq1}:{Aq1+1}], v[{Uq}:{Uq+1}], v[{Vq}:{Vq+1}] neg_lo:[0,1] neg_hi:[0,1]")
        if rnd == 0:
            for X in (Ap0, Aq0, Ap1, Aq1): A(f"v_cndmask_b32_e64 v{X+1}, v{X+1}, 0, vcc")
        if rnd == 2:
            A(f"v_mov_b32 v9, {L_ZB + 4*ZBW}")
            A(f"v_cmp_lt_u32 vcc, 160, v8")
            A(f"v_cndmask_b32 v10, v10, v9, vcc")
            A(f"v_cndmask_b32 v11, v11, v9, vcc")
        for r, (P, Q) in enumerate(((Ap0, Aq0), (Ap1, Aq1))):
            E, O, T = 48, 50, 52
            A(f"v_pk_add_f32 v[{E}:{E+1}], v[{P}:{P+1}], v[{Q}:{Q+1}] neg_hi:[0,1]")
            A(f"v_pk_add_f32 v[{O}:{O+1}], v[{P}:{P+1}], v[{Q}:{Q+1}] neg_lo:[0,1]")
            cmulp(A, T, O, 14, 60)
            A(f"v_pk_add_f32 v[54:55], v[{E}:{E+1}], v[{T}:{T+1}] neg_hi:[1,1]")
            A(f"v_pk_add_f32 v[56:57], v[{E}:{E+1}], v[{T}:{T+1}] neg_lo:[0,1] neg_hi:[0,1]")
            A(f"v_cvt_pk_bf16_f32 v58, v54, v55")
            A(f"v_cvt_pk_bf16_f32 v59, v56, v57")
            off = f" offset:{1280*r}" if r else ""
            A(f"ds_write_b32 v10, v58{off}")
            A(f"ds_write_b32 v11, v59{off}")
    A("s_waitcnt lgkmcnt(0)")

def a3_core(A, vm, pWS, mid=None):
    st = R.st
    A.c("---- A3 core ----")
    A(f"v_bfe_u32 v4, v{R.vl}, 4, 1")
    A(f"v_mul_u32_u24 v4, 1280, v4")
    A(f"v_and_b32 v5, 15, v{R.vl}")
    A(f"v_lshl_add_u32 v4, v5, 2, v4")
    A(f"v_mul_u32_u24 v5, 160, v{R.vh}")
    A(f"s_mul_i32 s{st}, s{R.sw}, {ZBW}")
    A(f"s_add_u32 s{st}, s{st}, {L_ZB}")
    A(f"v_add3_u32 v4, v4, v5, s{st}")
    for i in range(4):
        for q in range(4):
            A(f"ds_read_b32 v{XA+4*i+q}, v4 offset:{320*i+40*q}")
    A(f"v_mov_b32 v6, {fb(0.5/(2048*640))}")
    A(f"v_mul_f32 v8, s{sG0}, v6")
    A(f"v_mul_f32 v10, s{sG1}, v6")
    A(f"v_sub_f32 v9, 0, v8")
    A(f"v_sub_f32 v11, 0, v10")
    A("s_waitcnt lgkmcnt(0)")
    fft320_core(A, tmp=(12, 14), mid=mid)
    A(f"s_mul_i32 s{st}, s{R.sw}, 2560")
    A(f"s_add_u32 s{st}, s{st}, {L_GO}")
    A(f"v_lshl_add_u32 v4, v{R.vh}, 6, v{R.vn}")
    A(f"v_lshl_add_u32 v4, v4, 2, s{st}")
    for i in range(3):
        if i == 2: A("s_mov_b64 exec, 0xffffffff")
        for r in range(2):
            sc = 8 + 2*r
            for jj in range(2):
                d = D2[r] + 4*i + 2*jj
                A(f"v_pk_mul_f32 v[{d}:{d+1}], v[{d}:{d+1}], v[{sc}:{sc+1}]")
                A(f"v_cvt_pk_bf16_f32 v{d}, v{d}, v{d+1}")
                A(f"ds_write_b32 v4, v{d} offset:{r*1280 + (128*i + 32*jj)*4}")
    A("s_mov_b64 exec, -1")
    A.srd(R.srdZ, pWS, SZ_GA, OFF_GA)
    A(f"v_lshl_add_u32 v4, v{R.vl}, 4, s{st}")
    A("s_waitcnt lgkmcnt(0)")
    for j in range(3): A(f"ds_read_b128 v[{16+4*j}:{19+4*j}], v4 offset:{1024*j}")
    A(f"s_lshl_b32 s{st}, s{R.sc}, 2")
    A(f"s_add_u32 s{st}, s{st}, s{R.sw}")
    A(f"s_mul_i32 s{st}, s{st}, 1280")
    A(f"v_lshlrev_b32 v4, 4, v{R.vl}")
    A(f"v_add_u32 v5, 1024, v4")
    A(f"v_add_u32 v6, {1024*1280 - 256}, v4")
    A(f"v_cmp_gt_u32 vcc, 16, v{R.vl}")
    A(f"v_cndmask_b32 v5, v6, v5, vcc")
    A(f"v_add_u32 v7, {1024*1280 + 48*16}, v4")
    A(f"v_mov_b32 v6, 0x40000000")
    A(f"v_cmp_gt_u32 vcc, 32, v{R.vl}")
    A(f"v_cndmask_b32 v7, v6, v7, vcc")
    A("s_waitcnt lgkmcnt(0)")
    A(f"buffer_store_dwordx4 v[16:19], v4, {srd(R.srdZ)}, s{st} offen{SC}")
    A(f"buffer_store_dwordx4 v[20:23], v5, {srd(R.srdZ)}, s{st} offen{SC}")
    A(f"buffer_store_dwordx4 v[24:27], v7, {srd(R.srdZ)}, s{st} offen{SC}")
    vm.issue('gast', 3)
```

```python
import sys, os
sys.path.insert(0, os.path.dirname(os.path.abspath(__file__)))
from asmlib import *
from layout import *
import f1, f2, g2, aux, hazard

NAME = "gated_mix__spectral_gfnet__swiglu_ffn__prompt_kernel"
pAX, pWR, pWI, pBX, pWG, pWU, pWD, pGW, pOUT, pDBG, pWS = 68, 70, 72, 74, 76, 78, 80, 82, 84, 86, 88
sNONCE, srdF, sSPIN, sTMP, sID = 90, 92, 96, 97, 98
srdD = 0
SPIN_MAX = 20000
import os
if os.environ.get('NOSPIN'): SPIN_MAX = 0

class Gen:
    def __init__(self, stamps=False, order="AB", gemm_first=True, exp="", ta2=13, tf1=1, d2=2, nwa2=5, early3=True, npre=3, dep2at=3, wput=2, wputr=4):
        self.wput = wput; self.wputr = wputr
        self.dep2at = dep2at
        self.early3 = early3; self.npre = npre
        self.exp = exp; self.ta2 = ta2; self.tf1 = tf1; self.d2 = d2; self.nwa2 = nwa2
        self.A = Asm("K"); self.stamps = stamps; self.ns = 0; self.names = {}
        self.gemm_first = gemm_first
        self.dbg_sel = {"gemm": [(0,"start",1),(1,"issued",0),(2,"consts",0),(3,"a1",0),(4,"preps",0),(5,"flag1",0),(6,"dep1",0),(7,"a2 start",0),(8,"a2 end",0),
                                 (9,"f1 loop end",0),(10,"f1 epi",0),(11,"a3 elem",0),(12,"a3 core",0),(13,"dep3",0),(14,"f2 loop end",0),(15,"end",0)]}
        g2.ORDER = order; g2.STG = g2.stages()
    def stamp(self, name=None):
        if not self.stamps: return
        if self.stamps == "min" and name not in ("start", "end"): return
        A = self.A
        A("s_memrealtime s[100:101]")
        A("s_waitcnt lgkmcnt(0)")
        A(f"v_writelane_b32 v255, s100, {self.ns}")
        self.names.setdefault(self.role, []).append((self.ns, name))
        self.ns += 1
    def dump_stamps(self):
        if not self.stamps: return
        A = self.A
        if self.stamps == "dbg":
            sel = self.dbg_sel[self.role]
            A("s_waitcnt vmcnt(0) lgkmcnt(0)")
            A.srd(8, pDBG, 256)
            lab = A.label("nd")
            A("s_cmp_lg_u32 s20, 0")
            A(f"s_cbranch_scc1 {lab}")
            names = {nm: idx for idx, nm in self.names[self.role]}
            A("v_mov_b32 v2, 0")
            A("v_mov_b32 v3, 0x40000000")
            for slot, nm, inv in sel:
                A(f"v_readlane_b32 s30, v255, {names[nm]}")
                if inv: A("s_not_b32 s30, s30")
                A(f"s_mov_b32 s31, {4*slot}")
                A(f"v_writelane_b32 v2, s30, {slot}")
                A(f"v_writelane_b32 v3, s31, {slot}")
            A("buffer_atomic_umax v2, v3, s[8:11], 0 offen")
            A(f"{lab}:")
            return
        A("s_waitcnt vmcnt(0) lgkmcnt(0)")
        A.srd(8, pDBG, 1 << 20)
        A("v_lshlrev_b32 v1, 2, v0")
        A(f"s_lshl_b32 s30, s{sID}, 10")
        A("s_add_u32 s30, s30, 4096")
        A("buffer_store_dword v255, v1, s[8:11], s30 offen")
    def flag_store(self, off, s_idx):
        A = self.A
        lab = A.label("sig")
        A(f"s_cmp_lg_u32 s20, 0")
        A(f"s_cbranch_scc1 {lab}")
        A(f"s_lshl_b32 s{sTMP}, s{s_idx}, 2")
        A(f"s_add_u32 s{sTMP}, s{sTMP}, {off}")
        A(f"v_mov_b32 v249, s{sNONCE}")
        A(f"v_mov_b32 v254, 0")
        A("s_mov_b64 exec, 1")
        A(f"buffer_store_dword v249, v254, {srd(srdF)}, s{sTMP} offen sc1")
        A("s_mov_b64 exec, -1")
        A(f"{lab}:")
    def flag_store_all(self, vm, off, s_idx):
        A = self.A
        A(f"s_lshl_b32 s{sTMP}, s{s_idx}, 2")
        A(f"s_add_u32 s{sTMP}, s{sTMP}, {off}")
        A(f"s_cmp_eq_u32 s20, 0")
        A(f"s_cselect_b32 s{sTMP}, s{sTMP}, 0x40000000")
        A(f"v_mov_b32 v249, s{sNONCE}")
        A(f"v_mov_b32 v254, 0")
        A("s_mov_b64 exec, 1")
        A(f"buffer_store_dword v249, v254, {srd(srdF)}, s{sTMP} offen sc1")
        A("s_mov_b64 exec, -1")
        vm.issue("flag")
    def arrive(self, vm, phase):
        A = self.A
        off = (OFF_FLAG1, OFF_FLAG2)[phase]
        A(f"s_lshl_b32 s{sTMP}, s{sID}, 2")
        A(f"s_add_u32 s{sTMP}, s{sTMP}, {off}")
        A(f"s_cmp_eq_u32 s20, 0")
        A(f"s_cselect_b32 s{sTMP}, s{sTMP}, 0x40000000")
        A(f"v_mov_b32 v249, s{sNONCE}")
        A(f"v_and_b32 v254, 7, v0")
        A(f"v_lshlrev_b32 v254, 10, v254")
        A("s_mov_b64 exec, 0xff")
        A(f"buffer_store_dword v249, v254, {srd(srdF)}, s{sTMP} offen sc1")
        A("s_mov_b64 exec, -1")
        vm.issue("flag")
    def cpoll_issue(self, vm, phase):
        A = self.A
        off = (OFF_FLAG1, OFF_FLAG2)[phase]
        A(f"v_and_b32 v254, 63, v0")
        A(f"v_lshlrev_b32 v254, 4, v254")
        A(f"s_and_b32 s{sTMP}, s{sID}, 7")
        A(f"s_lshl_b32 s{sTMP}, s{sTMP}, 10")
        A(f"s_add_u32 s{sTMP}, s{sTMP}, {off}")
        A(f"s_cmp_eq_u32 s20, 0")
        A(f"s_cselect_b32 s{sTMP}, s{sTMP}, 0x40000000")
        A(f"buffer_load_dwordx4 v[250:253], v254, {srd(srdF)}, s{sTMP} offen sc1")
        vm.issue("cpoll")
    def cpoll_check(self, vm, phase):
        A = self.A
        off = (OFF_FLAG1, OFF_FLAG2)[phase]
        lo, ok = A.label("w"), A.label("wok")
        A(f"s_waitcnt vmcnt({vm.wait({'cpoll'})})")
        A(f"s_cmp_lg_u32 s20, 0")
        A(f"s_cbranch_scc1 {ok}")
        A(f"s_mov_b32 s{sSPIN}, 0")
        A(f"{lo}:")
        for k in range(4): A(f"v_xor_b32 v{250+k}, s{sNONCE}, v{250+k}")
        A(f"v_or3_b32 v250, v250, v251, v252")
        A(f"v_or_b32 v250, v250, v253")
        A(f"v_cmp_ne_u32 vcc, 0, v250")
        A(f"s_cbranch_vccz {ok}")
        A(f"s_add_u32 s{sSPIN}, s{sSPIN}, 1")
        A(f"s_cmp_gt_u32 s{sSPIN}, {SPIN_MAX}")
        A(f"s_cbranch_scc1 {ok}")
        A("s_sleep 2")
        A(f"s_and_b32 s{sTMP}, s{sID}, 7")
        A(f"s_lshl_b32 s{sTMP}, s{sTMP}, 10")
        A(f"s_add_u32 s{sTMP}, s{sTMP}, {off}")
        A(f"buffer_load_dwordx4 v[250:253], v254, {srd(srdF)}, s{sTMP} offen sc1")
        A("s_waitcnt vmcnt(0)")
        A(f"s_branch {lo}")
        A(f"{ok}:")
    def flag_store_wave(self, vm, off, s_idx):
        A = self.A
        A(f"s_lshl_b32 s{sTMP}, s{s_idx}, 2")
        A(f"s_add_u32 s{sTMP}, s{sTMP}, {off}")
        A(f"v_mov_b32 v249, s{sNONCE}")
        A(f"v_mov_b32 v254, 0")
        A("s_mov_b64 exec, 1")
        A(f"buffer_store_dword v249, v254, {srd(srdF)}, s{sTMP} offen sc1")
        A("s_mov_b64 exec, -1")
        vm.issue("flag")
    def signal(self, vm, off, s_idx):
        A = self.A
        A("s_waitcnt vmcnt(0)")
        A("s_barrier")
        vm.q = []
        self.flag_store_all(vm, off, s_idx)
    def poll_issue(self, vm, off):
        A = self.A
        A(f"v_and_b32 v254, 63, v0")
        A(f"v_lshlrev_b32 v254, 4, v254")
        A(f"s_mov_b32 s{sTMP}, {off}")
        A(f"buffer_load_dwordx4 v[250:253], v254, {srd(srdF)}, s{sTMP} offen sc1")
        vm.issue("poll")
    def poll_check(self, vm, off):
        A = self.A
        lo, ok = A.label("w"), A.label("wok")
        A(f"s_waitcnt vmcnt({vm.wait({'poll'})})")
        A(f"s_mov_b32 s{sSPIN}, 0")
        A(f"{lo}:")
        for k in range(4): A(f"v_xor_b32 v{250+k}, s{sNONCE}, v{250+k}")
        A(f"v_or3_b32 v250, v250, v251, v252")
        A(f"v_or_b32 v250, v250, v253")
        A(f"v_cmp_ne_u32 vcc, 0, v250")
        A(f"s_cbranch_vccz {ok}")
        A(f"s_add_u32 s{sSPIN}, s{sSPIN}, 1")
        A(f"s_cmp_gt_u32 s{sSPIN}, {SPIN_MAX}")
        A(f"s_cbranch_scc1 {ok}")
        A("s_sleep 4")
        A(f"s_mov_b32 s{sTMP}, {off}")
        A(f"buffer_load_dwordx4 v[250:253], v254, {srd(srdF)}, s{sTMP} offen sc1")
        A("s_waitcnt vmcnt(0)")
        A(f"s_branch {lo}")
        A(f"{ok}:")
    def wait_all(self, vm, off):
        self.poll_issue(vm, off); self.poll_check(vm, off)
    def wait_idx(self, vm, off, v_idx_code):
        A = self.A
        lo, ok = A.label("w"), A.label("wok")
        v_idx_code()
        A(f"s_mov_b32 s{sSPIN}, 0")
        A(f"s_mov_b32 s{sTMP}, {off}")
        A(f"{lo}:")
        A(f"buffer_load_dword v250, v254, {srd(srdF)}, s{sTMP} offen sc1")
        A("s_waitcnt vmcnt(0)")
        A(f"v_cmp_ne_u32 vcc, s{sNONCE}, v250")
        A(f"s_cbranch_vccz {ok}")
        A(f"s_add_u32 s{sSPIN}, s{sSPIN}, 1")
        A(f"s_cmp_gt_u32 s{sSPIN}, {SPIN_MAX}")
        A(f"s_cbranch_scc1 {ok}")
        A("s_sleep 4")
        A(f"s_branch {lo}")
        A(f"{ok}:")
        vm.q = []

    def body(self):
        A = self.A; self.role = "gemm"; self.ns = 0
        vm = VM()
        TA2 = self.ta2
        self.stamp("start")
        X = self.exp.split("+")
        aux.setup(A, pAX, pWR, pWI, pWD, pGW, pWS)
        issued = set()
        def iss(*ks):
            for k in ks:
                f1.issue(A, vm, *k); issued.add(k)
        def mid():
            if "nopf" not in X and "pflate" not in X: f1.l2_prefetch(A, vm, pWG, pWU)
        aux.issue_loads(A, vm, mid, wd=("wdlate" not in X))
        self.stamp("issued")
        aux.consts_a1(A)
        f1.setup(A, sID, pAX, pWG, pWU, pWS)
        aux.setup_out(A, pWS)
        f1.setup_reads(A)
        A(aux.consts_a2_fill())
        aux.phase1_pre(A)
        self.stamp("consts")
        aux.a1_core(A, vm)
        self.stamp("core")
        if "wdlate" in X: aux.issue_wd(A, vm)
        if "pflate" in X: f1.l2_prefetch(A, vm, pWG, pWU)
        A("s_waitcnt lgkmcnt(0)")
        A(f"s_add_u32 s{sNONCE}, s{sNONCE}, 1")
        A(f"s_waitcnt vmcnt({vm.wait({'ws', 'gw'} | (set() if 'wdlate' in X else {'wd'}))})")
        aux.a1_elem(A, vm)
        self.stamp("a1")
        if "nop1" not in self.exp and "nopreps" not in self.exp:
            iss(("x", 0), ("w", 0))
            aux.wprep(A, vm)
            iss(("w", 1))
            if "wdlate" in X:
                A(f"s_waitcnt vmcnt({vm.wait({'wd'})})")
                A("s_barrier")
            aux.wtprep(A, vm)
            self.stamp("wprep")
            iss(("x", 1), ("w", 2))
            aux.gate(A, vm)

        if 'nop1' in self.exp: A('s_waitcnt vmcnt(0)')
        self.stamp("preps")
        after, pause, extra, before = {}, {}, {}, {}
        extra[self.tf1] = {'st'}
        after[self.tf1] = lambda: (self.arrive(vm, 0), self.stamp("flag1"))
        def a2_issue():
            A(f"s_or_b32 s{sTMP}, s{sID}, s20")
            A(f"s_cmp_eq_u32 s{sTMP}, 0")
            A(f"s_cselect_b32 s{sTMP}, 0, 0x40000000")
            A(f"v_mov_b32 v249, s{sNONCE}")
            A(f"v_mov_b32 v254, 0")
            A("s_mov_b64 exec, 1")
            A(f"buffer_store_dword v249, v254, {srd(srdF)}, s{sTMP} offen sc1")
            A("s_mov_b64 exec, -1")
            vm.issue("flag")
            self.stamp("dep1")
            aux.a2_loads(A, vm, pWS)
            f2.setup_w(A, sID, pWS)
        NW_A2 = self.nwa2
        watoms = f2.w_loads(range(NW_A2))
        def a2_run():
            lab, lab2 = A.label("noa2"), A.label("a2d")
            self.stamp("a2 start")
            A(f"s_waitcnt vmcnt({vm.wait({'a2in'})})")
            A(f"s_cmp_ge_u32 s{sID}, {0 if 'noa2' in self.exp else 162}")
            A(f"s_cbranch_scc1 {lab}")
            v2 = VM()
            aux.a2(A, v2, pWS, waited=True, weave=list(watoms))
            A(f"s_branch {lab2}")
            A(f"{lab}:")
            for ins in watoms: A(ins)
            A(f"{lab2}:")
            for k in range(len(watoms)): vm.issue(f"W{k//5}")
            vm.issue('zst', 4)
            self.stamp("a2 end")
        after[TA2-3] = lambda: self.cpoll_issue(vm, 0)
        before[TA2-1] = lambda: self.cpoll_check(vm, 0)
        after[TA2-1] = a2_issue
        pause[TA2] = a2_run
        extra[TA2+self.d2] = {'zst'}
        after[TA2+self.d2] = lambda: self.arrive(vm, 1)
        if self.dep2at < 0:
            after[16] = lambda: self.cpoll_issue(vm, 1)
            before[18] = lambda: self.cpoll_check(vm, 1)
        if "fine" in self.exp:
            for t in range(0, 19, 2):
                def mk(t, old):
                    def f():
                        if old: old()
                        self.stamp(f"bar{t}")
                    return f
                after[t] = mk(t, after.get(t))
        fl = []
        f1.main(A, vm, issued, fill=fl, after_barrier=after, pause=pause, late=[("w", 3), ("x", 2), ("w", 4), ("w", 5)], extra_need=extra, before_barrier=before)
        self.stamp("f1 loop end")
        f2.setup(A, sID, pWS, pOUT)
        if self.dep2at < 0:
            self.stamp("dep2")
            aux.a3_loads(A, vm, pWS)
        atoms = [(ins, f"W{self.nwa2 + k//5}") for k, ins in enumerate(f2.w_loads(range(self.nwa2, 10)))]
        def put(n):
            for _ in range(n):
                if atoms:
                    ins, tag = atoms.pop(0); A(ins); vm.issue(tag)
        def btw(k):
            if self.dep2at < 0 or k > self.dep2at: put(self.wput)
            if self.dep2at >= 0:
                if k == max(0, self.dep2at - 2): self.cpoll_issue(vm, 1)
                if k == self.dep2at:
                    self.cpoll_check(vm, 1)
                    A("s_barrier")
                    self.stamp("dep2")
                    aux.a3_loads(A, vm, pWS)
        f1.epilogue(A, vm, pWS, between=btw)
        self.stamp("f1 epi")
        A(f"s_lshl_b32 s{sTMP}, s{f1.R.smt}, 1")
        A(f"s_lshr_b32 s99, s20, 1")
        A(f"s_add_u32 s{sTMP}, s{sTMP}, s99")
        A(f"s_lshl_b32 s{sTMP}, s{sTMP}, 5")
        A(f"s_lshl_b32 s99, s{f1.R.sft}, 1")
        A(f"s_add_u32 s{sTMP}, s{sTMP}, s99")
        A(f"s_and_b32 s99, s20, 1")
        A(f"s_add_u32 s99, s{sTMP}, s99")
        def extra(rnd):
            if rnd > 0: put(self.wputr)
            if rnd == 1:
                A(f"s_waitcnt vmcnt({vm.wait({'hst'})})")
                self.flag_store_wave(vm, OFF_FLAG3, 99)
        aux.a3_elem(A, vm, extra)
        put(100)
        A("s_barrier")
        self.stamp("a3 elem")
        f2.setup2(A, pWS, pOUT)
        def poll3_issue():
            A(f"v_and_b32 v254, 31, v0")
            A(f"s_lshl_b32 s{sTMP}, s{f2.R.sT}, 5")
            A(f"v_add_u32 v254, s{sTMP}, v254")
            A(f"v_lshlrev_b32 v254, 2, v254")
            A(f"s_mov_b32 s{sTMP}, {OFF_FLAG3}")
            A(f"buffer_load_dword v250, v254, {srd(srdF)}, s{sTMP} offen sc1")
            vm.issue("poll3")
        def check_one(tag, off):
            lo, ok = A.label("w"), A.label("wok")
            A(f"s_waitcnt vmcnt({vm.wait({tag})})")
            A(f"s_mov_b32 s{sSPIN}, 0")
            A(f"{lo}:")
            A(f"v_cmp_ne_u32 vcc, s{sNONCE}, v250")
            A(f"s_cbranch_vccz {ok}")
            A(f"s_add_u32 s{sSPIN}, s{sSPIN}, 1")
            A(f"s_cmp_gt_u32 s{sSPIN}, {SPIN_MAX}")
            A(f"s_cbranch_scc1 {ok}")
            A("s_sleep 4")
            A(f"s_mov_b32 s{sTMP}, {off}")
            A(f"buffer_load_dword v250, v254, {srd(srdF)}, s{sTMP} offen sc1")
            A("s_waitcnt vmcnt(0)")
            A(f"s_branch {lo}")
            A(f"{ok}:")
        npre = self.npre
        if self.early3:
            poll3_issue()
            def mid():
                check_one("poll3", OFF_FLAG3)
                for i in range(npre):
                    A(f2.h_loads(i)); vm.issue(f"h{i}", 4)
            aux.a3_core(A, vm, pWS, mid=mid)
        else:
            aux.a3_core(A, vm, pWS, mid=poll3_issue)
        for k, ins in enumerate(f2.w_loads((10, 11))):
            A(ins); vm.issue(f"W{10 + k//5}")
        self.stamp("a3 core")
        if not self.early3:
            check_one("poll3", OFF_FLAG3)
            npre = 0
        self.stamp("dep3")
        def flag4():
            A(f"s_waitcnt vmcnt({vm.wait({'gast'})})")
            A(f"s_lshl_b32 s99, s{sID}, 2")
            A(f"s_add_u32 s99, s99, s20")
            self.flag_store_wave(vm, OFF_FLAG4, 99)
        def code4():
            A(f"v_and_b32 v254, 63, v0")
            A(f"s_and_b32 s{sTMP}, s{f2.R.sT}, 15")
            A(f"s_lshl_b32 s{sTMP}, s{sTMP}, 6")
            A(f"v_add_u32 v254, s{sTMP}, v254")
            A(f"v_lshlrev_b32 v254, 2, v254")
        def h_issue4():
            code4()
            A(f"s_mov_b32 s{sTMP}, {OFF_FLAG4}")
            A(f"buffer_load_dword v250, v254, {srd(srdF)}, s{sTMP} offen sc1")
            vm.issue("poll4")
        def h_check4():
            check_one("poll4", OFF_FLAG4)
            f2.final_loads(A, vm)
        f2.main(A, vm, hooks={1: flag4, 6: h_issue4, 10: h_check4}, pre_issued=npre)
        self.stamp("f2 loop end")
        f2.epilogue(A, vm)
        self.stamp("end")
        self.dump_stamps()
        A("s_endpgm")

    def build(self):
        A = self.A
        A(f"s_cmp_ge_u32 s2, 256")
        A(f"s_cbranch_scc1 K_exit")
        A(f"s_load_dwordx16 s[68:83], s[0:1], 0")
        A(f"s_load_dwordx4 s[84:87], s[0:1], 64")
        A(f"s_load_dwordx2 s[88:89], s[0:1], 80")
        if self.stamps: A("v_mov_b32 v255, 0")
        A(f"s_mov_b32 s{sID}, s2")
        A(f"v_lshrrev_b32 v4, 6, v0")
        A("s_nop 0")
        A(f"v_readfirstlane_b32 s20, v4")
        A("s_waitcnt lgkmcnt(0)")
        A(f"s_load_dword s{sNONCE}, s[{pWS}:{pWS+1}], {OFF_EPOCH}")
        A.srd(srdF, pWS, SZ_FLAGS)
        self.body()
        A("K_exit:")
        A("s_endpgm")
        lines, n = hazard.fix(A.l)
        return lines

HEADER = open(os.path.join(os.path.dirname(os.path.abspath(__file__)), "header.txt")).read()
def full_source(**kw):
    g = Gen(**kw)
    body = "\n".join(g.build())
    src = HEADER + f"""; @launch grid=(256,1,1) block=(256,1,1) lds=163840
.amdgcn_target "amdgcn-amd-amdhsa--gfx950"
.text
.globl {NAME}
.p2align 8
.type {NAME},@function
{NAME}:
{body}
.section .rodata,"a"
.p2align 6
.amdhsa_kernel {NAME}
  .amdhsa_next_free_vgpr 512
  .amdhsa_next_free_sgpr 102
  .amdhsa_accum_offset 256
  .amdhsa_group_segment_fixed_size 0
  .amdhsa_kernarg_size 88
  .amdhsa_user_sgpr_count 2
  .amdhsa_user_sgpr_kernarg_segment_ptr 1
  .amdhsa_system_sgpr_workgroup_id_x 1
.end_amdhsa_kernel
"""
    return src, g
if __name__ == "__main__":
    kw = {}
    for o in sys.argv[2:]:
        k, v_ = o.split("="); kw[k] = eval(v_)
    src, g = full_source(**kw)
    out = sys.argv[1] if len(sys.argv) > 1 else "gated_mix__spectral_gfnet__swiglu_ffn__prompt.s"
    open(out, "w").write(src)
    print("wrote", out, len(src), "bytes")
```

```python
import sys, os
sys.path.insert(0, os.path.dirname(os.path.abspath(__file__)))
from asmlib import *
from layout import *
import f1, f2, g2, aux, hazard

NAME = "gated_mix__spectral_gfnet__swiglu_ffn__prompt_kernel"
pAX, pWR, pWI, pBX, pWG, pWU, pWD, pGW, pOUT, pDBG, pWS = 68, 70, 72, 74, 76, 78, 80, 82, 84, 86, 88
sNONCE, srdF, sSPIN, sTMP, sID = 90, 92, 96, 97, 98
srdD = 0
SPIN_MAX = 20000
import os
if os.environ.get('NOSPIN'): SPIN_MAX = 0

class Gen:
    def __init__(self, stamps=False, order="AB", gemm_first=True, exp="", ta2=12, tf1=-1, d2=2, nwa2=5, early3=True, npre=3, dep2at=3, wput=2, wputr=4, codepf=1):
        self.codepf = codepf
        self.wput = wput; self.wputr = wputr
        self.dep2at = dep2at
        self.early3 = early3; self.npre = npre
        self.exp = exp; self.ta2 = ta2; self.tf1 = tf1; self.d2 = d2; self.nwa2 = nwa2
        self.A = Asm("K"); self.stamps = stamps; self.ns = 0; self.names = {}
        self.gemm_first = gemm_first
        self.dbg_sel = {"gemm": [(0,"start",1),(1,"issued",0),(2,"consts",0),(3,"a1",0),(4,"preps",0),(5,"flag1",0),(6,"dep1",0),(7,"a2 start",0),(8,"a2 end",0),
                                 (9,"f1 loop end",0),(10,"f1 epi",0),(11,"a3 elem",0),(12,"a3 core",0),(13,"dep3",0),(14,"f2 loop end",0),(15,"end",0)]}
        g2.ORDER = order; g2.STG = g2.stages()
    def stamp(self, name=None):
        if not self.stamps: return
        if self.stamps == "min" and name not in ("start", "end"): return
        A = self.A
        A("s_memrealtime s[100:101]")
        A("s_waitcnt lgkmcnt(0)")
        A(f"v_writelane_b32 v255, s100, {self.ns}")
        self.names.setdefault(self.role, []).append((self.ns, name))
        self.ns += 1
    def dump_stamps(self):
        if not self.stamps: return
        A = self.A
        if self.stamps == "dbg":
            sel = self.dbg_sel[self.role]
            A("s_waitcnt vmcnt(0) lgkmcnt(0)")
            A.srd(8, pDBG, 256)
            lab = A.label("nd")
            A("s_cmp_lg_u32 s20, 0")
            A(f"s_cbranch_scc1 {lab}")
            names = {nm: idx for idx, nm in self.names[self.role]}
            A("v_mov_b32 v2, 0")
            A("v_mov_b32 v3, 0x40000000")
            for slot, nm, inv in sel:
                A(f"v_readlane_b32 s30, v255, {names[nm]}")
                if inv: A("s_not_b32 s30, s30")
                A(f"s_mov_b32 s31, {4*slot}")
                A(f"v_writelane_b32 v2, s30, {slot}")
                A(f"v_writelane_b32 v3, s31, {slot}")
            A("buffer_atomic_umax v2, v3, s[8:11], 0 offen")
            A(f"{lab}:")
            return
        A("s_waitcnt vmcnt(0) lgkmcnt(0)")
        A.srd(8, pDBG, 1 << 20)
        A("v_lshlrev_b32 v1, 2, v0")
        A(f"s_lshl_b32 s30, s{sID}, 10")
        A("s_add_u32 s30, s30, 4096")
        A("buffer_store_dword v255, v1, s[8:11], s30 offen")
    def flag_store(self, off, s_idx):
        A = self.A
        lab = A.label("sig")
        A(f"s_cmp_lg_u32 s20, 0")
        A(f"s_cbranch_scc1 {lab}")
        A(f"s_lshl_b32 s{sTMP}, s{s_idx}, 2")
        A(f"s_add_u32 s{sTMP}, s{sTMP}, {off}")
        A(f"v_mov_b32 v249, s{sNONCE}")
        A(f"v_mov_b32 v254, 0")
        A("s_mov_b64 exec, 1")
        A(f"buffer_store_dword v249, v254, {srd(srdF)}, s{sTMP} offen sc1")
        A("s_mov_b64 exec, -1")
        A(f"{lab}:")
    def flag_store_all(self, vm, off, s_idx):
        A = self.A
        A(f"s_lshl_b32 s{sTMP}, s{s_idx}, 2")
        A(f"s_add_u32 s{sTMP}, s{sTMP}, {off}")
        A(f"s_cmp_eq_u32 s20, 0")
        A(f"s_cselect_b32 s{sTMP}, s{sTMP}, 0x40000000")
        A(f"v_mov_b32 v249, s{sNONCE}")
        A(f"v_mov_b32 v254, 0")
        A("s_mov_b64 exec, 1")
        A(f"buffer_store_dword v249, v254, {srd(srdF)}, s{sTMP} offen sc1")
        A("s_mov_b64 exec, -1")
        vm.issue("flag")
    def arrive(self, vm, phase):
        A = self.A
        off = (OFF_FLAG1, OFF_FLAG2)[phase]
        A(f"s_lshl_b32 s{sTMP}, s{sID}, 2")
        A(f"s_add_u32 s{sTMP}, s{sTMP}, {off}")
        A(f"s_cmp_eq_u32 s20, 0")
        A(f"s_cselect_b32 s{sTMP}, s{sTMP}, 0x40000000")
        A(f"v_mov_b32 v249, s{sNONCE}")
        A(f"v_and_b32 v254, 7, v0")
        A(f"v_lshlrev_b32 v254, 10, v254")
        A("s_mov_b64 exec, 0xff")
        A(f"buffer_store_dword v249, v254, {srd(srdF)}, s{sTMP} offen sc1")
        A("s_mov_b64 exec, -1")
        vm.issue("flag")
    def cpoll_issue(self, vm, phase):
        A = self.A
        off = (OFF_FLAG1, OFF_FLAG2)[phase]
        A(f"v_and_b32 v254, 63, v0")
        A(f"v_lshlrev_b32 v254, 4, v254")
        A(f"s_and_b32 s{sTMP}, s{sID}, 7")
        A(f"s_lshl_b32 s{sTMP}, s{sTMP}, 10")
        A(f"s_add_u32 s{sTMP}, s{sTMP}, {off}")
        A(f"s_cmp_eq_u32 s20, 0")
        A(f"s_cselect_b32 s{sTMP}, s{sTMP}, 0x40000000")
        A(f"buffer_load_dwordx4 v[250:253], v254, {srd(srdF)}, s{sTMP} offen sc1")
        vm.issue("cpoll")
    def cpoll_check(self, vm, phase):
        A = self.A
        off = (OFF_FLAG1, OFF_FLAG2)[phase]
        lo, ok = A.label("w"), A.label("wok")
        A(f"s_waitcnt vmcnt({vm.wait({'cpoll'})})")
        A(f"s_cmp_lg_u32 s20, 0")
        A(f"s_cbranch_scc1 {ok}")
        A(f"s_mov_b32 s{sSPIN}, 0")
        A(f"{lo}:")
        for k in range(4): A(f"v_xor_b32 v{250+k}, s{sNONCE}, v{250+k}")
        A(f"v_or3_b32 v250, v250, v251, v252")
        A(f"v_or_b32 v250, v250, v253")
        A(f"v_cmp_ne_u32 vcc, 0, v250")
        A(f"s_cbranch_vccz {ok}")
        A(f"s_add_u32 s{sSPIN}, s{sSPIN}, 1")
        A(f"s_cmp_gt_u32 s{sSPIN}, {SPIN_MAX}")
        A(f"s_cbranch_scc1 {ok}")
        A("s_sleep 2")
        A(f"s_and_b32 s{sTMP}, s{sID}, 7")
        A(f"s_lshl_b32 s{sTMP}, s{sTMP}, 10")
        A(f"s_add_u32 s{sTMP}, s{sTMP}, {off}")
        A(f"buffer_load_dwordx4 v[250:253], v254, {srd(srdF)}, s{sTMP} offen sc1")
        A("s_waitcnt vmcnt(0)")
        A(f"s_branch {lo}")
        A(f"{ok}:")
    def flag_store_wave(self, vm, off, s_idx):
        A = self.A
        A(f"s_lshl_b32 s{sTMP}, s{s_idx}, 2")
        A(f"s_add_u32 s{sTMP}, s{sTMP}, {off}")
        A(f"v_mov_b32 v249, s{sNONCE}")
        A(f"v_mov_b32 v254, 0")
        A("s_mov_b64 exec, 1")
        A(f"buffer_store_dword v249, v254, {srd(srdF)}, s{sTMP} offen sc1")
        A("s_mov_b64 exec, -1")
        vm.issue("flag")
    def signal(self, vm, off, s_idx):
        A = self.A
        A("s_waitcnt vmcnt(0)")
        A("s_barrier")
        vm.q = []
        self.flag_store_all(vm, off, s_idx)
    def poll_issue(self, vm, off):
        A = self.A
        A(f"v_and_b32 v254, 63, v0")
        A(f"v_lshlrev_b32 v254, 4, v254")
        A(f"s_mov_b32 s{sTMP}, {off}")
        A(f"buffer_load_dwordx4 v[250:253], v254, {srd(srdF)}, s{sTMP} offen sc1")
        vm.issue("poll")
    def poll_check(self, vm, off):
        A = self.A
        lo, ok = A.label("w"), A.label("wok")
        A(f"s_waitcnt vmcnt({vm.wait({'poll'})})")
        A(f"s_mov_b32 s{sSPIN}, 0")
        A(f"{lo}:")
        for k in range(4): A(f"v_xor_b32 v{250+k}, s{sNONCE}, v{250+k}")
        A(f"v_or3_b32 v250, v250, v251, v252")
        A(f"v_or_b32 v250, v250, v253")
        A(f"v_cmp_ne_u32 vcc, 0, v250")
        A(f"s_cbranch_vccz {ok}")
        A(f"s_add_u32 s{sSPIN}, s{sSPIN}, 1")
        A(f"s_cmp_gt_u32 s{sSPIN}, {SPIN_MAX}")
        A(f"s_cbranch_scc1 {ok}")
        A("s_sleep 4")
        A(f"s_mov_b32 s{sTMP}, {off}")
        A(f"buffer_load_dwordx4 v[250:253], v254, {srd(srdF)}, s{sTMP} offen sc1")
        A("s_waitcnt vmcnt(0)")
        A(f"s_branch {lo}")
        A(f"{ok}:")
    def wait_all(self, vm, off):
        self.poll_issue(vm, off); self.poll_check(vm, off)
    def wait_idx(self, vm, off, v_idx_code):
        A = self.A
        lo, ok = A.label("w"), A.label("wok")
        v_idx_code()
        A(f"s_mov_b32 s{sSPIN}, 0")
        A(f"s_mov_b32 s{sTMP}, {off}")
        A(f"{lo}:")
        A(f"buffer_load_dword v250, v254, {srd(srdF)}, s{sTMP} offen sc1")
        A("s_waitcnt vmcnt(0)")
        A(f"v_cmp_ne_u32 vcc, s{sNONCE}, v250")
        A(f"s_cbranch_vccz {ok}")
        A(f"s_add_u32 s{sSPIN}, s{sSPIN}, 1")
        A(f"s_cmp_gt_u32 s{sSPIN}, {SPIN_MAX}")
        A(f"s_cbranch_scc1 {ok}")
        A("s_sleep 4")
        A(f"s_branch {lo}")
        A(f"{ok}:")
        vm.q = []

    def body(self):
        A = self.A; self.role = "gemm"; self.ns = 0
        vm = VM()
        TA2 = self.ta2
        self.stamp("start")
        X = self.exp.split("+")
        aux.setup(A, pAX, pWR, pWI, pWD, pGW, pWS)
        issued = set()
        def iss(*ks):
            for k in ks:
                f1.issue(A, vm, *k); issued.add(k)
        def mid():
            if "nopf" not in X and "pflate" not in X: f1.l2_prefetch(A, vm, pWG, pWU)
        aux.issue_loads(A, vm, mid, wd=("wdlate" not in X))
        self.stamp("issued")
        aux.consts_a1(A)
        f1.setup(A, sID, pAX, pWG, pWU, pWS)
        aux.setup_out(A, pWS)
        f1.setup_reads(A)
        A(aux.consts_a2_fill())
        aux.phase1_pre(A)
        self.stamp("consts")
        aux.a1_core(A, vm)
        self.stamp("core")
        if "wdlate" in X: aux.issue_wd(A, vm)
        if "pflate" in X: f1.l2_prefetch(A, vm, pWG, pWU)
        A("s_waitcnt lgkmcnt(0)")
        A(f"s_add_u32 s{sNONCE}, s{sNONCE}, 1")
        A(f"s_waitcnt vmcnt({vm.wait({'ws', 'gw'} | (set() if 'wdlate' in X else {'wd'}))})")
        aux.a1_elem(A, vm)
        self.stamp("a1")
        if "nop1" not in self.exp and "nopreps" not in self.exp:
            iss(("x", 0), ("w", 0))
            aux.wprep(A, vm)
            iss(("w", 1))
            if "wdlate" in X:
                A(f"s_waitcnt vmcnt({vm.wait({'wd'})})")
                A("s_barrier")
            aux.wtprep(A, vm)
            self.stamp("wprep")
            iss(("x", 1), ("w", 2))
            aux.gate(A, vm)

        if 'nop1' in self.exp: A('s_waitcnt vmcnt(0)')
        self.stamp("preps")
        after, pause, extra, before = {}, {}, {}, {}
        extra[self.tf1] = {'st'}
        after[self.tf1] = lambda: (self.arrive(vm, 0), self.stamp("flag1"))
        def a2_issue():
            A(f"s_or_b32 s{sTMP}, s{sID}, s20")
            A(f"s_cmp_eq_u32 s{sTMP}, 0")
            A(f"s_cselect_b32 s{sTMP}, 0, 0x40000000")
            A(f"v_mov_b32 v249, s{sNONCE}")
            A(f"v_mov_b32 v254, 0")
            A("s_mov_b64 exec, 1")
            A(f"buffer_store_dword v249, v254, {srd(srdF)}, s{sTMP} offen sc1")
            A("s_mov_b64 exec, -1")
            vm.issue("flag")
            self.stamp("dep1")
            aux.a2_loads(A, vm, pWS)
            f2.setup_w(A, sID, pWS)
        NW_A2 = self.nwa2
        watoms = f2.w_loads(range(NW_A2))
        def a2_run():
            lab, lab2 = A.label("noa2"), A.label("a2d")
            self.stamp("a2 start")
            A(f"s_waitcnt vmcnt({vm.wait({'a2in'})})")
            A(f"s_cmp_ge_u32 s{sID}, {0 if 'noa2' in self.exp else 162}")
            A(f"s_cbranch_scc1 {lab}")
            v2 = VM()
            aux.a2(A, v2, pWS, waited=True, weave=list(watoms))
            A(f"s_branch {lab2}")
            A(f"{lab}:")
            for ins in watoms: A(ins)
            A(f"{lab2}:")
            for k in range(len(watoms)): vm.issue(f"W{k//5}")
            vm.issue('zst', 4)
            self.stamp("a2 end")
        after[TA2-3] = lambda: self.cpoll_issue(vm, 0)
        before[TA2-1] = lambda: self.cpoll_check(vm, 0)
        after[TA2-1] = a2_issue
        pause[TA2] = a2_run
        extra[TA2+self.d2] = {'zst', 'gst'}
        after[TA2+self.d2] = lambda: self.arrive(vm, 1)
        if self.dep2at < 0:
            after[16] = lambda: self.cpoll_issue(vm, 1)
            before[18] = lambda: self.cpoll_check(vm, 1)
        if "fine" in self.exp:
            for t in range(0, 19, 2):
                def mk(t, old):
                    def f():
                        if old: old()
                        self.stamp(f"bar{t}")
                    return f
                after[t] = mk(t, after.get(t))
        fl = []
        f1.main(A, vm, issued, fill=fl, after_barrier=after, pause=pause, late=[("w", 3), ("x", 2), ("w", 4), ("w", 5)], extra_need=extra, before_barrier=before)
        self.stamp("f1 loop end")
        f2.setup(A, sID, pWS, pOUT)
        if self.dep2at < 0:
            self.stamp("dep2")
            aux.a3_loads(A, vm, pWS)
        atoms = [(ins, f"W{self.nwa2 + k//5}") for k, ins in enumerate(f2.w_loads(range(self.nwa2, 10)))]
        def put(n):
            for _ in range(n):
                if atoms:
                    ins, tag = atoms.pop(0); A(ins); vm.issue(tag)
        def btw(k):
            if self.dep2at < 0 or k > self.dep2at: put(self.wput)
            if self.dep2at >= 0:
                if k == max(0, self.dep2at - 2): self.cpoll_issue(vm, 1)
                if k == self.dep2at:
                    self.cpoll_check(vm, 1)
                    A("s_barrier")
                    self.stamp("dep2")
                    aux.a3_loads(A, vm, pWS)
        f1.epilogue(A, vm, pWS, between=btw)
        self.stamp("f1 epi")
        A(f"s_lshl_b32 s{sTMP}, s{f1.R.smt}, 1")
        A(f"s_lshr_b32 s99, s20, 1")
        A(f"s_add_u32 s{sTMP}, s{sTMP}, s99")
        A(f"s_lshl_b32 s{sTMP}, s{sTMP}, 5")
        A(f"s_lshl_b32 s99, s{f1.R.sft}, 1")
        A(f"s_add_u32 s{sTMP}, s{sTMP}, s99")
        A(f"s_and_b32 s99, s20, 1")
        A(f"s_add_u32 s99, s{sTMP}, s99")
        def extra(rnd):
            if rnd > 0: put(self.wputr)
            if rnd == 1:
                A(f"s_waitcnt vmcnt({vm.wait({'hst'})})")
                self.flag_store_wave(vm, OFF_FLAG3, 99)
        aux.a3_elem(A, vm, extra)
        put(100)
        A("s_barrier")
        self.stamp("a3 elem")
        f2.setup2(A, pWS, pOUT)
        def poll3_issue():
            A(f"v_and_b32 v254, 31, v0")
            A(f"s_lshl_b32 s{sTMP}, s{f2.R.sT}, 5")
            A(f"v_add_u32 v254, s{sTMP}, v254")
            A(f"v_lshlrev_b32 v254, 2, v254")
            A(f"s_mov_b32 s{sTMP}, {OFF_FLAG3}")
            A(f"buffer_load_dword v250, v254, {srd(srdF)}, s{sTMP} offen sc1")
            vm.issue("poll3")
        def check_one(tag, off):
            lo, ok = A.label("w"), A.label("wok")
            A(f"s_waitcnt vmcnt({vm.wait({tag})})")
            A(f"s_mov_b32 s{sSPIN}, 0")
            A(f"{lo}:")
            A(f"v_cmp_ne_u32 vcc, s{sNONCE}, v250")
            A(f"s_cbranch_vccz {ok}")
            A(f"s_add_u32 s{sSPIN}, s{sSPIN}, 1")
            A(f"s_cmp_gt_u32 s{sSPIN}, {SPIN_MAX}")
            A(f"s_cbranch_scc1 {ok}")
            A("s_sleep 4")
            A(f"s_mov_b32 s{sTMP}, {off}")
            A(f"buffer_load_dword v250, v254, {srd(srdF)}, s{sTMP} offen sc1")
            A("s_waitcnt vmcnt(0)")
            A(f"s_branch {lo}")
            A(f"{ok}:")
        npre = self.npre
        if self.early3:
            poll3_issue()
            def mid():
                check_one("poll3", OFF_FLAG3)
                for i in range(npre):
                    A(f2.h_loads(i)); vm.issue(f"h{i}", 4)
            aux.a3_core(A, vm, pWS, mid=mid)
        else:
            aux.a3_core(A, vm, pWS, mid=poll3_issue)
        for k, ins in enumerate(f2.w_loads((10, 11))):
            A(ins); vm.issue(f"W{10 + k//5}")
        self.stamp("a3 core")
        if not self.early3:
            check_one("poll3", OFF_FLAG3)
            npre = 0
        self.stamp("dep3")
        def flag4():
            A(f"s_waitcnt vmcnt({vm.wait({'gast'})})")
            A(f"s_lshl_b32 s99, s{sID}, 2")
            A(f"s_add_u32 s99, s99, s20")
            self.flag_store_wave(vm, OFF_FLAG4, 99)
        def code4():
            A(f"v_and_b32 v254, 63, v0")
            A(f"s_and_b32 s{sTMP}, s{f2.R.sT}, 15")
            A(f"s_lshl_b32 s{sTMP}, s{sTMP}, 6")
            A(f"v_add_u32 v254, s{sTMP}, v254")
            A(f"v_lshlrev_b32 v254, 2, v254")
        def h_issue4():
            code4()
            A(f"s_mov_b32 s{sTMP}, {OFF_FLAG4}")
            A(f"buffer_load_dword v250, v254, {srd(srdF)}, s{sTMP} offen sc1")
            vm.issue("poll4")
        def h_check4():
            check_one("poll4", OFF_FLAG4)
            f2.final_loads(A, vm)
        f2.main(A, vm, hooks={1: flag4, 6: h_issue4, 10: h_check4}, pre_issued=npre)
        self.stamp("f2 loop end")
        f2.epilogue(A, vm)
        self.stamp("end")
        self.dump_stamps()
        A("s_endpgm")

    def build(self):
        A = self.A
        A(f"s_cmp_ge_u32 s2, 256")
        A(f"s_cbranch_scc1 K_exit")
        A(f"s_load_dwordx16 s[68:83], s[0:1], 0")
        A(f"s_load_dwordx4 s[84:87], s[0:1], 64")
        A(f"s_load_dwordx2 s[88:89], s[0:1], 80")
        if self.stamps: A("v_mov_b32 v255, 0")
        A(f"s_mov_b32 s{sID}, s2")
        A(f"v_lshrrev_b32 v4, 6, v0")
        A("s_nop 0")
        A(f"v_readfirstlane_b32 s20, v4")
        A("s_waitcnt lgkmcnt(0)")
        A(f"s_load_dword s{sNONCE}, s[{pWS}:{pWS+1}], {OFF_EPOCH}")
        if self.codepf:
            A("s_getpc_b64 s[4:5]")
            A("K_pc:")
            A("s_and_b32 s5, s5, 0xffff")
            A("s_mov_b32 s6, K_exit-K_pc")
            A("s_mov_b32 s7, 0x20000")
            A("v_lshlrev_b32 v4, 7, v0")
            for k in range(self.codepf):
                A(f"s_mov_b32 s28, {32768*k}")
                A(f"buffer_load_dword v229, v4, s[4:7], s28 offen")
        A.srd(srdF, pWS, SZ_FLAGS)
        self.body()
        A("K_exit:")
        A("s_endpgm")
        lines, n = hazard.fix(A.l)
        return lines

HEADER = open(os.path.join(os.path.dirname(os.path.abspath(__file__)), "header.txt")).read()
def full_source(**kw):
    g = Gen(**kw)
    body = "\n".join(g.build())
    src = HEADER + f"""; @launch grid=(256,1,1) block=(256,1,1) lds=163840
.amdgcn_target "amdgcn-amd-amdhsa--gfx950"
.text
.globl {NAME}
.p2align 8
.type {NAME},@function
{NAME}:
{body}
.section .rodata,"a"
.p2align 6
.amdhsa_kernel {NAME}
  .amdhsa_next_free_vgpr 512
  .amdhsa_next_free_sgpr 102
  .amdhsa_accum_offset 256
  .amdhsa_group_segment_fixed_size 0
  .amdhsa_kernarg_size 88
  .amdhsa_user_sgpr_count 2
  .amdhsa_user_sgpr_kernarg_segment_ptr 1
  .amdhsa_system_sgpr_workgroup_id_x 1
.end_amdhsa_kernel
"""
    return src, g
if __name__ == "__main__":
    kw = {}
    for o in sys.argv[2:]:
        k, v_ = o.split("="); kw[k] = eval(v_)
    src, g = full_source(**kw)
    out = sys.argv[1] if len(sys.argv) > 1 else "gated_mix__spectral_gfnet__swiglu_ffn__prompt.s"
    open(out, "w").write(src)
    print("wrote", out, len(src), "bytes")
```

```python
import sys, os
sys.path.insert(0, os.path.dirname(os.path.abspath(__file__)))
from asmlib import *
from layout import *
import f1, f2, g2, aux, hazard

NAME = "gated_mix__spectral_gfnet__swiglu_ffn__prompt_kernel"
pAX, pWR, pWI, pBX, pWG, pWU, pWD, pGW, pOUT, pDBG, pWS = 68, 70, 72, 74, 76, 78, 80, 82, 84, 86, 88
sNONCE, srdF, sSPIN, sTMP, sID = 90, 92, 96, 97, 98
srdD = 0
SPIN_MAX = 20000
import os
if os.environ.get('NOSPIN'): SPIN_MAX = 0

class Gen:
    def __init__(self, stamps=False, order="AB", gemm_first=True, exp="", ta2=12, tf1=-1, d2=2, nwa2=5, early3=True, npre=3, dep2at=3, wput=2, wputr=4, codepf=1, tlbpf=0):
        self.tlbpf = tlbpf
        self.codepf = codepf
        self.wput = wput; self.wputr = wputr
        self.dep2at = dep2at
        self.early3 = early3; self.npre = npre
        self.exp = exp; self.ta2 = ta2; self.tf1 = tf1; self.d2 = d2; self.nwa2 = nwa2
        self.A = Asm("K"); self.stamps = stamps; self.ns = 0; self.names = {}
        self.gemm_first = gemm_first
        self.dbg_sel = {"gemm": [(0,"start",1),(1,"issued",0),(2,"consts",0),(3,"a1",0),(4,"preps",0),(5,"flag1",0),(6,"dep1",0),(7,"a2 start",0),(8,"a2 end",0),
                                 (9,"f1 loop end",0),(10,"f1 epi",0),(11,"a3 elem",0),(12,"a3 core",0),(13,"dep3",0),(14,"f2 loop end",0),(15,"end",0)]}
        g2.ORDER = order; g2.STG = g2.stages()
    def stamp(self, name=None):
        if not self.stamps: return
        if self.stamps == "min" and name not in ("start", "end"): return
        A = self.A
        A("s_memrealtime s[100:101]")
        A("s_waitcnt lgkmcnt(0)")
        A(f"v_writelane_b32 v255, s100, {self.ns}")
        self.names.setdefault(self.role, []).append((self.ns, name))
        self.ns += 1
    def dump_stamps(self):
        if not self.stamps: return
        A = self.A
        if self.stamps == "dbg":
            sel = self.dbg_sel[self.role]
            A("s_waitcnt vmcnt(0) lgkmcnt(0)")
            A.srd(8, pDBG, 256)
            lab = A.label("nd")
            A("s_cmp_lg_u32 s20, 0")
            A(f"s_cbranch_scc1 {lab}")
            names = {nm: idx for idx, nm in self.names[self.role]}
            A("v_mov_b32 v2, 0")
            A("v_mov_b32 v3, 0x40000000")
            for slot, nm, inv in sel:
                A(f"v_readlane_b32 s30, v255, {names[nm]}")
                if inv: A("s_not_b32 s30, s30")
                A(f"s_mov_b32 s31, {4*slot}")
                A(f"v_writelane_b32 v2, s30, {slot}")
                A(f"v_writelane_b32 v3, s31, {slot}")
            A("buffer_atomic_umax v2, v3, s[8:11], 0 offen")
            A(f"{lab}:")
            return
        A("s_waitcnt vmcnt(0) lgkmcnt(0)")
        A.srd(8, pDBG, 1 << 20)
        A("v_lshlrev_b32 v1, 2, v0")
        A(f"s_lshl_b32 s30, s{sID}, 10")
        A("s_add_u32 s30, s30, 4096")
        A("buffer_store_dword v255, v1, s[8:11], s30 offen")
    def flag_store(self, off, s_idx):
        A = self.A
        lab = A.label("sig")
        A(f"s_cmp_lg_u32 s20, 0")
        A(f"s_cbranch_scc1 {lab}")
        A(f"s_lshl_b32 s{sTMP}, s{s_idx}, 2")
        A(f"s_add_u32 s{sTMP}, s{sTMP}, {off}")
        A(f"v_mov_b32 v249, s{sNONCE}")
        A(f"v_mov_b32 v254, 0")
        A("s_mov_b64 exec, 1")
        A(f"buffer_store_dword v249, v254, {srd(srdF)}, s{sTMP} offen sc1")
        A("s_mov_b64 exec, -1")
        A(f"{lab}:")
    def flag_store_all(self, vm, off, s_idx):
        A = self.A
        A(f"s_lshl_b32 s{sTMP}, s{s_idx}, 2")
        A(f"s_add_u32 s{sTMP}, s{sTMP}, {off}")
        A(f"s_cmp_eq_u32 s20, 0")
        A(f"s_cselect_b32 s{sTMP}, s{sTMP}, 0x40000000")
        A(f"v_mov_b32 v249, s{sNONCE}")
        A(f"v_mov_b32 v254, 0")
        A("s_mov_b64 exec, 1")
        A(f"buffer_store_dword v249, v254, {srd(srdF)}, s{sTMP} offen sc1")
        A("s_mov_b64 exec, -1")
        vm.issue("flag")
    def arrive(self, vm, phase):
        A = self.A
        off = (OFF_FLAG1, OFF_FLAG2)[phase]
        A(f"s_lshl_b32 s{sTMP}, s{sID}, 2")
        A(f"s_add_u32 s{sTMP}, s{sTMP}, {off}")
        A(f"s_cmp_eq_u32 s20, 0")
        A(f"s_cselect_b32 s{sTMP}, s{sTMP}, 0x40000000")
        A(f"v_mov_b32 v249, s{sNONCE}")
        A(f"v_and_b32 v254, 7, v0")
        A(f"v_lshlrev_b32 v254, 10, v254")
        A("s_mov_b64 exec, 0xff")
        A(f"buffer_store_dword v249, v254, {srd(srdF)}, s{sTMP} offen sc1")
        A("s_mov_b64 exec, -1")
        vm.issue("flag")
    def cpoll_issue(self, vm, phase):
        A = self.A
        off = (OFF_FLAG1, OFF_FLAG2)[phase]
        A(f"v_and_b32 v254, 63, v0")
        A(f"v_lshlrev_b32 v254, 4, v254")
        A(f"s_and_b32 s{sTMP}, s{sID}, 7")
        A(f"s_lshl_b32 s{sTMP}, s{sTMP}, 10")
        A(f"s_add_u32 s{sTMP}, s{sTMP}, {off}")
        A(f"s_cmp_eq_u32 s20, 0")
        A(f"s_cselect_b32 s{sTMP}, s{sTMP}, 0x40000000")
        A(f"buffer_load_dwordx4 v[250:253], v254, {srd(srdF)}, s{sTMP} offen sc1")
        vm.issue("cpoll")
    def cpoll_check(self, vm, phase):
        A = self.A
        off = (OFF_FLAG1, OFF_FLAG2)[phase]
        lo, ok = A.label("w"), A.label("wok")
        A(f"s_waitcnt vmcnt({vm.wait({'cpoll'})})")
        A(f"s_cmp_lg_u32 s20, 0")
        A(f"s_cbranch_scc1 {ok}")
        A(f"s_mov_b32 s{sSPIN}, 0")
        A(f"{lo}:")
        for k in range(4): A(f"v_xor_b32 v{250+k}, s{sNONCE}, v{250+k}")
        A(f"v_or3_b32 v250, v250, v251, v252")
        A(f"v_or_b32 v250, v250, v253")
        A(f"v_cmp_ne_u32 vcc, 0, v250")
        A(f"s_cbranch_vccz {ok}")
        A(f"s_add_u32 s{sSPIN}, s{sSPIN}, 1")
        A(f"s_cmp_gt_u32 s{sSPIN}, {SPIN_MAX}")
        A(f"s_cbranch_scc1 {ok}")
        A("s_sleep 2")
        A(f"s_and_b32 s{sTMP}, s{sID}, 7")
        A(f"s_lshl_b32 s{sTMP}, s{sTMP}, 10")
        A(f"s_add_u32 s{sTMP}, s{sTMP}, {off}")
        A(f"buffer_load_dwordx4 v[250:253], v254, {srd(srdF)}, s{sTMP} offen sc1")
        A("s_waitcnt vmcnt(0)")
        A(f"s_branch {lo}")
        A(f"{ok}:")
    def flag_store_wave(self, vm, off, s_idx):
        A = self.A
        A(f"s_lshl_b32 s{sTMP}, s{s_idx}, 2")
        A(f"s_add_u32 s{sTMP}, s{sTMP}, {off}")
        A(f"v_mov_b32 v249, s{sNONCE}")
        A(f"v_mov_b32 v254, 0")
        A("s_mov_b64 exec, 1")
        A(f"buffer_store_dword v249, v254, {srd(srdF)}, s{sTMP} offen sc1")
        A("s_mov_b64 exec, -1")
        vm.issue("flag")
    def signal(self, vm, off, s_idx):
        A = self.A
        A("s_waitcnt vmcnt(0)")
        A("s_barrier")
        vm.q = []
        self.flag_store_all(vm, off, s_idx)
    def poll_issue(self, vm, off):
        A = self.A
        A(f"v_and_b32 v254, 63, v0")
        A(f"v_lshlrev_b32 v254, 4, v254")
        A(f"s_mov_b32 s{sTMP}, {off}")
        A(f"buffer_load_dwordx4 v[250:253], v254, {srd(srdF)}, s{sTMP} offen sc1")
        vm.issue("poll")
    def poll_check(self, vm, off):
        A = self.A
        lo, ok = A.label("w"), A.label("wok")
        A(f"s_waitcnt vmcnt({vm.wait({'poll'})})")
        A(f"s_mov_b32 s{sSPIN}, 0")
        A(f"{lo}:")
        for k in range(4): A(f"v_xor_b32 v{250+k}, s{sNONCE}, v{250+k}")
        A(f"v_or3_b32 v250, v250, v251, v252")
        A(f"v_or_b32 v250, v250, v253")
        A(f"v_cmp_ne_u32 vcc, 0, v250")
        A(f"s_cbranch_vccz {ok}")
        A(f"s_add_u32 s{sSPIN}, s{sSPIN}, 1")
        A(f"s_cmp_gt_u32 s{sSPIN}, {SPIN_MAX}")
        A(f"s_cbranch_scc1 {ok}")
        A("s_sleep 4")
        A(f"s_mov_b32 s{sTMP}, {off}")
        A(f"buffer_load_dwordx4 v[250:253], v254, {srd(srdF)}, s{sTMP} offen sc1")
        A("s_waitcnt vmcnt(0)")
        A(f"s_branch {lo}")
        A(f"{ok}:")
    def wait_all(self, vm, off):
        self.poll_issue(vm, off); self.poll_check(vm, off)
    def wait_idx(self, vm, off, v_idx_code):
        A = self.A
        lo, ok = A.label("w"), A.label("wok")
        v_idx_code()
        A(f"s_mov_b32 s{sSPIN}, 0")
        A(f"s_mov_b32 s{sTMP}, {off}")
        A(f"{lo}:")
        A(f"buffer_load_dword v250, v254, {srd(srdF)}, s{sTMP} offen sc1")
        A("s_waitcnt vmcnt(0)")
        A(f"v_cmp_ne_u32 vcc, s{sNONCE}, v250")
        A(f"s_cbranch_vccz {ok}")
        A(f"s_add_u32 s{sSPIN}, s{sSPIN}, 1")
        A(f"s_cmp_gt_u32 s{sSPIN}, {SPIN_MAX}")
        A(f"s_cbranch_scc1 {ok}")
        A("s_sleep 4")
        A(f"s_branch {lo}")
        A(f"{ok}:")
        vm.q = []

    def body(self):
        A = self.A; self.role = "gemm"; self.ns = 0
        vm = VM()
        TA2 = self.ta2
        self.stamp("start")
        X = self.exp.split("+")
        aux.setup(A, pAX, pWR, pWI, pWD, pGW, pWS)
        issued = set()
        def iss(*ks):
            for k in ks:
                f1.issue(A, vm, *k); issued.add(k)
        def mid():
            if "nopf" not in X and "pflate" not in X: f1.l2_prefetch(A, vm, pWG, pWU)
        aux.issue_loads(A, vm, mid, wd=("wdlate" not in X))
        self.stamp("issued")
        aux.consts_a1(A)
        f1.setup(A, sID, pAX, pWG, pWU, pWS)
        aux.setup_out(A, pWS)
        f1.setup_reads(A)
        A(aux.consts_a2_fill())
        aux.phase1_pre(A)
        self.stamp("consts")
        aux.a1_core(A, vm)
        self.stamp("core")
        if "wdlate" in X: aux.issue_wd(A, vm)
        if "pflate" in X: f1.l2_prefetch(A, vm, pWG, pWU)
        A("s_waitcnt lgkmcnt(0)")
        A(f"s_add_u32 s{sNONCE}, s{sNONCE}, 1")
        A(f"s_waitcnt vmcnt({vm.wait({'ws', 'gw'} | (set() if 'wdlate' in X else {'wd'}))})")
        aux.a1_elem(A, vm)
        self.stamp("a1")
        if "nop1" not in self.exp and "nopreps" not in self.exp:
            iss(("x", 0), ("w", 0))
            aux.wprep(A, vm)
            iss(("w", 1))
            if "wdlate" in X:
                A(f"s_waitcnt vmcnt({vm.wait({'wd'})})")
                A("s_barrier")
            aux.wtprep(A, vm)
            self.stamp("wprep")
            iss(("x", 1), ("w", 2))
            aux.gate(A, vm)

        if 'nop1' in self.exp: A('s_waitcnt vmcnt(0)')
        self.stamp("preps")
        after, pause, extra, before = {}, {}, {}, {}
        extra[self.tf1] = {'st'}
        after[self.tf1] = lambda: (self.arrive(vm, 0), self.stamp("flag1"))
        def a2_issue():
            A(f"s_or_b32 s{sTMP}, s{sID}, s20")
            A(f"s_cmp_eq_u32 s{sTMP}, 0")
            A(f"s_cselect_b32 s{sTMP}, 0, 0x40000000")
            A(f"v_mov_b32 v249, s{sNONCE}")
            A(f"v_mov_b32 v254, 0")
            A("s_mov_b64 exec, 1")
            A(f"buffer_store_dword v249, v254, {srd(srdF)}, s{sTMP} offen sc1")
            A("s_mov_b64 exec, -1")
            vm.issue("flag")
            self.stamp("dep1")
            aux.a2_loads(A, vm, pWS)
            f2.setup_w(A, sID, pWS)
        NW_A2 = self.nwa2
        watoms = f2.w_loads(range(NW_A2))
        def a2_run():
            lab, lab2 = A.label("noa2"), A.label("a2d")
            self.stamp("a2 start")
            A(f"s_waitcnt vmcnt({vm.wait({'a2in'})})")
            A(f"s_cmp_ge_u32 s{sID}, {0 if 'noa2' in self.exp else 162}")
            A(f"s_cbranch_scc1 {lab}")
            v2 = VM()
            aux.a2(A, v2, pWS, waited=True, weave=list(watoms))
            A(f"s_branch {lab2}")
            A(f"{lab}:")
            for ins in watoms: A(ins)
            A(f"{lab2}:")
            for k in range(len(watoms)): vm.issue(f"W{k//5}")
            vm.issue('zst', 4)
            self.stamp("a2 end")
        after[TA2-3] = lambda: self.cpoll_issue(vm, 0)
        before[TA2-1] = lambda: self.cpoll_check(vm, 0)
        after[TA2-1] = a2_issue
        pause[TA2] = a2_run
        extra[TA2+self.d2] = {'zst', 'gst'}
        after[TA2+self.d2] = lambda: self.arrive(vm, 1)
        if self.dep2at < 0:
            after[16] = lambda: self.cpoll_issue(vm, 1)
            before[18] = lambda: self.cpoll_check(vm, 1)
        if "fine" in self.exp:
            for t in range(0, 19, 2):
                def mk(t, old):
                    def f():
                        if old: old()
                        self.stamp(f"bar{t}")
                    return f
                after[t] = mk(t, after.get(t))
        fl = []
        f1.main(A, vm, issued, fill=fl, after_barrier=after, pause=pause, late=[("w", 3), ("x", 2), ("w", 4), ("w", 5)], extra_need=extra, before_barrier=before)
        self.stamp("f1 loop end")
        f2.setup(A, sID, pWS, pOUT)
        if self.dep2at < 0:
            self.stamp("dep2")
            aux.a3_loads(A, vm, pWS)
        atoms = [(ins, f"W{self.nwa2 + k//5}") for k, ins in enumerate(f2.w_loads(range(self.nwa2, 10)))]
        def put(n):
            for _ in range(n):
                if atoms:
                    ins, tag = atoms.pop(0); A(ins); vm.issue(tag)
        def btw(k):
            if self.dep2at < 0 or k > self.dep2at: put(self.wput)
            if self.dep2at >= 0:
                if k == max(0, self.dep2at - 2): self.cpoll_issue(vm, 1)
                if k == self.dep2at:
                    self.cpoll_check(vm, 1)
                    A("s_barrier")
                    self.stamp("dep2")
                    aux.a3_loads(A, vm, pWS)
        f1.epilogue(A, vm, pWS, between=btw)
        self.stamp("f1 epi")
        A(f"s_lshl_b32 s{sTMP}, s{f1.R.smt}, 1")
        A(f"s_lshr_b32 s99, s20, 1")
        A(f"s_add_u32 s{sTMP}, s{sTMP}, s99")
        A(f"s_lshl_b32 s{sTMP}, s{sTMP}, 5")
        A(f"s_lshl_b32 s99, s{f1.R.sft}, 1")
        A(f"s_add_u32 s{sTMP}, s{sTMP}, s99")
        A(f"s_and_b32 s99, s20, 1")
        A(f"s_add_u32 s99, s{sTMP}, s99")
        def extra(rnd):
            if rnd > 0: put(self.wputr)
            if rnd == 1:
                A(f"s_waitcnt vmcnt({vm.wait({'hst'})})")
                self.flag_store_wave(vm, OFF_FLAG3, 99)
        aux.a3_elem(A, vm, extra)
        put(100)
        A("s_barrier")
        self.stamp("a3 elem")
        f2.setup2(A, pWS, pOUT)
        def poll3_issue():
            A(f"v_and_b32 v254, 31, v0")
            A(f"s_lshl_b32 s{sTMP}, s{f2.R.sT}, 5")
            A(f"v_add_u32 v254, s{sTMP}, v254")
            A(f"v_lshlrev_b32 v254, 2, v254")
            A(f"s_mov_b32 s{sTMP}, {OFF_FLAG3}")
            A(f"buffer_load_dword v250, v254, {srd(srdF)}, s{sTMP} offen sc1")
            vm.issue("poll3")
        def check_one(tag, off):
            lo, ok = A.label("w"), A.label("wok")
            A(f"s_waitcnt vmcnt({vm.wait({tag})})")
            A(f"s_mov_b32 s{sSPIN}, 0")
            A(f"{lo}:")
            A(f"v_cmp_ne_u32 vcc, s{sNONCE}, v250")
            A(f"s_cbranch_vccz {ok}")
            A(f"s_add_u32 s{sSPIN}, s{sSPIN}, 1")
            A(f"s_cmp_gt_u32 s{sSPIN}, {SPIN_MAX}")
            A(f"s_cbranch_scc1 {ok}")
            A("s_sleep 4")
            A(f"s_mov_b32 s{sTMP}, {off}")
            A(f"buffer_load_dword v250, v254, {srd(srdF)}, s{sTMP} offen sc1")
            A("s_waitcnt vmcnt(0)")
            A(f"s_branch {lo}")
            A(f"{ok}:")
        npre = self.npre
        if self.early3:
            poll3_issue()
            def mid():
                check_one("poll3", OFF_FLAG3)
                for i in range(npre):
                    A(f2.h_loads(i)); vm.issue(f"h{i}", 4)
            aux.a3_core(A, vm, pWS, mid=mid)
        else:
            aux.a3_core(A, vm, pWS, mid=poll3_issue)
        for k, ins in enumerate(f2.w_loads((10, 11))):
            A(ins); vm.issue(f"W{10 + k//5}")
        self.stamp("a3 core")
        if not self.early3:
            check_one("poll3", OFF_FLAG3)
            npre = 0
        self.stamp("dep3")
        def flag4():
            A(f"s_waitcnt vmcnt({vm.wait({'gast'})})")
            A(f"s_lshl_b32 s99, s{sID}, 2")
            A(f"s_add_u32 s99, s99, s20")
            self.flag_store_wave(vm, OFF_FLAG4, 99)
        def code4():
            A(f"v_and_b32 v254, 63, v0")
            A(f"s_and_b32 s{sTMP}, s{f2.R.sT}, 15")
            A(f"s_lshl_b32 s{sTMP}, s{sTMP}, 6")
            A(f"v_add_u32 v254, s{sTMP}, v254")
            A(f"v_lshlrev_b32 v254, 2, v254")
        def h_issue4():
            code4()
            A(f"s_mov_b32 s{sTMP}, {OFF_FLAG4}")
            A(f"buffer_load_dword v250, v254, {srd(srdF)}, s{sTMP} offen sc1")
            vm.issue("poll4")
        def h_check4():
            check_one("poll4", OFF_FLAG4)
            f2.final_loads(A, vm)
        f2.main(A, vm, hooks={1: flag4, 6: h_issue4, 10: h_check4}, pre_issued=npre)
        self.stamp("f2 loop end")
        f2.epilogue(A, vm)
        self.stamp("end")
        self.dump_stamps()
        A("s_endpgm")

    def build(self):
        A = self.A
        A(f"s_cmp_ge_u32 s2, 256")
        A(f"s_cbranch_scc1 K_exit")
        A(f"s_load_dwordx16 s[68:83], s[0:1], 0")
        A(f"s_load_dwordx4 s[84:87], s[0:1], 64")
        A(f"s_load_dwordx2 s[88:89], s[0:1], 80")
        if self.stamps: A("v_mov_b32 v255, 0")
        A(f"s_mov_b32 s{sID}, s2")
        A(f"v_lshrrev_b32 v4, 6, v0")
        A("s_nop 0")
        A(f"v_readfirstlane_b32 s20, v4")
        A("s_waitcnt lgkmcnt(0)")
        A(f"s_load_dword s{sNONCE}, s[{pWS}:{pWS+1}], {OFF_EPOCH}")
        if self.codepf:
            A("s_getpc_b64 s[4:5]")
            A("K_pc:")
            A("s_and_b32 s5, s5, 0xffff")
            A("s_mov_b32 s6, K_exit-K_pc")
            A("s_mov_b32 s7, 0x20000")
            A("v_lshlrev_b32 v4, 7, v0")
            for k in range(self.codepf):
                A(f"s_mov_b32 s28, {32768*k}")
                A(f"buffer_load_dword v229, v4, s[4:7], s28 offen")
        if self.tlbpf:
            A.srd(4, pWS, 28 << 20)
            A("v_and_b32 v4, 63, v0")
            A("v_lshlrev_b32 v4, 19, v4")
            A("v_add_u32 v4, 0x7ff80, v4")
            A(f"buffer_load_dword v229, v4, s[4:7], 0 offen")
            A.srd(4, pOUT, 2048*640*2)
            A("v_and_b32 v4, 63, v0")
            A("v_lshlrev_b32 v4, 16, v4")
            A(f"buffer_load_dword v229, v4, s[4:7], 0 offen")
        A.srd(srdF, pWS, SZ_FLAGS)
        self.body()
        A("K_exit:")
        A("s_endpgm")
        lines, n = hazard.fix(A.l)
        return lines

HEADER = open(os.path.join(os.path.dirname(os.path.abspath(__file__)), "header.txt")).read()
def full_source(**kw):
    g = Gen(**kw)
    body = "\n".join(g.build())
    src = HEADER + f"""; @launch grid=(256,1,1) block=(256,1,1) lds=163840
.amdgcn_target "amdgcn-amd-amdhsa--gfx950"
.text
.globl {NAME}
.p2align 8
.type {NAME},@function
{NAME}:
{body}
.section .rodata,"a"
.p2align 6
.amdhsa_kernel {NAME}
  .amdhsa_next_free_vgpr 512
  .amdhsa_next_free_sgpr 102
  .amdhsa_accum_offset 256
  .amdhsa_group_segment_fixed_size 0
  .amdhsa_kernarg_size 88
  .amdhsa_user_sgpr_count 2
  .amdhsa_user_sgpr_kernarg_segment_ptr 1
  .amdhsa_system_sgpr_workgroup_id_x 1
.end_amdhsa_kernel
"""
    return src, g
if __name__ == "__main__":
    kw = {}
    for o in sys.argv[2:]:
        k, v_ = o.split("="); kw[k] = eval(v_)
    src, g = full_source(**kw)
    out = sys.argv[1] if len(sys.argv) > 1 else "gated_mix__spectral_gfnet__swiglu_ffn__prompt.s"
    open(out, "w").write(src)
    print("wrote", out, len(src), "bytes")
```

```python
import sys, os
sys.path.insert(0, os.path.dirname(os.path.abspath(__file__)))
from asmlib import *
from layout import *
import f1, f2, g2, aux, hazard

NAME = "gated_mix__spectral_gfnet__swiglu_ffn__prompt_kernel"
pAX, pWR, pWI, pBX, pWG, pWU, pWD, pGW, pOUT, pDBG, pWS = 68, 70, 72, 74, 76, 78, 80, 82, 84, 86, 88
sNONCE, srdF, sSPIN, sTMP, sID = 90, 92, 96, 97, 98
srdD = 0
SPIN_MAX = 20000
import os
if os.environ.get('NOSPIN'): SPIN_MAX = 0

class Gen:
    def __init__(self, stamps=False, order="AB", gemm_first=True, exp="", ta2=11, tf1=-1, d2=2, nwa2=7, early3=True, npre=3, dep2at=9, wput=2, wputr=4, codepf=1, tlbpf=0, twt=-1, wsbase=0, map48=False, ahead=4):
        f2.MAP48 = map48; f2.AHEAD = ahead
        self.wsbase = wsbase
        self.twt = twt
        self.tlbpf = tlbpf
        self.codepf = codepf
        self.wput = wput; self.wputr = wputr
        self.dep2at = dep2at
        self.early3 = early3; self.npre = npre
        self.exp = exp; self.ta2 = ta2; self.tf1 = tf1; self.d2 = d2; self.nwa2 = nwa2
        self.A = Asm("K"); self.stamps = stamps; self.ns = 0; self.names = {}
        self.gemm_first = gemm_first
        self.dbg_sel = {"gemm": [(0,"start",1),(1,"consts",0),(2,"core",0),(3,"a1",0),(4,"preps",0),(5,"flag1",0),(6,"dep1",0),(7,"a2 start",0),(8,"a2 end",0),
                                 (9,"f1 loop end",0),(10,"f1 epi",0),(11,"dep2",0),(12,"a3 elem",0),(13,"a3 core",0),(14,"f2 loop end",0),(15,"end",0)]}
        g2.ORDER = order; g2.STG = g2.stages()
    def stamp(self, name=None):
        if not self.stamps: return
        if self.stamps == "min" and name not in ("start", "end"): return
        A = self.A
        A("s_memrealtime s[100:101]")
        A("s_waitcnt lgkmcnt(0)")
        A(f"v_writelane_b32 v255, s100, {self.ns}")
        self.names.setdefault(self.role, []).append((self.ns, name))
        self.ns += 1
    def dump_stamps(self):
        if not self.stamps: return
        A = self.A
        if self.stamps == "dbg":
            sel = self.dbg_sel[self.role]
            A("s_waitcnt vmcnt(0) lgkmcnt(0)")
            A.srd(8, pDBG, 256)
            lab = A.label("nd")
            A("s_cmp_lg_u32 s20, 0")
            A(f"s_cbranch_scc1 {lab}")
            names = {nm: idx for idx, nm in self.names[self.role]}
            A("v_mov_b32 v2, 0")
            A("v_mov_b32 v3, 0x40000000")
            for slot, nm, inv in sel:
                A(f"v_readlane_b32 s30, v255, {names[nm]}")
                if inv: A("s_not_b32 s30, s30")
                A(f"s_mov_b32 s31, {4*slot}")
                A(f"v_writelane_b32 v2, s30, {slot}")
                A(f"v_writelane_b32 v3, s31, {slot}")
            A("buffer_atomic_umax v2, v3, s[8:11], 0 offen")
            A(f"{lab}:")
            return
        A("s_waitcnt vmcnt(0) lgkmcnt(0)")
        A.srd(8, pDBG, 1 << 20)
        A("v_lshlrev_b32 v1, 2, v0")
        A(f"s_lshl_b32 s30, s{sID}, 10")
        A("s_add_u32 s30, s30, 4096")
        A("buffer_store_dword v255, v1, s[8:11], s30 offen")
    def flag_store(self, off, s_idx):
        A = self.A
        lab = A.label("sig")
        A(f"s_cmp_lg_u32 s20, 0")
        A(f"s_cbranch_scc1 {lab}")
        A(f"s_lshl_b32 s{sTMP}, s{s_idx}, 2")
        A(f"s_add_u32 s{sTMP}, s{sTMP}, {off}")
        A(f"v_mov_b32 v249, s{sNONCE}")
        A(f"v_mov_b32 v254, 0")
        A("s_mov_b64 exec, 1")
        A(f"buffer_store_dword v249, v254, {srd(srdF)}, s{sTMP} offen sc1")
        A("s_mov_b64 exec, -1")
        A(f"{lab}:")
    def flag_store_all(self, vm, off, s_idx):
        A = self.A
        A(f"s_lshl_b32 s{sTMP}, s{s_idx}, 2")
        A(f"s_add_u32 s{sTMP}, s{sTMP}, {off}")
        A(f"s_cmp_eq_u32 s20, 0")
        A(f"s_cselect_b32 s{sTMP}, s{sTMP}, 0x40000000")
        A(f"v_mov_b32 v249, s{sNONCE}")
        A(f"v_mov_b32 v254, 0")
        A("s_mov_b64 exec, 1")
        A(f"buffer_store_dword v249, v254, {srd(srdF)}, s{sTMP} offen sc1")
        A("s_mov_b64 exec, -1")
        vm.issue("flag")
    def arrive(self, vm, phase):
        A = self.A
        off = (OFF_FLAG1, OFF_FLAG2, OFF_FLAG1B)[phase]
        A(f"s_lshl_b32 s{sTMP}, s{sID}, 2")
        A(f"s_add_u32 s{sTMP}, s{sTMP}, {off}")
        A(f"s_cmp_eq_u32 s20, 0")
        A(f"s_cselect_b32 s{sTMP}, s{sTMP}, 0x40000000")
        A(f"v_mov_b32 v249, s{sNONCE}")
        A(f"v_and_b32 v254, 7, v0")
        A(f"v_lshlrev_b32 v254, 10, v254")
        A("s_mov_b64 exec, 0xff")
        A(f"buffer_store_dword v249, v254, {srd(srdF)}, s{sTMP} offen sc1")
        A("s_mov_b64 exec, -1")
        vm.issue("flag")
    def cpoll_issue(self, vm, phase):
        A = self.A
        off = (OFF_FLAG1, OFF_FLAG2, OFF_FLAG1B)[phase]
        A(f"v_and_b32 v254, 63, v0")
        A(f"v_lshlrev_b32 v254, 4, v254")
        A(f"s_and_b32 s{sTMP}, s{sID}, 7")
        A(f"s_lshl_b32 s{sTMP}, s{sTMP}, 10")
        A(f"s_add_u32 s{sTMP}, s{sTMP}, {off}")
        A(f"s_cmp_eq_u32 s20, 0")
        A(f"s_cselect_b32 s{sTMP}, s{sTMP}, 0x40000000")
        A(f"buffer_load_dwordx4 v[250:253], v254, {srd(srdF)}, s{sTMP} offen sc1")
        vm.issue("cpoll")
    def cpoll_check(self, vm, phase):
        A = self.A
        off = (OFF_FLAG1, OFF_FLAG2, OFF_FLAG1B)[phase]
        lo, ok = A.label("w"), A.label("wok")
        A(f"s_waitcnt vmcnt({vm.wait({'cpoll'})})")
        A(f"s_cmp_lg_u32 s20, 0")
        A(f"s_cbranch_scc1 {ok}")
        A(f"s_mov_b32 s{sSPIN}, 0")
        A(f"{lo}:")
        for k in range(4): A(f"v_xor_b32 v{250+k}, s{sNONCE}, v{250+k}")
        A(f"v_or3_b32 v250, v250, v251, v252")
        A(f"v_or_b32 v250, v250, v253")
        A(f"v_cmp_ne_u32 vcc, 0, v250")
        A(f"s_cbranch_vccz {ok}")
        A(f"s_add_u32 s{sSPIN}, s{sSPIN}, 1")
        A(f"s_cmp_gt_u32 s{sSPIN}, {SPIN_MAX}")
        A(f"s_cbranch_scc1 {ok}")
        A("s_sleep 2")
        A(f"v_and_b32 v254, 63, v0")
        A(f"v_lshlrev_b32 v254, 4, v254")
        A(f"s_and_b32 s{sTMP}, s{sID}, 7")
        A(f"s_lshl_b32 s{sTMP}, s{sTMP}, 10")
        A(f"s_add_u32 s{sTMP}, s{sTMP}, {off}")
        A(f"buffer_load_dwordx4 v[250:253], v254, {srd(srdF)}, s{sTMP} offen sc1")
        A("s_waitcnt vmcnt(0)")
        A(f"s_branch {lo}")
        A(f"{ok}:")
    def flag_store_wave(self, vm, off, s_idx):
        A = self.A
        A(f"s_lshl_b32 s{sTMP}, s{s_idx}, 2")
        A(f"s_add_u32 s{sTMP}, s{sTMP}, {off}")
        A(f"v_mov_b32 v249, s{sNONCE}")
        A(f"v_mov_b32 v254, 0")
        A("s_mov_b64 exec, 1")
        A(f"buffer_store_dword v249, v254, {srd(srdF)}, s{sTMP} offen sc1")
        A("s_mov_b64 exec, -1")
        vm.issue("flag")
    def signal(self, vm, off, s_idx):
        A = self.A
        A("s_waitcnt vmcnt(0)")
        A("s_barrier")
        vm.q = []
        self.flag_store_all(vm, off, s_idx)
    def poll_issue(self, vm, off):
        A = self.A
        A(f"v_and_b32 v254, 63, v0")
        A(f"v_lshlrev_b32 v254, 4, v254")
        A(f"s_mov_b32 s{sTMP}, {off}")
        A(f"buffer_load_dwordx4 v[250:253], v254, {srd(srdF)}, s{sTMP} offen sc1")
        vm.issue("poll")
    def poll_check(self, vm, off):
        A = self.A
        lo, ok = A.label("w"), A.label("wok")
        A(f"s_waitcnt vmcnt({vm.wait({'poll'})})")
        A(f"s_mov_b32 s{sSPIN}, 0")
        A(f"{lo}:")
        for k in range(4): A(f"v_xor_b32 v{250+k}, s{sNONCE}, v{250+k}")
        A(f"v_or3_b32 v250, v250, v251, v252")
        A(f"v_or_b32 v250, v250, v253")
        A(f"v_cmp_ne_u32 vcc, 0, v250")
        A(f"s_cbranch_vccz {ok}")
        A(f"s_add_u32 s{sSPIN}, s{sSPIN}, 1")
        A(f"s_cmp_gt_u32 s{sSPIN}, {SPIN_MAX}")
        A(f"s_cbranch_scc1 {ok}")
        A("s_sleep 4")
        A(f"s_mov_b32 s{sTMP}, {off}")
        A(f"buffer_load_dwordx4 v[250:253], v254, {srd(srdF)}, s{sTMP} offen sc1")
        A("s_waitcnt vmcnt(0)")
        A(f"s_branch {lo}")
        A(f"{ok}:")
    def wait_all(self, vm, off):
        self.poll_issue(vm, off); self.poll_check(vm, off)
    def wait_idx(self, vm, off, v_idx_code):
        A = self.A
        lo, ok = A.label("w"), A.label("wok")
        v_idx_code()
        A(f"s_mov_b32 s{sSPIN}, 0")
        A(f"s_mov_b32 s{sTMP}, {off}")
        A(f"{lo}:")
        A(f"buffer_load_dword v250, v254, {srd(srdF)}, s{sTMP} offen sc1")
        A("s_waitcnt vmcnt(0)")
        A(f"v_cmp_ne_u32 vcc, s{sNONCE}, v250")
        A(f"s_cbranch_vccz {ok}")
        A(f"s_add_u32 s{sSPIN}, s{sSPIN}, 1")
        A(f"s_cmp_gt_u32 s{sSPIN}, {SPIN_MAX}")
        A(f"s_cbranch_scc1 {ok}")
        A("s_sleep 4")
        A(f"s_branch {lo}")
        A(f"{ok}:")
        vm.q = []

    def body(self):
        A = self.A; self.role = "gemm"; self.ns = 0
        vm = VM()
        TA2 = self.ta2
        self.stamp("start")
        X = self.exp.split("+")
        aux.setup(A, pAX, pWR, pWI, pWD, pGW, pWS)
        issued = set()
        def iss(*ks):
            for k in ks:
                f1.issue(A, vm, *k); issued.add(k)
        def mid():
            if "nopf" not in X and "pflate" not in X and "pfmid" not in X and "pf2" not in X and "pf0" not in X: f1.l2_prefetch(A, vm, pWG, pWU)
        if "pf0" in X: f1.l2_prefetch(A, vm, pWG, pWU)
        aux.issue_loads(A, vm, mid, wd=("wdlate" not in X and "wdmid" not in X and "wd2" not in X and "wd3" not in X))
        self.stamp("issued")
        aux.consts_a1(A)
        f1.setup(A, sID, pAX, pWG, pWU, pWS)
        aux.setup_out(A, pWS)
        f1.setup_reads(A)
        A(aux.consts_a2_fill())
        aux.phase1_pre(A)
        if "wdmid" in X: aux.issue_wd(A, vm)
        if "pfmid" in X: f1.l2_prefetch(A, vm, pWG, pWU)
        self.stamp("consts")
        aux.a1_core(A, vm)
        self.stamp("core")
        if "wdlate" in X: aux.issue_wd(A, vm)
        if "pflate" in X: f1.l2_prefetch(A, vm, pWG, pWU)
        A("s_waitcnt lgkmcnt(0)")
        A(f"s_add_u32 s{sNONCE}, s{sNONCE}, 1")
        A(f"s_waitcnt vmcnt({vm.wait({'ws', 'gw'} | (set() if ('wdlate' in X or 'wdmid' in X or 'wd2' in X or 'wd3' in X) else {'wd'}))})")
        if "pf2" in X: f1.l2_prefetch(A, vm, pWG, pWU)
        if "wd2" in X: aux.issue_wd(A, vm)
        self.stamp("wswait")
        aux.a1_elem(A, vm)
        self.stamp("a1")
        if "nop1" not in self.exp and "nopreps" not in self.exp:
            iss(("x", 0), ("w", 0))
            self.stamp("x0w0")
            aux.wprep(A, vm)
            self.stamp("wp")
            iss(("w", 1))
            if "wdlate" in X or "wdmid" in X:
                A(f"s_waitcnt vmcnt({vm.wait({'wd'})})")
                A("s_barrier")
            if self.twt < 0: aux.wtprep(A, vm)
            self.stamp("wprep")
            iss(("x", 1), ("w", 2))
            aux.gate(A, vm)

        if 'nop1' in self.exp: A('s_waitcnt vmcnt(0)')
        self.stamp("preps")
        class Hooks(dict):
            def __setitem__(self, k, fn):
                old = self.get(k)
                dict.__setitem__(self, k, fn if old is None else (lambda o=old, n=fn: (o(), n())))
        class Tags(dict):
            def __setitem__(self, k, tags):
                dict.__setitem__(self, k, set(self.get(k, ())) | set(tags))
        after, pause, extra, before = Hooks(), Hooks(), Tags(), Hooks()
        extra[self.tf1] = {'st'}
        after[self.tf1] = lambda: (self.arrive(vm, 0), self.stamp("flag1"), aux.issue_wd(A, vm) if 'wd3' in X else None)
        def a2_issue():
            A(f"s_or_b32 s{sTMP}, s{sID}, s20")
            A(f"s_cmp_eq_u32 s{sTMP}, 0")
            A(f"s_cselect_b32 s{sTMP}, 0, 0x40000000")
            A(f"v_mov_b32 v249, s{sNONCE}")
            A(f"v_mov_b32 v254, 0")
            A("s_mov_b64 exec, 1")
            A(f"buffer_store_dword v249, v254, {srd(srdF)}, s{sTMP} offen sc1")
            A("s_mov_b64 exec, -1")
            vm.issue("flag")
            self.stamp("dep1")
            aux.a2_loads(A, vm, pWS)
            f2.setup_w(A, sID, pWS)
        NW_A2 = self.nwa2
        watoms = f2.w_loads(range(NW_A2))
        def a2_run():
            lab, lab2 = A.label("noa2"), A.label("a2d")
            self.stamp("a2 start")
            A(f"s_waitcnt vmcnt({vm.wait({'a2in'})})")
            A(f"s_cmp_ge_u32 s{sID}, {0 if 'noa2' in self.exp else 162}")
            A(f"s_cbranch_scc1 {lab}")
            v2 = VM()
            aux.a2(A, v2, pWS, waited=True, weave=list(watoms))
            A(f"s_branch {lab2}")
            A(f"{lab}:")
            for ins in watoms: A(ins)
            A(f"{lab2}:")
            for k in range(len(watoms)): vm.issue(f"W{k//5}")
            vm.issue('zst', 4)
            self.stamp("a2 end")
        after[TA2-3] = lambda: self.cpoll_issue(vm, 0)
        before[TA2-1] = lambda: self.cpoll_check(vm, 0)
        after[TA2-1] = a2_issue
        pause[TA2] = a2_run
        if self.twt >= 0:
            if 'wd2' in X or 'wd3' in X: extra[self.twt] = set(extra.get(self.twt, ())) | {'wd'}
            pause[self.twt] = lambda: aux.wtprep(A, vm, tag='wtst')
            extra[self.twt + 3] = {'wtst'}
            after[self.twt + 3] = lambda: self.arrive(vm, 2)
            after[TA2-1] = lambda: self.cpoll_issue(vm, 2)
            before[TA2] = lambda: self.cpoll_check(vm, 2)
        extra[TA2+self.d2] = {'zst', 'gst'}
        after[TA2+self.d2] = lambda: self.arrive(vm, 1)
        if self.dep2at < 0:
            after[16] = lambda: self.cpoll_issue(vm, 1)
            before[18] = lambda: self.cpoll_check(vm, 1)
        if "fine" in self.exp:
            for t in range(0, 19, 2):
                def mk(t, old):
                    def f():
                        if old: old()
                        self.stamp(f"bar{t}")
                    return f
                after[t] = (lambda t=t: self.stamp(f"bar{t}"))
        fl = []
        f1.main(A, vm, issued, fill=fl, after_barrier=after, pause=pause, late=[("w", 3), ("x", 2), ("w", 4), ("w", 5)], extra_need=extra, before_barrier=before)
        self.stamp("f1 loop end")
        f2.setup(A, sID, pWS, pOUT)
        if self.dep2at < 0:
            self.stamp("dep2")
            aux.a3_loads(A, vm, pWS)
        atoms = [(ins, f"W{self.nwa2 + k//5}") for k, ins in enumerate(f2.w_loads(range(self.nwa2, 10)))]
        def put(n):
            for _ in range(n):
                if atoms:
                    ins, tag = atoms.pop(0); A(ins); vm.issue(tag)
        def btw(k):
            if self.dep2at == 9:
                if k == 3: self.cpoll_issue(vm, 1)
                return
            if self.dep2at < 0 or k > self.dep2at: put(self.wput)
            if self.dep2at >= 0:
                if k == max(0, self.dep2at - 2): self.cpoll_issue(vm, 1)
                if k == self.dep2at:
                    self.cpoll_check(vm, 1)
                    A("s_barrier")
                    self.stamp("dep2")
                    aux.a3_loads(A, vm, pWS)
        f1.epilogue(A, vm, pWS, between=btw)
        self.stamp("f1 epi")
        A(f"s_lshl_b32 s{sTMP}, s{f1.R.smt}, 1")
        A(f"s_lshr_b32 s99, s20, 1")
        A(f"s_add_u32 s{sTMP}, s{sTMP}, s99")
        A(f"s_lshl_b32 s{sTMP}, s{sTMP}, 5")
        A(f"s_lshl_b32 s99, s{f1.R.sft}, 1")
        A(f"s_add_u32 s{sTMP}, s{sTMP}, s99")
        A(f"s_and_b32 s99, s20, 1")
        A(f"s_add_u32 s99, s{sTMP}, s99")
        if self.dep2at == 9:
            A(f"s_waitcnt vmcnt({vm.wait({'hst'})})")
            self.flag_store_wave(vm, OFF_FLAG3, 99)
            self.cpoll_check(vm, 1)
            A("s_barrier")
            self.stamp("dep2")
            aux.a3_loads(A, vm, pWS)
            put(self.wput*3)
        def extra(rnd):
            if rnd > 0: put(self.wputr)
            if rnd == 1 and self.dep2at != 9:
                A(f"s_waitcnt vmcnt({vm.wait({'hst'})})")
                self.flag_store_wave(vm, OFF_FLAG3, 99)
        aux.a3_elem(A, vm, extra)
        put(100)
        A("s_barrier")
        self.stamp("a3 elem")
        f2.setup2(A, pWS, pOUT)
        def poll3_issue():
            A(f"v_and_b32 v254, 31, v0")
            A(f"s_lshl_b32 s{sTMP}, s{f2.R.sT}, 5")
            A(f"v_add_u32 v254, s{sTMP}, v254")
            A(f"v_lshlrev_b32 v254, 2, v254")
            A(f"s_mov_b32 s{sTMP}, {OFF_FLAG3}")
            A(f"buffer_load_dword v250, v254, {srd(srdF)}, s{sTMP} offen sc1")
            vm.issue("poll3")
        def check_one(tag, off):
            lo, ok = A.label("w"), A.label("wok")
            A(f"s_waitcnt vmcnt({vm.wait({tag})})")
            A(f"s_mov_b32 s{sSPIN}, 0")
            A(f"{lo}:")
            A(f"v_cmp_ne_u32 vcc, s{sNONCE}, v250")
            A(f"s_cbranch_vccz {ok}")
            A(f"s_add_u32 s{sSPIN}, s{sSPIN}, 1")
            A(f"s_cmp_gt_u32 s{sSPIN}, {SPIN_MAX}")
            A(f"s_cbranch_scc1 {ok}")
            A("s_sleep 4")
            A(f"s_mov_b32 s{sTMP}, {off}")
            A(f"buffer_load_dword v250, v254, {srd(srdF)}, s{sTMP} offen sc1")
            A("s_waitcnt vmcnt(0)")
            A(f"s_branch {lo}")
            A(f"{ok}:")
        npre = self.npre
        if self.early3:
            poll3_issue()
            def mid():
                check_one("poll3", OFF_FLAG3)
                for i in range(npre):
                    A(f2.h_loads(i)); vm.issue(f"h{i}", 4)
            aux.a3_core(A, vm, pWS, mid=mid)
        else:
            aux.a3_core(A, vm, pWS, mid=poll3_issue)
        for k, ins in enumerate(f2.w_loads((10, 11))):
            A(ins); vm.issue(f"W{10 + k//5}")
        self.stamp("a3 core")
        if not self.early3:
            check_one("poll3", OFF_FLAG3)
            npre = 0
        self.stamp("dep3")
        def flag4():
            A(f"s_waitcnt vmcnt({vm.wait({'gast'})})")
            A(f"s_lshl_b32 s99, s{sID}, 2")
            A(f"s_add_u32 s99, s99, s20")
            self.flag_store_wave(vm, OFF_FLAG4, 99)
        def code4():
            A(f"v_and_b32 v254, 63, v0")
            A(f"s_and_b32 s{sTMP}, s{f2.R.sT}, 15")
            A(f"s_lshl_b32 s{sTMP}, s{sTMP}, 6")
            A(f"v_add_u32 v254, s{sTMP}, v254")
            A(f"v_lshlrev_b32 v254, 2, v254")
        def h_issue4():
            code4()
            A(f"s_mov_b32 s{sTMP}, {OFF_FLAG4}")
            A(f"buffer_load_dword v250, v254, {srd(srdF)}, s{sTMP} offen sc1")
            vm.issue("poll4")
        def h_check4():
            check_one("poll4", OFF_FLAG4)
            f2.final_loads(A, vm)
        hk = {1: flag4, 6: h_issue4, 10: h_check4}
        if "f2fine" in self.exp:
            for i_ in (0, 2, 4, 8, 11):
                hk[i_] = (lambda o=hk.get(i_), i_=i_: ((o() if o else None), self.stamp(f"f2s{i_}")))
        f2.main(A, vm, hooks=hk, pre_issued=npre)
        self.stamp("f2 loop end")
        f2.epilogue(A, vm)
        self.stamp("end")
        self.dump_stamps()
        A("s_endpgm")

    def build(self):
        A = self.A
        A(f"s_cmp_ge_u32 s2, 256")
        A(f"s_cbranch_scc1 K_exit")
        A(f"s_load_dwordx16 s[68:83], s[0:1], 0")
        A(f"s_load_dwordx4 s[84:87], s[0:1], 64")
        A(f"s_load_dwordx2 s[88:89], s[0:1], 80")
        if self.stamps: A("v_mov_b32 v255, 0")
        A(f"s_mov_b32 s{sID}, s2")
        A(f"v_lshrrev_b32 v4, 6, v0")
        A("s_nop 0")
        A(f"v_readfirstlane_b32 s20, v4")
        A("s_waitcnt lgkmcnt(0)")
        if self.wsbase:
            A(f"s_add_u32 s{pWS}, s{pWS}, {hex(self.wsbase)}")
            A(f"s_addc_u32 s{pWS+1}, s{pWS+1}, 0")
        A(f"s_load_dword s{sNONCE}, s[{pWS}:{pWS+1}], {OFF_EPOCH}")
        if self.codepf:
            A("s_getpc_b64 s[4:5]")
            A("K_pc:")
            A("s_and_b32 s5, s5, 0xffff")
            A("s_mov_b32 s6, K_exit-K_pc")
            A("s_mov_b32 s7, 0x20000")
            A("v_lshlrev_b32 v4, 7, v0")
            for k in range(self.codepf):
                A(f"s_mov_b32 s28, {32768*k}")
                A(f"buffer_load_dword v229, v4, s[4:7], s28 offen")
        if self.tlbpf:
            A.srd(4, pWS, 28 << 20)
            A("v_and_b32 v4, 63, v0")
            A("v_lshlrev_b32 v4, 19, v4")
            A("v_add_u32 v4, 0x7ff80, v4")
            A(f"buffer_load_dword v229, v4, s[4:7], 0 offen")
            A.srd(4, pOUT, 2048*640*2)
            A("v_and_b32 v4, 63, v0")
            A("v_lshlrev_b32 v4, 16, v4")
            A(f"buffer_load_dword v229, v4, s[4:7], 0 offen")
        A.srd(srdF, pWS, SZ_FLAGS)
        self.body()
        A("K_exit:")
        A("s_endpgm")
        lines, n = hazard.fix(A.l)
        return lines

HEADER = open(os.path.join(os.path.dirname(os.path.abspath(__file__)), "header.txt")).read()
def full_source(**kw):
    g = Gen(**kw)
    body = "\n".join(g.build())
    src = HEADER + f"""; @launch grid=(256,1,1) block=(256,1,1) lds=163840
.amdgcn_target "amdgcn-amd-amdhsa--gfx950"
.text
.globl {NAME}
.p2align 8
.type {NAME},@function
{NAME}:
{body}
.section .rodata,"a"
.p2align 6
.amdhsa_kernel {NAME}
  .amdhsa_next_free_vgpr 512
  .amdhsa_next_free_sgpr 102
  .amdhsa_accum_offset 256
  .amdhsa_group_segment_fixed_size 0
  .amdhsa_kernarg_size 88
  .amdhsa_user_sgpr_count 2
  .amdhsa_user_sgpr_kernarg_segment_ptr 1
  .amdhsa_system_sgpr_workgroup_id_x 1
.end_amdhsa_kernel
"""
    return src, g
if __name__ == "__main__":
    kw = {}
    for o in sys.argv[2:]:
        k, v_ = o.split("="); kw[k] = eval(v_)
    src, g = full_source(**kw)
    out = sys.argv[1] if len(sys.argv) > 1 else "gated_mix__spectral_gfnet__swiglu_ffn__prompt.s"
    open(out, "w").write(src)
    print("wrote", out, len(src), "bytes")
```

```python
from asmlib import *
from layout import *

MAP48 = False
OUTSC = ''
class R:
    acc = 64
    vh = 230
    vl16 = 243
    vout = 231
    vog = 232
    vt = 233
    GAV = 244
    srdWT, srdH, srdGA, srdO, srdG = 64, 12, 8, 36, 40
    sw, sT, sdt = 20, 21, 22
    sWoff, sHoff = 61, 24
    st = 28
NRING = 8
def hslot(i):
    k = i % NRING
    return 144 + 16*k if k < 3 else (16 + 16*(k-3) if k < 6 else 192 + 16*(k-6))

def setup_w(A, s_b, pWS):
    A.srd(R.srdWT, pWS, SZ_WT, OFF_WT)
    if MAP48:
        A(f"s_lshr_b32 s60, s{s_b}, 5")
    else:
        A(f"s_lshr_b32 s60, s{s_b}, 2")
        A(f"s_and_b32 s60, s60, 1")
        A(f"s_lshl_b32 s60, s60, 2")
        A(f"s_lshr_b32 s62, s{s_b}, 6")
        A(f"s_add_u32 s60, s60, s62")
    A(f"s_mul_i32 s62, s{R.sw}, 96")
    A(f"s_add_u32 s60, s60, s62")
    A(f"s_mul_i32 s{R.sWoff}, s60, 5120")
    A(f"v_and_b32 v{R.vl16}, 63, v0")
    A(f"v_lshlrev_b32 v{R.vl16}, 4, v{R.vl16}")

def setup(A, s_b, pWS, pOUT):
    st, t = R.st, R.vt
    A.c("---- F2 setup ----")
    if MAP48:
        A(f"s_and_b32 s{st}, s{s_b}, 7")
        A(f"s_lshl_b32 s{st}, s{st}, 2")
        A(f"s_lshr_b32 s{st+1}, s{s_b}, 3")
        A(f"s_and_b32 s{st+1}, s{st+1}, 3")
        A(f"s_add_u32 s{R.sT}, s{st}, s{st+1}")
        A(f"s_lshr_b32 s{R.sdt}, s{s_b}, 5")
        return
    A(f"s_and_b32 s{st}, s{s_b}, 3")
    A(f"s_lshl_b32 s{st}, s{st}, 3")
    A(f"s_lshr_b32 s{st+1}, s{s_b}, 3")
    A(f"s_and_b32 s{st+1}, s{st+1}, 7")
    A(f"s_add_u32 s{R.sT}, s{st}, s{st+1}")
    A(f"s_lshr_b32 s{st}, s{s_b}, 2")
    A(f"s_and_b32 s{st}, s{st}, 1")
    A(f"s_lshl_b32 s{st}, s{st}, 2")
    A(f"s_lshr_b32 s{st+1}, s{s_b}, 6")
    A(f"s_add_u32 s{R.sdt}, s{st}, s{st+1}")

def w_loads(steps):
    L = []
    so = 60
    for i in steps:
        for mt in range(5):
            d = 20*i + 4*mt
            pre = []
            if mt == 0: pre = [f"s_add_u32 s{so}, s{R.sWoff}, {i*8*5120}"]
            if mt == 4: pre = [f"s_add_u32 s{so}, s{so}, 4096"]
            off = f" offset:{1024*mt}" if 0 < mt < 4 else ""
            L.append(pre + [f"buffer_load_dwordx4 a[{d}:{d+3}], v{R.vl16}, {srd(R.srdWT)}, s{so} offen{off} sc1"])
    return L

def setup2(A, pWS, pOUT):
    st, t = R.st, R.vt
    A.srd(R.srdH, pWS, SZ_H, OFF_H)
    A.srd(R.srdGA, pWS, SZ_GA, OFF_GA)
    A.srd(R.srdO, pOUT, 2048*640*2)
    A.srd(R.srdG, pWS, 8192, OFF_G)
    A(f"v_and_b32 v{t}, 63, v0")
    A(f"v_and_b32 v{t+1}, 15, v{t}")
    A(f"v_lshrrev_b32 v{t+2}, 4, v{t}")
    A(f"v_lshl_add_u32 v{t+3}, v{t+2}, 5, v{t+1}")
    A(f"v_lshlrev_b32 v{R.vh}, 4, v{t+3}")
    A(f"s_mul_i32 s{st}, s{R.sT}, {2*96*1024}")
    A(f"s_mul_i32 s{st+1}, s{R.sw}, {12*2048}")
    A(f"s_add_u32 s{R.sHoff}, s{st}, s{st+1}")
    for lam in range(4):
        A(f"s_add_u32 s{st}, s{R.sw}, {lam}")
        A(f"s_and_b32 s{st}, s{st}, 3")
        A(f"s_lshr_b32 s{st+1}, s{st}, 1")
        A(f"s_mul_i32 s{st+1}, s{st+1}, {96*1024}")
        A(f"s_and_b32 s{st}, s{st}, 1")
        A(f"s_lshl_b32 s{st}, s{st}, 8")
        A(f"s_add_u32 s{st}, s{st}, s{st+1}")
        A(f"s_add_u32 s{44+lam}, s{st}, s{R.sHoff}")
    A(f"s_lshl_b32 s{st}, s{R.sT}, 6")
    A(f"s_lshl_b32 s{st+1}, s{R.sw}, 4")
    A(f"s_add_u32 s{st}, s{st}, s{st+1}")
    A(f"v_add_u32 v{t+3}, s{st}, v{t+1}")
    A(f"v_lshlrev_b32 v{R.vog}, 2, v{t+3}")
    A(f"v_mul_u32_u24 v{t+3}, 1280, v{t+3}")
    A(f"s_mul_i32 s{st}, s{R.sdt}, 160")
    A(f"v_lshl_add_u32 v{t+3}, v{t+2}, 3, v{t+3}")
    A(f"v_add_u32 v{R.vout}, s{st}, v{t+3}")

def h_loads(i):
    so = R.st + 2
    L = []
    for lam in range(4):
        d = hslot(i) + 4*lam
        L.append([f"s_add_u32 s{so}, s{44+lam}, {i*2048}", f"buffer_load_dwordx4 v[{d}:{d+3}], v{R.vh}, {srd(R.srdH)}, s{so} offen sc1"])
    return L

def mfmas(i):
    L = []
    for mt in range(5):
        for lam in range(4):
            d = R.acc + lam*20 + mt*4
            b = hslot(i) + 4*lam
            L.append(f"v_mfma_f32_16x16x32_bf16 v[{d}:{d+3}], a[{20*i+4*mt}:{20*i+4*mt+3}], v[{b}:{b+3}], " + ("0" if i == 0 else f"v[{d}:{d+3}]"))
    return L

AHEAD = 4
def main(A, vm, hooks=None, pre_issued=0):
    for i in range(pre_issued, AHEAD):
        A(h_loads(i)); vm.issue(f"h{i}", 4)
    for i in range(12):
        A.c(f"F2 step {i}")
        if hooks and i in hooks: hooks[i]()
        A(f"s_waitcnt vmcnt({vm.wait({f'h{i}', f'W{i}'})})")
        m = mfmas(i)
        n = i + AHEAD
        g = [[] for _ in m]
        if n < 12 and n >= pre_issued:
            for k, ins in enumerate(h_loads(n)): g[1 + 5*k] = ins
            vm.issue(f"h{n}", 4)
        A(place(m, g))

def final_loads(A, vm):
    A(f"buffer_load_dword v{R.vog}, v{R.vog}, {srd(R.srdG)}, 0 offen sc1")
    for mt in range(5):
        A(f"buffer_load_dwordx2 v[{R.GAV+2*mt}:{R.GAV+2*mt+1}], v{R.vout}, {srd(R.srdGA)}, 0 offen offset:{32*mt} sc1")
    vm.issue("ga", 6)

def epilogue(A, vm, lds_base=0):
    st, t = R.st, R.vt
    A.c("---- F2 reduction and output ----")
    for lam in range(1, 4):
        A(f"s_add_u32 s{st}, s{R.sw}, {lam}")
        A(f"s_and_b32 s{st}, s{st}, 3")
        A(f"s_mul_i32 s{st}, s{st}, {3*5120}")
        A(f"s_add_u32 s{st}, s{st}, {lds_base + (lam-1)*5120}")
        A(f"v_add_u32 v{t+lam-1}, s{st}, v{R.vl16}")
    for lam in range(1, 4):
        for mt in range(5):
            d = R.acc + lam*20 + mt*4
            A(f"ds_write_b128 v{t+lam-1}, v[{d}:{d+3}] offset:{mt*1024}")
    A(f"s_mul_i32 s{st}, s{R.sw}, {3*5120}")
    A(f"s_add_u32 s{st}, s{st}, {lds_base}")
    A(f"v_add_u32 v{t+3}, s{st}, v{R.vl16}")
    A("s_waitcnt lgkmcnt(0)")
    A("s_barrier")
    P = R.acc + 20
    for k in range(3):
        for mt in range(5):
            A(f"ds_read_b128 v[{P+20*k+4*mt}:{P+20*k+4*mt+3}], v{t+3} offset:{k*5120 + mt*1024}")
    A(f"s_waitcnt vmcnt({vm.wait({'ga'})})")
    A(f"v_sub_f32 v{R.vog}, 1.0, v{R.vog}")
    A(f"v_cvt_pk_bf16_f32 v{R.vog}, v{R.vog}, v{R.vog}")
    A(f"v_and_b32 v{R.vog}, 0xffff0000, v{R.vog}")
    for mt in range(5):
        A(f"s_waitcnt lgkmcnt({min(15, 14-mt if False else 0)})") if mt == 0 else None
        x = R.acc + 4*mt
        for k in range(3):
            y = P + 20*k + 4*mt
            A(f"v_pk_add_f32 v[{x}:{x+1}], v[{x}:{x+1}], v[{y}:{y+1}]")
            A(f"v_pk_add_f32 v[{x+2}:{x+3}], v[{x+2}:{x+3}], v[{y+2}:{y+3}]")
        g = R.GAV + 2*mt
        A(f"v_lshlrev_b32 v16, 16, v{g}")
        A(f"v_and_b32 v17, 0xffff0000, v{g}")
        A(f"v_lshlrev_b32 v18, 16, v{g+1}")
        A(f"v_and_b32 v19, 0xffff0000, v{g+1}")
        for j in range(4): A(f"v_fmac_f32 v{16+j}, v{R.vog}, v{x+j}")
        o = 20 + 2*mt
        A(f"v_cvt_pk_bf16_f32 v{o}, v16, v17")
        A(f"v_cvt_pk_bf16_f32 v{o+1}, v18, v19")
        A(f"buffer_store_dwordx2 v[{o}:{o+1}], v{R.vout}, {srd(R.srdO)}, 0 offen offset:{32*mt}{OUTSC}")
```

```python
import sys, os
sys.path.insert(0, os.path.dirname(os.path.abspath(__file__)))
from asmlib import *
from layout import *
import f1, f2, g2, aux, hazard

NAME = "gated_mix__spectral_gfnet__swiglu_ffn__prompt_kernel"
pAX, pWR, pWI, pBX, pWG, pWU, pWD, pGW, pOUT, pDBG, pWS = 68, 70, 72, 74, 76, 78, 80, 82, 84, 86, 88
sNONCE, srdF, sSPIN, sTMP, sID = 90, 92, 96, 97, 98
srdD = 0
SPIN_MAX = 20000
import os
if os.environ.get('NOSPIN'): SPIN_MAX = 0

class Gen:
    def __init__(self, stamps=False, order="AB", gemm_first=True, exp="", ta2=11, tf1=-1, d2=2, nwa2=7, early3=True, npre=3, dep2at=9, wput=2, wputr=4, codepf=1, tlbpf=0, twt=-1, wsbase=0, map48=False, ahead=4, pro=2, xpf=None, outsc='', dbgsel=None):
        f2.OUTSC = outsc
        self.xpf = xpf
        self.pro = pro
        f2.MAP48 = map48; f2.AHEAD = ahead
        self.wsbase = wsbase
        self.twt = twt
        self.tlbpf = tlbpf
        self.codepf = codepf
        self.wput = wput; self.wputr = wputr
        self.dep2at = dep2at
        self.early3 = early3; self.npre = npre
        self.exp = exp; self.ta2 = ta2; self.tf1 = tf1; self.d2 = d2; self.nwa2 = nwa2
        self.A = Asm("K"); self.stamps = stamps; self.ns = 0; self.names = {}
        self.gemm_first = gemm_first
        self.dbg_sel = {"gemm": [(0,"start",1),(1,"consts",0),(2,"core",0),(3,"a1",0),(4,"preps",0),(5,"flag1",0),(6,"dep1",0),(7,"a2 start",0),(8,"a2 end",0),
                                 (9,"f1 loop end",0),(10,"f1 epi",0),(11,"dep2",0),(12,"a3 elem",0),(13,"a3 core",0),(14,"f2 loop end",0),(15,"end",0)]}
        if dbgsel: self.dbg_sel = {'gemm': [(i, n, 1 if i == 0 else 0) for i, n in enumerate(dbgsel)]}
        g2.ORDER = order; g2.STG = g2.stages()
    def stamp(self, name=None):
        if not self.stamps: return
        if self.stamps == "min" and name not in ("start", "end"): return
        A = self.A
        A("s_memrealtime s[100:101]")
        A("s_waitcnt lgkmcnt(0)")
        A(f"v_writelane_b32 v255, s100, {self.ns}")
        self.names.setdefault(self.role, []).append((self.ns, name))
        self.ns += 1
    def dump_stamps(self):
        if not self.stamps: return
        A = self.A
        if self.stamps == "dbg":
            sel = self.dbg_sel[self.role]
            A("s_waitcnt vmcnt(0) lgkmcnt(0)")
            A.srd(8, pDBG, 256)
            lab = A.label("nd")
            A("s_cmp_lg_u32 s20, 0")
            A(f"s_cbranch_scc1 {lab}")
            names = {nm: idx for idx, nm in self.names[self.role]}
            A("v_mov_b32 v2, 0")
            A("v_mov_b32 v3, 0x40000000")
            for slot, nm, inv in sel:
                A(f"v_readlane_b32 s30, v255, {names[nm]}")
                if inv: A("s_not_b32 s30, s30")
                A(f"s_mov_b32 s31, {4*slot}")
                A(f"v_writelane_b32 v2, s30, {slot}")
                A(f"v_writelane_b32 v3, s31, {slot}")
            A("buffer_atomic_umax v2, v3, s[8:11], 0 offen")
            A(f"{lab}:")
            return
        A("s_waitcnt vmcnt(0) lgkmcnt(0)")
        A.srd(8, pDBG, 1 << 20)
        A("v_lshlrev_b32 v1, 2, v0")
        A(f"s_lshl_b32 s30, s{sID}, 10")
        A("s_add_u32 s30, s30, 4096")
        A("buffer_store_dword v255, v1, s[8:11], s30 offen")
    def flag_store(self, off, s_idx):
        A = self.A
        lab = A.label("sig")
        A(f"s_cmp_lg_u32 s20, 0")
        A(f"s_cbranch_scc1 {lab}")
        A(f"s_lshl_b32 s{sTMP}, s{s_idx}, 2")
        A(f"s_add_u32 s{sTMP}, s{sTMP}, {off}")
        A(f"v_mov_b32 v249, s{sNONCE}")
        A(f"v_mov_b32 v254, 0")
        A("s_mov_b64 exec, 1")
        A(f"buffer_store_dword v249, v254, {srd(srdF)}, s{sTMP} offen sc1")
        A("s_mov_b64 exec, -1")
        A(f"{lab}:")
    def flag_store_all(self, vm, off, s_idx):
        A = self.A
        A(f"s_lshl_b32 s{sTMP}, s{s_idx}, 2")
        A(f"s_add_u32 s{sTMP}, s{sTMP}, {off}")
        A(f"s_cmp_eq_u32 s20, 0")
        A(f"s_cselect_b32 s{sTMP}, s{sTMP}, 0x40000000")
        A(f"v_mov_b32 v249, s{sNONCE}")
        A(f"v_mov_b32 v254, 0")
        A("s_mov_b64 exec, 1")
        A(f"buffer_store_dword v249, v254, {srd(srdF)}, s{sTMP} offen sc1")
        A("s_mov_b64 exec, -1")
        vm.issue("flag")
    def arrive(self, vm, phase):
        A = self.A
        off = (OFF_FLAG1, OFF_FLAG2, OFF_FLAG1B)[phase]
        A(f"s_lshl_b32 s{sTMP}, s{sID}, 2")
        A(f"s_add_u32 s{sTMP}, s{sTMP}, {off}")
        A(f"s_cmp_eq_u32 s20, 0")
        A(f"s_cselect_b32 s{sTMP}, s{sTMP}, 0x40000000")
        A(f"v_mov_b32 v249, s{sNONCE}")
        A(f"v_and_b32 v254, 7, v0")
        A(f"v_lshlrev_b32 v254, 10, v254")
        A("s_mov_b64 exec, 0xff")
        A(f"buffer_store_dword v249, v254, {srd(srdF)}, s{sTMP} offen sc1")
        A("s_mov_b64 exec, -1")
        vm.issue("flag")
    def cpoll_issue(self, vm, phase):
        A = self.A
        off = (OFF_FLAG1, OFF_FLAG2, OFF_FLAG1B)[phase]
        A(f"v_and_b32 v254, 63, v0")
        A(f"v_lshlrev_b32 v254, 4, v254")
        A(f"s_and_b32 s{sTMP}, s{sID}, 7")
        A(f"s_lshl_b32 s{sTMP}, s{sTMP}, 10")
        A(f"s_add_u32 s{sTMP}, s{sTMP}, {off}")
        A(f"s_cmp_eq_u32 s20, 0")
        A(f"s_cselect_b32 s{sTMP}, s{sTMP}, 0x40000000")
        A(f"buffer_load_dwordx4 v[250:253], v254, {srd(srdF)}, s{sTMP} offen sc1")
        vm.issue("cpoll")
    def cpoll_check(self, vm, phase):
        A = self.A
        off = (OFF_FLAG1, OFF_FLAG2, OFF_FLAG1B)[phase]
        lo, ok = A.label("w"), A.label("wok")
        A(f"s_waitcnt vmcnt({vm.wait({'cpoll'})})")
        A(f"s_cmp_lg_u32 s20, 0")
        A(f"s_cbranch_scc1 {ok}")
        A(f"s_mov_b32 s{sSPIN}, 0")
        A(f"{lo}:")
        for k in range(4): A(f"v_xor_b32 v{250+k}, s{sNONCE}, v{250+k}")
        A(f"v_or3_b32 v250, v250, v251, v252")
        A(f"v_or_b32 v250, v250, v253")
        A(f"v_cmp_ne_u32 vcc, 0, v250")
        A(f"s_cbranch_vccz {ok}")
        A(f"s_add_u32 s{sSPIN}, s{sSPIN}, 1")
        A(f"s_cmp_gt_u32 s{sSPIN}, {SPIN_MAX}")
        A(f"s_cbranch_scc1 {ok}")
        A("s_sleep 2")
        A(f"v_and_b32 v254, 63, v0")
        A(f"v_lshlrev_b32 v254, 4, v254")
        A(f"s_and_b32 s{sTMP}, s{sID}, 7")
        A(f"s_lshl_b32 s{sTMP}, s{sTMP}, 10")
        A(f"s_add_u32 s{sTMP}, s{sTMP}, {off}")
        A(f"buffer_load_dwordx4 v[250:253], v254, {srd(srdF)}, s{sTMP} offen sc1")
        A("s_waitcnt vmcnt(0)")
        A(f"s_branch {lo}")
        A(f"{ok}:")
    def flag_store_wave(self, vm, off, s_idx):
        A = self.A
        A(f"s_lshl_b32 s{sTMP}, s{s_idx}, 2")
        A(f"s_add_u32 s{sTMP}, s{sTMP}, {off}")
        A(f"v_mov_b32 v249, s{sNONCE}")
        A(f"v_mov_b32 v254, 0")
        A("s_mov_b64 exec, 1")
        A(f"buffer_store_dword v249, v254, {srd(srdF)}, s{sTMP} offen sc1")
        A("s_mov_b64 exec, -1")
        vm.issue("flag")
    def signal(self, vm, off, s_idx):
        A = self.A
        A("s_waitcnt vmcnt(0)")
        A("s_barrier")
        vm.q = []
        self.flag_store_all(vm, off, s_idx)
    def poll_issue(self, vm, off):
        A = self.A
        A(f"v_and_b32 v254, 63, v0")
        A(f"v_lshlrev_b32 v254, 4, v254")
        A(f"s_mov_b32 s{sTMP}, {off}")
        A(f"buffer_load_dwordx4 v[250:253], v254, {srd(srdF)}, s{sTMP} offen sc1")
        vm.issue("poll")
    def poll_check(self, vm, off):
        A = self.A
        lo, ok = A.label("w"), A.label("wok")
        A(f"s_waitcnt vmcnt({vm.wait({'poll'})})")
        A(f"s_mov_b32 s{sSPIN}, 0")
        A(f"{lo}:")
        for k in range(4): A(f"v_xor_b32 v{250+k}, s{sNONCE}, v{250+k}")
        A(f"v_or3_b32 v250, v250, v251, v252")
        A(f"v_or_b32 v250, v250, v253")
        A(f"v_cmp_ne_u32 vcc, 0, v250")
        A(f"s_cbranch_vccz {ok}")
        A(f"s_add_u32 s{sSPIN}, s{sSPIN}, 1")
        A(f"s_cmp_gt_u32 s{sSPIN}, {SPIN_MAX}")
        A(f"s_cbranch_scc1 {ok}")
        A("s_sleep 4")
        A(f"s_mov_b32 s{sTMP}, {off}")
        A(f"buffer_load_dwordx4 v[250:253], v254, {srd(srdF)}, s{sTMP} offen sc1")
        A("s_waitcnt vmcnt(0)")
        A(f"s_branch {lo}")
        A(f"{ok}:")
    def wait_all(self, vm, off):
        self.poll_issue(vm, off); self.poll_check(vm, off)
    def wait_idx(self, vm, off, v_idx_code):
        A = self.A
        lo, ok = A.label("w"), A.label("wok")
        v_idx_code()
        A(f"s_mov_b32 s{sSPIN}, 0")
        A(f"s_mov_b32 s{sTMP}, {off}")
        A(f"{lo}:")
        A(f"buffer_load_dword v250, v254, {srd(srdF)}, s{sTMP} offen sc1")
        A("s_waitcnt vmcnt(0)")
        A(f"v_cmp_ne_u32 vcc, s{sNONCE}, v250")
        A(f"s_cbranch_vccz {ok}")
        A(f"s_add_u32 s{sSPIN}, s{sSPIN}, 1")
        A(f"s_cmp_gt_u32 s{sSPIN}, {SPIN_MAX}")
        A(f"s_cbranch_scc1 {ok}")
        A("s_sleep 4")
        A(f"s_branch {lo}")
        A(f"{ok}:")
        vm.q = []

    def body(self):
        A = self.A; self.role = "gemm"; self.ns = 0
        vm = VM()
        TA2 = self.ta2
        self.stamp("start")
        X = self.exp.split("+")
        aux.setup(A, pAX, pWR, pWI, pWD, pGW, pWS)
        issued = set()
        def iss(*ks):
            for k in ks:
                f1.issue(A, vm, *k); issued.add(k)
        def mid():
            if "nopf" not in X and "pflate" not in X and "pfmid" not in X and "pf2" not in X and "pf0" not in X: f1.l2_prefetch(A, vm, pWG, pWU)
        if "pf0" in X: f1.l2_prefetch(A, vm, pWG, pWU)
        aux.issue_loads(A, vm, mid, wd=("wdlate" not in X and "wdmid" not in X and "wd2" not in X and "wd3" not in X))
        self.stamp("issued")
        aux.consts_a1(A)
        f1.setup(A, sID, pAX, pWG, pWU, pWS)
        aux.setup_out(A, pWS)
        f1.setup_reads(A)
        A(aux.consts_a2_fill())
        aux.phase1_pre(A)
        if "wdmid" in X: aux.issue_wd(A, vm)
        if "pfmid" in X: f1.l2_prefetch(A, vm, pWG, pWU)
        self.stamp("consts")
        aux.a1_core(A, vm)
        self.stamp("core")
        if "wdlate" in X: aux.issue_wd(A, vm)
        if "pflate" in X: f1.l2_prefetch(A, vm, pWG, pWU)
        A("s_waitcnt lgkmcnt(0)")
        A(f"s_add_u32 s{sNONCE}, s{sNONCE}, 1")
        A(f"s_waitcnt vmcnt({vm.wait({'ws', 'gw'} | (set() if ('wdlate' in X or 'wdmid' in X or 'wd2' in X or 'wd3' in X) else {'wd'}))})")
        if "pf2" in X: f1.l2_prefetch(A, vm, pWG, pWU)
        if "wd2" in X: aux.issue_wd(A, vm)
        self.stamp("wswait")
        aux.a1_elem(A, vm)
        self.stamp("a1")
        if "nop1" not in self.exp and "nopreps" not in self.exp:
            iss(("x", 0), ("w", 0))
            self.stamp("x0w0")
            aux.wprep(A, vm)
            self.stamp("wp")
            iss(("w", 1))
            if "wdlate" in X or "wdmid" in X:
                A(f"s_waitcnt vmcnt({vm.wait({'wd'})})")
                A("s_barrier")
            if self.twt < 0: aux.wtprep(A, vm)
            self.stamp("wprep")
            iss(("x", 1), ("w", 2))
            if self.pro >= 1 and f1.NWS == 6: iss(("w", 3))
            if self.pro >= 2: iss(("x", 2))
            aux.gate(A, vm)

        if 'nop1' in self.exp: A('s_waitcnt vmcnt(0)')
        self.stamp("preps")
        class Hooks(dict):
            def __setitem__(self, k, fn):
                old = self.get(k)
                dict.__setitem__(self, k, fn if old is None else (lambda o=old, n=fn: (o(), n())))
        class Tags(dict):
            def __setitem__(self, k, tags):
                dict.__setitem__(self, k, set(self.get(k, ())) | set(tags))
        after, pause, extra, before = Hooks(), Hooks(), Tags(), Hooks()
        extra[self.tf1] = {'st'}
        after[self.tf1] = lambda: (self.arrive(vm, 0), self.stamp("flag1"), aux.issue_wd(A, vm) if 'wd3' in X else None)
        if self.xpf is not None: after[self.xpf] = lambda: f1.x_prefetch(A, vm)
        def a2_issue():
            A(f"s_or_b32 s{sTMP}, s{sID}, s20")
            A(f"s_cmp_eq_u32 s{sTMP}, 0")
            A(f"s_cselect_b32 s{sTMP}, 0, 0x40000000")
            A(f"v_mov_b32 v249, s{sNONCE}")
            A(f"v_mov_b32 v254, 0")
            A("s_mov_b64 exec, 1")
            A(f"buffer_store_dword v249, v254, {srd(srdF)}, s{sTMP} offen sc1")
            A("s_mov_b64 exec, -1")
            vm.issue("flag")
            self.stamp("dep1")
            aux.a2_loads(A, vm, pWS)
            f2.setup_w(A, sID, pWS)
        NW_A2 = self.nwa2
        watoms = f2.w_loads(range(NW_A2))
        def a2_run():
            lab, lab2 = A.label("noa2"), A.label("a2d")
            self.stamp("a2 start")
            A(f"s_waitcnt vmcnt({vm.wait({'a2in'})})")
            A(f"s_cmp_ge_u32 s{sID}, {0 if 'noa2' in self.exp else 162}")
            A(f"s_cbranch_scc1 {lab}")
            v2 = VM()
            aux.a2(A, v2, pWS, waited=True, weave=list(watoms))
            A(f"s_branch {lab2}")
            A(f"{lab}:")
            for ins in watoms: A(ins)
            A(f"{lab2}:")
            for k in range(len(watoms)): vm.issue(f"W{k//5}")
            vm.issue('zst', 4)
            self.stamp("a2 end")
        after[TA2-3] = lambda: self.cpoll_issue(vm, 0)
        before[TA2-1] = lambda: self.cpoll_check(vm, 0)
        after[TA2-1] = a2_issue
        pause[TA2] = a2_run
        if self.twt >= 0:
            if 'wd2' in X or 'wd3' in X: extra[self.twt] = set(extra.get(self.twt, ())) | {'wd'}
            pause[self.twt] = lambda: aux.wtprep(A, vm, tag='wtst')
            extra[self.twt + 3] = {'wtst'}
            after[self.twt + 3] = lambda: self.arrive(vm, 2)
            after[TA2-1] = lambda: self.cpoll_issue(vm, 2)
            before[TA2] = lambda: self.cpoll_check(vm, 2)
        extra[TA2+self.d2] = {'zst', 'gst'}
        after[TA2+self.d2] = lambda: self.arrive(vm, 1)
        if self.dep2at < 0:
            after[16] = lambda: self.cpoll_issue(vm, 1)
            before[18] = lambda: self.cpoll_check(vm, 1)
        if "fine" in self.exp:
            for t in range(0, 19, 2):
                def mk(t, old):
                    def f():
                        if old: old()
                        self.stamp(f"bar{t}")
                    return f
                after[t] = (lambda t=t: self.stamp(f"bar{t}"))
        fl = []
        f1.main(A, vm, issued, fill=fl, after_barrier=after, pause=pause, late=[k for k in ([("w", 3), ("x", 2), ("w", 4), ("w", 5)] if f1.NWS == 6 else [("w", 3), ("x", 3), ("w", 4)]) if k not in issued], extra_need=extra, before_barrier=before)
        self.stamp("f1 loop end")
        f2.setup(A, sID, pWS, pOUT)
        if self.dep2at < 0:
            self.stamp("dep2")
            aux.a3_loads(A, vm, pWS)
        atoms = [(ins, f"W{self.nwa2 + k//5}") for k, ins in enumerate(f2.w_loads(range(self.nwa2, 10)))]
        def put(n):
            for _ in range(n):
                if atoms:
                    ins, tag = atoms.pop(0); A(ins); vm.issue(tag)
        def btw(k):
            if self.dep2at == 9:
                if k == 3: self.cpoll_issue(vm, 1)
                return
            if self.dep2at < 0 or k > self.dep2at: put(self.wput)
            if self.dep2at >= 0:
                if k == max(0, self.dep2at - 2): self.cpoll_issue(vm, 1)
                if k == self.dep2at:
                    self.cpoll_check(vm, 1)
                    A("s_barrier")
                    self.stamp("dep2")
                    aux.a3_loads(A, vm, pWS)
        f1.epilogue(A, vm, pWS, between=btw)
        self.stamp("f1 epi")
        A(f"s_lshl_b32 s{sTMP}, s{f1.R.smt}, 1")
        A(f"s_lshr_b32 s99, s20, 1")
        A(f"s_add_u32 s{sTMP}, s{sTMP}, s99")
        A(f"s_lshl_b32 s{sTMP}, s{sTMP}, 5")
        A(f"s_lshl_b32 s99, s{f1.R.sft}, 1")
        A(f"s_add_u32 s{sTMP}, s{sTMP}, s99")
        A(f"s_and_b32 s99, s20, 1")
        A(f"s_add_u32 s99, s{sTMP}, s99")
        if self.dep2at == 9:
            A(f"s_waitcnt vmcnt({vm.wait({'hst'})})")
            self.flag_store_wave(vm, OFF_FLAG3, 99)
            self.cpoll_check(vm, 1)
            A("s_barrier")
            self.stamp("dep2")
            aux.a3_loads(A, vm, pWS)
            put(self.wput*3)
        def extra(rnd):
            if rnd > 0: put(self.wputr)
            if rnd == 1 and self.dep2at != 9:
                A(f"s_waitcnt vmcnt({vm.wait({'hst'})})")
                self.flag_store_wave(vm, OFF_FLAG3, 99)
        aux.a3_elem(A, vm, extra)
        put(100)
        A("s_barrier")
        self.stamp("a3 elem")
        f2.setup2(A, pWS, pOUT)
        def poll3_issue():
            A(f"v_and_b32 v254, 31, v0")
            A(f"s_lshl_b32 s{sTMP}, s{f2.R.sT}, 5")
            A(f"v_add_u32 v254, s{sTMP}, v254")
            A(f"v_lshlrev_b32 v254, 2, v254")
            A(f"s_mov_b32 s{sTMP}, {OFF_FLAG3}")
            A(f"buffer_load_dword v250, v254, {srd(srdF)}, s{sTMP} offen sc1")
            vm.issue("poll3")
        def check_one(tag, off):
            lo, ok = A.label("w"), A.label("wok")
            A(f"s_waitcnt vmcnt({vm.wait({tag})})")
            A(f"s_mov_b32 s{sSPIN}, 0")
            A(f"{lo}:")
            A(f"v_cmp_ne_u32 vcc, s{sNONCE}, v250")
            A(f"s_cbranch_vccz {ok}")
            A(f"s_add_u32 s{sSPIN}, s{sSPIN}, 1")
            A(f"s_cmp_gt_u32 s{sSPIN}, {SPIN_MAX}")
            A(f"s_cbranch_scc1 {ok}")
            A("s_sleep 4")
            A(f"s_mov_b32 s{sTMP}, {off}")
            A(f"buffer_load_dword v250, v254, {srd(srdF)}, s{sTMP} offen sc1")
            A("s_waitcnt vmcnt(0)")
            A(f"s_branch {lo}")
            A(f"{ok}:")
        npre = self.npre
        if self.early3:
            poll3_issue()
            def mid():
                check_one("poll3", OFF_FLAG3)
                for i in range(npre):
                    A(f2.h_loads(i)); vm.issue(f"h{i}", 4)
            aux.a3_core(A, vm, pWS, mid=mid)
        else:
            aux.a3_core(A, vm, pWS, mid=poll3_issue)
        for k, ins in enumerate(f2.w_loads((10, 11))):
            A(ins); vm.issue(f"W{10 + k//5}")
        self.stamp("a3 core")
        if not self.early3:
            check_one("poll3", OFF_FLAG3)
            npre = 0
        self.stamp("dep3")
        def flag4():
            A(f"s_waitcnt vmcnt({vm.wait({'gast'})})")
            A(f"s_lshl_b32 s99, s{sID}, 2")
            A(f"s_add_u32 s99, s99, s20")
            self.flag_store_wave(vm, OFF_FLAG4, 99)
        def code4():
            A(f"v_and_b32 v254, 63, v0")
            A(f"s_and_b32 s{sTMP}, s{f2.R.sT}, 15")
            A(f"s_lshl_b32 s{sTMP}, s{sTMP}, 6")
            A(f"v_add_u32 v254, s{sTMP}, v254")
            A(f"v_lshlrev_b32 v254, 2, v254")
        def h_issue4():
            code4()
            A(f"s_mov_b32 s{sTMP}, {OFF_FLAG4}")
            A(f"buffer_load_dword v250, v254, {srd(srdF)}, s{sTMP} offen sc1")
            vm.issue("poll4")
        def h_check4():
            check_one("poll4", OFF_FLAG4)
            f2.final_loads(A, vm)
        hk = {1: flag4, 6: h_issue4, 10: h_check4}
        if "f2fine" in self.exp:
            for i_ in (0, 2, 4, 8, 11):
                hk[i_] = (lambda o=hk.get(i_), i_=i_: ((o() if o else None), self.stamp(f"f2s{i_}")))
        f2.main(A, vm, hooks=hk, pre_issued=npre)
        self.stamp("f2 loop end")
        f2.epilogue(A, vm)
        self.stamp("end")
        self.dump_stamps()
        A("s_endpgm")

    def build(self):
        A = self.A
        A(f"s_cmp_ge_u32 s2, 256")
        A(f"s_cbranch_scc1 K_exit")
        A(f"s_load_dwordx16 s[68:83], s[0:1], 0")
        A(f"s_load_dwordx4 s[84:87], s[0:1], 64")
        A(f"s_load_dwordx2 s[88:89], s[0:1], 80")
        if self.stamps: A("v_mov_b32 v255, 0")
        A(f"s_mov_b32 s{sID}, s2")
        A(f"v_lshrrev_b32 v4, 6, v0")
        A("s_nop 0")
        A(f"v_readfirstlane_b32 s20, v4")
        A("s_waitcnt lgkmcnt(0)")
        if self.wsbase:
            A(f"s_add_u32 s{pWS}, s{pWS}, {hex(self.wsbase)}")
            A(f"s_addc_u32 s{pWS+1}, s{pWS+1}, 0")
        A(f"s_load_dword s{sNONCE}, s[{pWS}:{pWS+1}], {OFF_EPOCH}")
        if self.codepf:
            A("s_getpc_b64 s[4:5]")
            A("K_pc:")
            A("s_and_b32 s5, s5, 0xffff")
            A("s_mov_b32 s6, K_exit-K_pc")
            A("s_mov_b32 s7, 0x20000")
            A("v_lshlrev_b32 v4, 7, v0")
            for k in range(self.codepf):
                A(f"s_mov_b32 s28, {32768*k}")
                A(f"buffer_load_dword v229, v4, s[4:7], s28 offen")
        if self.tlbpf:
            A.srd(4, pWS, 28 << 20)
            A("v_and_b32 v4, 63, v0")
            A("v_lshlrev_b32 v4, 19, v4")
            A("v_add_u32 v4, 0x7ff80, v4")
            A(f"buffer_load_dword v229, v4, s[4:7], 0 offen")
            A.srd(4, pOUT, 2048*640*2)
            A("v_and_b32 v4, 63, v0")
            A("v_lshlrev_b32 v4, 16, v4")
            A(f"buffer_load_dword v229, v4, s[4:7], 0 offen")
        A.srd(srdF, pWS, SZ_FLAGS)
        self.body()
        A("K_exit:")
        A("s_endpgm")
        lines, n = hazard.fix(A.l)
        return lines

HEADER = open(os.path.join(os.path.dirname(os.path.abspath(__file__)), "header.txt")).read()
def full_source(**kw):
    g = Gen(**kw)
    body = "\n".join(g.build())
    src = HEADER + f"""; @launch grid=(256,1,1) block=(256,1,1) lds=163840
.amdgcn_target "amdgcn-amd-amdhsa--gfx950"
.text
.globl {NAME}
.p2align 8
.type {NAME},@function
{NAME}:
{body}
.section .rodata,"a"
.p2align 6
.amdhsa_kernel {NAME}
  .amdhsa_next_free_vgpr 512
  .amdhsa_next_free_sgpr 102
  .amdhsa_accum_offset 256
  .amdhsa_group_segment_fixed_size 0
  .amdhsa_kernarg_size 88
  .amdhsa_user_sgpr_count 2
  .amdhsa_user_sgpr_kernarg_segment_ptr 1
  .amdhsa_system_sgpr_workgroup_id_x 1
.end_amdhsa_kernel
"""
    return src, g
if __name__ == "__main__":
    kw = {}
    for o in sys.argv[2:]:
        k, v_ = o.split("="); kw[k] = eval(v_)
    src, g = full_source(**kw)
    out = sys.argv[1] if len(sys.argv) > 1 else "gated_mix__spectral_gfnet__swiglu_ffn__prompt.s"
    open(out, "w").write(src)
    print("wrote", out, len(src), "bytes")
```

```python
from asmlib import *
from layout import *

NST = 20
XSLOT, WBASE, WSLOT = 16384, 49152, 12288
NXS, NWS = 3, 6
ACC = 64

class R:
    vxo = (230, 231, 232, 233)
    vwo = (234, 235, 236)
    vx = (237, 238, 239, 240)
    vw, vw2 = 241, 242
    vt = 56
    opA = (16, 36)
    opB = (28, 48)
    srdX, srdW, srdH = 8, 12, 16
    sw = 20
    skx, skw = 21, 22
    smx, smw = 23, 24
    smt, sft = 25, 26
    st = 28

def setup(A, s_b, pBX, pWG, pWU, pWS):
    st, t = R.st, R.vt
    A.c("---- F1 setup ----")
    A(f"s_and_b32 s{st}, s{s_b}, 1")
    A(f"s_lshl_b32 s{st}, s{st}, 3")
    A(f"s_lshr_b32 s{st+1}, s{s_b}, 3")
    A(f"s_and_b32 s{st+1}, s{st+1}, 7")
    A(f"s_add_u32 s{R.smt}, s{st}, s{st+1}")
    A(f"s_lshr_b32 s{st+1}, s{s_b}, 1")
    A(f"s_and_b32 s{st+1}, s{st+1}, 3")
    A(f"s_lshl_b32 s{st+1}, s{st+1}, 2")
    A(f"s_lshr_b32 s{st+2}, s{s_b}, 6")
    A(f"s_add_u32 s{R.sft}, s{st+1}, s{st+2}")
    A.srd(R.srdX, pBX, 2048*640*2)
    A(f"s_cmp_lt_u32 s{R.sw}, 2")
    A(f"s_cselect_b32 s{R.srdW}, s{pWG}, s{pWU}")
    A(f"s_cselect_b32 s{R.srdW+1}, s{pWG+1}, s{pWU+1}")
    A(f"s_and_b32 s{R.srdW+1}, s{R.srdW+1}, 0xffff")
    A(f"s_mov_b32 s{R.srdW+2}, {hex(640*1536*2)}")
    A(f"s_mov_b32 s{R.srdW+3}, 0x20000")
    A(f"v_and_b32 v{t}, 63, v0")
    A(f"s_lshl_b32 s{st}, s{R.smt}, 7")
    A(f"s_lshl_b32 s{st+1}, s{R.sw}, 5")
    A(f"s_add_u32 s{st}, s{st}, s{st+1}")
    A(f"s_mul_i32 s{st}, s{st}, 1280")
    A(f"v_lshrrev_b32 v{t+1}, 3, v{t}")
    A(f"v_mul_u32_u24 v{t+1}, 1280, v{t+1}")
    A(f"v_add_u32 v{t+1}, s{st}, v{t+1}")
    A(f"v_lshrrev_b32 v{t+2}, 4, v{t}")
    A(f"v_xor_b32 v{t+2}, v{t+2}, v{t}")
    A(f"v_and_b32 v{t+2}, 7, v{t+2}")
    A(f"v_lshl_add_u32 v{R.vxo[0]}, v{t+2}, 4, v{t+1}")
    A(f"v_xor_b32 v{t+2}, 4, v{t+2}")
    A(f"v_lshl_add_u32 v{R.vxo[1]}, v{t+2}, 4, v{t+1}")
    A(f"v_add_u32 v{R.vxo[1]}, {8*1280-1024}, v{R.vxo[1]}")
    A(f"v_add_u32 v{R.vxo[2]}, {16*1280-2048}, v{R.vxo[0]}")
    A(f"v_add_u32 v{R.vxo[3]}, {16*1280-2048}, v{R.vxo[1]}")
    A(f"s_and_b32 s{st}, s{R.sw}, 1")
    A(f"s_mul_i32 s{st}, s{st}, {16*3072}")
    A(f"s_mul_i32 s{st+1}, s{R.sft}, 192")
    A(f"s_add_u32 s{st}, s{st}, s{st+1}")
    A(f"s_lshr_b32 s{st+1}, s{R.sw}, 1")
    A(f"s_mul_i32 s{st+1}, s{st+1}, 10")
    for j in range(3):
        A(f"v_add_u32 v{t+1}, {64*j}, v{t}")
        A(f"v_mul_u32_u24 v{t+2}, 5462, v{t+1}")
        A(f"v_lshrrev_b32 v{t+2}, 16, v{t+2}")
        A(f"v_mul_u32_u24 v{t+3}, 12, v{t+2}")
        A(f"v_sub_u32 v{t+3}, v{t+1}, v{t+3}")
        A(f"v_add_u32 v{t+3}, s{st+1}, v{t+3}")
        A(f"v_subrev_u32 v{t+4}, 12, v{t+3}")
        A(f"v_min_u32 v{t+3}, v{t+3}, v{t+4}")
        A(f"v_mul_u32_u24 v{t+2}, 3072, v{t+2}")
        A(f"v_lshl_add_u32 v{t+2}, v{t+3}, 4, v{t+2}")
        A(f"v_add_u32 v{t+2}, s{st}, v{t+2}")
        A(f"v_subrev_u32 v{R.vwo[j]}, {1024*j}, v{t+2}")
    A(f"s_lshl_b32 s{R.smx}, s{R.sw}, 12")
    A(f"s_mul_i32 s{R.smw}, s{R.sw}, 3072")
    A(f"s_add_u32 s{R.smw}, s{R.smw}, {WBASE}")

def setup_reads(A):
    st, t = R.st, R.vt
    A(f"v_and_b32 v{t}, 63, v0")
    A(f"s_lshr_b32 s{st}, s{R.sw}, 1")
    A(f"s_lshl_b32 s{st}, s{st}, 13")
    A(f"v_and_b32 v{t+1}, 31, v{t}")
    A(f"v_lshrrev_b32 v{t+2}, 5, v{t}")
    A(f"v_bfe_u32 v{t+3}, v{t+1}, 1, 3")
    A(f"v_xor_b32 v{t+3}, v{t+3}, v{t+2}")
    A(f"v_lshlrev_b32 v{t+4}, 7, v{t+1}")
    A(f"v_add_u32 v{t+4}, s{st}, v{t+4}")
    A(f"v_lshl_add_u32 v{R.vx[0]}, v{t+3}, 4, v{t+4}")
    for k in range(1, 4): A(f"v_xor_b32 v{R.vx[k]}, {32*k}, v{R.vx[0]}")
    A(f"s_and_b32 s{st}, s{R.sw}, 1")
    A(f"s_mul_i32 s{st+1}, s{st}, 96")
    A(f"s_add_u32 s{st+1}, s{st+1}, {WBASE}")
    A(f"v_lshrrev_b32 v{t+1}, 5, v{t}")
    A(f"v_lshlrev_b32 v{t+1}, 3, v{t+1}")
    A(f"v_bfe_u32 v{t+2}, v{t}, 2, 2")
    A(f"v_add_u32 v{t+1}, v{t+1}, v{t+2}")
    A(f"v_mul_u32_u24 v{t+1}, 192, v{t+1}")
    A(f"v_bfe_u32 v{t+2}, v{t}, 4, 1")
    A(f"v_lshl_add_u32 v{t+1}, v{t+2}, 4, v{t+1}")
    A(f"v_and_b32 v{t+2}, 1, v{t}")
    A(f"v_lshl_add_u32 v{t+1}, v{t+2}, 3, v{t+1}")
    A(f"v_bfe_u32 v{t+2}, v{t}, 1, 1")
    A(f"v_mul_u32_u24 v{t+3}, {6144+32}, v{t+2}")
    A(f"v_add_u32 v{t+1}, v{t+1}, v{t+3}")
    A(f"v_add_u32 v{R.vw}, s{st+1}, v{t+1}")
    A(f"s_mul_i32 s{st+1}, s{st}, 192")
    A(f"v_mul_u32_u24 v{t+3}, s{st+1}, v{t+2}")
    A(f"v_sub_u32 v{R.vw2}, v{R.vw}, v{t+3}")

def dma_x(c):
    L = [[f"s_add_u32 m0, s{R.smx}, {(c % NXS)*XSLOT}", f"s_mov_b32 s{R.skx}, {c*128}",
          f"buffer_load_dwordx4 v{R.vxo[0]}, {srd(R.srdX)}, s{R.skx} offen lds"]]
    for j in range(1, 4):
        L.append([f"buffer_load_dwordx4 v{R.vxo[j]}, {srd(R.srdX)}, s{R.skx} offen offset:{1024*j} lds"])
    return L
def dma_w(t):
    L = [[f"s_add_u32 m0, s{R.smw}, {(t % NWS)*WSLOT}", f"s_mov_b32 s{R.skw}, {t*32*3072}",
          f"buffer_load_dwordx4 v{R.vwo[0]}, {srd(R.srdW)}, s{R.skw} offen lds"]]
    for j in range(1, 3):
        L.append([f"buffer_load_dwordx4 v{R.vwo[j]}, {srd(R.srdW)}, s{R.skw} offen offset:{1024*j} lds"])
    return L

def reads(t, kk, setn):
    a0, b0 = R.opA[setn], R.opB[setn]
    vx = R.vx[2*(t & 1) + kk]
    xs = ((t >> 1) % NXS)*XSLOT
    wsl = (t % NWS)*WSLOT
    def rdA(tt):
        vw = R.vw2 if tt == 2 else R.vw
        return [f"ds_read_b64_tr_b16 v[{a0+4*tt+2*rd}:{a0+4*tt+2*rd+1}], v{vw} offset:{wsl + kk*3072 + rd*768 + tt*32}" for rd in range(2)]
    def rdB(tt):
        return [f"ds_read_b128 v[{b0+4*tt}:{b0+4*tt+3}], v{vx} offset:{xs + 4096*tt}"]
    return rdA(0) + rdB(0) + rdB(1) + rdA(1) + rdA(2)

def mfmas(setn, first=False):
    a0, b0 = R.opA[setn], R.opB[setn]
    L = []
    for tt in range(3):
        for t in range(2):
            d = ACC + (tt*2 + t)*16
            L.append(f"v_mfma_f32_32x32x16_bf16 v[{d}:{d+15}], v[{a0+4*tt}:{a0+4*tt+3}], v[{b0+4*t}:{b0+4*t+3}], " + ("0" if first else f"v[{d}:{d+15}]"))
    return L

def issue(A, vm, kind, i):
    for g in (dma_x(i) if kind == "x" else dma_w(i)): A(g)
    vm.issue(f"{kind}{i}", 4 if kind == "x" else 3)

def l2_prefetch(A, vm, pWG, pWU):
    A.c("---- L2 prefetch of Wg / Wu ----")
    A(f"s_cmp_lt_u32 s{R.sw}, 2")
    A(f"s_cselect_b32 s4, s{pWG}, s{pWU}")
    A(f"s_cselect_b32 s5, s{pWG+1}, s{pWU+1}")
    A(f"s_and_b32 s5, s5, 0xffff")
    A(f"s_mov_b32 s6, {hex(640*1536*2)}")
    A(f"s_mov_b32 s7, 0x20000")
    A(f"s_lshr_b32 s28, s98, 3")
    A(f"s_lshl_b32 s28, s28, 1")
    A(f"s_and_b32 s29, s{R.sw}, 1")
    A(f"s_add_u32 s28, s28, s29")
    A(f"s_mul_i32 s28, s28, 60")
    A(f"v_and_b32 v56, 63, v0")
    A(f"v_min_u32 v56, 59, v56")
    A(f"v_add_u32 v56, s28, v56")
    A(f"v_mul_u32_u24 v57, 10923, v56")
    A(f"v_lshrrev_b32 v57, 16, v57")
    A(f"v_mul_u32_u24 v58, 6, v57")
    A(f"v_sub_u32 v58, v56, v58")
    A(f"v_mul_u32_u24 v57, 3072, v57")
    A(f"v_lshl_add_u32 v57, v58, 7, v57")
    A(f"s_lshr_b32 s28, s98, 1")
    A(f"s_and_b32 s28, s28, 3")
    A(f"s_mul_i32 s28, s28, 768")
    A(f"buffer_load_dword v229, v57, s[4:7], s28 offen")
    vm.issue('pf', 1)

def x_prefetch(A, vm, first_chunk=3):
    A.c("---- L2 prefetch of x ----")
    A(f"s_lshr_b32 s28, s98, 3")
    A(f"s_lshl_b32 s28, s28, 2")
    A(f"s_add_u32 s28, s28, s{R.sw}")
    A(f"s_lshl_b32 s28, s28, 6")
    A(f"v_and_b32 v56, 63, v0")
    A(f"v_add_u32 v56, s28, v56")
    A(f"v_lshrrev_b32 v57, 10, v56")
    A(f"v_add_u32 v57, {first_chunk}, v57")
    A(f"v_min_u32 v57, 9, v57")
    A(f"v_and_b32 v56, 1023, v56")
    A(f"v_mul_u32_u24 v56, 1280, v56")
    A(f"v_lshl_add_u32 v56, v57, 7, v56")
    A(f"s_and_b32 s28, s98, 1")
    A(f"s_mul_i32 s28, s28, {1024*1280}")
    A(f"buffer_load_dword v229, v56, {srd(R.srdX)}, s28 offen")
    vm.issue('pfx', 1)

def main(A, vm, issued, fill=None, after_barrier=None, pause=None, late=None, extra_need=None, before_barrier=None):
    fill = list(fill or []); after_barrier = after_barrier or {}; pause = pause or {}; extra_need = extra_need or {}; before_barrier = before_barrier or {}
    A(f"s_waitcnt vmcnt({vm.wait({'x0','w0'} | set(extra_need.get(-1, ())))})")
    A("s_barrier")
    if -1 in after_barrier: after_barrier[-1]()
    A(reads(0, 0, 0))
    rdpos = ((0, 3), (1, 3), (2, 2))
    def split(rd):
        g = [[] for _ in range(6)]
        k = 0
        for gi, n in rdpos:
            g[gi] += rd[k:k+n]; k += n
        return g
    def addfill(g, n=2, start=0):
        for gi in range(start, 6):
            k = n if len(g[gi]) < 2 else max(0, n - 1)
            for _ in range(k):
                if fill: g[gi].append(fill.pop(0))
    queue = []
    def enqueue(kind, i):
        atoms = dma_x(i) if kind == "x" else dma_w(i)
        queue.extend((ins, f"{kind}{i}") for ins in atoms)
        issued.add((kind, i))
    for k in (late or []): enqueue(*k)
    def drain(g, slots):
        for gi in slots:
            if queue:
                ins, tag = queue.pop(0); g[gi] += ins; vm.issue(tag)
    need_reads0 = False
    for t in range(NST):
        A.c(f"F1 stage {t}")
        if need_reads0:
            A(reads(t, 0, 0)); need_reads0 = False
        g = split(reads(t, 1, 1))
        many = len(queue) > 4
        drain(g, (0, 1, 2, 3, 4, 5) if many else (1, 3, 5))
        addfill(g)
        A("s_waitcnt lgkmcnt(0)")
        A(place(mfmas(0, first=(t == 0)), g))
        if t + 1 < NST:
            need = {f'w{t+1}'}
            if (t + 1) % 2 == 0: need.add(f'x{(t+1)//2}')
            need |= set(extra_need.get(t, ()))
            while any(tag in need for _, tag in queue):
                ins, tag = queue.pop(0); A(ins); vm.issue(tag)
            A(f"s_waitcnt vmcnt({vm.wait(need)}) lgkmcnt(0)")
            if t in before_barrier: before_barrier[t]()
            A("s_barrier")
            if t in after_barrier: after_barrier[t]()
            paused = t in pause
            g = [[] for _ in range(6)] if paused else split(reads(t+1, 0, 0))
            if (t & 1) and (t >> 1) + NXS < NST//2 and ("x", (t >> 1) + NXS) not in issued: enqueue("x", (t >> 1) + NXS)
            if t + NWS < NST and ("w", t + NWS) not in issued: enqueue("w", t + NWS)
            many = len(queue) > 4
            drain(g, (0, 1, 2, 3, 4, 5) if many else (1, 3, 5))
            addfill(g)
            A(place(mfmas(1), g))
            if paused:
                pause[t](); need_reads0 = True
        else:
            A("s_waitcnt lgkmcnt(0)")
            A(mfmas(1))
    assert not queue and not fill, (len(queue), len(fill))

def epilogue(A, vm, pWS, sc=" sc1", between=None):
    st, t = R.st, R.vt
    A.c("---- F1 epilogue ----")
    A.srd(R.srdH, pWS, SZ_H, OFF_H)
    A(f"s_lshr_b32 s{st}, s{R.sw}, 1")
    A(f"s_lshl_b32 s{st}, s{st}, 1")
    A(f"s_lshl_b32 s{st+1}, s{R.smt}, 2")
    A(f"s_add_u32 s{st}, s{st}, s{st+1}")
    A(f"s_mul_i32 s{st}, s{st}, 96")
    A(f"s_mul_i32 s{st+1}, s{R.sft}, 6")
    A(f"s_add_u32 s{st}, s{st}, s{st+1}")
    A(f"s_and_b32 s{st+1}, s{R.sw}, 1")
    A(f"s_mul_i32 s{st+1}, s{st+1}, 3")
    A(f"s_add_u32 s{st}, s{st}, s{st+1}")
    A(f"s_lshl_b32 s{st}, s{st}, 10")
    A(f"v_and_b32 v{t}, 63, v0")
    A(f"v_lshlrev_b32 v{t}, 4, v{t}")
    A(f"s_mov_b32 s{st+2}, 0xbfb8aa3b")
    A(f"s_mov_b32 s{st+3}, 0xbfb8aa3b")
    A.nop(4)
    E, O = 16, 32
    for tt in range(3):
        for tc in range(2):
            d = ACC + (tt*2 + tc)*16
            o = O + 4*((tt*2+tc) & 1)
            gi = [0, 2, 8, 10]
            for k, g in enumerate(gi): A(f"v_pk_mul_f32 v[{E+2*k}:{E+2*k+1}], v[{d+g}:{d+g+1}], s[{st+2}:{st+3}]")
            for k in range(8): A(f"v_exp_f32 v{E+k}, v{E+k}")
            for k, g in enumerate(gi): A(f"v_pk_mul_f32 v[{d+g+4}:{d+g+5}], v[{d+g}:{d+g+1}], v[{d+g+4}:{d+g+5}]")
            for k in range(4): A(f"v_pk_add_f32 v[{E+2*k}:{E+2*k+1}], v[{E+2*k}:{E+2*k+1}], 1.0 op_sel_hi:[1,0]")
            for k in range(8): A(f"v_rcp_f32 v{E+k}, v{E+k}")
            A("s_nop 0")
            for k, g in enumerate(gi): A(f"v_pk_mul_f32 v[{d+g+4}:{d+g+5}], v[{d+g+4}:{d+g+5}], v[{E+2*k}:{E+2*k+1}]")
            for k, g in enumerate(gi): A(f"v_cvt_pk_bf16_f32 v{o+k}, v{d+g+4}, v{d+g+5}")
            off = (tc*96 + tt)*1024
            A(f"s_add_u32 s{st+1}, s{st}, {off}")
            A(f"buffer_store_dwordx4 v[{o}:{o+3}], v{t}, {srd(R.srdH)}, s{st+1} offen{sc}")
            vm.issue('hst')
            if between: between(tt*2 + tc)
```

```python
from asmlib import *
from layout import *
import struct
def fb(x): return hex(struct.unpack('<I', struct.pack('<f', x))[0])

import os
SC = os.environ.get('AUXSC', ' sc1')
NOST = os.environ.get('NOST')
class R:
    vl = 1
    vn = 2
    vh = 3
    TWr, TWi = 160, 176
    t3r, t3i = 192, 198
    T2r, T2i = 0, 16
    CRe, CIm, F10 = 216, 232, 248
    sw = 20
    sc = 98
    sa2 = 63
    srdAX, srdX1, srdWR, srdWI, srdWF, srdWD, srdWT, srdGW, srdG, srdFT, srdZ = 32, 36, 40, 44, 48, 52, 56, 60, 64, 4, 4
    st = 28
    st2 = 99

import f1 as _f1
AUXB   = _f1.WBASE + _f1.NWS*_f1.WSLOT
L_XR   = AUXB
L_GW   = AUXB + 12288
if _f1.NXS == 4:
    L_WS = 3*_f1.XSLOT
    L_WD = AUXB + 14336
else:
    L_WS = AUXB + 14336
    L_WD = AUXB + 32768
L_Z    = _f1.WBASE + (_f1.NWS-2)*_f1.WSLOT
ZROW, ZWAVE = 2560, 5184
L_X    = AUXB
L_F    = AUXB + 16384

def setup(A, pAX, pWR, pWI, pWD, pGW, pWS):
    A.c("---- aux setup ----")
    A(f"v_and_b32 v{R.vl}, 63, v0")
    A(f"v_and_b32 v{R.vn}, 31, v{R.vl}")
    A(f"v_lshrrev_b32 v{R.vh}, 5, v{R.vl}")
    A.srd(R.srdAX, pAX, 2048*640*2)

def setup_out(A, pWS):
    A.srd(R.srdX1, pWS, SZ_X1, OFF_X1)
    A.srd(R.srdWF, pWS, SZ_WF, OFF_WF)
    A.srd(R.srdWT, pWS, SZ_WT, OFF_WT)
    A.srd(R.srdG, pWS, 8192, OFF_G)

XA = 16
def issue_wd(A, vm, pWD=80):
    st = R.st
    A.c("Wd tile DMA (workgroups >= 240 fall off the end of the buffer and get zeros)")
    A.srd(R.srdWD, pWD, 1536*640*2)
    A(f"s_mul_i32 s{st+2}, s{R.sc}, 52429")
    A(f"s_lshr_b32 s{st+2}, s{st+2}, 18")
    A(f"s_mul_i32 s{st+3}, s{st+2}, 5")
    A(f"s_sub_u32 s{st+3}, s{R.sc}, s{st+3}")
    A(f"s_lshl_b32 s{st}, s{st+2}, 5")
    A(f"s_lshl_b32 s{st+1}, s{R.sw}, 3")
    A(f"s_add_u32 s{st}, s{st}, s{st+1}")
    A(f"s_mul_i32 s{st}, s{st}, 1280")
    A(f"s_lshl_b32 s{st+1}, s{st+3}, 8")
    A(f"s_add_u32 s{st}, s{st}, s{st+1}")
    A(f"v_lshrrev_b32 v5, 4, v{R.vl}")
    A(f"v_mul_u32_u24 v5, 1280, v5")
    A(f"v_and_b32 v6, 15, v{R.vl}")
    A(f"v_lshl_add_u32 v5, v6, 4, v5")
    A(f"s_lshl_b32 s{st+1}, s{R.sw}, 11")
    A(f"s_add_u32 m0, s{st+1}, {L_WD}")
    A(f"v_add_u32 v6, {4*1280-1024}, v5")
    A(f"buffer_load_dwordx4 v5, {srd(R.srdWD)}, s{st} offen lds")
    A(f"buffer_load_dwordx4 v6, {srd(R.srdWD)}, s{st} offen offset:1024 lds")
    vm.issue('wd', 2)

def issue_loads(A, vm, mid=None, pWR=70, pWI=72, pWD=80, pGW=82, wd=True):
    st = R.st
    A.c("x rows: chunk i = 64j + l ; i<80 row s', i<160 row s'+1024, else out of range (zeros)")
    A(f"s_lshl_b32 s{st}, s{R.sc}, 2")
    A(f"s_add_u32 s{st}, s{st}, s{R.sw}")
    A(f"s_mul_i32 s{st}, s{st}, 1280")
    A(f"s_mul_i32 s{st+1}, s{R.sw}, 3072")
    A(f"s_add_u32 m0, s{st+1}, {L_XR}")
    A(f"v_lshlrev_b32 v4, 4, v{R.vl}")
    A(f"buffer_load_dwordx4 v4, {srd(R.srdAX)}, s{st} offen lds")
    A(f"v_add_u32 v5, {1024-1024}, v4")
    A(f"v_add_u32 v6, {1024*1280 - 256 - 1024}, v4")
    A(f"v_cmp_gt_u32 vcc, 16, v{R.vl}")
    A(f"v_cndmask_b32 v5, v6, v5, vcc")
    A(f"buffer_load_dwordx4 v5, {srd(R.srdAX)}, s{st} offen offset:1024 lds")
    A(f"v_add_u32 v5, {1024*1280 + 48*16 - 2048}, v4")
    A(f"v_mov_b32 v6, 0x40000000")
    A(f"v_cmp_gt_u32 vcc, 32, v{R.vl}")
    A(f"v_cndmask_b32 v5, v6, v5, vcc")
    A(f"buffer_load_dwordx4 v5, {srd(R.srdAX)}, s{st} offen offset:2048 lds")
    vm.issue('xr', 3)
    A.srd(R.srdWR, pWR, 2048*321*2)
    A.srd(R.srdWI, pWI, 2048*321*2)
    A.c("filter staging: rho=b&63 (rows 32 rho + e), cq=b>>6 ; wave: array = w>>1, rows 16(w&1) + i/12, chunk i%12")
    A(f"s_and_b32 s{st}, s{R.sc}, 63")
    A(f"s_lshl_b32 s{st}, s{st}, 5")
    A(f"s_and_b32 s{st+1}, s{R.sw}, 1")
    A(f"s_lshl_b32 s{st+1}, s{st+1}, 4")
    A(f"s_add_u32 s{st}, s{st}, s{st+1}")
    A(f"s_lshr_b32 s{st+1}, s{R.sc}, 6")
    A(f"s_mul_i32 s{st+1}, s{st+1}, 162")
    A(f"s_mul_i32 s{st+2}, s{R.sw}, 3072")
    A(f"s_add_u32 m0, s{st+2}, {L_WS}")
    A(f"s_cmp_lt_u32 s{R.sw}, 2")
    A(f"s_cselect_b32 s4, s{R.srdWR}, s{R.srdWI}")
    A(f"s_cselect_b32 s5, s{R.srdWR+1}, s{R.srdWI+1}")
    A(f"s_mov_b32 s6, {hex(2048*321*2)}")
    A(f"s_mov_b32 s7, 0x20000")
    for j in range(3):
        A(f"v_add_u32 v5, {64*j}, v{R.vl}")
        A(f"v_mul_u32_u24 v6, 5462, v5")
        A(f"v_lshrrev_b32 v6, 16, v6")
        A(f"v_mul_u32_u24 v7, 12, v6")
        A(f"v_sub_u32 v7, v5, v7")
        A(f"v_add_u32 v6, s{st}, v6")
        A(f"v_mul_u32_u24 v6, 642, v6")
        A(f"v_add_u32 v6, s{st+1}, v6")
        A(f"v_and_b32 v6, -16, v6")
        A(f"v_lshl_add_u32 v6, v7, 4, v6")
        if j: A(f"v_subrev_u32 v6, {1024*j}, v6")
        A(f"buffer_load_dwordx4 v6, s[4:7], 0 offen" + (f" offset:{1024*j}" if j else "") + " lds")
    vm.issue('ws', 3)
    if wd: issue_wd(A, vm, pWD)
    A.c("gate_w: 80 chunks ; wave w loads chunks 64w.. (out of range -> zeros)")
    A.srd(R.srdGW, pGW, 640*2)
    A(f"s_lshl_b32 s{st}, s{R.sw}, 10")
    A(f"s_min_u32 s{st}, s{st}, 1024")
    A(f"s_add_u32 m0, s{st}, {L_GW}")
    A(f"buffer_load_dwordx4 v4, {srd(R.srdGW)}, s{st} offen lds")
    vm.issue('gw', 1)
    if mid: mid()

def consts_a1(A):
    A.c("constants: F32 interleaved, tw320, F10")
    n, h = R.vn, R.vh
    A(f"v_cvt_f32_u32 v4, v{n}")
    A(f"v_cvt_f32_u32 v5, v{h}")
    A(f"v_mul_f32 v6, {fb(1/32)}, v4")
    A(f"v_mul_f32 v7, 4.0, v5")
    A(f"v_mul_f32 v8, v7, v6")
    for i in range(4):
        for q in range(4):
            A(f"v_fmamk_f32 v9, v6, {fb(float(8*i+q))}, v8")
            A(f"v_fract_f32 v9, v9")
            A(f"v_sin_f32 v10, v9")
            A(f"v_cos_f32 v11, v9")
            A("s_nop 0")
            A(f"v_cvt_pk_bf16_f32 v12, v11, v10")
            A(f"v_cvt_pk_bf16_f32 v13, -v10, v11")
            A(f"v_accvgpr_write_b32 a{R.CRe+4*i+q}, v12")
            A(f"v_accvgpr_write_b32 a{R.CIm+4*i+q}, v13")
    A(f"v_mul_f32 v6, {fb(1/320)}, v4")
    A(f"v_mul_f32 v8, v7, v6")
    for idx, (e, j) in enumerate([(0,0),(0,1),(0,2),(0,3),(1,0),(1,1)]):
        A(f"v_fmamk_f32 v9, v6, {fb(float(8*e+j))}, v8")
        A(f"v_cos_f32 v{R.t3r+idx}, v9")
        A(f"v_sin_f32 v{R.t3i+idx}, -v9")
    A(f"v_lshrrev_b32 v9, 3, v{n}")
    A(f"v_lshlrev_b32 v9, 2, v9")
    A(f"v_bfe_u32 v10, v{n}, 2, 1")
    A(f"v_lshl_add_u32 v9, v10, 1, v9")
    A(f"v_bfe_u32 v10, v{n}, 1, 1")
    A(f"v_add_u32 v9, v9, v10")
    A(f"v_cmp_gt_u32 s[{R.st}:{R.st+1}], 10, v9")
    A(f"v_cvt_f32_u32 v9, v9")
    A(f"v_mul_f32 v9, {fb(0.1)}, v9")
    A(f"v_and_b32 v10, 1, v{n}")
    A(f"v_cvt_f32_u32 v10, v10")
    A(f"v_mul_f32 v10, 0.25, v10" if False else f"v_mul_f32 v10, {fb(0.25)}, v10")
    A(f"v_fma_f32 v10, v7, v9, v10")
    A(f"v_cmp_eq_u32 vcc, 0, v{h}")
    A(f"s_and_b64 s[{R.st+2}:{R.st+3}], vcc, s[{R.st}:{R.st+1}]")
    for e in range(2):
        for q in range(4):
            d = R.F10 + 4*e + q
            if e == 1 and q >= 2:
                A(f"v_accvgpr_write_b32 a{d}, 0"); continue
            A(f"v_fmamk_f32 v11, v9, {fb(float(8*e+q))}, v10")
            A(f"v_fract_f32 v11, v11")
            A(f"v_cos_f32 v12, v11")
            A(f"v_sin_f32 v13, v11")
            A("s_nop 0")
            A(f"v_cvt_pk_bf16_f32 v12, v12, v13")
            m = R.st if e == 0 else R.st+2
            A(f"v_cndmask_b32 v12, 0, v12, s[{m}:{m+1}]")
            A(f"v_accvgpr_write_b32 a{d}, v12")

def consts_a2_fill():
    n, h = R.vn, R.vh
    t0, t1, t2, t3, t4, t5 = 243, 244, 245, 246, 247, 248
    L = [f"v_cvt_f32_u32 v{t0}, v{n}", f"v_cvt_f32_u32 v{t1}, v{h}", f"v_mul_f32 v{t1}, 4.0, v{t1}",
         f"v_mul_f32 v{t2}, {fb(1/1024)}, v{t0}", f"v_mul_f32 v{t3}, v{t1}, v{t2}"]
    for i in range(4):
        for j in range(4):
            L += [f"v_fmamk_f32 v{t4}, v{t2}, {fb(float(8*i+j))}, v{t3}",
                  f"v_cos_f32 v{R.TWr+4*i+j}, v{t4}", f"v_sin_f32 v{R.TWi+4*i+j}, -v{t4}"]
    return L

def cmulp(A, d, a, c, t, conj_out=False):
    A(f"v_pk_mul_f32 v[{t}:{t+1}], v[{a}:{a+1}], v[{c}:{c+1}] op_sel:[1,1] op_sel_hi:[1,0]")
    A(f"v_pk_fma_f32 v[{d}:{d+1}], v[{a}:{a+1}], v[{c}:{c+1}], v[{t}:{t+1}] op_sel:[0,0,0] op_sel_hi:[0,1,1] neg_lo:[0,0,1]")

def cmul(A, dr, di, ar, ai, br, bi, t):
    A(f"v_mul_f32 v{t}, v{ai}, v{bi}")
    A(f"v_mul_f32 v{di}, v{ai}, v{br}") if di == ai else A(f"v_mul_f32 v{di}, v{ai}, v{br}")
    A(f"v_fmac_f32 v{di}, v{ar}, v{bi}")
    A(f"v_fma_f32 v{dr}, v{ar}, v{br}, -v{t}")

D1r, D1i, PK, D2 = 32, 48, 96, (32, 48)
def fft320_core(A, xa=XA, tmp=(4, 6), mid=None):
    for i in range(4):
        c = "0" if i == 0 else f"v[{D1r}:{D1r+15}]"
        A(f"v_mfma_f32_32x32x16_bf16 v[{D1r}:{D1r+15}], v[{xa+4*i}:{xa+4*i+3}], a[{R.CRe+4*i}:{R.CRe+4*i+3}], {c}")
        c = "0" if i == 0 else f"v[{D1i}:{D1i+15}]"
        A(f"v_mfma_f32_32x32x16_bf16 v[{D1i}:{D1i+15}], v[{xa+4*i}:{xa+4*i+3}], a[{R.CIm+4*i}:{R.CIm+4*i+3}], {c}")
    for r in range(2):
        A(f"v_mov_b32 v{PK+8*r+6}, 0")
        A(f"v_mov_b32 v{PK+8*r+7}, 0")
    if mid: mid()
    t0, t1 = tmp
    for r in range(2):
        for idx, (e, j) in ((0, (0, 0)), (2, (0, 2)), (4, (1, 0))):
            reg = 4*(2*r+e) + j
            ar, ai = D1r+reg, D1i+reg
            tr, ti = R.t3r+idx, R.t3i+idx
            A(f"v_pk_mul_f32 v[{t0}:{t0+1}], v[{ai}:{ai+1}], v[{ti}:{ti+1}]")
            A(f"v_pk_mul_f32 v[{t1}:{t1+1}], v[{ai}:{ai+1}], v[{tr}:{tr+1}]")
            A(f"v_pk_fma_f32 v[{t0}:{t0+1}], v[{ar}:{ar+1}], v[{tr}:{tr+1}], v[{t0}:{t0+1}] neg_lo:[0,0,1] neg_hi:[0,0,1]")
            A(f"v_pk_fma_f32 v[{t1}:{t1+1}], v[{ar}:{ar+1}], v[{ti}:{ti+1}], v[{t1}:{t1+1}]")
            A(f"v_cvt_pk_bf16_f32 v{PK+8*r+4*e+j}, v{t0}, v{t1}")
            A(f"v_cvt_pk_bf16_f32 v{PK+8*r+4*e+j+1}, v{t0+1}, v{t1+1}")
    for r in range(2):
        for e in range(2):
            c = "0" if e == 0 else f"v[{D2[r]}:{D2[r]+15}]"
            A(f"v_mfma_f32_32x32x16_bf16 v[{D2[r]}:{D2[r]+15}], a[{R.F10+4*e}:{R.F10+4*e+3}], v[{PK+8*r+4*e}:{PK+8*r+4*e+3}], {c}")

def a1_core(A, vm):
    st = R.st
    A.c("---- A1 core ----")
    A(f"s_waitcnt vmcnt({vm.wait({'xr'})})")
    A(f"v_bfe_u32 v4, v{R.vl}, 4, 1")
    A(f"v_mul_u32_u24 v4, 1280, v4")
    A(f"v_and_b32 v5, 15, v{R.vl}")
    A(f"v_lshl_add_u32 v4, v5, 2, v4")
    A(f"v_mul_u32_u24 v5, 160, v{R.vh}")
    A(f"s_mul_i32 s{st}, s{R.sw}, 3072")
    A(f"s_add_u32 s{st}, s{st}, {L_XR}")
    A(f"v_add3_u32 v4, v4, v5, s{st}")
    for i in range(4):
        for q in range(4):
            A(f"ds_read_b32 v{XA+4*i+q}, v4 offset:{320*i+40*q}")
    A("s_waitcnt lgkmcnt(0)")
    fft320_core(A)
    A(f"s_mul_i32 s{st}, s{R.sw}, {ZWAVE}")
    A(f"s_add_u32 s{st}, s{st}, {L_Z}")
    A(f"v_lshl_add_u32 v4, v{R.vh}, 6, v{R.vn}")
    A(f"v_lshl_add_u32 v4, v4, 3, s{st}")
    for i in range(3):
        if i == 2: A("s_mov_b64 exec, 0xffffffff")
        for r in range(2):
            for jj in range(2):
                d = D2[r] + 4*i + 2*jj
                A(f"ds_write_b64 v4, v[{d}:{d+1}] offset:{r*ZROW + (128*i + 32*jj)*8}")
    A("s_mov_b64 exec, -1")

P_AP, P_AQ0, P_AQ, P_ST0, P_ST2 = 112, 113, 114, 115, 116
P_C = 118
P_TAU = 124
P_WA = 126
P_WS = 130
P_WD = 228
P_GA, P_GB = 135, 136
def phase1_pre(A):
    st = R.st
    A.c("---- phase 1: addresses and constants prepared ahead ----")
    A(f"v_and_b32 v4, 3, v0")
    A(f"v_mul_u32_u24 v5, {ZWAVE}, v4")
    A(f"v_add_u32 v5, {L_Z}, v5")
    A(f"v_lshrrev_b32 v7, 2, v0")
    A(f"v_lshl_add_u32 v{P_AP}, v7, 3, v5")
    A(f"v_sub_u32 v8, 192, v7")
    A(f"v_lshl_add_u32 v{P_AQ}, v8, 3, v5")
    A(f"v_add_u32 v9, {128*8}, v{P_AQ}")
    A(f"v_cmp_eq_u32 vcc, 0, v7")
    A(f"v_cndmask_b32 v{P_AQ0}, v9, v5, vcc")
    A(f"s_lshl_b32 s{st}, s{R.sc}, 2")
    A(f"v_add_u32 v6, s{st}, v4")
    A(f"v_cvt_f32_u32 v9, v6")
    A(f"v_mul_f32 v9, {fb(1/2048)}, v9")
    A(f"v_cos_f32 v{P_TAU}, v9")
    A(f"v_sin_f32 v{P_TAU+1}, -v9")
    A(f"v_lshrrev_b32 v10, 1, v7")
    A(f"v_lshlrev_b32 v10, 15, v10")
    A(f"v_and_b32 v11, 1, v7")
    A(f"v_lshl_add_u32 v10, v11, 3, v10")
    A(f"v_lshl_add_u32 v{P_ST0}, v6, 4, v10")
    A(f"v_mov_b32 v11, 0x40000000")
    A(f"v_cmp_gt_u32 vcc, 34, v7")
    A(f"v_cndmask_b32 v{P_ST2}, v11, v{P_ST0}, vcc")
    A(f"v_cvt_f32_u32 v9, v7")
    for rnd in range(3):
        A(f"v_add_f32 v10, {fb(64.0*rnd)}, v9")
        A(f"v_mul_f32 v10, {fb(1/640)}, v10")
        A(f"v_sin_f32 v{P_C+2*rnd}, -v10")
        A(f"v_cos_f32 v10, v10")
        A(f"v_sub_f32 v{P_C+2*rnd+1}, 0, v10")
    A(f"v_bfe_u32 v5, v0, 2, 1")
    A(f"v_lshrrev_b32 v6, 3, v0")
    A(f"v_lshl_add_u32 v7, v4, 3, v5")
    A(f"v_mul_u32_u24 v7, 192, v7")
    A(f"v_lshl_add_u32 v7, v6, 1, v7")
    A(f"v_add_u32 v7, {L_WS}, v7")
    A(f"s_lshr_b32 s{st}, s{R.sc}, 6")
    A(f"v_add_u32 v8, s{st}, v5")
    A(f"v_lshlrev_b32 v8, 1, v8")
    for jj in range(4):
        A(f"v_add_u32 v9, {4*jj}, v8")
        A(f"v_and_b32 v9, 15, v9")
        A(f"v_add_u32 v{P_WA+jj}, v7, v9")
    A(f"s_mul_i32 s{st+1}, s{st}, 81")
    A(f"s_and_b32 s{st+2}, s{R.sc}, 63")
    A(f"s_lshl_b32 s{st+2}, s{st+2}, 6")
    A(f"v_lshlrev_b32 v7, 14, v5")
    A(f"v_lshl_add_u32 v7, v4, 4, v7")
    A(f"v_add_u32 v7, s{st+2}, v7")
    A(f"v_mov_b32 v14, 0x40000000")
    for rnd in range(3):
        A(f"v_add_u32 v8, {32*rnd}, v6")
        A(f"v_add_u32 v9, s{st+1}, v8")
        A(f"v_sub_u32 v10, 320, v9")
        A(f"v_cmp_lt_u32 vcc, 160, v9")
        A(f"v_cndmask_b32 v11, v9, v10, vcc")
        A(f"v_cndmask_b32_e64 v10, 0, 1, vcc")
        A(f"v_and_b32 v12, 1, v11")
        A(f"v_lshl_add_u32 v10, v12, 1, v10")
        A(f"v_lshrrev_b32 v11, 1, v11")
        A(f"v_lshl_add_u32 v11, v11, 3, v10")
        A(f"v_lshl_add_u32 v11, v11, 12, v7")
        if rnd == 2:
            A(f"v_cmp_gt_u32 vcc, 81, v8")
            A(f"v_cndmask_b32 v11, v14, v11, vcc")
            A(f"v_cmp_ge_u32 vcc, 320, v9")
            A(f"v_cndmask_b32 v{P_WS+2}, v14, v11, vcc")
            A(f"v_add_u32 v11, 4096, v11")
            A(f"v_cmp_eq_u32 vcc, 160, v9")
            A(f"v_cndmask_b32 v{P_WS+3}, v14, v11, vcc")
        else:
            A(f"v_mov_b32 v{P_WS+rnd}, v11")
    A(f"v_bfe_u32 v4, v{R.vl}, 5, 1")
    A(f"v_lshlrev_b32 v4, 4, v4")
    A(f"v_bfe_u32 v5, v{R.vl}, 4, 1")
    A(f"v_lshl_add_u32 v4, v5, 2, v4")
    A(f"v_bfe_u32 v5, v{R.vl}, 2, 2")
    A(f"v_add_u32 v4, v4, v5")
    A(f"v_lshlrev_b32 v4, 8, v4")
    A(f"v_and_b32 v5, 3, v{R.vl}")
    A(f"v_lshl_add_u32 v4, v5, 3, v4")
    A(f"s_lshl_b32 s{st}, s{R.sw}, 6")
    A(f"s_add_u32 s{st}, s{st}, {L_WD}")
    A(f"v_add_u32 v{P_WD}, s{st}, v4")
    A(f"s_mul_i32 s{st}, s{R.sw}, 3072")
    A(f"s_add_u32 s{st}, s{st}, {L_XR}")
    A(f"v_lshl_add_u32 v{P_GA}, v{R.vl}, 2, s{st}")
    A(f"v_lshlrev_b32 v7, 2, v{R.vl}")
    A(f"v_add_u32 v{P_GB}, {L_GW}, v7")

def a1_elem(A, vm):
    st = R.st
    A.c("---- A1 elementwise ----")
    A("s_waitcnt lgkmcnt(0)")
    A("s_barrier")
    ZB = 16
    for rnd in range(3):
        z = ZB + 8*rnd
        aq, oq = (P_AQ0, 0) if rnd == 0 else (P_AQ, 512*(2-rnd))
        A(f"ds_read_b64 v[{z}:{z+1}], v{P_AP} offset:{512*rnd}")
        A(f"ds_read_b64 v[{z+2}:{z+3}], v{aq} offset:{oq}")
        A(f"ds_read_b64 v[{z+4}:{z+5}], v{P_AP} offset:{512*rnd + ZROW}")
        A(f"ds_read_b64 v[{z+6}:{z+7}], v{aq} offset:{oq + ZROW}")
    for rnd in range(3):
        z = ZB + 8*rnd
        Zp0, Zq0, Zp1, Zq1 = z, z+2, z+4, z+6
        A(f"s_waitcnt lgkmcnt({8 - 4*rnd})")
        Up, Uq, Vp, Vq = 40, 42, 44, 46
        for (u, vv, z0, z1) in ((Up, Vp, Zp0, Zp1), (Uq, Vq, Zq0, Zq1)):
            A(f"v_pk_add_f32 v[{u}:{u+1}], v[{z0}:{z0+1}], v[{z1}:{z1+1}]")
            A(f"v_pk_add_f32 v[{vv}:{vv+1}], v[{z0}:{z0+1}], v[{z1}:{z1+1}] neg_lo:[0,1] neg_hi:[0,1]")
        E, O, T, X = (48, 50), (52, 54), (56, 58), ((60, 62), (64, 66))
        for pi, (P, Q) in enumerate(((Up, Uq), (Vp, Vq))):
            A(f"v_pk_add_f32 v[{E[pi]}:{E[pi]+1}], v[{P}:{P+1}], v[{Q}:{Q+1}] neg_hi:[0,1]")
            A(f"v_pk_add_f32 v[{O[pi]}:{O[pi]+1}], v[{P}:{P+1}], v[{Q}:{Q+1}] neg_lo:[0,1]")
        c = P_C + 2*rnd
        for pi in range(2): A(f"v_pk_mul_f32 v[{T[pi]}:{T[pi]+1}], v[{O[pi]}:{O[pi]+1}], v[{c}:{c+1}] op_sel:[1,1] op_sel_hi:[1,0]")
        for pi in range(2): A(f"v_pk_fma_f32 v[{T[pi]}:{T[pi]+1}], v[{O[pi]}:{O[pi]+1}], v[{c}:{c+1}], v[{T[pi]}:{T[pi]+1}] op_sel:[0,0,0] op_sel_hi:[0,1,1] neg_lo:[0,0,1]")
        for pi in range(2):
            Xp, Xq = X[pi]
            A(f"v_pk_add_f32 v[{Xp}:{Xp+1}], v[{E[pi]}:{E[pi]+1}], v[{T[pi]}:{T[pi]+1}]")
            A(f"v_pk_add_f32 v[{Xq}:{Xq+1}], v[{E[pi]}:{E[pi]+1}], v[{T[pi]}:{T[pi]+1}] neg_lo:[0,1] neg_hi:[1,0]")
        for k, Xr in enumerate(X[1]): A(f"v_pk_mul_f32 v[{E[k]}:{E[k]+1}], v[{Xr}:{Xr+1}], v[{P_TAU}:{P_TAU+1}] op_sel:[1,1] op_sel_hi:[1,0]")
        for k, Xr in enumerate(X[1]): A(f"v_pk_fma_f32 v[{Xr}:{Xr+1}], v[{Xr}:{Xr+1}], v[{P_TAU}:{P_TAU+1}], v[{E[k]}:{E[k]+1}] op_sel:[0,0,0] op_sel_hi:[0,1,1] neg_lo:[0,0,1]")
        o = 68 + 4*rnd
        for pi in range(2):
            Xp, Xq = X[pi]
            A(f"v_cvt_pk_bf16_f32 v{o+2*pi}, v{Xp}, v{Xp+1}")
            A(f"v_cvt_pk_bf16_f32 v{o+2*pi+1}, v{Xq}, v{Xq+1}")
        if rnd == 2:
            A(f"v_lshrrev_b32 v7, 2, v0")
            A(f"v_cmp_eq_u32 vcc, 33, v7")
            for k in range(4): A(f"v_cndmask_b32_e64 v{o+k}, v{o+k}, 0, vcc")
        va = P_ST2 if rnd == 2 else P_ST0
        A(f"s_mov_b32 s{st}, {rnd << 20}")
        A(f"buffer_store_dwordx2 v[{o}:{o+1}], v{va}, {srd(R.srdX1)}, s{st} offen{SC}")
        A(f"s_mov_b32 s{st+1}, {(rnd << 20) + 16384}")
        A(f"buffer_store_dwordx2 v[{o+2}:{o+3}], v{va}, {srd(R.srdX1)}, s{st+1} offen{SC}")
        vm.issue('st', 2)

sG0, sG1 = 27, 91
def gate(A, vm):
    st = R.st
    GX = 80
    A.c("---- gate ----")
    for t in range(5):
        A(f"ds_read_b32 v{GX+t}, v{P_GA} offset:{256*t}")
        A(f"ds_read_b32 v{GX+5+t}, v{P_GA} offset:{1280+256*t}")
        A(f"ds_read_b32 v{GX+10+t}, v{P_GB} offset:{256*t}")
    A("s_waitcnt lgkmcnt(0)")
    for r in range(2):
        A(f"v_mov_b32 v{4+r}, 0")
        for t in range(5):
            A(f"v_dot2c_f32_bf16 v{4+r}, v{GX+5*r+t}, v{GX+10+t}")
    for mod in ("quad_perm:[1,0,3,2]", "quad_perm:[2,3,0,1]", "row_half_mirror", "row_mirror"):
        for r in range(2):
            A(f"v_add_f32_dpp v{4+r}, v{4+r}, v{4+r} {mod} row_mask:0xf bank_mask:0xf")
    for r in range(2):
        for k in range(4): A(f"v_readlane_b32 s{16+k}, v{4+r}, {16*k}")
        A(f"v_mov_b32 v{4+r}, s16")
        for k in range(1, 4): A(f"v_add_f32 v{4+r}, s{16+k}, v{4+r}")
    A(f"v_and_b32 v6, 1, v{R.vl}")
    A(f"v_cmp_eq_u32 vcc, 1, v6")
    A(f"v_cndmask_b32 v4, v4, v5, vcc")
    A(f"v_cvt_pk_bf16_f32 v4, v4, v4")
    A(f"v_and_b32 v4, 0xffff0000, v4")
    A(f"v_mul_f32 v4, 0xbfb8aa3b, v4")
    A(f"v_exp_f32 v4, v4")
    A(f"v_add_f32 v4, 1.0, v4")
    A(f"v_rcp_f32 v4, v4")
    A(f"v_cvt_pk_bf16_f32 v4, v4, v4")
    A(f"v_and_b32 v4, 0xffff0000, v4")
    A(f"v_readlane_b32 s{sG0}, v4, 0")
    A(f"v_readlane_b32 s{sG1}, v4, 1")
    A(f"s_lshl_b32 s{st}, s{R.sc}, 2")
    A(f"s_add_u32 s{st}, s{st}, s{R.sw}")
    A(f"s_lshl_b32 s{st}, s{st}, 2")
    A(f"v_lshlrev_b32 v6, 12, v6")
    A(f"v_add_u32 v6, s{st}, v6")
    A(f"v_mov_b32 v7, 0x40000000")
    A(f"v_cmp_gt_u32 vcc, 2, v{R.vl}")
    A(f"v_cndmask_b32 v6, v7, v6, vcc")
    A(f"buffer_store_dword v4, v6, {srd(R.srdG)}, 0 offen{SC}")
    vm.issue('gst')

def wprep(A, vm):
    A.c("---- filter prep ----")
    W = 16
    for rnd in range(3):
        for jj in range(4):
            A(f"ds_read_u16 v{W+8*rnd+jj}, v{P_WA+jj} offset:{2*192*jj + 64*rnd}")
            A(f"ds_read_u16 v{W+8*rnd+4+jj}, v{P_WA+jj} offset:{6144 + 2*192*jj + 64*rnd}")
        if rnd == 0: pass
    for rnd in range(3):
        A(f"s_waitcnt lgkmcnt({min(15, 16 - 8*rnd) if rnd < 2 else 0})")
        w = W + 8*rnd
        for jj in range(4): A(f"v_lshl_or_b32 v{w+jj}, v{w+4+jj}, 16, v{w+jj}")
        A(f"buffer_store_dwordx4 v[{w}:{w+3}], v{P_WS+rnd}, {srd(R.srdWF)}, 0 offen{SC}")
        vm.issue('st')
        if rnd == 2:
            A(f"buffer_store_dwordx4 v[{w}:{w+3}], v{P_WS+3}, {srd(R.srdWF)}, 0 offen{SC}")
            vm.issue('st')

def wtprep(A, vm, tag='st'):
    st = R.st
    A.c("---- Wd fragment prep ----")
    A(f"s_mul_i32 s{st+2}, s{R.sc}, 52429")
    A(f"s_lshr_b32 s{st+2}, s{st+2}, 18")
    A(f"s_mul_i32 s{st+3}, s{st+2}, 5")
    A(f"s_sub_u32 s{st+3}, s{R.sc}, s{st+3}")
    for k in range(2):
        A(f"ds_read_b64_tr_b16 v[{40+4*k}:{41+4*k}], v{P_WD} offset:{32*k}")
        A(f"ds_read_b64_tr_b16 v[{42+4*k}:{43+4*k}], v{P_WD} offset:{32*k + 8*256}")
    A(f"s_mul_i32 s{st+2}, s{st+2}, 40")
    A(f"s_lshl_b32 s{st+3}, s{st+3}, 3")
    A(f"s_add_u32 s{st+2}, s{st+2}, s{st+3}")
    A(f"s_lshl_b32 s{st+3}, s{R.sw}, 1")
    A(f"s_add_u32 s{st+2}, s{st+2}, s{st+3}")
    A(f"s_lshl_b32 s{st+2}, s{st+2}, 10")
    A(f"v_lshlrev_b32 v5, 4, v{R.vl}")
    A("s_waitcnt lgkmcnt(0)")
    A(f"buffer_store_dwordx4 v[40:43], v5, {srd(R.srdWT)}, s{st+2} offen{SC}")
    A(f"buffer_store_dwordx4 v[44:47], v5, {srd(R.srdWT)}, s{st+2} offen offset:1024{SC}")
    vm.issue(tag, 2)

def ftgen(A, vm, pWS):
    st = R.st
    A.c("---- F table ----")
    A.srd(R.srdFT, pWS, SZ_FT, OFF_FT)
    lab = A.label("noft")
    A(f"s_lshl_b32 s{st}, s{R.sw}, 8")
    A(f"s_add_u32 s{st}, s{st}, s{R.sc}")
    A(f"s_cmp_ge_u32 s{st}, 840")
    A(f"s_cbranch_scc1 {lab}")
    A(f"s_mul_i32 s{st+1}, s{st}, 52429")
    A(f"s_lshr_b32 s{st+1}, s{st+1}, 21")
    A(f"s_mul_i32 s{st+2}, s{st+1}, 40")
    A(f"s_sub_u32 s{st+2}, s{st}, s{st+2}")
    A(f"s_lshl_b32 s{st+2}, s{st+2}, 4")
    A(f"v_and_b32 v4, 15, v{R.vl}")
    A(f"v_add_u32 v4, s{st+2}, v4")
    A(f"s_lshl_b32 s{st+1}, s{st+1}, 2")
    A(f"v_lshrrev_b32 v5, 4, v{R.vl}")
    A(f"v_add_u32 v5, s{st+1}, v5")
    A(f"v_lshlrev_b32 v6, 1, v5")
    A(f"s_mov_b32 s{st+3}, 6710887")
    for c in range(4):
        if c == 0: A(f"v_mov_b32 v7, v6")
        if c == 1: A(f"v_sub_u32 v7, 320, v6")
        if c == 2: A(f"v_add_u32 v7, 1, v6")
        if c == 3: A(f"v_sub_u32 v7, 319, v6")
        A(f"v_mul_u32_u24 v8, v7, v4")
        A(f"v_mul_hi_u32 v9, v8, s{st+3}")
        A(f"v_mul_u32_u24 v9, 640, v9")
        A(f"v_sub_u32 v8, v8, v9")
        A(f"v_cvt_f32_u32 v8, v8")
        A(f"v_mul_f32 v8, {fb(1/640)}, v8")
        A(f"v_cos_f32 v9, v8")
        A(f"v_sin_f32 v10, -v8")
        if c < 2:
            A(f"v_cmp_eq_u32 vcc, 0, v5")
            A(f"v_mul_f32 v11, 0.5, v9")
            A(f"v_cndmask_b32 v9, v9, v11, vcc")
            A(f"v_cndmask_b32_e64 v10, v10, 0, vcc")
        A(f"v_cvt_pk_bf16_f32 v{16+c}, v9, v10")
        A(f"v_cmp_gt_u32 vcc, {81 if c == 0 else 80}, v5")
        A(f"v_cndmask_b32 v{16+c}, 0, v{16+c}, vcc")
    A(f"s_lshl_b32 s{st}, s{st}, 10")
    A(f"v_lshlrev_b32 v5, 4, v{R.vl}")
    A(f"buffer_store_dwordx4 v[16:19], v5, {srd(R.srdFT)}, s{st} offen{SC}")
    A(f"{lab}:")

def a2_loads(A, vm, pWS):
    st = R.st
    A.c("---- A2 loads ----")
    A(f"s_lshl_b32 s{st}, s{R.sa2}, 14")
    A(f"s_lshl_b32 s{st+1}, s{R.sw}, 12")
    A(f"s_add_u32 s{st}, s{st}, s{st+1}")
    A(f"s_add_u32 m0, s{st+1}, {L_X}")
    A(f"v_lshlrev_b32 v4, 4, v{R.vl}")
    for j in range(4):
        A(f"buffer_load_dwordx4 v4, {srd(R.srdX1)}, s{st} offen offset:{1024*j} sc1 lds")
    A(f"s_add_u32 m0, s{st+1}, {L_F}")
    A("s_nop 0")
    for j in range(4):
        A(f"buffer_load_dwordx4 v4, {srd(R.srdWF)}, s{st} offen offset:{1024*j} sc1 lds")
    vm.issue('a2in', 8)

def a2(A0, vm, pWS, waited=False, weave=None):
    st = R.st
    A = Asm(A0.prefix + 'a2')
    A.c("---- A2 ----")
    D0r, D0i, D1r, D1i, XA_, WQ = 32, 48, 204, 16, 16, (220, 224)
    A.srd(R.srdZ, pWS, SZ_Z, OFF_Z)
    if not waited: A(f"s_waitcnt vmcnt({vm.wait({'a2in'})})")
    A("s_barrier")
    A(f"v_lshlrev_b32 v4, 11, v{R.vh}")
    A(f"v_lshl_add_u32 v4, v{R.vn}, 4, v4")
    A(f"s_lshl_b32 s{st}, s{R.sw}, 2")
    A(f"s_add_u32 s{st}, s{st}, {L_X}")
    A(f"v_add_u32 v8, s{st}, v4")
    for i in range(4):
        for q in range(4):
            A(f"ds_read_b32 v{XA_+4*i+q}, v8 offset:{(8*i+q)*512}")
    A(f"s_lshl_b32 s{st}, s{R.sw}, 12")
    A(f"s_add_u32 s{st}, s{st}, {L_F}")
    A(f"v_lshlrev_b32 v5, 9, v{R.vh}")
    A(f"v_lshl_add_u32 v5, v{R.vn}, 2, v5")
    A(f"v_add_u32 v5, s{st}, v5")
    def mm(i, data_is_a, src, Dr, Di):
        for (dst, cc) in ((Dr, R.CRe), (Di, R.CIm)):
            c = "0" if i == 0 else f"v[{dst}:{dst+15}]"
            d, k = f"v[{src+4*i}:{src+4*i+3}]", f"a[{cc+4*i}:{cc+4*i+3}]"
            a_, b_ = (d, k) if data_is_a else (k, d)
            A(f"v_mfma_f32_32x32x16_bf16 v[{dst}:{dst+15}], {a_}, {b_}, {c}")
    def tw_quad(i, Dr, Di):
        for h2 in range(2):
            x = 4*i + 2*h2
            t, u = (6, 10) if h2 == 0 else (12, 14)
            A(f"v_pk_mul_f32 v[{t}:{t+1}], v[{Di+x}:{Di+x+1}], v[{R.TWi+x}:{R.TWi+x+1}]")
            A(f"v_pk_mul_f32 v[{u}:{u+1}], v[{Di+x}:{Di+x+1}], v[{R.TWr+x}:{R.TWr+x+1}]")
            A(f"v_pk_fma_f32 v[{t}:{t+1}], v[{Dr+x}:{Dr+x+1}], v[{R.TWr+x}:{R.TWr+x+1}], v[{t}:{t+1}] neg_lo:[0,0,1] neg_hi:[0,0,1]")
            A(f"v_pk_fma_f32 v[{u}:{u+1}], v[{Dr+x}:{Dr+x+1}], v[{R.TWi+x}:{R.TWi+x+1}], v[{u}:{u+1}]")
        for h2 in range(2):
            x = 4*i + 2*h2
            t, u = (6, 10) if h2 == 0 else (12, 14)
            A(f"v_cvt_pk_bf16_f32 v{Dr+x}, v{t}, v{u}")
            A(f"v_cvt_pk_bf16_f32 v{Dr+x+1}, v{t+1}, v{u+1}")
    def wf_read(i):
        for j in range(4): A(f"ds_read_b32 v{WQ[i & 1]+j}, v5 offset:{(8*i+j)*128}")
    def filt_quad(i, Dr, Di):
        w = WQ[i & 1]
        for h2 in range(2):
            x = 4*i + 2*h2
            ww = w + 2*h2
            A(f"v_lshlrev_b32 v6, 16, v{ww}");     A(f"v_lshlrev_b32 v7, 16, v{ww+1}")
            A(f"v_and_b32 v10, 0xffff0000, v{ww}"); A(f"v_and_b32 v11, 0xffff0000, v{ww+1}")
            A(f"v_pk_mul_f32 v[12:13], v[{Di+x}:{Di+x+1}], v[10:11]")
            A(f"v_pk_mul_f32 v[14:15], v[{Di+x}:{Di+x+1}], v[6:7]")
            A(f"v_pk_fma_f32 v[12:13], v[{Dr+x}:{Dr+x+1}], v[6:7], v[12:13] neg_lo:[0,0,1] neg_hi:[0,0,1]")
            A(f"v_pk_fma_f32 v[14:15], v[{Dr+x}:{Dr+x+1}], v[10:11], v[14:15]")
            A(f"v_cvt_pk_bf16_f32 v{Dr+x}, v12, -v14")
            A(f"v_cvt_pk_bf16_f32 v{Dr+x+1}, v13, -v15")
    A("s_waitcnt lgkmcnt(0)")
    for i in range(4): mm(i, True, XA_, D0r, D0i)
    wf_read(0)
    for i in range(4):
        tw_quad(i, D0r, D0i); mm(i, False, D0r, D1r, D1i)
    for i in range(4):
        if i < 3: wf_read(i+1)
        A(f"s_waitcnt lgkmcnt({4 if i < 3 else 0})")
        filt_quad(i, D1r, D1i); mm(i, True, D1r, D0r, D0i)
    for i in range(4):
        tw_quad(i, D0r, D0i); mm(i, False, D0r, D1r, D1i)
    A("s_barrier")
    for x in range(16):
        A(f"v_cvt_pk_bf16_f32 v{D0r+x}, v{D1r+x}, -v{D1i+x}")
        A(f"ds_write_b32 v8, v{D0r+x} offset:{(8*(x>>2)+(x&3))*512}")
    A("s_waitcnt lgkmcnt(0)")
    A("s_barrier")
    A(f"s_lshl_b32 s{st+1}, s{R.sw}, 12")
    A(f"s_add_u32 s{st+2}, s{st+1}, {L_X}")
    A(f"v_lshl_add_u32 v4, v{R.vl}, 4, s{st+2}")
    for j in range(4):
        A(f"ds_read_b128 v[{16+4*j}:{19+4*j}], v4 offset:{1024*j}")
    A(f"s_lshl_b32 s{st}, s{R.sa2}, 14")
    A(f"s_add_u32 s{st}, s{st}, s{st+1}")
    A(f"v_lshlrev_b32 v5, 4, v{R.vl}")
    A("s_waitcnt lgkmcnt(0)")
    for j in range(4):
        A(f"buffer_store_dwordx4 v[{16+4*j}:{19+4*j}], v5, {srd(R.srdZ)}, s{st} offen offset:{1024*j}{SC}")
    vm.issue('zst', 4)
    lines = A.l
    if weave:
        first = next(i for i, l in enumerate(lines) if "v_mfma" in l)
        last = max(i for i, l in enumerate(lines) if "ds_write_b32" in l)
        n = len(weave); out = lines[:first]
        span = last - first
        k = 0
        for j in range(first, len(lines)):
            out.append(lines[j])
            while k < n and j < last and (j - first + 1)*n >= (k + 1)*span:
                out += ["  " + x for x in weave[k]]; k += 1
        out += ["  " + x for w in weave[k:] for x in w]
        assert k == n
        lines = out
    A0.l += lines

ZL = 204
L_ZB, ZBW = AUXB, 3104
L_GO = AUXB + 12800
sG0, sG1 = 27, 91
def a3_loads(A, vm, pWS):
    st = R.st
    A.c("---- A3 loads ----")
    A.srd(R.srdZ, pWS, SZ_Z, OFF_Z)
    st = 62
    A(f"v_lshrrev_b32 v4, 2, v0")
    A(f"v_lshrrev_b32 v5, 1, v4")
    A(f"v_lshlrev_b32 v5, 15, v5")
    A(f"v_and_b32 v4, 1, v4")
    A(f"v_lshl_add_u32 v5, v4, 3, v5")
    A(f"v_and_b32 v4, 3, v0")
    A(f"s_lshl_b32 s{st}, s{R.sc}, 2")
    A(f"v_add_u32 v4, s{st}, v4")
    A(f"v_lshl_add_u32 v5, v4, 4, v5")
    for rnd in range(3):
        for pi in range(2):
            A(f"s_mov_b32 s{st}, {(rnd << 20) + pi*16384}")
            A(f"buffer_load_dwordx2 v[{ZL+4*rnd+2*pi}:{ZL+4*rnd+2*pi+1}], v5, {srd(R.srdZ)}, s{st} offen sc1")
    vm.issue('zl', 6)

def a3_elem(A, vm, extra=None):
    st = R.st
    A.c("---- A3 elementwise ----")
    A(f"v_and_b32 v{R.vl}, 63, v0")
    A(f"v_and_b32 v{R.vn}, 31, v{R.vl}")
    A(f"v_lshrrev_b32 v{R.vh}, 5, v{R.vl}")
    A(f"v_and_b32 v4, 3, v0")
    A(f"v_mul_u32_u24 v5, {ZBW}, v4")
    A(f"v_add_u32 v5, {L_ZB}, v5")
    A(f"s_mul_i32 s{st}, s{R.sw}, {ZBW}")
    A(f"s_add_u32 s{st}, s{st}, {L_ZB + 2560}")
    A(f"v_and_b32 v6, 7, v{R.vl}")
    A(f"v_lshl_add_u32 v6, v6, 2, s{st}")
    A(f"v_mov_b32 v7, 0")
    A(f"ds_write_b32 v6, v7")
    A(f"s_lshl_b32 s{st}, s{R.sc}, 2")
    A(f"v_add_u32 v6, s{st}, v4")
    A(f"v_cvt_f32_u32 v7, v6")
    A(f"v_mul_f32 v7, {fb(1/2048)}, v7")
    A(f"v_cos_f32 v12, v7")
    A(f"v_sin_f32 v13, v7")
    A(f"v_lshrrev_b32 v7, 2, v0")
    A(f"s_waitcnt vmcnt({vm.wait({'zl'})})")
    for rnd in range(3):
        z = ZL + 4*rnd
        if extra: extra(rnd)
        A(f"v_add_u32 v8, {64*rnd}, v7")
        A(f"v_cvt_f32_u32 v15, v8")
        A(f"v_mul_f32 v15, {fb(1/640)}, v15")
        A(f"v_sin_f32 v14, -v15")
        A(f"v_cos_f32 v15, v15")
        Up, Uq, Vp, Vq = 32, 34, 36, 38
        for (d, src) in ((Up, z), (Uq, z+1), (Vp, z+2), (Vq, z+3)):
            A(f"v_lshlrev_b32 v{d}, 16, v{src}")
            A(f"v_and_b32 v{d+1}, 0xffff0000, v{src}")
        for X in (Vp, Vq): cmulp(A, X, X, 12, 60)
        A(f"v_sub_u32 v9, 320, v8")
        A(f"v_cmp_eq_u32 vcc, 0, v8")
        A(f"v_lshl_add_u32 v10, v8, 2, v5")
        A(f"v_cndmask_b32_e64 v9, v9, 0, vcc")
        A(f"v_lshl_add_u32 v11, v9, 2, v5")
        Ap0, Aq0, Ap1, Aq1 = 40, 42, 44, 46
        A(f"v_pk_add_f32 v[{Ap0}:{Ap0+1}], v[{Up}:{Up+1}], v[{Vp}:{Vp+1}]")
        A(f"v_pk_add_f32 v[{Aq0}:{Aq0+1}], v[{Uq}:{Uq+1}], v[{Vq}:{Vq+1}]")
        A(f"v_pk_add_f32 v[{Ap1}:{Ap1+1}], v[{Up}:{Up+1}], v[{Vp}:{Vp+1}] neg_lo:[0,1] neg_hi:[0,1]")
        A(f"v_pk_add_f32 v[{Aq1}:{Aq1+1}], v[{Uq}:{Uq+1}], v[{Vq}:{Vq+1}] neg_lo:[0,1] neg_hi:[0,1]")
        if rnd == 0:
            for X in (Ap0, Aq0, Ap1, Aq1): A(f"v_cndmask_b32_e64 v{X+1}, v{X+1}, 0, vcc")
        if rnd == 2:
            A(f"v_mov_b32 v9, {L_ZB + 4*ZBW}")
            A(f"v_cmp_lt_u32 vcc, 160, v8")
            A(f"v_cndmask_b32 v10, v10, v9, vcc")
            A(f"v_cndmask_b32 v11, v11, v9, vcc")
        for r, (P, Q) in enumerate(((Ap0, Aq0), (Ap1, Aq1))):
            E, O, T = 48, 50, 52
            A(f"v_pk_add_f32 v[{E}:{E+1}], v[{P}:{P+1}], v[{Q}:{Q+1}] neg_hi:[0,1]")
            A(f"v_pk_add_f32 v[{O}:{O+1}], v[{P}:{P+1}], v[{Q}:{Q+1}] neg_lo:[0,1]")
            cmulp(A, T, O, 14, 60)
            A(f"v_pk_add_f32 v[54:55], v[{E}:{E+1}], v[{T}:{T+1}] neg_hi:[1,1]")
            A(f"v_pk_add_f32 v[56:57], v[{E}:{E+1}], v[{T}:{T+1}] neg_lo:[0,1] neg_hi:[0,1]")
            A(f"v_cvt_pk_bf16_f32 v58, v54, v55")
            A(f"v_cvt_pk_bf16_f32 v59, v56, v57")
            off = f" offset:{1280*r}" if r else ""
            A(f"ds_write_b32 v10, v58{off}")
            A(f"ds_write_b32 v11, v59{off}")
    A("s_waitcnt lgkmcnt(0)")

def a3_core(A, vm, pWS, mid=None):
    st = R.st
    A.c("---- A3 core ----")
    A(f"v_bfe_u32 v4, v{R.vl}, 4, 1")
    A(f"v_mul_u32_u24 v4, 1280, v4")
    A(f"v_and_b32 v5, 15, v{R.vl}")
    A(f"v_lshl_add_u32 v4, v5, 2, v4")
    A(f"v_mul_u32_u24 v5, 160, v{R.vh}")
    A(f"s_mul_i32 s{st}, s{R.sw}, {ZBW}")
    A(f"s_add_u32 s{st}, s{st}, {L_ZB}")
    A(f"v_add3_u32 v4, v4, v5, s{st}")
    for i in range(4):
        for q in range(4):
            A(f"ds_read_b32 v{XA+4*i+q}, v4 offset:{320*i+40*q}")
    A(f"v_mov_b32 v6, {fb(0.5/(2048*640))}")
    A(f"v_mul_f32 v8, s{sG0}, v6")
    A(f"v_mul_f32 v10, s{sG1}, v6")
    A(f"v_sub_f32 v9, 0, v8")
    A(f"v_sub_f32 v11, 0, v10")
    A("s_waitcnt lgkmcnt(0)")
    fft320_core(A, tmp=(12, 14), mid=mid)
    A(f"s_mul_i32 s{st}, s{R.sw}, 2560")
    A(f"s_add_u32 s{st}, s{st}, {L_GO}")
    A(f"v_lshl_add_u32 v4, v{R.vh}, 6, v{R.vn}")
    A(f"v_lshl_add_u32 v4, v4, 2, s{st}")
    for i in range(3):
        if i == 2: A("s_mov_b64 exec, 0xffffffff")
        for r in range(2):
            sc = 8 + 2*r
            for jj in range(2):
                d = D2[r] + 4*i + 2*jj
                A(f"v_pk_mul_f32 v[{d}:{d+1}], v[{d}:{d+1}], v[{sc}:{sc+1}]")
                A(f"v_cvt_pk_bf16_f32 v{d}, v{d}, v{d+1}")
                A(f"ds_write_b32 v4, v{d} offset:{r*1280 + (128*i + 32*jj)*4}")
    A("s_mov_b64 exec, -1")
    A.srd(R.srdZ, pWS, SZ_GA, OFF_GA)
    A(f"v_lshl_add_u32 v4, v{R.vl}, 4, s{st}")
    A("s_waitcnt lgkmcnt(0)")
    for j in range(3): A(f"ds_read_b128 v[{16+4*j}:{19+4*j}], v4 offset:{1024*j}")
    A(f"s_lshl_b32 s{st}, s{R.sc}, 2")
    A(f"s_add_u32 s{st}, s{st}, s{R.sw}")
    A(f"s_mul_i32 s{st}, s{st}, 1280")
    A(f"v_lshlrev_b32 v4, 4, v{R.vl}")
    A(f"v_add_u32 v5, 1024, v4")
    A(f"v_add_u32 v6, {1024*1280 - 256}, v4")
    A(f"v_cmp_gt_u32 vcc, 16, v{R.vl}")
    A(f"v_cndmask_b32 v5, v6, v5, vcc")
    A(f"v_add_u32 v7, {1024*1280 + 48*16}, v4")
    A(f"v_mov_b32 v6, 0x40000000")
    A(f"v_cmp_gt_u32 vcc, 32, v{R.vl}")
    A(f"v_cndmask_b32 v7, v6, v7, vcc")
    A("s_waitcnt lgkmcnt(0)")
    A(f"buffer_store_dwordx4 v[16:19], v4, {srd(R.srdZ)}, s{st} offen{SC}")
    A(f"buffer_store_dwordx4 v[20:23], v5, {srd(R.srdZ)}, s{st} offen{SC}")
    A(f"buffer_store_dwordx4 v[24:27], v7, {srd(R.srdZ)}, s{st} offen{SC}")
    vm.issue('gast', 3)
```

```python
from asmlib import *
from layout import *

NST = 20
import os
RING = os.environ.get('RING', '36')
NXS, NWS = (4, 5) if RING == '45' else (3, 6)
XSLOT, WSLOT = 16384, 12288
WBASE = NXS*XSLOT
ACC = 64

class R:
    vxo = (230, 231, 232, 233)
    vwo = (234, 235, 236)
    vx = (237, 238, 239, 240)
    vw, vw2 = 241, 242
    vt = 56
    opA = (16, 36)
    opB = (28, 48)
    srdX, srdW, srdH = 8, 12, 16
    sw = 20
    skx, skw = 21, 22
    smx, smw = 23, 24
    smt, sft = 25, 26
    st = 28

def setup(A, s_b, pBX, pWG, pWU, pWS):
    st, t = R.st, R.vt
    A.c("---- F1 setup ----")
    A(f"s_and_b32 s{st}, s{s_b}, 1")
    A(f"s_lshl_b32 s{st}, s{st}, 3")
    A(f"s_lshr_b32 s{st+1}, s{s_b}, 3")
    A(f"s_and_b32 s{st+1}, s{st+1}, 7")
    A(f"s_add_u32 s{R.smt}, s{st}, s{st+1}")
    A(f"s_lshr_b32 s{st+1}, s{s_b}, 1")
    A(f"s_and_b32 s{st+1}, s{st+1}, 3")
    A(f"s_lshl_b32 s{st+1}, s{st+1}, 2")
    A(f"s_lshr_b32 s{st+2}, s{s_b}, 6")
    A(f"s_add_u32 s{R.sft}, s{st+1}, s{st+2}")
    A.srd(R.srdX, pBX, 2048*640*2)
    A(f"s_cmp_lt_u32 s{R.sw}, 2")
    A(f"s_cselect_b32 s{R.srdW}, s{pWG}, s{pWU}")
    A(f"s_cselect_b32 s{R.srdW+1}, s{pWG+1}, s{pWU+1}")
    A(f"s_and_b32 s{R.srdW+1}, s{R.srdW+1}, 0xffff")
    A(f"s_mov_b32 s{R.srdW+2}, {hex(640*1536*2)}")
    A(f"s_mov_b32 s{R.srdW+3}, 0x20000")
    A(f"v_and_b32 v{t}, 63, v0")
    A(f"s_lshl_b32 s{st}, s{R.smt}, 7")
    A(f"s_lshl_b32 s{st+1}, s{R.sw}, 5")
    A(f"s_add_u32 s{st}, s{st}, s{st+1}")
    A(f"s_mul_i32 s{st}, s{st}, 1280")
    A(f"v_lshrrev_b32 v{t+1}, 3, v{t}")
    A(f"v_mul_u32_u24 v{t+1}, 1280, v{t+1}")
    A(f"v_add_u32 v{t+1}, s{st}, v{t+1}")
    A(f"v_lshrrev_b32 v{t+2}, 4, v{t}")
    A(f"v_xor_b32 v{t+2}, v{t+2}, v{t}")
    A(f"v_and_b32 v{t+2}, 7, v{t+2}")
    A(f"v_lshl_add_u32 v{R.vxo[0]}, v{t+2}, 4, v{t+1}")
    A(f"v_xor_b32 v{t+2}, 4, v{t+2}")
    A(f"v_lshl_add_u32 v{R.vxo[1]}, v{t+2}, 4, v{t+1}")
    A(f"v_add_u32 v{R.vxo[1]}, {8*1280-1024}, v{R.vxo[1]}")
    A(f"v_add_u32 v{R.vxo[2]}, {16*1280-2048}, v{R.vxo[0]}")
    A(f"v_add_u32 v{R.vxo[3]}, {16*1280-2048}, v{R.vxo[1]}")
    A(f"s_and_b32 s{st}, s{R.sw}, 1")
    A(f"s_mul_i32 s{st}, s{st}, {16*3072}")
    A(f"s_mul_i32 s{st+1}, s{R.sft}, 192")
    A(f"s_add_u32 s{st}, s{st}, s{st+1}")
    A(f"s_lshr_b32 s{st+1}, s{R.sw}, 1")
    A(f"s_mul_i32 s{st+1}, s{st+1}, 10")
    for j in range(3):
        A(f"v_add_u32 v{t+1}, {64*j}, v{t}")
        A(f"v_mul_u32_u24 v{t+2}, 5462, v{t+1}")
        A(f"v_lshrrev_b32 v{t+2}, 16, v{t+2}")
        A(f"v_mul_u32_u24 v{t+3}, 12, v{t+2}")
        A(f"v_sub_u32 v{t+3}, v{t+1}, v{t+3}")
        A(f"v_add_u32 v{t+3}, s{st+1}, v{t+3}")
        A(f"v_subrev_u32 v{t+4}, 12, v{t+3}")
        A(f"v_min_u32 v{t+3}, v{t+3}, v{t+4}")
        A(f"v_mul_u32_u24 v{t+2}, 3072, v{t+2}")
        A(f"v_lshl_add_u32 v{t+2}, v{t+3}, 4, v{t+2}")
        A(f"v_add_u32 v{t+2}, s{st}, v{t+2}")
        A(f"v_subrev_u32 v{R.vwo[j]}, {1024*j}, v{t+2}")
    A(f"s_lshl_b32 s{R.smx}, s{R.sw}, 12")
    A(f"s_mul_i32 s{R.smw}, s{R.sw}, 3072")
    A(f"s_add_u32 s{R.smw}, s{R.smw}, {WBASE}")

def setup_reads(A):
    st, t = R.st, R.vt
    A(f"v_and_b32 v{t}, 63, v0")
    A(f"s_lshr_b32 s{st}, s{R.sw}, 1")
    A(f"s_lshl_b32 s{st}, s{st}, 13")
    A(f"v_and_b32 v{t+1}, 31, v{t}")
    A(f"v_lshrrev_b32 v{t+2}, 5, v{t}")
    A(f"v_bfe_u32 v{t+3}, v{t+1}, 1, 3")
    A(f"v_xor_b32 v{t+3}, v{t+3}, v{t+2}")
    A(f"v_lshlrev_b32 v{t+4}, 7, v{t+1}")
    A(f"v_add_u32 v{t+4}, s{st}, v{t+4}")
    A(f"v_lshl_add_u32 v{R.vx[0]}, v{t+3}, 4, v{t+4}")
    for k in range(1, 4): A(f"v_xor_b32 v{R.vx[k]}, {32*k}, v{R.vx[0]}")
    A(f"s_and_b32 s{st}, s{R.sw}, 1")
    A(f"s_mul_i32 s{st+1}, s{st}, 96")
    A(f"s_add_u32 s{st+1}, s{st+1}, {WBASE}")
    A(f"v_lshrrev_b32 v{t+1}, 5, v{t}")
    A(f"v_lshlrev_b32 v{t+1}, 3, v{t+1}")
    A(f"v_bfe_u32 v{t+2}, v{t}, 2, 2")
    A(f"v_add_u32 v{t+1}, v{t+1}, v{t+2}")
    A(f"v_mul_u32_u24 v{t+1}, 192, v{t+1}")
    A(f"v_bfe_u32 v{t+2}, v{t}, 4, 1")
    A(f"v_lshl_add_u32 v{t+1}, v{t+2}, 4, v{t+1}")
    A(f"v_and_b32 v{t+2}, 1, v{t}")
    A(f"v_lshl_add_u32 v{t+1}, v{t+2}, 3, v{t+1}")
    A(f"v_bfe_u32 v{t+2}, v{t}, 1, 1")
    A(f"v_mul_u32_u24 v{t+3}, {6144+32}, v{t+2}")
    A(f"v_add_u32 v{t+1}, v{t+1}, v{t+3}")
    A(f"v_add_u32 v{R.vw}, s{st+1}, v{t+1}")
    A(f"s_mul_i32 s{st+1}, s{st}, 192")
    A(f"v_mul_u32_u24 v{t+3}, s{st+1}, v{t+2}")
    A(f"v_sub_u32 v{R.vw2}, v{R.vw}, v{t+3}")

def dma_x(c):
    L = [[f"s_add_u32 m0, s{R.smx}, {(c % NXS)*XSLOT}", f"s_mov_b32 s{R.skx}, {c*128}",
          f"buffer_load_dwordx4 v{R.vxo[0]}, {srd(R.srdX)}, s{R.skx} offen lds"]]
    for j in range(1, 4):
        L.append([f"buffer_load_dwordx4 v{R.vxo[j]}, {srd(R.srdX)}, s{R.skx} offen offset:{1024*j} lds"])
    return L
def dma_w(t):
    L = [[f"s_add_u32 m0, s{R.smw}, {(t % NWS)*WSLOT}", f"s_mov_b32 s{R.skw}, {t*32*3072}",
          f"buffer_load_dwordx4 v{R.vwo[0]}, {srd(R.srdW)}, s{R.skw} offen lds"]]
    for j in range(1, 3):
        L.append([f"buffer_load_dwordx4 v{R.vwo[j]}, {srd(R.srdW)}, s{R.skw} offen offset:{1024*j} lds"])
    return L

def reads(t, kk, setn):
    a0, b0 = R.opA[setn], R.opB[setn]
    vx = R.vx[2*(t & 1) + kk]
    xs = ((t >> 1) % NXS)*XSLOT
    wsl = (t % NWS)*WSLOT
    def rdA(tt):
        vw = R.vw2 if tt == 2 else R.vw
        return [f"ds_read_b64_tr_b16 v[{a0+4*tt+2*rd}:{a0+4*tt+2*rd+1}], v{vw} offset:{wsl + kk*3072 + rd*768 + tt*32}" for rd in range(2)]
    def rdB(tt):
        return [f"ds_read_b128 v[{b0+4*tt}:{b0+4*tt+3}], v{vx} offset:{xs + 4096*tt}"]
    return rdA(0) + rdB(0) + rdB(1) + rdA(1) + rdA(2)

def mfmas(setn, first=False):
    a0, b0 = R.opA[setn], R.opB[setn]
    L = []
    for tt in range(3):
        for t in range(2):
            d = ACC + (tt*2 + t)*16
            L.append(f"v_mfma_f32_32x32x16_bf16 v[{d}:{d+15}], v[{a0+4*tt}:{a0+4*tt+3}], v[{b0+4*t}:{b0+4*t+3}], " + ("0" if first else f"v[{d}:{d+15}]"))
    return L

def issue(A, vm, kind, i):
    for g in (dma_x(i) if kind == "x" else dma_w(i)): A(g)
    vm.issue(f"{kind}{i}", 4 if kind == "x" else 3)

def l2_prefetch(A, vm, pWG, pWU):
    A.c("---- L2 prefetch of Wg / Wu ----")
    A(f"s_cmp_lt_u32 s{R.sw}, 2")
    A(f"s_cselect_b32 s4, s{pWG}, s{pWU}")
    A(f"s_cselect_b32 s5, s{pWG+1}, s{pWU+1}")
    A(f"s_and_b32 s5, s5, 0xffff")
    A(f"s_mov_b32 s6, {hex(640*1536*2)}")
    A(f"s_mov_b32 s7, 0x20000")
    A(f"s_lshr_b32 s28, s98, 3")
    A(f"s_lshl_b32 s28, s28, 1")
    A(f"s_and_b32 s29, s{R.sw}, 1")
    A(f"s_add_u32 s28, s28, s29")
    A(f"s_mul_i32 s28, s28, 60")
    A(f"v_and_b32 v56, 63, v0")
    A(f"v_min_u32 v56, 59, v56")
    A(f"v_add_u32 v56, s28, v56")
    A(f"v_mul_u32_u24 v57, 10923, v56")
    A(f"v_lshrrev_b32 v57, 16, v57")
    A(f"v_mul_u32_u24 v58, 6, v57")
    A(f"v_sub_u32 v58, v56, v58")
    A(f"v_mul_u32_u24 v57, 3072, v57")
    A(f"v_lshl_add_u32 v57, v58, 7, v57")
    A(f"s_lshr_b32 s28, s98, 1")
    A(f"s_and_b32 s28, s28, 3")
    A(f"s_mul_i32 s28, s28, 768")
    A(f"buffer_load_dword v229, v57, s[4:7], s28 offen")
    vm.issue('pf', 1)

def x_prefetch(A, vm, first_chunk=3):
    A.c("---- L2 prefetch of x ----")
    A(f"s_lshr_b32 s28, s98, 3")
    A(f"s_lshl_b32 s28, s28, 2")
    A(f"s_add_u32 s28, s28, s{R.sw}")
    A(f"s_lshl_b32 s28, s28, 6")
    A(f"v_and_b32 v56, 63, v0")
    A(f"v_add_u32 v56, s28, v56")
    A(f"v_lshrrev_b32 v57, 10, v56")
    A(f"v_add_u32 v57, {first_chunk}, v57")
    A(f"v_min_u32 v57, 9, v57")
    A(f"v_and_b32 v56, 1023, v56")
    A(f"v_mul_u32_u24 v56, 1280, v56")
    A(f"v_lshl_add_u32 v56, v57, 7, v56")
    A(f"s_and_b32 s28, s98, 1")
    A(f"s_mul_i32 s28, s28, {1024*1280}")
    A(f"buffer_load_dword v229, v56, {srd(R.srdX)}, s28 offen")
    vm.issue('pfx', 1)

def main(A, vm, issued, fill=None, after_barrier=None, pause=None, late=None, extra_need=None, before_barrier=None):
    fill = list(fill or []); after_barrier = after_barrier or {}; pause = pause or {}; extra_need = extra_need or {}; before_barrier = before_barrier or {}
    A(f"s_waitcnt vmcnt({vm.wait({'x0','w0'} | set(extra_need.get(-1, ())))})")
    A("s_barrier")
    if -1 in after_barrier: after_barrier[-1]()
    A(reads(0, 0, 0))
    rdpos = ((0, 3), (1, 3), (2, 2))
    def split(rd):
        g = [[] for _ in range(6)]
        k = 0
        for gi, n in rdpos:
            g[gi] += rd[k:k+n]; k += n
        return g
    def addfill(g, n=2, start=0):
        for gi in range(start, 6):
            k = n if len(g[gi]) < 2 else max(0, n - 1)
            for _ in range(k):
                if fill: g[gi].append(fill.pop(0))
    queue = []
    def enqueue(kind, i):
        atoms = dma_x(i) if kind == "x" else dma_w(i)
        queue.extend((ins, f"{kind}{i}") for ins in atoms)
        issued.add((kind, i))
    for k in (late or []): enqueue(*k)
    def drain(g, slots):
        for gi in slots:
            if queue:
                ins, tag = queue.pop(0); g[gi] += ins; vm.issue(tag)
    need_reads0 = False
    for t in range(NST):
        A.c(f"F1 stage {t}")
        if need_reads0:
            A(reads(t, 0, 0)); need_reads0 = False
        g = split(reads(t, 1, 1))
        many = len(queue) > 4
        drain(g, (0, 1, 2, 3, 4, 5) if many else (1, 3, 5))
        addfill(g)
        A("s_waitcnt lgkmcnt(0)")
        A(place(mfmas(0, first=(t == 0)), g))
        if t + 1 < NST:
            need = {f'w{t+1}'}
            if (t + 1) % 2 == 0: need.add(f'x{(t+1)//2}')
            need |= set(extra_need.get(t, ()))
            while any(tag in need for _, tag in queue):
                ins, tag = queue.pop(0); A(ins); vm.issue(tag)
            A(f"s_waitcnt vmcnt({vm.wait(need)}) lgkmcnt(0)")
            if t in before_barrier: before_barrier[t]()
            A("s_barrier")
            if t in after_barrier: after_barrier[t]()
            paused = t in pause
            g = [[] for _ in range(6)] if paused else split(reads(t+1, 0, 0))
            if (t & 1) and (t >> 1) + NXS < NST//2 and ("x", (t >> 1) + NXS) not in issued: enqueue("x", (t >> 1) + NXS)
            if t + NWS < NST and ("w", t + NWS) not in issued: enqueue("w", t + NWS)
            many = len(queue) > 4
            drain(g, (0, 1, 2, 3, 4, 5) if many else (1, 3, 5))
            addfill(g)
            A(place(mfmas(1), g))
            if paused:
                pause[t](); need_reads0 = True
        else:
            A("s_waitcnt lgkmcnt(0)")
            A(mfmas(1))
    assert not queue and not fill, (len(queue), len(fill))

def epilogue(A, vm, pWS, sc=" sc1", between=None):
    st, t = R.st, R.vt
    A.c("---- F1 epilogue ----")
    A.srd(R.srdH, pWS, SZ_H, OFF_H)
    A(f"s_lshr_b32 s{st}, s{R.sw}, 1")
    A(f"s_lshl_b32 s{st}, s{st}, 1")
    A(f"s_lshl_b32 s{st+1}, s{R.smt}, 2")
    A(f"s_add_u32 s{st}, s{st}, s{st+1}")
    A(f"s_mul_i32 s{st}, s{st}, 96")
    A(f"s_mul_i32 s{st+1}, s{R.sft}, 6")
    A(f"s_add_u32 s{st}, s{st}, s{st+1}")
    A(f"s_and_b32 s{st+1}, s{R.sw}, 1")
    A(f"s_mul_i32 s{st+1}, s{st+1}, 3")
    A(f"s_add_u32 s{st}, s{st}, s{st+1}")
    A(f"s_lshl_b32 s{st}, s{st}, 10")
    A(f"v_and_b32 v{t}, 63, v0")
    A(f"v_lshlrev_b32 v{t}, 4, v{t}")
    A(f"s_mov_b32 s{st+2}, 0xbfb8aa3b")
    A(f"s_mov_b32 s{st+3}, 0xbfb8aa3b")
    A.nop(4)
    E, O = 16, 32
    for tt in range(3):
        for tc in range(2):
            d = ACC + (tt*2 + tc)*16
            o = O + 4*((tt*2+tc) & 1)
            gi = [0, 2, 8, 10]
            for k, g in enumerate(gi): A(f"v_pk_mul_f32 v[{E+2*k}:{E+2*k+1}], v[{d+g}:{d+g+1}], s[{st+2}:{st+3}]")
            for k in range(8): A(f"v_exp_f32 v{E+k}, v{E+k}")
            for k, g in enumerate(gi): A(f"v_pk_mul_f32 v[{d+g+4}:{d+g+5}], v[{d+g}:{d+g+1}], v[{d+g+4}:{d+g+5}]")
            for k in range(4): A(f"v_pk_add_f32 v[{E+2*k}:{E+2*k+1}], v[{E+2*k}:{E+2*k+1}], 1.0 op_sel_hi:[1,0]")
            for k in range(8): A(f"v_rcp_f32 v{E+k}, v{E+k}")
            A("s_nop 0")
            for k, g in enumerate(gi): A(f"v_pk_mul_f32 v[{d+g+4}:{d+g+5}], v[{d+g+4}:{d+g+5}], v[{E+2*k}:{E+2*k+1}]")
            for k, g in enumerate(gi): A(f"v_cvt_pk_bf16_f32 v{o+k}, v{d+g+4}, v{d+g+5}")
            off = (tc*96 + tt)*1024
            A(f"s_add_u32 s{st+1}, s{st}, {off}")
            A(f"buffer_store_dwordx4 v[{o}:{o+3}], v{t}, {srd(R.srdH)}, s{st+1} offen{sc}")
            vm.issue('hst')
            if between: between(tt*2 + tc)
```

```python
from asmlib import *
from layout import *

NST = 20
SPREAD = True
import os
RING = os.environ.get('RING', '36')
NXS, NWS = (4, 5) if RING == '45' else (3, 6)
XSLOT, WSLOT = 16384, 12288
WBASE = NXS*XSLOT
ACC = 64

class R:
    vxo = (230, 231, 232, 233)
    vwo = (234, 235, 236)
    vx = (237, 238, 239, 240)
    vw, vw2 = 241, 242
    vt = 56
    opA = (16, 36)
    opB = (28, 48)
    srdX, srdW, srdH = 8, 12, 16
    sw = 20
    skx, skw = 21, 22
    smx, smw = 23, 24
    smt, sft = 25, 26
    st = 28

def setup(A, s_b, pBX, pWG, pWU, pWS):
    st, t = R.st, R.vt
    A.c("---- F1 setup ----")
    A(f"s_and_b32 s{st}, s{s_b}, 1")
    A(f"s_lshl_b32 s{st}, s{st}, 3")
    A(f"s_lshr_b32 s{st+1}, s{s_b}, 3")
    A(f"s_and_b32 s{st+1}, s{st+1}, 7")
    A(f"s_add_u32 s{R.smt}, s{st}, s{st+1}")
    A(f"s_lshr_b32 s{st+1}, s{s_b}, 1")
    A(f"s_and_b32 s{st+1}, s{st+1}, 3")
    A(f"s_lshl_b32 s{st+1}, s{st+1}, 2")
    A(f"s_lshr_b32 s{st+2}, s{s_b}, 6")
    A(f"s_add_u32 s{R.sft}, s{st+1}, s{st+2}")
    A.srd(R.srdX, pBX, 2048*640*2)
    A(f"s_cmp_lt_u32 s{R.sw}, 2")
    A(f"s_cselect_b32 s{R.srdW}, s{pWG}, s{pWU}")
    A(f"s_cselect_b32 s{R.srdW+1}, s{pWG+1}, s{pWU+1}")
    A(f"s_and_b32 s{R.srdW+1}, s{R.srdW+1}, 0xffff")
    A(f"s_mov_b32 s{R.srdW+2}, {hex(640*1536*2)}")
    A(f"s_mov_b32 s{R.srdW+3}, 0x20000")
    A(f"v_and_b32 v{t}, 63, v0")
    A(f"s_lshl_b32 s{st}, s{R.smt}, 7")
    A(f"s_lshl_b32 s{st+1}, s{R.sw}, 5")
    A(f"s_add_u32 s{st}, s{st}, s{st+1}")
    A(f"s_mul_i32 s{st}, s{st}, 1280")
    A(f"v_lshrrev_b32 v{t+1}, 3, v{t}")
    A(f"v_mul_u32_u24 v{t+1}, 1280, v{t+1}")
    A(f"v_add_u32 v{t+1}, s{st}, v{t+1}")
    A(f"v_lshrrev_b32 v{t+2}, 4, v{t}")
    A(f"v_xor_b32 v{t+2}, v{t+2}, v{t}")
    A(f"v_and_b32 v{t+2}, 7, v{t+2}")
    A(f"v_lshl_add_u32 v{R.vxo[0]}, v{t+2}, 4, v{t+1}")
    A(f"v_xor_b32 v{t+2}, 4, v{t+2}")
    A(f"v_lshl_add_u32 v{R.vxo[1]}, v{t+2}, 4, v{t+1}")
    A(f"v_add_u32 v{R.vxo[1]}, {8*1280-1024}, v{R.vxo[1]}")
    A(f"v_add_u32 v{R.vxo[2]}, {16*1280-2048}, v{R.vxo[0]}")
    A(f"v_add_u32 v{R.vxo[3]}, {16*1280-2048}, v{R.vxo[1]}")
    A(f"s_and_b32 s{st}, s{R.sw}, 1")
    A(f"s_mul_i32 s{st}, s{st}, {16*3072}")
    A(f"s_mul_i32 s{st+1}, s{R.sft}, 192")
    A(f"s_add_u32 s{st}, s{st}, s{st+1}")
    A(f"s_lshr_b32 s{st+1}, s{R.sw}, 1")
    A(f"s_mul_i32 s{st+1}, s{st+1}, 10")
    for j in range(3):
        A(f"v_add_u32 v{t+1}, {64*j}, v{t}")
        A(f"v_mul_u32_u24 v{t+2}, 5462, v{t+1}")
        A(f"v_lshrrev_b32 v{t+2}, 16, v{t+2}")
        A(f"v_mul_u32_u24 v{t+3}, 12, v{t+2}")
        A(f"v_sub_u32 v{t+3}, v{t+1}, v{t+3}")
        A(f"v_add_u32 v{t+3}, s{st+1}, v{t+3}")
        A(f"v_subrev_u32 v{t+4}, 12, v{t+3}")
        A(f"v_min_u32 v{t+3}, v{t+3}, v{t+4}")
        A(f"v_mul_u32_u24 v{t+2}, 3072, v{t+2}")
        A(f"v_lshl_add_u32 v{t+2}, v{t+3}, 4, v{t+2}")
        A(f"v_add_u32 v{t+2}, s{st}, v{t+2}")
        A(f"v_subrev_u32 v{R.vwo[j]}, {1024*j}, v{t+2}")
    A(f"s_lshl_b32 s{R.smx}, s{R.sw}, 12")
    A(f"s_mul_i32 s{R.smw}, s{R.sw}, 3072")
    A(f"s_add_u32 s{R.smw}, s{R.smw}, {WBASE}")

def setup_reads(A):
    st, t = R.st, R.vt
    A(f"v_and_b32 v{t}, 63, v0")
    A(f"s_lshr_b32 s{st}, s{R.sw}, 1")
    A(f"s_lshl_b32 s{st}, s{st}, 13")
    A(f"v_and_b32 v{t+1}, 31, v{t}")
    A(f"v_lshrrev_b32 v{t+2}, 5, v{t}")
    A(f"v_bfe_u32 v{t+3}, v{t+1}, 1, 3")
    A(f"v_xor_b32 v{t+3}, v{t+3}, v{t+2}")
    A(f"v_lshlrev_b32 v{t+4}, 7, v{t+1}")
    A(f"v_add_u32 v{t+4}, s{st}, v{t+4}")
    A(f"v_lshl_add_u32 v{R.vx[0]}, v{t+3}, 4, v{t+4}")
    for k in range(1, 4): A(f"v_xor_b32 v{R.vx[k]}, {32*k}, v{R.vx[0]}")
    A(f"s_and_b32 s{st}, s{R.sw}, 1")
    A(f"s_mul_i32 s{st+1}, s{st}, 96")
    A(f"s_add_u32 s{st+1}, s{st+1}, {WBASE}")
    A(f"v_lshrrev_b32 v{t+1}, 5, v{t}")
    A(f"v_lshlrev_b32 v{t+1}, 3, v{t+1}")
    A(f"v_bfe_u32 v{t+2}, v{t}, 2, 2")
    A(f"v_add_u32 v{t+1}, v{t+1}, v{t+2}")
    A(f"v_mul_u32_u24 v{t+1}, 192, v{t+1}")
    A(f"v_bfe_u32 v{t+2}, v{t}, 4, 1")
    A(f"v_lshl_add_u32 v{t+1}, v{t+2}, 4, v{t+1}")
    A(f"v_and_b32 v{t+2}, 1, v{t}")
    A(f"v_lshl_add_u32 v{t+1}, v{t+2}, 3, v{t+1}")
    A(f"v_bfe_u32 v{t+2}, v{t}, 1, 1")
    A(f"v_mul_u32_u24 v{t+3}, {6144+32}, v{t+2}")
    A(f"v_add_u32 v{t+1}, v{t+1}, v{t+3}")
    A(f"v_add_u32 v{R.vw}, s{st+1}, v{t+1}")
    A(f"s_mul_i32 s{st+1}, s{st}, 192")
    A(f"v_mul_u32_u24 v{t+3}, s{st+1}, v{t+2}")
    A(f"v_sub_u32 v{R.vw2}, v{R.vw}, v{t+3}")

def dma_x(c):
    L = []
    for j in range(4):
        off = f" offset:{1024*j}" if j else ""
        L.append([f"s_add_u32 m0, s{R.smx}, {(c % NXS)*XSLOT}", f"s_mov_b32 s{R.skx}, {c*128}",
                  f"buffer_load_dwordx4 v{R.vxo[j]}, {srd(R.srdX)}, s{R.skx} offen{off} lds"])
    return L
def dma_w(t):
    L = []
    for j in range(3):
        off = f" offset:{1024*j}" if j else ""
        L.append([f"s_add_u32 m0, s{R.smw}, {(t % NWS)*WSLOT}", f"s_mov_b32 s{R.skw}, {t*32*3072}",
                  f"buffer_load_dwordx4 v{R.vwo[j]}, {srd(R.srdW)}, s{R.skw} offen{off} lds"])
    return L

def reads(t, kk, setn):
    a0, b0 = R.opA[setn], R.opB[setn]
    vx = R.vx[2*(t & 1) + kk]
    xs = ((t >> 1) % NXS)*XSLOT
    wsl = (t % NWS)*WSLOT
    def rdA(tt):
        vw = R.vw2 if tt == 2 else R.vw
        return [f"ds_read_b64_tr_b16 v[{a0+4*tt+2*rd}:{a0+4*tt+2*rd+1}], v{vw} offset:{wsl + kk*3072 + rd*768 + tt*32}" for rd in range(2)]
    def rdB(tt):
        return [f"ds_read_b128 v[{b0+4*tt}:{b0+4*tt+3}], v{vx} offset:{xs + 4096*tt}"]
    return rdA(0) + rdB(0) + rdB(1) + rdA(1) + rdA(2)

def mfmas(setn, first=False):
    a0, b0 = R.opA[setn], R.opB[setn]
    L = []
    for tt in range(3):
        for t in range(2):
            d = ACC + (tt*2 + t)*16
            L.append(f"v_mfma_f32_32x32x16_bf16 v[{d}:{d+15}], v[{a0+4*tt}:{a0+4*tt+3}], v[{b0+4*t}:{b0+4*t+3}], " + ("0" if first else f"v[{d}:{d+15}]"))
    return L

def issue(A, vm, kind, i):
    for g in (dma_x(i) if kind == "x" else dma_w(i)): A(g)
    vm.issue(f"{kind}{i}", 4 if kind == "x" else 3)

def l2_prefetch(A, vm, pWG, pWU):
    A.c("---- L2 prefetch of Wg / Wu ----")
    A(f"s_cmp_lt_u32 s{R.sw}, 2")
    A(f"s_cselect_b32 s4, s{pWG}, s{pWU}")
    A(f"s_cselect_b32 s5, s{pWG+1}, s{pWU+1}")
    A(f"s_and_b32 s5, s5, 0xffff")
    A(f"s_mov_b32 s6, {hex(640*1536*2)}")
    A(f"s_mov_b32 s7, 0x20000")
    A(f"s_lshr_b32 s28, s98, 3")
    A(f"s_lshl_b32 s28, s28, 1")
    A(f"s_and_b32 s29, s{R.sw}, 1")
    A(f"s_add_u32 s28, s28, s29")
    A(f"s_mul_i32 s28, s28, 60")
    A(f"v_and_b32 v56, 63, v0")
    A(f"v_min_u32 v56, 59, v56")
    A(f"v_add_u32 v56, s28, v56")
    A(f"v_mul_u32_u24 v57, 10923, v56")
    A(f"v_lshrrev_b32 v57, 16, v57")
    A(f"v_mul_u32_u24 v58, 6, v57")
    A(f"v_sub_u32 v58, v56, v58")
    A(f"v_mul_u32_u24 v57, 3072, v57")
    A(f"v_lshl_add_u32 v57, v58, 7, v57")
    A(f"s_lshr_b32 s28, s98, 1")
    A(f"s_and_b32 s28, s28, 3")
    A(f"s_mul_i32 s28, s28, 768")
    A(f"buffer_load_dword v229, v57, s[4:7], s28 offen")
    vm.issue('pf', 1)

def x_prefetch(A, vm, first_chunk=3):
    A.c("---- L2 prefetch of x ----")
    A(f"s_lshr_b32 s28, s98, 3")
    A(f"s_lshl_b32 s28, s28, 2")
    A(f"s_add_u32 s28, s28, s{R.sw}")
    A(f"s_lshl_b32 s28, s28, 6")
    A(f"v_and_b32 v56, 63, v0")
    A(f"v_add_u32 v56, s28, v56")
    A(f"v_lshrrev_b32 v57, 10, v56")
    A(f"v_add_u32 v57, {first_chunk}, v57")
    A(f"v_min_u32 v57, 9, v57")
    A(f"v_and_b32 v56, 1023, v56")
    A(f"v_mul_u32_u24 v56, 1280, v56")
    A(f"v_lshl_add_u32 v56, v57, 7, v56")
    A(f"s_and_b32 s28, s98, 1")
    A(f"s_mul_i32 s28, s28, {1024*1280}")
    A(f"buffer_load_dword v229, v56, {srd(R.srdX)}, s28 offen")
    vm.issue('pfx', 1)

def main(A, vm, issued, fill=None, after_barrier=None, pause=None, late=None, extra_need=None, before_barrier=None):
    fill = list(fill or []); after_barrier = after_barrier or {}; pause = pause or {}; extra_need = extra_need or {}; before_barrier = before_barrier or {}
    A(f"s_waitcnt vmcnt({vm.wait({'x0','w0'} | set(extra_need.get(-1, ())))})")
    A("s_barrier")
    if -1 in after_barrier: after_barrier[-1]()
    A(reads(0, 0, 0))
    rdpos = ((0, 3), (1, 3), (2, 2))
    def split(rd):
        g = [[] for _ in range(6)]
        k = 0
        for gi, n in rdpos:
            g[gi] += rd[k:k+n]; k += n
        return g
    def addfill(g, n=1, start=3):
        for gi in range(start, 6):
            k = n if len(g[gi]) < 2 else max(0, n - 1)
            for _ in range(k):
                if fill: g[gi].append(fill.pop(0))
    queue = []
    def enqueue(kind, i):
        atoms = dma_x(i) if kind == "x" else dma_w(i)
        queue.extend((ins, f"{kind}{i}") for ins in atoms)
        issued.add((kind, i))
    for k in (late or []): enqueue(*k)
    def drain(g, slots):
        for gi in slots:
            if queue:
                ins, tag = queue.pop(0); g[gi] += ins; vm.issue(tag)
    need_reads0 = False
    for t in range(NST):
        A.c(f"F1 stage {t}")
        if need_reads0:
            A(reads(t, 0, 0)); need_reads0 = False
        g = split(reads(t, 1, 1))
        many = len(queue) > 4
        drain(g, (0, 1, 2, 3, 4, 5) if many else (1, 3, 5))
        addfill(g)
        A("s_waitcnt lgkmcnt(0)")
        A(place(mfmas(0, first=(t == 0)), g))
        if t + 1 < NST:
            need = {f'w{t+1}'}
            if (t + 1) % 2 == 0: need.add(f'x{(t+1)//2}')
            need |= set(extra_need.get(t, ()))
            while any(tag in need for _, tag in queue):
                ins, tag = queue.pop(0); A(ins); vm.issue(tag)
            A(f"s_waitcnt vmcnt({vm.wait(need)}) lgkmcnt(0)")
            if t in before_barrier: before_barrier[t]()
            A("s_barrier")
            hook = []
            if t in after_barrier:
                keep = A.l; A.l = []
                after_barrier[t]()
                hook, A.l = A.l, keep
                if not SPREAD or any(l.strip().endswith(":") or "s_cbranch" in l or "s_waitcnt" in l or "exec" in l and False for l in hook):
                    A.l += hook; hook = []
            paused = t in pause
            g = [[] for _ in range(6)] if paused else split(reads(t+1, 0, 0))
            if hook:
                hook = [l.strip() for l in hook if not l.strip().startswith(";")]
                atoms_, cur, masked = [], [], False
                for l in hook:
                    cur.append(l)
                    if l.startswith("s_mov_b64 exec"): masked = not l.endswith("-1")
                    if not masked: atoms_.append(cur); cur = []
                assert not cur
                ng = 4
                per = -(-len(hook)//ng)
                gi, n = 0, 0
                for at in atoms_:
                    g[gi] += at; n += len(at)
                    if n >= per*(gi + 1) and gi < ng - 1: gi += 1
            if (t & 1) and (t >> 1) + NXS < NST//2 and ("x", (t >> 1) + NXS) not in issued: enqueue("x", (t >> 1) + NXS)
            if t + NWS < NST and ("w", t + NWS) not in issued: enqueue("w", t + NWS)
            many = len(queue) > 4
            drain(g, (4, 5) if hook else ((0, 1, 2, 3, 4, 5) if many else (1, 3, 5)))
            addfill(g)
            A(place(mfmas(1), g))
            if paused:
                pause[t](); need_reads0 = True
        else:
            A("s_waitcnt lgkmcnt(0)")
            A(mfmas(1))
    assert not queue and not fill, (len(queue), len(fill))

def epilogue(A, vm, pWS, sc=" sc1", between=None):
    st, t = R.st, R.vt
    A.c("---- F1 epilogue ----")
    A.srd(R.srdH, pWS, SZ_H, OFF_H)
    A(f"s_lshr_b32 s{st}, s{R.sw}, 1")
    A(f"s_lshl_b32 s{st}, s{st}, 1")
    A(f"s_lshl_b32 s{st+1}, s{R.smt}, 2")
    A(f"s_add_u32 s{st}, s{st}, s{st+1}")
    A(f"s_mul_i32 s{st}, s{st}, 96")
    A(f"s_mul_i32 s{st+1}, s{R.sft}, 6")
    A(f"s_add_u32 s{st}, s{st}, s{st+1}")
    A(f"s_and_b32 s{st+1}, s{R.sw}, 1")
    A(f"s_mul_i32 s{st+1}, s{st+1}, 3")
    A(f"s_add_u32 s{st}, s{st}, s{st+1}")
    A(f"s_lshl_b32 s{st}, s{st}, 10")
    A(f"v_and_b32 v{t}, 63, v0")
    A(f"v_lshlrev_b32 v{t}, 4, v{t}")
    A(f"s_mov_b32 s{st+2}, 0xbfb8aa3b")
    A(f"s_mov_b32 s{st+3}, 0xbfb8aa3b")
    A.nop(4)
    E, O = 16, 32
    for tt in range(3):
        for tc in range(2):
            d = ACC + (tt*2 + tc)*16
            o = O + 4*((tt*2+tc) & 1)
            gi = [0, 2, 8, 10]
            for k, g in enumerate(gi): A(f"v_pk_mul_f32 v[{E+2*k}:{E+2*k+1}], v[{d+g}:{d+g+1}], s[{st+2}:{st+3}]")
            for k in range(8): A(f"v_exp_f32 v{E+k}, v{E+k}")
            for k, g in enumerate(gi): A(f"v_pk_mul_f32 v[{d+g+4}:{d+g+5}], v[{d+g}:{d+g+1}], v[{d+g+4}:{d+g+5}]")
            for k in range(4): A(f"v_pk_add_f32 v[{E+2*k}:{E+2*k+1}], v[{E+2*k}:{E+2*k+1}], 1.0 op_sel_hi:[1,0]")
            for k in range(8): A(f"v_rcp_f32 v{E+k}, v{E+k}")
            A("s_nop 0")
            for k, g in enumerate(gi): A(f"v_pk_mul_f32 v[{d+g+4}:{d+g+5}], v[{d+g+4}:{d+g+5}], v[{E+2*k}:{E+2*k+1}]")
            for k, g in enumerate(gi): A(f"v_cvt_pk_bf16_f32 v{o+k}, v{d+g+4}, v{d+g+5}")
            off = (tc*96 + tt)*1024
            A(f"s_add_u32 s{st+1}, s{st}, {off}")
            A(f"buffer_store_dwordx4 v[{o}:{o+3}], v{t}, {srd(R.srdH)}, s{st+1} offen{sc}")
            vm.issue('hst')
            if between: between(tt*2 + tc)
```

```python
import sys, os
sys.path.insert(0, os.path.dirname(os.path.abspath(__file__)))
from asmlib import *
from layout import *
import f1, f2, g2, aux, hazard

NAME = "gated_mix__spectral_gfnet__swiglu_ffn__prompt_kernel"
pAX, pWR, pWI, pBX, pWG, pWU, pWD, pGW, pOUT, pDBG, pWS = 68, 70, 72, 74, 76, 78, 80, 82, 84, 86, 88
sNONCE, srdF, sSPIN, sTMP, sID = 90, 92, 96, 97, 98
srdD = 0
SPIN_MAX = 20000
import os
if os.environ.get('NOSPIN'): SPIN_MAX = 0

class Gen:
    def __init__(self, stamps=False, order="AB", gemm_first=True, exp="", ta2=11, tf1=-1, d2=2, nwa2=7, early3=True, npre=3, dep2at=9, wput=2, wputr=4, codepf=1, tlbpf=0, twt=-1, wsbase=0, map48=False, ahead=4, pro=2, xpf=None, outsc='', dbgsel=None, spread=True):
        f1.SPREAD = spread
        f2.OUTSC = outsc
        self.xpf = xpf
        self.pro = pro
        f2.MAP48 = map48; f2.AHEAD = ahead
        self.wsbase = wsbase
        self.twt = twt
        self.tlbpf = tlbpf
        self.codepf = codepf
        self.wput = wput; self.wputr = wputr
        self.dep2at = dep2at
        self.early3 = early3; self.npre = npre
        self.exp = exp; self.ta2 = ta2; self.tf1 = tf1; self.d2 = d2; self.nwa2 = nwa2
        self.A = Asm("K"); self.stamps = stamps; self.ns = 0; self.names = {}
        self.gemm_first = gemm_first
        self.dbg_sel = {"gemm": [(0,"start",1),(1,"consts",0),(2,"core",0),(3,"a1",0),(4,"preps",0),(5,"flag1",0),(6,"dep1",0),(7,"a2 start",0),(8,"a2 end",0),
                                 (9,"f1 loop end",0),(10,"f1 epi",0),(11,"dep2",0),(12,"a3 elem",0),(13,"a3 core",0),(14,"f2 loop end",0),(15,"end",0)]}
        if dbgsel: self.dbg_sel = {'gemm': [(i, n, 1 if i == 0 else 0) for i, n in enumerate(dbgsel)]}
        g2.ORDER = order; g2.STG = g2.stages()
    def stamp(self, name=None):
        if not self.stamps: return
        if self.stamps == "min" and name not in ("start", "end"): return
        A = self.A
        A("s_memrealtime s[100:101]")
        A("s_waitcnt lgkmcnt(0)")
        A(f"v_writelane_b32 v255, s100, {self.ns}")
        self.names.setdefault(self.role, []).append((self.ns, name))
        self.ns += 1
    def dump_stamps(self):
        if not self.stamps: return
        A = self.A
        if self.stamps == "dbg":
            sel = self.dbg_sel[self.role]
            A("s_waitcnt vmcnt(0) lgkmcnt(0)")
            A.srd(8, pDBG, 256)
            lab = A.label("nd")
            A("s_cmp_lg_u32 s20, 0")
            A(f"s_cbranch_scc1 {lab}")
            names = {nm: idx for idx, nm in self.names[self.role]}
            A("v_mov_b32 v2, 0")
            A("v_mov_b32 v3, 0x40000000")
            for slot, nm, inv in sel:
                A(f"v_readlane_b32 s30, v255, {names[nm]}")
                if inv: A("s_not_b32 s30, s30")
                A(f"s_mov_b32 s31, {4*slot}")
                A(f"v_writelane_b32 v2, s30, {slot}")
                A(f"v_writelane_b32 v3, s31, {slot}")
            A("buffer_atomic_umax v2, v3, s[8:11], 0 offen")
            A(f"{lab}:")
            return
        A("s_waitcnt vmcnt(0) lgkmcnt(0)")
        A.srd(8, pDBG, 1 << 20)
        A("v_lshlrev_b32 v1, 2, v0")
        A(f"s_lshl_b32 s30, s{sID}, 10")
        A("s_add_u32 s30, s30, 4096")
        A("buffer_store_dword v255, v1, s[8:11], s30 offen")
    def flag_store(self, off, s_idx):
        A = self.A
        lab = A.label("sig")
        A(f"s_cmp_lg_u32 s20, 0")
        A(f"s_cbranch_scc1 {lab}")
        A(f"s_lshl_b32 s{sTMP}, s{s_idx}, 2")
        A(f"s_add_u32 s{sTMP}, s{sTMP}, {off}")
        A(f"v_mov_b32 v249, s{sNONCE}")
        A(f"v_mov_b32 v254, 0")
        A("s_mov_b64 exec, 1")
        A(f"buffer_store_dword v249, v254, {srd(srdF)}, s{sTMP} offen sc1")
        A("s_mov_b64 exec, -1")
        A(f"{lab}:")
    def flag_store_all(self, vm, off, s_idx):
        A = self.A
        A(f"s_lshl_b32 s{sTMP}, s{s_idx}, 2")
        A(f"s_add_u32 s{sTMP}, s{sTMP}, {off}")
        A(f"s_cmp_eq_u32 s20, 0")
        A(f"s_cselect_b32 s{sTMP}, s{sTMP}, 0x40000000")
        A(f"v_mov_b32 v249, s{sNONCE}")
        A(f"v_mov_b32 v254, 0")
        A("s_mov_b64 exec, 1")
        A(f"buffer_store_dword v249, v254, {srd(srdF)}, s{sTMP} offen sc1")
        A("s_mov_b64 exec, -1")
        vm.issue("flag")
    def arrive(self, vm, phase):
        A = self.A
        off = (OFF_FLAG1, OFF_FLAG2, OFF_FLAG1B)[phase]
        A(f"s_lshl_b32 s{sTMP}, s{sID}, 2")
        A(f"s_add_u32 s{sTMP}, s{sTMP}, {off}")
        A(f"s_cmp_eq_u32 s20, 0")
        A(f"s_cselect_b32 s{sTMP}, s{sTMP}, 0x40000000")
        A(f"v_mov_b32 v249, s{sNONCE}")
        A(f"v_and_b32 v254, 7, v0")
        A(f"v_lshlrev_b32 v254, 10, v254")
        A("s_mov_b64 exec, 0xff")
        A(f"buffer_store_dword v249, v254, {srd(srdF)}, s{sTMP} offen sc1")
        A("s_mov_b64 exec, -1")
        vm.issue("flag")
    def cpoll_issue(self, vm, phase):
        A = self.A
        off = (OFF_FLAG1, OFF_FLAG2, OFF_FLAG1B)[phase]
        A(f"v_and_b32 v254, 63, v0")
        A(f"v_lshlrev_b32 v254, 4, v254")
        A(f"s_and_b32 s{sTMP}, s{sID}, 7")
        A(f"s_lshl_b32 s{sTMP}, s{sTMP}, 10")
        A(f"s_add_u32 s{sTMP}, s{sTMP}, {off}")
        A(f"s_cmp_eq_u32 s20, 0")
        A(f"s_cselect_b32 s{sTMP}, s{sTMP}, 0x40000000")
        A(f"buffer_load_dwordx4 v[250:253], v254, {srd(srdF)}, s{sTMP} offen sc1")
        vm.issue("cpoll")
    def cpoll_check(self, vm, phase):
        A = self.A
        off = (OFF_FLAG1, OFF_FLAG2, OFF_FLAG1B)[phase]
        lo, ok = A.label("w"), A.label("wok")
        A(f"s_waitcnt vmcnt({vm.wait({'cpoll'})})")
        A(f"s_cmp_lg_u32 s20, 0")
        A(f"s_cbranch_scc1 {ok}")
        A(f"s_mov_b32 s{sSPIN}, 0")
        A(f"{lo}:")
        for k in range(4): A(f"v_xor_b32 v{250+k}, s{sNONCE}, v{250+k}")
        A(f"v_or3_b32 v250, v250, v251, v252")
        A(f"v_or_b32 v250, v250, v253")
        A(f"v_cmp_ne_u32 vcc, 0, v250")
        A(f"s_cbranch_vccz {ok}")
        A(f"s_add_u32 s{sSPIN}, s{sSPIN}, 1")
        A(f"s_cmp_gt_u32 s{sSPIN}, {SPIN_MAX}")
        A(f"s_cbranch_scc1 {ok}")
        A("s_sleep 2")
        A(f"v_and_b32 v254, 63, v0")
        A(f"v_lshlrev_b32 v254, 4, v254")
        A(f"s_and_b32 s{sTMP}, s{sID}, 7")
        A(f"s_lshl_b32 s{sTMP}, s{sTMP}, 10")
        A(f"s_add_u32 s{sTMP}, s{sTMP}, {off}")
        A(f"buffer_load_dwordx4 v[250:253], v254, {srd(srdF)}, s{sTMP} offen sc1")
        A("s_waitcnt vmcnt(0)")
        A(f"s_branch {lo}")
        A(f"{ok}:")
    def flag_store_wave(self, vm, off, s_idx):
        A = self.A
        A(f"s_lshl_b32 s{sTMP}, s{s_idx}, 2")
        A(f"s_add_u32 s{sTMP}, s{sTMP}, {off}")
        A(f"v_mov_b32 v249, s{sNONCE}")
        A(f"v_mov_b32 v254, 0")
        A("s_mov_b64 exec, 1")
        A(f"buffer_store_dword v249, v254, {srd(srdF)}, s{sTMP} offen sc1")
        A("s_mov_b64 exec, -1")
        vm.issue("flag")
    def signal(self, vm, off, s_idx):
        A = self.A
        A("s_waitcnt vmcnt(0)")
        A("s_barrier")
        vm.q = []
        self.flag_store_all(vm, off, s_idx)
    def poll_issue(self, vm, off):
        A = self.A
        A(f"v_and_b32 v254, 63, v0")
        A(f"v_lshlrev_b32 v254, 4, v254")
        A(f"s_mov_b32 s{sTMP}, {off}")
        A(f"buffer_load_dwordx4 v[250:253], v254, {srd(srdF)}, s{sTMP} offen sc1")
        vm.issue("poll")
    def poll_check(self, vm, off):
        A = self.A
        lo, ok = A.label("w"), A.label("wok")
        A(f"s_waitcnt vmcnt({vm.wait({'poll'})})")
        A(f"s_mov_b32 s{sSPIN}, 0")
        A(f"{lo}:")
        for k in range(4): A(f"v_xor_b32 v{250+k}, s{sNONCE}, v{250+k}")
        A(f"v_or3_b32 v250, v250, v251, v252")
        A(f"v_or_b32 v250, v250, v253")
        A(f"v_cmp_ne_u32 vcc, 0, v250")
        A(f"s_cbranch_vccz {ok}")
        A(f"s_add_u32 s{sSPIN}, s{sSPIN}, 1")
        A(f"s_cmp_gt_u32 s{sSPIN}, {SPIN_MAX}")
        A(f"s_cbranch_scc1 {ok}")
        A("s_sleep 4")
        A(f"s_mov_b32 s{sTMP}, {off}")
        A(f"buffer_load_dwordx4 v[250:253], v254, {srd(srdF)}, s{sTMP} offen sc1")
        A("s_waitcnt vmcnt(0)")
        A(f"s_branch {lo}")
        A(f"{ok}:")
    def wait_all(self, vm, off):
        self.poll_issue(vm, off); self.poll_check(vm, off)
    def wait_idx(self, vm, off, v_idx_code):
        A = self.A
        lo, ok = A.label("w"), A.label("wok")
        v_idx_code()
        A(f"s_mov_b32 s{sSPIN}, 0")
        A(f"s_mov_b32 s{sTMP}, {off}")
        A(f"{lo}:")
        A(f"buffer_load_dword v250, v254, {srd(srdF)}, s{sTMP} offen sc1")
        A("s_waitcnt vmcnt(0)")
        A(f"v_cmp_ne_u32 vcc, s{sNONCE}, v250")
        A(f"s_cbranch_vccz {ok}")
        A(f"s_add_u32 s{sSPIN}, s{sSPIN}, 1")
        A(f"s_cmp_gt_u32 s{sSPIN}, {SPIN_MAX}")
        A(f"s_cbranch_scc1 {ok}")
        A("s_sleep 4")
        A(f"s_branch {lo}")
        A(f"{ok}:")
        vm.q = []

    def body(self):
        A = self.A; self.role = "gemm"; self.ns = 0
        vm = VM()
        TA2 = self.ta2
        self.stamp("start")
        X = self.exp.split("+")
        aux.setup(A, pAX, pWR, pWI, pWD, pGW, pWS)
        issued = set()
        def iss(*ks):
            for k in ks:
                f1.issue(A, vm, *k); issued.add(k)
        def mid():
            if "nopf" not in X and "pflate" not in X and "pfmid" not in X and "pf2" not in X and "pf0" not in X: f1.l2_prefetch(A, vm, pWG, pWU)
        if "pf0" in X: f1.l2_prefetch(A, vm, pWG, pWU)
        aux.issue_loads(A, vm, mid, wd=("wdlate" not in X and "wdmid" not in X and "wd2" not in X and "wd3" not in X))
        self.stamp("issued")
        aux.consts_a1(A)
        f1.setup(A, sID, pAX, pWG, pWU, pWS)
        aux.setup_out(A, pWS)
        f1.setup_reads(A)
        A(aux.consts_a2_fill())
        aux.phase1_pre(A)
        if "wdmid" in X: aux.issue_wd(A, vm)
        if "pfmid" in X: f1.l2_prefetch(A, vm, pWG, pWU)
        self.stamp("consts")
        aux.a1_core(A, vm)
        self.stamp("core")
        if "wdlate" in X: aux.issue_wd(A, vm)
        if "pflate" in X: f1.l2_prefetch(A, vm, pWG, pWU)
        A("s_waitcnt lgkmcnt(0)")
        A(f"s_add_u32 s{sNONCE}, s{sNONCE}, 1")
        A(f"s_waitcnt vmcnt({vm.wait({'ws', 'gw'} | (set() if ('wdlate' in X or 'wdmid' in X or 'wd2' in X or 'wd3' in X) else {'wd'}))})")
        if "pf2" in X: f1.l2_prefetch(A, vm, pWG, pWU)
        if "wd2" in X: aux.issue_wd(A, vm)
        self.stamp("wswait")
        aux.a1_elem(A, vm)
        self.stamp("a1")
        if "nop1" not in self.exp and "nopreps" not in self.exp:
            iss(("x", 0), ("w", 0))
            self.stamp("x0w0")
            aux.wprep(A, vm)
            self.stamp("wp")
            iss(("w", 1))
            if "wdlate" in X or "wdmid" in X:
                A(f"s_waitcnt vmcnt({vm.wait({'wd'})})")
                A("s_barrier")
            if self.twt < 0: aux.wtprep(A, vm)
            self.stamp("wprep")
            iss(("x", 1), ("w", 2))
            if self.pro >= 1 and f1.NWS == 6: iss(("w", 3))
            if self.pro >= 2: iss(("x", 2))
            aux.gate(A, vm)

        if 'nop1' in self.exp: A('s_waitcnt vmcnt(0)')
        self.stamp("preps")
        class Hooks(dict):
            def __setitem__(self, k, fn):
                old = self.get(k)
                dict.__setitem__(self, k, fn if old is None else (lambda o=old, n=fn: (o(), n())))
        class Tags(dict):
            def __setitem__(self, k, tags):
                dict.__setitem__(self, k, set(self.get(k, ())) | set(tags))
        after, pause, extra, before = Hooks(), Hooks(), Tags(), Hooks()
        extra[self.tf1] = {'st'}
        after[self.tf1] = lambda: (self.arrive(vm, 0), self.stamp("flag1"), aux.issue_wd(A, vm) if 'wd3' in X else None)
        if self.xpf is not None: after[self.xpf] = lambda: f1.x_prefetch(A, vm)
        def a2_issue():
            A(f"s_or_b32 s{sTMP}, s{sID}, s20")
            A(f"s_cmp_eq_u32 s{sTMP}, 0")
            A(f"s_cselect_b32 s{sTMP}, 0, 0x40000000")
            A(f"v_mov_b32 v249, s{sNONCE}")
            A(f"v_mov_b32 v254, 0")
            A("s_mov_b64 exec, 1")
            A(f"buffer_store_dword v249, v254, {srd(srdF)}, s{sTMP} offen sc1")
            A("s_mov_b64 exec, -1")
            vm.issue("flag")
            self.stamp("dep1")
            aux.a2_loads(A, vm, pWS)
            f2.setup_w(A, sID, pWS)
        NW_A2 = self.nwa2
        watoms = f2.w_loads(range(NW_A2))
        def a2_run():
            lab, lab2 = A.label("noa2"), A.label("a2d")
            self.stamp("a2 start")
            A(f"s_waitcnt vmcnt({vm.wait({'a2in'})})")
            A(f"s_cmp_ge_u32 s{sID}, {0 if 'noa2' in self.exp else 162}")
            A(f"s_cbranch_scc1 {lab}")
            v2 = VM()
            aux.a2(A, v2, pWS, waited=True, weave=list(watoms))
            A(f"s_branch {lab2}")
            A(f"{lab}:")
            for ins in watoms: A(ins)
            A(f"{lab2}:")
            for k in range(len(watoms)): vm.issue(f"W{k//5}")
            vm.issue('zst', 4)
            self.stamp("a2 end")
        after[TA2-3] = lambda: self.cpoll_issue(vm, 0)
        before[TA2-1] = lambda: self.cpoll_check(vm, 0)
        after[TA2-1] = a2_issue
        pause[TA2] = a2_run
        if self.twt >= 0:
            if 'wd2' in X or 'wd3' in X: extra[self.twt] = set(extra.get(self.twt, ())) | {'wd'}
            pause[self.twt] = lambda: aux.wtprep(A, vm, tag='wtst')
            extra[self.twt + 3] = {'wtst'}
            after[self.twt + 3] = lambda: self.arrive(vm, 2)
            after[TA2-1] = lambda: self.cpoll_issue(vm, 2)
            before[TA2] = lambda: self.cpoll_check(vm, 2)
        extra[TA2+self.d2] = {'zst', 'gst'}
        after[TA2+self.d2] = lambda: self.arrive(vm, 1)
        if self.dep2at < 0:
            after[16] = lambda: self.cpoll_issue(vm, 1)
            before[18] = lambda: self.cpoll_check(vm, 1)
        if "fine" in self.exp:
            for t in range(0, 19, 2):
                def mk(t, old):
                    def f():
                        if old: old()
                        self.stamp(f"bar{t}")
                    return f
                after[t] = (lambda t=t: self.stamp(f"bar{t}"))
        fl = []
        f1.main(A, vm, issued, fill=fl, after_barrier=after, pause=pause, late=[k for k in ([("w", 3), ("x", 2), ("w", 4), ("w", 5)] if f1.NWS == 6 else [("w", 3), ("x", 3), ("w", 4)]) if k not in issued], extra_need=extra, before_barrier=before)
        self.stamp("f1 loop end")
        f2.setup(A, sID, pWS, pOUT)
        if self.dep2at < 0:
            self.stamp("dep2")
            aux.a3_loads(A, vm, pWS)
        atoms = [(ins, f"W{self.nwa2 + k//5}") for k, ins in enumerate(f2.w_loads(range(self.nwa2, 10)))]
        def put(n):
            for _ in range(n):
                if atoms:
                    ins, tag = atoms.pop(0); A(ins); vm.issue(tag)
        def btw(k):
            if self.dep2at == 9:
                if k == 3: self.cpoll_issue(vm, 1)
                return
            if self.dep2at < 0 or k > self.dep2at: put(self.wput)
            if self.dep2at >= 0:
                if k == max(0, self.dep2at - 2): self.cpoll_issue(vm, 1)
                if k == self.dep2at:
                    self.cpoll_check(vm, 1)
                    A("s_barrier")
                    self.stamp("dep2")
                    aux.a3_loads(A, vm, pWS)
        f1.epilogue(A, vm, pWS, between=btw)
        self.stamp("f1 epi")
        A(f"s_lshl_b32 s{sTMP}, s{f1.R.smt}, 1")
        A(f"s_lshr_b32 s99, s20, 1")
        A(f"s_add_u32 s{sTMP}, s{sTMP}, s99")
        A(f"s_lshl_b32 s{sTMP}, s{sTMP}, 5")
        A(f"s_lshl_b32 s99, s{f1.R.sft}, 1")
        A(f"s_add_u32 s{sTMP}, s{sTMP}, s99")
        A(f"s_and_b32 s99, s20, 1")
        A(f"s_add_u32 s99, s{sTMP}, s99")
        if self.dep2at == 9:
            A(f"s_waitcnt vmcnt({vm.wait({'hst'})})")
            self.flag_store_wave(vm, OFF_FLAG3, 99)
            self.cpoll_check(vm, 1)
            A("s_barrier")
            self.stamp("dep2")
            aux.a3_loads(A, vm, pWS)
            put(self.wput*3)
        def extra(rnd):
            if rnd > 0: put(self.wputr)
            if rnd == 1 and self.dep2at != 9:
                A(f"s_waitcnt vmcnt({vm.wait({'hst'})})")
                self.flag_store_wave(vm, OFF_FLAG3, 99)
        aux.a3_elem(A, vm, extra)
        put(100)
        A("s_barrier")
        self.stamp("a3 elem")
        f2.setup2(A, pWS, pOUT)
        def poll3_issue():
            A(f"v_and_b32 v254, 31, v0")
            A(f"s_lshl_b32 s{sTMP}, s{f2.R.sT}, 5")
            A(f"v_add_u32 v254, s{sTMP}, v254")
            A(f"v_lshlrev_b32 v254, 2, v254")
            A(f"s_mov_b32 s{sTMP}, {OFF_FLAG3}")
            A(f"buffer_load_dword v250, v254, {srd(srdF)}, s{sTMP} offen sc1")
            vm.issue("poll3")
        def check_one(tag, off):
            lo, ok = A.label("w"), A.label("wok")
            A(f"s_waitcnt vmcnt({vm.wait({tag})})")
            A(f"s_mov_b32 s{sSPIN}, 0")
            A(f"{lo}:")
            A(f"v_cmp_ne_u32 vcc, s{sNONCE}, v250")
            A(f"s_cbranch_vccz {ok}")
            A(f"s_add_u32 s{sSPIN}, s{sSPIN}, 1")
            A(f"s_cmp_gt_u32 s{sSPIN}, {SPIN_MAX}")
            A(f"s_cbranch_scc1 {ok}")
            A("s_sleep 4")
            A(f"s_mov_b32 s{sTMP}, {off}")
            A(f"buffer_load_dword v250, v254, {srd(srdF)}, s{sTMP} offen sc1")
            A("s_waitcnt vmcnt(0)")
            A(f"s_branch {lo}")
            A(f"{ok}:")
        npre = self.npre
        if self.early3:
            poll3_issue()
            def mid():
                check_one("poll3", OFF_FLAG3)
                for i in range(npre):
                    A(f2.h_loads(i)); vm.issue(f"h{i}", 4)
            aux.a3_core(A, vm, pWS, mid=mid)
        else:
            aux.a3_core(A, vm, pWS, mid=poll3_issue)
        for k, ins in enumerate(f2.w_loads((10, 11))):
            A(ins); vm.issue(f"W{10 + k//5}")
        self.stamp("a3 core")
        if not self.early3:
            check_one("poll3", OFF_FLAG3)
            npre = 0
        self.stamp("dep3")
        def flag4():
            A(f"s_waitcnt vmcnt({vm.wait({'gast'})})")
            A(f"s_lshl_b32 s99, s{sID}, 2")
            A(f"s_add_u32 s99, s99, s20")
            self.flag_store_wave(vm, OFF_FLAG4, 99)
        def code4():
            A(f"v_and_b32 v254, 63, v0")
            A(f"s_and_b32 s{sTMP}, s{f2.R.sT}, 15")
            A(f"s_lshl_b32 s{sTMP}, s{sTMP}, 6")
            A(f"v_add_u32 v254, s{sTMP}, v254")
            A(f"v_lshlrev_b32 v254, 2, v254")
        def h_issue4():
            code4()
            A(f"s_mov_b32 s{sTMP}, {OFF_FLAG4}")
            A(f"buffer_load_dword v250, v254, {srd(srdF)}, s{sTMP} offen sc1")
            vm.issue("poll4")
        def h_check4():
            check_one("poll4", OFF_FLAG4)
            f2.final_loads(A, vm)
        hk = {1: flag4, 6: h_issue4, 10: h_check4}
        if "f2fine" in self.exp:
            for i_ in (0, 2, 4, 8, 11):
                hk[i_] = (lambda o=hk.get(i_), i_=i_: ((o() if o else None), self.stamp(f"f2s{i_}")))
        f2.main(A, vm, hooks=hk, pre_issued=npre)
        self.stamp("f2 loop end")
        f2.epilogue(A, vm)
        self.stamp("end")
        self.dump_stamps()
        A("s_endpgm")

    def build(self):
        A = self.A
        A(f"s_cmp_ge_u32 s2, 256")
        A(f"s_cbranch_scc1 K_exit")
        A(f"s_load_dwordx16 s[68:83], s[0:1], 0")
        A(f"s_load_dwordx4 s[84:87], s[0:1], 64")
        A(f"s_load_dwordx2 s[88:89], s[0:1], 80")
        if self.stamps: A("v_mov_b32 v255, 0")
        A(f"s_mov_b32 s{sID}, s2")
        A(f"v_lshrrev_b32 v4, 6, v0")
        A("s_nop 0")
        A(f"v_readfirstlane_b32 s20, v4")
        A("s_waitcnt lgkmcnt(0)")
        if self.wsbase:
            A(f"s_add_u32 s{pWS}, s{pWS}, {hex(self.wsbase)}")
            A(f"s_addc_u32 s{pWS+1}, s{pWS+1}, 0")
        A(f"s_load_dword s{sNONCE}, s[{pWS}:{pWS+1}], {OFF_EPOCH}")
        if self.codepf:
            A("s_getpc_b64 s[4:5]")
            A("K_pc:")
            A("s_and_b32 s5, s5, 0xffff")
            A("s_mov_b32 s6, K_exit-K_pc")
            A("s_mov_b32 s7, 0x20000")
            A("v_lshlrev_b32 v4, 7, v0")
            for k in range(self.codepf):
                A(f"s_mov_b32 s28, {32768*k}")
                A(f"buffer_load_dword v229, v4, s[4:7], s28 offen")
        if self.tlbpf:
            A.srd(4, pWS, 28 << 20)
            A("v_and_b32 v4, 63, v0")
            A("v_lshlrev_b32 v4, 19, v4")
            A("v_add_u32 v4, 0x7ff80, v4")
            A(f"buffer_load_dword v229, v4, s[4:7], 0 offen")
            A.srd(4, pOUT, 2048*640*2)
            A("v_and_b32 v4, 63, v0")
            A("v_lshlrev_b32 v4, 16, v4")
            A(f"buffer_load_dword v229, v4, s[4:7], 0 offen")
        A.srd(srdF, pWS, SZ_FLAGS)
        self.body()
        A("K_exit:")
        A("s_endpgm")
        if os.environ.get('NOST'):
            out = []
            for l in A.l:
                if 'buffer_store' in l and ('s[36:39]' in l or 's[48:51]' in l or 's[56:59]' in l): l = '  s_nop 0'
                out.append(l)
            A.l = out
        lines, n = hazard.fix(A.l)
        return lines

HEADER = open(os.path.join(os.path.dirname(os.path.abspath(__file__)), "header.txt")).read()
def full_source(**kw):
    g = Gen(**kw)
    body = "\n".join(g.build())
    src = HEADER + f"""; @launch grid=(256,1,1) block=(256,1,1) lds=163840
.amdgcn_target "amdgcn-amd-amdhsa--gfx950"
.text
.globl {NAME}
.p2align 8
.type {NAME},@function
{NAME}:
{body}
.section .rodata,"a"
.p2align 6
.amdhsa_kernel {NAME}
  .amdhsa_next_free_vgpr 512
  .amdhsa_next_free_sgpr 102
  .amdhsa_accum_offset 256
  .amdhsa_group_segment_fixed_size 0
  .amdhsa_kernarg_size 88
  .amdhsa_user_sgpr_count 2
  .amdhsa_user_sgpr_kernarg_segment_ptr 1
  .amdhsa_system_sgpr_workgroup_id_x 1
.end_amdhsa_kernel
"""
    return src, g
if __name__ == "__main__":
    kw = {}
    for o in sys.argv[2:]:
        k, v_ = o.split("="); kw[k] = eval(v_)
    src, g = full_source(**kw)
    out = sys.argv[1] if len(sys.argv) > 1 else "gated_mix__spectral_gfnet__swiglu_ffn__prompt.s"
    open(out, "w").write(src)
    print("wrote", out, len(src), "bytes")
```

```python
import sys, os
sys.path.insert(0, os.path.dirname(os.path.abspath(__file__)))
from asmlib import *
from layout import *
import f1, f2, g2, aux, hazard

NAME = "gated_mix__spectral_gfnet__swiglu_ffn__prompt_kernel"
pAX, pWR, pWI, pBX, pWG, pWU, pWD, pGW, pOUT, pDBG, pWS = 68, 70, 72, 74, 76, 78, 80, 82, 84, 86, 88
sNONCE, srdF, sSPIN, sTMP, sID = 90, 92, 96, 97, 98
srdD = 0
SPIN_MAX = 20000
import os
if os.environ.get('NOSPIN'): SPIN_MAX = 0

class Gen:
    def __init__(self, stamps=False, order="AB", gemm_first=True, exp="", ta2=11, tf1=-1, d2=2, nwa2=7, early3=True, npre=3, dep2at=9, wput=2, wputr=4, codepf=1, tlbpf=0, twt=-1, wsbase=0, map48=False, ahead=4, pro=2, xpf=None, outsc='', dbgsel=None, spread=True, dyn=False):
        self.dyn = dyn and stamps != 'dbg'
        f1.SPREAD = spread
        f2.OUTSC = outsc
        self.xpf = xpf
        self.pro = pro
        f2.MAP48 = map48; f2.AHEAD = ahead
        self.wsbase = wsbase
        self.twt = twt
        self.tlbpf = tlbpf
        self.codepf = codepf
        self.wput = wput; self.wputr = wputr
        self.dep2at = dep2at
        self.early3 = early3; self.npre = npre
        self.exp = exp; self.ta2 = ta2; self.tf1 = tf1; self.d2 = d2; self.nwa2 = nwa2
        self.A = Asm("K"); self.stamps = stamps; self.ns = 0; self.names = {}
        self.gemm_first = gemm_first
        self.dbg_sel = {"gemm": [(0,"start",1),(1,"consts",0),(2,"core",0),(3,"a1",0),(4,"preps",0),(5,"flag1",0),(6,"dep1",0),(7,"a2 start",0),(8,"a2 end",0),
                                 (9,"f1 loop end",0),(10,"f1 epi",0),(11,"dep2",0),(12,"a3 elem",0),(13,"a3 core",0),(14,"f2 loop end",0),(15,"end",0)]}
        if dbgsel: self.dbg_sel = {'gemm': [(i, n, 1 if i == 0 else 0) for i, n in enumerate(dbgsel)]}
        g2.ORDER = order; g2.STG = g2.stages()
    def stamp(self, name=None):
        if not self.stamps: return
        if self.stamps == "min" and name not in ("start", "end"): return
        A = self.A
        A("s_memrealtime s[100:101]")
        A("s_waitcnt lgkmcnt(0)")
        A(f"v_writelane_b32 v255, s100, {self.ns}")
        self.names.setdefault(self.role, []).append((self.ns, name))
        self.ns += 1
    def dump_stamps(self):
        if not self.stamps: return
        A = self.A
        if self.stamps == "dbg":
            sel = self.dbg_sel[self.role]
            A("s_waitcnt vmcnt(0) lgkmcnt(0)")
            A.srd(8, pDBG, 256)
            lab = A.label("nd")
            A("s_cmp_lg_u32 s20, 0")
            A(f"s_cbranch_scc1 {lab}")
            names = {nm: idx for idx, nm in self.names[self.role]}
            A("v_mov_b32 v2, 0")
            A("v_mov_b32 v3, 0x40000000")
            for slot, nm, inv in sel:
                A(f"v_readlane_b32 s30, v255, {names[nm]}")
                if inv: A("s_not_b32 s30, s30")
                A(f"s_mov_b32 s31, {4*slot}")
                A(f"v_writelane_b32 v2, s30, {slot}")
                A(f"v_writelane_b32 v3, s31, {slot}")
            A("buffer_atomic_umax v2, v3, s[8:11], 0 offen")
            A(f"{lab}:")
            return
        A("s_waitcnt vmcnt(0) lgkmcnt(0)")
        A.srd(8, pDBG, 1 << 20)
        A("v_lshlrev_b32 v1, 2, v0")
        A(f"s_lshl_b32 s30, s{sID}, 10")
        A("s_add_u32 s30, s30, 4096")
        A("buffer_store_dword v255, v1, s[8:11], s30 offen")
    def flag_store(self, off, s_idx):
        A = self.A
        lab = A.label("sig")
        A(f"s_cmp_lg_u32 s20, 0")
        A(f"s_cbranch_scc1 {lab}")
        A(f"s_lshl_b32 s{sTMP}, s{s_idx}, 2")
        A(f"s_add_u32 s{sTMP}, s{sTMP}, {off}")
        A(f"v_mov_b32 v249, s{sNONCE}")
        A(f"v_mov_b32 v254, 0")
        A("s_mov_b64 exec, 1")
        A(f"buffer_store_dword v249, v254, {srd(srdF)}, s{sTMP} offen sc1")
        A("s_mov_b64 exec, -1")
        A(f"{lab}:")
    def flag_store_all(self, vm, off, s_idx):
        A = self.A
        A(f"s_lshl_b32 s{sTMP}, s{s_idx}, 2")
        A(f"s_add_u32 s{sTMP}, s{sTMP}, {off}")
        A(f"s_cmp_eq_u32 s20, 0")
        A(f"s_cselect_b32 s{sTMP}, s{sTMP}, 0x40000000")
        A(f"v_mov_b32 v249, s{sNONCE}")
        A(f"v_mov_b32 v254, 0")
        A("s_mov_b64 exec, 1")
        A(f"buffer_store_dword v249, v254, {srd(srdF)}, s{sTMP} offen sc1")
        A("s_mov_b64 exec, -1")
        vm.issue("flag")
    def arrive(self, vm, phase):
        A = self.A
        off = (OFF_FLAG1, OFF_FLAG2, OFF_FLAG1B)[phase]
        A(f"s_lshl_b32 s{sTMP}, s{sID}, 2")
        A(f"s_add_u32 s{sTMP}, s{sTMP}, {off}")
        A(f"s_cmp_eq_u32 s20, 0")
        A(f"s_cselect_b32 s{sTMP}, s{sTMP}, 0x40000000")
        A(f"v_mov_b32 v249, s{sNONCE}")
        A(f"v_and_b32 v254, 7, v0")
        A(f"v_lshlrev_b32 v254, 10, v254")
        A("s_mov_b64 exec, 0xff")
        A(f"buffer_store_dword v249, v254, {srd(srdF)}, s{sTMP} offen sc1")
        A("s_mov_b64 exec, -1")
        vm.issue("flag")
    def cpoll_issue(self, vm, phase):
        A = self.A
        off = (OFF_FLAG1, OFF_FLAG2, OFF_FLAG1B)[phase]
        A(f"v_and_b32 v254, 63, v0")
        A(f"v_lshlrev_b32 v254, 4, v254")
        A(f"s_and_b32 s{sTMP}, s{sID}, 7")
        A(f"s_lshl_b32 s{sTMP}, s{sTMP}, 10")
        A(f"s_add_u32 s{sTMP}, s{sTMP}, {off}")
        A(f"s_cmp_eq_u32 s20, 0")
        A(f"s_cselect_b32 s{sTMP}, s{sTMP}, 0x40000000")
        A(f"buffer_load_dwordx4 v[250:253], v254, {srd(srdF)}, s{sTMP} offen sc1")
        vm.issue("cpoll")
    def cpoll_check(self, vm, phase):
        A = self.A
        off = (OFF_FLAG1, OFF_FLAG2, OFF_FLAG1B)[phase]
        lo, ok = A.label("w"), A.label("wok")
        A(f"s_waitcnt vmcnt({vm.wait({'cpoll'})})")
        A(f"s_cmp_lg_u32 s20, 0")
        A(f"s_cbranch_scc1 {ok}")
        A(f"s_mov_b32 s{sSPIN}, 0")
        A(f"{lo}:")
        for k in range(4): A(f"v_xor_b32 v{250+k}, s{sNONCE}, v{250+k}")
        A(f"v_or3_b32 v250, v250, v251, v252")
        A(f"v_or_b32 v250, v250, v253")
        A(f"v_cmp_ne_u32 vcc, 0, v250")
        A(f"s_cbranch_vccz {ok}")
        A(f"s_add_u32 s{sSPIN}, s{sSPIN}, 1")
        A(f"s_cmp_gt_u32 s{sSPIN}, {SPIN_MAX}")
        A(f"s_cbranch_scc1 {ok}")
        A("s_sleep 2")
        A(f"v_and_b32 v254, 63, v0")
        A(f"v_lshlrev_b32 v254, 4, v254")
        A(f"s_and_b32 s{sTMP}, s{sID}, 7")
        A(f"s_lshl_b32 s{sTMP}, s{sTMP}, 10")
        A(f"s_add_u32 s{sTMP}, s{sTMP}, {off}")
        A(f"buffer_load_dwordx4 v[250:253], v254, {srd(srdF)}, s{sTMP} offen sc1")
        A("s_waitcnt vmcnt(0)")
        A(f"s_branch {lo}")
        A(f"{ok}:")
    def flag_store_wave(self, vm, off, s_idx):
        A = self.A
        A(f"s_lshl_b32 s{sTMP}, s{s_idx}, 2")
        A(f"s_add_u32 s{sTMP}, s{sTMP}, {off}")
        A(f"v_mov_b32 v249, s{sNONCE}")
        A(f"v_mov_b32 v254, 0")
        A("s_mov_b64 exec, 1")
        A(f"buffer_store_dword v249, v254, {srd(srdF)}, s{sTMP} offen sc1")
        A("s_mov_b64 exec, -1")
        vm.issue("flag")
    def signal(self, vm, off, s_idx):
        A = self.A
        A("s_waitcnt vmcnt(0)")
        A("s_barrier")
        vm.q = []
        self.flag_store_all(vm, off, s_idx)
    def poll_issue(self, vm, off):
        A = self.A
        A(f"v_and_b32 v254, 63, v0")
        A(f"v_lshlrev_b32 v254, 4, v254")
        A(f"s_mov_b32 s{sTMP}, {off}")
        A(f"buffer_load_dwordx4 v[250:253], v254, {srd(srdF)}, s{sTMP} offen sc1")
        vm.issue("poll")
    def poll_check(self, vm, off):
        A = self.A
        lo, ok = A.label("w"), A.label("wok")
        A(f"s_waitcnt vmcnt({vm.wait({'poll'})})")
        A(f"s_mov_b32 s{sSPIN}, 0")
        A(f"{lo}:")
        for k in range(4): A(f"v_xor_b32 v{250+k}, s{sNONCE}, v{250+k}")
        A(f"v_or3_b32 v250, v250, v251, v252")
        A(f"v_or_b32 v250, v250, v253")
        A(f"v_cmp_ne_u32 vcc, 0, v250")
        A(f"s_cbranch_vccz {ok}")
        A(f"s_add_u32 s{sSPIN}, s{sSPIN}, 1")
        A(f"s_cmp_gt_u32 s{sSPIN}, {SPIN_MAX}")
        A(f"s_cbranch_scc1 {ok}")
        A("s_sleep 4")
        A(f"s_mov_b32 s{sTMP}, {off}")
        A(f"buffer_load_dwordx4 v[250:253], v254, {srd(srdF)}, s{sTMP} offen sc1")
        A("s_waitcnt vmcnt(0)")
        A(f"s_branch {lo}")
        A(f"{ok}:")
    def wait_all(self, vm, off):
        self.poll_issue(vm, off); self.poll_check(vm, off)
    def wait_idx(self, vm, off, v_idx_code):
        A = self.A
        lo, ok = A.label("w"), A.label("wok")
        v_idx_code()
        A(f"s_mov_b32 s{sSPIN}, 0")
        A(f"s_mov_b32 s{sTMP}, {off}")
        A(f"{lo}:")
        A(f"buffer_load_dword v250, v254, {srd(srdF)}, s{sTMP} offen sc1")
        A("s_waitcnt vmcnt(0)")
        A(f"v_cmp_ne_u32 vcc, s{sNONCE}, v250")
        A(f"s_cbranch_vccz {ok}")
        A(f"s_add_u32 s{sSPIN}, s{sSPIN}, 1")
        A(f"s_cmp_gt_u32 s{sSPIN}, {SPIN_MAX}")
        A(f"s_cbranch_scc1 {ok}")
        A("s_sleep 4")
        A(f"s_branch {lo}")
        A(f"{ok}:")
        vm.q = []

    def body(self):
        A = self.A; self.role = "gemm"; self.ns = 0
        vm = VM()
        TA2 = self.ta2
        self.stamp("start")
        X = self.exp.split("+")
        aux.setup(A, pAX, pWR, pWI, pWD, pGW, pWS)
        issued = set()
        def iss(*ks):
            for k in ks:
                f1.issue(A, vm, *k); issued.add(k)
        def mid():
            if "nopf" not in X and "pflate" not in X and "pfmid" not in X and "pf2" not in X and "pf0" not in X: f1.l2_prefetch(A, vm, pWG, pWU)
        if "pf0" in X: f1.l2_prefetch(A, vm, pWG, pWU)
        aux.issue_loads(A, vm, mid, wd=("wdlate" not in X and "wdmid" not in X and "wd2" not in X and "wd3" not in X))
        self.stamp("issued")
        aux.consts_a1(A)
        f1.setup(A, sID, pAX, pWG, pWU, pWS)
        aux.setup_out(A, pWS)
        f1.setup_reads(A)
        A(aux.consts_a2_fill())
        aux.phase1_pre(A)
        if "wdmid" in X: aux.issue_wd(A, vm)
        if "pfmid" in X: f1.l2_prefetch(A, vm, pWG, pWU)
        self.stamp("consts")
        aux.a1_core(A, vm)
        self.stamp("core")
        if "wdlate" in X: aux.issue_wd(A, vm)
        if "pflate" in X: f1.l2_prefetch(A, vm, pWG, pWU)
        A("s_waitcnt lgkmcnt(0)")
        A(f"s_add_u32 s{sNONCE}, s{sNONCE}, 1")
        A(f"s_waitcnt vmcnt({vm.wait({'ws', 'gw'} | (set() if ('wdlate' in X or 'wdmid' in X or 'wd2' in X or 'wd3' in X) else {'wd'}))})")
        if "pf2" in X: f1.l2_prefetch(A, vm, pWG, pWU)
        if "wd2" in X: aux.issue_wd(A, vm)
        self.stamp("wswait")
        aux.a1_elem(A, vm)
        self.stamp("a1")
        if "nop1" not in self.exp and "nopreps" not in self.exp:
            iss(("x", 0), ("w", 0))
            self.stamp("x0w0")
            aux.wprep(A, vm)
            self.stamp("wp")
            iss(("w", 1))
            if "wdlate" in X or "wdmid" in X:
                A(f"s_waitcnt vmcnt({vm.wait({'wd'})})")
                A("s_barrier")
            if self.twt < 0: aux.wtprep(A, vm)
            self.stamp("wprep")
            iss(("x", 1), ("w", 2))
            if self.pro >= 1 and f1.NWS == 6: iss(("w", 3))
            if self.pro >= 2: iss(("x", 2))
            aux.gate(A, vm)

        if 'nop1' in self.exp: A('s_waitcnt vmcnt(0)')
        self.stamp("preps")
        class Hooks(dict):
            def __setitem__(self, k, fn):
                old = self.get(k)
                dict.__setitem__(self, k, fn if old is None else (lambda o=old, n=fn: (o(), n())))
        class Tags(dict):
            def __setitem__(self, k, tags):
                dict.__setitem__(self, k, set(self.get(k, ())) | set(tags))
        after, pause, extra, before = Hooks(), Hooks(), Tags(), Hooks()
        extra[self.tf1] = {'st'}
        after[self.tf1] = lambda: (self.arrive(vm, 0), self.stamp("flag1"), aux.issue_wd(A, vm) if 'wd3' in X else None)
        if self.xpf is not None: after[self.xpf] = lambda: f1.x_prefetch(A, vm)
        if self.dyn:
            TT = TA2 - 6
            def t_take():
                A.srd(4, pDBG, 256)
                A(f"s_and_b32 s{sTMP}, s{sID}, 7")
                A(f"s_lshl_b32 s{sTMP}, s{sTMP}, 5")
                A(f"s_cmp_eq_u32 s20, 0")
                A(f"s_cselect_b32 s{sTMP}, s{sTMP}, 0x40000000")
                A(f"v_mov_b32 v248, 1")
                A(f"v_mov_b32 v247, 0")
                A("s_mov_b64 exec, 1")
                A(f"buffer_atomic_add v248, v247, s[4:7], s{sTMP} offen sc0 sc1")
                A("s_mov_b64 exec, -1")
                vm.issue("tick")
            def t_share():
                A(f"s_lshl_b32 s{sTMP}, s20, 6")
                A(f"s_add_u32 s{sTMP}, s{sTMP}, {aux.L_GW}")
                A(f"v_mov_b32 v247, s{sTMP}")
                A("s_mov_b64 exec, 1")
                A("ds_write_b32 v247, v248")
                A("s_mov_b64 exec, -1")
                A("s_waitcnt lgkmcnt(0)")
            def t_read():
                A(f"v_mov_b32 v247, {aux.L_GW}")
                A("ds_read_b32 v248, v247")
            def t_use():
                A(f"v_readfirstlane_b32 s{aux.R.sa2}, v248")
                A(f"s_lshl_b32 s{aux.R.sa2}, s{aux.R.sa2}, 3")
                A(f"s_and_b32 s{sTMP}, s{sID}, 7")
                A(f"s_add_u32 s{aux.R.sa2}, s{aux.R.sa2}, s{sTMP}")
            after[TT] = t_take
            extra[TT+2] = {"tick"}
            before[TT+2] = t_share
            after[TT+2] = t_read
            after[TT+3] = t_use
        else:
            after[0] = lambda: A(f"s_mov_b32 s{aux.R.sa2}, s{sID}")
        def a2_issue():
            A(f"s_or_b32 s{sTMP}, s{sID}, s20")
            A(f"s_cmp_eq_u32 s{sTMP}, 0")
            A(f"s_cselect_b32 s{sTMP}, 0, 0x40000000")
            A(f"v_mov_b32 v249, s{sNONCE}")
            A(f"v_mov_b32 v254, 0")
            A("s_mov_b64 exec, 1")
            A(f"buffer_store_dword v249, v254, {srd(srdF)}, s{sTMP} offen sc1")
            A("s_mov_b64 exec, -1")
            vm.issue("flag")
            self.stamp("dep1")
            aux.a2_loads(A, vm, pWS)
            f2.setup_w(A, sID, pWS)
        NW_A2 = self.nwa2
        watoms = f2.w_loads(range(NW_A2))
        def a2_run():
            lab, lab2 = A.label("noa2"), A.label("a2d")
            self.stamp("a2 start")
            A(f"s_waitcnt vmcnt({vm.wait({'a2in'})})")
            A(f"s_cmp_ge_u32 s{aux.R.sa2}, {0 if 'noa2' in self.exp else 162}")
            A(f"s_cbranch_scc1 {lab}")
            v2 = VM()
            aux.a2(A, v2, pWS, waited=True, weave=list(watoms))
            A(f"s_branch {lab2}")
            A(f"{lab}:")
            for ins in watoms: A(ins)
            A(f"{lab2}:")
            for k in range(len(watoms)): vm.issue(f"W{k//5}")
            vm.issue('zst', 4)
            self.stamp("a2 end")
        after[TA2-3] = lambda: self.cpoll_issue(vm, 0)
        before[TA2-1] = lambda: self.cpoll_check(vm, 0)
        after[TA2-1] = a2_issue
        pause[TA2] = a2_run
        if self.twt >= 0:
            if 'wd2' in X or 'wd3' in X: extra[self.twt] = set(extra.get(self.twt, ())) | {'wd'}
            pause[self.twt] = lambda: aux.wtprep(A, vm, tag='wtst')
            extra[self.twt + 3] = {'wtst'}
            after[self.twt + 3] = lambda: self.arrive(vm, 2)
            after[TA2-1] = lambda: self.cpoll_issue(vm, 2)
            before[TA2] = lambda: self.cpoll_check(vm, 2)
        extra[TA2+self.d2] = {'zst', 'gst'}
        after[TA2+self.d2] = lambda: self.arrive(vm, 1)
        if self.dep2at < 0:
            after[16] = lambda: self.cpoll_issue(vm, 1)
            before[18] = lambda: self.cpoll_check(vm, 1)
        if "fine" in self.exp:
            for t in range(0, 19, 2):
                def mk(t, old):
                    def f():
                        if old: old()
                        self.stamp(f"bar{t}")
                    return f
                after[t] = (lambda t=t: self.stamp(f"bar{t}"))
        fl = []
        f1.main(A, vm, issued, fill=fl, after_barrier=after, pause=pause, late=[k for k in ([("w", 3), ("x", 2), ("w", 4), ("w", 5)] if f1.NWS == 6 else [("w", 3), ("x", 3), ("w", 4)]) if k not in issued], extra_need=extra, before_barrier=before)
        self.stamp("f1 loop end")
        f2.setup(A, sID, pWS, pOUT)
        if self.dep2at < 0:
            self.stamp("dep2")
            aux.a3_loads(A, vm, pWS)
        atoms = [(ins, f"W{self.nwa2 + k//5}") for k, ins in enumerate(f2.w_loads(range(self.nwa2, 10)))]
        def put(n):
            for _ in range(n):
                if atoms:
                    ins, tag = atoms.pop(0); A(ins); vm.issue(tag)
        def btw(k):
            if self.dep2at == 9:
                if k == 3: self.cpoll_issue(vm, 1)
                return
            if self.dep2at < 0 or k > self.dep2at: put(self.wput)
            if self.dep2at >= 0:
                if k == max(0, self.dep2at - 2): self.cpoll_issue(vm, 1)
                if k == self.dep2at:
                    self.cpoll_check(vm, 1)
                    A("s_barrier")
                    self.stamp("dep2")
                    aux.a3_loads(A, vm, pWS)
        f1.epilogue(A, vm, pWS, between=btw)
        self.stamp("f1 epi")
        A(f"s_lshl_b32 s{sTMP}, s{f1.R.smt}, 1")
        A(f"s_lshr_b32 s99, s20, 1")
        A(f"s_add_u32 s{sTMP}, s{sTMP}, s99")
        A(f"s_lshl_b32 s{sTMP}, s{sTMP}, 5")
        A(f"s_lshl_b32 s99, s{f1.R.sft}, 1")
        A(f"s_add_u32 s{sTMP}, s{sTMP}, s99")
        A(f"s_and_b32 s99, s20, 1")
        A(f"s_add_u32 s99, s{sTMP}, s99")
        if self.dep2at == 9:
            A(f"s_waitcnt vmcnt({vm.wait({'hst'})})")
            self.flag_store_wave(vm, OFF_FLAG3, 99)
            self.cpoll_check(vm, 1)
            A("s_barrier")
            self.stamp("dep2")
            aux.a3_loads(A, vm, pWS)
            put(self.wput*3)
        def extra(rnd):
            if rnd > 0: put(self.wputr)
            if rnd == 1 and self.dep2at != 9:
                A(f"s_waitcnt vmcnt({vm.wait({'hst'})})")
                self.flag_store_wave(vm, OFF_FLAG3, 99)
        aux.a3_elem(A, vm, extra)
        put(100)
        A("s_barrier")
        self.stamp("a3 elem")
        f2.setup2(A, pWS, pOUT)
        def poll3_issue():
            A(f"v_and_b32 v254, 31, v0")
            A(f"s_lshl_b32 s{sTMP}, s{f2.R.sT}, 5")
            A(f"v_add_u32 v254, s{sTMP}, v254")
            A(f"v_lshlrev_b32 v254, 2, v254")
            A(f"s_mov_b32 s{sTMP}, {OFF_FLAG3}")
            A(f"buffer_load_dword v250, v254, {srd(srdF)}, s{sTMP} offen sc1")
            vm.issue("poll3")
        def check_one(tag, off):
            lo, ok = A.label("w"), A.label("wok")
            A(f"s_waitcnt vmcnt({vm.wait({tag})})")
            A(f"s_mov_b32 s{sSPIN}, 0")
            A(f"{lo}:")
            A(f"v_cmp_ne_u32 vcc, s{sNONCE}, v250")
            A(f"s_cbranch_vccz {ok}")
            A(f"s_add_u32 s{sSPIN}, s{sSPIN}, 1")
            A(f"s_cmp_gt_u32 s{sSPIN}, {SPIN_MAX}")
            A(f"s_cbranch_scc1 {ok}")
            A("s_sleep 4")
            A(f"s_mov_b32 s{sTMP}, {off}")
            A(f"buffer_load_dword v250, v254, {srd(srdF)}, s{sTMP} offen sc1")
            A("s_waitcnt vmcnt(0)")
            A(f"s_branch {lo}")
            A(f"{ok}:")
        npre = self.npre
        if self.early3:
            poll3_issue()
            def mid():
                check_one("poll3", OFF_FLAG3)
                for i in range(npre):
                    A(f2.h_loads(i)); vm.issue(f"h{i}", 4)
            aux.a3_core(A, vm, pWS, mid=mid)
        else:
            aux.a3_core(A, vm, pWS, mid=poll3_issue)
        for k, ins in enumerate(f2.w_loads((10, 11))):
            A(ins); vm.issue(f"W{10 + k//5}")
        self.stamp("a3 core")
        if not self.early3:
            check_one("poll3", OFF_FLAG3)
            npre = 0
        self.stamp("dep3")
        def flag4():
            A(f"s_waitcnt vmcnt({vm.wait({'gast'})})")
            A(f"s_lshl_b32 s99, s{sID}, 2")
            A(f"s_add_u32 s99, s99, s20")
            self.flag_store_wave(vm, OFF_FLAG4, 99)
        def code4():
            A(f"v_and_b32 v254, 63, v0")
            A(f"s_and_b32 s{sTMP}, s{f2.R.sT}, 15")
            A(f"s_lshl_b32 s{sTMP}, s{sTMP}, 6")
            A(f"v_add_u32 v254, s{sTMP}, v254")
            A(f"v_lshlrev_b32 v254, 2, v254")
        def h_issue4():
            code4()
            A(f"s_mov_b32 s{sTMP}, {OFF_FLAG4}")
            A(f"buffer_load_dword v250, v254, {srd(srdF)}, s{sTMP} offen sc1")
            vm.issue("poll4")
        def h_check4():
            check_one("poll4", OFF_FLAG4)
            f2.final_loads(A, vm)
        hk = {1: flag4, 6: h_issue4, 10: h_check4}
        if "f2fine" in self.exp:
            for i_ in (0, 2, 4, 8, 11):
                hk[i_] = (lambda o=hk.get(i_), i_=i_: ((o() if o else None), self.stamp(f"f2s{i_}")))
        f2.main(A, vm, hooks=hk, pre_issued=npre)
        self.stamp("f2 loop end")
        f2.epilogue(A, vm)
        self.stamp("end")
        self.dump_stamps()
        A("s_endpgm")

    def build(self):
        A = self.A
        A(f"s_cmp_ge_u32 s2, 256")
        A(f"s_cbranch_scc1 K_exit")
        A(f"s_load_dwordx16 s[68:83], s[0:1], 0")
        A(f"s_load_dwordx4 s[84:87], s[0:1], 64")
        A(f"s_load_dwordx2 s[88:89], s[0:1], 80")
        if self.stamps: A("v_mov_b32 v255, 0")
        A(f"s_mov_b32 s{sID}, s2")
        A(f"v_lshrrev_b32 v4, 6, v0")
        A("s_nop 0")
        A(f"v_readfirstlane_b32 s20, v4")
        A("s_waitcnt lgkmcnt(0)")
        if self.wsbase:
            A(f"s_add_u32 s{pWS}, s{pWS}, {hex(self.wsbase)}")
            A(f"s_addc_u32 s{pWS+1}, s{pWS+1}, 0")
        A(f"s_load_dword s{sNONCE}, s[{pWS}:{pWS+1}], {OFF_EPOCH}")
        if self.codepf:
            A("s_getpc_b64 s[4:5]")
            A("K_pc:")
            A("s_and_b32 s5, s5, 0xffff")
            A("s_mov_b32 s6, K_exit-K_pc")
            A("s_mov_b32 s7, 0x20000")
            A("v_lshlrev_b32 v4, 7, v0")
            for k in range(self.codepf):
                A(f"s_mov_b32 s28, {32768*k}")
                A(f"buffer_load_dword v229, v4, s[4:7], s28 offen")
        if self.tlbpf:
            A.srd(4, pWS, 28 << 20)
            A("v_and_b32 v4, 63, v0")
            A("v_lshlrev_b32 v4, 19, v4")
            A("v_add_u32 v4, 0x7ff80, v4")
            A(f"buffer_load_dword v229, v4, s[4:7], 0 offen")
            A.srd(4, pOUT, 2048*640*2)
            A("v_and_b32 v4, 63, v0")
            A("v_lshlrev_b32 v4, 16, v4")
            A(f"buffer_load_dword v229, v4, s[4:7], 0 offen")
        A.srd(srdF, pWS, SZ_FLAGS)
        self.body()
        A("K_exit:")
        A("s_endpgm")
        if os.environ.get('NOST'):
            out = []
            for l in A.l:
                if 'buffer_store' in l and ('s[36:39]' in l or 's[48:51]' in l or 's[56:59]' in l): l = '  s_nop 0'
                out.append(l)
            A.l = out
        lines, n = hazard.fix(A.l)
        return lines

HEADER = open(os.path.join(os.path.dirname(os.path.abspath(__file__)), "header.txt")).read()
def full_source(**kw):
    g = Gen(**kw)
    body = "\n".join(g.build())
    src = HEADER + f"""; @launch grid=(256,1,1) block=(256,1,1) lds=163840
.amdgcn_target "amdgcn-amd-amdhsa--gfx950"
.text
.globl {NAME}
.p2align 8
.type {NAME},@function
{NAME}:
{body}
.section .rodata,"a"
.p2align 6
.amdhsa_kernel {NAME}
  .amdhsa_next_free_vgpr 512
  .amdhsa_next_free_sgpr 102
  .amdhsa_accum_offset 256
  .amdhsa_group_segment_fixed_size 0
  .amdhsa_kernarg_size 88
  .amdhsa_user_sgpr_count 2
  .amdhsa_user_sgpr_kernarg_segment_ptr 1
  .amdhsa_system_sgpr_workgroup_id_x 1
.end_amdhsa_kernel
"""
    return src, g
if __name__ == "__main__":
    kw = {}
    for o in sys.argv[2:]:
        k, v_ = o.split("="); kw[k] = eval(v_)
    src, g = full_source(**kw)
    out = sys.argv[1] if len(sys.argv) > 1 else "gated_mix__spectral_gfnet__swiglu_ffn__prompt.s"
    open(out, "w").write(src)
    print("wrote", out, len(src), "bytes")
```

```python
import sys, os
sys.path.insert(0, os.path.dirname(os.path.abspath(__file__)))
from asmlib import *
from layout import *
import f1, f2, g2, aux, hazard

NAME = "gated_mix__spectral_gfnet__swiglu_ffn__prompt_kernel"
pAX, pWR, pWI, pBX, pWG, pWU, pWD, pGW, pOUT, pDBG, pWS = 68, 70, 72, 74, 76, 78, 80, 82, 84, 86, 88
sNONCE, srdF, sSPIN, sTMP, sID = 90, 92, 96, 97, 98
srdD = 0
SPIN_MAX = 20000
import os
if os.environ.get('NOSPIN'): SPIN_MAX = 0

class Gen:
    def __init__(self, stamps=False, order="AB", gemm_first=True, exp="", ta2=11, tf1=-1, d2=2, nwa2=7, early3=True, npre=3, dep2at=9, wput=2, wputr=4, codepf=1, tlbpf=0, twt=-1, wsbase=0, map48=False, ahead=4, pro=2, xpf=None, outsc='', dbgsel=None, spread=True, dyn=False, lean=0):
        self.lean = lean
        self.dyn = dyn and stamps != 'dbg'
        f1.SPREAD = spread
        f2.OUTSC = outsc
        self.xpf = xpf
        self.pro = pro
        f2.MAP48 = map48; f2.AHEAD = ahead
        self.wsbase = wsbase
        self.twt = twt
        self.tlbpf = tlbpf
        self.codepf = codepf
        self.wput = wput; self.wputr = wputr
        self.dep2at = dep2at
        self.early3 = early3; self.npre = npre
        self.exp = exp; self.ta2 = ta2; self.tf1 = tf1; self.d2 = d2; self.nwa2 = nwa2
        self.A = Asm("K"); self.stamps = stamps; self.ns = 0; self.names = {}
        self.gemm_first = gemm_first
        self.dbg_sel = {"gemm": [(0,"start",1),(1,"consts",0),(2,"core",0),(3,"a1",0),(4,"preps",0),(5,"flag1",0),(6,"dep1",0),(7,"a2 start",0),(8,"a2 end",0),
                                 (9,"f1 loop end",0),(10,"f1 epi",0),(11,"dep2",0),(12,"a3 elem",0),(13,"a3 core",0),(14,"f2 loop end",0),(15,"end",0)]}
        if dbgsel: self.dbg_sel = {'gemm': [(i, n, 1 if i == 0 else 0) for i, n in enumerate(dbgsel)]}
        g2.ORDER = order; g2.STG = g2.stages()
    def stamp(self, name=None):
        if not self.stamps: return
        if self.stamps == "min" and name not in ("start", "end"): return
        A = self.A
        A("s_memrealtime s[100:101]")
        A("s_waitcnt lgkmcnt(0)")
        A(f"v_writelane_b32 v255, s100, {self.ns}")
        self.names.setdefault(self.role, []).append((self.ns, name))
        self.ns += 1
    def dump_stamps(self):
        if not self.stamps: return
        A = self.A
        if self.stamps == "dbg":
            sel = self.dbg_sel[self.role]
            A("s_waitcnt vmcnt(0) lgkmcnt(0)")
            A.srd(8, pDBG, 256)
            lab = A.label("nd")
            A("s_cmp_lg_u32 s20, 0")
            A(f"s_cbranch_scc1 {lab}")
            names = {nm: idx for idx, nm in self.names[self.role]}
            A("v_mov_b32 v2, 0")
            A("v_mov_b32 v3, 0x40000000")
            for slot, nm, inv in sel:
                A(f"v_readlane_b32 s30, v255, {names[nm]}")
                if inv: A("s_not_b32 s30, s30")
                A(f"s_mov_b32 s31, {4*slot}")
                A(f"v_writelane_b32 v2, s30, {slot}")
                A(f"v_writelane_b32 v3, s31, {slot}")
            A("buffer_atomic_umax v2, v3, s[8:11], 0 offen")
            A(f"{lab}:")
            return
        A("s_waitcnt vmcnt(0) lgkmcnt(0)")
        A.srd(8, pDBG, 1 << 20)
        A("v_lshlrev_b32 v1, 2, v0")
        A(f"s_lshl_b32 s30, s{sID}, 10")
        A("s_add_u32 s30, s30, 4096")
        A("buffer_store_dword v255, v1, s[8:11], s30 offen")
    def flag_store(self, off, s_idx):
        A = self.A
        lab = A.label("sig")
        A(f"s_cmp_lg_u32 s20, 0")
        A(f"s_cbranch_scc1 {lab}")
        A(f"s_lshl_b32 s{sTMP}, s{s_idx}, 2")
        A(f"s_add_u32 s{sTMP}, s{sTMP}, {off}")
        A(f"v_mov_b32 v249, s{sNONCE}")
        A(f"v_mov_b32 v254, 0")
        A("s_mov_b64 exec, 1")
        A(f"buffer_store_dword v249, v254, {srd(srdF)}, s{sTMP} offen sc1")
        A("s_mov_b64 exec, -1")
        A(f"{lab}:")
    def flag_store_all(self, vm, off, s_idx):
        A = self.A
        A(f"s_lshl_b32 s{sTMP}, s{s_idx}, 2")
        A(f"s_add_u32 s{sTMP}, s{sTMP}, {off}")
        A(f"s_cmp_eq_u32 s20, 0")
        A(f"s_cselect_b32 s{sTMP}, s{sTMP}, 0x40000000")
        A(f"v_mov_b32 v249, s{sNONCE}")
        A(f"v_mov_b32 v254, 0")
        A("s_mov_b64 exec, 1")
        A(f"buffer_store_dword v249, v254, {srd(srdF)}, s{sTMP} offen sc1")
        A("s_mov_b64 exec, -1")
        vm.issue("flag")
    def arrive(self, vm, phase):
        A = self.A
        off = (OFF_FLAG1, OFF_FLAG2, OFF_FLAG1B)[phase]
        A(f"s_lshl_b32 s{sTMP}, s{sID}, 2")
        A(f"s_add_u32 s{sTMP}, s{sTMP}, {off}")
        A(f"s_cmp_eq_u32 s20, 0")
        A(f"s_cselect_b32 s{sTMP}, s{sTMP}, 0x40000000")
        A(f"v_mov_b32 v249, s{sNONCE}")
        A(f"v_and_b32 v254, 7, v0")
        A(f"v_lshlrev_b32 v254, 10, v254")
        A("s_mov_b64 exec, 0xff")
        A(f"buffer_store_dword v249, v254, {srd(srdF)}, s{sTMP} offen sc1")
        A("s_mov_b64 exec, -1")
        vm.issue("flag")
    def cpoll_issue(self, vm, phase):
        A = self.A
        off = (OFF_FLAG1, OFF_FLAG2, OFF_FLAG1B)[phase]
        A(f"v_and_b32 v254, 63, v0")
        A(f"v_lshlrev_b32 v254, 4, v254")
        A(f"s_and_b32 s{sTMP}, s{sID}, 7")
        A(f"s_lshl_b32 s{sTMP}, s{sTMP}, 10")
        A(f"s_add_u32 s{sTMP}, s{sTMP}, {off}")
        A(f"s_cmp_eq_u32 s20, 0")
        A(f"s_cselect_b32 s{sTMP}, s{sTMP}, 0x40000000")
        A(f"buffer_load_dwordx4 v[250:253], v254, {srd(srdF)}, s{sTMP} offen sc1")
        vm.issue("cpoll")
    def cpoll_check(self, vm, phase):
        A = self.A
        off = (OFF_FLAG1, OFF_FLAG2, OFF_FLAG1B)[phase]
        lo, ok = A.label("w"), A.label("wok")
        A(f"s_waitcnt vmcnt({vm.wait({'cpoll'})})")
        A(f"s_cmp_lg_u32 s20, 0")
        A(f"s_cbranch_scc1 {ok}")
        A(f"s_mov_b32 s{sSPIN}, 0")
        A(f"{lo}:")
        for k in range(4): A(f"v_xor_b32 v{250+k}, s{sNONCE}, v{250+k}")
        A(f"v_or3_b32 v250, v250, v251, v252")
        A(f"v_or_b32 v250, v250, v253")
        A(f"v_cmp_ne_u32 vcc, 0, v250")
        A(f"s_cbranch_vccz {ok}")
        A(f"s_add_u32 s{sSPIN}, s{sSPIN}, 1")
        A(f"s_cmp_gt_u32 s{sSPIN}, {SPIN_MAX}")
        A(f"s_cbranch_scc1 {ok}")
        A("s_sleep 2")
        A(f"v_and_b32 v254, 63, v0")
        A(f"v_lshlrev_b32 v254, 4, v254")
        A(f"s_and_b32 s{sTMP}, s{sID}, 7")
        A(f"s_lshl_b32 s{sTMP}, s{sTMP}, 10")
        A(f"s_add_u32 s{sTMP}, s{sTMP}, {off}")
        A(f"buffer_load_dwordx4 v[250:253], v254, {srd(srdF)}, s{sTMP} offen sc1")
        A("s_waitcnt vmcnt(0)")
        A(f"s_branch {lo}")
        A(f"{ok}:")
    def flag_store_wave(self, vm, off, s_idx):
        A = self.A
        A(f"s_lshl_b32 s{sTMP}, s{s_idx}, 2")
        A(f"s_add_u32 s{sTMP}, s{sTMP}, {off}")
        A(f"v_mov_b32 v249, s{sNONCE}")
        A(f"v_mov_b32 v254, 0")
        A("s_mov_b64 exec, 1")
        A(f"buffer_store_dword v249, v254, {srd(srdF)}, s{sTMP} offen sc1")
        A("s_mov_b64 exec, -1")
        vm.issue("flag")
    def signal(self, vm, off, s_idx):
        A = self.A
        A("s_waitcnt vmcnt(0)")
        A("s_barrier")
        vm.q = []
        self.flag_store_all(vm, off, s_idx)
    def poll_issue(self, vm, off):
        A = self.A
        A(f"v_and_b32 v254, 63, v0")
        A(f"v_lshlrev_b32 v254, 4, v254")
        A(f"s_mov_b32 s{sTMP}, {off}")
        A(f"buffer_load_dwordx4 v[250:253], v254, {srd(srdF)}, s{sTMP} offen sc1")
        vm.issue("poll")
    def poll_check(self, vm, off):
        A = self.A
        lo, ok = A.label("w"), A.label("wok")
        A(f"s_waitcnt vmcnt({vm.wait({'poll'})})")
        A(f"s_mov_b32 s{sSPIN}, 0")
        A(f"{lo}:")
        for k in range(4): A(f"v_xor_b32 v{250+k}, s{sNONCE}, v{250+k}")
        A(f"v_or3_b32 v250, v250, v251, v252")
        A(f"v_or_b32 v250, v250, v253")
        A(f"v_cmp_ne_u32 vcc, 0, v250")
        A(f"s_cbranch_vccz {ok}")
        A(f"s_add_u32 s{sSPIN}, s{sSPIN}, 1")
        A(f"s_cmp_gt_u32 s{sSPIN}, {SPIN_MAX}")
        A(f"s_cbranch_scc1 {ok}")
        A("s_sleep 4")
        A(f"s_mov_b32 s{sTMP}, {off}")
        A(f"buffer_load_dwordx4 v[250:253], v254, {srd(srdF)}, s{sTMP} offen sc1")
        A("s_waitcnt vmcnt(0)")
        A(f"s_branch {lo}")
        A(f"{ok}:")
    def wait_all(self, vm, off):
        self.poll_issue(vm, off); self.poll_check(vm, off)
    def wait_idx(self, vm, off, v_idx_code):
        A = self.A
        lo, ok = A.label("w"), A.label("wok")
        v_idx_code()
        A(f"s_mov_b32 s{sSPIN}, 0")
        A(f"s_mov_b32 s{sTMP}, {off}")
        A(f"{lo}:")
        A(f"buffer_load_dword v250, v254, {srd(srdF)}, s{sTMP} offen sc1")
        A("s_waitcnt vmcnt(0)")
        A(f"v_cmp_ne_u32 vcc, s{sNONCE}, v250")
        A(f"s_cbranch_vccz {ok}")
        A(f"s_add_u32 s{sSPIN}, s{sSPIN}, 1")
        A(f"s_cmp_gt_u32 s{sSPIN}, {SPIN_MAX}")
        A(f"s_cbranch_scc1 {ok}")
        A("s_sleep 4")
        A(f"s_branch {lo}")
        A(f"{ok}:")
        vm.q = []

    def body(self):
        A = self.A; self.role = "gemm"; self.ns = 0
        vm = VM()
        TA2 = self.ta2
        self.stamp("start")
        X = self.exp.split("+")
        aux.setup(A, pAX, pWR, pWI, pWD, pGW, pWS)
        issued = set()
        def iss(*ks):
            for k in ks:
                f1.issue(A, vm, *k); issued.add(k)
        def mid():
            if "nopf" not in X and "pflate" not in X and "pfmid" not in X and "pf2" not in X and "pf0" not in X: f1.l2_prefetch(A, vm, pWG, pWU)
        if "pf0" in X: f1.l2_prefetch(A, vm, pWG, pWU)
        aux.issue_loads(A, vm, mid, wd=("wdlate" not in X and "wdmid" not in X and "wd2" not in X and "wd3" not in X))
        self.stamp("issued")
        aux.consts_a1(A)
        if self.lean == 0:
            f1.setup(A, sID, pAX, pWG, pWU, pWS)
            aux.setup_out(A, pWS)
            f1.setup_reads(A)
            A(aux.consts_a2_fill())
            aux.phase1_pre(A)
        if "wdmid" in X: aux.issue_wd(A, vm)
        if "pfmid" in X: f1.l2_prefetch(A, vm, pWG, pWU)
        self.stamp("consts")
        aux.a1_core(A, vm)
        self.stamp("core")
        if self.lean >= 1:
            A('s_waitcnt lgkmcnt(0)')
            aux.setup_out(A, pWS)
            aux.phase1_pre(A)
            f1.setup(A, sID, pAX, pWG, pWU, pWS)
            f1.setup_reads(A)
            if self.lean == 1: A(aux.consts_a2_fill())
        if "wdlate" in X: aux.issue_wd(A, vm)
        if "pflate" in X: f1.l2_prefetch(A, vm, pWG, pWU)
        A("s_waitcnt lgkmcnt(0)")
        A(f"s_add_u32 s{sNONCE}, s{sNONCE}, 1")
        A(f"s_waitcnt vmcnt({vm.wait({'ws', 'gw'} | (set() if ('wdlate' in X or 'wdmid' in X or 'wd2' in X or 'wd3' in X) else {'wd'}))})")
        if "pf2" in X: f1.l2_prefetch(A, vm, pWG, pWU)
        if "wd2" in X: aux.issue_wd(A, vm)
        self.stamp("wswait")
        aux.a1_elem(A, vm)
        self.stamp("a1")
        if "nop1" not in self.exp and "nopreps" not in self.exp:
            iss(("x", 0), ("w", 0))
            self.stamp("x0w0")
            aux.wprep(A, vm)
            self.stamp("wp")
            iss(("w", 1))
            if "wdlate" in X or "wdmid" in X:
                A(f"s_waitcnt vmcnt({vm.wait({'wd'})})")
                A("s_barrier")
            if self.twt < 0: aux.wtprep(A, vm)
            self.stamp("wprep")
            iss(("x", 1), ("w", 2))
            if self.pro >= 1 and f1.NWS == 6: iss(("w", 3))
            if self.pro >= 2: iss(("x", 2))
            aux.gate(A, vm)

        if 'nop1' in self.exp: A('s_waitcnt vmcnt(0)')
        self.stamp("preps")
        class Hooks(dict):
            def __setitem__(self, k, fn):
                old = self.get(k)
                dict.__setitem__(self, k, fn if old is None else (lambda o=old, n=fn: (o(), n())))
        class Tags(dict):
            def __setitem__(self, k, tags):
                dict.__setitem__(self, k, set(self.get(k, ())) | set(tags))
        after, pause, extra, before = Hooks(), Hooks(), Tags(), Hooks()
        extra[self.tf1] = {'st'}
        after[self.tf1] = lambda: (self.arrive(vm, 0), self.stamp("flag1"), aux.issue_wd(A, vm) if 'wd3' in X else None)
        if self.xpf is not None: after[self.xpf] = lambda: f1.x_prefetch(A, vm)
        if self.dyn:
            TT = TA2 - 6
            def t_take():
                A.srd(4, pDBG, 256)
                A(f"s_and_b32 s{sTMP}, s{sID}, 7")
                A(f"s_lshl_b32 s{sTMP}, s{sTMP}, 5")
                A(f"s_cmp_eq_u32 s20, 0")
                A(f"s_cselect_b32 s{sTMP}, s{sTMP}, 0x40000000")
                A(f"v_mov_b32 v248, 1")
                A(f"v_mov_b32 v247, 0")
                A("s_mov_b64 exec, 1")
                A(f"buffer_atomic_add v248, v247, s[4:7], s{sTMP} offen sc0 sc1")
                A("s_mov_b64 exec, -1")
                vm.issue("tick")
            def t_share():
                A(f"s_lshl_b32 s{sTMP}, s20, 6")
                A(f"s_add_u32 s{sTMP}, s{sTMP}, {aux.L_GW}")
                A(f"v_mov_b32 v247, s{sTMP}")
                A("s_mov_b64 exec, 1")
                A("ds_write_b32 v247, v248")
                A("s_mov_b64 exec, -1")
                A("s_waitcnt lgkmcnt(0)")
            def t_read():
                A(f"v_mov_b32 v247, {aux.L_GW}")
                A("ds_read_b32 v248, v247")
            def t_use():
                A(f"v_readfirstlane_b32 s{aux.R.sa2}, v248")
                A(f"s_lshl_b32 s{aux.R.sa2}, s{aux.R.sa2}, 3")
                A(f"s_and_b32 s{sTMP}, s{sID}, 7")
                A(f"s_add_u32 s{aux.R.sa2}, s{aux.R.sa2}, s{sTMP}")
            after[TT] = t_take
            extra[TT+2] = {"tick"}
            before[TT+2] = t_share
            after[TT+2] = t_read
            after[TT+3] = t_use
        else:
            after[0] = lambda: A(f"s_mov_b32 s{aux.R.sa2}, s{sID}")
        def a2_issue():
            A(f"s_or_b32 s{sTMP}, s{sID}, s20")
            A(f"s_cmp_eq_u32 s{sTMP}, 0")
            A(f"s_cselect_b32 s{sTMP}, 0, 0x40000000")
            A(f"v_mov_b32 v249, s{sNONCE}")
            A(f"v_mov_b32 v254, 0")
            A("s_mov_b64 exec, 1")
            A(f"buffer_store_dword v249, v254, {srd(srdF)}, s{sTMP} offen sc1")
            A("s_mov_b64 exec, -1")
            vm.issue("flag")
            self.stamp("dep1")
            aux.a2_loads(A, vm, pWS)
            f2.setup_w(A, sID, pWS)
        NW_A2 = self.nwa2
        watoms = f2.w_loads(range(NW_A2))
        def a2_run():
            lab, lab2 = A.label("noa2"), A.label("a2d")
            self.stamp("a2 start")
            A(f"s_waitcnt vmcnt({vm.wait({'a2in'})})")
            A(f"s_cmp_ge_u32 s{aux.R.sa2}, {0 if 'noa2' in self.exp else 162}")
            A(f"s_cbranch_scc1 {lab}")
            v2 = VM()
            aux.a2(A, v2, pWS, waited=True, weave=list(watoms))
            A(f"s_branch {lab2}")
            A(f"{lab}:")
            for ins in watoms: A(ins)
            A(f"{lab2}:")
            for k in range(len(watoms)): vm.issue(f"W{k//5}")
            vm.issue('zst', 4)
            self.stamp("a2 end")
        after[TA2-3] = lambda: self.cpoll_issue(vm, 0)
        before[TA2-1] = lambda: self.cpoll_check(vm, 0)
        after[TA2-1] = a2_issue
        pause[TA2] = a2_run
        if self.twt >= 0:
            if 'wd2' in X or 'wd3' in X: extra[self.twt] = set(extra.get(self.twt, ())) | {'wd'}
            pause[self.twt] = lambda: aux.wtprep(A, vm, tag='wtst')
            extra[self.twt + 3] = {'wtst'}
            after[self.twt + 3] = lambda: self.arrive(vm, 2)
            after[TA2-1] = lambda: self.cpoll_issue(vm, 2)
            before[TA2] = lambda: self.cpoll_check(vm, 2)
        extra[TA2+self.d2] = {'zst', 'gst'}
        after[TA2+self.d2] = lambda: self.arrive(vm, 1)
        if self.dep2at < 0:
            after[16] = lambda: self.cpoll_issue(vm, 1)
            before[18] = lambda: self.cpoll_check(vm, 1)
        if "fine" in self.exp:
            for t in range(0, 19, 2):
                def mk(t, old):
                    def f():
                        if old: old()
                        self.stamp(f"bar{t}")
                    return f
                after[t] = (lambda t=t: self.stamp(f"bar{t}"))
        fl = aux.consts_a2_fill() if self.lean == 2 else []
        f1.main(A, vm, issued, fill=fl, after_barrier=after, pause=pause, late=[k for k in ([("w", 3), ("x", 2), ("w", 4), ("w", 5)] if f1.NWS == 6 else [("w", 3), ("x", 3), ("w", 4)]) if k not in issued], extra_need=extra, before_barrier=before)
        self.stamp("f1 loop end")
        f2.setup(A, sID, pWS, pOUT)
        if self.dep2at < 0:
            self.stamp("dep2")
            aux.a3_loads(A, vm, pWS)
        atoms = [(ins, f"W{self.nwa2 + k//5}") for k, ins in enumerate(f2.w_loads(range(self.nwa2, 10)))]
        def put(n):
            for _ in range(n):
                if atoms:
                    ins, tag = atoms.pop(0); A(ins); vm.issue(tag)
        def btw(k):
            if self.dep2at == 9:
                if k == 3: self.cpoll_issue(vm, 1)
                return
            if self.dep2at < 0 or k > self.dep2at: put(self.wput)
            if self.dep2at >= 0:
                if k == max(0, self.dep2at - 2): self.cpoll_issue(vm, 1)
                if k == self.dep2at:
                    self.cpoll_check(vm, 1)
                    A("s_barrier")
                    self.stamp("dep2")
                    aux.a3_loads(A, vm, pWS)
        f1.epilogue(A, vm, pWS, between=btw)
        self.stamp("f1 epi")
        A(f"s_lshl_b32 s{sTMP}, s{f1.R.smt}, 1")
        A(f"s_lshr_b32 s99, s20, 1")
        A(f"s_add_u32 s{sTMP}, s{sTMP}, s99")
        A(f"s_lshl_b32 s{sTMP}, s{sTMP}, 5")
        A(f"s_lshl_b32 s99, s{f1.R.sft}, 1")
        A(f"s_add_u32 s{sTMP}, s{sTMP}, s99")
        A(f"s_and_b32 s99, s20, 1")
        A(f"s_add_u32 s99, s{sTMP}, s99")
        if self.dep2at == 9:
            A(f"s_waitcnt vmcnt({vm.wait({'hst'})})")
            self.flag_store_wave(vm, OFF_FLAG3, 99)
            self.cpoll_check(vm, 1)
            A("s_barrier")
            self.stamp("dep2")
            aux.a3_loads(A, vm, pWS)
            put(self.wput*3)
        def extra(rnd):
            if rnd > 0: put(self.wputr)
            if rnd == 1 and self.dep2at != 9:
                A(f"s_waitcnt vmcnt({vm.wait({'hst'})})")
                self.flag_store_wave(vm, OFF_FLAG3, 99)
        aux.a3_elem(A, vm, extra)
        put(100)
        A("s_barrier")
        self.stamp("a3 elem")
        f2.setup2(A, pWS, pOUT)
        def poll3_issue():
            A(f"v_and_b32 v254, 31, v0")
            A(f"s_lshl_b32 s{sTMP}, s{f2.R.sT}, 5")
            A(f"v_add_u32 v254, s{sTMP}, v254")
            A(f"v_lshlrev_b32 v254, 2, v254")
            A(f"s_mov_b32 s{sTMP}, {OFF_FLAG3}")
            A(f"buffer_load_dword v250, v254, {srd(srdF)}, s{sTMP} offen sc1")
            vm.issue("poll3")
        def check_one(tag, off):
            lo, ok = A.label("w"), A.label("wok")
            A(f"s_waitcnt vmcnt({vm.wait({tag})})")
            A(f"s_mov_b32 s{sSPIN}, 0")
            A(f"{lo}:")
            A(f"v_cmp_ne_u32 vcc, s{sNONCE}, v250")
            A(f"s_cbranch_vccz {ok}")
            A(f"s_add_u32 s{sSPIN}, s{sSPIN}, 1")
            A(f"s_cmp_gt_u32 s{sSPIN}, {SPIN_MAX}")
            A(f"s_cbranch_scc1 {ok}")
            A("s_sleep 4")
            A(f"s_mov_b32 s{sTMP}, {off}")
            A(f"buffer_load_dword v250, v254, {srd(srdF)}, s{sTMP} offen sc1")
            A("s_waitcnt vmcnt(0)")
            A(f"s_branch {lo}")
            A(f"{ok}:")
        npre = self.npre
        if self.early3:
            poll3_issue()
            def mid():
                check_one("poll3", OFF_FLAG3)
                for i in range(npre):
                    A(f2.h_loads(i)); vm.issue(f"h{i}", 4)
            aux.a3_core(A, vm, pWS, mid=mid)
        else:
            aux.a3_core(A, vm, pWS, mid=poll3_issue)
        for k, ins in enumerate(f2.w_loads((10, 11))):
            A(ins); vm.issue(f"W{10 + k//5}")
        self.stamp("a3 core")
        if not self.early3:
            check_one("poll3", OFF_FLAG3)
            npre = 0
        self.stamp("dep3")
        def flag4():
            A(f"s_waitcnt vmcnt({vm.wait({'gast'})})")
            A(f"s_lshl_b32 s99, s{sID}, 2")
            A(f"s_add_u32 s99, s99, s20")
            self.flag_store_wave(vm, OFF_FLAG4, 99)
        def code4():
            A(f"v_and_b32 v254, 63, v0")
            A(f"s_and_b32 s{sTMP}, s{f2.R.sT}, 15")
            A(f"s_lshl_b32 s{sTMP}, s{sTMP}, 6")
            A(f"v_add_u32 v254, s{sTMP}, v254")
            A(f"v_lshlrev_b32 v254, 2, v254")
        def h_issue4():
            code4()
            A(f"s_mov_b32 s{sTMP}, {OFF_FLAG4}")
            A(f"buffer_load_dword v250, v254, {srd(srdF)}, s{sTMP} offen sc1")
            vm.issue("poll4")
        def h_check4():
            check_one("poll4", OFF_FLAG4)
            f2.final_loads(A, vm)
        hk = {1: flag4, 6: h_issue4, 10: h_check4}
        if "f2fine" in self.exp:
            for i_ in (0, 2, 4, 8, 11):
                hk[i_] = (lambda o=hk.get(i_), i_=i_: ((o() if o else None), self.stamp(f"f2s{i_}")))
        f2.main(A, vm, hooks=hk, pre_issued=npre)
        self.stamp("f2 loop end")
        f2.epilogue(A, vm)
        self.stamp("end")
        self.dump_stamps()
        A("s_endpgm")

    def build(self):
        A = self.A
        A(f"s_cmp_ge_u32 s2, 256")
        A(f"s_cbranch_scc1 K_exit")
        A(f"s_load_dwordx16 s[68:83], s[0:1], 0")
        A(f"s_load_dwordx4 s[84:87], s[0:1], 64")
        A(f"s_load_dwordx2 s[88:89], s[0:1], 80")
        if self.stamps: A("v_mov_b32 v255, 0")
        A(f"s_mov_b32 s{sID}, s2")
        A(f"v_lshrrev_b32 v4, 6, v0")
        A("s_nop 0")
        A(f"v_readfirstlane_b32 s20, v4")
        A("s_waitcnt lgkmcnt(0)")
        if self.wsbase:
            A(f"s_add_u32 s{pWS}, s{pWS}, {hex(self.wsbase)}")
            A(f"s_addc_u32 s{pWS+1}, s{pWS+1}, 0")
        A(f"s_load_dword s{sNONCE}, s[{pWS}:{pWS+1}], {OFF_EPOCH}")
        if self.codepf:
            A("s_getpc_b64 s[4:5]")
            A("K_pc:")
            A("s_and_b32 s5, s5, 0xffff")
            A("s_mov_b32 s6, K_exit-K_pc")
            A("s_mov_b32 s7, 0x20000")
            A("v_lshlrev_b32 v4, 7, v0")
            for k in range(self.codepf):
                A(f"s_mov_b32 s28, {32768*k}")
                A(f"buffer_load_dword v229, v4, s[4:7], s28 offen")
        if self.tlbpf:
            A.srd(4, pWS, 28 << 20)
            A("v_and_b32 v4, 63, v0")
            A("v_lshlrev_b32 v4, 19, v4")
            A("v_add_u32 v4, 0x7ff80, v4")
            A(f"buffer_load_dword v229, v4, s[4:7], 0 offen")
            A.srd(4, pOUT, 2048*640*2)
            A("v_and_b32 v4, 63, v0")
            A("v_lshlrev_b32 v4, 16, v4")
            A(f"buffer_load_dword v229, v4, s[4:7], 0 offen")
        A.srd(srdF, pWS, SZ_FLAGS)
        self.body()
        A("K_exit:")
        A("s_endpgm")
        if os.environ.get('NOST'):
            out = []
            for l in A.l:
                if 'buffer_store' in l and ('s[36:39]' in l or 's[48:51]' in l or 's[56:59]' in l): l = '  s_nop 0'
                out.append(l)
            A.l = out
        lines, n = hazard.fix(A.l)
        return lines

HEADER = open(os.path.join(os.path.dirname(os.path.abspath(__file__)), "header.txt")).read()
def full_source(**kw):
    g = Gen(**kw)
    body = "\n".join(g.build())
    src = HEADER + f"""; @launch grid=(256,1,1) block=(256,1,1) lds=163840
.amdgcn_target "amdgcn-amd-amdhsa--gfx950"
.text
.globl {NAME}
.p2align 8
.type {NAME},@function
{NAME}:
{body}
.section .rodata,"a"
.p2align 6
.amdhsa_kernel {NAME}
  .amdhsa_next_free_vgpr 512
  .amdhsa_next_free_sgpr 102
  .amdhsa_accum_offset 256
  .amdhsa_group_segment_fixed_size 0
  .amdhsa_kernarg_size 88
  .amdhsa_user_sgpr_count 2
  .amdhsa_user_sgpr_kernarg_segment_ptr 1
  .amdhsa_system_sgpr_workgroup_id_x 1
.end_amdhsa_kernel
"""
    return src, g
if __name__ == "__main__":
    kw = {}
    for o in sys.argv[2:]:
        k, v_ = o.split("="); kw[k] = eval(v_)
    src, g = full_source(**kw)
    out = sys.argv[1] if len(sys.argv) > 1 else "gated_mix__spectral_gfnet__swiglu_ffn__prompt.s"
    open(out, "w").write(src)
    print("wrote", out, len(src), "bytes")
```

```python
def v(i, n=1):  return f"v{i}" if n == 1 else f"v[{i}:{i+n-1}]"
def a(i, n=1):  return f"a{i}" if n == 1 else f"a[{i}:{i+n-1}]"
def s(i, n=1):  return f"s{i}" if n == 1 else f"s[{i}:{i+n-1}]"

class Asm:
    def __init__(self, prefix="L"):
        self.l = []
        self._lab = 0
        self.prefix = prefix
    def __call__(self, txt):
        if isinstance(txt, (list, tuple)):
            for t in txt: self(t)
            return
        for ln in txt.split("\n"):
            ln = ln.strip()
            if ln: self.l.append(("" if ln.endswith(":") else "  ") + ln)
    def c(self, txt): self.l.append("  ; " + txt)
    def label(self, base="x"):
        self._lab += 1
        return f"{self.prefix}_{base}{self._lab}"
    def text(self): return "\n".join(self.l) + "\n"
    def nop(self, n):
        while n > 0:
            k = min(n, 16); self(f"s_nop {k-1}"); n -= k
    def srd(self, d, lo, nbytes, off=0):
        if off:
            self(f"s_add_u32 s{d}, s{lo}, {hex(off)}")
            self(f"s_addc_u32 s{d+1}, s{lo+1}, 0")
            self(f"s_and_b32 s{d+1}, s{d+1}, 0xffff")
        else:
            self(f"s_mov_b32 s{d}, s{lo}")
            self(f"s_and_b32 s{d+1}, s{lo+1}, 0xffff")
        self(f"s_mov_b32 s{d+2}, {hex(nbytes)}")
        self(f"s_mov_b32 s{d+3}, 0x20000")

def srd(d): return f"s[{d}:{d+3}]"

class VM:
    def __init__(self): self.q = []
    def issue(self, tag, n=1):
        self.q += [tag]*n
    def mark(self, tag):
        self.q.append("?" + tag)
    def wait(self, tags):
        last = -1
        for i, t in enumerate(self.q):
            if t.lstrip("?") in tags: last = i
        self.q = self.q[last+1:]
        n = sum(1 for t in self.q if not t.startswith("?"))
        return min(n, 63)
    def pending(self, tags): return any(t.lstrip("?") in tags for t in self.q)

def place(main, groups):
    out = []
    for i, m in enumerate(main):
        out.append(m)
        if i < len(groups): out += groups[i]
    for g in groups[len(main):]: out += g
    return out
```

```python
from asmlib import *
from layout import *
import struct
def fb(x): return hex(struct.unpack('<I', struct.pack('<f', x))[0])

import os
SC = os.environ.get('AUXSC', ' sc1')
NOST = os.environ.get('NOST')
PK2 = True
class R:
    vl = 1
    vn = 2
    vh = 3
    TWr, TWi = 160, 176
    t3r, t3i = 192, 198
    T2r, T2i = 0, 16
    CRe, CIm, F10 = 216, 232, 248
    sw = 20
    sc = 98
    sa2 = 63
    srdAX, srdX1, srdWR, srdWI, srdWF, srdWD, srdWT, srdGW, srdG, srdFT, srdZ = 32, 36, 40, 44, 48, 52, 56, 60, 64, 4, 4
    st = 28
    st2 = 99

import f1 as _f1
AUXB   = _f1.WBASE + _f1.NWS*_f1.WSLOT
L_XR   = AUXB
L_GW   = AUXB + 12288
if _f1.NXS == 4:
    L_WS = 3*_f1.XSLOT
    L_WD = AUXB + 14336
else:
    L_WS = AUXB + 14336
    L_WD = AUXB + 32768
L_Z    = _f1.WBASE + (_f1.NWS-2)*_f1.WSLOT
ZROW, ZWAVE = 2560, 5184
L_X    = AUXB
L_F    = AUXB + 16384

def setup(A, pAX, pWR, pWI, pWD, pGW, pWS):
    A.c("---- aux setup ----")
    A(f"v_and_b32 v{R.vl}, 63, v0")
    A(f"v_and_b32 v{R.vn}, 31, v{R.vl}")
    A(f"v_lshrrev_b32 v{R.vh}, 5, v{R.vl}")
    A.srd(R.srdAX, pAX, 2048*640*2)

def setup_out(A, pWS):
    A.srd(R.srdX1, pWS, SZ_X1, OFF_X1)
    A.srd(R.srdWF, pWS, SZ_WF, OFF_WF)
    A.srd(R.srdWT, pWS, SZ_WT, OFF_WT)
    A.srd(R.srdG, pWS, 8192, OFF_G)

XA = 16
def issue_wd(A, vm, pWD=80):
    st = R.st
    A.c("Wd tile DMA (workgroups >= 240 fall off the end of the buffer and get zeros)")
    A.srd(R.srdWD, pWD, 1536*640*2)
    A(f"s_mul_i32 s{st+2}, s{R.sc}, 52429")
    A(f"s_lshr_b32 s{st+2}, s{st+2}, 18")
    A(f"s_mul_i32 s{st+3}, s{st+2}, 5")
    A(f"s_sub_u32 s{st+3}, s{R.sc}, s{st+3}")
    A(f"s_lshl_b32 s{st}, s{st+2}, 5")
    A(f"s_lshl_b32 s{st+1}, s{R.sw}, 3")
    A(f"s_add_u32 s{st}, s{st}, s{st+1}")
    A(f"s_mul_i32 s{st}, s{st}, 1280")
    A(f"s_lshl_b32 s{st+1}, s{st+3}, 8")
    A(f"s_add_u32 s{st}, s{st}, s{st+1}")
    A(f"v_lshrrev_b32 v5, 4, v{R.vl}")
    A(f"v_mul_u32_u24 v5, 1280, v5")
    A(f"v_and_b32 v6, 15, v{R.vl}")
    A(f"v_lshl_add_u32 v5, v6, 4, v5")
    A(f"s_lshl_b32 s{st+1}, s{R.sw}, 11")
    A(f"s_add_u32 m0, s{st+1}, {L_WD}")
    A(f"v_add_u32 v6, {4*1280-1024}, v5")
    A(f"buffer_load_dwordx4 v5, {srd(R.srdWD)}, s{st} offen lds")
    A(f"buffer_load_dwordx4 v6, {srd(R.srdWD)}, s{st} offen offset:1024 lds")
    vm.issue('wd', 2)

def issue_loads(A, vm, mid=None, pWR=70, pWI=72, pWD=80, pGW=82, wd=True):
    st = R.st
    A.c("x rows: chunk i = 64j + l ; i<80 row s', i<160 row s'+1024, else out of range (zeros)")
    A(f"s_lshl_b32 s{st}, s{R.sc}, 2")
    A(f"s_add_u32 s{st}, s{st}, s{R.sw}")
    A(f"s_mul_i32 s{st}, s{st}, 1280")
    A(f"s_mul_i32 s{st+1}, s{R.sw}, 3072")
    A(f"s_add_u32 m0, s{st+1}, {L_XR}")
    A(f"v_lshlrev_b32 v4, 4, v{R.vl}")
    A(f"buffer_load_dwordx4 v4, {srd(R.srdAX)}, s{st} offen lds")
    A(f"v_add_u32 v5, {1024-1024}, v4")
    A(f"v_add_u32 v6, {1024*1280 - 256 - 1024}, v4")
    A(f"v_cmp_gt_u32 vcc, 16, v{R.vl}")
    A(f"v_cndmask_b32 v5, v6, v5, vcc")
    A(f"buffer_load_dwordx4 v5, {srd(R.srdAX)}, s{st} offen offset:1024 lds")
    A(f"v_add_u32 v5, {1024*1280 + 48*16 - 2048}, v4")
    A(f"v_mov_b32 v6, 0x40000000")
    A(f"v_cmp_gt_u32 vcc, 32, v{R.vl}")
    A(f"v_cndmask_b32 v5, v6, v5, vcc")
    A(f"buffer_load_dwordx4 v5, {srd(R.srdAX)}, s{st} offen offset:2048 lds")
    vm.issue('xr', 3)
    A.srd(R.srdWR, pWR, 2048*321*2)
    A.srd(R.srdWI, pWI, 2048*321*2)
    A.c("filter staging: rho=b&63 (rows 32 rho + e), cq=b>>6 ; wave: array = w>>1, rows 16(w&1) + i/12, chunk i%12")
    A(f"s_and_b32 s{st}, s{R.sc}, 63")
    A(f"s_lshl_b32 s{st}, s{st}, 5")
    A(f"s_and_b32 s{st+1}, s{R.sw}, 1")
    A(f"s_lshl_b32 s{st+1}, s{st+1}, 4")
    A(f"s_add_u32 s{st}, s{st}, s{st+1}")
    A(f"s_lshr_b32 s{st+1}, s{R.sc}, 6")
    A(f"s_mul_i32 s{st+1}, s{st+1}, 162")
    A(f"s_mul_i32 s{st+2}, s{R.sw}, 3072")
    A(f"s_add_u32 m0, s{st+2}, {L_WS}")
    A(f"s_cmp_lt_u32 s{R.sw}, 2")
    A(f"s_cselect_b32 s4, s{R.srdWR}, s{R.srdWI}")
    A(f"s_cselect_b32 s5, s{R.srdWR+1}, s{R.srdWI+1}")
    A(f"s_mov_b32 s6, {hex(2048*321*2)}")
    A(f"s_mov_b32 s7, 0x20000")
    for j in range(3):
        A(f"v_add_u32 v5, {64*j}, v{R.vl}")
        A(f"v_mul_u32_u24 v6, 5462, v5")
        A(f"v_lshrrev_b32 v6, 16, v6")
        A(f"v_mul_u32_u24 v7, 12, v6")
        A(f"v_sub_u32 v7, v5, v7")
        A(f"v_add_u32 v6, s{st}, v6")
        A(f"v_mul_u32_u24 v6, 642, v6")
        A(f"v_add_u32 v6, s{st+1}, v6")
        A(f"v_and_b32 v6, -16, v6")
        A(f"v_lshl_add_u32 v6, v7, 4, v6")
        if j: A(f"v_subrev_u32 v6, {1024*j}, v6")
        A(f"buffer_load_dwordx4 v6, s[4:7], 0 offen" + (f" offset:{1024*j}" if j else "") + " lds")
    vm.issue('ws', 3)
    if wd: issue_wd(A, vm, pWD)
    A.c("gate_w: 80 chunks ; wave w loads chunks 64w.. (out of range -> zeros)")
    A.srd(R.srdGW, pGW, 640*2)
    A(f"s_lshl_b32 s{st}, s{R.sw}, 10")
    A(f"s_min_u32 s{st}, s{st}, 1024")
    A(f"s_add_u32 m0, s{st}, {L_GW}")
    A(f"buffer_load_dwordx4 v4, {srd(R.srdGW)}, s{st} offen lds")
    vm.issue('gw', 1)
    if mid: mid()

def consts_a1(A):
    A.c("constants: F32 interleaved, tw320, F10")
    n, h = R.vn, R.vh
    A(f"v_cvt_f32_u32 v4, v{n}")
    A(f"v_cvt_f32_u32 v5, v{h}")
    A(f"v_mul_f32 v6, {fb(1/32)}, v4")
    A(f"v_mul_f32 v7, 4.0, v5")
    A(f"v_mul_f32 v8, v7, v6")
    for i in range(4):
        for q in range(4):
            A(f"v_fmamk_f32 v9, v6, {fb(float(8*i+q))}, v8")
            A(f"v_fract_f32 v9, v9")
            A(f"v_sin_f32 v10, v9")
            A(f"v_cos_f32 v11, v9")
            A("s_nop 0")
            A(f"v_cvt_pk_bf16_f32 v12, v11, v10")
            A(f"v_cvt_pk_bf16_f32 v13, -v10, v11")
            A(f"v_accvgpr_write_b32 a{R.CRe+4*i+q}, v12")
            A(f"v_accvgpr_write_b32 a{R.CIm+4*i+q}, v13")
    A(f"v_mul_f32 v6, {fb(1/320)}, v4")
    A(f"v_mul_f32 v8, v7, v6")
    for idx, (e, j) in enumerate([(0,0),(0,1),(0,2),(0,3),(1,0),(1,1)]):
        A(f"v_fmamk_f32 v9, v6, {fb(float(8*e+j))}, v8")
        A(f"v_cos_f32 v{R.t3r+idx}, v9")
        A(f"v_sin_f32 v{R.t3i+idx}, -v9")
    A(f"v_lshrrev_b32 v9, 3, v{n}")
    A(f"v_lshlrev_b32 v9, 2, v9")
    A(f"v_bfe_u32 v10, v{n}, 2, 1")
    A(f"v_lshl_add_u32 v9, v10, 1, v9")
    A(f"v_bfe_u32 v10, v{n}, 1, 1")
    A(f"v_add_u32 v9, v9, v10")
    A(f"v_cmp_gt_u32 s[{R.st}:{R.st+1}], 10, v9")
    A(f"v_cvt_f32_u32 v9, v9")
    A(f"v_mul_f32 v9, {fb(0.1)}, v9")
    A(f"v_and_b32 v10, 1, v{n}")
    A(f"v_cvt_f32_u32 v10, v10")
    A(f"v_mul_f32 v10, 0.25, v10" if False else f"v_mul_f32 v10, {fb(0.25)}, v10")
    A(f"v_fma_f32 v10, v7, v9, v10")
    A(f"v_cmp_eq_u32 vcc, 0, v{h}")
    A(f"s_and_b64 s[{R.st+2}:{R.st+3}], vcc, s[{R.st}:{R.st+1}]")
    for e in range(2):
        for q in range(4):
            d = R.F10 + 4*e + q
            if e == 1 and q >= 2:
                A(f"v_accvgpr_write_b32 a{d}, 0"); continue
            A(f"v_fmamk_f32 v11, v9, {fb(float(8*e+q))}, v10")
            A(f"v_fract_f32 v11, v11")
            A(f"v_cos_f32 v12, v11")
            A(f"v_sin_f32 v13, v11")
            A("s_nop 0")
            A(f"v_cvt_pk_bf16_f32 v12, v12, v13")
            m = R.st if e == 0 else R.st+2
            A(f"v_cndmask_b32 v12, 0, v12, s[{m}:{m+1}]")
            A(f"v_accvgpr_write_b32 a{d}, v12")

def consts_a2_fill():
    n, h = R.vn, R.vh
    t0, t1, t2, t3, t4, t5 = 243, 244, 245, 246, 247, 248
    L = [f"v_cvt_f32_u32 v{t0}, v{n}", f"v_cvt_f32_u32 v{t1}, v{h}", f"v_mul_f32 v{t1}, 4.0, v{t1}",
         f"v_mul_f32 v{t2}, {fb(1/1024)}, v{t0}", f"v_mul_f32 v{t3}, v{t1}, v{t2}"]
    for i in range(4):
        for j in range(4):
            L += [f"v_fmamk_f32 v{t4}, v{t2}, {fb(float(8*i+j))}, v{t3}",
                  f"v_cos_f32 v{R.TWr+4*i+j}, v{t4}", f"v_sin_f32 v{R.TWi+4*i+j}, -v{t4}"]
    return L

def cmulp(A, d, a, c, t, conj_out=False):
    A(f"v_pk_mul_f32 v[{t}:{t+1}], v[{a}:{a+1}], v[{c}:{c+1}] op_sel:[1,1] op_sel_hi:[1,0]")
    A(f"v_pk_fma_f32 v[{d}:{d+1}], v[{a}:{a+1}], v[{c}:{c+1}], v[{t}:{t+1}] op_sel:[0,0,0] op_sel_hi:[0,1,1] neg_lo:[0,0,1]")

def cmul(A, dr, di, ar, ai, br, bi, t):
    A(f"v_mul_f32 v{t}, v{ai}, v{bi}")
    A(f"v_mul_f32 v{di}, v{ai}, v{br}") if di == ai else A(f"v_mul_f32 v{di}, v{ai}, v{br}")
    A(f"v_fmac_f32 v{di}, v{ar}, v{bi}")
    A(f"v_fma_f32 v{dr}, v{ar}, v{br}, -v{t}")

D1r, D1i, PK, D2 = 32, 48, 96, (32, 48)
def fft320_core(A, xa=XA, tmp=(4, 6), mid=None):
    for i in range(4):
        c = "0" if i == 0 else f"v[{D1r}:{D1r+15}]"
        A(f"v_mfma_f32_32x32x16_bf16 v[{D1r}:{D1r+15}], v[{xa+4*i}:{xa+4*i+3}], a[{R.CRe+4*i}:{R.CRe+4*i+3}], {c}")
        c = "0" if i == 0 else f"v[{D1i}:{D1i+15}]"
        A(f"v_mfma_f32_32x32x16_bf16 v[{D1i}:{D1i+15}], v[{xa+4*i}:{xa+4*i+3}], a[{R.CIm+4*i}:{R.CIm+4*i+3}], {c}")
    for r in range(2):
        A(f"v_mov_b32 v{PK+8*r+6}, 0")
        A(f"v_mov_b32 v{PK+8*r+7}, 0")
    if mid: mid()
    t0, t1 = tmp
    for r in range(2):
        for idx, (e, j) in ((0, (0, 0)), (2, (0, 2)), (4, (1, 0))):
            reg = 4*(2*r+e) + j
            ar, ai = D1r+reg, D1i+reg
            tr, ti = R.t3r+idx, R.t3i+idx
            A(f"v_pk_mul_f32 v[{t0}:{t0+1}], v[{ai}:{ai+1}], v[{ti}:{ti+1}]")
            A(f"v_pk_mul_f32 v[{t1}:{t1+1}], v[{ai}:{ai+1}], v[{tr}:{tr+1}]")
            A(f"v_pk_fma_f32 v[{t0}:{t0+1}], v[{ar}:{ar+1}], v[{tr}:{tr+1}], v[{t0}:{t0+1}] neg_lo:[0,0,1] neg_hi:[0,0,1]")
            A(f"v_pk_fma_f32 v[{t1}:{t1+1}], v[{ar}:{ar+1}], v[{ti}:{ti+1}], v[{t1}:{t1+1}]")
            A(f"v_cvt_pk_bf16_f32 v{PK+8*r+4*e+j}, v{t0}, v{t1}")
            A(f"v_cvt_pk_bf16_f32 v{PK+8*r+4*e+j+1}, v{t0+1}, v{t1+1}")
    for r in range(2):
        for e in range(2):
            c = "0" if e == 0 else f"v[{D2[r]}:{D2[r]+15}]"
            A(f"v_mfma_f32_32x32x16_bf16 v[{D2[r]}:{D2[r]+15}], a[{R.F10+4*e}:{R.F10+4*e+3}], v[{PK+8*r+4*e}:{PK+8*r+4*e+3}], {c}")

def a1_core(A, vm):
    st = R.st
    A.c("---- A1 core ----")
    A(f"s_waitcnt vmcnt({vm.wait({'xr'})})")
    A(f"v_bfe_u32 v4, v{R.vl}, 4, 1")
    A(f"v_mul_u32_u24 v4, 1280, v4")
    A(f"v_and_b32 v5, 15, v{R.vl}")
    A(f"v_lshl_add_u32 v4, v5, 2, v4")
    A(f"v_mul_u32_u24 v5, 160, v{R.vh}")
    A(f"s_mul_i32 s{st}, s{R.sw}, 3072")
    A(f"s_add_u32 s{st}, s{st}, {L_XR}")
    A(f"v_add3_u32 v4, v4, v5, s{st}")
    for i in range(4):
        for q in range(4):
            A(f"ds_read_b32 v{XA+4*i+q}, v4 offset:{320*i+40*q}")
    A("s_waitcnt lgkmcnt(0)")
    fft320_core(A)
    A(f"s_mul_i32 s{st}, s{R.sw}, {ZWAVE}")
    A(f"s_add_u32 s{st}, s{st}, {L_Z}")
    A(f"v_lshl_add_u32 v4, v{R.vh}, 6, v{R.vn}")
    A(f"v_lshl_add_u32 v4, v4, 3, s{st}")
    for i in range(3):
        if i == 2: A("s_mov_b64 exec, 0xffffffff")
        for r in range(2):
            for jj in range(2):
                d = D2[r] + 4*i + 2*jj
                A(f"ds_write_b64 v4, v[{d}:{d+1}] offset:{r*ZROW + (128*i + 32*jj)*8}")
    A("s_mov_b64 exec, -1")

P_AP, P_AQ0, P_AQ, P_ST0, P_ST2 = 112, 113, 114, 115, 116
P_C = 118
P_TAU = 124
P_WA = 126
P_WS = 130
P_WD = 228
P_GA, P_GB = 135, 136
def phase1_pre(A):
    st = R.st
    A.c("---- phase 1: addresses and constants prepared ahead ----")
    A(f"v_and_b32 v4, 3, v0")
    A(f"v_mul_u32_u24 v5, {ZWAVE}, v4")
    A(f"v_add_u32 v5, {L_Z}, v5")
    A(f"v_lshrrev_b32 v7, 2, v0")
    A(f"v_lshl_add_u32 v{P_AP}, v7, 3, v5")
    A(f"v_sub_u32 v8, 192, v7")
    A(f"v_lshl_add_u32 v{P_AQ}, v8, 3, v5")
    A(f"v_add_u32 v9, {128*8}, v{P_AQ}")
    A(f"v_cmp_eq_u32 vcc, 0, v7")
    A(f"v_cndmask_b32 v{P_AQ0}, v9, v5, vcc")
    A(f"s_lshl_b32 s{st}, s{R.sc}, 2")
    A(f"v_add_u32 v6, s{st}, v4")
    A(f"v_cvt_f32_u32 v9, v6")
    A(f"v_mul_f32 v9, {fb(1/2048)}, v9")
    A(f"v_cos_f32 v{P_TAU}, v9")
    A(f"v_sin_f32 v{P_TAU+1}, -v9")
    A(f"v_lshrrev_b32 v10, 1, v7")
    A(f"v_lshlrev_b32 v10, 15, v10")
    A(f"v_and_b32 v11, 1, v7")
    A(f"v_lshl_add_u32 v10, v11, 3, v10")
    A(f"v_lshl_add_u32 v{P_ST0}, v6, 4, v10")
    A(f"v_mov_b32 v11, 0x40000000")
    A(f"v_cmp_gt_u32 vcc, 34, v7")
    A(f"v_cndmask_b32 v{P_ST2}, v11, v{P_ST0}, vcc")
    A(f"v_cvt_f32_u32 v9, v7")
    for rnd in range(3):
        A(f"v_add_f32 v10, {fb(64.0*rnd)}, v9")
        A(f"v_mul_f32 v10, {fb(1/640)}, v10")
        A(f"v_sin_f32 v{P_C+2*rnd}, -v10")
        A(f"v_cos_f32 v10, v10")
        A(f"v_sub_f32 v{P_C+2*rnd+1}, 0, v10")
    A(f"v_bfe_u32 v5, v0, 2, 1")
    A(f"v_lshrrev_b32 v6, 3, v0")
    A(f"v_lshl_add_u32 v7, v4, 3, v5")
    A(f"v_mul_u32_u24 v7, 192, v7")
    A(f"v_lshl_add_u32 v7, v6, 1, v7")
    A(f"v_add_u32 v7, {L_WS}, v7")
    A(f"s_lshr_b32 s{st}, s{R.sc}, 6")
    A(f"v_add_u32 v8, s{st}, v5")
    A(f"v_lshlrev_b32 v8, 1, v8")
    for jj in range(4):
        A(f"v_add_u32 v9, {4*jj}, v8")
        A(f"v_and_b32 v9, 15, v9")
        A(f"v_add_u32 v{P_WA+jj}, v7, v9")
    A(f"s_mul_i32 s{st+1}, s{st}, 81")
    A(f"s_and_b32 s{st+2}, s{R.sc}, 63")
    A(f"s_lshl_b32 s{st+2}, s{st+2}, 6")
    A(f"v_lshlrev_b32 v7, 14, v5")
    A(f"v_lshl_add_u32 v7, v4, 4, v7")
    A(f"v_add_u32 v7, s{st+2}, v7")
    A(f"v_mov_b32 v14, 0x40000000")
    for rnd in range(3):
        A(f"v_add_u32 v8, {32*rnd}, v6")
        A(f"v_add_u32 v9, s{st+1}, v8")
        A(f"v_sub_u32 v10, 320, v9")
        A(f"v_cmp_lt_u32 vcc, 160, v9")
        A(f"v_cndmask_b32 v11, v9, v10, vcc")
        A(f"v_cndmask_b32_e64 v10, 0, 1, vcc")
        A(f"v_and_b32 v12, 1, v11")
        A(f"v_lshl_add_u32 v10, v12, 1, v10")
        A(f"v_lshrrev_b32 v11, 1, v11")
        A(f"v_lshl_add_u32 v11, v11, 3, v10")
        A(f"v_lshl_add_u32 v11, v11, 12, v7")
        if rnd == 2:
            A(f"v_cmp_gt_u32 vcc, 81, v8")
            A(f"v_cndmask_b32 v11, v14, v11, vcc")
            A(f"v_cmp_ge_u32 vcc, 320, v9")
            A(f"v_cndmask_b32 v{P_WS+2}, v14, v11, vcc")
            A(f"v_add_u32 v11, 4096, v11")
            A(f"v_cmp_eq_u32 vcc, 160, v9")
            A(f"v_cndmask_b32 v{P_WS+3}, v14, v11, vcc")
        else:
            A(f"v_mov_b32 v{P_WS+rnd}, v11")
    A(f"v_bfe_u32 v4, v{R.vl}, 5, 1")
    A(f"v_lshlrev_b32 v4, 4, v4")
    A(f"v_bfe_u32 v5, v{R.vl}, 4, 1")
    A(f"v_lshl_add_u32 v4, v5, 2, v4")
    A(f"v_bfe_u32 v5, v{R.vl}, 2, 2")
    A(f"v_add_u32 v4, v4, v5")
    A(f"v_lshlrev_b32 v4, 8, v4")
    A(f"v_and_b32 v5, 3, v{R.vl}")
    A(f"v_lshl_add_u32 v4, v5, 3, v4")
    A(f"s_lshl_b32 s{st}, s{R.sw}, 6")
    A(f"s_add_u32 s{st}, s{st}, {L_WD}")
    A(f"v_add_u32 v{P_WD}, s{st}, v4")
    A(f"s_mul_i32 s{st}, s{R.sw}, 3072")
    A(f"s_add_u32 s{st}, s{st}, {L_XR}")
    A(f"v_lshl_add_u32 v{P_GA}, v{R.vl}, 2, s{st}")
    A(f"v_lshlrev_b32 v7, 2, v{R.vl}")
    A(f"v_add_u32 v{P_GB}, {L_GW}, v7")

def a1_elem(A, vm):
    st = R.st
    A.c("---- A1 elementwise ----")
    A("s_waitcnt lgkmcnt(0)")
    A("s_barrier")
    ZB = 16
    for rnd in range(3):
        z = ZB + 8*rnd
        aq, oq = (P_AQ0, 0) if rnd == 0 else (P_AQ, 512*(2-rnd))
        A(f"ds_read_b64 v[{z}:{z+1}], v{P_AP} offset:{512*rnd}")
        A(f"ds_read_b64 v[{z+2}:{z+3}], v{aq} offset:{oq}")
        A(f"ds_read_b64 v[{z+4}:{z+5}], v{P_AP} offset:{512*rnd + ZROW}")
        A(f"ds_read_b64 v[{z+6}:{z+7}], v{aq} offset:{oq + ZROW}")
    for rnd in range(3):
        z = ZB + 8*rnd
        Zp0, Zq0, Zp1, Zq1 = z, z+2, z+4, z+6
        A(f"s_waitcnt lgkmcnt({8 - 4*rnd})")
        Up, Uq, Vp, Vq = 40, 42, 44, 46
        for (u, vv, z0, z1) in ((Up, Vp, Zp0, Zp1), (Uq, Vq, Zq0, Zq1)):
            A(f"v_pk_add_f32 v[{u}:{u+1}], v[{z0}:{z0+1}], v[{z1}:{z1+1}]")
            A(f"v_pk_add_f32 v[{vv}:{vv+1}], v[{z0}:{z0+1}], v[{z1}:{z1+1}] neg_lo:[0,1] neg_hi:[0,1]")
        E, O, T, X = (48, 50), (52, 54), (56, 58), ((60, 62), (64, 66))
        for pi, (P, Q) in enumerate(((Up, Uq), (Vp, Vq))):
            A(f"v_pk_add_f32 v[{E[pi]}:{E[pi]+1}], v[{P}:{P+1}], v[{Q}:{Q+1}] neg_hi:[0,1]")
            A(f"v_pk_add_f32 v[{O[pi]}:{O[pi]+1}], v[{P}:{P+1}], v[{Q}:{Q+1}] neg_lo:[0,1]")
        c = P_C + 2*rnd
        for pi in range(2): A(f"v_pk_mul_f32 v[{T[pi]}:{T[pi]+1}], v[{O[pi]}:{O[pi]+1}], v[{c}:{c+1}] op_sel:[1,1] op_sel_hi:[1,0]")
        for pi in range(2): A(f"v_pk_fma_f32 v[{T[pi]}:{T[pi]+1}], v[{O[pi]}:{O[pi]+1}], v[{c}:{c+1}], v[{T[pi]}:{T[pi]+1}] op_sel:[0,0,0] op_sel_hi:[0,1,1] neg_lo:[0,0,1]")
        for pi in range(2):
            Xp, Xq = X[pi]
            A(f"v_pk_add_f32 v[{Xp}:{Xp+1}], v[{E[pi]}:{E[pi]+1}], v[{T[pi]}:{T[pi]+1}]")
            A(f"v_pk_add_f32 v[{Xq}:{Xq+1}], v[{E[pi]}:{E[pi]+1}], v[{T[pi]}:{T[pi]+1}] neg_lo:[0,1] neg_hi:[1,0]")
        for k, Xr in enumerate(X[1]): A(f"v_pk_mul_f32 v[{E[k]}:{E[k]+1}], v[{Xr}:{Xr+1}], v[{P_TAU}:{P_TAU+1}] op_sel:[1,1] op_sel_hi:[1,0]")
        for k, Xr in enumerate(X[1]): A(f"v_pk_fma_f32 v[{Xr}:{Xr+1}], v[{Xr}:{Xr+1}], v[{P_TAU}:{P_TAU+1}], v[{E[k]}:{E[k]+1}] op_sel:[0,0,0] op_sel_hi:[0,1,1] neg_lo:[0,0,1]")
        o = 68 + 4*rnd
        for pi in range(2):
            Xp, Xq = X[pi]
            A(f"v_cvt_pk_bf16_f32 v{o+2*pi}, v{Xp}, v{Xp+1}")
            A(f"v_cvt_pk_bf16_f32 v{o+2*pi+1}, v{Xq}, v{Xq+1}")
        if rnd == 2:
            A(f"v_lshrrev_b32 v7, 2, v0")
            A(f"v_cmp_eq_u32 vcc, 33, v7")
            for k in range(4): A(f"v_cndmask_b32_e64 v{o+k}, v{o+k}, 0, vcc")
        va = P_ST2 if rnd == 2 else P_ST0
        A(f"s_mov_b32 s{st}, {rnd << 20}")
        A(f"buffer_store_dwordx2 v[{o}:{o+1}], v{va}, {srd(R.srdX1)}, s{st} offen{SC}")
        A(f"s_mov_b32 s{st+1}, {(rnd << 20) + 16384}")
        A(f"buffer_store_dwordx2 v[{o+2}:{o+3}], v{va}, {srd(R.srdX1)}, s{st+1} offen{SC}")
        vm.issue('st', 2)

sG0, sG1 = 27, 91
def gate(A, vm):
    st = R.st
    GX = 80
    A.c("---- gate ----")
    for t in range(5):
        A(f"ds_read_b32 v{GX+t}, v{P_GA} offset:{256*t}")
        A(f"ds_read_b32 v{GX+5+t}, v{P_GA} offset:{1280+256*t}")
        A(f"ds_read_b32 v{GX+10+t}, v{P_GB} offset:{256*t}")
    A("s_waitcnt lgkmcnt(0)")
    for r in range(2):
        A(f"v_mov_b32 v{4+r}, 0")
        for t in range(5):
            A(f"v_dot2c_f32_bf16 v{4+r}, v{GX+5*r+t}, v{GX+10+t}")
    for mod in ("quad_perm:[1,0,3,2]", "quad_perm:[2,3,0,1]", "row_half_mirror", "row_mirror"):
        for r in range(2):
            A(f"v_add_f32_dpp v{4+r}, v{4+r}, v{4+r} {mod} row_mask:0xf bank_mask:0xf")
    for r in range(2):
        for k in range(4): A(f"v_readlane_b32 s{16+k}, v{4+r}, {16*k}")
        A(f"v_mov_b32 v{4+r}, s16")
        for k in range(1, 4): A(f"v_add_f32 v{4+r}, s{16+k}, v{4+r}")
    A(f"v_and_b32 v6, 1, v{R.vl}")
    A(f"v_cmp_eq_u32 vcc, 1, v6")
    A(f"v_cndmask_b32 v4, v4, v5, vcc")
    A(f"v_cvt_pk_bf16_f32 v4, v4, v4")
    A(f"v_and_b32 v4, 0xffff0000, v4")
    A(f"v_mul_f32 v4, 0xbfb8aa3b, v4")
    A(f"v_exp_f32 v4, v4")
    A(f"v_add_f32 v4, 1.0, v4")
    A(f"v_rcp_f32 v4, v4")
    A(f"v_cvt_pk_bf16_f32 v4, v4, v4")
    A(f"v_and_b32 v4, 0xffff0000, v4")
    A(f"v_readlane_b32 s{sG0}, v4, 0")
    A(f"v_readlane_b32 s{sG1}, v4, 1")
    A(f"s_lshl_b32 s{st}, s{R.sc}, 2")
    A(f"s_add_u32 s{st}, s{st}, s{R.sw}")
    A(f"s_lshl_b32 s{st}, s{st}, 2")
    A(f"v_lshlrev_b32 v6, 12, v6")
    A(f"v_add_u32 v6, s{st}, v6")
    A(f"v_mov_b32 v7, 0x40000000")
    A(f"v_cmp_gt_u32 vcc, 2, v{R.vl}")
    A(f"v_cndmask_b32 v6, v7, v6, vcc")
    A(f"buffer_store_dword v4, v6, {srd(R.srdG)}, 0 offen{SC}")
    vm.issue('gst')

def wprep(A, vm):
    A.c("---- filter prep ----")
    W = 16
    for rnd in range(3):
        for jj in range(4):
            A(f"ds_read_u16 v{W+8*rnd+jj}, v{P_WA+jj} offset:{2*192*jj + 64*rnd}")
            A(f"ds_read_u16 v{W+8*rnd+4+jj}, v{P_WA+jj} offset:{6144 + 2*192*jj + 64*rnd}")
        if rnd == 0: pass
    for rnd in range(3):
        A(f"s_waitcnt lgkmcnt({min(15, 16 - 8*rnd) if rnd < 2 else 0})")
        w = W + 8*rnd
        for jj in range(4): A(f"v_lshl_or_b32 v{w+jj}, v{w+4+jj}, 16, v{w+jj}")
        A(f"buffer_store_dwordx4 v[{w}:{w+3}], v{P_WS+rnd}, {srd(R.srdWF)}, 0 offen{SC}")
        vm.issue('st')
        if rnd == 2:
            A(f"buffer_store_dwordx4 v[{w}:{w+3}], v{P_WS+3}, {srd(R.srdWF)}, 0 offen{SC}")
            vm.issue('st')

def wtprep(A, vm, tag='st'):
    st = R.st
    A.c("---- Wd fragment prep ----")
    A(f"s_mul_i32 s{st+2}, s{R.sc}, 52429")
    A(f"s_lshr_b32 s{st+2}, s{st+2}, 18")
    A(f"s_mul_i32 s{st+3}, s{st+2}, 5")
    A(f"s_sub_u32 s{st+3}, s{R.sc}, s{st+3}")
    for k in range(2):
        A(f"ds_read_b64_tr_b16 v[{40+4*k}:{41+4*k}], v{P_WD} offset:{32*k}")
        A(f"ds_read_b64_tr_b16 v[{42+4*k}:{43+4*k}], v{P_WD} offset:{32*k + 8*256}")
    A(f"s_mul_i32 s{st+2}, s{st+2}, 40")
    A(f"s_lshl_b32 s{st+3}, s{st+3}, 3")
    A(f"s_add_u32 s{st+2}, s{st+2}, s{st+3}")
    A(f"s_lshl_b32 s{st+3}, s{R.sw}, 1")
    A(f"s_add_u32 s{st+2}, s{st+2}, s{st+3}")
    A(f"s_lshl_b32 s{st+2}, s{st+2}, 10")
    A(f"v_lshlrev_b32 v5, 4, v{R.vl}")
    A("s_waitcnt lgkmcnt(0)")
    A(f"buffer_store_dwordx4 v[40:43], v5, {srd(R.srdWT)}, s{st+2} offen{SC}")
    A(f"buffer_store_dwordx4 v[44:47], v5, {srd(R.srdWT)}, s{st+2} offen offset:1024{SC}")
    vm.issue(tag, 2)

def ftgen(A, vm, pWS):
    st = R.st
    A.c("---- F table ----")
    A.srd(R.srdFT, pWS, SZ_FT, OFF_FT)
    lab = A.label("noft")
    A(f"s_lshl_b32 s{st}, s{R.sw}, 8")
    A(f"s_add_u32 s{st}, s{st}, s{R.sc}")
    A(f"s_cmp_ge_u32 s{st}, 840")
    A(f"s_cbranch_scc1 {lab}")
    A(f"s_mul_i32 s{st+1}, s{st}, 52429")
    A(f"s_lshr_b32 s{st+1}, s{st+1}, 21")
    A(f"s_mul_i32 s{st+2}, s{st+1}, 40")
    A(f"s_sub_u32 s{st+2}, s{st}, s{st+2}")
    A(f"s_lshl_b32 s{st+2}, s{st+2}, 4")
    A(f"v_and_b32 v4, 15, v{R.vl}")
    A(f"v_add_u32 v4, s{st+2}, v4")
    A(f"s_lshl_b32 s{st+1}, s{st+1}, 2")
    A(f"v_lshrrev_b32 v5, 4, v{R.vl}")
    A(f"v_add_u32 v5, s{st+1}, v5")
    A(f"v_lshlrev_b32 v6, 1, v5")
    A(f"s_mov_b32 s{st+3}, 6710887")
    for c in range(4):
        if c == 0: A(f"v_mov_b32 v7, v6")
        if c == 1: A(f"v_sub_u32 v7, 320, v6")
        if c == 2: A(f"v_add_u32 v7, 1, v6")
        if c == 3: A(f"v_sub_u32 v7, 319, v6")
        A(f"v_mul_u32_u24 v8, v7, v4")
        A(f"v_mul_hi_u32 v9, v8, s{st+3}")
        A(f"v_mul_u32_u24 v9, 640, v9")
        A(f"v_sub_u32 v8, v8, v9")
        A(f"v_cvt_f32_u32 v8, v8")
        A(f"v_mul_f32 v8, {fb(1/640)}, v8")
        A(f"v_cos_f32 v9, v8")
        A(f"v_sin_f32 v10, -v8")
        if c < 2:
            A(f"v_cmp_eq_u32 vcc, 0, v5")
            A(f"v_mul_f32 v11, 0.5, v9")
            A(f"v_cndmask_b32 v9, v9, v11, vcc")
            A(f"v_cndmask_b32_e64 v10, v10, 0, vcc")
        A(f"v_cvt_pk_bf16_f32 v{16+c}, v9, v10")
        A(f"v_cmp_gt_u32 vcc, {81 if c == 0 else 80}, v5")
        A(f"v_cndmask_b32 v{16+c}, 0, v{16+c}, vcc")
    A(f"s_lshl_b32 s{st}, s{st}, 10")
    A(f"v_lshlrev_b32 v5, 4, v{R.vl}")
    A(f"buffer_store_dwordx4 v[16:19], v5, {srd(R.srdFT)}, s{st} offen{SC}")
    A(f"{lab}:")

def a2_loads(A, vm, pWS):
    st = R.st
    A.c("---- A2 loads ----")
    A(f"s_lshl_b32 s{st}, s{R.sa2}, 14")
    A(f"s_lshl_b32 s{st+1}, s{R.sw}, 12")
    A(f"s_add_u32 s{st}, s{st}, s{st+1}")
    A(f"s_add_u32 m0, s{st+1}, {L_X}")
    A(f"v_lshlrev_b32 v4, 4, v{R.vl}")
    for j in range(4):
        A(f"buffer_load_dwordx4 v4, {srd(R.srdX1)}, s{st} offen offset:{1024*j} sc1 lds")
    A(f"s_add_u32 m0, s{st+1}, {L_F}")
    A("s_nop 0")
    for j in range(4):
        A(f"buffer_load_dwordx4 v4, {srd(R.srdWF)}, s{st} offen offset:{1024*j} sc1 lds")
    vm.issue('a2in', 8)

def a2(A0, vm, pWS, waited=False, weave=None, stamp=None):
    st = R.st
    A = Asm(A0.prefix + 'a2')
    A.c("---- A2 ----")
    D0r, D0i, D1r, D1i, XA_, WQ = 32, 48, 204, 16, 16, (220, 224)
    A.srd(R.srdZ, pWS, SZ_Z, OFF_Z)
    if not waited: A(f"s_waitcnt vmcnt({vm.wait({'a2in'})})")
    A("s_barrier")
    A(f"v_lshlrev_b32 v4, 11, v{R.vh}")
    A(f"v_lshl_add_u32 v4, v{R.vn}, 4, v4")
    A(f"s_lshl_b32 s{st}, s{R.sw}, 2")
    A(f"s_add_u32 s{st}, s{st}, {L_X}")
    A(f"v_add_u32 v8, s{st}, v4")
    for i in range(4):
        for q in range(4):
            A(f"ds_read_b32 v{XA_+4*i+q}, v8 offset:{(8*i+q)*512}")
    A(f"s_lshl_b32 s{st}, s{R.sw}, 12")
    A(f"s_add_u32 s{st}, s{st}, {L_F}")
    A(f"v_lshlrev_b32 v5, 9, v{R.vh}")
    A(f"v_lshl_add_u32 v5, v{R.vn}, 2, v5")
    A(f"v_add_u32 v5, s{st}, v5")
    def mm(i, data_is_a, src, Dr, Di):
        for (dst, cc) in ((Dr, R.CRe), (Di, R.CIm)):
            c = "0" if i == 0 else f"v[{dst}:{dst+15}]"
            d, k = f"v[{src+4*i}:{src+4*i+3}]", f"a[{cc+4*i}:{cc+4*i+3}]"
            a_, b_ = (d, k) if data_is_a else (k, d)
            A(f"v_mfma_f32_32x32x16_bf16 v[{dst}:{dst+15}], {a_}, {b_}, {c}")
    def tw_quad(i, Dr, Di):
        if PK2: return tw_quad_pk(i, Dr, Di)
        for j in range(4):
            x = 4*i + j
            t, u = ((6, 7), (10, 11), (12, 13), (14, 15))[j]
            A(f"v_mul_f32 v{t}, v{Di+x}, v{R.TWi+x}")
            A(f"v_mul_f32 v{u}, v{Di+x}, v{R.TWr+x}")
        for j in range(4):
            x = 4*i + j
            t, u = ((6, 7), (10, 11), (12, 13), (14, 15))[j]
            A(f"v_fma_f32 v{t}, v{Dr+x}, v{R.TWr+x}, -v{t}")
            A(f"v_fmac_f32 v{u}, v{Dr+x}, v{R.TWi+x}")
        for j in range(4):
            x = 4*i + j
            t, u = ((6, 7), (10, 11), (12, 13), (14, 15))[j]
            A(f"v_cvt_pk_bf16_f32 v{Dr+x}, v{t}, v{u}")
    def filt_quad(i, Dr, Di):
        if PK2: return filt_quad_pk(i, Dr, Di)
        w = WQ[i & 1]
        for j in range(4):
            x = 4*i + j
            A(f"v_lshlrev_b32 v6, 16, v{w+j}")
            A(f"v_and_b32 v7, 0xffff0000, v{w+j}")
            t, u = ((10, 11), (12, 13))[j & 1]
            A(f"v_mul_f32 v{t}, v{Di+x}, v7")
            A(f"v_mul_f32 v{u}, v{Di+x}, v6")
            A(f"v_fma_f32 v{t}, v{Dr+x}, v6, -v{t}")
            A(f"v_fmac_f32 v{u}, v{Dr+x}, v7")
            A(f"v_cvt_pk_bf16_f32 v{Dr+x}, v{t}, -v{u}")
    def tw_quad_pk(i, Dr, Di):
        for h2 in range(2):
            x = 4*i + 2*h2
            t, u = (6, 10) if h2 == 0 else (12, 14)
            A(f"v_pk_mul_f32 v[{t}:{t+1}], v[{Di+x}:{Di+x+1}], v[{R.TWi+x}:{R.TWi+x+1}]")
            A(f"v_pk_mul_f32 v[{u}:{u+1}], v[{Di+x}:{Di+x+1}], v[{R.TWr+x}:{R.TWr+x+1}]")
            A(f"v_pk_fma_f32 v[{t}:{t+1}], v[{Dr+x}:{Dr+x+1}], v[{R.TWr+x}:{R.TWr+x+1}], v[{t}:{t+1}] neg_lo:[0,0,1] neg_hi:[0,0,1]")
            A(f"v_pk_fma_f32 v[{u}:{u+1}], v[{Dr+x}:{Dr+x+1}], v[{R.TWi+x}:{R.TWi+x+1}], v[{u}:{u+1}]")
        for h2 in range(2):
            x = 4*i + 2*h2
            t, u = (6, 10) if h2 == 0 else (12, 14)
            A(f"v_cvt_pk_bf16_f32 v{Dr+x}, v{t}, v{u}")
            A(f"v_cvt_pk_bf16_f32 v{Dr+x+1}, v{t+1}, v{u+1}")
    def wf_read(i):
        for j in range(4): A(f"ds_read_b32 v{WQ[i & 1]+j}, v5 offset:{(8*i+j)*128}")
    def filt_quad_pk(i, Dr, Di):
        w = WQ[i & 1]
        for h2 in range(2):
            x = 4*i + 2*h2
            ww = w + 2*h2
            A(f"v_lshlrev_b32 v6, 16, v{ww}");     A(f"v_lshlrev_b32 v7, 16, v{ww+1}")
            A(f"v_and_b32 v10, 0xffff0000, v{ww}"); A(f"v_and_b32 v11, 0xffff0000, v{ww+1}")
            A(f"v_pk_mul_f32 v[12:13], v[{Di+x}:{Di+x+1}], v[10:11]")
            A(f"v_pk_mul_f32 v[14:15], v[{Di+x}:{Di+x+1}], v[6:7]")
            A(f"v_pk_fma_f32 v[12:13], v[{Dr+x}:{Dr+x+1}], v[6:7], v[12:13] neg_lo:[0,0,1] neg_hi:[0,0,1]")
            A(f"v_pk_fma_f32 v[14:15], v[{Dr+x}:{Dr+x+1}], v[10:11], v[14:15]")
            A(f"v_cvt_pk_bf16_f32 v{Dr+x}, v12, -v14")
            A(f"v_cvt_pk_bf16_f32 v{Dr+x+1}, v13, -v15")
    def S(n):
        if stamp: stamp(A, n)
    S("x_issued")
    A("s_waitcnt lgkmcnt(0)")
    S("x_read")
    for i in range(4): mm(i, True, XA_, D0r, D0i)
    wf_read(0)
    for i in range(4):
        tw_quad(i, D0r, D0i); mm(i, False, D0r, D1r, D1i)
    S("s3")
    for i in range(4):
        if i < 3: wf_read(i+1)
        A(f"s_waitcnt lgkmcnt({4 if i < 3 else 0})")
        filt_quad(i, D1r, D1i); mm(i, True, D1r, D0r, D0i)
    S("s4")
    for i in range(4):
        tw_quad(i, D0r, D0i); mm(i, False, D0r, D1r, D1i)
    S("s6")
    A(f"v_lshlrev_b32 v4, 9, v{R.vh}")
    A(f"v_lshl_add_u32 v4, v{R.vn}, 2, v4")
    A(f"s_lshl_b32 s{st}, s{R.sw}, 12")
    A(f"s_add_u32 s{st}, s{st}, {L_F}")
    A(f"v_add_u32 v4, s{st}, v4")
    for x in range(16):
        A(f"v_cvt_pk_bf16_f32 v{D0r+x}, v{D1r+x}, -v{D1i+x}")
        A(f"ds_write_b32 v4, v{D0r+x} offset:{(8*(x>>2)+(x&3))*128}")
    A(f"s_lshl_b32 s{st+1}, s{R.sw}, 10")
    A(f"s_add_u32 s{st+2}, s{st+1}, {L_F}")
    A(f"v_lshl_add_u32 v4, v{R.vl}, 2, s{st+2}")
    A("s_waitcnt lgkmcnt(0)")
    S("wr")
    A("s_barrier")
    for j in range(4):
        for c in range(4):
            A(f"ds_read_b32 v{16+4*j+c}, v4 offset:{c*4096 + j*256}")
    A(f"s_lshl_b32 s{st}, s{R.sa2}, 14")
    A(f"s_lshl_b32 s{st+1}, s{R.sw}, 12")
    A(f"s_add_u32 s{st}, s{st}, s{st+1}")
    A(f"v_lshlrev_b32 v5, 4, v{R.vl}")
    for j in range(4):
        A(f"s_waitcnt lgkmcnt({12 - 4*j})")
        A(f"buffer_store_dwordx4 v[{16+4*j}:{19+4*j}], v5, {srd(R.srdZ)}, s{st} offen offset:{1024*j}{SC}")
    vm.issue('zst', 4)
    lines = A.l
    if weave:
        first = next(i for i, l in enumerate(lines) if "v_mfma" in l)
        last = max(i for i, l in enumerate(lines) if "ds_write_b32" in l)
        n = len(weave); out = lines[:first]
        span = last - first
        k = 0
        for j in range(first, len(lines)):
            out.append(lines[j])
            while k < n and j < last and (j - first + 1)*n >= (k + 1)*span:
                out += ["  " + x for x in weave[k]]; k += 1
        out += ["  " + x for w in weave[k:] for x in w]
        assert k == n
        lines = out
    A0.l += lines

def a2_bundles(pWS, t0):
    st = R.st
    D0r, D0i, D1r, D1i, XA_, WQ = 32, 48, 204, 16, 16, (220, 224)
    def cap(fn):
        T = Asm("tmp"); fn(T); return [l.strip() for l in T.l if not l.strip().startswith(";")]
    def one(lines): return [([l], None) for l in lines]
    def mm(i, data_is_a, src, Dr, Di):
        L = []
        for (dst, cc) in ((Dr, R.CRe), (Di, R.CIm)):
            c = "0" if i == 0 else f"v[{dst}:{dst+15}]"
            d, k = f"v[{src+4*i}:{src+4*i+3}]", f"a[{cc+4*i}:{cc+4*i+3}]"
            a_, b_ = (d, k) if data_is_a else (k, d)
            L.append(f"v_mfma_f32_32x32x16_bf16 v[{dst}:{dst+15}], {a_}, {b_}, {c}")
        return L
    def tw(i, Dr, Di):
        L = []
        for h2 in range(2):
            x = 4*i + 2*h2
            t, u = (6, 10) if h2 == 0 else (12, 14)
            L += [f"v_pk_mul_f32 v[{t}:{t+1}], v[{Di+x}:{Di+x+1}], v[{R.TWi+x}:{R.TWi+x+1}]",
                  f"v_pk_mul_f32 v[{u}:{u+1}], v[{Di+x}:{Di+x+1}], v[{R.TWr+x}:{R.TWr+x+1}]",
                  f"v_pk_fma_f32 v[{t}:{t+1}], v[{Dr+x}:{Dr+x+1}], v[{R.TWr+x}:{R.TWr+x+1}], v[{t}:{t+1}] neg_lo:[0,0,1] neg_hi:[0,0,1]",
                  f"v_pk_fma_f32 v[{u}:{u+1}], v[{Dr+x}:{Dr+x+1}], v[{R.TWi+x}:{R.TWi+x+1}], v[{u}:{u+1}]"]
        for h2 in range(2):
            x = 4*i + 2*h2
            t, u = (6, 10) if h2 == 0 else (12, 14)
            L += [f"v_cvt_pk_bf16_f32 v{Dr+x}, v{t}, v{u}", f"v_cvt_pk_bf16_f32 v{Dr+x+1}, v{t+1}, v{u+1}"]
        return L
    def wf(i): return [f"ds_read_b32 v{WQ[i & 1]+j}, v5 offset:{(8*i+j)*128}" for j in range(4)]
    def filt(i, Dr, Di):
        L = []
        w = WQ[i & 1]
        for h2 in range(2):
            x = 4*i + 2*h2
            ww = w + 2*h2
            L += [f"v_lshlrev_b32 v6, 16, v{ww}", f"v_lshlrev_b32 v7, 16, v{ww+1}",
                  f"v_and_b32 v10, 0xffff0000, v{ww}", f"v_and_b32 v11, 0xffff0000, v{ww+1}",
                  f"v_pk_mul_f32 v[12:13], v[{Di+x}:{Di+x+1}], v[10:11]",
                  f"v_pk_mul_f32 v[14:15], v[{Di+x}:{Di+x+1}], v[6:7]",
                  f"v_pk_fma_f32 v[12:13], v[{Dr+x}:{Dr+x+1}], v[6:7], v[12:13] neg_lo:[0,0,1] neg_hi:[0,0,1]",
                  f"v_pk_fma_f32 v[14:15], v[{Dr+x}:{Dr+x+1}], v[10:11], v[14:15]",
                  f"v_cvt_pk_bf16_f32 v{Dr+x}, v12, -v14", f"v_cvt_pk_bf16_f32 v{Dr+x+1}, v13, -v15"]
        return L
    H = {}
    def h0(T):
        T(f"v_lshlrev_b32 v4, 11, v{R.vh}")
        T(f"v_lshl_add_u32 v4, v{R.vn}, 4, v4")
        T(f"s_lshl_b32 s{st}, s{R.sw}, 2")
        T(f"s_add_u32 s{st}, s{st}, {L_X}")
        T(f"v_add_u32 v8, s{st}, v4")
        for i in range(4):
            for q in range(4): T(f"ds_read_b32 v{XA_+4*i+q}, v8 offset:{(8*i+q)*512}")
        T(f"s_lshl_b32 s{st}, s{R.sw}, 12")
        T(f"s_add_u32 s{st}, s{st}, {L_F}")
        T(f"v_lshlrev_b32 v5, 9, v{R.vh}")
        T(f"v_lshl_add_u32 v5, v{R.vn}, 2, v5")
        T(f"v_add_u32 v5, s{st}, v5")
    H[0] = one(cap(h0))
    H[1] = one(sum((mm(i, True, XA_, D0r, D0i) for i in range(4)), []) + wf(0) + wf(1))
    H[2] = one(tw(0, D0r, D0i) + mm(0, False, D0r, D1r, D1i) + tw(1, D0r, D0i) + mm(1, False, D0r, D1r, D1i))
    H[3] = one(tw(2, D0r, D0i) + mm(2, False, D0r, D1r, D1i) + tw(3, D0r, D0i) + mm(3, False, D0r, D1r, D1i))
    H[4] = one(filt(0, D1r, D1i) + wf(2) + mm(0, True, D1r, D0r, D0i) + filt(1, D1r, D1i) + wf(3) + mm(1, True, D1r, D0r, D0i))
    H[5] = one(filt(2, D1r, D1i) + mm(2, True, D1r, D0r, D0i) + filt(3, D1r, D1i) + mm(3, True, D1r, D0r, D0i))
    H[6] = one(tw(0, D0r, D0i) + mm(0, False, D0r, D1r, D1i) + tw(1, D0r, D0i) + mm(1, False, D0r, D1r, D1i))
    H[7] = one(tw(2, D0r, D0i) + mm(2, False, D0r, D1r, D1i) + tw(3, D0r, D0i) + mm(3, False, D0r, D1r, D1i))
    L = []
    for x in range(16):
        L += [f"v_cvt_pk_bf16_f32 v{D0r+x}, v{D1r+x}, -v{D1i+x}", f"ds_write_b32 v8, v{D0r+x} offset:{(8*(x>>2)+(x&3))*512}"]
    H[8] = one(L)
    def h10(T):
        T(f"s_lshl_b32 s{st+1}, s{R.sw}, 12")
        T(f"s_add_u32 s{st+2}, s{st+1}, {L_X}")
        T(f"v_lshl_add_u32 v4, v{R.vl}, 4, s{st+2}")
        for j in range(4): T(f"ds_read_b128 v[{16+4*j}:{19+4*j}], v4 offset:{1024*j}")
        T(f"s_lshl_b32 s{st}, s{R.sa2}, 14")
        T(f"s_add_u32 s{st}, s{st}, s{st+1}")
        T(f"v_lshlrev_b32 v5, 4, v{R.vl}")
    H[10] = [(cap(lambda T: T.srd(R.srdZ, pWS, SZ_Z, OFF_Z)), None)] + one(cap(h10))
    H[11] = [([f"buffer_store_dwordx4 v[{16+4*j}:{19+4*j}], v5, {srd(R.srdZ)}, s{st} offen offset:{1024*j}{SC}"], "zst") for j in range(4)]
    out = {}
    for h, atoms in H.items():
        t, ph = (t0 + (h + 1)//2, 'A' if h % 2 else 'B')
        out[(t, ph)] = atoms
    return out

ZL = 204
L_ZB, ZBW = AUXB, 3104
L_GO = AUXB + 12800
sG0, sG1 = 27, 91
def a3_loads(A, vm, pWS):
    st = R.st
    A.c("---- A3 loads ----")
    A.srd(R.srdZ, pWS, SZ_Z, OFF_Z)
    st = 62
    A(f"v_lshrrev_b32 v4, 2, v0")
    A(f"v_lshrrev_b32 v5, 1, v4")
    A(f"v_lshlrev_b32 v5, 15, v5")
    A(f"v_and_b32 v4, 1, v4")
    A(f"v_lshl_add_u32 v5, v4, 3, v5")
    A(f"v_and_b32 v4, 3, v0")
    A(f"s_lshl_b32 s{st}, s{R.sc}, 2")
    A(f"v_add_u32 v4, s{st}, v4")
    A(f"v_lshl_add_u32 v5, v4, 4, v5")
    for rnd in range(3):
        for pi in range(2):
            A(f"s_mov_b32 s{st}, {(rnd << 20) + pi*16384}")
            A(f"buffer_load_dwordx2 v[{ZL+4*rnd+2*pi}:{ZL+4*rnd+2*pi+1}], v5, {srd(R.srdZ)}, s{st} offen sc1")
    vm.issue('zl', 6)

def a3_elem(A, vm, extra=None):
    st = R.st
    A.c("---- A3 elementwise ----")
    A(f"v_and_b32 v{R.vl}, 63, v0")
    A(f"v_and_b32 v{R.vn}, 31, v{R.vl}")
    A(f"v_lshrrev_b32 v{R.vh}, 5, v{R.vl}")
    A(f"v_and_b32 v4, 3, v0")
    A(f"v_mul_u32_u24 v5, {ZBW}, v4")
    A(f"v_add_u32 v5, {L_ZB}, v5")
    A(f"s_mul_i32 s{st}, s{R.sw}, {ZBW}")
    A(f"s_add_u32 s{st}, s{st}, {L_ZB + 2560}")
    A(f"v_and_b32 v6, 7, v{R.vl}")
    A(f"v_lshl_add_u32 v6, v6, 2, s{st}")
    A(f"v_mov_b32 v7, 0")
    A(f"ds_write_b32 v6, v7")
    A(f"s_lshl_b32 s{st}, s{R.sc}, 2")
    A(f"v_add_u32 v6, s{st}, v4")
    A(f"v_cvt_f32_u32 v7, v6")
    A(f"v_mul_f32 v7, {fb(1/2048)}, v7")
    A(f"v_cos_f32 v12, v7")
    A(f"v_sin_f32 v13, v7")
    A(f"v_lshrrev_b32 v7, 2, v0")
    A(f"s_waitcnt vmcnt({vm.wait({'zl'})})")
    for rnd in range(3):
        z = ZL + 4*rnd
        if extra: extra(rnd)
        A(f"v_add_u32 v8, {64*rnd}, v7")
        A(f"v_cvt_f32_u32 v15, v8")
        A(f"v_mul_f32 v15, {fb(1/640)}, v15")
        A(f"v_sin_f32 v14, -v15")
        A(f"v_cos_f32 v15, v15")
        Up, Uq, Vp, Vq = 32, 34, 36, 38
        for (d, src) in ((Up, z), (Uq, z+1), (Vp, z+2), (Vq, z+3)):
            A(f"v_lshlrev_b32 v{d}, 16, v{src}")
            A(f"v_and_b32 v{d+1}, 0xffff0000, v{src}")
        for X in (Vp, Vq): cmulp(A, X, X, 12, 60)
        A(f"v_sub_u32 v9, 320, v8")
        A(f"v_cmp_eq_u32 vcc, 0, v8")
        A(f"v_lshl_add_u32 v10, v8, 2, v5")
        A(f"v_cndmask_b32_e64 v9, v9, 0, vcc")
        A(f"v_lshl_add_u32 v11, v9, 2, v5")
        Ap0, Aq0, Ap1, Aq1 = 40, 42, 44, 46
        A(f"v_pk_add_f32 v[{Ap0}:{Ap0+1}], v[{Up}:{Up+1}], v[{Vp}:{Vp+1}]")
        A(f"v_pk_add_f32 v[{Aq0}:{Aq0+1}], v[{Uq}:{Uq+1}], v[{Vq}:{Vq+1}]")
        A(f"v_pk_add_f32 v[{Ap1}:{Ap1+1}], v[{Up}:{Up+1}], v[{Vp}:{Vp+1}] neg_lo:[0,1] neg_hi:[0,1]")
        A(f"v_pk_add_f32 v[{Aq1}:{Aq1+1}], v[{Uq}:{Uq+1}], v[{Vq}:{Vq+1}] neg_lo:[0,1] neg_hi:[0,1]")
        if rnd == 0:
            for X in (Ap0, Aq0, Ap1, Aq1): A(f"v_cndmask_b32_e64 v{X+1}, v{X+1}, 0, vcc")
        if rnd == 2:
            A(f"v_mov_b32 v9, {L_ZB + 4*ZBW}")
            A(f"v_cmp_lt_u32 vcc, 160, v8")
            A(f"v_cndmask_b32 v10, v10, v9, vcc")
            A(f"v_cndmask_b32 v11, v11, v9, vcc")
        for r, (P, Q) in enumerate(((Ap0, Aq0), (Ap1, Aq1))):
            E, O, T = 48, 50, 52
            A(f"v_pk_add_f32 v[{E}:{E+1}], v[{P}:{P+1}], v[{Q}:{Q+1}] neg_hi:[0,1]")
            A(f"v_pk_add_f32 v[{O}:{O+1}], v[{P}:{P+1}], v[{Q}:{Q+1}] neg_lo:[0,1]")
            cmulp(A, T, O, 14, 60)
            A(f"v_pk_add_f32 v[54:55], v[{E}:{E+1}], v[{T}:{T+1}] neg_hi:[1,1]")
            A(f"v_pk_add_f32 v[56:57], v[{E}:{E+1}], v[{T}:{T+1}] neg_lo:[0,1] neg_hi:[0,1]")
            A(f"v_cvt_pk_bf16_f32 v58, v54, v55")
            A(f"v_cvt_pk_bf16_f32 v59, v56, v57")
            off = f" offset:{1280*r}" if r else ""
            A(f"ds_write_b32 v10, v58{off}")
            A(f"ds_write_b32 v11, v59{off}")
    A("s_waitcnt lgkmcnt(0)")

def a3_core(A, vm, pWS, mid=None):
    st = R.st
    A.c("---- A3 core ----")
    A(f"v_bfe_u32 v4, v{R.vl}, 4, 1")
    A(f"v_mul_u32_u24 v4, 1280, v4")
    A(f"v_and_b32 v5, 15, v{R.vl}")
    A(f"v_lshl_add_u32 v4, v5, 2, v4")
    A(f"v_mul_u32_u24 v5, 160, v{R.vh}")
    A(f"s_mul_i32 s{st}, s{R.sw}, {ZBW}")
    A(f"s_add_u32 s{st}, s{st}, {L_ZB}")
    A(f"v_add3_u32 v4, v4, v5, s{st}")
    for i in range(4):
        for q in range(4):
            A(f"ds_read_b32 v{XA+4*i+q}, v4 offset:{320*i+40*q}")
    A(f"v_mov_b32 v6, {fb(0.5/(2048*640))}")
    A(f"v_mul_f32 v8, s{sG0}, v6")
    A(f"v_mul_f32 v10, s{sG1}, v6")
    A(f"v_sub_f32 v9, 0, v8")
    A(f"v_sub_f32 v11, 0, v10")
    A("s_waitcnt lgkmcnt(0)")
    fft320_core(A, tmp=(12, 14), mid=mid)
    A(f"s_mul_i32 s{st}, s{R.sw}, 2560")
    A(f"s_add_u32 s{st}, s{st}, {L_GO}")
    A(f"v_lshl_add_u32 v4, v{R.vh}, 6, v{R.vn}")
    A(f"v_lshl_add_u32 v4, v4, 2, s{st}")
    for i in range(3):
        if i == 2: A("s_mov_b64 exec, 0xffffffff")
        for r in range(2):
            sc = 8 + 2*r
            for jj in range(2):
                d = D2[r] + 4*i + 2*jj
                A(f"v_pk_mul_f32 v[{d}:{d+1}], v[{d}:{d+1}], v[{sc}:{sc+1}]")
                A(f"v_cvt_pk_bf16_f32 v{d}, v{d}, v{d+1}")
                A(f"ds_write_b32 v4, v{d} offset:{r*1280 + (128*i + 32*jj)*4}")
    A("s_mov_b64 exec, -1")
    A.srd(R.srdZ, pWS, SZ_GA, OFF_GA)
    A(f"v_lshl_add_u32 v4, v{R.vl}, 4, s{st}")
    A("s_waitcnt lgkmcnt(0)")
    for j in range(3): A(f"ds_read_b128 v[{16+4*j}:{19+4*j}], v4 offset:{1024*j}")
    A(f"s_lshl_b32 s{st}, s{R.sc}, 2")
    A(f"s_add_u32 s{st}, s{st}, s{R.sw}")
    A(f"s_mul_i32 s{st}, s{st}, 1280")
    A(f"v_lshlrev_b32 v4, 4, v{R.vl}")
    A(f"v_add_u32 v5, 1024, v4")
    A(f"v_add_u32 v6, {1024*1280 - 256}, v4")
    A(f"v_cmp_gt_u32 vcc, 16, v{R.vl}")
    A(f"v_cndmask_b32 v5, v6, v5, vcc")
    A(f"v_add_u32 v7, {1024*1280 + 48*16}, v4")
    A(f"v_mov_b32 v6, 0x40000000")
    A(f"v_cmp_gt_u32 vcc, 32, v{R.vl}")
    A(f"v_cndmask_b32 v7, v6, v7, vcc")
    A("s_waitcnt lgkmcnt(0)")
    A(f"buffer_store_dwordx4 v[16:19], v4, {srd(R.srdZ)}, s{st} offen{SC}")
    A(f"buffer_store_dwordx4 v[20:23], v5, {srd(R.srdZ)}, s{st} offen{SC}")
    A(f"buffer_store_dwordx4 v[24:27], v7, {srd(R.srdZ)}, s{st} offen{SC}")
    vm.issue('gast', 3)
```

```python
from asmlib import *
from layout import *

NST = 20
SPREAD = True
import os
RING = os.environ.get('RING', '36')
NXS, NWS = (4, 5) if RING == '45' else (3, 6)
XSLOT, WSLOT = 16384, 12288
WBASE = NXS*XSLOT
ACC = 64

class R:
    vxo = (230, 231, 232, 233)
    vwo = (234, 235, 236)
    vx = (237, 238, 239, 240)
    vw, vw2 = 241, 242
    vt = 56
    opA = (16, 36)
    opB = (28, 48)
    opF = 'v'
    srdX, srdW, srdH = 8, 12, 16
    sw = 20
    skx, skw = 21, 22
    smx, smw = 23, 24
    smt, sft = 25, 26
    st = 28

def setup(A, s_b, pBX, pWG, pWU, pWS):
    st, t = R.st, R.vt
    A.c("---- F1 setup ----")
    A(f"s_and_b32 s{st}, s{s_b}, 1")
    A(f"s_lshl_b32 s{st}, s{st}, 3")
    A(f"s_lshr_b32 s{st+1}, s{s_b}, 3")
    A(f"s_and_b32 s{st+1}, s{st+1}, 7")
    A(f"s_add_u32 s{R.smt}, s{st}, s{st+1}")
    A(f"s_lshr_b32 s{st+1}, s{s_b}, 1")
    A(f"s_and_b32 s{st+1}, s{st+1}, 3")
    A(f"s_lshl_b32 s{st+1}, s{st+1}, 2")
    A(f"s_lshr_b32 s{st+2}, s{s_b}, 6")
    A(f"s_add_u32 s{R.sft}, s{st+1}, s{st+2}")
    A.srd(R.srdX, pBX, 2048*640*2)
    A(f"s_cmp_lt_u32 s{R.sw}, 2")
    A(f"s_cselect_b32 s{R.srdW}, s{pWG}, s{pWU}")
    A(f"s_cselect_b32 s{R.srdW+1}, s{pWG+1}, s{pWU+1}")
    A(f"s_and_b32 s{R.srdW+1}, s{R.srdW+1}, 0xffff")
    A(f"s_mov_b32 s{R.srdW+2}, {hex(640*1536*2)}")
    A(f"s_mov_b32 s{R.srdW+3}, 0x20000")
    A(f"v_and_b32 v{t}, 63, v0")
    A(f"s_lshl_b32 s{st}, s{R.smt}, 7")
    A(f"s_lshl_b32 s{st+1}, s{R.sw}, 5")
    A(f"s_add_u32 s{st}, s{st}, s{st+1}")
    A(f"s_mul_i32 s{st}, s{st}, 1280")
    A(f"v_lshrrev_b32 v{t+1}, 3, v{t}")
    A(f"v_mul_u32_u24 v{t+1}, 1280, v{t+1}")
    A(f"v_add_u32 v{t+1}, s{st}, v{t+1}")
    A(f"v_lshrrev_b32 v{t+2}, 4, v{t}")
    A(f"v_xor_b32 v{t+2}, v{t+2}, v{t}")
    A(f"v_and_b32 v{t+2}, 7, v{t+2}")
    A(f"v_lshl_add_u32 v{R.vxo[0]}, v{t+2}, 4, v{t+1}")
    A(f"v_xor_b32 v{t+2}, 4, v{t+2}")
    A(f"v_lshl_add_u32 v{R.vxo[1]}, v{t+2}, 4, v{t+1}")
    A(f"v_add_u32 v{R.vxo[1]}, {8*1280-1024}, v{R.vxo[1]}")
    A(f"v_add_u32 v{R.vxo[2]}, {16*1280-2048}, v{R.vxo[0]}")
    A(f"v_add_u32 v{R.vxo[3]}, {16*1280-2048}, v{R.vxo[1]}")
    A(f"s_and_b32 s{st}, s{R.sw}, 1")
    A(f"s_mul_i32 s{st}, s{st}, {16*3072}")
    A(f"s_mul_i32 s{st+1}, s{R.sft}, 192")
    A(f"s_add_u32 s{st}, s{st}, s{st+1}")
    A(f"s_lshr_b32 s{st+1}, s{R.sw}, 1")
    A(f"s_mul_i32 s{st+1}, s{st+1}, 10")
    for j in range(3):
        A(f"v_add_u32 v{t+1}, {64*j}, v{t}")
        A(f"v_mul_u32_u24 v{t+2}, 5462, v{t+1}")
        A(f"v_lshrrev_b32 v{t+2}, 16, v{t+2}")
        A(f"v_mul_u32_u24 v{t+3}, 12, v{t+2}")
        A(f"v_sub_u32 v{t+3}, v{t+1}, v{t+3}")
        A(f"v_add_u32 v{t+3}, s{st+1}, v{t+3}")
        A(f"v_subrev_u32 v{t+4}, 12, v{t+3}")
        A(f"v_min_u32 v{t+3}, v{t+3}, v{t+4}")
        A(f"v_mul_u32_u24 v{t+2}, 3072, v{t+2}")
        A(f"v_lshl_add_u32 v{t+2}, v{t+3}, 4, v{t+2}")
        A(f"v_add_u32 v{t+2}, s{st}, v{t+2}")
        A(f"v_subrev_u32 v{R.vwo[j]}, {1024*j}, v{t+2}")
    A(f"s_lshl_b32 s{R.smx}, s{R.sw}, 12")
    A(f"s_mul_i32 s{R.smw}, s{R.sw}, 3072")
    A(f"s_add_u32 s{R.smw}, s{R.smw}, {WBASE}")

def setup_reads(A):
    st, t = R.st, R.vt
    A(f"v_and_b32 v{t}, 63, v0")
    A(f"s_lshr_b32 s{st}, s{R.sw}, 1")
    A(f"s_lshl_b32 s{st}, s{st}, 13")
    A(f"v_and_b32 v{t+1}, 31, v{t}")
    A(f"v_lshrrev_b32 v{t+2}, 5, v{t}")
    A(f"v_bfe_u32 v{t+3}, v{t+1}, 1, 3")
    A(f"v_xor_b32 v{t+3}, v{t+3}, v{t+2}")
    A(f"v_lshlrev_b32 v{t+4}, 7, v{t+1}")
    A(f"v_add_u32 v{t+4}, s{st}, v{t+4}")
    A(f"v_lshl_add_u32 v{R.vx[0]}, v{t+3}, 4, v{t+4}")
    for k in range(1, 4): A(f"v_xor_b32 v{R.vx[k]}, {32*k}, v{R.vx[0]}")
    A(f"s_and_b32 s{st}, s{R.sw}, 1")
    A(f"s_mul_i32 s{st+1}, s{st}, 96")
    A(f"s_add_u32 s{st+1}, s{st+1}, {WBASE}")
    A(f"v_lshrrev_b32 v{t+1}, 5, v{t}")
    A(f"v_lshlrev_b32 v{t+1}, 3, v{t+1}")
    A(f"v_bfe_u32 v{t+2}, v{t}, 2, 2")
    A(f"v_add_u32 v{t+1}, v{t+1}, v{t+2}")
    A(f"v_mul_u32_u24 v{t+1}, 192, v{t+1}")
    A(f"v_bfe_u32 v{t+2}, v{t}, 4, 1")
    A(f"v_lshl_add_u32 v{t+1}, v{t+2}, 4, v{t+1}")
    A(f"v_and_b32 v{t+2}, 1, v{t}")
    A(f"v_lshl_add_u32 v{t+1}, v{t+2}, 3, v{t+1}")
    A(f"v_bfe_u32 v{t+2}, v{t}, 1, 1")
    A(f"v_mul_u32_u24 v{t+3}, {6144+32}, v{t+2}")
    A(f"v_add_u32 v{t+1}, v{t+1}, v{t+3}")
    A(f"v_add_u32 v{R.vw}, s{st+1}, v{t+1}")
    A(f"s_mul_i32 s{st+1}, s{st}, 192")
    A(f"v_mul_u32_u24 v{t+3}, s{st+1}, v{t+2}")
    A(f"v_sub_u32 v{R.vw2}, v{R.vw}, v{t+3}")

def dma_x(c):
    L = []
    for j in range(4):
        off = f" offset:{1024*j}" if j else ""
        L.append([f"s_add_u32 m0, s{R.smx}, {(c % NXS)*XSLOT}", f"s_mov_b32 s{R.skx}, {c*128}",
                  f"buffer_load_dwordx4 v{R.vxo[j]}, {srd(R.srdX)}, s{R.skx} offen{off} lds"])
    return L
def dma_w(t):
    L = []
    for j in range(3):
        off = f" offset:{1024*j}" if j else ""
        L.append([f"s_add_u32 m0, s{R.smw}, {(t % NWS)*WSLOT}", f"s_mov_b32 s{R.skw}, {t*32*3072}",
                  f"buffer_load_dwordx4 v{R.vwo[j]}, {srd(R.srdW)}, s{R.skw} offen{off} lds"])
    return L

def reads(t, kk, setn):
    a0, b0 = R.opA[setn], R.opB[setn]
    vx = R.vx[2*(t & 1) + kk]
    xs = ((t >> 1) % NXS)*XSLOT
    wsl = (t % NWS)*WSLOT
    def rdA(tt):
        vw = R.vw2 if tt == 2 else R.vw
        return [f"ds_read_b64_tr_b16 {R.opF}[{a0+4*tt+2*rd}:{a0+4*tt+2*rd+1}], v{vw} offset:{wsl + kk*3072 + rd*768 + tt*32}" for rd in range(2)]
    def rdB(tt):
        return [f"ds_read_b128 {R.opF}[{b0+4*tt}:{b0+4*tt+3}], v{vx} offset:{xs + 4096*tt}"]
    return rdA(0) + rdB(0) + rdB(1) + rdA(1) + rdA(2)

def mfmas(setn, first=False):
    a0, b0 = R.opA[setn], R.opB[setn]
    L = []
    for tt in range(3):
        for t in range(2):
            d = ACC + (tt*2 + t)*16
            L.append(f"v_mfma_f32_32x32x16_bf16 v[{d}:{d+15}], {R.opF}[{a0+4*tt}:{a0+4*tt+3}], {R.opF}[{b0+4*t}:{b0+4*t+3}], " + ("0" if first else f"v[{d}:{d+15}]"))
    return L

def issue(A, vm, kind, i):
    for g in (dma_x(i) if kind == "x" else dma_w(i)): A(g)
    vm.issue(f"{kind}{i}", 4 if kind == "x" else 3)

def l2_prefetch(A, vm, pWG, pWU):
    A.c("---- L2 prefetch of Wg / Wu ----")
    A(f"s_cmp_lt_u32 s{R.sw}, 2")
    A(f"s_cselect_b32 s4, s{pWG}, s{pWU}")
    A(f"s_cselect_b32 s5, s{pWG+1}, s{pWU+1}")
    A(f"s_and_b32 s5, s5, 0xffff")
    A(f"s_mov_b32 s6, {hex(640*1536*2)}")
    A(f"s_mov_b32 s7, 0x20000")
    A(f"s_lshr_b32 s28, s98, 3")
    A(f"s_lshl_b32 s28, s28, 1")
    A(f"s_and_b32 s29, s{R.sw}, 1")
    A(f"s_add_u32 s28, s28, s29")
    A(f"s_mul_i32 s28, s28, 60")
    A(f"v_and_b32 v56, 63, v0")
    A(f"v_min_u32 v56, 59, v56")
    A(f"v_add_u32 v56, s28, v56")
    A(f"v_mul_u32_u24 v57, 10923, v56")
    A(f"v_lshrrev_b32 v57, 16, v57")
    A(f"v_mul_u32_u24 v58, 6, v57")
    A(f"v_sub_u32 v58, v56, v58")
    A(f"v_mul_u32_u24 v57, 3072, v57")
    A(f"v_lshl_add_u32 v57, v58, 7, v57")
    A(f"s_lshr_b32 s28, s98, 1")
    A(f"s_and_b32 s28, s28, 3")
    A(f"s_mul_i32 s28, s28, 768")
    A(f"buffer_load_dword v229, v57, s[4:7], s28 offen")
    vm.issue('pf', 1)

def x_prefetch(A, vm, first_chunk=3):
    A.c("---- L2 prefetch of x ----")
    A(f"s_lshr_b32 s28, s98, 3")
    A(f"s_lshl_b32 s28, s28, 2")
    A(f"s_add_u32 s28, s28, s{R.sw}")
    A(f"s_lshl_b32 s28, s28, 6")
    A(f"v_and_b32 v56, 63, v0")
    A(f"v_add_u32 v56, s28, v56")
    A(f"v_lshrrev_b32 v57, 10, v56")
    A(f"v_add_u32 v57, {first_chunk}, v57")
    A(f"v_min_u32 v57, 9, v57")
    A(f"v_and_b32 v56, 1023, v56")
    A(f"v_mul_u32_u24 v56, 1280, v56")
    A(f"v_lshl_add_u32 v56, v57, 7, v56")
    A(f"s_and_b32 s28, s98, 1")
    A(f"s_mul_i32 s28, s28, {1024*1280}")
    A(f"buffer_load_dword v229, v56, {srd(R.srdX)}, s28 offen")
    vm.issue('pfx', 1)

def main(A, vm, issued, fill=None, after_barrier=None, pause=None, late=None, extra_need=None, before_barrier=None, weave=None):
    fill = list(fill or []); after_barrier = after_barrier or {}; pause = pause or {}; extra_need = extra_need or {}; before_barrier = before_barrier or {}
    A(f"s_waitcnt vmcnt({vm.wait({'x0','w0'} | set(extra_need.get(-1, ())))})")
    A("s_barrier")
    if -1 in after_barrier: after_barrier[-1]()
    A(reads(0, 0, 0))
    rdpos = ((0, 3), (1, 3), (2, 2))
    def split(rd):
        g = [[] for _ in range(6)]
        k = 0
        for gi, n in rdpos:
            g[gi] += [(x, None) for x in rd[k:k+n]]; k += n
        return g
    def addfill(g, n=1, start=3):
        for gi in range(start, 6):
            k = n if len(g[gi]) < 2 else max(0, n - 1)
            for _ in range(k):
                if fill: g[gi].append((fill.pop(0), None))
    st = {"queue": [], "need_reads0": False}
    def enqueue(kind, i):
        atoms = dma_x(i) if kind == "x" else dma_w(i)
        st["queue"].extend((ins, f"{kind}{i}") for ins in atoms)
        issued.add((kind, i))
    for k in (late or []): enqueue(*k)
    def drain(g, slots):
        for gi in slots:
            if st["queue"]:
                ins, tag = st["queue"].pop(0)
                g[gi] += [(x, None) for x in ins[:-1]] + [(ins[-1], tag)]
    def add_bundle(g, atoms):
        n = len(atoms)
        for k, (lines, tag) in enumerate(atoms):
            gi = min(5, (k*6)//n)
            g[gi] += [(x, None) for x in lines[:-1]] + [(lines[-1], tag)]
    def emit(mf, g):
        for i, m in enumerate(mf):
            A(m)
            for line, tag in g[i]:
                A(line)
                if tag: vm.issue(tag)
    def stage(t, bundles):
        A.c(f"F1 stage {t}")
        queue = st["queue"]
        if st["need_reads0"]:
            A(reads(t, 0, 0)); st["need_reads0"] = False
        g = split(reads(t, 1, 1))
        many = len(queue) > 4
        drain(g, (0, 1, 2, 3, 4, 5) if many else (1, 3, 5))
        if (t, 'A') in bundles: add_bundle(g, bundles[(t, 'A')])
        addfill(g)
        A("s_waitcnt lgkmcnt(0)")
        emit(mfmas(0, first=(t == 0)), g)
        if t + 1 < NST:
            need = {f'w{t+1}'}
            if (t + 1) % 2 == 0: need.add(f'x{(t+1)//2}')
            need |= set(extra_need.get(t, ()))
            while any(tag in need for _, tag in queue):
                ins, tag = queue.pop(0); A(ins); vm.issue(tag)
            A(f"s_waitcnt vmcnt({vm.wait(need)}) lgkmcnt(0)")
            if t in before_barrier: before_barrier[t]()
            A("s_barrier")
            hook = []
            if t in after_barrier:
                keep = A.l; A.l = []
                after_barrier[t]()
                hook, A.l = A.l, keep
                if not SPREAD or any(l.strip().endswith(":") or "s_cbranch" in l or "s_waitcnt" in l for l in hook):
                    A.l += hook; hook = []
            paused = t in pause
            g = [[] for _ in range(6)] if paused else split(reads(t+1, 0, 0))
            if hook:
                hook = [l.strip() for l in hook if not l.strip().startswith(";")]
                atoms_, cur, masked = [], [], False
                for l in hook:
                    cur.append(l)
                    if l.startswith("s_mov_b64 exec"): masked = not l.endswith("-1")
                    if not masked: atoms_.append(cur); cur = []
                assert not cur
                ng = 4
                per = -(-len(hook)//ng)
                gi, n = 0, 0
                for at in atoms_:
                    g[gi] += [(x, None) for x in at]; n += len(at)
                    if n >= per*(gi + 1) and gi < ng - 1: gi += 1
            if (t & 1) and (t >> 1) + NXS < NST//2 and ("x", (t >> 1) + NXS) not in issued: enqueue("x", (t >> 1) + NXS)
            if t + NWS < NST and ("w", t + NWS) not in issued: enqueue("w", t + NWS)
            many = len(queue) > 4
            drain(g, (4, 5) if hook else ((0, 1, 2, 3, 4, 5) if many else (1, 3, 5)))
            if (t, 'B') in bundles:
                assert not any("buffer_" in x for lines, _ in bundles[(t, 'B')] for x in lines) or not hook
                add_bundle(g, bundles[(t, 'B')])
            addfill(g)
            emit(mfmas(1), g)
            if paused:
                pause[t](); st["need_reads0"] = True
        else:
            A("s_waitcnt lgkmcnt(0)")
            A(mfmas(1))
    t = 0
    while t < NST:
        if weave and t == weave["ts"]:
            plain, join = A.label("plain"), A.label("join")
            snap = (list(vm.q), list(st["queue"]), st["need_reads0"], set(issued), list(fill))
            weave["skip"](plain)
            for tt in range(weave["ts"], weave["te"] + 1): stage(tt, weave["bundles"])
            A(f"s_branch {join}")
            qa = list(vm.q); end_a = (list(st["queue"]), st["need_reads0"])
            vm.q, st["queue"], st["need_reads0"] = list(snap[0]), list(snap[1]), snap[2]
            issued.clear(); issued.update(snap[3]); fill[:] = snap[4]
            A(f"{plain}:")
            for tt in range(weave["ts"], weave["te"] + 1): stage(tt, {})
            A(f"{join}:")
            assert end_a == (list(st["queue"]), st["need_reads0"])
            mk = weave["mark"]
            last = max(i for i, x in enumerate(qa) if x == mk)
            k = len(qa) - 1 - last
            assert vm.q[len(vm.q)-k:] == qa[last+1:] if k else True
            vm.q = vm.q[:len(vm.q)-k] + ["?" + mk] + vm.q[len(vm.q)-k:]
            t = weave["te"] + 1
            continue
        stage(t, {})
        t += 1
    assert not st["queue"] and not fill, (len(st["queue"]), len(fill))

def epilogue(A, vm, pWS, sc=" sc1", between=None):
    st, t = R.st, R.vt
    A.c("---- F1 epilogue ----")
    A.srd(R.srdH, pWS, SZ_H, OFF_H)
    A(f"s_lshr_b32 s{st}, s{R.sw}, 1")
    A(f"s_lshl_b32 s{st}, s{st}, 1")
    A(f"s_lshl_b32 s{st+1}, s{R.smt}, 2")
    A(f"s_add_u32 s{st}, s{st}, s{st+1}")
    A(f"s_mul_i32 s{st}, s{st}, 96")
    A(f"s_mul_i32 s{st+1}, s{R.sft}, 6")
    A(f"s_add_u32 s{st}, s{st}, s{st+1}")
    A(f"s_and_b32 s{st+1}, s{R.sw}, 1")
    A(f"s_mul_i32 s{st+1}, s{st+1}, 3")
    A(f"s_add_u32 s{st}, s{st}, s{st+1}")
    A(f"s_lshl_b32 s{st}, s{st}, 10")
    A(f"v_and_b32 v{t}, 63, v0")
    A(f"v_lshlrev_b32 v{t}, 4, v{t}")
    A(f"s_mov_b32 s{st+2}, 0xbfb8aa3b")
    A(f"s_mov_b32 s{st+3}, 0xbfb8aa3b")
    A.nop(4)
    E, O = 16, 32
    for tt in range(3):
        for tc in range(2):
            d = ACC + (tt*2 + tc)*16
            o = O + 4*((tt*2+tc) & 1)
            gi = [0, 2, 8, 10]
            for k, g in enumerate(gi): A(f"v_pk_mul_f32 v[{E+2*k}:{E+2*k+1}], v[{d+g}:{d+g+1}], s[{st+2}:{st+3}]")
            for k in range(8): A(f"v_exp_f32 v{E+k}, v{E+k}")
            for k, g in enumerate(gi): A(f"v_pk_mul_f32 v[{d+g+4}:{d+g+5}], v[{d+g}:{d+g+1}], v[{d+g+4}:{d+g+5}]")
            for k in range(4): A(f"v_pk_add_f32 v[{E+2*k}:{E+2*k+1}], v[{E+2*k}:{E+2*k+1}], 1.0 op_sel_hi:[1,0]")
            for k in range(8): A(f"v_rcp_f32 v{E+k}, v{E+k}")
            A("s_nop 0")
            for k, g in enumerate(gi): A(f"v_pk_mul_f32 v[{d+g+4}:{d+g+5}], v[{d+g+4}:{d+g+5}], v[{E+2*k}:{E+2*k+1}]")
            for k, g in enumerate(gi): A(f"v_cvt_pk_bf16_f32 v{o+k}, v{d+g+4}, v{d+g+5}")
            off = (tc*96 + tt)*1024
            A(f"s_add_u32 s{st+1}, s{st}, {off}")
            A(f"buffer_store_dwordx4 v[{o}:{o+3}], v{t}, {srd(R.srdH)}, s{st+1} offen{sc}")
            vm.issue('hst')
            if between: between(tt*2 + tc)
```

```python
import sys, os
sys.path.insert(0, os.path.dirname(os.path.abspath(__file__)))
from asmlib import *
from layout import *
import f1, f2, g2, aux, hazard

NAME = "gated_mix__spectral_gfnet__swiglu_ffn__prompt_kernel"
pAX, pWR, pWI, pBX, pWG, pWU, pWD, pGW, pOUT, pDBG, pWS = 68, 70, 72, 74, 76, 78, 80, 82, 84, 86, 88
sNONCE, srdF, sSPIN, sTMP, sID = 90, 92, 96, 97, 98
srdD = 0
SPIN_MAX = 20000
import os
if os.environ.get('NOSPIN'): SPIN_MAX = 0

class Gen:
    def __init__(self, stamps=False, order="AB", gemm_first=True, exp="", ta2=11, tf1=-1, d2=2, nwa2=7, early3=True, npre=3, dep2at=9, wput=2, wputr=4, codepf=1, tlbpf=0, twt=-1, wsbase=0, map48=False, ahead=4, pro=2, xpf=None, outsc='', dbgsel=None, spread=True, dyn=False, lean=0, w1=0, wepi=3, pk2=True):
        aux.PK2 = pk2
        self.wepi = wepi
        self.w1 = w1
        if w1:
            f1.R.opF = 'a'; f1.R.opA = (0, 20); f1.R.opB = (12, 32)
        else:
            f1.R.opF = 'v'; f1.R.opA = (16, 36); f1.R.opB = (28, 48)
        self.lean = lean
        self.dyn = dyn and stamps != 'dbg'
        f1.SPREAD = spread
        f2.OUTSC = outsc
        self.xpf = xpf
        self.pro = pro
        f2.MAP48 = map48; f2.AHEAD = ahead
        self.wsbase = wsbase
        self.twt = twt
        self.tlbpf = tlbpf
        self.codepf = codepf
        self.wput = wput; self.wputr = wputr
        self.dep2at = dep2at
        self.early3 = early3; self.npre = npre
        self.exp = exp; self.ta2 = ta2; self.tf1 = tf1; self.d2 = d2; self.nwa2 = nwa2
        self.A = Asm("K"); self.stamps = stamps; self.ns = 0; self.names = {}
        self.gemm_first = gemm_first
        self.dbg_sel = {"gemm": [(0,"start",1),(1,"consts",0),(2,"core",0),(3,"a1",0),(4,"preps",0),(5,"flag1",0),(6,"dep1",0),(7,"a2 start",0),(8,"a2 end",0),
                                 (9,"f1 loop end",0),(10,"f1 epi",0),(11,"dep2",0),(12,"a3 elem",0),(13,"a3 core",0),(14,"f2 loop end",0),(15,"end",0)]}
        if dbgsel: self.dbg_sel = {'gemm': [(i, n, 1 if i == 0 else 0) for i, n in enumerate(dbgsel)]}
        g2.ORDER = order; g2.STG = g2.stages()
    def stamp(self, name=None):
        if not self.stamps: return
        if self.stamps == "min" and name not in ("start", "end"): return
        A = self.A
        A("s_memrealtime s[100:101]")
        A("s_waitcnt lgkmcnt(0)")
        A(f"v_writelane_b32 v255, s100, {self.ns}")
        self.names.setdefault(self.role, []).append((self.ns, name))
        self.ns += 1
    def dump_stamps(self):
        if not self.stamps: return
        A = self.A
        if self.stamps == "dbg":
            sel = self.dbg_sel[self.role]
            A("s_waitcnt vmcnt(0) lgkmcnt(0)")
            A.srd(8, pDBG, 256)
            lab = A.label("nd")
            A("s_cmp_lg_u32 s20, 0")
            A(f"s_cbranch_scc1 {lab}")
            names = {nm: idx for idx, nm in self.names[self.role]}
            A("v_mov_b32 v2, 0")
            A("v_mov_b32 v3, 0x40000000")
            for slot, nm, inv in sel:
                A(f"v_readlane_b32 s30, v255, {names[nm]}")
                if inv: A("s_not_b32 s30, s30")
                A(f"s_mov_b32 s31, {4*slot}")
                A(f"v_writelane_b32 v2, s30, {slot}")
                A(f"v_writelane_b32 v3, s31, {slot}")
            A("buffer_atomic_umax v2, v3, s[8:11], 0 offen")
            A(f"{lab}:")
            return
        A("s_waitcnt vmcnt(0) lgkmcnt(0)")
        A.srd(8, pDBG, 1 << 20)
        A("v_lshlrev_b32 v1, 2, v0")
        A(f"s_lshl_b32 s30, s{sID}, 10")
        A("s_add_u32 s30, s30, 4096")
        A("buffer_store_dword v255, v1, s[8:11], s30 offen")
    def flag_store(self, off, s_idx):
        A = self.A
        lab = A.label("sig")
        A(f"s_cmp_lg_u32 s20, 0")
        A(f"s_cbranch_scc1 {lab}")
        A(f"s_lshl_b32 s{sTMP}, s{s_idx}, 2")
        A(f"s_add_u32 s{sTMP}, s{sTMP}, {off}")
        A(f"v_mov_b32 v249, s{sNONCE}")
        A(f"v_mov_b32 v254, 0")
        A("s_mov_b64 exec, 1")
        A(f"buffer_store_dword v249, v254, {srd(srdF)}, s{sTMP} offen sc1")
        A("s_mov_b64 exec, -1")
        A(f"{lab}:")
    def flag_store_all(self, vm, off, s_idx):
        A = self.A
        A(f"s_lshl_b32 s{sTMP}, s{s_idx}, 2")
        A(f"s_add_u32 s{sTMP}, s{sTMP}, {off}")
        A(f"s_cmp_eq_u32 s20, 0")
        A(f"s_cselect_b32 s{sTMP}, s{sTMP}, 0x40000000")
        A(f"v_mov_b32 v249, s{sNONCE}")
        A(f"v_mov_b32 v254, 0")
        A("s_mov_b64 exec, 1")
        A(f"buffer_store_dword v249, v254, {srd(srdF)}, s{sTMP} offen sc1")
        A("s_mov_b64 exec, -1")
        vm.issue("flag")
    def arrive(self, vm, phase):
        A = self.A
        off = (OFF_FLAG1, OFF_FLAG2, OFF_FLAG1B)[phase]
        A(f"s_lshl_b32 s{sTMP}, s{sID}, 2")
        A(f"s_add_u32 s{sTMP}, s{sTMP}, {off}")
        A(f"s_cmp_eq_u32 s20, 0")
        A(f"s_cselect_b32 s{sTMP}, s{sTMP}, 0x40000000")
        A(f"v_mov_b32 v249, s{sNONCE}")
        A(f"v_and_b32 v254, 7, v0")
        A(f"v_lshlrev_b32 v254, 10, v254")
        A("s_mov_b64 exec, 0xff")
        A(f"buffer_store_dword v249, v254, {srd(srdF)}, s{sTMP} offen sc1")
        A("s_mov_b64 exec, -1")
        vm.issue("flag")
    def cpoll_issue(self, vm, phase):
        A = self.A
        off = (OFF_FLAG1, OFF_FLAG2, OFF_FLAG1B)[phase]
        A(f"v_and_b32 v254, 63, v0")
        A(f"v_lshlrev_b32 v254, 4, v254")
        A(f"s_and_b32 s{sTMP}, s{sID}, 7")
        A(f"s_lshl_b32 s{sTMP}, s{sTMP}, 10")
        A(f"s_add_u32 s{sTMP}, s{sTMP}, {off}")
        A(f"s_cmp_eq_u32 s20, 0")
        A(f"s_cselect_b32 s{sTMP}, s{sTMP}, 0x40000000")
        A(f"buffer_load_dwordx4 v[250:253], v254, {srd(srdF)}, s{sTMP} offen sc1")
        vm.issue("cpoll")
    def cpoll_check(self, vm, phase):
        A = self.A
        off = (OFF_FLAG1, OFF_FLAG2, OFF_FLAG1B)[phase]
        lo, ok = A.label("w"), A.label("wok")
        A(f"s_waitcnt vmcnt({vm.wait({'cpoll'})})")
        A(f"s_cmp_lg_u32 s20, 0")
        A(f"s_cbranch_scc1 {ok}")
        A(f"s_mov_b32 s{sSPIN}, 0")
        A(f"{lo}:")
        for k in range(4): A(f"v_xor_b32 v{250+k}, s{sNONCE}, v{250+k}")
        A(f"v_or3_b32 v250, v250, v251, v252")
        A(f"v_or_b32 v250, v250, v253")
        A(f"v_cmp_ne_u32 vcc, 0, v250")
        A(f"s_cbranch_vccz {ok}")
        A(f"s_add_u32 s{sSPIN}, s{sSPIN}, 1")
        A(f"s_cmp_gt_u32 s{sSPIN}, {SPIN_MAX}")
        A(f"s_cbranch_scc1 {ok}")
        A("s_sleep 2")
        A(f"v_and_b32 v254, 63, v0")
        A(f"v_lshlrev_b32 v254, 4, v254")
        A(f"s_and_b32 s{sTMP}, s{sID}, 7")
        A(f"s_lshl_b32 s{sTMP}, s{sTMP}, 10")
        A(f"s_add_u32 s{sTMP}, s{sTMP}, {off}")
        A(f"buffer_load_dwordx4 v[250:253], v254, {srd(srdF)}, s{sTMP} offen sc1")
        A("s_waitcnt vmcnt(0)")
        A(f"s_branch {lo}")
        A(f"{ok}:")
    def flag_store_wave(self, vm, off, s_idx):
        A = self.A
        A(f"s_lshl_b32 s{sTMP}, s{s_idx}, 2")
        A(f"s_add_u32 s{sTMP}, s{sTMP}, {off}")
        A(f"v_mov_b32 v249, s{sNONCE}")
        A(f"v_mov_b32 v254, 0")
        A("s_mov_b64 exec, 1")
        A(f"buffer_store_dword v249, v254, {srd(srdF)}, s{sTMP} offen sc1")
        A("s_mov_b64 exec, -1")
        vm.issue("flag")
    def signal(self, vm, off, s_idx):
        A = self.A
        A("s_waitcnt vmcnt(0)")
        A("s_barrier")
        vm.q = []
        self.flag_store_all(vm, off, s_idx)
    def poll_issue(self, vm, off):
        A = self.A
        A(f"v_and_b32 v254, 63, v0")
        A(f"v_lshlrev_b32 v254, 4, v254")
        A(f"s_mov_b32 s{sTMP}, {off}")
        A(f"buffer_load_dwordx4 v[250:253], v254, {srd(srdF)}, s{sTMP} offen sc1")
        vm.issue("poll")
    def poll_check(self, vm, off):
        A = self.A
        lo, ok = A.label("w"), A.label("wok")
        A(f"s_waitcnt vmcnt({vm.wait({'poll'})})")
        A(f"s_mov_b32 s{sSPIN}, 0")
        A(f"{lo}:")
        for k in range(4): A(f"v_xor_b32 v{250+k}, s{sNONCE}, v{250+k}")
        A(f"v_or3_b32 v250, v250, v251, v252")
        A(f"v_or_b32 v250, v250, v253")
        A(f"v_cmp_ne_u32 vcc, 0, v250")
        A(f"s_cbranch_vccz {ok}")
        A(f"s_add_u32 s{sSPIN}, s{sSPIN}, 1")
        A(f"s_cmp_gt_u32 s{sSPIN}, {SPIN_MAX}")
        A(f"s_cbranch_scc1 {ok}")
        A("s_sleep 4")
        A(f"s_mov_b32 s{sTMP}, {off}")
        A(f"buffer_load_dwordx4 v[250:253], v254, {srd(srdF)}, s{sTMP} offen sc1")
        A("s_waitcnt vmcnt(0)")
        A(f"s_branch {lo}")
        A(f"{ok}:")
    def wait_all(self, vm, off):
        self.poll_issue(vm, off); self.poll_check(vm, off)
    def wait_idx(self, vm, off, v_idx_code):
        A = self.A
        lo, ok = A.label("w"), A.label("wok")
        v_idx_code()
        A(f"s_mov_b32 s{sSPIN}, 0")
        A(f"s_mov_b32 s{sTMP}, {off}")
        A(f"{lo}:")
        A(f"buffer_load_dword v250, v254, {srd(srdF)}, s{sTMP} offen sc1")
        A("s_waitcnt vmcnt(0)")
        A(f"v_cmp_ne_u32 vcc, s{sNONCE}, v250")
        A(f"s_cbranch_vccz {ok}")
        A(f"s_add_u32 s{sSPIN}, s{sSPIN}, 1")
        A(f"s_cmp_gt_u32 s{sSPIN}, {SPIN_MAX}")
        A(f"s_cbranch_scc1 {ok}")
        A("s_sleep 4")
        A(f"s_branch {lo}")
        A(f"{ok}:")
        vm.q = []

    def body(self):
        A = self.A; self.role = "gemm"; self.ns = 0
        vm = VM()
        TA2 = self.ta2
        self.stamp("start")
        X = self.exp.split("+")
        aux.setup(A, pAX, pWR, pWI, pWD, pGW, pWS)
        issued = set()
        def iss(*ks):
            for k in ks:
                f1.issue(A, vm, *k); issued.add(k)
        def mid():
            if "nopf" not in X and "pflate" not in X and "pfmid" not in X and "pf2" not in X and "pf0" not in X: f1.l2_prefetch(A, vm, pWG, pWU)
        if "pf0" in X: f1.l2_prefetch(A, vm, pWG, pWU)
        aux.issue_loads(A, vm, mid, wd=("wdlate" not in X and "wdmid" not in X and "wd2" not in X and "wd3" not in X))
        self.stamp("issued")
        aux.consts_a1(A)
        if self.lean == 0:
            f1.setup(A, sID, pAX, pWG, pWU, pWS)
            aux.setup_out(A, pWS)
            f1.setup_reads(A)
            A(aux.consts_a2_fill())
            aux.phase1_pre(A)
        if "wdmid" in X: aux.issue_wd(A, vm)
        if "pfmid" in X: f1.l2_prefetch(A, vm, pWG, pWU)
        self.stamp("consts")
        aux.a1_core(A, vm)
        self.stamp("core")
        if self.lean >= 1:
            A('s_waitcnt lgkmcnt(0)')
            aux.setup_out(A, pWS)
            aux.phase1_pre(A)
            f1.setup(A, sID, pAX, pWG, pWU, pWS)
            f1.setup_reads(A)
            if self.lean == 1: A(aux.consts_a2_fill())
        if "wdlate" in X: aux.issue_wd(A, vm)
        if "pflate" in X: f1.l2_prefetch(A, vm, pWG, pWU)
        A("s_waitcnt lgkmcnt(0)")
        A(f"s_add_u32 s{sNONCE}, s{sNONCE}, 1")
        A(f"s_waitcnt vmcnt({vm.wait({'ws', 'gw'} | (set() if ('wdlate' in X or 'wdmid' in X or 'wd2' in X or 'wd3' in X) else {'wd'}))})")
        if "pf2" in X: f1.l2_prefetch(A, vm, pWG, pWU)
        if "wd2" in X: aux.issue_wd(A, vm)
        self.stamp("wswait")
        aux.a1_elem(A, vm)
        self.stamp("a1")
        if "nop1" not in self.exp and "nopreps" not in self.exp:
            iss(("x", 0), ("w", 0))
            self.stamp("x0w0")
            aux.wprep(A, vm)
            self.stamp("wp")
            iss(("w", 1))
            if "wdlate" in X or "wdmid" in X:
                A(f"s_waitcnt vmcnt({vm.wait({'wd'})})")
                A("s_barrier")
            if self.twt < 0: aux.wtprep(A, vm)
            self.stamp("wprep")
            iss(("x", 1), ("w", 2))
            if self.pro >= 1 and f1.NWS == 6: iss(("w", 3))
            if self.pro >= 2: iss(("x", 2))
            aux.gate(A, vm)

        if 'nop1' in self.exp: A('s_waitcnt vmcnt(0)')
        self.stamp("preps")
        class Hooks(dict):
            def __setitem__(self, k, fn):
                old = self.get(k)
                dict.__setitem__(self, k, fn if old is None else (lambda o=old, n=fn: (o(), n())))
        class Tags(dict):
            def __setitem__(self, k, tags):
                dict.__setitem__(self, k, set(self.get(k, ())) | set(tags))
        after, pause, extra, before = Hooks(), Hooks(), Tags(), Hooks()
        extra[self.tf1] = {'st'}
        after[self.tf1] = lambda: (self.arrive(vm, 0), self.stamp("flag1"), aux.issue_wd(A, vm) if 'wd3' in X else None)
        if self.xpf is not None: after[self.xpf] = lambda: f1.x_prefetch(A, vm)
        if self.dyn:
            TT = TA2 - 6
            def t_take():
                A.srd(4, pDBG, 256)
                A(f"s_and_b32 s{sTMP}, s{sID}, 7")
                A(f"s_lshl_b32 s{sTMP}, s{sTMP}, 5")
                A(f"s_cmp_eq_u32 s20, 0")
                A(f"s_cselect_b32 s{sTMP}, s{sTMP}, 0x40000000")
                A(f"v_mov_b32 v248, 1")
                A(f"v_mov_b32 v247, 0")
                A("s_mov_b64 exec, 1")
                A(f"buffer_atomic_add v248, v247, s[4:7], s{sTMP} offen sc0 sc1")
                A("s_mov_b64 exec, -1")
                vm.issue("tick")
            def t_share():
                A(f"s_lshl_b32 s{sTMP}, s20, 6")
                A(f"s_add_u32 s{sTMP}, s{sTMP}, {aux.L_GW}")
                A(f"v_mov_b32 v247, s{sTMP}")
                A("s_mov_b64 exec, 1")
                A("ds_write_b32 v247, v248")
                A("s_mov_b64 exec, -1")
                A("s_waitcnt lgkmcnt(0)")
            def t_read():
                A(f"v_mov_b32 v247, {aux.L_GW}")
                A("ds_read_b32 v248, v247")
            def t_use():
                A(f"v_readfirstlane_b32 s{aux.R.sa2}, v248")
                A(f"s_lshl_b32 s{aux.R.sa2}, s{aux.R.sa2}, 3")
                A(f"s_and_b32 s{sTMP}, s{sID}, 7")
                A(f"s_add_u32 s{aux.R.sa2}, s{aux.R.sa2}, s{sTMP}")
            after[TT] = t_take
            extra[TT+2] = {"tick"}
            before[TT+2] = t_share
            after[TT+2] = t_read
            after[TT+3] = t_use
        else:
            after[0] = lambda: A(f"s_mov_b32 s{aux.R.sa2}, s{sID}")
        def a2_issue():
            A(f"s_or_b32 s{sTMP}, s{sID}, s20")
            A(f"s_cmp_eq_u32 s{sTMP}, 0")
            A(f"s_cselect_b32 s{sTMP}, 0, 0x40000000")
            A(f"v_mov_b32 v249, s{sNONCE}")
            A(f"v_mov_b32 v254, 0")
            A("s_mov_b64 exec, 1")
            A(f"buffer_store_dword v249, v254, {srd(srdF)}, s{sTMP} offen sc1")
            A("s_mov_b64 exec, -1")
            vm.issue("flag")
            self.stamp("dep1")
            aux.a2_loads(A, vm, pWS)
            if not self.w1: f2.setup_w(A, sID, pWS)
        NW_A2 = self.nwa2
        watoms = f2.w_loads(range(NW_A2))
        def a2_run():
            lab, lab2 = A.label("noa2"), A.label("a2d")
            self.stamp("a2 start")
            A(f"s_waitcnt vmcnt({vm.wait({'a2in'})})")
            A(f"s_cmp_ge_u32 s{aux.R.sa2}, {0 if 'noa2' in self.exp else 162}")
            A(f"s_cbranch_scc1 {lab}")
            v2 = VM()
            def st2(T, n):
                if self.stamps and "a2fine" in self.exp:
                    keep = self.A; self.A = T; self.stamp(n); self.A = keep
            aux.a2(A, v2, pWS, waited=True, weave=list(watoms), stamp=st2)
            A(f"s_branch {lab2}")
            A(f"{lab}:")
            for ins in watoms: A(ins)
            A(f"{lab2}:")
            for k in range(len(watoms)): vm.issue(f"W{k//5}")
            vm.mark('zst')
            self.stamp("a2 end")
        weave = None
        if self.w1:
            T0 = self.w1
            after[T0-6] = lambda: self.cpoll_issue(vm, 0)
            before[T0-3] = lambda: self.cpoll_check(vm, 0)
            after[T0-3] = a2_issue
            extra[T0] = {'a2in'}
            def skip(label):
                A(f"s_cmp_ge_u32 s{aux.R.sa2}, 162")
                A(f"s_cbranch_scc1 {label}")
            weave = dict(ts=T0, te=T0+6, bundles=aux.a2_bundles(pWS, T0), skip=skip, mark='zst')
            if T0 + 8 <= 18:
                extra[T0+8] = {'zst', 'gst'}
                after[T0+8] = lambda: self.arrive(vm, 1)
        else:
            after[TA2-3] = lambda: self.cpoll_issue(vm, 0)
            before[TA2-1] = lambda: self.cpoll_check(vm, 0)
            after[TA2-1] = a2_issue
            pause[TA2] = a2_run
            if self.twt >= 0:
                if 'wd2' in X or 'wd3' in X: extra[self.twt] = set(extra.get(self.twt, ())) | {'wd'}
                pause[self.twt] = lambda: aux.wtprep(A, vm, tag='wtst')
                extra[self.twt + 3] = {'wtst'}
                after[self.twt + 3] = lambda: self.arrive(vm, 2)
                after[TA2-1] = lambda: self.cpoll_issue(vm, 2)
                before[TA2] = lambda: self.cpoll_check(vm, 2)
            extra[TA2+self.d2] = {'zst', 'gst'}
            after[TA2+self.d2] = lambda: self.arrive(vm, 1)
        if self.dep2at < 0:
            after[16] = lambda: self.cpoll_issue(vm, 1)
            before[18] = lambda: self.cpoll_check(vm, 1)
        if "fine" in self.exp:
            for t in range(0, 19, 2):
                def mk(t, old):
                    def f():
                        if old: old()
                        self.stamp(f"bar{t}")
                    return f
                after[t] = (lambda t=t: self.stamp(f"bar{t}"))
        fl = aux.consts_a2_fill() if self.lean == 2 else []
        f1.main(A, vm, issued, fill=fl, after_barrier=after, pause=pause, late=[k for k in ([("w", 3), ("x", 2), ("w", 4), ("w", 5)] if f1.NWS == 6 else [("w", 3), ("x", 3), ("w", 4)]) if k not in issued], extra_need=extra, before_barrier=before, weave=weave)
        if self.w1 and self.w1 + 8 > 18:
            A(f"s_waitcnt vmcnt({vm.wait({'zst', 'gst'})})")
            A("s_barrier")
            self.arrive(vm, 1)
        self.stamp("f1 loop end")
        if self.w1: f2.setup_w(A, sID, pWS)
        f2.setup(A, sID, pWS, pOUT)
        if self.dep2at < 0:
            self.stamp("dep2")
            aux.a3_loads(A, vm, pWS)
        nw0 = 0 if self.w1 else self.nwa2
        atoms = [(ins, f"W{nw0 + k//5}") for k, ins in enumerate(f2.w_loads(range(nw0, 10)))]
        def put(n):
            for _ in range(n):
                if atoms:
                    ins, tag = atoms.pop(0); A(ins); vm.issue(tag)
        def btw(k):
            if self.dep2at == 9:
                if k == 3: self.cpoll_issue(vm, 1)
                if self.w1: put(self.wepi)
                return
            if self.dep2at < 0 or k > self.dep2at: put(self.wput)
            if self.dep2at >= 0:
                if k == max(0, self.dep2at - 2): self.cpoll_issue(vm, 1)
                if k == self.dep2at:
                    self.cpoll_check(vm, 1)
                    A("s_barrier")
                    self.stamp("dep2")
                    aux.a3_loads(A, vm, pWS)
        f1.epilogue(A, vm, pWS, between=btw)
        self.stamp("f1 epi")
        A(f"s_lshl_b32 s{sTMP}, s{f1.R.smt}, 1")
        A(f"s_lshr_b32 s99, s20, 1")
        A(f"s_add_u32 s{sTMP}, s{sTMP}, s99")
        A(f"s_lshl_b32 s{sTMP}, s{sTMP}, 5")
        A(f"s_lshl_b32 s99, s{f1.R.sft}, 1")
        A(f"s_add_u32 s{sTMP}, s{sTMP}, s99")
        A(f"s_and_b32 s99, s20, 1")
        A(f"s_add_u32 s99, s{sTMP}, s99")
        if self.dep2at == 9:
            A(f"s_waitcnt vmcnt({vm.wait({'hst'})})")
            self.flag_store_wave(vm, OFF_FLAG3, 99)
            self.cpoll_check(vm, 1)
            A("s_barrier")
            self.stamp("dep2")
            aux.a3_loads(A, vm, pWS)
            put(self.wput*3)
        def extra(rnd):
            if rnd > 0: put(self.wputr)
            if rnd == 1 and self.dep2at != 9:
                A(f"s_waitcnt vmcnt({vm.wait({'hst'})})")
                self.flag_store_wave(vm, OFF_FLAG3, 99)
        aux.a3_elem(A, vm, extra)
        put(100)
        A("s_barrier")
        self.stamp("a3 elem")
        f2.setup2(A, pWS, pOUT)
        def poll3_issue():
            A(f"v_and_b32 v254, 31, v0")
            A(f"s_lshl_b32 s{sTMP}, s{f2.R.sT}, 5")
            A(f"v_add_u32 v254, s{sTMP}, v254")
            A(f"v_lshlrev_b32 v254, 2, v254")
            A(f"s_mov_b32 s{sTMP}, {OFF_FLAG3}")
            A(f"buffer_load_dword v250, v254, {srd(srdF)}, s{sTMP} offen sc1")
            vm.issue("poll3")
        def check_one(tag, off):
            lo, ok = A.label("w"), A.label("wok")
            A(f"s_waitcnt vmcnt({vm.wait({tag})})")
            A(f"s_mov_b32 s{sSPIN}, 0")
            A(f"{lo}:")
            A(f"v_cmp_ne_u32 vcc, s{sNONCE}, v250")
            A(f"s_cbranch_vccz {ok}")
            A(f"s_add_u32 s{sSPIN}, s{sSPIN}, 1")
            A(f"s_cmp_gt_u32 s{sSPIN}, {SPIN_MAX}")
            A(f"s_cbranch_scc1 {ok}")
            A("s_sleep 4")
            A(f"s_mov_b32 s{sTMP}, {off}")
            A(f"buffer_load_dword v250, v254, {srd(srdF)}, s{sTMP} offen sc1")
            A("s_waitcnt vmcnt(0)")
            A(f"s_branch {lo}")
            A(f"{ok}:")
        npre = self.npre
        if self.early3:
            poll3_issue()
            def mid():
                check_one("poll3", OFF_FLAG3)
                for i in range(npre):
                    A(f2.h_loads(i)); vm.issue(f"h{i}", 4)
            aux.a3_core(A, vm, pWS, mid=mid)
        else:
            aux.a3_core(A, vm, pWS, mid=poll3_issue)
        for k, ins in enumerate(f2.w_loads((10, 11))):
            A(ins); vm.issue(f"W{10 + k//5}")
        self.stamp("a3 core")
        if not self.early3:
            check_one("poll3", OFF_FLAG3)
            npre = 0
        self.stamp("dep3")
        def flag4():
            A(f"s_waitcnt vmcnt({vm.wait({'gast'})})")
            A(f"s_lshl_b32 s99, s{sID}, 2")
            A(f"s_add_u32 s99, s99, s20")
            self.flag_store_wave(vm, OFF_FLAG4, 99)
        def code4():
            A(f"v_and_b32 v254, 63, v0")
            A(f"s_and_b32 s{sTMP}, s{f2.R.sT}, 15")
            A(f"s_lshl_b32 s{sTMP}, s{sTMP}, 6")
            A(f"v_add_u32 v254, s{sTMP}, v254")
            A(f"v_lshlrev_b32 v254, 2, v254")
        def h_issue4():
            code4()
            A(f"s_mov_b32 s{sTMP}, {OFF_FLAG4}")
            A(f"buffer_load_dword v250, v254, {srd(srdF)}, s{sTMP} offen sc1")
            vm.issue("poll4")
        def h_check4():
            check_one("poll4", OFF_FLAG4)
            f2.final_loads(A, vm)
        hk = {1: flag4, 6: h_issue4, 10: h_check4}
        if "f2fine" in self.exp:
            for i_ in (0, 2, 4, 8, 11):
                hk[i_] = (lambda o=hk.get(i_), i_=i_: ((o() if o else None), self.stamp(f"f2s{i_}")))
        f2.main(A, vm, hooks=hk, pre_issued=npre)
        self.stamp("f2 loop end")
        f2.epilogue(A, vm)
        self.stamp("end")
        self.dump_stamps()
        A("s_endpgm")

    def build(self):
        A = self.A
        A(f"s_cmp_ge_u32 s2, 256")
        A(f"s_cbranch_scc1 K_exit")
        A(f"s_load_dwordx16 s[68:83], s[0:1], 0")
        A(f"s_load_dwordx4 s[84:87], s[0:1], 64")
        A(f"s_load_dwordx2 s[88:89], s[0:1], 80")
        if self.stamps: A("v_mov_b32 v255, 0")
        A(f"s_mov_b32 s{sID}, s2")
        A(f"v_lshrrev_b32 v4, 6, v0")
        A("s_nop 0")
        A(f"v_readfirstlane_b32 s20, v4")
        A("s_waitcnt lgkmcnt(0)")
        if self.wsbase:
            A(f"s_add_u32 s{pWS}, s{pWS}, {hex(self.wsbase)}")
            A(f"s_addc_u32 s{pWS+1}, s{pWS+1}, 0")
        A(f"s_load_dword s{sNONCE}, s[{pWS}:{pWS+1}], {OFF_EPOCH}")
        if self.codepf:
            A("s_getpc_b64 s[4:5]")
            A("K_pc:")
            A("s_and_b32 s5, s5, 0xffff")
            A("s_mov_b32 s6, K_exit-K_pc")
            A("s_mov_b32 s7, 0x20000")
            A("v_lshlrev_b32 v4, 7, v0")
            for k in range(self.codepf):
                A(f"s_mov_b32 s28, {32768*k}")
                A(f"buffer_load_dword v229, v4, s[4:7], s28 offen")
        if self.tlbpf:
            A.srd(4, pWS, 28 << 20)
            A("v_and_b32 v4, 63, v0")
            A("v_lshlrev_b32 v4, 19, v4")
            A("v_add_u32 v4, 0x7ff80, v4")
            A(f"buffer_load_dword v229, v4, s[4:7], 0 offen")
            A.srd(4, pOUT, 2048*640*2)
            A("v_and_b32 v4, 63, v0")
            A("v_lshlrev_b32 v4, 16, v4")
            A(f"buffer_load_dword v229, v4, s[4:7], 0 offen")
        A.srd(srdF, pWS, SZ_FLAGS)
        self.body()
        A("K_exit:")
        A("s_endpgm")
        if os.environ.get('NOST'):
            out = []
            for l in A.l:
                if 'buffer_store' in l and ('s[36:39]' in l or 's[48:51]' in l or 's[56:59]' in l): l = '  s_nop 0'
                out.append(l)
            A.l = out
        lines, n = hazard.fix(A.l)
        return lines

HEADER = open(os.path.join(os.path.dirname(os.path.abspath(__file__)), "header.txt")).read()
def full_source(**kw):
    g = Gen(**kw)
    body = "\n".join(g.build())
    src = HEADER + f"""; @launch grid=(256,1,1) block=(256,1,1) lds=163840
.amdgcn_target "amdgcn-amd-amdhsa--gfx950"
.text
.globl {NAME}
.p2align 8
.type {NAME},@function
{NAME}:
{body}
.section .rodata,"a"
.p2align 6
.amdhsa_kernel {NAME}
  .amdhsa_next_free_vgpr 512
  .amdhsa_next_free_sgpr 102
  .amdhsa_accum_offset 256
  .amdhsa_group_segment_fixed_size 0
  .amdhsa_kernarg_size 88
  .amdhsa_user_sgpr_count 2
  .amdhsa_user_sgpr_kernarg_segment_ptr 1
  .amdhsa_system_sgpr_workgroup_id_x 1
.end_amdhsa_kernel
"""
    return src, g
if __name__ == "__main__":
    kw = {}
    for o in sys.argv[2:]:
        k, v_ = o.split("="); kw[k] = eval(v_)
    src, g = full_source(**kw)
    out = sys.argv[1] if len(sys.argv) > 1 else "gated_mix__spectral_gfnet__swiglu_ffn__prompt.s"
    open(out, "w").write(src)
    print("wrote", out, len(src), "bytes")
```

```python
import sys, os
sys.path.insert(0, os.path.dirname(os.path.abspath(__file__)))
from asmlib import *
from layout import *
import f1, f2, g2, aux, hazard

NAME = "gated_mix__spectral_gfnet__swiglu_ffn__prompt_kernel"
pAX, pWR, pWI, pBX, pWG, pWU, pWD, pGW, pOUT, pDBG, pWS = 68, 70, 72, 74, 76, 78, 80, 82, 84, 86, 88
sNONCE, srdF, sSPIN, sTMP, sID = 90, 92, 96, 97, 98
srdD = 0
SPIN_MAX = 20000
import os
if os.environ.get('NOSPIN'): SPIN_MAX = 0

class Gen:
    def __init__(self, stamps=False, order="AB", gemm_first=True, exp="", ta2=11, tf1=-1, d2=2, nwa2=7, early3=True, npre=3, dep2at=9, wput=2, wputr=4, codepf=1, tlbpf=0, twt=-1, wsbase=0, map48=False, ahead=4, pro=2, xpf=None, outsc='', dbgsel=None, spread=True, dyn=False, lean=0, w1=0, wepi=3, pk2=True, cpfirst=True):
        self.cpfirst = cpfirst
        aux.PK2 = pk2
        self.wepi = wepi
        self.w1 = w1
        if w1:
            f1.R.opF = 'a'; f1.R.opA = (0, 20); f1.R.opB = (12, 32)
        else:
            f1.R.opF = 'v'; f1.R.opA = (16, 36); f1.R.opB = (28, 48)
        self.lean = lean
        self.dyn = dyn and stamps != 'dbg'
        f1.SPREAD = spread
        f2.OUTSC = outsc
        self.xpf = xpf
        self.pro = pro
        f2.MAP48 = map48; f2.AHEAD = ahead
        self.wsbase = wsbase
        self.twt = twt
        self.tlbpf = tlbpf
        self.codepf = codepf
        self.wput = wput; self.wputr = wputr
        self.dep2at = dep2at
        self.early3 = early3; self.npre = npre
        self.exp = exp; self.ta2 = ta2; self.tf1 = tf1; self.d2 = d2; self.nwa2 = nwa2
        self.A = Asm("K"); self.stamps = stamps; self.ns = 0; self.names = {}
        self.gemm_first = gemm_first
        self.dbg_sel = {"gemm": [(0,"start",1),(1,"consts",0),(2,"core",0),(3,"a1",0),(4,"preps",0),(5,"flag1",0),(6,"dep1",0),(7,"a2 start",0),(8,"a2 end",0),
                                 (9,"f1 loop end",0),(10,"f1 epi",0),(11,"dep2",0),(12,"a3 elem",0),(13,"a3 core",0),(14,"f2 loop end",0),(15,"end",0)]}
        if dbgsel: self.dbg_sel = {'gemm': [(i, n, 1 if i == 0 else 0) for i, n in enumerate(dbgsel)]}
        g2.ORDER = order; g2.STG = g2.stages()
    def stamp(self, name=None):
        if not self.stamps: return
        if self.stamps == "min" and name not in ("start", "end"): return
        A = self.A
        A("s_memrealtime s[100:101]")
        A("s_waitcnt lgkmcnt(0)")
        A(f"v_writelane_b32 v255, s100, {self.ns}")
        self.names.setdefault(self.role, []).append((self.ns, name))
        self.ns += 1
    def dump_stamps(self):
        if not self.stamps: return
        A = self.A
        if self.stamps == "dbg":
            sel = self.dbg_sel[self.role]
            A("s_waitcnt vmcnt(0) lgkmcnt(0)")
            A.srd(8, pDBG, 256)
            lab = A.label("nd")
            A("s_cmp_lg_u32 s20, 0")
            A(f"s_cbranch_scc1 {lab}")
            names = {nm: idx for idx, nm in self.names[self.role]}
            A("v_mov_b32 v2, 0")
            A("v_mov_b32 v3, 0x40000000")
            for slot, nm, inv in sel:
                A(f"v_readlane_b32 s30, v255, {names[nm]}")
                if inv: A("s_not_b32 s30, s30")
                A(f"s_mov_b32 s31, {4*slot}")
                A(f"v_writelane_b32 v2, s30, {slot}")
                A(f"v_writelane_b32 v3, s31, {slot}")
            A("buffer_atomic_umax v2, v3, s[8:11], 0 offen")
            A(f"{lab}:")
            return
        A("s_waitcnt vmcnt(0) lgkmcnt(0)")
        A.srd(8, pDBG, 1 << 20)
        A("v_lshlrev_b32 v1, 2, v0")
        A(f"s_lshl_b32 s30, s{sID}, 10")
        A("s_add_u32 s30, s30, 4096")
        A("buffer_store_dword v255, v1, s[8:11], s30 offen")
    def flag_store(self, off, s_idx):
        A = self.A
        lab = A.label("sig")
        A(f"s_cmp_lg_u32 s20, 0")
        A(f"s_cbranch_scc1 {lab}")
        A(f"s_lshl_b32 s{sTMP}, s{s_idx}, 2")
        A(f"s_add_u32 s{sTMP}, s{sTMP}, {off}")
        A(f"v_mov_b32 v249, s{sNONCE}")
        A(f"v_mov_b32 v254, 0")
        A("s_mov_b64 exec, 1")
        A(f"buffer_store_dword v249, v254, {srd(srdF)}, s{sTMP} offen sc1")
        A("s_mov_b64 exec, -1")
        A(f"{lab}:")
    def flag_store_all(self, vm, off, s_idx):
        A = self.A
        A(f"s_lshl_b32 s{sTMP}, s{s_idx}, 2")
        A(f"s_add_u32 s{sTMP}, s{sTMP}, {off}")
        A(f"s_cmp_eq_u32 s20, 0")
        A(f"s_cselect_b32 s{sTMP}, s{sTMP}, 0x40000000")
        A(f"v_mov_b32 v249, s{sNONCE}")
        A(f"v_mov_b32 v254, 0")
        A("s_mov_b64 exec, 1")
        A(f"buffer_store_dword v249, v254, {srd(srdF)}, s{sTMP} offen sc1")
        A("s_mov_b64 exec, -1")
        vm.issue("flag")
    def arrive(self, vm, phase):
        A = self.A
        off = (OFF_FLAG1, OFF_FLAG2, OFF_FLAG1B)[phase]
        A(f"s_lshl_b32 s{sTMP}, s{sID}, 2")
        A(f"s_add_u32 s{sTMP}, s{sTMP}, {off}")
        A(f"s_cmp_eq_u32 s20, 0")
        A(f"s_cselect_b32 s{sTMP}, s{sTMP}, 0x40000000")
        A(f"v_mov_b32 v249, s{sNONCE}")
        A(f"v_and_b32 v254, 7, v0")
        A(f"v_lshlrev_b32 v254, 10, v254")
        A("s_mov_b64 exec, 0xff")
        A(f"buffer_store_dword v249, v254, {srd(srdF)}, s{sTMP} offen sc1")
        A("s_mov_b64 exec, -1")
        vm.issue("flag")
    def cpoll_issue(self, vm, phase):
        A = self.A
        off = (OFF_FLAG1, OFF_FLAG2, OFF_FLAG1B)[phase]
        A(f"v_and_b32 v254, 63, v0")
        A(f"v_lshlrev_b32 v254, 4, v254")
        A(f"s_and_b32 s{sTMP}, s{sID}, 7")
        A(f"s_lshl_b32 s{sTMP}, s{sTMP}, 10")
        A(f"s_add_u32 s{sTMP}, s{sTMP}, {off}")
        A(f"s_cmp_eq_u32 s20, 0")
        A(f"s_cselect_b32 s{sTMP}, s{sTMP}, 0x40000000")
        A(f"buffer_load_dwordx4 v[250:253], v254, {srd(srdF)}, s{sTMP} offen sc1")
        vm.issue("cpoll")
    def cpoll_check(self, vm, phase):
        A = self.A
        off = (OFF_FLAG1, OFF_FLAG2, OFF_FLAG1B)[phase]
        lo, ok = A.label("w"), A.label("wok")
        A(f"s_waitcnt vmcnt({vm.wait({'cpoll'})})")
        A(f"s_cmp_lg_u32 s20, 0")
        A(f"s_cbranch_scc1 {ok}")
        A(f"s_mov_b32 s{sSPIN}, 0")
        A(f"{lo}:")
        for k in range(4): A(f"v_xor_b32 v{250+k}, s{sNONCE}, v{250+k}")
        A(f"v_or3_b32 v250, v250, v251, v252")
        A(f"v_or_b32 v250, v250, v253")
        A(f"v_cmp_ne_u32 vcc, 0, v250")
        A(f"s_cbranch_vccz {ok}")
        A(f"s_add_u32 s{sSPIN}, s{sSPIN}, 1")
        A(f"s_cmp_gt_u32 s{sSPIN}, {SPIN_MAX}")
        A(f"s_cbranch_scc1 {ok}")
        A("s_sleep 2")
        A(f"v_and_b32 v254, 63, v0")
        A(f"v_lshlrev_b32 v254, 4, v254")
        A(f"s_and_b32 s{sTMP}, s{sID}, 7")
        A(f"s_lshl_b32 s{sTMP}, s{sTMP}, 10")
        A(f"s_add_u32 s{sTMP}, s{sTMP}, {off}")
        A(f"buffer_load_dwordx4 v[250:253], v254, {srd(srdF)}, s{sTMP} offen sc1")
        A("s_waitcnt vmcnt(0)")
        A(f"s_branch {lo}")
        A(f"{ok}:")
    def flag_store_wave(self, vm, off, s_idx):
        A = self.A
        A(f"s_lshl_b32 s{sTMP}, s{s_idx}, 2")
        A(f"s_add_u32 s{sTMP}, s{sTMP}, {off}")
        A(f"v_mov_b32 v249, s{sNONCE}")
        A(f"v_mov_b32 v254, 0")
        A("s_mov_b64 exec, 1")
        A(f"buffer_store_dword v249, v254, {srd(srdF)}, s{sTMP} offen sc1")
        A("s_mov_b64 exec, -1")
        vm.issue("flag")
    def signal(self, vm, off, s_idx):
        A = self.A
        A("s_waitcnt vmcnt(0)")
        A("s_barrier")
        vm.q = []
        self.flag_store_all(vm, off, s_idx)
    def poll_issue(self, vm, off):
        A = self.A
        A(f"v_and_b32 v254, 63, v0")
        A(f"v_lshlrev_b32 v254, 4, v254")
        A(f"s_mov_b32 s{sTMP}, {off}")
        A(f"buffer_load_dwordx4 v[250:253], v254, {srd(srdF)}, s{sTMP} offen sc1")
        vm.issue("poll")
    def poll_check(self, vm, off):
        A = self.A
        lo, ok = A.label("w"), A.label("wok")
        A(f"s_waitcnt vmcnt({vm.wait({'poll'})})")
        A(f"s_mov_b32 s{sSPIN}, 0")
        A(f"{lo}:")
        for k in range(4): A(f"v_xor_b32 v{250+k}, s{sNONCE}, v{250+k}")
        A(f"v_or3_b32 v250, v250, v251, v252")
        A(f"v_or_b32 v250, v250, v253")
        A(f"v_cmp_ne_u32 vcc, 0, v250")
        A(f"s_cbranch_vccz {ok}")
        A(f"s_add_u32 s{sSPIN}, s{sSPIN}, 1")
        A(f"s_cmp_gt_u32 s{sSPIN}, {SPIN_MAX}")
        A(f"s_cbranch_scc1 {ok}")
        A("s_sleep 4")
        A(f"s_mov_b32 s{sTMP}, {off}")
        A(f"buffer_load_dwordx4 v[250:253], v254, {srd(srdF)}, s{sTMP} offen sc1")
        A("s_waitcnt vmcnt(0)")
        A(f"s_branch {lo}")
        A(f"{ok}:")
    def wait_all(self, vm, off):
        self.poll_issue(vm, off); self.poll_check(vm, off)
    def wait_idx(self, vm, off, v_idx_code):
        A = self.A
        lo, ok = A.label("w"), A.label("wok")
        v_idx_code()
        A(f"s_mov_b32 s{sSPIN}, 0")
        A(f"s_mov_b32 s{sTMP}, {off}")
        A(f"{lo}:")
        A(f"buffer_load_dword v250, v254, {srd(srdF)}, s{sTMP} offen sc1")
        A("s_waitcnt vmcnt(0)")
        A(f"v_cmp_ne_u32 vcc, s{sNONCE}, v250")
        A(f"s_cbranch_vccz {ok}")
        A(f"s_add_u32 s{sSPIN}, s{sSPIN}, 1")
        A(f"s_cmp_gt_u32 s{sSPIN}, {SPIN_MAX}")
        A(f"s_cbranch_scc1 {ok}")
        A("s_sleep 4")
        A(f"s_branch {lo}")
        A(f"{ok}:")
        vm.q = []

    def body(self):
        A = self.A; self.role = "gemm"; self.ns = 0
        vm = VM()
        TA2 = self.ta2
        self.stamp("start")
        X = self.exp.split("+")
        aux.setup(A, pAX, pWR, pWI, pWD, pGW, pWS)
        issued = set()
        def iss(*ks):
            for k in ks:
                f1.issue(A, vm, *k); issued.add(k)
        def mid():
            if "nopf" not in X and "pflate" not in X and "pfmid" not in X and "pf2" not in X and "pf0" not in X: f1.l2_prefetch(A, vm, pWG, pWU)
        if "pf0" in X: f1.l2_prefetch(A, vm, pWG, pWU)
        aux.issue_loads(A, vm, mid, wd=("wdlate" not in X and "wdmid" not in X and "wd2" not in X and "wd3" not in X))
        self.stamp("issued")
        aux.consts_a1(A)
        if self.lean == 0:
            f1.setup(A, sID, pAX, pWG, pWU, pWS)
            aux.setup_out(A, pWS)
            f1.setup_reads(A)
            A(aux.consts_a2_fill())
            aux.phase1_pre(A)
        if "wdmid" in X: aux.issue_wd(A, vm)
        if "pfmid" in X: f1.l2_prefetch(A, vm, pWG, pWU)
        self.stamp("consts")
        aux.a1_core(A, vm)
        self.stamp("core")
        if self.lean >= 1:
            A('s_waitcnt lgkmcnt(0)')
            aux.setup_out(A, pWS)
            aux.phase1_pre(A)
            f1.setup(A, sID, pAX, pWG, pWU, pWS)
            f1.setup_reads(A)
            if self.lean == 1: A(aux.consts_a2_fill())
        if "wdlate" in X: aux.issue_wd(A, vm)
        if "pflate" in X: f1.l2_prefetch(A, vm, pWG, pWU)
        A("s_waitcnt lgkmcnt(0)")
        A(f"s_add_u32 s{sNONCE}, s{sNONCE}, 1")
        A(f"s_waitcnt vmcnt({vm.wait({'ws', 'gw'} | (set() if ('wdlate' in X or 'wdmid' in X or 'wd2' in X or 'wd3' in X) else {'wd'}))})")
        if "pf2" in X: f1.l2_prefetch(A, vm, pWG, pWU)
        if "wd2" in X: aux.issue_wd(A, vm)
        self.stamp("wswait")
        aux.a1_elem(A, vm)
        self.stamp("a1")
        if "nop1" not in self.exp and "nopreps" not in self.exp:
            iss(("x", 0), ("w", 0))
            self.stamp("x0w0")
            aux.wprep(A, vm)
            self.stamp("wp")
            iss(("w", 1))
            if "wdlate" in X or "wdmid" in X:
                A(f"s_waitcnt vmcnt({vm.wait({'wd'})})")
                A("s_barrier")
            if self.twt < 0: aux.wtprep(A, vm)
            self.stamp("wprep")
            iss(("x", 1), ("w", 2))
            if self.pro >= 1 and f1.NWS == 6: iss(("w", 3))
            if self.pro >= 2: iss(("x", 2))
            aux.gate(A, vm)

        if 'nop1' in self.exp: A('s_waitcnt vmcnt(0)')
        self.stamp("preps")
        class Hooks(dict):
            def __setitem__(self, k, fn):
                old = self.get(k)
                dict.__setitem__(self, k, fn if old is None else (lambda o=old, n=fn: (o(), n())))
        class Tags(dict):
            def __setitem__(self, k, tags):
                dict.__setitem__(self, k, set(self.get(k, ())) | set(tags))
        after, pause, extra, before = Hooks(), Hooks(), Tags(), Hooks()
        extra[self.tf1] = {'st'}
        after[self.tf1] = lambda: (self.arrive(vm, 0), self.stamp("flag1"), aux.issue_wd(A, vm) if 'wd3' in X else None)
        if self.xpf is not None: after[self.xpf] = lambda: f1.x_prefetch(A, vm)
        if self.dyn:
            TT = TA2 - 6
            def t_take():
                A.srd(4, pDBG, 256)
                A(f"s_and_b32 s{sTMP}, s{sID}, 7")
                A(f"s_lshl_b32 s{sTMP}, s{sTMP}, 5")
                A(f"s_cmp_eq_u32 s20, 0")
                A(f"s_cselect_b32 s{sTMP}, s{sTMP}, 0x40000000")
                A(f"v_mov_b32 v248, 1")
                A(f"v_mov_b32 v247, 0")
                A("s_mov_b64 exec, 1")
                A(f"buffer_atomic_add v248, v247, s[4:7], s{sTMP} offen sc0 sc1")
                A("s_mov_b64 exec, -1")
                vm.issue("tick")
            def t_share():
                A(f"s_lshl_b32 s{sTMP}, s20, 6")
                A(f"s_add_u32 s{sTMP}, s{sTMP}, {aux.L_GW}")
                A(f"v_mov_b32 v247, s{sTMP}")
                A("s_mov_b64 exec, 1")
                A("ds_write_b32 v247, v248")
                A("s_mov_b64 exec, -1")
                A("s_waitcnt lgkmcnt(0)")
            def t_read():
                A(f"v_mov_b32 v247, {aux.L_GW}")
                A("ds_read_b32 v248, v247")
            def t_use():
                A(f"v_readfirstlane_b32 s{aux.R.sa2}, v248")
                A(f"s_lshl_b32 s{aux.R.sa2}, s{aux.R.sa2}, 3")
                A(f"s_and_b32 s{sTMP}, s{sID}, 7")
                A(f"s_add_u32 s{aux.R.sa2}, s{aux.R.sa2}, s{sTMP}")
            after[TT] = t_take
            extra[TT+2] = {"tick"}
            before[TT+2] = t_share
            after[TT+2] = t_read
            after[TT+3] = t_use
        else:
            after[0] = lambda: A(f"s_mov_b32 s{aux.R.sa2}, s{sID}")
        def a2_issue():
            A(f"s_or_b32 s{sTMP}, s{sID}, s20")
            A(f"s_cmp_eq_u32 s{sTMP}, 0")
            A(f"s_cselect_b32 s{sTMP}, 0, 0x40000000")
            A(f"v_mov_b32 v249, s{sNONCE}")
            A(f"v_mov_b32 v254, 0")
            A("s_mov_b64 exec, 1")
            A(f"buffer_store_dword v249, v254, {srd(srdF)}, s{sTMP} offen sc1")
            A("s_mov_b64 exec, -1")
            vm.issue("flag")
            self.stamp("dep1")
            aux.a2_loads(A, vm, pWS)
            if not self.w1: f2.setup_w(A, sID, pWS)
        NW_A2 = self.nwa2
        watoms = f2.w_loads(range(NW_A2))
        def a2_run():
            lab, lab2 = A.label("noa2"), A.label("a2d")
            self.stamp("a2 start")
            A(f"s_waitcnt vmcnt({vm.wait({'a2in'})})")
            A(f"s_cmp_ge_u32 s{aux.R.sa2}, {0 if 'noa2' in self.exp else 162}")
            A(f"s_cbranch_scc1 {lab}")
            v2 = VM()
            def st2(T, n):
                if self.stamps and "a2fine" in self.exp:
                    keep = self.A; self.A = T; self.stamp(n); self.A = keep
            aux.a2(A, v2, pWS, waited=True, weave=list(watoms), stamp=st2)
            A(f"s_branch {lab2}")
            A(f"{lab}:")
            for ins in watoms: A(ins)
            A(f"{lab2}:")
            for k in range(len(watoms)): vm.issue(f"W{k//5}")
            vm.mark('zst')
            self.stamp("a2 end")
        weave = None
        if self.w1:
            T0 = self.w1
            after[T0-6] = lambda: self.cpoll_issue(vm, 0)
            before[T0-3] = lambda: self.cpoll_check(vm, 0)
            after[T0-3] = a2_issue
            extra[T0] = {'a2in'}
            def skip(label):
                A(f"s_cmp_ge_u32 s{aux.R.sa2}, 162")
                A(f"s_cbranch_scc1 {label}")
            weave = dict(ts=T0, te=T0+6, bundles=aux.a2_bundles(pWS, T0), skip=skip, mark='zst')
            if T0 + 8 <= 18:
                extra[T0+8] = {'zst', 'gst'}
                after[T0+8] = lambda: self.arrive(vm, 1)
        else:
            after[TA2-3] = lambda: self.cpoll_issue(vm, 0)
            before[TA2-1] = lambda: self.cpoll_check(vm, 0)
            after[TA2-1] = a2_issue
            pause[TA2] = a2_run
            if self.twt >= 0:
                if 'wd2' in X or 'wd3' in X: extra[self.twt] = set(extra.get(self.twt, ())) | {'wd'}
                pause[self.twt] = lambda: aux.wtprep(A, vm, tag='wtst')
                extra[self.twt + 3] = {'wtst'}
                after[self.twt + 3] = lambda: self.arrive(vm, 2)
                after[TA2-1] = lambda: self.cpoll_issue(vm, 2)
                before[TA2] = lambda: self.cpoll_check(vm, 2)
            extra[TA2+self.d2] = {'zst', 'gst'}
            after[TA2+self.d2] = lambda: self.arrive(vm, 1)
        if self.dep2at < 0:
            after[16] = lambda: self.cpoll_issue(vm, 1)
            before[18] = lambda: self.cpoll_check(vm, 1)
        if "fine" in self.exp:
            for t in range(0, 19, 2):
                def mk(t, old):
                    def f():
                        if old: old()
                        self.stamp(f"bar{t}")
                    return f
                after[t] = (lambda t=t: self.stamp(f"bar{t}"))
        fl = aux.consts_a2_fill() if self.lean == 2 else []
        f1.main(A, vm, issued, fill=fl, after_barrier=after, pause=pause, late=[k for k in ([("w", 3), ("x", 2), ("w", 4), ("w", 5)] if f1.NWS == 6 else [("w", 3), ("x", 3), ("w", 4)]) if k not in issued], extra_need=extra, before_barrier=before, weave=weave)
        if self.w1 and self.w1 + 8 > 18:
            A(f"s_waitcnt vmcnt({vm.wait({'zst', 'gst'})})")
            A("s_barrier")
            self.arrive(vm, 1)
        self.stamp("f1 loop end")
        if self.w1: f2.setup_w(A, sID, pWS)
        f2.setup(A, sID, pWS, pOUT)
        if self.dep2at < 0:
            self.stamp("dep2")
            aux.a3_loads(A, vm, pWS)
        nw0 = 0 if self.w1 else self.nwa2
        atoms = [(ins, f"W{nw0 + k//5}") for k, ins in enumerate(f2.w_loads(range(nw0, 10)))]
        def put(n):
            for _ in range(n):
                if atoms:
                    ins, tag = atoms.pop(0); A(ins); vm.issue(tag)
        def btw(k):
            if self.dep2at == 9:
                if k == 3: self.cpoll_issue(vm, 1)
                if self.w1: put(self.wepi)
                return
            if self.dep2at < 0 or k > self.dep2at: put(self.wput)
            if self.dep2at >= 0:
                if k == max(0, self.dep2at - 2): self.cpoll_issue(vm, 1)
                if k == self.dep2at:
                    self.cpoll_check(vm, 1)
                    A("s_barrier")
                    self.stamp("dep2")
                    aux.a3_loads(A, vm, pWS)
        f1.epilogue(A, vm, pWS, between=btw)
        self.stamp("f1 epi")
        A(f"s_lshl_b32 s{sTMP}, s{f1.R.smt}, 1")
        A(f"s_lshr_b32 s99, s20, 1")
        A(f"s_add_u32 s{sTMP}, s{sTMP}, s99")
        A(f"s_lshl_b32 s{sTMP}, s{sTMP}, 5")
        A(f"s_lshl_b32 s99, s{f1.R.sft}, 1")
        A(f"s_add_u32 s{sTMP}, s{sTMP}, s99")
        A(f"s_and_b32 s99, s20, 1")
        A(f"s_add_u32 s99, s{sTMP}, s99")
        if self.dep2at == 9:
            A(f"s_waitcnt vmcnt({vm.wait({'hst'})})")
            self.flag_store_wave(vm, OFF_FLAG3, 99)
            self.cpoll_check(vm, 1)
            A("s_barrier")
            self.stamp("dep2")
            aux.a3_loads(A, vm, pWS)
            put(self.wput*3)
        def extra(rnd):
            if rnd > 0: put(self.wputr)
            if rnd == 1 and self.dep2at != 9:
                A(f"s_waitcnt vmcnt({vm.wait({'hst'})})")
                self.flag_store_wave(vm, OFF_FLAG3, 99)
        aux.a3_elem(A, vm, extra)
        put(100)
        A("s_barrier")
        self.stamp("a3 elem")
        f2.setup2(A, pWS, pOUT)
        def poll3_issue():
            A(f"v_and_b32 v254, 31, v0")
            A(f"s_lshl_b32 s{sTMP}, s{f2.R.sT}, 5")
            A(f"v_add_u32 v254, s{sTMP}, v254")
            A(f"v_lshlrev_b32 v254, 2, v254")
            A(f"s_mov_b32 s{sTMP}, {OFF_FLAG3}")
            A(f"buffer_load_dword v250, v254, {srd(srdF)}, s{sTMP} offen sc1")
            vm.issue("poll3")
        def check_one(tag, off):
            lo, ok = A.label("w"), A.label("wok")
            A(f"s_waitcnt vmcnt({vm.wait({tag})})")
            A(f"s_mov_b32 s{sSPIN}, 0")
            A(f"{lo}:")
            A(f"v_cmp_ne_u32 vcc, s{sNONCE}, v250")
            A(f"s_cbranch_vccz {ok}")
            A(f"s_add_u32 s{sSPIN}, s{sSPIN}, 1")
            A(f"s_cmp_gt_u32 s{sSPIN}, {SPIN_MAX}")
            A(f"s_cbranch_scc1 {ok}")
            A("s_sleep 4")
            A(f"s_mov_b32 s{sTMP}, {off}")
            A(f"buffer_load_dword v250, v254, {srd(srdF)}, s{sTMP} offen sc1")
            A("s_waitcnt vmcnt(0)")
            A(f"s_branch {lo}")
            A(f"{ok}:")
        npre = self.npre
        if self.early3:
            poll3_issue()
            def mid():
                check_one("poll3", OFF_FLAG3)
                for i in range(npre):
                    A(f2.h_loads(i)); vm.issue(f"h{i}", 4)
            aux.a3_core(A, vm, pWS, mid=mid)
        else:
            aux.a3_core(A, vm, pWS, mid=poll3_issue)
        for k, ins in enumerate(f2.w_loads((10, 11))):
            A(ins); vm.issue(f"W{10 + k//5}")
        self.stamp("a3 core")
        if not self.early3:
            check_one("poll3", OFF_FLAG3)
            npre = 0
        self.stamp("dep3")
        def flag4():
            A(f"s_waitcnt vmcnt({vm.wait({'gast'})})")
            A(f"s_lshl_b32 s99, s{sID}, 2")
            A(f"s_add_u32 s99, s99, s20")
            self.flag_store_wave(vm, OFF_FLAG4, 99)
        def code4():
            A(f"v_and_b32 v254, 63, v0")
            A(f"s_and_b32 s{sTMP}, s{f2.R.sT}, 15")
            A(f"s_lshl_b32 s{sTMP}, s{sTMP}, 6")
            A(f"v_add_u32 v254, s{sTMP}, v254")
            A(f"v_lshlrev_b32 v254, 2, v254")
        def h_issue4():
            code4()
            A(f"s_mov_b32 s{sTMP}, {OFF_FLAG4}")
            A(f"buffer_load_dword v250, v254, {srd(srdF)}, s{sTMP} offen sc1")
            vm.issue("poll4")
        def h_check4():
            check_one("poll4", OFF_FLAG4)
            f2.final_loads(A, vm)
        hk = {1: flag4, 6: h_issue4, 10: h_check4}
        if "f2fine" in self.exp:
            for i_ in (0, 2, 4, 8, 11):
                hk[i_] = (lambda o=hk.get(i_), i_=i_: ((o() if o else None), self.stamp(f"f2s{i_}")))
        f2.main(A, vm, hooks=hk, pre_issued=npre)
        self.stamp("f2 loop end")
        f2.epilogue(A, vm)
        self.stamp("end")
        self.dump_stamps()
        A("s_endpgm")

    def build(self):
        A = self.A
        A(f"s_cmp_ge_u32 s2, 256")
        A(f"s_cbranch_scc1 K_exit")
        A(f"s_load_dwordx16 s[68:83], s[0:1], 0")
        A(f"s_load_dwordx4 s[84:87], s[0:1], 64")
        A(f"s_load_dwordx2 s[88:89], s[0:1], 80")
        if self.cpfirst:
            if self.codepf:
                A("s_getpc_b64 s[4:5]")
                A("K_pc:")
                A("s_and_b32 s5, s5, 0xffff")
                A("s_mov_b32 s6, K_exit-K_pc")
                A("s_mov_b32 s7, 0x20000")
                A("v_lshlrev_b32 v4, 7, v0")
                for k in range(self.codepf):
                    A(f"s_mov_b32 s28, {32768*k}")
                    A(f"buffer_load_dword v229, v4, s[4:7], s28 offen")

        if self.stamps: A("v_mov_b32 v255, 0")
        A(f"s_mov_b32 s{sID}, s2")
        A(f"v_lshrrev_b32 v4, 6, v0")
        A("s_nop 0")
        A(f"v_readfirstlane_b32 s20, v4")
        A("s_waitcnt lgkmcnt(0)")
        if self.wsbase:
            A(f"s_add_u32 s{pWS}, s{pWS}, {hex(self.wsbase)}")
            A(f"s_addc_u32 s{pWS+1}, s{pWS+1}, 0")
        A(f"s_load_dword s{sNONCE}, s[{pWS}:{pWS+1}], {OFF_EPOCH}")
        if not self.cpfirst:
            if self.codepf:
                A("s_getpc_b64 s[4:5]")
                A("K_pc:")
                A("s_and_b32 s5, s5, 0xffff")
                A("s_mov_b32 s6, K_exit-K_pc")
                A("s_mov_b32 s7, 0x20000")
                A("v_lshlrev_b32 v4, 7, v0")
                for k in range(self.codepf):
                    A(f"s_mov_b32 s28, {32768*k}")
                    A(f"buffer_load_dword v229, v4, s[4:7], s28 offen")
        if self.tlbpf:
            A.srd(4, pWS, 28 << 20)
            A("v_and_b32 v4, 63, v0")
            A("v_lshlrev_b32 v4, 19, v4")
            A("v_add_u32 v4, 0x7ff80, v4")
            A(f"buffer_load_dword v229, v4, s[4:7], 0 offen")
            A.srd(4, pOUT, 2048*640*2)
            A("v_and_b32 v4, 63, v0")
            A("v_lshlrev_b32 v4, 16, v4")
            A(f"buffer_load_dword v229, v4, s[4:7], 0 offen")
        A.srd(srdF, pWS, SZ_FLAGS)
        self.body()
        A("K_exit:")
        A("s_endpgm")
        if os.environ.get('NOST'):
            out = []
            for l in A.l:
                if 'buffer_store' in l and ('s[36:39]' in l or 's[48:51]' in l or 's[56:59]' in l): l = '  s_nop 0'
                out.append(l)
            A.l = out
        lines, n = hazard.fix(A.l)
        return lines

HEADER = open(os.path.join(os.path.dirname(os.path.abspath(__file__)), "header.txt")).read()
def full_source(**kw):
    g = Gen(**kw)
    body = "\n".join(g.build())
    src = HEADER + f"""; @launch grid=(256,1,1) block=(256,1,1) lds=163840
.amdgcn_target "amdgcn-amd-amdhsa--gfx950"
.text
.globl {NAME}
.p2align 8
.type {NAME},@function
{NAME}:
{body}
.section .rodata,"a"
.p2align 6
.amdhsa_kernel {NAME}
  .amdhsa_next_free_vgpr 512
  .amdhsa_next_free_sgpr 102
  .amdhsa_accum_offset 256
  .amdhsa_group_segment_fixed_size 0
  .amdhsa_kernarg_size 88
  .amdhsa_user_sgpr_count 2
  .amdhsa_user_sgpr_kernarg_segment_ptr 1
  .amdhsa_system_sgpr_workgroup_id_x 1
.end_amdhsa_kernel
"""
    return src, g
if __name__ == "__main__":
    kw = {}
    for o in sys.argv[2:]:
        k, v_ = o.split("="); kw[k] = eval(v_)
    src, g = full_source(**kw)
    out = sys.argv[1] if len(sys.argv) > 1 else "gated_mix__spectral_gfnet__swiglu_ffn__prompt.s"
    open(out, "w").write(src)
    print("wrote", out, len(src), "bytes")
```

```python
from asmlib import *
from layout import *
import struct
def fb(x): return hex(struct.unpack('<I', struct.pack('<f', x))[0])

import os
SC = os.environ.get('AUXSC', ' sc1')
NOST = os.environ.get('NOST')
PK2 = True
class R:
    vl = 1
    vn = 2
    vh = 3
    TWr, TWi = 160, 176
    t3r, t3i = 192, 198
    T2r, T2i = 0, 16
    CRe, CIm, F10 = 216, 232, 248
    sw = 20
    sc = 98
    sa2 = 63
    srg = 3
    srdAX, srdX1, srdWR, srdWI, srdWF, srdWD, srdWT, srdGW, srdG, srdFT, srdZ = 32, 36, 40, 44, 48, 52, 56, 60, 64, 4, 4
    st = 28
    st2 = 99

import f1 as _f1
AUXB   = _f1.WBASE + _f1.NWS*_f1.WSLOT
L_XR   = AUXB
L_GW   = AUXB + 12288
if _f1.NXS == 4:
    L_WS = 3*_f1.XSLOT
    L_WD = AUXB + 14336
else:
    L_WS = AUXB + 14336
    L_WD = AUXB + 32768
L_Z    = _f1.WBASE + (_f1.NWS-2)*_f1.WSLOT
ZROW, ZWAVE = 2560, 5184
L_X    = AUXB
L_F    = AUXB + 16384

def setup(A, pAX, pWR, pWI, pWD, pGW, pWS):
    A.c("---- aux setup ----")
    A(f"v_and_b32 v{R.vl}, 63, v0")
    A(f"v_and_b32 v{R.vn}, 31, v{R.vl}")
    A(f"v_lshrrev_b32 v{R.vh}, 5, v{R.vl}")
    A.srd(R.srdAX, pAX, 2048*640*2)

def setup_out(A, pWS):
    A.srd(R.srdX1, pWS, SZ_X1, OFF_X1)
    A.srd(R.srdWF, pWS, SZ_WF, OFF_WF)
    A.srd(R.srdWT, pWS, SZ_WT, OFF_WT)
    A.srd(R.srdG, pWS, 8192, OFF_G)

XA = 16
def issue_wd(A, vm, pWD=80):
    st = R.st
    A.c("Wd tile DMA (workgroups >= 240 fall off the end of the buffer and get zeros)")
    A.srd(R.srdWD, pWD, 1536*640*2)
    A(f"s_mul_i32 s{st+2}, s{R.sc}, 52429")
    A(f"s_lshr_b32 s{st+2}, s{st+2}, 18")
    A(f"s_mul_i32 s{st+3}, s{st+2}, 5")
    A(f"s_sub_u32 s{st+3}, s{R.sc}, s{st+3}")
    A(f"s_lshl_b32 s{st}, s{st+2}, 5")
    A(f"s_lshl_b32 s{st+1}, s{R.sw}, 3")
    A(f"s_add_u32 s{st}, s{st}, s{st+1}")
    A(f"s_mul_i32 s{st}, s{st}, 1280")
    A(f"s_lshl_b32 s{st+1}, s{st+3}, 8")
    A(f"s_add_u32 s{st}, s{st}, s{st+1}")
    A(f"v_lshrrev_b32 v5, 4, v{R.vl}")
    A(f"v_mul_u32_u24 v5, 1280, v5")
    A(f"v_and_b32 v6, 15, v{R.vl}")
    A(f"v_lshl_add_u32 v5, v6, 4, v5")
    A(f"s_lshl_b32 s{st+1}, s{R.sw}, 11")
    A(f"s_add_u32 m0, s{st+1}, {L_WD}")
    A(f"v_add_u32 v6, {4*1280-1024}, v5")
    A(f"buffer_load_dwordx4 v5, {srd(R.srdWD)}, s{st} offen lds")
    A(f"buffer_load_dwordx4 v6, {srd(R.srdWD)}, s{st} offen offset:1024 lds")
    vm.issue('wd', 2)

def issue_loads(A, vm, mid=None, pWR=70, pWI=72, pWD=80, pGW=82, wd=True):
    st = R.st
    A.c("x rows: chunk i = 64j + l ; i<80 row s', i<160 row s'+1024, else out of range (zeros)")
    A(f"s_lshl_b32 s{st}, s{R.srg}, 2")
    A(f"s_add_u32 s{st}, s{st}, s{R.sw}")
    A(f"s_mul_i32 s{st}, s{st}, 1280")
    A(f"s_mul_i32 s{st+1}, s{R.sw}, 3072")
    A(f"s_add_u32 m0, s{st+1}, {L_XR}")
    A(f"v_lshlrev_b32 v4, 4, v{R.vl}")
    A(f"buffer_load_dwordx4 v4, {srd(R.srdAX)}, s{st} offen lds")
    A(f"v_add_u32 v5, {1024-1024}, v4")
    A(f"v_add_u32 v6, {1024*1280 - 256 - 1024}, v4")
    A(f"v_cmp_gt_u32 vcc, 16, v{R.vl}")
    A(f"v_cndmask_b32 v5, v6, v5, vcc")
    A(f"buffer_load_dwordx4 v5, {srd(R.srdAX)}, s{st} offen offset:1024 lds")
    A(f"v_add_u32 v5, {1024*1280 + 48*16 - 2048}, v4")
    A(f"v_mov_b32 v6, 0x40000000")
    A(f"v_cmp_gt_u32 vcc, 32, v{R.vl}")
    A(f"v_cndmask_b32 v5, v6, v5, vcc")
    A(f"buffer_load_dwordx4 v5, {srd(R.srdAX)}, s{st} offen offset:2048 lds")
    vm.issue('xr', 3)
    A.srd(R.srdWR, pWR, 2048*321*2)
    A.srd(R.srdWI, pWI, 2048*321*2)
    A.c("filter staging: rho=b&63 (rows 32 rho + e), cq=b>>6 ; wave: array = w>>1, rows 16(w&1) + i/12, chunk i%12")
    A(f"s_and_b32 s{st}, s{R.sc}, 63")
    A(f"s_lshl_b32 s{st}, s{st}, 5")
    A(f"s_and_b32 s{st+1}, s{R.sw}, 1")
    A(f"s_lshl_b32 s{st+1}, s{st+1}, 4")
    A(f"s_add_u32 s{st}, s{st}, s{st+1}")
    A(f"s_lshr_b32 s{st+1}, s{R.sc}, 6")
    A(f"s_mul_i32 s{st+1}, s{st+1}, 162")
    A(f"s_mul_i32 s{st+2}, s{R.sw}, 3072")
    A(f"s_add_u32 m0, s{st+2}, {L_WS}")
    A(f"s_cmp_lt_u32 s{R.sw}, 2")
    A(f"s_cselect_b32 s4, s{R.srdWR}, s{R.srdWI}")
    A(f"s_cselect_b32 s5, s{R.srdWR+1}, s{R.srdWI+1}")
    A(f"s_mov_b32 s6, {hex(2048*321*2)}")
    A(f"s_mov_b32 s7, 0x20000")
    for j in range(3):
        A(f"v_add_u32 v5, {64*j}, v{R.vl}")
        A(f"v_mul_u32_u24 v6, 5462, v5")
        A(f"v_lshrrev_b32 v6, 16, v6")
        A(f"v_mul_u32_u24 v7, 12, v6")
        A(f"v_sub_u32 v7, v5, v7")
        A(f"v_add_u32 v6, s{st}, v6")
        A(f"v_mul_u32_u24 v6, 642, v6")
        A(f"v_add_u32 v6, s{st+1}, v6")
        A(f"v_and_b32 v6, -16, v6")
        A(f"v_lshl_add_u32 v6, v7, 4, v6")
        if j: A(f"v_subrev_u32 v6, {1024*j}, v6")
        A(f"buffer_load_dwordx4 v6, s[4:7], 0 offen" + (f" offset:{1024*j}" if j else "") + " lds")
    vm.issue('ws', 3)
    if wd: issue_wd(A, vm, pWD)
    A.c("gate_w: 80 chunks ; wave w loads chunks 64w.. (out of range -> zeros)")
    A.srd(R.srdGW, pGW, 640*2)
    A(f"s_lshl_b32 s{st}, s{R.sw}, 10")
    A(f"s_min_u32 s{st}, s{st}, 1024")
    A(f"s_add_u32 m0, s{st}, {L_GW}")
    A(f"buffer_load_dwordx4 v4, {srd(R.srdGW)}, s{st} offen lds")
    vm.issue('gw', 1)
    if mid: mid()

def consts_a1(A):
    A.c("constants: F32 interleaved, tw320, F10")
    n, h = R.vn, R.vh
    A(f"v_cvt_f32_u32 v4, v{n}")
    A(f"v_cvt_f32_u32 v5, v{h}")
    A(f"v_mul_f32 v6, {fb(1/32)}, v4")
    A(f"v_mul_f32 v7, 4.0, v5")
    A(f"v_mul_f32 v8, v7, v6")
    for i in range(4):
        for q in range(4):
            A(f"v_fmamk_f32 v9, v6, {fb(float(8*i+q))}, v8")
            A(f"v_fract_f32 v9, v9")
            A(f"v_sin_f32 v10, v9")
            A(f"v_cos_f32 v11, v9")
            A("s_nop 0")
            A(f"v_cvt_pk_bf16_f32 v12, v11, v10")
            A(f"v_cvt_pk_bf16_f32 v13, -v10, v11")
            A(f"v_accvgpr_write_b32 a{R.CRe+4*i+q}, v12")
            A(f"v_accvgpr_write_b32 a{R.CIm+4*i+q}, v13")
    A(f"v_mul_f32 v6, {fb(1/320)}, v4")
    A(f"v_mul_f32 v8, v7, v6")
    for idx, (e, j) in enumerate([(0,0),(0,1),(0,2),(0,3),(1,0),(1,1)]):
        A(f"v_fmamk_f32 v9, v6, {fb(float(8*e+j))}, v8")
        A(f"v_cos_f32 v{R.t3r+idx}, v9")
        A(f"v_sin_f32 v{R.t3i+idx}, -v9")
    A(f"v_lshrrev_b32 v9, 3, v{n}")
    A(f"v_lshlrev_b32 v9, 2, v9")
    A(f"v_bfe_u32 v10, v{n}, 2, 1")
    A(f"v_lshl_add_u32 v9, v10, 1, v9")
    A(f"v_bfe_u32 v10, v{n}, 1, 1")
    A(f"v_add_u32 v9, v9, v10")
    A(f"v_cmp_gt_u32 s[{R.st}:{R.st+1}], 10, v9")
    A(f"v_cvt_f32_u32 v9, v9")
    A(f"v_mul_f32 v9, {fb(0.1)}, v9")
    A(f"v_and_b32 v10, 1, v{n}")
    A(f"v_cvt_f32_u32 v10, v10")
    A(f"v_mul_f32 v10, 0.25, v10" if False else f"v_mul_f32 v10, {fb(0.25)}, v10")
    A(f"v_fma_f32 v10, v7, v9, v10")
    A(f"v_cmp_eq_u32 vcc, 0, v{h}")
    A(f"s_and_b64 s[{R.st+2}:{R.st+3}], vcc, s[{R.st}:{R.st+1}]")
    for e in range(2):
        for q in range(4):
            d = R.F10 + 4*e + q
            if e == 1 and q >= 2:
                A(f"v_accvgpr_write_b32 a{d}, 0"); continue
            A(f"v_fmamk_f32 v11, v9, {fb(float(8*e+q))}, v10")
            A(f"v_fract_f32 v11, v11")
            A(f"v_cos_f32 v12, v11")
            A(f"v_sin_f32 v13, v11")
            A("s_nop 0")
            A(f"v_cvt_pk_bf16_f32 v12, v12, v13")
            m = R.st if e == 0 else R.st+2
            A(f"v_cndmask_b32 v12, 0, v12, s[{m}:{m+1}]")
            A(f"v_accvgpr_write_b32 a{d}, v12")

def consts_a2_fill():
    n, h = R.vn, R.vh
    t0, t1, t2, t3, t4, t5 = 243, 244, 245, 246, 247, 248
    L = [f"v_cvt_f32_u32 v{t0}, v{n}", f"v_cvt_f32_u32 v{t1}, v{h}", f"v_mul_f32 v{t1}, 4.0, v{t1}",
         f"v_mul_f32 v{t2}, {fb(1/1024)}, v{t0}", f"v_mul_f32 v{t3}, v{t1}, v{t2}"]
    for i in range(4):
        for j in range(4):
            L += [f"v_fmamk_f32 v{t4}, v{t2}, {fb(float(8*i+j))}, v{t3}",
                  f"v_cos_f32 v{R.TWr+4*i+j}, v{t4}", f"v_sin_f32 v{R.TWi+4*i+j}, -v{t4}"]
    return L

def cmulp(A, d, a, c, t, conj_out=False):
    A(f"v_pk_mul_f32 v[{t}:{t+1}], v[{a}:{a+1}], v[{c}:{c+1}] op_sel:[1,1] op_sel_hi:[1,0]")
    A(f"v_pk_fma_f32 v[{d}:{d+1}], v[{a}:{a+1}], v[{c}:{c+1}], v[{t}:{t+1}] op_sel:[0,0,0] op_sel_hi:[0,1,1] neg_lo:[0,0,1]")

def cmul(A, dr, di, ar, ai, br, bi, t):
    A(f"v_mul_f32 v{t}, v{ai}, v{bi}")
    A(f"v_mul_f32 v{di}, v{ai}, v{br}") if di == ai else A(f"v_mul_f32 v{di}, v{ai}, v{br}")
    A(f"v_fmac_f32 v{di}, v{ar}, v{bi}")
    A(f"v_fma_f32 v{dr}, v{ar}, v{br}, -v{t}")

D1r, D1i, PK, D2 = 32, 48, 96, (32, 48)
def fft320_core(A, xa=XA, tmp=(4, 6), mid=None):
    for i in range(4):
        c = "0" if i == 0 else f"v[{D1r}:{D1r+15}]"
        A(f"v_mfma_f32_32x32x16_bf16 v[{D1r}:{D1r+15}], v[{xa+4*i}:{xa+4*i+3}], a[{R.CRe+4*i}:{R.CRe+4*i+3}], {c}")
        c = "0" if i == 0 else f"v[{D1i}:{D1i+15}]"
        A(f"v_mfma_f32_32x32x16_bf16 v[{D1i}:{D1i+15}], v[{xa+4*i}:{xa+4*i+3}], a[{R.CIm+4*i}:{R.CIm+4*i+3}], {c}")
    for r in range(2):
        A(f"v_mov_b32 v{PK+8*r+6}, 0")
        A(f"v_mov_b32 v{PK+8*r+7}, 0")
    if mid: mid()
    t0, t1 = tmp
    for r in range(2):
        for idx, (e, j) in ((0, (0, 0)), (2, (0, 2)), (4, (1, 0))):
            reg = 4*(2*r+e) + j
            ar, ai = D1r+reg, D1i+reg
            tr, ti = R.t3r+idx, R.t3i+idx
            A(f"v_pk_mul_f32 v[{t0}:{t0+1}], v[{ai}:{ai+1}], v[{ti}:{ti+1}]")
            A(f"v_pk_mul_f32 v[{t1}:{t1+1}], v[{ai}:{ai+1}], v[{tr}:{tr+1}]")
            A(f"v_pk_fma_f32 v[{t0}:{t0+1}], v[{ar}:{ar+1}], v[{tr}:{tr+1}], v[{t0}:{t0+1}] neg_lo:[0,0,1] neg_hi:[0,0,1]")
            A(f"v_pk_fma_f32 v[{t1}:{t1+1}], v[{ar}:{ar+1}], v[{ti}:{ti+1}], v[{t1}:{t1+1}]")
            A(f"v_cvt_pk_bf16_f32 v{PK+8*r+4*e+j}, v{t0}, v{t1}")
            A(f"v_cvt_pk_bf16_f32 v{PK+8*r+4*e+j+1}, v{t0+1}, v{t1+1}")
    for r in range(2):
        for e in range(2):
            c = "0" if e == 0 else f"v[{D2[r]}:{D2[r]+15}]"
            A(f"v_mfma_f32_32x32x16_bf16 v[{D2[r]}:{D2[r]+15}], a[{R.F10+4*e}:{R.F10+4*e+3}], v[{PK+8*r+4*e}:{PK+8*r+4*e+3}], {c}")

def a1_core(A, vm):
    st = R.st
    A.c("---- A1 core ----")
    A(f"s_waitcnt vmcnt({vm.wait({'xr'})})")
    A(f"v_bfe_u32 v4, v{R.vl}, 4, 1")
    A(f"v_mul_u32_u24 v4, 1280, v4")
    A(f"v_and_b32 v5, 15, v{R.vl}")
    A(f"v_lshl_add_u32 v4, v5, 2, v4")
    A(f"v_mul_u32_u24 v5, 160, v{R.vh}")
    A(f"s_mul_i32 s{st}, s{R.sw}, 3072")
    A(f"s_add_u32 s{st}, s{st}, {L_XR}")
    A(f"v_add3_u32 v4, v4, v5, s{st}")
    for i in range(4):
        for q in range(4):
            A(f"ds_read_b32 v{XA+4*i+q}, v4 offset:{320*i+40*q}")
    A("s_waitcnt lgkmcnt(0)")
    fft320_core(A)
    A(f"s_mul_i32 s{st}, s{R.sw}, {ZWAVE}")
    A(f"s_add_u32 s{st}, s{st}, {L_Z}")
    A(f"v_lshl_add_u32 v4, v{R.vh}, 6, v{R.vn}")
    A(f"v_lshl_add_u32 v4, v4, 3, s{st}")
    for i in range(3):
        if i == 2: A("s_mov_b64 exec, 0xffffffff")
        for r in range(2):
            for jj in range(2):
                d = D2[r] + 4*i + 2*jj
                A(f"ds_write_b64 v4, v[{d}:{d+1}] offset:{r*ZROW + (128*i + 32*jj)*8}")
    A("s_mov_b64 exec, -1")

P_AP, P_AQ0, P_AQ, P_ST0, P_ST2 = 112, 113, 114, 115, 116
P_C = 118
P_TAU = 124
P_WA = 126
P_WS = 130
P_WD = 228
P_GA, P_GB = 135, 136
def phase1_pre(A):
    st = R.st
    A.c("---- phase 1: addresses and constants prepared ahead ----")
    A(f"v_and_b32 v4, 3, v0")
    A(f"v_mul_u32_u24 v5, {ZWAVE}, v4")
    A(f"v_add_u32 v5, {L_Z}, v5")
    A(f"v_lshrrev_b32 v7, 2, v0")
    A(f"v_lshl_add_u32 v{P_AP}, v7, 3, v5")
    A(f"v_sub_u32 v8, 192, v7")
    A(f"v_lshl_add_u32 v{P_AQ}, v8, 3, v5")
    A(f"v_add_u32 v9, {128*8}, v{P_AQ}")
    A(f"v_cmp_eq_u32 vcc, 0, v7")
    A(f"v_cndmask_b32 v{P_AQ0}, v9, v5, vcc")
    A(f"s_lshl_b32 s{st}, s{R.srg}, 2")
    A(f"v_add_u32 v6, s{st}, v4")
    A(f"v_cvt_f32_u32 v9, v6")
    A(f"v_mul_f32 v9, {fb(1/2048)}, v9")
    A(f"v_cos_f32 v{P_TAU}, v9")
    A(f"v_sin_f32 v{P_TAU+1}, -v9")
    A(f"v_lshrrev_b32 v10, 1, v7")
    A(f"v_lshlrev_b32 v10, 15, v10")
    A(f"v_and_b32 v11, 1, v7")
    A(f"v_lshl_add_u32 v10, v11, 3, v10")
    A(f"v_lshl_add_u32 v{P_ST0}, v6, 4, v10")
    A(f"v_mov_b32 v11, 0x40000000")
    A(f"v_cmp_gt_u32 vcc, 34, v7")
    A(f"v_cndmask_b32 v{P_ST2}, v11, v{P_ST0}, vcc")
    A(f"v_cvt_f32_u32 v9, v7")
    for rnd in range(3):
        A(f"v_add_f32 v10, {fb(64.0*rnd)}, v9")
        A(f"v_mul_f32 v10, {fb(1/640)}, v10")
        A(f"v_sin_f32 v{P_C+2*rnd}, -v10")
        A(f"v_cos_f32 v10, v10")
        A(f"v_sub_f32 v{P_C+2*rnd+1}, 0, v10")
    A(f"v_bfe_u32 v5, v0, 2, 1")
    A(f"v_lshrrev_b32 v6, 3, v0")
    A(f"v_lshl_add_u32 v7, v4, 3, v5")
    A(f"v_mul_u32_u24 v7, 192, v7")
    A(f"v_lshl_add_u32 v7, v6, 1, v7")
    A(f"v_add_u32 v7, {L_WS}, v7")
    A(f"s_lshr_b32 s{st}, s{R.sc}, 6")
    A(f"v_add_u32 v8, s{st}, v5")
    A(f"v_lshlrev_b32 v8, 1, v8")
    for jj in range(4):
        A(f"v_add_u32 v9, {4*jj}, v8")
        A(f"v_and_b32 v9, 15, v9")
        A(f"v_add_u32 v{P_WA+jj}, v7, v9")
    A(f"s_mul_i32 s{st+1}, s{st}, 81")
    A(f"s_and_b32 s{st+2}, s{R.sc}, 63")
    A(f"s_lshl_b32 s{st+2}, s{st+2}, 6")
    A(f"v_lshlrev_b32 v7, 14, v5")
    A(f"v_lshl_add_u32 v7, v4, 4, v7")
    A(f"v_add_u32 v7, s{st+2}, v7")
    A(f"v_mov_b32 v14, 0x40000000")
    for rnd in range(3):
        A(f"v_add_u32 v8, {32*rnd}, v6")
        A(f"v_add_u32 v9, s{st+1}, v8")
        A(f"v_sub_u32 v10, 320, v9")
        A(f"v_cmp_lt_u32 vcc, 160, v9")
        A(f"v_cndmask_b32 v11, v9, v10, vcc")
        A(f"v_cndmask_b32_e64 v10, 0, 1, vcc")
        A(f"v_and_b32 v12, 1, v11")
        A(f"v_lshl_add_u32 v10, v12, 1, v10")
        A(f"v_lshrrev_b32 v11, 1, v11")
        A(f"v_lshl_add_u32 v11, v11, 3, v10")
        A(f"v_lshl_add_u32 v11, v11, 12, v7")
        if rnd == 2:
            A(f"v_cmp_gt_u32 vcc, 81, v8")
            A(f"v_cndmask_b32 v11, v14, v11, vcc")
            A(f"v_cmp_ge_u32 vcc, 320, v9")
            A(f"v_cndmask_b32 v{P_WS+2}, v14, v11, vcc")
            A(f"v_add_u32 v11, 4096, v11")
            A(f"v_cmp_eq_u32 vcc, 160, v9")
            A(f"v_cndmask_b32 v{P_WS+3}, v14, v11, vcc")
        else:
            A(f"v_mov_b32 v{P_WS+rnd}, v11")
    A(f"v_bfe_u32 v4, v{R.vl}, 5, 1")
    A(f"v_lshlrev_b32 v4, 4, v4")
    A(f"v_bfe_u32 v5, v{R.vl}, 4, 1")
    A(f"v_lshl_add_u32 v4, v5, 2, v4")
    A(f"v_bfe_u32 v5, v{R.vl}, 2, 2")
    A(f"v_add_u32 v4, v4, v5")
    A(f"v_lshlrev_b32 v4, 8, v4")
    A(f"v_and_b32 v5, 3, v{R.vl}")
    A(f"v_lshl_add_u32 v4, v5, 3, v4")
    A(f"s_lshl_b32 s{st}, s{R.sw}, 6")
    A(f"s_add_u32 s{st}, s{st}, {L_WD}")
    A(f"v_add_u32 v{P_WD}, s{st}, v4")
    A(f"s_mul_i32 s{st}, s{R.sw}, 3072")
    A(f"s_add_u32 s{st}, s{st}, {L_XR}")
    A(f"v_lshl_add_u32 v{P_GA}, v{R.vl}, 2, s{st}")
    A(f"v_lshlrev_b32 v7, 2, v{R.vl}")
    A(f"v_add_u32 v{P_GB}, {L_GW}, v7")

def a1_elem(A, vm):
    st = R.st
    A.c("---- A1 elementwise ----")
    A("s_waitcnt lgkmcnt(0)")
    A("s_barrier")
    ZB = 16
    for rnd in range(3):
        z = ZB + 8*rnd
        aq, oq = (P_AQ0, 0) if rnd == 0 else (P_AQ, 512*(2-rnd))
        A(f"ds_read_b64 v[{z}:{z+1}], v{P_AP} offset:{512*rnd}")
        A(f"ds_read_b64 v[{z+2}:{z+3}], v{aq} offset:{oq}")
        A(f"ds_read_b64 v[{z+4}:{z+5}], v{P_AP} offset:{512*rnd + ZROW}")
        A(f"ds_read_b64 v[{z+6}:{z+7}], v{aq} offset:{oq + ZROW}")
    for rnd in range(3):
        z = ZB + 8*rnd
        Zp0, Zq0, Zp1, Zq1 = z, z+2, z+4, z+6
        A(f"s_waitcnt lgkmcnt({8 - 4*rnd})")
        Up, Uq, Vp, Vq = 40, 42, 44, 46
        for (u, vv, z0, z1) in ((Up, Vp, Zp0, Zp1), (Uq, Vq, Zq0, Zq1)):
            A(f"v_pk_add_f32 v[{u}:{u+1}], v[{z0}:{z0+1}], v[{z1}:{z1+1}]")
            A(f"v_pk_add_f32 v[{vv}:{vv+1}], v[{z0}:{z0+1}], v[{z1}:{z1+1}] neg_lo:[0,1] neg_hi:[0,1]")
        E, O, T, X = (48, 50), (52, 54), (56, 58), ((60, 62), (64, 66))
        for pi, (P, Q) in enumerate(((Up, Uq), (Vp, Vq))):
            A(f"v_pk_add_f32 v[{E[pi]}:{E[pi]+1}], v[{P}:{P+1}], v[{Q}:{Q+1}] neg_hi:[0,1]")
            A(f"v_pk_add_f32 v[{O[pi]}:{O[pi]+1}], v[{P}:{P+1}], v[{Q}:{Q+1}] neg_lo:[0,1]")
        c = P_C + 2*rnd
        for pi in range(2): A(f"v_pk_mul_f32 v[{T[pi]}:{T[pi]+1}], v[{O[pi]}:{O[pi]+1}], v[{c}:{c+1}] op_sel:[1,1] op_sel_hi:[1,0]")
        for pi in range(2): A(f"v_pk_fma_f32 v[{T[pi]}:{T[pi]+1}], v[{O[pi]}:{O[pi]+1}], v[{c}:{c+1}], v[{T[pi]}:{T[pi]+1}] op_sel:[0,0,0] op_sel_hi:[0,1,1] neg_lo:[0,0,1]")
        for pi in range(2):
            Xp, Xq = X[pi]
            A(f"v_pk_add_f32 v[{Xp}:{Xp+1}], v[{E[pi]}:{E[pi]+1}], v[{T[pi]}:{T[pi]+1}]")
            A(f"v_pk_add_f32 v[{Xq}:{Xq+1}], v[{E[pi]}:{E[pi]+1}], v[{T[pi]}:{T[pi]+1}] neg_lo:[0,1] neg_hi:[1,0]")
        for k, Xr in enumerate(X[1]): A(f"v_pk_mul_f32 v[{E[k]}:{E[k]+1}], v[{Xr}:{Xr+1}], v[{P_TAU}:{P_TAU+1}] op_sel:[1,1] op_sel_hi:[1,0]")
        for k, Xr in enumerate(X[1]): A(f"v_pk_fma_f32 v[{Xr}:{Xr+1}], v[{Xr}:{Xr+1}], v[{P_TAU}:{P_TAU+1}], v[{E[k]}:{E[k]+1}] op_sel:[0,0,0] op_sel_hi:[0,1,1] neg_lo:[0,0,1]")
        o = 68 + 4*rnd
        for pi in range(2):
            Xp, Xq = X[pi]
            A(f"v_cvt_pk_bf16_f32 v{o+2*pi}, v{Xp}, v{Xp+1}")
            A(f"v_cvt_pk_bf16_f32 v{o+2*pi+1}, v{Xq}, v{Xq+1}")
        if rnd == 2:
            A(f"v_lshrrev_b32 v7, 2, v0")
            A(f"v_cmp_eq_u32 vcc, 33, v7")
            for k in range(4): A(f"v_cndmask_b32_e64 v{o+k}, v{o+k}, 0, vcc")
        va = P_ST2 if rnd == 2 else P_ST0
        A(f"s_mov_b32 s{st}, {rnd << 20}")
        A(f"buffer_store_dwordx2 v[{o}:{o+1}], v{va}, {srd(R.srdX1)}, s{st} offen{SC}")
        A(f"s_mov_b32 s{st+1}, {(rnd << 20) + 16384}")
        A(f"buffer_store_dwordx2 v[{o+2}:{o+3}], v{va}, {srd(R.srdX1)}, s{st+1} offen{SC}")
        vm.issue('st', 2)

sG0, sG1 = 27, 91
def gate(A, vm):
    st = R.st
    GX = 80
    A.c("---- gate ----")
    for t in range(5):
        A(f"ds_read_b32 v{GX+t}, v{P_GA} offset:{256*t}")
        A(f"ds_read_b32 v{GX+5+t}, v{P_GA} offset:{1280+256*t}")
        A(f"ds_read_b32 v{GX+10+t}, v{P_GB} offset:{256*t}")
    A("s_waitcnt lgkmcnt(0)")
    for r in range(2):
        A(f"v_mov_b32 v{4+r}, 0")
        for t in range(5):
            A(f"v_dot2c_f32_bf16 v{4+r}, v{GX+5*r+t}, v{GX+10+t}")
    for mod in ("quad_perm:[1,0,3,2]", "quad_perm:[2,3,0,1]", "row_half_mirror", "row_mirror"):
        for r in range(2):
            A(f"v_add_f32_dpp v{4+r}, v{4+r}, v{4+r} {mod} row_mask:0xf bank_mask:0xf")
    for r in range(2):
        for k in range(4): A(f"v_readlane_b32 s{16+k}, v{4+r}, {16*k}")
        A(f"v_mov_b32 v{4+r}, s16")
        for k in range(1, 4): A(f"v_add_f32 v{4+r}, s{16+k}, v{4+r}")
    A(f"v_and_b32 v6, 1, v{R.vl}")
    A(f"v_cmp_eq_u32 vcc, 1, v6")
    A(f"v_cndmask_b32 v4, v4, v5, vcc")
    A(f"v_cvt_pk_bf16_f32 v4, v4, v4")
    A(f"v_and_b32 v4, 0xffff0000, v4")
    A(f"v_mul_f32 v4, 0xbfb8aa3b, v4")
    A(f"v_exp_f32 v4, v4")
    A(f"v_add_f32 v4, 1.0, v4")
    A(f"v_rcp_f32 v4, v4")
    A(f"v_cvt_pk_bf16_f32 v4, v4, v4")
    A(f"v_and_b32 v4, 0xffff0000, v4")
    A(f"v_readlane_b32 s{sG0}, v4, 0")
    A(f"v_readlane_b32 s{sG1}, v4, 1")
    A(f"s_lshl_b32 s{st}, s{R.srg}, 2")
    A(f"s_add_u32 s{st}, s{st}, s{R.sw}")
    A(f"s_lshl_b32 s{st}, s{st}, 2")
    A(f"v_lshlrev_b32 v6, 12, v6")
    A(f"v_add_u32 v6, s{st}, v6")
    A(f"v_mov_b32 v7, 0x40000000")
    A(f"v_cmp_gt_u32 vcc, 2, v{R.vl}")
    A(f"v_cndmask_b32 v6, v7, v6, vcc")
    A(f"buffer_store_dword v4, v6, {srd(R.srdG)}, 0 offen{SC}")
    vm.issue('gst')

def wprep(A, vm):
    A.c("---- filter prep ----")
    W = 16
    for rnd in range(3):
        for jj in range(4):
            A(f"ds_read_u16 v{W+8*rnd+jj}, v{P_WA+jj} offset:{2*192*jj + 64*rnd}")
            A(f"ds_read_u16 v{W+8*rnd+4+jj}, v{P_WA+jj} offset:{6144 + 2*192*jj + 64*rnd}")
        if rnd == 0: pass
    for rnd in range(3):
        A(f"s_waitcnt lgkmcnt({min(15, 16 - 8*rnd) if rnd < 2 else 0})")
        w = W + 8*rnd
        for jj in range(4): A(f"v_lshl_or_b32 v{w+jj}, v{w+4+jj}, 16, v{w+jj}")
        A(f"buffer_store_dwordx4 v[{w}:{w+3}], v{P_WS+rnd}, {srd(R.srdWF)}, 0 offen{SC}")
        vm.issue('st')
        if rnd == 2:
            A(f"buffer_store_dwordx4 v[{w}:{w+3}], v{P_WS+3}, {srd(R.srdWF)}, 0 offen{SC}")
            vm.issue('st')

def wtprep(A, vm, tag='st'):
    st = R.st
    A.c("---- Wd fragment prep ----")
    A(f"s_mul_i32 s{st+2}, s{R.sc}, 52429")
    A(f"s_lshr_b32 s{st+2}, s{st+2}, 18")
    A(f"s_mul_i32 s{st+3}, s{st+2}, 5")
    A(f"s_sub_u32 s{st+3}, s{R.sc}, s{st+3}")
    for k in range(2):
        A(f"ds_read_b64_tr_b16 v[{40+4*k}:{41+4*k}], v{P_WD} offset:{32*k}")
        A(f"ds_read_b64_tr_b16 v[{42+4*k}:{43+4*k}], v{P_WD} offset:{32*k + 8*256}")
    A(f"s_mul_i32 s{st+2}, s{st+2}, 40")
    A(f"s_lshl_b32 s{st+3}, s{st+3}, 3")
    A(f"s_add_u32 s{st+2}, s{st+2}, s{st+3}")
    A(f"s_lshl_b32 s{st+3}, s{R.sw}, 1")
    A(f"s_add_u32 s{st+2}, s{st+2}, s{st+3}")
    A(f"s_lshl_b32 s{st+2}, s{st+2}, 10")
    A(f"v_lshlrev_b32 v5, 4, v{R.vl}")
    A("s_waitcnt lgkmcnt(0)")
    A(f"buffer_store_dwordx4 v[40:43], v5, {srd(R.srdWT)}, s{st+2} offen{SC}")
    A(f"buffer_store_dwordx4 v[44:47], v5, {srd(R.srdWT)}, s{st+2} offen offset:1024{SC}")
    vm.issue(tag, 2)

def ftgen(A, vm, pWS):
    st = R.st
    A.c("---- F table ----")
    A.srd(R.srdFT, pWS, SZ_FT, OFF_FT)
    lab = A.label("noft")
    A(f"s_lshl_b32 s{st}, s{R.sw}, 8")
    A(f"s_add_u32 s{st}, s{st}, s{R.sc}")
    A(f"s_cmp_ge_u32 s{st}, 840")
    A(f"s_cbranch_scc1 {lab}")
    A(f"s_mul_i32 s{st+1}, s{st}, 52429")
    A(f"s_lshr_b32 s{st+1}, s{st+1}, 21")
    A(f"s_mul_i32 s{st+2}, s{st+1}, 40")
    A(f"s_sub_u32 s{st+2}, s{st}, s{st+2}")
    A(f"s_lshl_b32 s{st+2}, s{st+2}, 4")
    A(f"v_and_b32 v4, 15, v{R.vl}")
    A(f"v_add_u32 v4, s{st+2}, v4")
    A(f"s_lshl_b32 s{st+1}, s{st+1}, 2")
    A(f"v_lshrrev_b32 v5, 4, v{R.vl}")
    A(f"v_add_u32 v5, s{st+1}, v5")
    A(f"v_lshlrev_b32 v6, 1, v5")
    A(f"s_mov_b32 s{st+3}, 6710887")
    for c in range(4):
        if c == 0: A(f"v_mov_b32 v7, v6")
        if c == 1: A(f"v_sub_u32 v7, 320, v6")
        if c == 2: A(f"v_add_u32 v7, 1, v6")
        if c == 3: A(f"v_sub_u32 v7, 319, v6")
        A(f"v_mul_u32_u24 v8, v7, v4")
        A(f"v_mul_hi_u32 v9, v8, s{st+3}")
        A(f"v_mul_u32_u24 v9, 640, v9")
        A(f"v_sub_u32 v8, v8, v9")
        A(f"v_cvt_f32_u32 v8, v8")
        A(f"v_mul_f32 v8, {fb(1/640)}, v8")
        A(f"v_cos_f32 v9, v8")
        A(f"v_sin_f32 v10, -v8")
        if c < 2:
            A(f"v_cmp_eq_u32 vcc, 0, v5")
            A(f"v_mul_f32 v11, 0.5, v9")
            A(f"v_cndmask_b32 v9, v9, v11, vcc")
            A(f"v_cndmask_b32_e64 v10, v10, 0, vcc")
        A(f"v_cvt_pk_bf16_f32 v{16+c}, v9, v10")
        A(f"v_cmp_gt_u32 vcc, {81 if c == 0 else 80}, v5")
        A(f"v_cndmask_b32 v{16+c}, 0, v{16+c}, vcc")
    A(f"s_lshl_b32 s{st}, s{st}, 10")
    A(f"v_lshlrev_b32 v5, 4, v{R.vl}")
    A(f"buffer_store_dwordx4 v[16:19], v5, {srd(R.srdFT)}, s{st} offen{SC}")
    A(f"{lab}:")

def a2_loads(A, vm, pWS):
    st = R.st
    A.c("---- A2 loads ----")
    A(f"s_lshl_b32 s{st}, s{R.sa2}, 14")
    A(f"s_lshl_b32 s{st+1}, s{R.sw}, 12")
    A(f"s_add_u32 s{st}, s{st}, s{st+1}")
    A(f"s_add_u32 m0, s{st+1}, {L_X}")
    A(f"v_lshlrev_b32 v4, 4, v{R.vl}")
    for j in range(4):
        A(f"buffer_load_dwordx4 v4, {srd(R.srdX1)}, s{st} offen offset:{1024*j} sc1 lds")
    A(f"s_add_u32 m0, s{st+1}, {L_F}")
    A("s_nop 0")
    for j in range(4):
        A(f"buffer_load_dwordx4 v4, {srd(R.srdWF)}, s{st} offen offset:{1024*j} sc1 lds")
    vm.issue('a2in', 8)

def a2(A0, vm, pWS, waited=False, weave=None, stamp=None):
    st = R.st
    A = Asm(A0.prefix + 'a2')
    A.c("---- A2 ----")
    D0r, D0i, D1r, D1i, XA_, WQ = 32, 48, 204, 16, 16, (220, 224)
    A.srd(R.srdZ, pWS, SZ_Z, OFF_Z)
    if not waited: A(f"s_waitcnt vmcnt({vm.wait({'a2in'})})")
    A("s_barrier")
    A(f"v_lshlrev_b32 v4, 11, v{R.vh}")
    A(f"v_lshl_add_u32 v4, v{R.vn}, 4, v4")
    A(f"s_lshl_b32 s{st}, s{R.sw}, 2")
    A(f"s_add_u32 s{st}, s{st}, {L_X}")
    A(f"v_add_u32 v8, s{st}, v4")
    for i in range(4):
        for q in range(4):
            A(f"ds_read_b32 v{XA_+4*i+q}, v8 offset:{(8*i+q)*512}")
    A(f"s_lshl_b32 s{st}, s{R.sw}, 12")
    A(f"s_add_u32 s{st}, s{st}, {L_F}")
    A(f"v_lshlrev_b32 v5, 9, v{R.vh}")
    A(f"v_lshl_add_u32 v5, v{R.vn}, 2, v5")
    A(f"v_add_u32 v5, s{st}, v5")
    def mm(i, data_is_a, src, Dr, Di):
        for (dst, cc) in ((Dr, R.CRe), (Di, R.CIm)):
            c = "0" if i == 0 else f"v[{dst}:{dst+15}]"
            d, k = f"v[{src+4*i}:{src+4*i+3}]", f"a[{cc+4*i}:{cc+4*i+3}]"
            a_, b_ = (d, k) if data_is_a else (k, d)
            A(f"v_mfma_f32_32x32x16_bf16 v[{dst}:{dst+15}], {a_}, {b_}, {c}")
    def tw_quad(i, Dr, Di):
        if PK2: return tw_quad_pk(i, Dr, Di)
        for j in range(4):
            x = 4*i + j
            t, u = ((6, 7), (10, 11), (12, 13), (14, 15))[j]
            A(f"v_mul_f32 v{t}, v{Di+x}, v{R.TWi+x}")
            A(f"v_mul_f32 v{u}, v{Di+x}, v{R.TWr+x}")
        for j in range(4):
            x = 4*i + j
            t, u = ((6, 7), (10, 11), (12, 13), (14, 15))[j]
            A(f"v_fma_f32 v{t}, v{Dr+x}, v{R.TWr+x}, -v{t}")
            A(f"v_fmac_f32 v{u}, v{Dr+x}, v{R.TWi+x}")
        for j in range(4):
            x = 4*i + j
            t, u = ((6, 7), (10, 11), (12, 13), (14, 15))[j]
            A(f"v_cvt_pk_bf16_f32 v{Dr+x}, v{t}, v{u}")
    def filt_quad(i, Dr, Di):
        if PK2: return filt_quad_pk(i, Dr, Di)
        w = WQ[i & 1]
        for j in range(4):
            x = 4*i + j
            A(f"v_lshlrev_b32 v6, 16, v{w+j}")
            A(f"v_and_b32 v7, 0xffff0000, v{w+j}")
            t, u = ((10, 11), (12, 13))[j & 1]
            A(f"v_mul_f32 v{t}, v{Di+x}, v7")
            A(f"v_mul_f32 v{u}, v{Di+x}, v6")
            A(f"v_fma_f32 v{t}, v{Dr+x}, v6, -v{t}")
            A(f"v_fmac_f32 v{u}, v{Dr+x}, v7")
            A(f"v_cvt_pk_bf16_f32 v{Dr+x}, v{t}, -v{u}")
    def tw_quad_pk(i, Dr, Di):
        for h2 in range(2):
            x = 4*i + 2*h2
            t, u = (6, 10) if h2 == 0 else (12, 14)
            A(f"v_pk_mul_f32 v[{t}:{t+1}], v[{Di+x}:{Di+x+1}], v[{R.TWi+x}:{R.TWi+x+1}]")
            A(f"v_pk_mul_f32 v[{u}:{u+1}], v[{Di+x}:{Di+x+1}], v[{R.TWr+x}:{R.TWr+x+1}]")
            A(f"v_pk_fma_f32 v[{t}:{t+1}], v[{Dr+x}:{Dr+x+1}], v[{R.TWr+x}:{R.TWr+x+1}], v[{t}:{t+1}] neg_lo:[0,0,1] neg_hi:[0,0,1]")
            A(f"v_pk_fma_f32 v[{u}:{u+1}], v[{Dr+x}:{Dr+x+1}], v[{R.TWi+x}:{R.TWi+x+1}], v[{u}:{u+1}]")
        for h2 in range(2):
            x = 4*i + 2*h2
            t, u = (6, 10) if h2 == 0 else (12, 14)
            A(f"v_cvt_pk_bf16_f32 v{Dr+x}, v{t}, v{u}")
            A(f"v_cvt_pk_bf16_f32 v{Dr+x+1}, v{t+1}, v{u+1}")
    def wf_read(i):
        for j in range(4): A(f"ds_read_b32 v{WQ[i & 1]+j}, v5 offset:{(8*i+j)*128}")
    def filt_quad_pk(i, Dr, Di):
        w = WQ[i & 1]
        for h2 in range(2):
            x = 4*i + 2*h2
            ww = w + 2*h2
            A(f"v_lshlrev_b32 v6, 16, v{ww}");     A(f"v_lshlrev_b32 v7, 16, v{ww+1}")
            A(f"v_and_b32 v10, 0xffff0000, v{ww}"); A(f"v_and_b32 v11, 0xffff0000, v{ww+1}")
            A(f"v_pk_mul_f32 v[12:13], v[{Di+x}:{Di+x+1}], v[10:11]")
            A(f"v_pk_mul_f32 v[14:15], v[{Di+x}:{Di+x+1}], v[6:7]")
            A(f"v_pk_fma_f32 v[12:13], v[{Dr+x}:{Dr+x+1}], v[6:7], v[12:13] neg_lo:[0,0,1] neg_hi:[0,0,1]")
            A(f"v_pk_fma_f32 v[14:15], v[{Dr+x}:{Dr+x+1}], v[10:11], v[14:15]")
            A(f"v_cvt_pk_bf16_f32 v{Dr+x}, v12, -v14")
            A(f"v_cvt_pk_bf16_f32 v{Dr+x+1}, v13, -v15")
    def S(n):
        if stamp: stamp(A, n)
    S("x_issued")
    A("s_waitcnt lgkmcnt(0)")
    S("x_read")
    for i in range(4): mm(i, True, XA_, D0r, D0i)
    wf_read(0)
    for i in range(4):
        tw_quad(i, D0r, D0i); mm(i, False, D0r, D1r, D1i)
    S("s3")
    for i in range(4):
        if i < 3: wf_read(i+1)
        A(f"s_waitcnt lgkmcnt({4 if i < 3 else 0})")
        filt_quad(i, D1r, D1i); mm(i, True, D1r, D0r, D0i)
    S("s4")
    for i in range(4):
        tw_quad(i, D0r, D0i); mm(i, False, D0r, D1r, D1i)
    S("s6")
    A(f"v_lshlrev_b32 v4, 9, v{R.vh}")
    A(f"v_lshl_add_u32 v4, v{R.vn}, 2, v4")
    A(f"s_lshl_b32 s{st}, s{R.sw}, 12")
    A(f"s_add_u32 s{st}, s{st}, {L_F}")
    A(f"v_add_u32 v4, s{st}, v4")
    for x in range(16):
        A(f"v_cvt_pk_bf16_f32 v{D0r+x}, v{D1r+x}, -v{D1i+x}")
        A(f"ds_write_b32 v4, v{D0r+x} offset:{(8*(x>>2)+(x&3))*128}")
    A(f"s_lshl_b32 s{st+1}, s{R.sw}, 10")
    A(f"s_add_u32 s{st+2}, s{st+1}, {L_F}")
    A(f"v_lshl_add_u32 v4, v{R.vl}, 2, s{st+2}")
    A("s_waitcnt lgkmcnt(0)")
    S("wr")
    A("s_barrier")
    for j in range(4):
        for c in range(4):
            A(f"ds_read_b32 v{16+4*j+c}, v4 offset:{c*4096 + j*256}")
    A(f"s_lshl_b32 s{st}, s{R.sa2}, 14")
    A(f"s_lshl_b32 s{st+1}, s{R.sw}, 12")
    A(f"s_add_u32 s{st}, s{st}, s{st+1}")
    A(f"v_lshlrev_b32 v5, 4, v{R.vl}")
    for j in range(4):
        A(f"s_waitcnt lgkmcnt({12 - 4*j})")
        A(f"buffer_store_dwordx4 v[{16+4*j}:{19+4*j}], v5, {srd(R.srdZ)}, s{st} offen offset:{1024*j}{SC}")
    vm.issue('zst', 4)
    lines = A.l
    if weave:
        first = next(i for i, l in enumerate(lines) if "v_mfma" in l)
        last = max(i for i, l in enumerate(lines) if "ds_write_b32" in l)
        n = len(weave); out = lines[:first]
        span = last - first
        k = 0
        for j in range(first, len(lines)):
            out.append(lines[j])
            while k < n and j < last and (j - first + 1)*n >= (k + 1)*span:
                out += ["  " + x for x in weave[k]]; k += 1
        out += ["  " + x for w in weave[k:] for x in w]
        assert k == n
        lines = out
    A0.l += lines

def a2_bundles(pWS, t0):
    st = R.st
    D0r, D0i, D1r, D1i, XA_, WQ = 32, 48, 204, 16, 16, (220, 224)
    def cap(fn):
        T = Asm("tmp"); fn(T); return [l.strip() for l in T.l if not l.strip().startswith(";")]
    def one(lines): return [([l], None) for l in lines]
    def mm(i, data_is_a, src, Dr, Di):
        L = []
        for (dst, cc) in ((Dr, R.CRe), (Di, R.CIm)):
            c = "0" if i == 0 else f"v[{dst}:{dst+15}]"
            d, k = f"v[{src+4*i}:{src+4*i+3}]", f"a[{cc+4*i}:{cc+4*i+3}]"
            a_, b_ = (d, k) if data_is_a else (k, d)
            L.append(f"v_mfma_f32_32x32x16_bf16 v[{dst}:{dst+15}], {a_}, {b_}, {c}")
        return L
    def tw(i, Dr, Di):
        L = []
        for h2 in range(2):
            x = 4*i + 2*h2
            t, u = (6, 10) if h2 == 0 else (12, 14)
            L += [f"v_pk_mul_f32 v[{t}:{t+1}], v[{Di+x}:{Di+x+1}], v[{R.TWi+x}:{R.TWi+x+1}]",
                  f"v_pk_mul_f32 v[{u}:{u+1}], v[{Di+x}:{Di+x+1}], v[{R.TWr+x}:{R.TWr+x+1}]",
                  f"v_pk_fma_f32 v[{t}:{t+1}], v[{Dr+x}:{Dr+x+1}], v[{R.TWr+x}:{R.TWr+x+1}], v[{t}:{t+1}] neg_lo:[0,0,1] neg_hi:[0,0,1]",
                  f"v_pk_fma_f32 v[{u}:{u+1}], v[{Dr+x}:{Dr+x+1}], v[{R.TWi+x}:{R.TWi+x+1}], v[{u}:{u+1}]"]
        for h2 in range(2):
            x = 4*i + 2*h2
            t, u = (6, 10) if h2 == 0 else (12, 14)
            L += [f"v_cvt_pk_bf16_f32 v{Dr+x}, v{t}, v{u}", f"v_cvt_pk_bf16_f32 v{Dr+x+1}, v{t+1}, v{u+1}"]
        return L
    def wf(i): return [f"ds_read_b32 v{WQ[i & 1]+j}, v5 offset:{(8*i+j)*128}" for j in range(4)]
    def filt(i, Dr, Di):
        L = []
        w = WQ[i & 1]
        for h2 in range(2):
            x = 4*i + 2*h2
            ww = w + 2*h2
            L += [f"v_lshlrev_b32 v6, 16, v{ww}", f"v_lshlrev_b32 v7, 16, v{ww+1}",
                  f"v_and_b32 v10, 0xffff0000, v{ww}", f"v_and_b32 v11, 0xffff0000, v{ww+1}",
                  f"v_pk_mul_f32 v[12:13], v[{Di+x}:{Di+x+1}], v[10:11]",
                  f"v_pk_mul_f32 v[14:15], v[{Di+x}:{Di+x+1}], v[6:7]",
                  f"v_pk_fma_f32 v[12:13], v[{Dr+x}:{Dr+x+1}], v[6:7], v[12:13] neg_lo:[0,0,1] neg_hi:[0,0,1]",
                  f"v_pk_fma_f32 v[14:15], v[{Dr+x}:{Dr+x+1}], v[10:11], v[14:15]",
                  f"v_cvt_pk_bf16_f32 v{Dr+x}, v12, -v14", f"v_cvt_pk_bf16_f32 v{Dr+x+1}, v13, -v15"]
        return L
    H = {}
    def h0(T):
        T(f"v_lshlrev_b32 v4, 11, v{R.vh}")
        T(f"v_lshl_add_u32 v4, v{R.vn}, 4, v4")
        T(f"s_lshl_b32 s{st}, s{R.sw}, 2")
        T(f"s_add_u32 s{st}, s{st}, {L_X}")
        T(f"v_add_u32 v8, s{st}, v4")
        for i in range(4):
            for q in range(4): T(f"ds_read_b32 v{XA_+4*i+q}, v8 offset:{(8*i+q)*512}")
        T(f"s_lshl_b32 s{st}, s{R.sw}, 12")
        T(f"s_add_u32 s{st}, s{st}, {L_F}")
        T(f"v_lshlrev_b32 v5, 9, v{R.vh}")
        T(f"v_lshl_add_u32 v5, v{R.vn}, 2, v5")
        T(f"v_add_u32 v5, s{st}, v5")
    H[0] = one(cap(h0))
    H[1] = one(sum((mm(i, True, XA_, D0r, D0i) for i in range(4)), []) + wf(0) + wf(1))
    H[2] = one(tw(0, D0r, D0i) + mm(0, False, D0r, D1r, D1i) + tw(1, D0r, D0i) + mm(1, False, D0r, D1r, D1i))
    H[3] = one(tw(2, D0r, D0i) + mm(2, False, D0r, D1r, D1i) + tw(3, D0r, D0i) + mm(3, False, D0r, D1r, D1i))
    H[4] = one(filt(0, D1r, D1i) + wf(2) + mm(0, True, D1r, D0r, D0i) + filt(1, D1r, D1i) + wf(3) + mm(1, True, D1r, D0r, D0i))
    H[5] = one(filt(2, D1r, D1i) + mm(2, True, D1r, D0r, D0i) + filt(3, D1r, D1i) + mm(3, True, D1r, D0r, D0i))
    H[6] = one(tw(0, D0r, D0i) + mm(0, False, D0r, D1r, D1i) + tw(1, D0r, D0i) + mm(1, False, D0r, D1r, D1i))
    H[7] = one(tw(2, D0r, D0i) + mm(2, False, D0r, D1r, D1i) + tw(3, D0r, D0i) + mm(3, False, D0r, D1r, D1i))
    L = []
    for x in range(16):
        L += [f"v_cvt_pk_bf16_f32 v{D0r+x}, v{D1r+x}, -v{D1i+x}", f"ds_write_b32 v8, v{D0r+x} offset:{(8*(x>>2)+(x&3))*512}"]
    H[8] = one(L)
    def h10(T):
        T(f"s_lshl_b32 s{st+1}, s{R.sw}, 12")
        T(f"s_add_u32 s{st+2}, s{st+1}, {L_X}")
        T(f"v_lshl_add_u32 v4, v{R.vl}, 4, s{st+2}")
        for j in range(4): T(f"ds_read_b128 v[{16+4*j}:{19+4*j}], v4 offset:{1024*j}")
        T(f"s_lshl_b32 s{st}, s{R.sa2}, 14")
        T(f"s_add_u32 s{st}, s{st}, s{st+1}")
        T(f"v_lshlrev_b32 v5, 4, v{R.vl}")
    H[10] = [(cap(lambda T: T.srd(R.srdZ, pWS, SZ_Z, OFF_Z)), None)] + one(cap(h10))
    H[11] = [([f"buffer_store_dwordx4 v[{16+4*j}:{19+4*j}], v5, {srd(R.srdZ)}, s{st} offen offset:{1024*j}{SC}"], "zst") for j in range(4)]
    out = {}
    for h, atoms in H.items():
        t, ph = (t0 + (h + 1)//2, 'A' if h % 2 else 'B')
        out[(t, ph)] = atoms
    return out

ZL = 204
L_ZB, ZBW = AUXB, 3104
L_GO = AUXB + 12800
sG0, sG1 = 27, 91
def a3_loads(A, vm, pWS):
    st = R.st
    A.c("---- A3 loads ----")
    A.srd(R.srdZ, pWS, SZ_Z, OFF_Z)
    st = 62
    A(f"v_lshrrev_b32 v4, 2, v0")
    A(f"v_lshrrev_b32 v5, 1, v4")
    A(f"v_lshlrev_b32 v5, 15, v5")
    A(f"v_and_b32 v4, 1, v4")
    A(f"v_lshl_add_u32 v5, v4, 3, v5")
    A(f"v_and_b32 v4, 3, v0")
    A(f"s_lshl_b32 s{st}, s{R.srg}, 2")
    A(f"v_add_u32 v4, s{st}, v4")
    A(f"v_lshl_add_u32 v5, v4, 4, v5")
    for rnd in range(3):
        for pi in range(2):
            A(f"s_mov_b32 s{st}, {(rnd << 20) + pi*16384}")
            A(f"buffer_load_dwordx2 v[{ZL+4*rnd+2*pi}:{ZL+4*rnd+2*pi+1}], v5, {srd(R.srdZ)}, s{st} offen sc1")
    vm.issue('zl', 6)

Q_C, Q_AP, Q_AQ = 64, 70, 73
def a3_pre(A):
    st = R.st
    A.c("---- A3 preparation ----")
    A(f"v_and_b32 v{R.vl}, 63, v0")
    A(f"v_and_b32 v{R.vn}, 31, v{R.vl}")
    A(f"v_lshrrev_b32 v{R.vh}, 5, v{R.vl}")
    A(f"v_and_b32 v14, 3, v0")
    A(f"v_mul_u32_u24 v15, {ZBW}, v14")
    A(f"v_add_u32 v15, {L_ZB}, v15")
    A(f"s_mul_i32 s{st}, s{R.sw}, {ZBW}")
    A(f"s_add_u32 s{st}, s{st}, {L_ZB + 2560}")
    A(f"v_and_b32 v6, 7, v{R.vl}")
    A(f"v_lshl_add_u32 v6, v6, 2, s{st}")
    A(f"v_mov_b32 v7, 0")
    A(f"ds_write_b32 v6, v7")
    A(f"s_lshl_b32 s{st}, s{R.srg}, 2")
    A(f"v_add_u32 v6, s{st}, v14")
    A(f"v_cvt_f32_u32 v7, v6")
    A(f"v_mul_f32 v7, {fb(1/2048)}, v7")
    A(f"v_cos_f32 v12, v7")
    A(f"v_sin_f32 v13, v7")
    A(f"v_lshrrev_b32 v7, 2, v0")
    A(f"v_cvt_f32_u32 v9, v7")
    for rnd in range(3):
        A(f"v_add_f32 v10, {fb(64.0*rnd)}, v9")
        A(f"v_mul_f32 v10, {fb(1/640)}, v10")
        A(f"v_sin_f32 v{Q_C+2*rnd}, -v10")
        A(f"v_cos_f32 v{Q_C+2*rnd+1}, v10")
        A(f"v_add_u32 v8, {64*rnd}, v7")
        A(f"v_lshl_add_u32 v{Q_AP+rnd}, v8, 2, v15")
        A(f"v_sub_u32 v8, 320, v8")
        A(f"v_lshl_add_u32 v{Q_AQ+rnd}, v8, 2, v15")
    A(f"v_cmp_eq_u32 vcc, 0, v7")
    A(f"v_cndmask_b32 v{Q_AQ}, v{Q_AQ}, v15, vcc")
    A(f"v_mov_b32 v9, {L_ZB + 4*ZBW}")
    A(f"v_cmp_lt_u32 vcc, 32, v7")
    A(f"v_cndmask_b32 v{Q_AP+2}, v{Q_AP+2}, v9, vcc")
    A(f"v_cndmask_b32 v{Q_AQ+2}, v{Q_AQ+2}, v9, vcc")

def a3_elem(A, vm, extra=None):
    st = R.st
    A.c("---- A3 elementwise ----")
    A(f"v_lshrrev_b32 v7, 2, v0")
    A(f"v_cmp_eq_u32 vcc, 0, v7")
    A(f"s_waitcnt vmcnt({vm.wait({'zl'})})")
    for rnd in range(3):
        z = ZL + 4*rnd
        if extra: extra(rnd)
        Up, Uq, Vp, Vq = 32, 34, 36, 38
        for (d, src) in ((Up, z), (Uq, z+1), (Vp, z+2), (Vq, z+3)):
            A(f"v_lshlrev_b32 v{d}, 16, v{src}")
            A(f"v_and_b32 v{d+1}, 0xffff0000, v{src}")
        for k, X in enumerate((Vp, Vq)): A(f"v_pk_mul_f32 v[{60+2*k}:{61+2*k}], v[{X}:{X+1}], v[12:13] op_sel:[1,1] op_sel_hi:[1,0]")
        for k, X in enumerate((Vp, Vq)): A(f"v_pk_fma_f32 v[{X}:{X+1}], v[{X}:{X+1}], v[12:13], v[{60+2*k}:{61+2*k}] op_sel:[0,0,0] op_sel_hi:[0,1,1] neg_lo:[0,0,1]")
        Ap0, Aq0, Ap1, Aq1 = 40, 42, 44, 46
        A(f"v_pk_add_f32 v[{Ap0}:{Ap0+1}], v[{Up}:{Up+1}], v[{Vp}:{Vp+1}]")
        A(f"v_pk_add_f32 v[{Aq0}:{Aq0+1}], v[{Uq}:{Uq+1}], v[{Vq}:{Vq+1}]")
        A(f"v_pk_add_f32 v[{Ap1}:{Ap1+1}], v[{Up}:{Up+1}], v[{Vp}:{Vp+1}] neg_lo:[0,1] neg_hi:[0,1]")
        A(f"v_pk_add_f32 v[{Aq1}:{Aq1+1}], v[{Uq}:{Uq+1}], v[{Vq}:{Vq+1}] neg_lo:[0,1] neg_hi:[0,1]")
        if rnd == 0:
            for X in (Ap0, Aq0, Ap1, Aq1): A(f"v_cndmask_b32_e64 v{X+1}, v{X+1}, 0, vcc")
        E, O, T = (48, 50), (52, 54), (56, 58)
        rows = ((Ap0, Aq0), (Ap1, Aq1))
        c = Q_C + 2*rnd
        for r, (P, Q) in enumerate(rows):
            A(f"v_pk_add_f32 v[{E[r]}:{E[r]+1}], v[{P}:{P+1}], v[{Q}:{Q+1}] neg_hi:[0,1]")
            A(f"v_pk_add_f32 v[{O[r]}:{O[r]+1}], v[{P}:{P+1}], v[{Q}:{Q+1}] neg_lo:[0,1]")
        for r in range(2): A(f"v_pk_mul_f32 v[{T[r]}:{T[r]+1}], v[{O[r]}:{O[r]+1}], v[{c}:{c+1}] op_sel:[1,1] op_sel_hi:[1,0]")
        for r in range(2): A(f"v_pk_fma_f32 v[{T[r]}:{T[r]+1}], v[{O[r]}:{O[r]+1}], v[{c}:{c+1}], v[{T[r]}:{T[r]+1}] op_sel:[0,0,0] op_sel_hi:[0,1,1] neg_lo:[0,0,1]")
        for r in range(2):
            A(f"v_pk_add_f32 v[{32+4*r}:{33+4*r}], v[{E[r]}:{E[r]+1}], v[{T[r]}:{T[r]+1}] neg_hi:[1,1]")
            A(f"v_pk_add_f32 v[{34+4*r}:{35+4*r}], v[{E[r]}:{E[r]+1}], v[{T[r]}:{T[r]+1}] neg_lo:[0,1] neg_hi:[0,1]")
        for r in range(2):
            A(f"v_cvt_pk_bf16_f32 v{60+2*r}, v{32+4*r}, v{33+4*r}")
            A(f"v_cvt_pk_bf16_f32 v{61+2*r}, v{34+4*r}, v{35+4*r}")
        for r in range(2):
            off = f" offset:{1280*r}" if r else ""
            A(f"ds_write_b32 v{Q_AP+rnd}, v{60+2*r}{off}")
            A(f"ds_write_b32 v{Q_AQ+rnd}, v{61+2*r}{off}")
    A("s_waitcnt lgkmcnt(0)")

def a3_core(A, vm, pWS, mid=None):
    st = R.st
    A.c("---- A3 core ----")
    A(f"v_bfe_u32 v4, v{R.vl}, 4, 1")
    A(f"v_mul_u32_u24 v4, 1280, v4")
    A(f"v_and_b32 v5, 15, v{R.vl}")
    A(f"v_lshl_add_u32 v4, v5, 2, v4")
    A(f"v_mul_u32_u24 v5, 160, v{R.vh}")
    A(f"s_mul_i32 s{st}, s{R.sw}, {ZBW}")
    A(f"s_add_u32 s{st}, s{st}, {L_ZB}")
    A(f"v_add3_u32 v4, v4, v5, s{st}")
    for i in range(4):
        for q in range(4):
            A(f"ds_read_b32 v{XA+4*i+q}, v4 offset:{320*i+40*q}")
    A(f"v_mov_b32 v6, {fb(0.5/(2048*640))}")
    A(f"v_mul_f32 v8, s{sG0}, v6")
    A(f"v_mul_f32 v10, s{sG1}, v6")
    A(f"v_sub_f32 v9, 0, v8")
    A(f"v_sub_f32 v11, 0, v10")
    A("s_waitcnt lgkmcnt(0)")
    fft320_core(A, tmp=(12, 14), mid=mid)
    A(f"s_mul_i32 s{st}, s{R.sw}, 2560")
    A(f"s_add_u32 s{st}, s{st}, {L_GO}")
    A(f"v_lshl_add_u32 v4, v{R.vh}, 6, v{R.vn}")
    A(f"v_lshl_add_u32 v4, v4, 2, s{st}")
    for i in range(3):
        if i == 2: A("s_mov_b64 exec, 0xffffffff")
        for r in range(2):
            sc = 8 + 2*r
            for jj in range(2):
                d = D2[r] + 4*i + 2*jj
                A(f"v_pk_mul_f32 v[{d}:{d+1}], v[{d}:{d+1}], v[{sc}:{sc+1}]")
                A(f"v_cvt_pk_bf16_f32 v{d}, v{d}, v{d+1}")
                A(f"ds_write_b32 v4, v{d} offset:{r*1280 + (128*i + 32*jj)*4}")
    A("s_mov_b64 exec, -1")
    A.srd(R.srdZ, pWS, SZ_GA, OFF_GA)
    A(f"v_lshl_add_u32 v4, v{R.vl}, 4, s{st}")
    A("s_waitcnt lgkmcnt(0)")
    for j in range(3): A(f"ds_read_b128 v[{16+4*j}:{19+4*j}], v4 offset:{1024*j}")
    A(f"s_lshl_b32 s{st}, s{R.srg}, 2")
    A(f"s_add_u32 s{st}, s{st}, s{R.sw}")
    A(f"s_mul_i32 s{st}, s{st}, 1280")
    A(f"v_lshlrev_b32 v4, 4, v{R.vl}")
    A(f"v_add_u32 v5, 1024, v4")
    A(f"v_add_u32 v6, {1024*1280 - 256}, v4")
    A(f"v_cmp_gt_u32 vcc, 16, v{R.vl}")
    A(f"v_cndmask_b32 v5, v6, v5, vcc")
    A(f"v_add_u32 v7, {1024*1280 + 48*16}, v4")
    A(f"v_mov_b32 v6, 0x40000000")
    A(f"v_cmp_gt_u32 vcc, 32, v{R.vl}")
    A(f"v_cndmask_b32 v7, v6, v7, vcc")
    A("s_waitcnt lgkmcnt(0)")
    A(f"buffer_store_dwordx4 v[16:19], v4, {srd(R.srdZ)}, s{st} offen{SC}")
    A(f"buffer_store_dwordx4 v[20:23], v5, {srd(R.srdZ)}, s{st} offen{SC}")
    A(f"buffer_store_dwordx4 v[24:27], v7, {srd(R.srdZ)}, s{st} offen{SC}")
    vm.issue('gast', 3)
```

```python
from asmlib import *
from layout import *

MAP48 = False
OUTSC = ''
class R:
    acc = 64
    vh = 230
    vl16 = 243
    vout = 231
    vog = 232
    vt = 233
    GAV = 244
    srdWT, srdH, srdGA, srdO, srdG = 64, 12, 8, 36, 40
    sw, sT, sdt = 20, 21, 22
    sWoff, sHoff = 61, 24
    st = 28
NRING = 8
def hslot(i):
    k = i % NRING
    return 144 + 16*k if k < 3 else (16 + 16*(k-3) if k < 6 else 192 + 16*(k-6))

def setup_w(A, s_b, pWS):
    A.srd(R.srdWT, pWS, SZ_WT, OFF_WT)
    if MAP48:
        A(f"s_lshr_b32 s60, s{s_b}, 5")
    else:
        A(f"s_lshr_b32 s60, s{s_b}, 2")
        A(f"s_and_b32 s60, s60, 1")
        A(f"s_lshl_b32 s60, s60, 2")
        A(f"s_lshr_b32 s62, s{s_b}, 6")
        A(f"s_add_u32 s60, s60, s62")
    A(f"s_mul_i32 s62, s{R.sw}, 96")
    A(f"s_add_u32 s60, s60, s62")
    A(f"s_mul_i32 s{R.sWoff}, s60, 5120")
    A(f"v_and_b32 v{R.vl16}, 63, v0")
    A(f"v_lshlrev_b32 v{R.vl16}, 4, v{R.vl16}")

def setup(A, s_b, pWS, pOUT):
    st, t = R.st, R.vt
    A.c("---- F2 setup ----")
    if MAP48:
        A(f"s_and_b32 s{st}, s{s_b}, 7")
        A(f"s_lshl_b32 s{st}, s{st}, 2")
        A(f"s_lshr_b32 s{st+1}, s{s_b}, 3")
        A(f"s_and_b32 s{st+1}, s{st+1}, 3")
        A(f"s_add_u32 s{R.sT}, s{st}, s{st+1}")
        A(f"s_lshr_b32 s{R.sdt}, s{s_b}, 5")
        return
    A(f"s_and_b32 s{st}, s{s_b}, 3")
    A(f"s_lshl_b32 s{st}, s{st}, 3")
    A(f"s_lshr_b32 s{st+1}, s{s_b}, 3")
    A(f"s_and_b32 s{st+1}, s{st+1}, 7")
    A(f"s_add_u32 s{R.sT}, s{st}, s{st+1}")
    A(f"s_lshr_b32 s{st}, s{s_b}, 2")
    A(f"s_and_b32 s{st}, s{st}, 1")
    A(f"s_lshl_b32 s{st}, s{st}, 2")
    A(f"s_lshr_b32 s{st+1}, s{s_b}, 6")
    A(f"s_add_u32 s{R.sdt}, s{st}, s{st+1}")

def w_loads(steps):
    L = []
    so = 60
    for i in steps:
        for mt in range(5):
            d = 20*i + 4*mt
            pre = []
            if mt == 0: pre = [f"s_add_u32 s{so}, s{R.sWoff}, {i*8*5120}"]
            if mt == 4: pre = [f"s_add_u32 s{so}, s{so}, 4096"]
            off = f" offset:{1024*mt}" if 0 < mt < 4 else ""
            L.append(pre + [f"buffer_load_dwordx4 a[{d}:{d+3}], v{R.vl16}, {srd(R.srdWT)}, s{so} offen{off} sc1"])
    return L

def setup2(A, pWS, pOUT):
    st, t = R.st, R.vt
    A.srd(R.srdH, pWS, SZ_H, OFF_H)
    A.srd(R.srdGA, pWS, SZ_GA, OFF_GA)
    A.srd(R.srdO, pOUT, 2048*640*2)
    A.srd(R.srdG, pWS, 8192, OFF_G)
    A(f"v_and_b32 v{t}, 63, v0")
    A(f"v_and_b32 v{t+1}, 15, v{t}")
    A(f"v_lshrrev_b32 v{t+2}, 4, v{t}")
    A(f"v_lshl_add_u32 v{t+3}, v{t+2}, 5, v{t+1}")
    A(f"v_lshlrev_b32 v{R.vh}, 4, v{t+3}")
    A(f"s_mul_i32 s{st}, s{R.sT}, {2*96*1024}")
    A(f"s_mul_i32 s{st+1}, s{R.sw}, {12*2048}")
    A(f"s_add_u32 s{R.sHoff}, s{st}, s{st+1}")
    for lam in range(4):
        A(f"s_add_u32 s{st}, s{R.sw}, {lam}")
        A(f"s_and_b32 s{st}, s{st}, 3")
        A(f"s_lshr_b32 s{st+1}, s{st}, 1")
        A(f"s_mul_i32 s{st+1}, s{st+1}, {96*1024}")
        A(f"s_and_b32 s{st}, s{st}, 1")
        A(f"s_lshl_b32 s{st}, s{st}, 8")
        A(f"s_add_u32 s{st}, s{st}, s{st+1}")
        A(f"s_add_u32 s{44+lam}, s{st}, s{R.sHoff}")
    A(f"s_lshl_b32 s{st}, s{R.sT}, 6")
    A(f"s_lshl_b32 s{st+1}, s{R.sw}, 4")
    A(f"s_add_u32 s{st}, s{st}, s{st+1}")
    A(f"v_add_u32 v{t+3}, s{st}, v{t+1}")
    A(f"v_lshlrev_b32 v{R.vog}, 2, v{t+3}")
    A(f"v_mul_u32_u24 v{t+3}, 1280, v{t+3}")
    A(f"s_mul_i32 s{st}, s{R.sdt}, 160")
    A(f"v_lshl_add_u32 v{t+3}, v{t+2}, 3, v{t+3}")
    A(f"v_add_u32 v{R.vout}, s{st}, v{t+3}")

def h_loads(i):
    so = R.st + 2
    L = []
    for lam in range(4):
        d = hslot(i) + 4*lam
        L.append([f"s_add_u32 s{so}, s{44+lam}, {i*2048}", f"buffer_load_dwordx4 v[{d}:{d+3}], v{R.vh}, {srd(R.srdH)}, s{so} offen sc1"])
    return L

def mfmas(i):
    L = []
    for mt in range(5):
        for lam in range(4):
            d = R.acc + lam*20 + mt*4
            b = hslot(i) + 4*lam
            L.append(f"v_mfma_f32_16x16x32_bf16 v[{d}:{d+3}], a[{20*i+4*mt}:{20*i+4*mt+3}], v[{b}:{b+3}], " + ("0" if i == 0 else f"v[{d}:{d+3}]"))
    return L

AHEAD = 4
OVL = True
def red_addr(A, lds_base=0):
    st, t = R.st, R.vt
    for lam in range(1, 4):
        A(f"s_add_u32 s{st}, s{R.sw}, {lam}")
        A(f"s_and_b32 s{st}, s{st}, 3")
        A(f"s_mul_i32 s{st}, s{st}, {3*5120}")
        A(f"s_add_u32 s{st}, s{st}, {lds_base + (lam-1)*5120}")
        A(f"v_add_u32 v{t+lam-1}, s{st}, v{R.vl16}")
    A(f"s_mul_i32 s{st}, s{R.sw}, {3*5120}")
    A(f"s_add_u32 s{st}, s{st}, {lds_base}")
    A(f"v_add_u32 v{t+3}, s{st}, v{R.vl16}")

def red_writes(lam):
    t = R.vt
    return [f"ds_write_b128 v{t+lam-1}, v[{R.acc+lam*20+mt*4}:{R.acc+lam*20+mt*4+3}] offset:{mt*1024}" for mt in range(5)]

def main(A, vm, hooks=None, pre_issued=0):
    for i in range(pre_issued, AHEAD):
        A(h_loads(i)); vm.issue(f"h{i}", 4)
    for i in range(12):
        A.c(f"F2 step {i}")
        if hooks and i in hooks: hooks[i]()
        if OVL and i == 9: red_addr(A)
        A(f"s_waitcnt vmcnt({vm.wait({f'h{i}', f'W{i}'})})")
        m = mfmas(i)
        if OVL and i == 11:
            by = lambda lam: [x for k, x in enumerate(m) if k % 4 == lam]
            w1, w2, w3 = red_writes(1), red_writes(2), red_writes(3)
            A(by(1)); A(by(2))
            A(place(by(3), [[x] for x in w1]))
            A(place(by(0), [[x] for x in w2]))
            A(w3)
            continue
        n = i + AHEAD
        g = [[] for _ in m]
        if n < 12 and n >= pre_issued:
            for k, ins in enumerate(h_loads(n)): g[1 + 5*k] = ins
            vm.issue(f"h{n}", 4)
        A(place(m, g))

def final_loads(A, vm):
    A(f"buffer_load_dword v{R.vog}, v{R.vog}, {srd(R.srdG)}, 0 offen sc1")
    for mt in range(5):
        A(f"buffer_load_dwordx2 v[{R.GAV+2*mt}:{R.GAV+2*mt+1}], v{R.vout}, {srd(R.srdGA)}, 0 offen offset:{32*mt} sc1")
    vm.issue("ga", 6)

def epilogue(A, vm, lds_base=0):
    st, t = R.st, R.vt
    A.c("---- F2 reduction and output ----")
    if not OVL:
        red_addr(A, lds_base)
        for lam in range(1, 4): A(red_writes(lam))
    A("s_waitcnt lgkmcnt(0)")
    A("s_barrier")
    P = R.acc + 20
    for k in range(3):
        for mt in range(5):
            A(f"ds_read_b128 v[{P+20*k+4*mt}:{P+20*k+4*mt+3}], v{t+3} offset:{k*5120 + mt*1024}")
    A(f"s_waitcnt vmcnt({vm.wait({'ga'})})")
    A(f"v_sub_f32 v{R.vog}, 1.0, v{R.vog}")
    A(f"v_cvt_pk_bf16_f32 v{R.vog}, v{R.vog}, v{R.vog}")
    A(f"v_and_b32 v{R.vog}, 0xffff0000, v{R.vog}")
    for mt in range(5):
        A(f"s_waitcnt lgkmcnt({min(15, 14-mt if False else 0)})") if mt == 0 else None
        x = R.acc + 4*mt
        for k in range(3):
            y = P + 20*k + 4*mt
            A(f"v_pk_add_f32 v[{x}:{x+1}], v[{x}:{x+1}], v[{y}:{y+1}]")
            A(f"v_pk_add_f32 v[{x+2}:{x+3}], v[{x+2}:{x+3}], v[{y+2}:{y+3}]")
        g = R.GAV + 2*mt
        A(f"v_lshlrev_b32 v16, 16, v{g}")
        A(f"v_and_b32 v17, 0xffff0000, v{g}")
        A(f"v_lshlrev_b32 v18, 16, v{g+1}")
        A(f"v_and_b32 v19, 0xffff0000, v{g+1}")
        for j in range(4): A(f"v_fmac_f32 v{16+j}, v{R.vog}, v{x+j}")
        o = 20 + 2*mt
        A(f"v_cvt_pk_bf16_f32 v{o}, v16, v17")
        A(f"v_cvt_pk_bf16_f32 v{o+1}, v18, v19")
        A(f"buffer_store_dwordx2 v[{o}:{o+1}], v{R.vout}, {srd(R.srdO)}, 0 offen offset:{32*mt}{OUTSC}")
```

```python
import sys, os
sys.path.insert(0, os.path.dirname(os.path.abspath(__file__)))
from asmlib import *
from layout import *
import f1, f2, g2, aux, hazard

NAME = "gated_mix__spectral_gfnet__swiglu_ffn__prompt_kernel"
pAX, pWR, pWI, pBX, pWG, pWU, pWD, pGW, pOUT, pDBG, pWS = 68, 70, 72, 74, 76, 78, 80, 82, 84, 86, 88
sNONCE, srdF, sSPIN, sTMP, sID = 90, 92, 96, 97, 98
srdD = 0
SPIN_MAX = 20000
import os
if os.environ.get('NOSPIN'): SPIN_MAX = 0

class Gen:
    def __init__(self, stamps=False, order="AB", gemm_first=True, exp="", ta2=11, tf1=-1, d2=2, nwa2=7, early3=True, npre=3, dep2at=9, wput=2, wputr=4, codepf=1, tlbpf=0, twt=-1, wsbase=0, map48=False, ahead=4, pro=2, xpf=None, outsc='', dbgsel=None, spread=True, dyn=False, lean=0, w1=0, wepi=3, pk2=True, cpfirst=True, zfirst=False, ovl=True, plead=2, p3r=-1, rgmap=True):
        self.rgmap = rgmap
        self.plead = plead; self.p3r = p3r
        f2.OVL = ovl
        self.zfirst = zfirst
        self.cpfirst = cpfirst
        aux.PK2 = pk2
        self.wepi = wepi
        self.w1 = w1
        if w1:
            f1.R.opF = 'a'; f1.R.opA = (0, 20); f1.R.opB = (12, 32)
        else:
            f1.R.opF = 'v'; f1.R.opA = (16, 36); f1.R.opB = (28, 48)
        self.lean = lean
        self.dyn = dyn and stamps != 'dbg'
        f1.SPREAD = spread
        f2.OUTSC = outsc
        self.xpf = xpf
        self.pro = pro
        f2.MAP48 = map48; f2.AHEAD = ahead
        self.wsbase = wsbase
        self.twt = twt
        self.tlbpf = tlbpf
        self.codepf = codepf
        self.wput = wput; self.wputr = wputr
        self.dep2at = dep2at
        self.early3 = early3; self.npre = npre
        self.exp = exp; self.ta2 = ta2; self.tf1 = tf1; self.d2 = d2; self.nwa2 = nwa2
        self.A = Asm("K"); self.stamps = stamps; self.ns = 0; self.names = {}
        self.gemm_first = gemm_first
        self.dbg_sel = {"gemm": [(0,"start",1),(1,"consts",0),(2,"core",0),(3,"a1",0),(4,"preps",0),(5,"flag1",0),(6,"dep1",0),(7,"a2 start",0),(8,"a2 end",0),
                                 (9,"f1 loop end",0),(10,"f1 epi",0),(11,"dep2",0),(12,"a3 elem",0),(13,"a3 core",0),(14,"f2 loop end",0),(15,"end",0)]}
        if dbgsel: self.dbg_sel = {'gemm': [(i, n, 1 if i == 0 else 0) for i, n in enumerate(dbgsel)]}
        g2.ORDER = order; g2.STG = g2.stages()
    def stamp(self, name=None):
        if not self.stamps: return
        if self.stamps == "min" and name not in ("start", "end"): return
        A = self.A
        A("s_memrealtime s[100:101]")
        A("s_waitcnt lgkmcnt(0)")
        A(f"v_writelane_b32 v255, s100, {self.ns}")
        self.names.setdefault(self.role, []).append((self.ns, name))
        self.ns += 1
    def dump_stamps(self):
        if not self.stamps: return
        A = self.A
        if self.stamps == "dbg":
            sel = self.dbg_sel[self.role]
            A("s_waitcnt vmcnt(0) lgkmcnt(0)")
            A.srd(8, pDBG, 256)
            lab = A.label("nd")
            A("s_cmp_lg_u32 s20, 0")
            A(f"s_cbranch_scc1 {lab}")
            names = {nm: idx for idx, nm in self.names[self.role]}
            A("v_mov_b32 v2, 0")
            A("v_mov_b32 v3, 0x40000000")
            for slot, nm, inv in sel:
                A(f"v_readlane_b32 s30, v255, {names[nm]}")
                if inv: A("s_not_b32 s30, s30")
                A(f"s_mov_b32 s31, {4*slot}")
                A(f"v_writelane_b32 v2, s30, {slot}")
                A(f"v_writelane_b32 v3, s31, {slot}")
            A("buffer_atomic_umax v2, v3, s[8:11], 0 offen")
            A(f"{lab}:")
            return
        A("s_waitcnt vmcnt(0) lgkmcnt(0)")
        A.srd(8, pDBG, 1 << 20)
        A("v_lshlrev_b32 v1, 2, v0")
        A(f"s_lshl_b32 s30, s{sID}, 10")
        A("s_add_u32 s30, s30, 4096")
        A("buffer_store_dword v255, v1, s[8:11], s30 offen")
    def flag_store(self, off, s_idx):
        A = self.A
        lab = A.label("sig")
        A(f"s_cmp_lg_u32 s20, 0")
        A(f"s_cbranch_scc1 {lab}")
        A(f"s_lshl_b32 s{sTMP}, s{s_idx}, 2")
        A(f"s_add_u32 s{sTMP}, s{sTMP}, {off}")
        A(f"v_mov_b32 v249, s{sNONCE}")
        A(f"v_mov_b32 v254, 0")
        A("s_mov_b64 exec, 1")
        A(f"buffer_store_dword v249, v254, {srd(srdF)}, s{sTMP} offen sc1")
        A("s_mov_b64 exec, -1")
        A(f"{lab}:")
    def flag_store_all(self, vm, off, s_idx):
        A = self.A
        A(f"s_lshl_b32 s{sTMP}, s{s_idx}, 2")
        A(f"s_add_u32 s{sTMP}, s{sTMP}, {off}")
        A(f"s_cmp_eq_u32 s20, 0")
        A(f"s_cselect_b32 s{sTMP}, s{sTMP}, 0x40000000")
        A(f"v_mov_b32 v249, s{sNONCE}")
        A(f"v_mov_b32 v254, 0")
        A("s_mov_b64 exec, 1")
        A(f"buffer_store_dword v249, v254, {srd(srdF)}, s{sTMP} offen sc1")
        A("s_mov_b64 exec, -1")
        vm.issue("flag")
    def arrive(self, vm, phase):
        A = self.A
        off = (OFF_FLAG1, OFF_FLAG2, OFF_FLAG1B)[phase]
        A(f"s_lshl_b32 s{sTMP}, s{sID}, 2")
        A(f"s_add_u32 s{sTMP}, s{sTMP}, {off}")
        A(f"s_cmp_eq_u32 s20, 0")
        A(f"s_cselect_b32 s{sTMP}, s{sTMP}, 0x40000000")
        A(f"v_mov_b32 v249, s{sNONCE}")
        A(f"v_and_b32 v254, 7, v0")
        A(f"v_lshlrev_b32 v254, 10, v254")
        A("s_mov_b64 exec, 0xff")
        A(f"buffer_store_dword v249, v254, {srd(srdF)}, s{sTMP} offen sc1")
        A("s_mov_b64 exec, -1")
        vm.issue("flag")
    def cpoll_issue(self, vm, phase):
        A = self.A
        off = (OFF_FLAG1, OFF_FLAG2, OFF_FLAG1B)[phase]
        A(f"v_and_b32 v254, 63, v0")
        A(f"v_lshlrev_b32 v254, 4, v254")
        A(f"s_and_b32 s{sTMP}, s{sID}, 7")
        A(f"s_lshl_b32 s{sTMP}, s{sTMP}, 10")
        A(f"s_add_u32 s{sTMP}, s{sTMP}, {off}")
        A(f"s_cmp_eq_u32 s20, 0")
        A(f"s_cselect_b32 s{sTMP}, s{sTMP}, 0x40000000")
        A(f"buffer_load_dwordx4 v[250:253], v254, {srd(srdF)}, s{sTMP} offen sc1")
        vm.issue("cpoll")
    def cpoll_check(self, vm, phase):
        A = self.A
        off = (OFF_FLAG1, OFF_FLAG2, OFF_FLAG1B)[phase]
        lo, ok = A.label("w"), A.label("wok")
        A(f"s_waitcnt vmcnt({vm.wait({'cpoll'})})")
        A(f"s_cmp_lg_u32 s20, 0")
        A(f"s_cbranch_scc1 {ok}")
        A(f"s_mov_b32 s{sSPIN}, 0")
        A(f"{lo}:")
        for k in range(4): A(f"v_xor_b32 v{250+k}, s{sNONCE}, v{250+k}")
        A(f"v_or3_b32 v250, v250, v251, v252")
        A(f"v_or_b32 v250, v250, v253")
        A(f"v_cmp_ne_u32 vcc, 0, v250")
        A(f"s_cbranch_vccz {ok}")
        A(f"s_add_u32 s{sSPIN}, s{sSPIN}, 1")
        A(f"s_cmp_gt_u32 s{sSPIN}, {SPIN_MAX}")
        A(f"s_cbranch_scc1 {ok}")
        A("s_sleep 2")
        A(f"v_and_b32 v254, 63, v0")
        A(f"v_lshlrev_b32 v254, 4, v254")
        A(f"s_and_b32 s{sTMP}, s{sID}, 7")
        A(f"s_lshl_b32 s{sTMP}, s{sTMP}, 10")
        A(f"s_add_u32 s{sTMP}, s{sTMP}, {off}")
        A(f"buffer_load_dwordx4 v[250:253], v254, {srd(srdF)}, s{sTMP} offen sc1")
        A("s_waitcnt vmcnt(0)")
        A(f"s_branch {lo}")
        A(f"{ok}:")
    def flag_store_wave(self, vm, off, s_idx):
        A = self.A
        A(f"s_lshl_b32 s{sTMP}, s{s_idx}, 2")
        A(f"s_add_u32 s{sTMP}, s{sTMP}, {off}")
        A(f"v_mov_b32 v249, s{sNONCE}")
        A(f"v_mov_b32 v254, 0")
        A("s_mov_b64 exec, 1")
        A(f"buffer_store_dword v249, v254, {srd(srdF)}, s{sTMP} offen sc1")
        A("s_mov_b64 exec, -1")
        vm.issue("flag")
    def signal(self, vm, off, s_idx):
        A = self.A
        A("s_waitcnt vmcnt(0)")
        A("s_barrier")
        vm.q = []
        self.flag_store_all(vm, off, s_idx)
    def poll_issue(self, vm, off):
        A = self.A
        A(f"v_and_b32 v254, 63, v0")
        A(f"v_lshlrev_b32 v254, 4, v254")
        A(f"s_mov_b32 s{sTMP}, {off}")
        A(f"buffer_load_dwordx4 v[250:253], v254, {srd(srdF)}, s{sTMP} offen sc1")
        vm.issue("poll")
    def poll_check(self, vm, off):
        A = self.A
        lo, ok = A.label("w"), A.label("wok")
        A(f"s_waitcnt vmcnt({vm.wait({'poll'})})")
        A(f"s_mov_b32 s{sSPIN}, 0")
        A(f"{lo}:")
        for k in range(4): A(f"v_xor_b32 v{250+k}, s{sNONCE}, v{250+k}")
        A(f"v_or3_b32 v250, v250, v251, v252")
        A(f"v_or_b32 v250, v250, v253")
        A(f"v_cmp_ne_u32 vcc, 0, v250")
        A(f"s_cbranch_vccz {ok}")
        A(f"s_add_u32 s{sSPIN}, s{sSPIN}, 1")
        A(f"s_cmp_gt_u32 s{sSPIN}, {SPIN_MAX}")
        A(f"s_cbranch_scc1 {ok}")
        A("s_sleep 4")
        A(f"s_mov_b32 s{sTMP}, {off}")
        A(f"buffer_load_dwordx4 v[250:253], v254, {srd(srdF)}, s{sTMP} offen sc1")
        A("s_waitcnt vmcnt(0)")
        A(f"s_branch {lo}")
        A(f"{ok}:")
    def wait_all(self, vm, off):
        self.poll_issue(vm, off); self.poll_check(vm, off)
    def wait_idx(self, vm, off, v_idx_code):
        A = self.A
        lo, ok = A.label("w"), A.label("wok")
        v_idx_code()
        A(f"s_mov_b32 s{sSPIN}, 0")
        A(f"s_mov_b32 s{sTMP}, {off}")
        A(f"{lo}:")
        A(f"buffer_load_dword v250, v254, {srd(srdF)}, s{sTMP} offen sc1")
        A("s_waitcnt vmcnt(0)")
        A(f"v_cmp_ne_u32 vcc, s{sNONCE}, v250")
        A(f"s_cbranch_vccz {ok}")
        A(f"s_add_u32 s{sSPIN}, s{sSPIN}, 1")
        A(f"s_cmp_gt_u32 s{sSPIN}, {SPIN_MAX}")
        A(f"s_cbranch_scc1 {ok}")
        A("s_sleep 4")
        A(f"s_branch {lo}")
        A(f"{ok}:")
        vm.q = []

    def body(self):
        A = self.A; self.role = "gemm"; self.ns = 0
        vm = VM()
        TA2 = self.ta2
        self.stamp("start")
        X = self.exp.split("+")
        aux.setup(A, pAX, pWR, pWI, pWD, pGW, pWS)
        issued = set()
        def iss(*ks):
            for k in ks:
                f1.issue(A, vm, *k); issued.add(k)
        def mid():
            if "nopf" not in X and "pflate" not in X and "pfmid" not in X and "pf2" not in X and "pf0" not in X and "pf3" not in X and "pf4" not in X: f1.l2_prefetch(A, vm, pWG, pWU)
        if "pf0" in X: f1.l2_prefetch(A, vm, pWG, pWU)
        aux.issue_loads(A, vm, mid, wd=("wdlate" not in X and "wdmid" not in X and "wd2" not in X and "wd3" not in X))
        self.stamp("issued")
        aux.consts_a1(A)
        if self.lean == 0:
            f1.setup(A, sID, pAX, pWG, pWU, pWS)
            aux.setup_out(A, pWS)
            f1.setup_reads(A)
            A(aux.consts_a2_fill())
            aux.phase1_pre(A)
        if "wdmid" in X: aux.issue_wd(A, vm)
        if "pfmid" in X: f1.l2_prefetch(A, vm, pWG, pWU)
        self.stamp("consts")
        aux.a1_core(A, vm)
        self.stamp("core")
        if self.lean >= 1:
            A('s_waitcnt lgkmcnt(0)')
            aux.setup_out(A, pWS)
            aux.phase1_pre(A)
            f1.setup(A, sID, pAX, pWG, pWU, pWS)
            f1.setup_reads(A)
            if self.lean == 1: A(aux.consts_a2_fill())
        if "wdlate" in X: aux.issue_wd(A, vm)
        if "pflate" in X: f1.l2_prefetch(A, vm, pWG, pWU)
        A("s_waitcnt lgkmcnt(0)")
        A(f"s_add_u32 s{sNONCE}, s{sNONCE}, 1")
        A(f"s_waitcnt vmcnt({vm.wait({'ws', 'gw'} | (set() if ('wdlate' in X or 'wdmid' in X or 'wd2' in X or 'wd3' in X) else {'wd'}))})")
        if "pf2" in X: f1.l2_prefetch(A, vm, pWG, pWU)
        if "wd2" in X: aux.issue_wd(A, vm)
        self.stamp("wswait")
        aux.a1_elem(A, vm)
        self.stamp("a1")
        if "nop1" not in self.exp and "nopreps" not in self.exp:
            late_dma = "pf3" in X or "pf4" in X
            if not late_dma: iss(("x", 0), ("w", 0))
            self.stamp("x0w0")
            aux.wprep(A, vm)
            self.stamp("wp")
            if not late_dma: iss(("w", 1))
            if "wdlate" in X or "wdmid" in X:
                A(f"s_waitcnt vmcnt({vm.wait({'wd'})})")
                A("s_barrier")
            if self.twt < 0: aux.wtprep(A, vm)
            self.stamp("wprep")
            if late_dma:
                if "pf3" in X:
                    iss(("x", 0), ("w", 0)); f1.l2_prefetch(A, vm, pWG, pWU); iss(("w", 1))
                else:
                    f1.l2_prefetch(A, vm, pWG, pWU); iss(("x", 0), ("w", 0), ("w", 1))
            iss(("x", 1), ("w", 2))
            if self.pro >= 1 and f1.NWS == 6: iss(("w", 3))
            if self.pro >= 2: iss(("x", 2))
            aux.gate(A, vm)

        if 'nop1' in self.exp: A('s_waitcnt vmcnt(0)')
        self.stamp("preps")
        class Hooks(dict):
            def __setitem__(self, k, fn):
                old = self.get(k)
                dict.__setitem__(self, k, fn if old is None else (lambda o=old, n=fn: (o(), n())))
        class Tags(dict):
            def __setitem__(self, k, tags):
                dict.__setitem__(self, k, set(self.get(k, ())) | set(tags))
        after, pause, extra, before = Hooks(), Hooks(), Tags(), Hooks()
        extra[self.tf1] = {'st'}
        after[self.tf1] = lambda: (self.arrive(vm, 0), self.stamp("flag1"), aux.issue_wd(A, vm) if 'wd3' in X else None)
        if self.xpf is not None: after[self.xpf] = lambda: f1.x_prefetch(A, vm)
        if self.dyn:
            TT = TA2 - 6
            def t_take():
                A.srd(4, pDBG, 256)
                A(f"s_and_b32 s{sTMP}, s{sID}, 7")
                A(f"s_lshl_b32 s{sTMP}, s{sTMP}, 5")
                A(f"s_cmp_eq_u32 s20, 0")
                A(f"s_cselect_b32 s{sTMP}, s{sTMP}, 0x40000000")
                A(f"v_mov_b32 v248, 1")
                A(f"v_mov_b32 v247, 0")
                A("s_mov_b64 exec, 1")
                A(f"buffer_atomic_add v248, v247, s[4:7], s{sTMP} offen sc0 sc1")
                A("s_mov_b64 exec, -1")
                vm.issue("tick")
            def t_share():
                A(f"s_lshl_b32 s{sTMP}, s20, 6")
                A(f"s_add_u32 s{sTMP}, s{sTMP}, {aux.L_GW}")
                A(f"v_mov_b32 v247, s{sTMP}")
                A("s_mov_b64 exec, 1")
                A("ds_write_b32 v247, v248")
                A("s_mov_b64 exec, -1")
                A("s_waitcnt lgkmcnt(0)")
            def t_read():
                A(f"v_mov_b32 v247, {aux.L_GW}")
                A("ds_read_b32 v248, v247")
            def t_use():
                A(f"v_readfirstlane_b32 s{aux.R.sa2}, v248")
                A(f"s_lshl_b32 s{aux.R.sa2}, s{aux.R.sa2}, 3")
                A(f"s_and_b32 s{sTMP}, s{sID}, 7")
                A(f"s_add_u32 s{aux.R.sa2}, s{aux.R.sa2}, s{sTMP}")
            after[TT] = t_take
            extra[TT+2] = {"tick"}
            before[TT+2] = t_share
            after[TT+2] = t_read
            after[TT+3] = t_use
        else:
            after[0] = lambda: A(f"s_mov_b32 s{aux.R.sa2}, s{sID}")
        def a2_issue():
            A(f"s_or_b32 s{sTMP}, s{sID}, s20")
            A(f"s_cmp_eq_u32 s{sTMP}, 0")
            A(f"s_cselect_b32 s{sTMP}, 0, 0x40000000")
            A(f"v_mov_b32 v249, s{sNONCE}")
            A(f"v_mov_b32 v254, 0")
            A("s_mov_b64 exec, 1")
            A(f"buffer_store_dword v249, v254, {srd(srdF)}, s{sTMP} offen sc1")
            A("s_mov_b64 exec, -1")
            vm.issue("flag")
            self.stamp("dep1")
            aux.a2_loads(A, vm, pWS)
            if not self.w1: f2.setup_w(A, sID, pWS)
        NW_A2 = self.nwa2
        watoms = f2.w_loads(range(NW_A2))
        def a2_run():
            lab, lab2 = A.label("noa2"), A.label("a2d")
            self.stamp("a2 start")
            A(f"s_waitcnt vmcnt({vm.wait({'a2in'})})")
            A(f"s_cmp_ge_u32 s{aux.R.sa2}, {0 if 'noa2' in self.exp else 162}")
            A(f"s_cbranch_scc1 {lab}")
            v2 = VM()
            def st2(T, n):
                if self.stamps and "a2fine" in self.exp:
                    keep = self.A; self.A = T; self.stamp(n); self.A = keep
            aux.a2(A, v2, pWS, waited=True, weave=list(watoms), stamp=st2)
            A(f"s_branch {lab2}")
            A(f"{lab}:")
            for ins in watoms: A(ins)
            A(f"{lab2}:")
            for k in range(len(watoms)): vm.issue(f"W{k//5}")
            vm.mark('zst')
            self.stamp("a2 end")
        weave = None
        if self.w1:
            T0 = self.w1
            after[T0-6] = lambda: self.cpoll_issue(vm, 0)
            before[T0-3] = lambda: self.cpoll_check(vm, 0)
            after[T0-3] = a2_issue
            extra[T0] = {'a2in'}
            def skip(label):
                A(f"s_cmp_ge_u32 s{aux.R.sa2}, 162")
                A(f"s_cbranch_scc1 {label}")
            weave = dict(ts=T0, te=T0+6, bundles=aux.a2_bundles(pWS, T0), skip=skip, mark='zst')
            if T0 + 8 <= 18:
                extra[T0+8] = {'zst', 'gst'}
                after[T0+8] = lambda: self.arrive(vm, 1)
        else:
            after[TA2-1-self.plead] = lambda: self.cpoll_issue(vm, 0)
            before[TA2-1] = lambda: self.cpoll_check(vm, 0)
            after[TA2-1] = a2_issue
            pause[TA2] = a2_run
            if self.twt >= 0:
                if 'wd2' in X or 'wd3' in X: extra[self.twt] = set(extra.get(self.twt, ())) | {'wd'}
                pause[self.twt] = lambda: aux.wtprep(A, vm, tag='wtst')
                extra[self.twt + 3] = {'wtst'}
                after[self.twt + 3] = lambda: self.arrive(vm, 2)
                after[TA2-1] = lambda: self.cpoll_issue(vm, 2)
                before[TA2] = lambda: self.cpoll_check(vm, 2)
            extra[TA2+self.d2] = {'zst', 'gst'}
            after[TA2+self.d2] = lambda: self.arrive(vm, 1)
        if self.dep2at < 0:
            after[16] = lambda: self.cpoll_issue(vm, 1)
            before[18] = lambda: self.cpoll_check(vm, 1)
        if "fine" in self.exp:
            for t in range(0, 19, 2):
                def mk(t, old):
                    def f():
                        if old: old()
                        self.stamp(f"bar{t}")
                    return f
                after[t] = (lambda t=t: self.stamp(f"bar{t}"))
        fl = aux.consts_a2_fill() if self.lean == 2 else []
        f1.main(A, vm, issued, fill=fl, after_barrier=after, pause=pause, late=[k for k in ([("w", 3), ("x", 2), ("w", 4), ("w", 5)] if f1.NWS == 6 else [("w", 3), ("x", 3), ("w", 4)]) if k not in issued], extra_need=extra, before_barrier=before, weave=weave)
        if self.w1 and self.w1 + 8 > 18:
            A(f"s_waitcnt vmcnt({vm.wait({'zst', 'gst'})})")
            A("s_barrier")
            self.arrive(vm, 1)
        self.stamp("f1 loop end")
        if self.w1: f2.setup_w(A, sID, pWS)
        f2.setup(A, sID, pWS, pOUT)
        if self.dep2at < 0:
            self.stamp("dep2")
            aux.a3_loads(A, vm, pWS)
        nw0 = 0 if self.w1 else self.nwa2
        atoms = [(ins, f"W{nw0 + k//5}") for k, ins in enumerate(f2.w_loads(range(nw0, 10)))]
        def put(n):
            for _ in range(n):
                if atoms:
                    ins, tag = atoms.pop(0); A(ins); vm.issue(tag)
        def btw(k):
            if self.dep2at == 9:
                if k == 3: self.cpoll_issue(vm, 1)
                if self.w1: put(self.wepi)
                return
            if self.dep2at < 0 or k > self.dep2at: put(self.wput)
            if self.dep2at >= 0:
                if k == max(0, self.dep2at - 2): self.cpoll_issue(vm, 1)
                if k == self.dep2at:
                    self.cpoll_check(vm, 1)
                    A("s_barrier")
                    self.stamp("dep2")
                    aux.a3_loads(A, vm, pWS)
        f1.epilogue(A, vm, pWS, between=btw)
        self.stamp("f1 epi")
        A(f"s_lshl_b32 s{sTMP}, s{f1.R.smt}, 1")
        A(f"s_lshr_b32 s99, s20, 1")
        A(f"s_add_u32 s{sTMP}, s{sTMP}, s99")
        A(f"s_lshl_b32 s{sTMP}, s{sTMP}, 5")
        A(f"s_lshl_b32 s99, s{f1.R.sft}, 1")
        A(f"s_add_u32 s{sTMP}, s{sTMP}, s99")
        A(f"s_and_b32 s99, s20, 1")
        A(f"s_add_u32 s99, s{sTMP}, s99")
        if self.dep2at == 9:
            aux.a3_pre(A)
            f2.setup2(A, pWS, pOUT)
            if not self.zfirst:
                A(f"s_waitcnt vmcnt({vm.wait({'hst'})})")
                self.flag_store_wave(vm, OFF_FLAG3, 99)
            self.cpoll_check(vm, 1)
            A("s_barrier")
            self.stamp("dep2")
            aux.a3_loads(A, vm, pWS)
            if self.zfirst:
                put(self.wput*2)
                A(f"s_waitcnt vmcnt({vm.wait({'hst', 'zl'})})")
                self.flag_store_wave(vm, OFF_FLAG3, 99)
                put(self.wput)
            else:
                put(self.wput*3)
        def poll3_issue():
            A(f"v_and_b32 v254, 31, v0")
            A(f"s_lshl_b32 s{sTMP}, s{f2.R.sT}, 5")
            A(f"v_add_u32 v254, s{sTMP}, v254")
            A(f"v_lshlrev_b32 v254, 2, v254")
            A(f"s_mov_b32 s{sTMP}, {OFF_FLAG3}")
            A(f"buffer_load_dword v250, v254, {srd(srdF)}, s{sTMP} offen sc1")
            vm.issue("poll3")
        def extra(rnd):
            if rnd == self.p3r: poll3_issue()
            if rnd > 0: put(self.wputr)
            if rnd == 1 and self.dep2at != 9:
                A(f"s_waitcnt vmcnt({vm.wait({'hst'})})")
                self.flag_store_wave(vm, OFF_FLAG3, 99)
        if self.dep2at != 9: aux.a3_pre(A)
        aux.a3_elem(A, vm, extra)
        put(100)
        A("s_barrier")
        self.stamp("a3 elem")
        if self.dep2at != 9: f2.setup2(A, pWS, pOUT)
        def check_one(tag, off):
            lo, ok = A.label("w"), A.label("wok")
            A(f"s_waitcnt vmcnt({vm.wait({tag})})")
            A(f"s_mov_b32 s{sSPIN}, 0")
            A(f"{lo}:")
            A(f"v_cmp_ne_u32 vcc, s{sNONCE}, v250")
            A(f"s_cbranch_vccz {ok}")
            A(f"s_add_u32 s{sSPIN}, s{sSPIN}, 1")
            A(f"s_cmp_gt_u32 s{sSPIN}, {SPIN_MAX}")
            A(f"s_cbranch_scc1 {ok}")
            A("s_sleep 4")
            A(f"s_mov_b32 s{sTMP}, {off}")
            A(f"buffer_load_dword v250, v254, {srd(srdF)}, s{sTMP} offen sc1")
            A("s_waitcnt vmcnt(0)")
            A(f"s_branch {lo}")
            A(f"{ok}:")
        npre = self.npre
        if self.early3:
            if self.p3r < 0: poll3_issue()
            def mid():
                check_one("poll3", OFF_FLAG3)
                for i in range(npre):
                    A(f2.h_loads(i)); vm.issue(f"h{i}", 4)
            aux.a3_core(A, vm, pWS, mid=mid)
        else:
            aux.a3_core(A, vm, pWS, mid=(poll3_issue if self.p3r < 0 else None))
        for k, ins in enumerate(f2.w_loads((10, 11))):
            A(ins); vm.issue(f"W{10 + k//5}")
        self.stamp("a3 core")
        if not self.early3:
            check_one("poll3", OFF_FLAG3)
            npre = 0
        self.stamp("dep3")
        def flag4():
            A(f"s_waitcnt vmcnt({vm.wait({'gast'})})")
            A(f"s_lshl_b32 s99, s{aux.R.srg}, 2")
            A(f"s_add_u32 s99, s99, s20")
            self.flag_store_wave(vm, OFF_FLAG4, 99)
        def code4():
            A(f"v_and_b32 v254, 63, v0")
            A(f"s_and_b32 s{sTMP}, s{f2.R.sT}, 15")
            A(f"s_lshl_b32 s{sTMP}, s{sTMP}, 6")
            A(f"v_add_u32 v254, s{sTMP}, v254")
            A(f"v_lshlrev_b32 v254, 2, v254")
        def h_issue4():
            code4()
            A(f"s_mov_b32 s{sTMP}, {OFF_FLAG4}")
            A(f"buffer_load_dword v250, v254, {srd(srdF)}, s{sTMP} offen sc1")
            vm.issue("poll4")
        def h_check4():
            check_one("poll4", OFF_FLAG4)
            f2.final_loads(A, vm)
        hk = {1: flag4, 6: h_issue4, 10: h_check4}
        if "f2fine" in self.exp:
            for i_ in (0, 2, 4, 8, 11):
                hk[i_] = (lambda o=hk.get(i_), i_=i_: ((o() if o else None), self.stamp(f"f2s{i_}")))
        f2.main(A, vm, hooks=hk, pre_issued=npre)
        self.stamp("f2 loop end")
        f2.epilogue(A, vm)
        self.stamp("end")
        self.dump_stamps()
        A("s_endpgm")

    def build(self):
        A = self.A
        A(f"s_cmp_ge_u32 s2, 256")
        A(f"s_cbranch_scc1 K_exit")
        A(f"s_load_dwordx16 s[68:83], s[0:1], 0")
        A(f"s_load_dwordx4 s[84:87], s[0:1], 64")
        A(f"s_load_dwordx2 s[88:89], s[0:1], 80")
        if self.cpfirst:
            if self.codepf:
                A("s_getpc_b64 s[4:5]")
                A("K_pc:")
                A("s_and_b32 s5, s5, 0xffff")
                A("s_mov_b32 s6, K_exit-K_pc")
                A("s_mov_b32 s7, 0x20000")
                A("v_lshlrev_b32 v4, 7, v0")
                for k in range(self.codepf):
                    A(f"s_mov_b32 s28, {32768*k}")
                    A(f"buffer_load_dword v229, v4, s[4:7], s28 offen")

        if self.stamps: A("v_mov_b32 v255, 0")
        A(f"s_mov_b32 s{sID}, s2")
        if self.rgmap:
            A(f"s_and_b32 s3, s2, 7")
            A(f"s_lshl_b32 s3, s3, 1")
            A(f"s_bfe_u32 s28, s2, {3 | (1 << 16)}")
            A(f"s_add_u32 s3, s3, s28")
            A(f"s_and_b32 s28, s2, 0xf0")
            A(f"s_add_u32 s3, s3, s28")
        else:
            A(f"s_mov_b32 s3, s2")
        A(f"v_lshrrev_b32 v4, 6, v0")
        A("s_nop 0")
        A(f"v_readfirstlane_b32 s20, v4")
        A("s_waitcnt lgkmcnt(0)")
        if self.wsbase:
            A(f"s_add_u32 s{pWS}, s{pWS}, {hex(self.wsbase)}")
            A(f"s_addc_u32 s{pWS+1}, s{pWS+1}, 0")
        A(f"s_load_dword s{sNONCE}, s[{pWS}:{pWS+1}], {OFF_EPOCH}")
        if not self.cpfirst:
            if self.codepf:
                A("s_getpc_b64 s[4:5]")
                A("K_pc:")
                A("s_and_b32 s5, s5, 0xffff")
                A("s_mov_b32 s6, K_exit-K_pc")
                A("s_mov_b32 s7, 0x20000")
                A("v_lshlrev_b32 v4, 7, v0")
                for k in range(self.codepf):
                    A(f"s_mov_b32 s28, {32768*k}")
                    A(f"buffer_load_dword v229, v4, s[4:7], s28 offen")
        if self.tlbpf:
            A.srd(4, pWS, 28 << 20)
            A("v_and_b32 v4, 63, v0")
            A("v_lshlrev_b32 v4, 19, v4")
            A("v_add_u32 v4, 0x7ff80, v4")
            A(f"buffer_load_dword v229, v4, s[4:7], 0 offen")
            A.srd(4, pOUT, 2048*640*2)
            A("v_and_b32 v4, 63, v0")
            A("v_lshlrev_b32 v4, 16, v4")
            A(f"buffer_load_dword v229, v4, s[4:7], 0 offen")
        A.srd(srdF, pWS, SZ_FLAGS)
        self.body()
        A("K_exit:")
        A("s_endpgm")
        if os.environ.get('NOST'):
            out = []
            for l in A.l:
                if 'buffer_store' in l and ('s[36:39]' in l or 's[48:51]' in l or 's[56:59]' in l): l = '  s_nop 0'
                out.append(l)
            A.l = out
        lines, n = hazard.fix(A.l)
        return lines

HEADER = open(os.path.join(os.path.dirname(os.path.abspath(__file__)), "header.txt")).read()
def full_source(**kw):
    g = Gen(**kw)
    body = "\n".join(g.build())
    src = HEADER + f"""; @launch grid=(256,1,1) block=(256,1,1) lds=163840
.amdgcn_target "amdgcn-amd-amdhsa--gfx950"
.text
.globl {NAME}
.p2align 8
.type {NAME},@function
{NAME}:
{body}
.section .rodata,"a"
.p2align 6
.amdhsa_kernel {NAME}
  .amdhsa_next_free_vgpr 512
  .amdhsa_next_free_sgpr 102
  .amdhsa_accum_offset 256
  .amdhsa_group_segment_fixed_size 0
  .amdhsa_kernarg_size 88
  .amdhsa_user_sgpr_count 2
  .amdhsa_user_sgpr_kernarg_segment_ptr 1
  .amdhsa_system_sgpr_workgroup_id_x 1
.end_amdhsa_kernel
"""
    return src, g
if __name__ == "__main__":
    kw = {}
    for o in sys.argv[2:]:
        k, v_ = o.split("="); kw[k] = eval(v_)
    src, g = full_source(**kw)
    out = sys.argv[1] if len(sys.argv) > 1 else "gated_mix__spectral_gfnet__swiglu_ffn__prompt.s"
    open(out, "w").write(src)
    print("wrote", out, len(src), "bytes")
```

```python
from asmlib import *
from layout import *
import struct
def fb(x): return hex(struct.unpack('<I', struct.pack('<f', x))[0])

import os
SC = os.environ.get('AUXSC', ' sc1')
NOST = os.environ.get('NOST')
PK2 = True
class R:
    vl = 1
    vn = 2
    vh = 3
    TWr, TWi = 160, 176
    t3r, t3i = 192, 198
    T2r, T2i = 0, 16
    CRe, CIm, F10 = 216, 232, 248
    sw = 20
    sc = 98
    sa2 = 63
    srg = 3
    srdAX, srdX1, srdWR, srdWI, srdWF, srdWD, srdWT, srdGW, srdG, srdFT, srdZ = 32, 36, 40, 44, 48, 52, 56, 60, 64, 4, 4
    st = 28
    st2 = 99

import f1 as _f1
AUXB   = _f1.WBASE + _f1.NWS*_f1.WSLOT
L_XR   = AUXB
L_GW   = AUXB + 12288
if _f1.NXS == 4:
    L_WS = 3*_f1.XSLOT
    L_WD = AUXB + 14336
else:
    L_WS = AUXB + 14336
    L_WD = AUXB + 32768
L_Z    = _f1.WBASE + (_f1.NWS-2)*_f1.WSLOT
ZROW, ZWAVE = 2560, 5184
L_X    = AUXB
L_F    = AUXB + 16384

def setup(A, pAX, pWR, pWI, pWD, pGW, pWS):
    A.c("---- aux setup ----")
    A(f"v_and_b32 v{R.vl}, 63, v0")
    A(f"v_and_b32 v{R.vn}, 31, v{R.vl}")
    A(f"v_lshrrev_b32 v{R.vh}, 5, v{R.vl}")
    A.srd(R.srdAX, pAX, 2048*640*2)

def setup_out(A, pWS):
    A.srd(R.srdX1, pWS, SZ_X1, OFF_X1)
    A.srd(R.srdWF, pWS, SZ_WF, OFF_WF)
    A.srd(R.srdWT, pWS, SZ_WT, OFF_WT)
    A.srd(R.srdG, pWS, 8192, OFF_G)

XA = 16
def issue_wd(A, vm, pWD=80):
    st = R.st
    A.c("Wd tile DMA (workgroups >= 240 fall off the end of the buffer and get zeros)")
    A.srd(R.srdWD, pWD, 1536*640*2)
    A(f"s_mul_i32 s{st+2}, s{R.sc}, 52429")
    A(f"s_lshr_b32 s{st+2}, s{st+2}, 18")
    A(f"s_mul_i32 s{st+3}, s{st+2}, 5")
    A(f"s_sub_u32 s{st+3}, s{R.sc}, s{st+3}")
    A(f"s_lshl_b32 s{st}, s{st+2}, 5")
    A(f"s_lshl_b32 s{st+1}, s{R.sw}, 3")
    A(f"s_add_u32 s{st}, s{st}, s{st+1}")
    A(f"s_mul_i32 s{st}, s{st}, 1280")
    A(f"s_lshl_b32 s{st+1}, s{st+3}, 8")
    A(f"s_add_u32 s{st}, s{st}, s{st+1}")
    A(f"v_lshrrev_b32 v5, 4, v{R.vl}")
    A(f"v_mul_u32_u24 v5, 1280, v5")
    A(f"v_and_b32 v6, 15, v{R.vl}")
    A(f"v_lshl_add_u32 v5, v6, 4, v5")
    A(f"s_lshl_b32 s{st+1}, s{R.sw}, 11")
    A(f"s_add_u32 m0, s{st+1}, {L_WD}")
    A(f"v_add_u32 v6, {4*1280-1024}, v5")
    A(f"buffer_load_dwordx4 v5, {srd(R.srdWD)}, s{st} offen lds")
    A(f"buffer_load_dwordx4 v6, {srd(R.srdWD)}, s{st} offen offset:1024 lds")
    vm.issue('wd', 2)

def issue_loads(A, vm, mid=None, pWR=70, pWI=72, pWD=80, pGW=82, wd=True):
    st = R.st
    A.c("x rows: chunk i = 64j + l ; i<80 row s', i<160 row s'+1024, else out of range (zeros)")
    A(f"s_lshl_b32 s{st}, s{R.srg}, 2")
    A(f"s_add_u32 s{st}, s{st}, s{R.sw}")
    A(f"s_mul_i32 s{st}, s{st}, 1280")
    A(f"s_mul_i32 s{st+1}, s{R.sw}, 3072")
    A(f"s_add_u32 m0, s{st+1}, {L_XR}")
    A(f"v_lshlrev_b32 v4, 4, v{R.vl}")
    A(f"buffer_load_dwordx4 v4, {srd(R.srdAX)}, s{st} offen lds")
    A(f"v_add_u32 v5, {1024-1024}, v4")
    A(f"v_add_u32 v6, {1024*1280 - 256 - 1024}, v4")
    A(f"v_cmp_gt_u32 vcc, 16, v{R.vl}")
    A(f"v_cndmask_b32 v5, v6, v5, vcc")
    A(f"buffer_load_dwordx4 v5, {srd(R.srdAX)}, s{st} offen offset:1024 lds")
    A(f"v_add_u32 v5, {1024*1280 + 48*16 - 2048}, v4")
    A(f"v_mov_b32 v6, 0x40000000")
    A(f"v_cmp_gt_u32 vcc, 32, v{R.vl}")
    A(f"v_cndmask_b32 v5, v6, v5, vcc")
    A(f"buffer_load_dwordx4 v5, {srd(R.srdAX)}, s{st} offen offset:2048 lds")
    vm.issue('xr', 3)
    A.srd(R.srdWR, pWR, 2048*321*2)
    A.srd(R.srdWI, pWI, 2048*321*2)
    A.c("filter staging: rho=b&63 (rows 32 rho + e), cq=b>>6 ; wave: array = w>>1, rows 16(w&1) + i/12, chunk i%12")
    A(f"s_and_b32 s{st}, s{R.sc}, 63")
    A(f"s_lshl_b32 s{st}, s{st}, 5")
    A(f"s_and_b32 s{st+1}, s{R.sw}, 1")
    A(f"s_lshl_b32 s{st+1}, s{st+1}, 4")
    A(f"s_add_u32 s{st}, s{st}, s{st+1}")
    A(f"s_lshr_b32 s{st+1}, s{R.sc}, 6")
    A(f"s_mul_i32 s{st+1}, s{st+1}, 162")
    A(f"s_mul_i32 s{st+2}, s{R.sw}, 3072")
    A(f"s_add_u32 m0, s{st+2}, {L_WS}")
    A(f"s_cmp_lt_u32 s{R.sw}, 2")
    A(f"s_cselect_b32 s4, s{R.srdWR}, s{R.srdWI}")
    A(f"s_cselect_b32 s5, s{R.srdWR+1}, s{R.srdWI+1}")
    A(f"s_mov_b32 s6, {hex(2048*321*2)}")
    A(f"s_mov_b32 s7, 0x20000")
    for j in range(3):
        A(f"v_add_u32 v5, {64*j}, v{R.vl}")
        A(f"v_mul_u32_u24 v6, 5462, v5")
        A(f"v_lshrrev_b32 v6, 16, v6")
        A(f"v_mul_u32_u24 v7, 12, v6")
        A(f"v_sub_u32 v7, v5, v7")
        A(f"v_add_u32 v6, s{st}, v6")
        A(f"v_mul_u32_u24 v6, 642, v6")
        A(f"v_add_u32 v6, s{st+1}, v6")
        A(f"v_and_b32 v6, -16, v6")
        A(f"v_lshl_add_u32 v6, v7, 4, v6")
        if j: A(f"v_subrev_u32 v6, {1024*j}, v6")
        A(f"buffer_load_dwordx4 v6, s[4:7], 0 offen" + (f" offset:{1024*j}" if j else "") + " lds")
    vm.issue('ws', 3)
    if wd: issue_wd(A, vm, pWD)
    A.c("gate_w: 80 chunks ; wave w loads chunks 64w.. (out of range -> zeros)")
    A.srd(R.srdGW, pGW, 640*2)
    A(f"s_lshl_b32 s{st}, s{R.sw}, 10")
    A(f"s_min_u32 s{st}, s{st}, 1024")
    A(f"s_add_u32 m0, s{st}, {L_GW}")
    A(f"buffer_load_dwordx4 v4, {srd(R.srdGW)}, s{st} offen lds")
    vm.issue('gw', 1)
    if mid: mid()

def consts_a1(A):
    A.c("constants: F32 interleaved, tw320, F10")
    n, h = R.vn, R.vh
    A(f"v_cvt_f32_u32 v4, v{n}")
    A(f"v_cvt_f32_u32 v5, v{h}")
    A(f"v_mul_f32 v6, {fb(1/32)}, v4")
    A(f"v_mul_f32 v7, 4.0, v5")
    A(f"v_mul_f32 v8, v7, v6")
    for i in range(4):
        for q in range(4):
            A(f"v_fmamk_f32 v9, v6, {fb(float(8*i+q))}, v8")
            A(f"v_fract_f32 v9, v9")
            A(f"v_sin_f32 v10, v9")
            A(f"v_cos_f32 v11, v9")
            A("s_nop 0")
            A(f"v_cvt_pk_bf16_f32 v12, v11, v10")
            A(f"v_cvt_pk_bf16_f32 v13, -v10, v11")
            A(f"v_accvgpr_write_b32 a{R.CRe+4*i+q}, v12")
            A(f"v_accvgpr_write_b32 a{R.CIm+4*i+q}, v13")
    A(f"v_mul_f32 v6, {fb(1/320)}, v4")
    A(f"v_mul_f32 v8, v7, v6")
    for idx, (e, j) in enumerate([(0,0),(0,1),(0,2),(0,3),(1,0),(1,1)]):
        A(f"v_fmamk_f32 v9, v6, {fb(float(8*e+j))}, v8")
        A(f"v_cos_f32 v{R.t3r+idx}, v9")
        A(f"v_sin_f32 v{R.t3i+idx}, -v9")
    A(f"v_lshrrev_b32 v9, 3, v{n}")
    A(f"v_lshlrev_b32 v9, 2, v9")
    A(f"v_bfe_u32 v10, v{n}, 2, 1")
    A(f"v_lshl_add_u32 v9, v10, 1, v9")
    A(f"v_bfe_u32 v10, v{n}, 1, 1")
    A(f"v_add_u32 v9, v9, v10")
    A(f"v_cmp_gt_u32 s[{R.st}:{R.st+1}], 10, v9")
    A(f"v_cvt_f32_u32 v9, v9")
    A(f"v_mul_f32 v9, {fb(0.1)}, v9")
    A(f"v_and_b32 v10, 1, v{n}")
    A(f"v_cvt_f32_u32 v10, v10")
    A(f"v_mul_f32 v10, 0.25, v10" if False else f"v_mul_f32 v10, {fb(0.25)}, v10")
    A(f"v_fma_f32 v10, v7, v9, v10")
    A(f"v_cmp_eq_u32 vcc, 0, v{h}")
    A(f"s_and_b64 s[{R.st+2}:{R.st+3}], vcc, s[{R.st}:{R.st+1}]")
    for e in range(2):
        for q in range(4):
            d = R.F10 + 4*e + q
            if e == 1 and q >= 2:
                A(f"v_accvgpr_write_b32 a{d}, 0"); continue
            A(f"v_fmamk_f32 v11, v9, {fb(float(8*e+q))}, v10")
            A(f"v_fract_f32 v11, v11")
            A(f"v_cos_f32 v12, v11")
            A(f"v_sin_f32 v13, v11")
            A("s_nop 0")
            A(f"v_cvt_pk_bf16_f32 v12, v12, v13")
            m = R.st if e == 0 else R.st+2
            A(f"v_cndmask_b32 v12, 0, v12, s[{m}:{m+1}]")
            A(f"v_accvgpr_write_b32 a{d}, v12")

def consts_a2_fill():
    n, h = R.vn, R.vh
    t0, t1, t2, t3, t4, t5 = 243, 244, 245, 246, 247, 248
    L = [f"v_cvt_f32_u32 v{t0}, v{n}", f"v_cvt_f32_u32 v{t1}, v{h}", f"v_mul_f32 v{t1}, 4.0, v{t1}",
         f"v_mul_f32 v{t2}, {fb(1/1024)}, v{t0}", f"v_mul_f32 v{t3}, v{t1}, v{t2}"]
    for i in range(4):
        for j in range(4):
            L += [f"v_fmamk_f32 v{t4}, v{t2}, {fb(float(8*i+j))}, v{t3}",
                  f"v_cos_f32 v{R.TWr+4*i+j}, v{t4}", f"v_sin_f32 v{R.TWi+4*i+j}, -v{t4}"]
    return L

def cmulp(A, d, a, c, t, conj_out=False):
    A(f"v_pk_mul_f32 v[{t}:{t+1}], v[{a}:{a+1}], v[{c}:{c+1}] op_sel:[1,1] op_sel_hi:[1,0]")
    A(f"v_pk_fma_f32 v[{d}:{d+1}], v[{a}:{a+1}], v[{c}:{c+1}], v[{t}:{t+1}] op_sel:[0,0,0] op_sel_hi:[0,1,1] neg_lo:[0,0,1]")

def cmul(A, dr, di, ar, ai, br, bi, t):
    A(f"v_mul_f32 v{t}, v{ai}, v{bi}")
    A(f"v_mul_f32 v{di}, v{ai}, v{br}") if di == ai else A(f"v_mul_f32 v{di}, v{ai}, v{br}")
    A(f"v_fmac_f32 v{di}, v{ar}, v{bi}")
    A(f"v_fma_f32 v{dr}, v{ar}, v{br}, -v{t}")

D1r, D1i, PK, D2 = 32, 48, 96, (32, 48)
def fft320_core(A, xa=XA, tmp=(4, 6), mid=None):
    for i in range(4):
        c = "0" if i == 0 else f"v[{D1r}:{D1r+15}]"
        A(f"v_mfma_f32_32x32x16_bf16 v[{D1r}:{D1r+15}], v[{xa+4*i}:{xa+4*i+3}], a[{R.CRe+4*i}:{R.CRe+4*i+3}], {c}")
        c = "0" if i == 0 else f"v[{D1i}:{D1i+15}]"
        A(f"v_mfma_f32_32x32x16_bf16 v[{D1i}:{D1i+15}], v[{xa+4*i}:{xa+4*i+3}], a[{R.CIm+4*i}:{R.CIm+4*i+3}], {c}")
    for r in range(2):
        A(f"v_mov_b32 v{PK+8*r+6}, 0")
        A(f"v_mov_b32 v{PK+8*r+7}, 0")
    if mid: mid()
    t0, t1 = tmp
    for r in range(2):
        for idx, (e, j) in ((0, (0, 0)), (2, (0, 2)), (4, (1, 0))):
            reg = 4*(2*r+e) + j
            ar, ai = D1r+reg, D1i+reg
            tr, ti = R.t3r+idx, R.t3i+idx
            A(f"v_pk_mul_f32 v[{t0}:{t0+1}], v[{ai}:{ai+1}], v[{ti}:{ti+1}]")
            A(f"v_pk_mul_f32 v[{t1}:{t1+1}], v[{ai}:{ai+1}], v[{tr}:{tr+1}]")
            A(f"v_pk_fma_f32 v[{t0}:{t0+1}], v[{ar}:{ar+1}], v[{tr}:{tr+1}], v[{t0}:{t0+1}] neg_lo:[0,0,1] neg_hi:[0,0,1]")
            A(f"v_pk_fma_f32 v[{t1}:{t1+1}], v[{ar}:{ar+1}], v[{ti}:{ti+1}], v[{t1}:{t1+1}]")
            A(f"v_cvt_pk_bf16_f32 v{PK+8*r+4*e+j}, v{t0}, v{t1}")
            A(f"v_cvt_pk_bf16_f32 v{PK+8*r+4*e+j+1}, v{t0+1}, v{t1+1}")
    for r in range(2):
        for e in range(2):
            c = "0" if e == 0 else f"v[{D2[r]}:{D2[r]+15}]"
            A(f"v_mfma_f32_32x32x16_bf16 v[{D2[r]}:{D2[r]+15}], a[{R.F10+4*e}:{R.F10+4*e+3}], v[{PK+8*r+4*e}:{PK+8*r+4*e+3}], {c}")

def a1_core(A, vm):
    st = R.st
    A.c("---- A1 core ----")
    A(f"s_waitcnt vmcnt({vm.wait({'xr'})})")
    A(f"v_bfe_u32 v4, v{R.vl}, 4, 1")
    A(f"v_mul_u32_u24 v4, 1280, v4")
    A(f"v_and_b32 v5, 15, v{R.vl}")
    A(f"v_lshl_add_u32 v4, v5, 2, v4")
    A(f"v_mul_u32_u24 v5, 160, v{R.vh}")
    A(f"s_mul_i32 s{st}, s{R.sw}, 3072")
    A(f"s_add_u32 s{st}, s{st}, {L_XR}")
    A(f"v_add3_u32 v4, v4, v5, s{st}")
    for i in range(4):
        for q in range(4):
            A(f"ds_read_b32 v{XA+4*i+q}, v4 offset:{320*i+40*q}")
    A("s_waitcnt lgkmcnt(0)")
    fft320_core(A)
    A(f"s_mul_i32 s{st}, s{R.sw}, {ZWAVE}")
    A(f"s_add_u32 s{st}, s{st}, {L_Z}")
    A(f"v_lshl_add_u32 v4, v{R.vh}, 6, v{R.vn}")
    A(f"v_lshl_add_u32 v4, v4, 3, s{st}")
    for i in range(3):
        if i == 2: A("s_mov_b64 exec, 0xffffffff")
        for r in range(2):
            for jj in range(2):
                d = D2[r] + 4*i + 2*jj
                A(f"ds_write_b64 v4, v[{d}:{d+1}] offset:{r*ZROW + (128*i + 32*jj)*8}")
    A("s_mov_b64 exec, -1")

P_AP, P_AQ0, P_AQ, P_ST0, P_ST2 = 112, 113, 114, 115, 116
P_C = 118
P_TAU = 124
P_WA = 126
P_WS = 130
P_WD = 228
P_GA, P_GB = 226, 227
def phase1_pre(A):
    st = R.st
    A.c("---- phase 1: addresses and constants prepared ahead ----")
    A(f"v_and_b32 v4, 3, v0")
    A(f"v_mul_u32_u24 v5, {ZWAVE}, v4")
    A(f"v_add_u32 v5, {L_Z}, v5")
    A(f"v_lshrrev_b32 v7, 2, v0")
    A(f"v_lshl_add_u32 v{P_AP}, v7, 3, v5")
    A(f"v_sub_u32 v8, 192, v7")
    A(f"v_lshl_add_u32 v{P_AQ}, v8, 3, v5")
    A(f"v_add_u32 v9, {128*8}, v{P_AQ}")
    A(f"v_cmp_eq_u32 vcc, 0, v7")
    A(f"v_cndmask_b32 v{P_AQ0}, v9, v5, vcc")
    A(f"s_lshl_b32 s{st}, s{R.srg}, 2")
    A(f"v_add_u32 v6, s{st}, v4")
    A(f"v_cvt_f32_u32 v9, v6")
    A(f"v_mul_f32 v9, {fb(1/2048)}, v9")
    A(f"v_cos_f32 v{P_TAU}, v9")
    A(f"v_sin_f32 v{P_TAU+1}, -v9")
    A(f"v_lshrrev_b32 v10, 1, v7")
    A(f"v_lshlrev_b32 v10, 15, v10")
    A(f"v_and_b32 v11, 1, v7")
    A(f"v_lshl_add_u32 v10, v11, 3, v10")
    A(f"v_lshl_add_u32 v{P_ST0}, v6, 4, v10")
    A(f"v_mov_b32 v11, 0x40000000")
    A(f"v_cmp_gt_u32 vcc, 34, v7")
    A(f"v_cndmask_b32 v{P_ST2}, v11, v{P_ST0}, vcc")
    A(f"v_cvt_f32_u32 v9, v7")
    for rnd in range(3):
        A(f"v_add_f32 v10, {fb(64.0*rnd)}, v9")
        A(f"v_mul_f32 v10, {fb(1/640)}, v10")
        A(f"v_sin_f32 v{P_C+2*rnd}, -v10")
        A(f"v_cos_f32 v10, v10")
        A(f"v_sub_f32 v{P_C+2*rnd+1}, 0, v10")
    A(f"v_bfe_u32 v5, v0, 2, 1")
    A(f"v_lshrrev_b32 v6, 3, v0")
    A(f"v_lshl_add_u32 v7, v4, 3, v5")
    A(f"v_mul_u32_u24 v7, 192, v7")
    A(f"v_lshl_add_u32 v7, v6, 1, v7")
    A(f"v_add_u32 v7, {L_WS}, v7")
    A(f"s_lshr_b32 s{st}, s{R.sc}, 6")
    A(f"v_add_u32 v8, s{st}, v5")
    A(f"v_lshlrev_b32 v8, 1, v8")
    for jj in range(4):
        A(f"v_add_u32 v9, {4*jj}, v8")
        A(f"v_and_b32 v9, 15, v9")
        A(f"v_add_u32 v{P_WA+jj}, v7, v9")
    A(f"s_mul_i32 s{st+1}, s{st}, 81")
    A(f"s_and_b32 s{st+2}, s{R.sc}, 63")
    A(f"s_lshl_b32 s{st+2}, s{st+2}, 6")
    A(f"v_lshlrev_b32 v7, 14, v5")
    A(f"v_lshl_add_u32 v7, v4, 4, v7")
    A(f"v_add_u32 v7, s{st+2}, v7")
    A(f"v_mov_b32 v14, 0x40000000")
    for rnd in range(3):
        A(f"v_add_u32 v8, {32*rnd}, v6")
        A(f"v_add_u32 v9, s{st+1}, v8")
        A(f"v_sub_u32 v10, 320, v9")
        A(f"v_cmp_lt_u32 vcc, 160, v9")
        A(f"v_cndmask_b32 v11, v9, v10, vcc")
        A(f"v_cndmask_b32_e64 v10, 0, 1, vcc")
        A(f"v_and_b32 v12, 1, v11")
        A(f"v_lshl_add_u32 v10, v12, 1, v10")
        A(f"v_lshrrev_b32 v11, 1, v11")
        A(f"v_lshl_add_u32 v11, v11, 3, v10")
        A(f"v_lshl_add_u32 v11, v11, 12, v7")
        if rnd == 2:
            A(f"v_cmp_gt_u32 vcc, 81, v8")
            A(f"v_cndmask_b32 v11, v14, v11, vcc")
            A(f"v_cmp_ge_u32 vcc, 320, v9")
            A(f"v_cndmask_b32 v{P_WS+2}, v14, v11, vcc")
            A(f"v_add_u32 v11, 4096, v11")
            A(f"v_cmp_eq_u32 vcc, 160, v9")
            A(f"v_cndmask_b32 v{P_WS+3}, v14, v11, vcc")
        else:
            A(f"v_mov_b32 v{P_WS+rnd}, v11")
    A(f"v_bfe_u32 v4, v{R.vl}, 5, 1")
    A(f"v_lshlrev_b32 v4, 4, v4")
    A(f"v_bfe_u32 v5, v{R.vl}, 4, 1")
    A(f"v_lshl_add_u32 v4, v5, 2, v4")
    A(f"v_bfe_u32 v5, v{R.vl}, 2, 2")
    A(f"v_add_u32 v4, v4, v5")
    A(f"v_lshlrev_b32 v4, 8, v4")
    A(f"v_and_b32 v5, 3, v{R.vl}")
    A(f"v_lshl_add_u32 v4, v5, 3, v4")
    A(f"s_lshl_b32 s{st}, s{R.sw}, 6")
    A(f"s_add_u32 s{st}, s{st}, {L_WD}")
    A(f"v_add_u32 v{P_WD}, s{st}, v4")
    A(f"s_mul_i32 s{st}, s{R.sw}, 3072")
    A(f"s_add_u32 s{st}, s{st}, {L_XR}")
    A(f"v_lshl_add_u32 v{P_GA}, v{R.vl}, 2, s{st}")
    A(f"v_lshlrev_b32 v7, 2, v{R.vl}")
    A(f"v_add_u32 v{P_GB}, {L_GW}, v7")

def a1_elem(A, vm):
    st = R.st
    A.c("---- A1 elementwise ----")
    A("s_waitcnt lgkmcnt(0)")
    A("s_barrier")
    ZB = 16
    for rnd in range(3):
        z = ZB + 8*rnd
        aq, oq = (P_AQ0, 0) if rnd == 0 else (P_AQ, 512*(2-rnd))
        A(f"ds_read_b64 v[{z}:{z+1}], v{P_AP} offset:{512*rnd}")
        A(f"ds_read_b64 v[{z+2}:{z+3}], v{aq} offset:{oq}")
        A(f"ds_read_b64 v[{z+4}:{z+5}], v{P_AP} offset:{512*rnd + ZROW}")
        A(f"ds_read_b64 v[{z+6}:{z+7}], v{aq} offset:{oq + ZROW}")
    for rnd in range(3):
        z = ZB + 8*rnd
        Zp0, Zq0, Zp1, Zq1 = z, z+2, z+4, z+6
        A(f"s_waitcnt lgkmcnt({8 - 4*rnd})")
        Up, Uq, Vp, Vq = 40, 42, 44, 46
        for (u, vv, z0, z1) in ((Up, Vp, Zp0, Zp1), (Uq, Vq, Zq0, Zq1)):
            A(f"v_pk_add_f32 v[{u}:{u+1}], v[{z0}:{z0+1}], v[{z1}:{z1+1}]")
            A(f"v_pk_add_f32 v[{vv}:{vv+1}], v[{z0}:{z0+1}], v[{z1}:{z1+1}] neg_lo:[0,1] neg_hi:[0,1]")
        E, O, T, X = (48, 50), (52, 54), (56, 58), ((60, 62), (64, 66))
        for pi, (P, Q) in enumerate(((Up, Uq), (Vp, Vq))):
            A(f"v_pk_add_f32 v[{E[pi]}:{E[pi]+1}], v[{P}:{P+1}], v[{Q}:{Q+1}] neg_hi:[0,1]")
            A(f"v_pk_add_f32 v[{O[pi]}:{O[pi]+1}], v[{P}:{P+1}], v[{Q}:{Q+1}] neg_lo:[0,1]")
        c = P_C + 2*rnd
        for pi in range(2): A(f"v_pk_mul_f32 v[{T[pi]}:{T[pi]+1}], v[{O[pi]}:{O[pi]+1}], v[{c}:{c+1}] op_sel:[1,1] op_sel_hi:[1,0]")
        for pi in range(2): A(f"v_pk_fma_f32 v[{T[pi]}:{T[pi]+1}], v[{O[pi]}:{O[pi]+1}], v[{c}:{c+1}], v[{T[pi]}:{T[pi]+1}] op_sel:[0,0,0] op_sel_hi:[0,1,1] neg_lo:[0,0,1]")
        for pi in range(2):
            Xp, Xq = X[pi]
            A(f"v_pk_add_f32 v[{Xp}:{Xp+1}], v[{E[pi]}:{E[pi]+1}], v[{T[pi]}:{T[pi]+1}]")
            A(f"v_pk_add_f32 v[{Xq}:{Xq+1}], v[{E[pi]}:{E[pi]+1}], v[{T[pi]}:{T[pi]+1}] neg_lo:[0,1] neg_hi:[1,0]")
        for k, Xr in enumerate(X[1]): A(f"v_pk_mul_f32 v[{E[k]}:{E[k]+1}], v[{Xr}:{Xr+1}], v[{P_TAU}:{P_TAU+1}] op_sel:[1,1] op_sel_hi:[1,0]")
        for k, Xr in enumerate(X[1]): A(f"v_pk_fma_f32 v[{Xr}:{Xr+1}], v[{Xr}:{Xr+1}], v[{P_TAU}:{P_TAU+1}], v[{E[k]}:{E[k]+1}] op_sel:[0,0,0] op_sel_hi:[0,1,1] neg_lo:[0,0,1]")
        o = 68 + 4*rnd
        for pi in range(2):
            Xp, Xq = X[pi]
            A(f"v_cvt_pk_bf16_f32 v{o+2*pi}, v{Xp}, v{Xp+1}")
            A(f"v_cvt_pk_bf16_f32 v{o+2*pi+1}, v{Xq}, v{Xq+1}")
        if rnd == 2:
            A(f"v_lshrrev_b32 v7, 2, v0")
            A(f"v_cmp_eq_u32 vcc, 33, v7")
            for k in range(4): A(f"v_cndmask_b32_e64 v{o+k}, v{o+k}, 0, vcc")
        va = P_ST2 if rnd == 2 else P_ST0
        A(f"s_mov_b32 s{st}, {rnd << 20}")
        A(f"buffer_store_dwordx2 v[{o}:{o+1}], v{va}, {srd(R.srdX1)}, s{st} offen{SC}")
        A(f"s_mov_b32 s{st+1}, {(rnd << 20) + 16384}")
        A(f"buffer_store_dwordx2 v[{o+2}:{o+3}], v{va}, {srd(R.srdX1)}, s{st+1} offen{SC}")
        vm.issue('st', 2)

sG0, sG1 = 27, 91
GXR = 204
def gate_reads(A):
    GX = GXR
    for t in range(5):
        A(f"ds_read_b32 v{GX+t}, v{P_GA} offset:{256*t}")
        A(f"ds_read_b32 v{GX+5+t}, v{P_GA} offset:{1280+256*t}")
        A(f"ds_read_b32 v{GX+10+t}, v{P_GB} offset:{256*t}")

def gate(A, vm, part=0):
    st = R.st
    GX = GXR
    if part == 0:
        A.c("---- gate ----")
        gate_reads(A)
        A("s_waitcnt lgkmcnt(0)")
    if part in (0, 1): gate_sum(A, GX)
    if part in (0, 2): gate_fin(A, vm, st)

def gate_sum(A, GX):
    for r in range(2):
        A(f"v_mov_b32 v{4+r}, 0")
        for t in range(5):
            A(f"v_dot2c_f32_bf16 v{4+r}, v{GX+5*r+t}, v{GX+10+t}")
    for mod in ("quad_perm:[1,0,3,2]", "quad_perm:[2,3,0,1]", "row_half_mirror", "row_mirror"):
        for r in range(2):
            A(f"v_add_f32_dpp v{4+r}, v{4+r}, v{4+r} {mod} row_mask:0xf bank_mask:0xf")
    for r in range(2):
        for k in range(4): A(f"v_readlane_b32 s{16+k}, v{4+r}, {16*k}")
        A(f"v_mov_b32 v{4+r}, s16")
        for k in range(1, 4): A(f"v_add_f32 v{4+r}, s{16+k}, v{4+r}")

def gate_fin(A, vm, st):
    A(f"v_and_b32 v6, 1, v{R.vl}")
    A(f"v_cmp_eq_u32 vcc, 1, v6")
    A(f"v_cndmask_b32 v4, v4, v5, vcc")
    A(f"v_cvt_pk_bf16_f32 v4, v4, v4")
    A(f"v_and_b32 v4, 0xffff0000, v4")
    A(f"v_mul_f32 v4, 0xbfb8aa3b, v4")
    A(f"v_exp_f32 v4, v4")
    A(f"v_add_f32 v4, 1.0, v4")
    A(f"v_rcp_f32 v4, v4")
    A(f"v_cvt_pk_bf16_f32 v4, v4, v4")
    A(f"v_and_b32 v4, 0xffff0000, v4")
    A(f"v_readlane_b32 s{sG0}, v4, 0")
    A(f"v_readlane_b32 s{sG1}, v4, 1")
    A(f"s_lshl_b32 s{st}, s{R.srg}, 2")
    A(f"s_add_u32 s{st}, s{st}, s{R.sw}")
    A(f"s_lshl_b32 s{st}, s{st}, 2")
    A(f"v_lshlrev_b32 v6, 12, v6")
    A(f"v_add_u32 v6, s{st}, v6")
    A(f"v_mov_b32 v7, 0x40000000")
    A(f"v_cmp_gt_u32 vcc, 2, v{R.vl}")
    A(f"v_cndmask_b32 v6, v7, v6, vcc")
    A(f"buffer_store_dword v4, v6, {srd(R.srdG)}, 0 offen{SC}")
    vm.issue('gst')

def wprep(A, vm):
    A.c("---- filter prep ----")
    W = 16
    for rnd in range(3):
        for jj in range(4):
            A(f"ds_read_u16 v{W+8*rnd+jj}, v{P_WA+jj} offset:{2*192*jj + 64*rnd}")
            A(f"ds_read_u16 v{W+8*rnd+4+jj}, v{P_WA+jj} offset:{6144 + 2*192*jj + 64*rnd}")
        if rnd == 0: pass
    for rnd in range(3):
        A(f"s_waitcnt lgkmcnt({min(15, 16 - 8*rnd) if rnd < 2 else 0})")
        w = W + 8*rnd
        for jj in range(4): A(f"v_lshl_or_b32 v{w+jj}, v{w+4+jj}, 16, v{w+jj}")
        A(f"buffer_store_dwordx4 v[{w}:{w+3}], v{P_WS+rnd}, {srd(R.srdWF)}, 0 offen{SC}")
        vm.issue('st')
        if rnd == 2:
            A(f"buffer_store_dwordx4 v[{w}:{w+3}], v{P_WS+3}, {srd(R.srdWF)}, 0 offen{SC}")
            vm.issue('st')

def wtprep(A, vm, tag='st'):
    st = R.st
    A.c("---- Wd fragment prep ----")
    A(f"s_mul_i32 s{st+2}, s{R.sc}, 52429")
    A(f"s_lshr_b32 s{st+2}, s{st+2}, 18")
    A(f"s_mul_i32 s{st+3}, s{st+2}, 5")
    A(f"s_sub_u32 s{st+3}, s{R.sc}, s{st+3}")
    for k in range(2):
        A(f"ds_read_b64_tr_b16 v[{40+4*k}:{41+4*k}], v{P_WD} offset:{32*k}")
        A(f"ds_read_b64_tr_b16 v[{42+4*k}:{43+4*k}], v{P_WD} offset:{32*k + 8*256}")
    A(f"s_mul_i32 s{st+2}, s{st+2}, 40")
    A(f"s_lshl_b32 s{st+3}, s{st+3}, 3")
    A(f"s_add_u32 s{st+2}, s{st+2}, s{st+3}")
    A(f"s_lshl_b32 s{st+3}, s{R.sw}, 1")
    A(f"s_add_u32 s{st+2}, s{st+2}, s{st+3}")
    A(f"s_lshl_b32 s{st+2}, s{st+2}, 10")
    A(f"v_lshlrev_b32 v5, 4, v{R.vl}")
    A("s_waitcnt lgkmcnt(0)")
    A(f"buffer_store_dwordx4 v[40:43], v5, {srd(R.srdWT)}, s{st+2} offen{SC}")
    A(f"buffer_store_dwordx4 v[44:47], v5, {srd(R.srdWT)}, s{st+2} offen offset:1024{SC}")
    vm.issue(tag, 2)

def ftgen(A, vm, pWS):
    st = R.st
    A.c("---- F table ----")
    A.srd(R.srdFT, pWS, SZ_FT, OFF_FT)
    lab = A.label("noft")
    A(f"s_lshl_b32 s{st}, s{R.sw}, 8")
    A(f"s_add_u32 s{st}, s{st}, s{R.sc}")
    A(f"s_cmp_ge_u32 s{st}, 840")
    A(f"s_cbranch_scc1 {lab}")
    A(f"s_mul_i32 s{st+1}, s{st}, 52429")
    A(f"s_lshr_b32 s{st+1}, s{st+1}, 21")
    A(f"s_mul_i32 s{st+2}, s{st+1}, 40")
    A(f"s_sub_u32 s{st+2}, s{st}, s{st+2}")
    A(f"s_lshl_b32 s{st+2}, s{st+2}, 4")
    A(f"v_and_b32 v4, 15, v{R.vl}")
    A(f"v_add_u32 v4, s{st+2}, v4")
    A(f"s_lshl_b32 s{st+1}, s{st+1}, 2")
    A(f"v_lshrrev_b32 v5, 4, v{R.vl}")
    A(f"v_add_u32 v5, s{st+1}, v5")
    A(f"v_lshlrev_b32 v6, 1, v5")
    A(f"s_mov_b32 s{st+3}, 6710887")
    for c in range(4):
        if c == 0: A(f"v_mov_b32 v7, v6")
        if c == 1: A(f"v_sub_u32 v7, 320, v6")
        if c == 2: A(f"v_add_u32 v7, 1, v6")
        if c == 3: A(f"v_sub_u32 v7, 319, v6")
        A(f"v_mul_u32_u24 v8, v7, v4")
        A(f"v_mul_hi_u32 v9, v8, s{st+3}")
        A(f"v_mul_u32_u24 v9, 640, v9")
        A(f"v_sub_u32 v8, v8, v9")
        A(f"v_cvt_f32_u32 v8, v8")
        A(f"v_mul_f32 v8, {fb(1/640)}, v8")
        A(f"v_cos_f32 v9, v8")
        A(f"v_sin_f32 v10, -v8")
        if c < 2:
            A(f"v_cmp_eq_u32 vcc, 0, v5")
            A(f"v_mul_f32 v11, 0.5, v9")
            A(f"v_cndmask_b32 v9, v9, v11, vcc")
            A(f"v_cndmask_b32_e64 v10, v10, 0, vcc")
        A(f"v_cvt_pk_bf16_f32 v{16+c}, v9, v10")
        A(f"v_cmp_gt_u32 vcc, {81 if c == 0 else 80}, v5")
        A(f"v_cndmask_b32 v{16+c}, 0, v{16+c}, vcc")
    A(f"s_lshl_b32 s{st}, s{st}, 10")
    A(f"v_lshlrev_b32 v5, 4, v{R.vl}")
    A(f"buffer_store_dwordx4 v[16:19], v5, {srd(R.srdFT)}, s{st} offen{SC}")
    A(f"{lab}:")

def a2_loads(A, vm, pWS):
    st = R.st
    A.c("---- A2 loads ----")
    A(f"s_lshl_b32 s{st}, s{R.sa2}, 14")
    A(f"s_lshl_b32 s{st+1}, s{R.sw}, 12")
    A(f"s_add_u32 s{st}, s{st}, s{st+1}")
    A(f"s_add_u32 m0, s{st+1}, {L_X}")
    A(f"v_lshlrev_b32 v4, 4, v{R.vl}")
    for j in range(4):
        A(f"buffer_load_dwordx4 v4, {srd(R.srdX1)}, s{st} offen offset:{1024*j} sc1 lds")
    A(f"s_add_u32 m0, s{st+1}, {L_F}")
    A("s_nop 0")
    for j in range(4):
        A(f"buffer_load_dwordx4 v4, {srd(R.srdWF)}, s{st} offen offset:{1024*j} sc1 lds")
    vm.issue('a2in', 8)

def a2(A0, vm, pWS, waited=False, weave=None, stamp=None):
    st = R.st
    A = Asm(A0.prefix + 'a2')
    A.c("---- A2 ----")
    D0r, D0i, D1r, D1i, XA_, WQ = 32, 48, 204, 16, 16, (220, 224)
    A.srd(R.srdZ, pWS, SZ_Z, OFF_Z)
    if not waited: A(f"s_waitcnt vmcnt({vm.wait({'a2in'})})")
    A("s_barrier")
    A(f"v_lshlrev_b32 v4, 11, v{R.vh}")
    A(f"v_lshl_add_u32 v4, v{R.vn}, 4, v4")
    A(f"s_lshl_b32 s{st}, s{R.sw}, 2")
    A(f"s_add_u32 s{st}, s{st}, {L_X}")
    A(f"v_add_u32 v8, s{st}, v4")
    for i in range(4):
        for q in range(4):
            A(f"ds_read_b32 v{XA_+4*i+q}, v8 offset:{(8*i+q)*512}")
    A(f"s_lshl_b32 s{st}, s{R.sw}, 12")
    A(f"s_add_u32 s{st}, s{st}, {L_F}")
    A(f"v_lshlrev_b32 v5, 9, v{R.vh}")
    A(f"v_lshl_add_u32 v5, v{R.vn}, 2, v5")
    A(f"v_add_u32 v5, s{st}, v5")
    def mm(i, data_is_a, src, Dr, Di):
        for (dst, cc) in ((Dr, R.CRe), (Di, R.CIm)):
            c = "0" if i == 0 else f"v[{dst}:{dst+15}]"
            d, k = f"v[{src+4*i}:{src+4*i+3}]", f"a[{cc+4*i}:{cc+4*i+3}]"
            a_, b_ = (d, k) if data_is_a else (k, d)
            A(f"v_mfma_f32_32x32x16_bf16 v[{dst}:{dst+15}], {a_}, {b_}, {c}")
    def tw_quad(i, Dr, Di):
        if PK2: return tw_quad_pk(i, Dr, Di)
        for j in range(4):
            x = 4*i + j
            t, u = ((6, 7), (10, 11), (12, 13), (14, 15))[j]
            A(f"v_mul_f32 v{t}, v{Di+x}, v{R.TWi+x}")
            A(f"v_mul_f32 v{u}, v{Di+x}, v{R.TWr+x}")
        for j in range(4):
            x = 4*i + j
            t, u = ((6, 7), (10, 11), (12, 13), (14, 15))[j]
            A(f"v_fma_f32 v{t}, v{Dr+x}, v{R.TWr+x}, -v{t}")
            A(f"v_fmac_f32 v{u}, v{Dr+x}, v{R.TWi+x}")
        for j in range(4):
            x = 4*i + j
            t, u = ((6, 7), (10, 11), (12, 13), (14, 15))[j]
            A(f"v_cvt_pk_bf16_f32 v{Dr+x}, v{t}, v{u}")
    def filt_quad(i, Dr, Di):
        if PK2: return filt_quad_pk(i, Dr, Di)
        w = WQ[i & 1]
        for j in range(4):
            x = 4*i + j
            A(f"v_lshlrev_b32 v6, 16, v{w+j}")
            A(f"v_and_b32 v7, 0xffff0000, v{w+j}")
            t, u = ((10, 11), (12, 13))[j & 1]
            A(f"v_mul_f32 v{t}, v{Di+x}, v7")
            A(f"v_mul_f32 v{u}, v{Di+x}, v6")
            A(f"v_fma_f32 v{t}, v{Dr+x}, v6, -v{t}")
            A(f"v_fmac_f32 v{u}, v{Dr+x}, v7")
            A(f"v_cvt_pk_bf16_f32 v{Dr+x}, v{t}, -v{u}")
    def tw_quad_pk(i, Dr, Di):
        for h2 in range(2):
            x = 4*i + 2*h2
            t, u = (6, 10) if h2 == 0 else (12, 14)
            A(f"v_pk_mul_f32 v[{t}:{t+1}], v[{Di+x}:{Di+x+1}], v[{R.TWi+x}:{R.TWi+x+1}]")
            A(f"v_pk_mul_f32 v[{u}:{u+1}], v[{Di+x}:{Di+x+1}], v[{R.TWr+x}:{R.TWr+x+1}]")
            A(f"v_pk_fma_f32 v[{t}:{t+1}], v[{Dr+x}:{Dr+x+1}], v[{R.TWr+x}:{R.TWr+x+1}], v[{t}:{t+1}] neg_lo:[0,0,1] neg_hi:[0,0,1]")
            A(f"v_pk_fma_f32 v[{u}:{u+1}], v[{Dr+x}:{Dr+x+1}], v[{R.TWi+x}:{R.TWi+x+1}], v[{u}:{u+1}]")
        for h2 in range(2):
            x = 4*i + 2*h2
            t, u = (6, 10) if h2 == 0 else (12, 14)
            A(f"v_cvt_pk_bf16_f32 v{Dr+x}, v{t}, v{u}")
            A(f"v_cvt_pk_bf16_f32 v{Dr+x+1}, v{t+1}, v{u+1}")
    def wf_read(i):
        for j in range(4): A(f"ds_read_b32 v{WQ[i & 1]+j}, v5 offset:{(8*i+j)*128}")
    def filt_quad_pk(i, Dr, Di):
        w = WQ[i & 1]
        for h2 in range(2):
            x = 4*i + 2*h2
            ww = w + 2*h2
            A(f"v_lshlrev_b32 v6, 16, v{ww}");     A(f"v_lshlrev_b32 v7, 16, v{ww+1}")
            A(f"v_and_b32 v10, 0xffff0000, v{ww}"); A(f"v_and_b32 v11, 0xffff0000, v{ww+1}")
            A(f"v_pk_mul_f32 v[12:13], v[{Di+x}:{Di+x+1}], v[10:11]")
            A(f"v_pk_mul_f32 v[14:15], v[{Di+x}:{Di+x+1}], v[6:7]")
            A(f"v_pk_fma_f32 v[12:13], v[{Dr+x}:{Dr+x+1}], v[6:7], v[12:13] neg_lo:[0,0,1] neg_hi:[0,0,1]")
            A(f"v_pk_fma_f32 v[14:15], v[{Dr+x}:{Dr+x+1}], v[10:11], v[14:15]")
            A(f"v_cvt_pk_bf16_f32 v{Dr+x}, v12, -v14")
            A(f"v_cvt_pk_bf16_f32 v{Dr+x+1}, v13, -v15")
    def S(n):
        if stamp: stamp(A, n)
    S("x_issued")
    A("s_waitcnt lgkmcnt(0)")
    S("x_read")
    for i in range(4): mm(i, True, XA_, D0r, D0i)
    wf_read(0)
    for i in range(4):
        tw_quad(i, D0r, D0i); mm(i, False, D0r, D1r, D1i)
    S("s3")
    for i in range(4):
        if i < 3: wf_read(i+1)
        A(f"s_waitcnt lgkmcnt({4 if i < 3 else 0})")
        filt_quad(i, D1r, D1i); mm(i, True, D1r, D0r, D0i)
    S("s4")
    for i in range(4):
        tw_quad(i, D0r, D0i); mm(i, False, D0r, D1r, D1i)
    S("s6")
    A(f"v_lshlrev_b32 v4, 9, v{R.vh}")
    A(f"v_lshl_add_u32 v4, v{R.vn}, 2, v4")
    A(f"s_lshl_b32 s{st}, s{R.sw}, 12")
    A(f"s_add_u32 s{st}, s{st}, {L_F}")
    A(f"v_add_u32 v4, s{st}, v4")
    for x in range(16):
        A(f"v_cvt_pk_bf16_f32 v{D0r+x}, v{D1r+x}, -v{D1i+x}")
        A(f"ds_write_b32 v4, v{D0r+x} offset:{(8*(x>>2)+(x&3))*128}")
    A(f"s_lshl_b32 s{st+1}, s{R.sw}, 10")
    A(f"s_add_u32 s{st+2}, s{st+1}, {L_F}")
    A(f"v_lshl_add_u32 v4, v{R.vl}, 2, s{st+2}")
    A("s_waitcnt lgkmcnt(0)")
    S("wr")
    A("s_barrier")
    for j in range(4):
        for c in range(4):
            A(f"ds_read_b32 v{16+4*j+c}, v4 offset:{c*4096 + j*256}")
    A(f"s_lshl_b32 s{st}, s{R.sa2}, 14")
    A(f"s_lshl_b32 s{st+1}, s{R.sw}, 12")
    A(f"s_add_u32 s{st}, s{st}, s{st+1}")
    A(f"v_lshlrev_b32 v5, 4, v{R.vl}")
    for j in range(4):
        A(f"s_waitcnt lgkmcnt({12 - 4*j})")
        A(f"buffer_store_dwordx4 v[{16+4*j}:{19+4*j}], v5, {srd(R.srdZ)}, s{st} offen offset:{1024*j}{SC}")
    vm.issue('zst', 4)
    lines = A.l
    if weave:
        first = next(i for i, l in enumerate(lines) if "v_mfma" in l)
        last = max(i for i, l in enumerate(lines) if "ds_write_b32" in l)
        n = len(weave); out = lines[:first]
        span = last - first
        k = 0
        for j in range(first, len(lines)):
            out.append(lines[j])
            while k < n and j < last and (j - first + 1)*n >= (k + 1)*span:
                out += ["  " + x for x in weave[k]]; k += 1
        out += ["  " + x for w in weave[k:] for x in w]
        assert k == n
        lines = out
    A0.l += lines

def a2_bundles(pWS, t0):
    st = R.st
    D0r, D0i, D1r, D1i, XA_, WQ = 32, 48, 204, 16, 16, (220, 224)
    def cap(fn):
        T = Asm("tmp"); fn(T); return [l.strip() for l in T.l if not l.strip().startswith(";")]
    def one(lines): return [([l], None) for l in lines]
    def mm(i, data_is_a, src, Dr, Di):
        L = []
        for (dst, cc) in ((Dr, R.CRe), (Di, R.CIm)):
            c = "0" if i == 0 else f"v[{dst}:{dst+15}]"
            d, k = f"v[{src+4*i}:{src+4*i+3}]", f"a[{cc+4*i}:{cc+4*i+3}]"
            a_, b_ = (d, k) if data_is_a else (k, d)
            L.append(f"v_mfma_f32_32x32x16_bf16 v[{dst}:{dst+15}], {a_}, {b_}, {c}")
        return L
    def tw(i, Dr, Di):
        L = []
        for h2 in range(2):
            x = 4*i + 2*h2
            t, u = (6, 10) if h2 == 0 else (12, 14)
            L += [f"v_pk_mul_f32 v[{t}:{t+1}], v[{Di+x}:{Di+x+1}], v[{R.TWi+x}:{R.TWi+x+1}]",
                  f"v_pk_mul_f32 v[{u}:{u+1}], v[{Di+x}:{Di+x+1}], v[{R.TWr+x}:{R.TWr+x+1}]",
                  f"v_pk_fma_f32 v[{t}:{t+1}], v[{Dr+x}:{Dr+x+1}], v[{R.TWr+x}:{R.TWr+x+1}], v[{t}:{t+1}] neg_lo:[0,0,1] neg_hi:[0,0,1]",
                  f"v_pk_fma_f32 v[{u}:{u+1}], v[{Dr+x}:{Dr+x+1}], v[{R.TWi+x}:{R.TWi+x+1}], v[{u}:{u+1}]"]
        for h2 in range(2):
            x = 4*i + 2*h2
            t, u = (6, 10) if h2 == 0 else (12, 14)
            L += [f"v_cvt_pk_bf16_f32 v{Dr+x}, v{t}, v{u}", f"v_cvt_pk_bf16_f32 v{Dr+x+1}, v{t+1}, v{u+1}"]
        return L
    def wf(i): return [f"ds_read_b32 v{WQ[i & 1]+j}, v5 offset:{(8*i+j)*128}" for j in range(4)]
    def filt(i, Dr, Di):
        L = []
        w = WQ[i & 1]
        for h2 in range(2):
            x = 4*i + 2*h2
            ww = w + 2*h2
            L += [f"v_lshlrev_b32 v6, 16, v{ww}", f"v_lshlrev_b32 v7, 16, v{ww+1}",
                  f"v_and_b32 v10, 0xffff0000, v{ww}", f"v_and_b32 v11, 0xffff0000, v{ww+1}",
                  f"v_pk_mul_f32 v[12:13], v[{Di+x}:{Di+x+1}], v[10:11]",
                  f"v_pk_mul_f32 v[14:15], v[{Di+x}:{Di+x+1}], v[6:7]",
                  f"v_pk_fma_f32 v[12:13], v[{Dr+x}:{Dr+x+1}], v[6:7], v[12:13] neg_lo:[0,0,1] neg_hi:[0,0,1]",
                  f"v_pk_fma_f32 v[14:15], v[{Dr+x}:{Dr+x+1}], v[10:11], v[14:15]",
                  f"v_cvt_pk_bf16_f32 v{Dr+x}, v12, -v14", f"v_cvt_pk_bf16_f32 v{Dr+x+1}, v13, -v15"]
        return L
    H = {}
    def h0(T):
        T(f"v_lshlrev_b32 v4, 11, v{R.vh}")
        T(f"v_lshl_add_u32 v4, v{R.vn}, 4, v4")
        T(f"s_lshl_b32 s{st}, s{R.sw}, 2")
        T(f"s_add_u32 s{st}, s{st}, {L_X}")
        T(f"v_add_u32 v8, s{st}, v4")
        for i in range(4):
            for q in range(4): T(f"ds_read_b32 v{XA_+4*i+q}, v8 offset:{(8*i+q)*512}")
        T(f"s_lshl_b32 s{st}, s{R.sw}, 12")
        T(f"s_add_u32 s{st}, s{st}, {L_F}")
        T(f"v_lshlrev_b32 v5, 9, v{R.vh}")
        T(f"v_lshl_add_u32 v5, v{R.vn}, 2, v5")
        T(f"v_add_u32 v5, s{st}, v5")
    H[0] = one(cap(h0))
    H[1] = one(sum((mm(i, True, XA_, D0r, D0i) for i in range(4)), []) + wf(0) + wf(1))
    H[2] = one(tw(0, D0r, D0i) + mm(0, False, D0r, D1r, D1i) + tw(1, D0r, D0i) + mm(1, False, D0r, D1r, D1i))
    H[3] = one(tw(2, D0r, D0i) + mm(2, False, D0r, D1r, D1i) + tw(3, D0r, D0i) + mm(3, False, D0r, D1r, D1i))
    H[4] = one(filt(0, D1r, D1i) + wf(2) + mm(0, True, D1r, D0r, D0i) + filt(1, D1r, D1i) + wf(3) + mm(1, True, D1r, D0r, D0i))
    H[5] = one(filt(2, D1r, D1i) + mm(2, True, D1r, D0r, D0i) + filt(3, D1r, D1i) + mm(3, True, D1r, D0r, D0i))
    H[6] = one(tw(0, D0r, D0i) + mm(0, False, D0r, D1r, D1i) + tw(1, D0r, D0i) + mm(1, False, D0r, D1r, D1i))
    H[7] = one(tw(2, D0r, D0i) + mm(2, False, D0r, D1r, D1i) + tw(3, D0r, D0i) + mm(3, False, D0r, D1r, D1i))
    L = []
    for x in range(16):
        L += [f"v_cvt_pk_bf16_f32 v{D0r+x}, v{D1r+x}, -v{D1i+x}", f"ds_write_b32 v8, v{D0r+x} offset:{(8*(x>>2)+(x&3))*512}"]
    H[8] = one(L)
    def h10(T):
        T(f"s_lshl_b32 s{st+1}, s{R.sw}, 12")
        T(f"s_add_u32 s{st+2}, s{st+1}, {L_X}")
        T(f"v_lshl_add_u32 v4, v{R.vl}, 4, s{st+2}")
        for j in range(4): T(f"ds_read_b128 v[{16+4*j}:{19+4*j}], v4 offset:{1024*j}")
        T(f"s_lshl_b32 s{st}, s{R.sa2}, 14")
        T(f"s_add_u32 s{st}, s{st}, s{st+1}")
        T(f"v_lshlrev_b32 v5, 4, v{R.vl}")
    H[10] = [(cap(lambda T: T.srd(R.srdZ, pWS, SZ_Z, OFF_Z)), None)] + one(cap(h10))
    H[11] = [([f"buffer_store_dwordx4 v[{16+4*j}:{19+4*j}], v5, {srd(R.srdZ)}, s{st} offen offset:{1024*j}{SC}"], "zst") for j in range(4)]
    out = {}
    for h, atoms in H.items():
        t, ph = (t0 + (h + 1)//2, 'A' if h % 2 else 'B')
        out[(t, ph)] = atoms
    return out

ZL = 204
L_ZB, ZBW = AUXB, 3104
L_GO = AUXB + 12800
sG0, sG1 = 27, 91
def a3_loads(A, vm, pWS):
    st = R.st
    A.c("---- A3 loads ----")
    A.srd(R.srdZ, pWS, SZ_Z, OFF_Z)
    st = 62
    A(f"v_lshrrev_b32 v4, 2, v0")
    A(f"v_lshrrev_b32 v5, 1, v4")
    A(f"v_lshlrev_b32 v5, 15, v5")
    A(f"v_and_b32 v4, 1, v4")
    A(f"v_lshl_add_u32 v5, v4, 3, v5")
    A(f"v_and_b32 v4, 3, v0")
    A(f"s_lshl_b32 s{st}, s{R.srg}, 2")
    A(f"v_add_u32 v4, s{st}, v4")
    A(f"v_lshl_add_u32 v5, v4, 4, v5")
    for rnd in range(3):
        for pi in range(2):
            A(f"s_mov_b32 s{st}, {(rnd << 20) + pi*16384}")
            A(f"buffer_load_dwordx2 v[{ZL+4*rnd+2*pi}:{ZL+4*rnd+2*pi+1}], v5, {srd(R.srdZ)}, s{st} offen sc1")
    vm.issue('zl', 6)

Q_C, Q_AP, Q_AQ = 64, 70, 73
def a3_pre(A):
    st = R.st
    A.c("---- A3 preparation ----")
    A(f"v_and_b32 v{R.vl}, 63, v0")
    A(f"v_and_b32 v{R.vn}, 31, v{R.vl}")
    A(f"v_lshrrev_b32 v{R.vh}, 5, v{R.vl}")
    A(f"v_and_b32 v14, 3, v0")
    A(f"v_mul_u32_u24 v15, {ZBW}, v14")
    A(f"v_add_u32 v15, {L_ZB}, v15")
    A(f"s_mul_i32 s{st}, s{R.sw}, {ZBW}")
    A(f"s_add_u32 s{st}, s{st}, {L_ZB + 2560}")
    A(f"v_and_b32 v6, 7, v{R.vl}")
    A(f"v_lshl_add_u32 v6, v6, 2, s{st}")
    A(f"v_mov_b32 v7, 0")
    A(f"ds_write_b32 v6, v7")
    A(f"s_lshl_b32 s{st}, s{R.srg}, 2")
    A(f"v_add_u32 v6, s{st}, v14")
    A(f"v_cvt_f32_u32 v7, v6")
    A(f"v_mul_f32 v7, {fb(1/2048)}, v7")
    A(f"v_cos_f32 v12, v7")
    A(f"v_sin_f32 v13, v7")
    A(f"v_lshrrev_b32 v7, 2, v0")
    A(f"v_cvt_f32_u32 v9, v7")
    for rnd in range(3):
        A(f"v_add_f32 v10, {fb(64.0*rnd)}, v9")
        A(f"v_mul_f32 v10, {fb(1/640)}, v10")
        A(f"v_sin_f32 v{Q_C+2*rnd}, -v10")
        A(f"v_cos_f32 v{Q_C+2*rnd+1}, v10")
        A(f"v_add_u32 v8, {64*rnd}, v7")
        A(f"v_lshl_add_u32 v{Q_AP+rnd}, v8, 2, v15")
        A(f"v_sub_u32 v8, 320, v8")
        A(f"v_lshl_add_u32 v{Q_AQ+rnd}, v8, 2, v15")
    A(f"v_cmp_eq_u32 vcc, 0, v7")
    A(f"v_cndmask_b32 v{Q_AQ}, v{Q_AQ}, v15, vcc")
    A(f"v_mov_b32 v9, {L_ZB + 4*ZBW}")
    A(f"v_cmp_lt_u32 vcc, 32, v7")
    A(f"v_cndmask_b32 v{Q_AP+2}, v{Q_AP+2}, v9, vcc")
    A(f"v_cndmask_b32 v{Q_AQ+2}, v{Q_AQ+2}, v9, vcc")

def a3_elem(A, vm, extra=None):
    st = R.st
    A.c("---- A3 elementwise ----")
    A(f"v_lshrrev_b32 v7, 2, v0")
    A(f"v_cmp_eq_u32 vcc, 0, v7")
    A(f"s_waitcnt vmcnt({vm.wait({'zl'})})")
    for rnd in range(3):
        z = ZL + 4*rnd
        if extra: extra(rnd)
        Up, Uq, Vp, Vq = 32, 34, 36, 38
        for (d, src) in ((Up, z), (Uq, z+1), (Vp, z+2), (Vq, z+3)):
            A(f"v_lshlrev_b32 v{d}, 16, v{src}")
            A(f"v_and_b32 v{d+1}, 0xffff0000, v{src}")
        for k, X in enumerate((Vp, Vq)): A(f"v_pk_mul_f32 v[{60+2*k}:{61+2*k}], v[{X}:{X+1}], v[12:13] op_sel:[1,1] op_sel_hi:[1,0]")
        for k, X in enumerate((Vp, Vq)): A(f"v_pk_fma_f32 v[{X}:{X+1}], v[{X}:{X+1}], v[12:13], v[{60+2*k}:{61+2*k}] op_sel:[0,0,0] op_sel_hi:[0,1,1] neg_lo:[0,0,1]")
        Ap0, Aq0, Ap1, Aq1 = 40, 42, 44, 46
        A(f"v_pk_add_f32 v[{Ap0}:{Ap0+1}], v[{Up}:{Up+1}], v[{Vp}:{Vp+1}]")
        A(f"v_pk_add_f32 v[{Aq0}:{Aq0+1}], v[{Uq}:{Uq+1}], v[{Vq}:{Vq+1}]")
        A(f"v_pk_add_f32 v[{Ap1}:{Ap1+1}], v[{Up}:{Up+1}], v[{Vp}:{Vp+1}] neg_lo:[0,1] neg_hi:[0,1]")
        A(f"v_pk_add_f32 v[{Aq1}:{Aq1+1}], v[{Uq}:{Uq+1}], v[{Vq}:{Vq+1}] neg_lo:[0,1] neg_hi:[0,1]")
        if rnd == 0:
            for X in (Ap0, Aq0, Ap1, Aq1): A(f"v_cndmask_b32_e64 v{X+1}, v{X+1}, 0, vcc")
        E, O, T = (48, 50), (52, 54), (56, 58)
        rows = ((Ap0, Aq0), (Ap1, Aq1))
        c = Q_C + 2*rnd
        for r, (P, Q) in enumerate(rows):
            A(f"v_pk_add_f32 v[{E[r]}:{E[r]+1}], v[{P}:{P+1}], v[{Q}:{Q+1}] neg_hi:[0,1]")
            A(f"v_pk_add_f32 v[{O[r]}:{O[r]+1}], v[{P}:{P+1}], v[{Q}:{Q+1}] neg_lo:[0,1]")
        for r in range(2): A(f"v_pk_mul_f32 v[{T[r]}:{T[r]+1}], v[{O[r]}:{O[r]+1}], v[{c}:{c+1}] op_sel:[1,1] op_sel_hi:[1,0]")
        for r in range(2): A(f"v_pk_fma_f32 v[{T[r]}:{T[r]+1}], v[{O[r]}:{O[r]+1}], v[{c}:{c+1}], v[{T[r]}:{T[r]+1}] op_sel:[0,0,0] op_sel_hi:[0,1,1] neg_lo:[0,0,1]")
        for r in range(2):
            A(f"v_pk_add_f32 v[{32+4*r}:{33+4*r}], v[{E[r]}:{E[r]+1}], v[{T[r]}:{T[r]+1}] neg_hi:[1,1]")
            A(f"v_pk_add_f32 v[{34+4*r}:{35+4*r}], v[{E[r]}:{E[r]+1}], v[{T[r]}:{T[r]+1}] neg_lo:[0,1] neg_hi:[0,1]")
        for r in range(2):
            A(f"v_cvt_pk_bf16_f32 v{60+2*r}, v{32+4*r}, v{33+4*r}")
            A(f"v_cvt_pk_bf16_f32 v{61+2*r}, v{34+4*r}, v{35+4*r}")
        for r in range(2):
            off = f" offset:{1280*r}" if r else ""
            A(f"ds_write_b32 v{Q_AP+rnd}, v{60+2*r}{off}")
            A(f"ds_write_b32 v{Q_AQ+rnd}, v{61+2*r}{off}")
    A("s_waitcnt lgkmcnt(0)")

def a3_core(A, vm, pWS, mid=None):
    st = R.st
    A.c("---- A3 core ----")
    A(f"v_bfe_u32 v4, v{R.vl}, 4, 1")
    A(f"v_mul_u32_u24 v4, 1280, v4")
    A(f"v_and_b32 v5, 15, v{R.vl}")
    A(f"v_lshl_add_u32 v4, v5, 2, v4")
    A(f"v_mul_u32_u24 v5, 160, v{R.vh}")
    A(f"s_mul_i32 s{st}, s{R.sw}, {ZBW}")
    A(f"s_add_u32 s{st}, s{st}, {L_ZB}")
    A(f"v_add3_u32 v4, v4, v5, s{st}")
    for i in range(4):
        for q in range(4):
            A(f"ds_read_b32 v{XA+4*i+q}, v4 offset:{320*i+40*q}")
    A(f"v_mov_b32 v6, {fb(0.5/(2048*640))}")
    A(f"v_mul_f32 v8, s{sG0}, v6")
    A(f"v_mul_f32 v10, s{sG1}, v6")
    A(f"v_sub_f32 v9, 0, v8")
    A(f"v_sub_f32 v11, 0, v10")
    A("s_waitcnt lgkmcnt(0)")
    fft320_core(A, tmp=(12, 14), mid=mid)
    A(f"s_mul_i32 s{st}, s{R.sw}, 2560")
    A(f"s_add_u32 s{st}, s{st}, {L_GO}")
    A(f"v_lshl_add_u32 v4, v{R.vh}, 6, v{R.vn}")
    A(f"v_lshl_add_u32 v4, v4, 2, s{st}")
    for i in range(3):
        if i == 2: A("s_mov_b64 exec, 0xffffffff")
        for r in range(2):
            sc = 8 + 2*r
            for jj in range(2):
                d = D2[r] + 4*i + 2*jj
                A(f"v_pk_mul_f32 v[{d}:{d+1}], v[{d}:{d+1}], v[{sc}:{sc+1}]")
                A(f"v_cvt_pk_bf16_f32 v{d}, v{d}, v{d+1}")
                A(f"ds_write_b32 v4, v{d} offset:{r*1280 + (128*i + 32*jj)*4}")
    A("s_mov_b64 exec, -1")
    A.srd(R.srdZ, pWS, SZ_GA, OFF_GA)
    A(f"v_lshl_add_u32 v4, v{R.vl}, 4, s{st}")
    A("s_waitcnt lgkmcnt(0)")
    for j in range(3): A(f"ds_read_b128 v[{16+4*j}:{19+4*j}], v4 offset:{1024*j}")
    A(f"s_lshl_b32 s{st}, s{R.srg}, 2")
    A(f"s_add_u32 s{st}, s{st}, s{R.sw}")
    A(f"s_mul_i32 s{st}, s{st}, 1280")
    A(f"v_lshlrev_b32 v4, 4, v{R.vl}")
    A(f"v_add_u32 v5, 1024, v4")
    A(f"v_add_u32 v6, {1024*1280 - 256}, v4")
    A(f"v_cmp_gt_u32 vcc, 16, v{R.vl}")
    A(f"v_cndmask_b32 v5, v6, v5, vcc")
    A(f"v_add_u32 v7, {1024*1280 + 48*16}, v4")
    A(f"v_mov_b32 v6, 0x40000000")
    A(f"v_cmp_gt_u32 vcc, 32, v{R.vl}")
    A(f"v_cndmask_b32 v7, v6, v7, vcc")
    A("s_waitcnt lgkmcnt(0)")
    A(f"buffer_store_dwordx4 v[16:19], v4, {srd(R.srdZ)}, s{st} offen{SC}")
    A(f"buffer_store_dwordx4 v[20:23], v5, {srd(R.srdZ)}, s{st} offen{SC}")
    A(f"buffer_store_dwordx4 v[24:27], v7, {srd(R.srdZ)}, s{st} offen{SC}")
    vm.issue('gast', 3)
```

```python
import sys, os
sys.path.insert(0, os.path.dirname(os.path.abspath(__file__)))
from asmlib import *
from layout import *
import f1, f2, g2, aux, hazard

NAME = "gated_mix__spectral_gfnet__swiglu_ffn__prompt_kernel"
pAX, pWR, pWI, pBX, pWG, pWU, pWD, pGW, pOUT, pDBG, pWS = 68, 70, 72, 74, 76, 78, 80, 82, 84, 86, 88
sNONCE, srdF, sSPIN, sTMP, sID = 90, 92, 96, 97, 98
srdD = 0
SPIN_MAX = 20000
import os
if os.environ.get('NOSPIN'): SPIN_MAX = 0

class Gen:
    def __init__(self, stamps=False, order="AB", gemm_first=True, exp="", ta2=11, tf1=-1, d2=2, nwa2=7, early3=True, npre=3, dep2at=9, wput=2, wputr=4, codepf=1, tlbpf=0, twt=-1, wsbase=0, map48=False, ahead=4, pro=2, xpf=None, outsc='', dbgsel=None, spread=True, dyn=False, lean=0, w1=0, wepi=3, pk2=True, cpfirst=True, zfirst=False, ovl=True, plead=2, p3r=-1, rgmap=True, gw=False, early0=1):
        self.early0 = early0
        self.gw = gw
        self.rgmap = rgmap
        self.plead = plead; self.p3r = p3r
        f2.OVL = ovl
        self.zfirst = zfirst
        self.cpfirst = cpfirst
        aux.PK2 = pk2
        self.wepi = wepi
        self.w1 = w1
        if w1:
            f1.R.opF = 'a'; f1.R.opA = (0, 20); f1.R.opB = (12, 32)
        else:
            f1.R.opF = 'v'; f1.R.opA = (16, 36); f1.R.opB = (28, 48)
        self.lean = lean
        self.dyn = dyn and stamps != 'dbg'
        f1.SPREAD = spread
        f2.OUTSC = outsc
        self.xpf = xpf
        self.pro = pro
        f2.MAP48 = map48; f2.AHEAD = ahead
        self.wsbase = wsbase
        self.twt = twt
        self.tlbpf = tlbpf
        self.codepf = codepf
        self.wput = wput; self.wputr = wputr
        self.dep2at = dep2at
        self.early3 = early3; self.npre = npre
        self.exp = exp; self.ta2 = ta2; self.tf1 = tf1; self.d2 = d2; self.nwa2 = nwa2
        self.A = Asm("K"); self.stamps = stamps; self.ns = 0; self.names = {}
        self.gemm_first = gemm_first
        self.dbg_sel = {"gemm": [(0,"start",1),(1,"consts",0),(2,"core",0),(3,"a1",0),(4,"preps",0),(5,"flag1",0),(6,"dep1",0),(7,"a2 start",0),(8,"a2 end",0),
                                 (9,"f1 loop end",0),(10,"f1 epi",0),(11,"dep2",0),(12,"a3 elem",0),(13,"a3 core",0),(14,"f2 loop end",0),(15,"end",0)]}
        if dbgsel: self.dbg_sel = {'gemm': [(i, n, 1 if i == 0 else 0) for i, n in enumerate(dbgsel)]}
        g2.ORDER = order; g2.STG = g2.stages()
    def stamp(self, name=None):
        if not self.stamps: return
        if self.stamps == "min" and name not in ("start", "end"): return
        A = self.A
        A("s_memrealtime s[100:101]")
        A("s_waitcnt lgkmcnt(0)")
        A(f"v_writelane_b32 v255, s100, {self.ns}")
        self.names.setdefault(self.role, []).append((self.ns, name))
        self.ns += 1
    def dump_stamps(self):
        if not self.stamps: return
        A = self.A
        if self.stamps == "dbg":
            sel = self.dbg_sel[self.role]
            A("s_waitcnt vmcnt(0) lgkmcnt(0)")
            A.srd(8, pDBG, 256)
            lab = A.label("nd")
            A("s_cmp_lg_u32 s20, 0")
            A(f"s_cbranch_scc1 {lab}")
            names = {nm: idx for idx, nm in self.names[self.role]}
            A("v_mov_b32 v2, 0")
            A("v_mov_b32 v3, 0x40000000")
            for slot, nm, inv in sel:
                A(f"v_readlane_b32 s30, v255, {names[nm]}")
                if inv: A("s_not_b32 s30, s30")
                A(f"s_mov_b32 s31, {4*slot}")
                A(f"v_writelane_b32 v2, s30, {slot}")
                A(f"v_writelane_b32 v3, s31, {slot}")
            A("buffer_atomic_umax v2, v3, s[8:11], 0 offen")
            A(f"{lab}:")
            return
        A("s_waitcnt vmcnt(0) lgkmcnt(0)")
        A.srd(8, pDBG, 1 << 20)
        A("v_lshlrev_b32 v1, 2, v0")
        A(f"s_lshl_b32 s30, s{sID}, 10")
        A("s_add_u32 s30, s30, 4096")
        A("buffer_store_dword v255, v1, s[8:11], s30 offen")
    def flag_store(self, off, s_idx):
        A = self.A
        lab = A.label("sig")
        A(f"s_cmp_lg_u32 s20, 0")
        A(f"s_cbranch_scc1 {lab}")
        A(f"s_lshl_b32 s{sTMP}, s{s_idx}, 2")
        A(f"s_add_u32 s{sTMP}, s{sTMP}, {off}")
        A(f"v_mov_b32 v249, s{sNONCE}")
        A(f"v_mov_b32 v254, 0")
        A("s_mov_b64 exec, 1")
        A(f"buffer_store_dword v249, v254, {srd(srdF)}, s{sTMP} offen sc1")
        A("s_mov_b64 exec, -1")
        A(f"{lab}:")
    def flag_store_all(self, vm, off, s_idx):
        A = self.A
        A(f"s_lshl_b32 s{sTMP}, s{s_idx}, 2")
        A(f"s_add_u32 s{sTMP}, s{sTMP}, {off}")
        A(f"s_cmp_eq_u32 s20, 0")
        A(f"s_cselect_b32 s{sTMP}, s{sTMP}, 0x40000000")
        A(f"v_mov_b32 v249, s{sNONCE}")
        A(f"v_mov_b32 v254, 0")
        A("s_mov_b64 exec, 1")
        A(f"buffer_store_dword v249, v254, {srd(srdF)}, s{sTMP} offen sc1")
        A("s_mov_b64 exec, -1")
        vm.issue("flag")
    def arrive(self, vm, phase):
        A = self.A
        off = (OFF_FLAG1, OFF_FLAG2, OFF_FLAG1B)[phase]
        A(f"s_lshl_b32 s{sTMP}, s{sID}, 2")
        A(f"s_add_u32 s{sTMP}, s{sTMP}, {off}")
        A(f"s_cmp_eq_u32 s20, 0")
        A(f"s_cselect_b32 s{sTMP}, s{sTMP}, 0x40000000")
        A(f"v_mov_b32 v249, s{sNONCE}")
        A(f"v_and_b32 v254, 7, v0")
        A(f"v_lshlrev_b32 v254, 10, v254")
        A("s_mov_b64 exec, 0xff")
        A(f"buffer_store_dword v249, v254, {srd(srdF)}, s{sTMP} offen sc1")
        A("s_mov_b64 exec, -1")
        vm.issue("flag")
    def cpoll_issue(self, vm, phase):
        A = self.A
        off = (OFF_FLAG1, OFF_FLAG2, OFF_FLAG1B)[phase]
        A(f"v_and_b32 v254, 63, v0")
        A(f"v_lshlrev_b32 v254, 4, v254")
        A(f"s_and_b32 s{sTMP}, s{sID}, 7")
        A(f"s_lshl_b32 s{sTMP}, s{sTMP}, 10")
        A(f"s_add_u32 s{sTMP}, s{sTMP}, {off}")
        A(f"s_cmp_eq_u32 s20, 0")
        A(f"s_cselect_b32 s{sTMP}, s{sTMP}, 0x40000000")
        A(f"buffer_load_dwordx4 v[250:253], v254, {srd(srdF)}, s{sTMP} offen sc1")
        vm.issue("cpoll")
    def cpoll_check(self, vm, phase):
        A = self.A
        off = (OFF_FLAG1, OFF_FLAG2, OFF_FLAG1B)[phase]
        lo, ok = A.label("w"), A.label("wok")
        A(f"s_waitcnt vmcnt({vm.wait({'cpoll'})})")
        A(f"s_cmp_lg_u32 s20, 0")
        A(f"s_cbranch_scc1 {ok}")
        A(f"s_mov_b32 s{sSPIN}, 0")
        A(f"{lo}:")
        for k in range(4): A(f"v_xor_b32 v{250+k}, s{sNONCE}, v{250+k}")
        A(f"v_or3_b32 v250, v250, v251, v252")
        A(f"v_or_b32 v250, v250, v253")
        A(f"v_cmp_ne_u32 vcc, 0, v250")
        A(f"s_cbranch_vccz {ok}")
        A(f"s_add_u32 s{sSPIN}, s{sSPIN}, 1")
        A(f"s_cmp_gt_u32 s{sSPIN}, {SPIN_MAX}")
        A(f"s_cbranch_scc1 {ok}")
        A("s_sleep 2")
        A(f"v_and_b32 v254, 63, v0")
        A(f"v_lshlrev_b32 v254, 4, v254")
        A(f"s_and_b32 s{sTMP}, s{sID}, 7")
        A(f"s_lshl_b32 s{sTMP}, s{sTMP}, 10")
        A(f"s_add_u32 s{sTMP}, s{sTMP}, {off}")
        A(f"buffer_load_dwordx4 v[250:253], v254, {srd(srdF)}, s{sTMP} offen sc1")
        A("s_waitcnt vmcnt(0)")
        A(f"s_branch {lo}")
        A(f"{ok}:")
    def flag_store_wave(self, vm, off, s_idx):
        A = self.A
        A(f"s_lshl_b32 s{sTMP}, s{s_idx}, 2")
        A(f"s_add_u32 s{sTMP}, s{sTMP}, {off}")
        A(f"v_mov_b32 v249, s{sNONCE}")
        A(f"v_mov_b32 v254, 0")
        A("s_mov_b64 exec, 1")
        A(f"buffer_store_dword v249, v254, {srd(srdF)}, s{sTMP} offen sc1")
        A("s_mov_b64 exec, -1")
        vm.issue("flag")
    def signal(self, vm, off, s_idx):
        A = self.A
        A("s_waitcnt vmcnt(0)")
        A("s_barrier")
        vm.q = []
        self.flag_store_all(vm, off, s_idx)
    def poll_issue(self, vm, off):
        A = self.A
        A(f"v_and_b32 v254, 63, v0")
        A(f"v_lshlrev_b32 v254, 4, v254")
        A(f"s_mov_b32 s{sTMP}, {off}")
        A(f"buffer_load_dwordx4 v[250:253], v254, {srd(srdF)}, s{sTMP} offen sc1")
        vm.issue("poll")
    def poll_check(self, vm, off):
        A = self.A
        lo, ok = A.label("w"), A.label("wok")
        A(f"s_waitcnt vmcnt({vm.wait({'poll'})})")
        A(f"s_mov_b32 s{sSPIN}, 0")
        A(f"{lo}:")
        for k in range(4): A(f"v_xor_b32 v{250+k}, s{sNONCE}, v{250+k}")
        A(f"v_or3_b32 v250, v250, v251, v252")
        A(f"v_or_b32 v250, v250, v253")
        A(f"v_cmp_ne_u32 vcc, 0, v250")
        A(f"s_cbranch_vccz {ok}")
        A(f"s_add_u32 s{sSPIN}, s{sSPIN}, 1")
        A(f"s_cmp_gt_u32 s{sSPIN}, {SPIN_MAX}")
        A(f"s_cbranch_scc1 {ok}")
        A("s_sleep 4")
        A(f"s_mov_b32 s{sTMP}, {off}")
        A(f"buffer_load_dwordx4 v[250:253], v254, {srd(srdF)}, s{sTMP} offen sc1")
        A("s_waitcnt vmcnt(0)")
        A(f"s_branch {lo}")
        A(f"{ok}:")
    def wait_all(self, vm, off):
        self.poll_issue(vm, off); self.poll_check(vm, off)
    def wait_idx(self, vm, off, v_idx_code):
        A = self.A
        lo, ok = A.label("w"), A.label("wok")
        v_idx_code()
        A(f"s_mov_b32 s{sSPIN}, 0")
        A(f"s_mov_b32 s{sTMP}, {off}")
        A(f"{lo}:")
        A(f"buffer_load_dword v250, v254, {srd(srdF)}, s{sTMP} offen sc1")
        A("s_waitcnt vmcnt(0)")
        A(f"v_cmp_ne_u32 vcc, s{sNONCE}, v250")
        A(f"s_cbranch_vccz {ok}")
        A(f"s_add_u32 s{sSPIN}, s{sSPIN}, 1")
        A(f"s_cmp_gt_u32 s{sSPIN}, {SPIN_MAX}")
        A(f"s_cbranch_scc1 {ok}")
        A("s_sleep 4")
        A(f"s_branch {lo}")
        A(f"{ok}:")
        vm.q = []

    def body(self):
        A = self.A; self.role = "gemm"; self.ns = 0
        vm = VM()
        TA2 = self.ta2
        self.stamp("start")
        X = self.exp.split("+")
        aux.setup(A, pAX, pWR, pWI, pWD, pGW, pWS)
        issued = set()
        def iss(*ks):
            for k in ks:
                f1.issue(A, vm, *k); issued.add(k)
        def mid():
            if "nopf" not in X and "pflate" not in X and "pfmid" not in X and "pf2" not in X and "pf0" not in X and "pf3" not in X and "pf4" not in X: f1.l2_prefetch(A, vm, pWG, pWU)
        if "pf0" in X: f1.l2_prefetch(A, vm, pWG, pWU)
        aux.issue_loads(A, vm, mid, wd=("wdlate" not in X and "wdmid" not in X and "wd2" not in X and "wd3" not in X))
        self.stamp("issued")
        aux.consts_a1(A)
        if self.lean == 0:
            f1.setup(A, sID, pAX, pWG, pWU, pWS)
            aux.setup_out(A, pWS)
            f1.setup_reads(A)
            A(aux.consts_a2_fill())
            aux.phase1_pre(A)
        if "wdmid" in X: aux.issue_wd(A, vm)
        if "pfmid" in X: f1.l2_prefetch(A, vm, pWG, pWU)
        self.stamp("consts")
        aux.a1_core(A, vm)
        self.stamp("core")
        if self.lean >= 1:
            A('s_waitcnt lgkmcnt(0)')
            aux.setup_out(A, pWS)
            aux.phase1_pre(A)
            f1.setup(A, sID, pAX, pWG, pWU, pWS)
            f1.setup_reads(A)
            if self.lean == 1: A(aux.consts_a2_fill())
        if "wdlate" in X: aux.issue_wd(A, vm)
        if "pflate" in X: f1.l2_prefetch(A, vm, pWG, pWU)
        A("s_waitcnt lgkmcnt(0)")
        A(f"s_add_u32 s{sNONCE}, s{sNONCE}, 1")
        A(f"s_waitcnt vmcnt({vm.wait({'ws', 'gw'} | (set() if ('wdlate' in X or 'wdmid' in X or 'wd2' in X or 'wd3' in X) else {'wd'}))})")
        if "pf2" in X: f1.l2_prefetch(A, vm, pWG, pWU)
        if "wd2" in X: aux.issue_wd(A, vm)
        if self.early0 >= 1: iss(("x", 0), ("w", 0))
        if self.early0 >= 2: iss(("w", 1))
        self.stamp("wswait")
        aux.a1_elem(A, vm)
        self.stamp("a1")
        if "nop1" not in self.exp and "nopreps" not in self.exp:
            late_dma = "pf3" in X or "pf4" in X
            if not late_dma and self.early0 < 1: iss(("x", 0), ("w", 0))
            self.stamp("x0w0")
            aux.wprep(A, vm)
            self.stamp("wp")
            if not late_dma and self.early0 < 2: iss(("w", 1))
            if "wdlate" in X or "wdmid" in X:
                A(f"s_waitcnt vmcnt({vm.wait({'wd'})})")
                A("s_barrier")
            if self.twt < 0: aux.wtprep(A, vm)
            self.stamp("wprep")
            if late_dma:
                if "pf3" in X:
                    iss(("x", 0), ("w", 0)); f1.l2_prefetch(A, vm, pWG, pWU); iss(("w", 1))
                else:
                    f1.l2_prefetch(A, vm, pWG, pWU); iss(("x", 0), ("w", 0), ("w", 1))
            iss(("x", 1), ("w", 2))
            if self.pro >= 1 and f1.NWS == 6: iss(("w", 3))
            if self.pro >= 2: iss(("x", 2))
            if not self.gw: aux.gate(A, vm)

        if 'nop1' in self.exp: A('s_waitcnt vmcnt(0)')
        self.stamp("preps")
        class Hooks(dict):
            def __setitem__(self, k, fn):
                old = self.get(k)
                dict.__setitem__(self, k, fn if old is None else (lambda o=old, n=fn: (o(), n())))
        class Tags(dict):
            def __setitem__(self, k, tags):
                dict.__setitem__(self, k, set(self.get(k, ())) | set(tags))
        after, pause, extra, before = Hooks(), Hooks(), Tags(), Hooks()
        extra[self.tf1] = {'st'}
        after[self.tf1] = lambda: (self.arrive(vm, 0), self.stamp("flag1"), aux.issue_wd(A, vm) if 'wd3' in X else None)
        if self.gw:
            after[0] = lambda: aux.gate_reads(A)
            after[1] = lambda: aux.gate(A, vm, 1)
            after[2] = lambda: aux.gate(A, vm, 2)
        if self.xpf is not None: after[self.xpf] = lambda: f1.x_prefetch(A, vm)
        if self.dyn:
            TT = TA2 - 6
            def t_take():
                A.srd(4, pDBG, 256)
                A(f"s_and_b32 s{sTMP}, s{sID}, 7")
                A(f"s_lshl_b32 s{sTMP}, s{sTMP}, 5")
                A(f"s_cmp_eq_u32 s20, 0")
                A(f"s_cselect_b32 s{sTMP}, s{sTMP}, 0x40000000")
                A(f"v_mov_b32 v248, 1")
                A(f"v_mov_b32 v247, 0")
                A("s_mov_b64 exec, 1")
                A(f"buffer_atomic_add v248, v247, s[4:7], s{sTMP} offen sc0 sc1")
                A("s_mov_b64 exec, -1")
                vm.issue("tick")
            def t_share():
                A(f"s_lshl_b32 s{sTMP}, s20, 6")
                A(f"s_add_u32 s{sTMP}, s{sTMP}, {aux.L_GW}")
                A(f"v_mov_b32 v247, s{sTMP}")
                A("s_mov_b64 exec, 1")
                A("ds_write_b32 v247, v248")
                A("s_mov_b64 exec, -1")
                A("s_waitcnt lgkmcnt(0)")
            def t_read():
                A(f"v_mov_b32 v247, {aux.L_GW}")
                A("ds_read_b32 v248, v247")
            def t_use():
                A(f"v_readfirstlane_b32 s{aux.R.sa2}, v248")
                A(f"s_lshl_b32 s{aux.R.sa2}, s{aux.R.sa2}, 3")
                A(f"s_and_b32 s{sTMP}, s{sID}, 7")
                A(f"s_add_u32 s{aux.R.sa2}, s{aux.R.sa2}, s{sTMP}")
            after[TT] = t_take
            extra[TT+2] = {"tick"}
            before[TT+2] = t_share
            after[TT+2] = t_read
            after[TT+3] = t_use
        else:
            after[0] = lambda: A(f"s_mov_b32 s{aux.R.sa2}, s{sID}")
        def a2_issue():
            A(f"s_or_b32 s{sTMP}, s{sID}, s20")
            A(f"s_cmp_eq_u32 s{sTMP}, 0")
            A(f"s_cselect_b32 s{sTMP}, 0, 0x40000000")
            A(f"v_mov_b32 v249, s{sNONCE}")
            A(f"v_mov_b32 v254, 0")
            A("s_mov_b64 exec, 1")
            A(f"buffer_store_dword v249, v254, {srd(srdF)}, s{sTMP} offen sc1")
            A("s_mov_b64 exec, -1")
            vm.issue("flag")
            self.stamp("dep1")
            aux.a2_loads(A, vm, pWS)
            if not self.w1: f2.setup_w(A, sID, pWS)
        NW_A2 = self.nwa2
        watoms = f2.w_loads(range(NW_A2))
        def a2_run():
            lab, lab2 = A.label("noa2"), A.label("a2d")
            self.stamp("a2 start")
            A(f"s_waitcnt vmcnt({vm.wait({'a2in'})})")
            A(f"s_cmp_ge_u32 s{aux.R.sa2}, {0 if 'noa2' in self.exp else 162}")
            A(f"s_cbranch_scc1 {lab}")
            v2 = VM()
            def st2(T, n):
                if self.stamps and "a2fine" in self.exp:
                    keep = self.A; self.A = T; self.stamp(n); self.A = keep
            aux.a2(A, v2, pWS, waited=True, weave=list(watoms), stamp=st2)
            A(f"s_branch {lab2}")
            A(f"{lab}:")
            for ins in watoms: A(ins)
            A(f"{lab2}:")
            for k in range(len(watoms)): vm.issue(f"W{k//5}")
            vm.mark('zst')
            self.stamp("a2 end")
        weave = None
        if self.w1:
            T0 = self.w1
            after[T0-6] = lambda: self.cpoll_issue(vm, 0)
            before[T0-3] = lambda: self.cpoll_check(vm, 0)
            after[T0-3] = a2_issue
            extra[T0] = {'a2in'}
            def skip(label):
                A(f"s_cmp_ge_u32 s{aux.R.sa2}, 162")
                A(f"s_cbranch_scc1 {label}")
            weave = dict(ts=T0, te=T0+6, bundles=aux.a2_bundles(pWS, T0), skip=skip, mark='zst')
            if T0 + 8 <= 18:
                extra[T0+8] = {'zst', 'gst'}
                after[T0+8] = lambda: self.arrive(vm, 1)
        else:
            after[TA2-1-self.plead] = lambda: self.cpoll_issue(vm, 0)
            before[TA2-1] = lambda: self.cpoll_check(vm, 0)
            after[TA2-1] = a2_issue
            pause[TA2] = a2_run
            if self.twt >= 0:
                if 'wd2' in X or 'wd3' in X: extra[self.twt] = set(extra.get(self.twt, ())) | {'wd'}
                pause[self.twt] = lambda: aux.wtprep(A, vm, tag='wtst')
                extra[self.twt + 3] = {'wtst'}
                after[self.twt + 3] = lambda: self.arrive(vm, 2)
                after[TA2-1] = lambda: self.cpoll_issue(vm, 2)
                before[TA2] = lambda: self.cpoll_check(vm, 2)
            extra[TA2+self.d2] = {'zst', 'gst'}
            after[TA2+self.d2] = lambda: self.arrive(vm, 1)
        if self.dep2at < 0:
            after[16] = lambda: self.cpoll_issue(vm, 1)
            before[18] = lambda: self.cpoll_check(vm, 1)
        if "fine" in self.exp:
            for t in range(0, 19, 2):
                def mk(t, old):
                    def f():
                        if old: old()
                        self.stamp(f"bar{t}")
                    return f
                after[t] = (lambda t=t: self.stamp(f"bar{t}"))
        fl = aux.consts_a2_fill() if self.lean == 2 else []
        f1.main(A, vm, issued, fill=fl, after_barrier=after, pause=pause, late=[k for k in ([("w", 3), ("x", 2), ("w", 4), ("w", 5)] if f1.NWS == 6 else [("w", 3), ("x", 3), ("w", 4)]) if k not in issued], extra_need=extra, before_barrier=before, weave=weave)
        if self.w1 and self.w1 + 8 > 18:
            A(f"s_waitcnt vmcnt({vm.wait({'zst', 'gst'})})")
            A("s_barrier")
            self.arrive(vm, 1)
        self.stamp("f1 loop end")
        if self.w1: f2.setup_w(A, sID, pWS)
        f2.setup(A, sID, pWS, pOUT)
        if self.dep2at < 0:
            self.stamp("dep2")
            aux.a3_loads(A, vm, pWS)
        nw0 = 0 if self.w1 else self.nwa2
        atoms = [(ins, f"W{nw0 + k//5}") for k, ins in enumerate(f2.w_loads(range(nw0, 10)))]
        def put(n):
            for _ in range(n):
                if atoms:
                    ins, tag = atoms.pop(0); A(ins); vm.issue(tag)
        def btw(k):
            if self.dep2at == 9:
                if k == 3: self.cpoll_issue(vm, 1)
                if self.w1: put(self.wepi)
                return
            if self.dep2at < 0 or k > self.dep2at: put(self.wput)
            if self.dep2at >= 0:
                if k == max(0, self.dep2at - 2): self.cpoll_issue(vm, 1)
                if k == self.dep2at:
                    self.cpoll_check(vm, 1)
                    A("s_barrier")
                    self.stamp("dep2")
                    aux.a3_loads(A, vm, pWS)
        f1.epilogue(A, vm, pWS, between=btw)
        self.stamp("f1 epi")
        A(f"s_lshl_b32 s{sTMP}, s{f1.R.smt}, 1")
        A(f"s_lshr_b32 s99, s20, 1")
        A(f"s_add_u32 s{sTMP}, s{sTMP}, s99")
        A(f"s_lshl_b32 s{sTMP}, s{sTMP}, 5")
        A(f"s_lshl_b32 s99, s{f1.R.sft}, 1")
        A(f"s_add_u32 s{sTMP}, s{sTMP}, s99")
        A(f"s_and_b32 s99, s20, 1")
        A(f"s_add_u32 s99, s{sTMP}, s99")
        if self.dep2at == 9:
            aux.a3_pre(A)
            f2.setup2(A, pWS, pOUT)
            if not self.zfirst:
                A(f"s_waitcnt vmcnt({vm.wait({'hst'})})")
                self.flag_store_wave(vm, OFF_FLAG3, 99)
            self.cpoll_check(vm, 1)
            A("s_barrier")
            self.stamp("dep2")
            aux.a3_loads(A, vm, pWS)
            if self.zfirst:
                put(self.wput*2)
                A(f"s_waitcnt vmcnt({vm.wait({'hst', 'zl'})})")
                self.flag_store_wave(vm, OFF_FLAG3, 99)
                put(self.wput)
            else:
                put(self.wput*3)
        def poll3_issue():
            A(f"v_and_b32 v254, 31, v0")
            A(f"s_lshl_b32 s{sTMP}, s{f2.R.sT}, 5")
            A(f"v_add_u32 v254, s{sTMP}, v254")
            A(f"v_lshlrev_b32 v254, 2, v254")
            A(f"s_mov_b32 s{sTMP}, {OFF_FLAG3}")
            A(f"buffer_load_dword v250, v254, {srd(srdF)}, s{sTMP} offen sc1")
            vm.issue("poll3")
        def extra(rnd):
            if rnd == self.p3r: poll3_issue()
            if rnd > 0: put(self.wputr)
            if rnd == 1 and self.dep2at != 9:
                A(f"s_waitcnt vmcnt({vm.wait({'hst'})})")
                self.flag_store_wave(vm, OFF_FLAG3, 99)
        if self.dep2at != 9: aux.a3_pre(A)
        aux.a3_elem(A, vm, extra)
        put(100)
        A("s_barrier")
        self.stamp("a3 elem")
        if self.dep2at != 9: f2.setup2(A, pWS, pOUT)
        def check_one(tag, off):
            lo, ok = A.label("w"), A.label("wok")
            A(f"s_waitcnt vmcnt({vm.wait({tag})})")
            A(f"s_mov_b32 s{sSPIN}, 0")
            A(f"{lo}:")
            A(f"v_cmp_ne_u32 vcc, s{sNONCE}, v250")
            A(f"s_cbranch_vccz {ok}")
            A(f"s_add_u32 s{sSPIN}, s{sSPIN}, 1")
            A(f"s_cmp_gt_u32 s{sSPIN}, {SPIN_MAX}")
            A(f"s_cbranch_scc1 {ok}")
            A("s_sleep 4")
            A(f"s_mov_b32 s{sTMP}, {off}")
            A(f"buffer_load_dword v250, v254, {srd(srdF)}, s{sTMP} offen sc1")
            A("s_waitcnt vmcnt(0)")
            A(f"s_branch {lo}")
            A(f"{ok}:")
        npre = self.npre
        if self.early3:
            if self.p3r < 0: poll3_issue()
            def mid():
                check_one("poll3", OFF_FLAG3)
                for i in range(npre):
                    A(f2.h_loads(i)); vm.issue(f"h{i}", 4)
            aux.a3_core(A, vm, pWS, mid=mid)
        else:
            aux.a3_core(A, vm, pWS, mid=(poll3_issue if self.p3r < 0 else None))
        for k, ins in enumerate(f2.w_loads((10, 11))):
            A(ins); vm.issue(f"W{10 + k//5}")
        self.stamp("a3 core")
        if not self.early3:
            check_one("poll3", OFF_FLAG3)
            npre = 0
        self.stamp("dep3")
        def flag4():
            A(f"s_waitcnt vmcnt({vm.wait({'gast'})})")
            A(f"s_lshl_b32 s99, s{aux.R.srg}, 2")
            A(f"s_add_u32 s99, s99, s20")
            self.flag_store_wave(vm, OFF_FLAG4, 99)
        def code4():
            A(f"v_and_b32 v254, 63, v0")
            A(f"s_and_b32 s{sTMP}, s{f2.R.sT}, 15")
            A(f"s_lshl_b32 s{sTMP}, s{sTMP}, 6")
            A(f"v_add_u32 v254, s{sTMP}, v254")
            A(f"v_lshlrev_b32 v254, 2, v254")
        def h_issue4():
            code4()
            A(f"s_mov_b32 s{sTMP}, {OFF_FLAG4}")
            A(f"buffer_load_dword v250, v254, {srd(srdF)}, s{sTMP} offen sc1")
            vm.issue("poll4")
        def h_check4():
            check_one("poll4", OFF_FLAG4)
            f2.final_loads(A, vm)
        hk = {1: flag4, 6: h_issue4, 10: h_check4}
        if "f2fine" in self.exp:
            for i_ in (0, 2, 4, 8, 11):
                hk[i_] = (lambda o=hk.get(i_), i_=i_: ((o() if o else None), self.stamp(f"f2s{i_}")))
        f2.main(A, vm, hooks=hk, pre_issued=npre)
        self.stamp("f2 loop end")
        f2.epilogue(A, vm)
        self.stamp("end")
        self.dump_stamps()
        A("s_endpgm")

    def build(self):
        A = self.A
        A(f"s_cmp_ge_u32 s2, 256")
        A(f"s_cbranch_scc1 K_exit")
        A(f"s_load_dwordx16 s[68:83], s[0:1], 0")
        A(f"s_load_dwordx4 s[84:87], s[0:1], 64")
        A(f"s_load_dwordx2 s[88:89], s[0:1], 80")
        if self.cpfirst:
            if self.codepf:
                A("s_getpc_b64 s[4:5]")
                A("K_pc:")
                A("s_and_b32 s5, s5, 0xffff")
                A("s_mov_b32 s6, K_exit-K_pc")
                A("s_mov_b32 s7, 0x20000")
                A("v_lshlrev_b32 v4, 7, v0")
                for k in range(self.codepf):
                    A(f"s_mov_b32 s28, {32768*k}")
                    A(f"buffer_load_dword v229, v4, s[4:7], s28 offen")

        if self.stamps: A("v_mov_b32 v255, 0")
        A(f"s_mov_b32 s{sID}, s2")
        if self.rgmap:
            A(f"s_and_b32 s3, s2, 7")
            A(f"s_lshl_b32 s3, s3, 1")
            A(f"s_bfe_u32 s28, s2, {3 | (1 << 16)}")
            A(f"s_add_u32 s3, s3, s28")
            A(f"s_and_b32 s28, s2, 0xf0")
            A(f"s_add_u32 s3, s3, s28")
        else:
            A(f"s_mov_b32 s3, s2")
        A(f"v_lshrrev_b32 v4, 6, v0")
        A("s_nop 0")
        A(f"v_readfirstlane_b32 s20, v4")
        A("s_waitcnt lgkmcnt(0)")
        if self.wsbase:
            A(f"s_add_u32 s{pWS}, s{pWS}, {hex(self.wsbase)}")
            A(f"s_addc_u32 s{pWS+1}, s{pWS+1}, 0")
        A(f"s_load_dword s{sNONCE}, s[{pWS}:{pWS+1}], {OFF_EPOCH}")
        if not self.cpfirst:
            if self.codepf:
                A("s_getpc_b64 s[4:5]")
                A("K_pc:")
                A("s_and_b32 s5, s5, 0xffff")
                A("s_mov_b32 s6, K_exit-K_pc")
                A("s_mov_b32 s7, 0x20000")
                A("v_lshlrev_b32 v4, 7, v0")
                for k in range(self.codepf):
                    A(f"s_mov_b32 s28, {32768*k}")
                    A(f"buffer_load_dword v229, v4, s[4:7], s28 offen")
        if self.tlbpf:
            A.srd(4, pWS, 28 << 20)
            A("v_and_b32 v4, 63, v0")
            A("v_lshlrev_b32 v4, 19, v4")
            A("v_add_u32 v4, 0x7ff80, v4")
            A(f"buffer_load_dword v229, v4, s[4:7], 0 offen")
            A.srd(4, pOUT, 2048*640*2)
            A("v_and_b32 v4, 63, v0")
            A("v_lshlrev_b32 v4, 16, v4")
            A(f"buffer_load_dword v229, v4, s[4:7], 0 offen")
        A.srd(srdF, pWS, SZ_FLAGS)
        self.body()
        A("K_exit:")
        A("s_endpgm")
        if os.environ.get('NOST'):
            out = []
            for l in A.l:
                if 'buffer_store' in l and ('s[36:39]' in l or 's[48:51]' in l or 's[56:59]' in l): l = '  s_nop 0'
                out.append(l)
            A.l = out
        lines, n = hazard.fix(A.l)
        return lines

HEADER = open(os.path.join(os.path.dirname(os.path.abspath(__file__)), "header.txt")).read()
def full_source(**kw):
    g = Gen(**kw)
    body = "\n".join(g.build())
    src = HEADER + f"""; @launch grid=(256,1,1) block=(256,1,1) lds=163840
;
; One persistent launch, one workgroup (4 waves, 512 registers each, 160 KB LDS) per CU.  Generated by my own script.
;   out = g * irfft2(rfft2(x) * W) + (1 - g) * (silu(x Wg) * (x Wu)) Wd ,  g = sigmoid(x . gate_w)
; Every workgroup runs, in this order:
;   phase 1  row FFT of 4 row pairs (s, s+1024): 320-point complex FFT as two MFMA steps (32 x 10), real-FFT unmixing and the
;            radix-2 step of the column FFT -> X1 ; transposition of the filter -> WF ; Wd in MFMA fragment order -> WT ; gate
;   F1       128 x 96 tile of silu(x Wg) * (x Wu), operands through LDS rings filled by LDS-DMA -> H (fragment order)
;   A2       (inside F1, workgroups 0..161) four 1024-point column FFTs, filter, inverse FFTs, all as 32x32 MFMA steps -> Z
;   A3       inverse of phase 1 for the same row pairs, times g -> GA
;   F2       64 x 80 tile of H Wd, K split over the waves, Wd fragments resident in AGPRs, combined with GA -> out
; Hand-offs between workgroups go through d_ws with write-through (sc1) stores, sc1 loads and flag words tagged with
; (epoch word found in d_ws) + 1; every spin is bounded.
.amdgcn_target "amdgcn-amd-amdhsa--gfx950"
.text
.globl {NAME}
.p2align 8
.type {NAME},@function
{NAME}:
{body}
.section .rodata,"a"
.p2align 6
.amdhsa_kernel {NAME}
  .amdhsa_next_free_vgpr 512
  .amdhsa_next_free_sgpr 102
  .amdhsa_accum_offset 256
  .amdhsa_group_segment_fixed_size 0
  .amdhsa_kernarg_size 88
  .amdhsa_user_sgpr_count 2
  .amdhsa_user_sgpr_kernarg_segment_ptr 1
  .amdhsa_system_sgpr_workgroup_id_x 1
.end_amdhsa_kernel
"""
    return src, g
if __name__ == "__main__":
    kw = {}
    for o in sys.argv[2:]:
        k, v_ = o.split("="); kw[k] = eval(v_)
    src, g = full_source(**kw)
    out = sys.argv[1] if len(sys.argv) > 1 else "gated_mix__spectral_gfnet__swiglu_ffn__prompt.s"
    open(out, "w").write(src)
    print("wrote", out, len(src), "bytes")
```

```python
from asmlib import *
from layout import *

MAP48 = False
OUTSC = ''
class R:
    acc = 64
    vh = 230
    vl16 = 243
    vout = 231
    vog = 232
    vt = 233
    GAV = 244
    srdWT, srdH, srdGA, srdO, srdG = 64, 12, 8, 36, 40
    sw, sT, sdt = 20, 21, 22
    sWoff, sHoff = 61, 24
    st = 28
NRING = 8
def hslot(i):
    k = i % NRING
    return 144 + 16*k if k < 3 else (16 + 16*(k-3) if k < 6 else 192 + 16*(k-6))

def setup_w(A, s_b, pWS):
    A.srd(R.srdWT, pWS, SZ_WT, OFF_WT)
    if MAP48:
        A(f"s_lshr_b32 s60, s{s_b}, 5")
    else:
        A(f"s_lshr_b32 s60, s{s_b}, 2")
        A(f"s_and_b32 s60, s60, 1")
        A(f"s_lshl_b32 s60, s60, 2")
        A(f"s_lshr_b32 s62, s{s_b}, 6")
        A(f"s_add_u32 s60, s60, s62")
    A(f"s_mul_i32 s62, s{R.sw}, 96")
    A(f"s_add_u32 s60, s60, s62")
    A(f"s_mul_i32 s{R.sWoff}, s60, 5120")
    A(f"v_and_b32 v{R.vl16}, 63, v0")
    A(f"v_lshlrev_b32 v{R.vl16}, 4, v{R.vl16}")

def setup(A, s_b, pWS, pOUT):
    st, t = R.st, R.vt
    A.c("---- F2 setup ----")
    if MAP48:
        A(f"s_and_b32 s{st}, s{s_b}, 7")
        A(f"s_lshl_b32 s{st}, s{st}, 2")
        A(f"s_lshr_b32 s{st+1}, s{s_b}, 3")
        A(f"s_and_b32 s{st+1}, s{st+1}, 3")
        A(f"s_add_u32 s{R.sT}, s{st}, s{st+1}")
        A(f"s_lshr_b32 s{R.sdt}, s{s_b}, 5")
        return
    A(f"s_and_b32 s{st}, s{s_b}, 3")
    A(f"s_lshl_b32 s{st}, s{st}, 3")
    A(f"s_lshr_b32 s{st+1}, s{s_b}, 3")
    A(f"s_and_b32 s{st+1}, s{st+1}, 7")
    A(f"s_add_u32 s{R.sT}, s{st}, s{st+1}")
    A(f"s_lshr_b32 s{st}, s{s_b}, 2")
    A(f"s_and_b32 s{st}, s{st}, 1")
    A(f"s_lshl_b32 s{st}, s{st}, 2")
    A(f"s_lshr_b32 s{st+1}, s{s_b}, 6")
    A(f"s_add_u32 s{R.sdt}, s{st}, s{st+1}")

def w_loads(steps):
    L = []
    so = 60
    for i in steps:
        for mt in range(5):
            d = 20*i + 4*mt
            pre = []
            if mt == 0: pre = [f"s_add_u32 s{so}, s{R.sWoff}, {i*8*5120}"]
            if mt == 4: pre = [f"s_add_u32 s{so}, s{so}, 4096"]
            off = f" offset:{1024*mt}" if 0 < mt < 4 else ""
            L.append(pre + [f"buffer_load_dwordx4 a[{d}:{d+3}], v{R.vl16}, {srd(R.srdWT)}, s{so} offen{off} sc1"])
    return L

def setup2(A, pWS, pOUT):
    st, t = R.st, R.vt
    A.srd(R.srdH, pWS, SZ_H, OFF_H)
    A.srd(R.srdGA, pWS, SZ_GA, OFF_GA)
    A.srd(R.srdO, pOUT, 2048*640*2)
    A.srd(R.srdG, pWS, 8192, OFF_G)
    A(f"v_and_b32 v{t}, 63, v0")
    A(f"v_and_b32 v{t+1}, 15, v{t}")
    A(f"v_lshrrev_b32 v{t+2}, 4, v{t}")
    A(f"v_lshl_add_u32 v{t+3}, v{t+2}, 5, v{t+1}")
    A(f"v_lshlrev_b32 v{R.vh}, 4, v{t+3}")
    A(f"s_mul_i32 s{st}, s{R.sT}, {2*96*1024}")
    A(f"s_mul_i32 s{st+1}, s{R.sw}, {12*2048}")
    A(f"s_add_u32 s{R.sHoff}, s{st}, s{st+1}")
    for lam in range(4):
        A(f"s_add_u32 s{st}, s{R.sw}, {lam}")
        A(f"s_and_b32 s{st}, s{st}, 3")
        A(f"s_lshr_b32 s{st+1}, s{st}, 1")
        A(f"s_mul_i32 s{st+1}, s{st+1}, {96*1024}")
        A(f"s_and_b32 s{st}, s{st}, 1")
        A(f"s_lshl_b32 s{st}, s{st}, 8")
        A(f"s_add_u32 s{st}, s{st}, s{st+1}")
        A(f"s_add_u32 s{44+lam}, s{st}, s{R.sHoff}")
    A(f"s_lshl_b32 s{st}, s{R.sT}, 6")
    A(f"s_lshl_b32 s{st+1}, s{R.sw}, 4")
    A(f"s_add_u32 s{st}, s{st}, s{st+1}")
    A(f"v_add_u32 v{t+3}, s{st}, v{t+1}")
    A(f"v_lshlrev_b32 v{R.vog}, 2, v{t+3}")
    A(f"v_mul_u32_u24 v{t+3}, 1280, v{t+3}")
    A(f"s_mul_i32 s{st}, s{R.sdt}, 160")
    A(f"v_lshl_add_u32 v{t+3}, v{t+2}, 3, v{t+3}")
    A(f"v_add_u32 v{R.vout}, s{st}, v{t+3}")

def h_loads(i):
    so = R.st + 2
    L = []
    for lam in range(4):
        d = hslot(i) + 4*lam
        L.append([f"s_add_u32 s{so}, s{44+lam}, {i*2048}", f"buffer_load_dwordx4 v[{d}:{d+3}], v{R.vh}, {srd(R.srdH)}, s{so} offen sc1"])
    return L

def mfmas(i):
    L = []
    for mt in range(5):
        for lam in range(4):
            d = R.acc + lam*20 + mt*4
            b = hslot(i) + 4*lam
            L.append(f"v_mfma_f32_16x16x32_bf16 v[{d}:{d+3}], a[{20*i+4*mt}:{20*i+4*mt+3}], v[{b}:{b+3}], " + ("0" if i == 0 else f"v[{d}:{d+3}]"))
    return L

AHEAD = 4
OVL = True
def red_addr(A, lds_base=0):
    st, t = R.st, R.vt
    for lam in range(1, 4):
        A(f"s_add_u32 s{st}, s{R.sw}, {lam}")
        A(f"s_and_b32 s{st}, s{st}, 3")
        A(f"s_mul_i32 s{st}, s{st}, {3*5120}")
        A(f"s_add_u32 s{st}, s{st}, {lds_base + (lam-1)*5120}")
        A(f"v_add_u32 v{t+lam-1}, s{st}, v{R.vl16}")
    A(f"s_mul_i32 s{st}, s{R.sw}, {3*5120}")
    A(f"s_add_u32 s{st}, s{st}, {lds_base}")
    A(f"v_add_u32 v{t+3}, s{st}, v{R.vl16}")

def red_writes(lam):
    t = R.vt
    return [f"ds_write_b128 v{t+lam-1}, v[{R.acc+lam*20+mt*4}:{R.acc+lam*20+mt*4+3}] offset:{mt*1024}" for mt in range(5)]

def main(A, vm, hooks=None, pre_issued=0, extra=None):
    for i in range(pre_issued, AHEAD):
        A(h_loads(i)); vm.issue(f"h{i}", 4)
    for i in range(12):
        A.c(f"F2 step {i}")
        if hooks and i in hooks: hooks[i]()
        if OVL and i == 9: red_addr(A)
        A(f"s_waitcnt vmcnt({vm.wait({f'h{i}', f'W{i}'})})")
        m = mfmas(i)
        if OVL and i == 11:
            by = lambda lam: [x for k, x in enumerate(m) if k % 4 == lam]
            w1, w2, w3 = red_writes(1), red_writes(2), red_writes(3)
            A(by(1)); A(by(2))
            A(place(by(3), [[x] for x in w1]))
            A(place(by(0), [[x] for x in w2]))
            A(w3)
            continue
        n = i + AHEAD
        g = [[] for _ in m]
        if n < 12 and n >= pre_issued:
            for k, ins in enumerate(h_loads(n)): g[1 + 5*k] = ins
            vm.issue(f"h{n}", 4)
        if extra:
            for gi in (17, 18):
                if extra:
                    ins, tag = extra.pop(0); g[gi] = g[gi] + ins; vm.issue(tag)
        A(place(m, g))

def final_loads(A, vm):
    A(f"buffer_load_dword v{R.vog}, v{R.vog}, {srd(R.srdG)}, 0 offen sc1")
    for mt in range(5):
        A(f"buffer_load_dwordx2 v[{R.GAV+2*mt}:{R.GAV+2*mt+1}], v{R.vout}, {srd(R.srdGA)}, 0 offen offset:{32*mt} sc1")
    vm.issue("ga", 6)

def epilogue(A, vm, lds_base=0):
    st, t = R.st, R.vt
    A.c("---- F2 reduction and output ----")
    if not OVL:
        red_addr(A, lds_base)
        for lam in range(1, 4): A(red_writes(lam))
    A("s_waitcnt lgkmcnt(0)")
    A("s_barrier")
    P = R.acc + 20
    for k in range(3):
        for mt in range(5):
            A(f"ds_read_b128 v[{P+20*k+4*mt}:{P+20*k+4*mt+3}], v{t+3} offset:{k*5120 + mt*1024}")
    A(f"s_waitcnt vmcnt({vm.wait({'ga'})})")
    A(f"v_sub_f32 v{R.vog}, 1.0, v{R.vog}")
    A(f"v_cvt_pk_bf16_f32 v{R.vog}, v{R.vog}, v{R.vog}")
    A(f"v_and_b32 v{R.vog}, 0xffff0000, v{R.vog}")
    for mt in range(5):
        A(f"s_waitcnt lgkmcnt({min(15, 14-mt if False else 0)})") if mt == 0 else None
        x = R.acc + 4*mt
        for k in range(3):
            y = P + 20*k + 4*mt
            A(f"v_pk_add_f32 v[{x}:{x+1}], v[{x}:{x+1}], v[{y}:{y+1}]")
            A(f"v_pk_add_f32 v[{x+2}:{x+3}], v[{x+2}:{x+3}], v[{y+2}:{y+3}]")
        g = R.GAV + 2*mt
        A(f"v_lshlrev_b32 v16, 16, v{g}")
        A(f"v_and_b32 v17, 0xffff0000, v{g}")
        A(f"v_lshlrev_b32 v18, 16, v{g+1}")
        A(f"v_and_b32 v19, 0xffff0000, v{g+1}")
        for j in range(4): A(f"v_fmac_f32 v{16+j}, v{R.vog}, v{x+j}")
        o = 20 + 2*mt
        A(f"v_cvt_pk_bf16_f32 v{o}, v16, v17")
        A(f"v_cvt_pk_bf16_f32 v{o+1}, v18, v19")
        A(f"buffer_store_dwordx2 v[{o}:{o+1}], v{R.vout}, {srd(R.srdO)}, 0 offen offset:{32*mt}{OUTSC}")
```

```python
import sys, os
sys.path.insert(0, os.path.dirname(os.path.abspath(__file__)))
from asmlib import *
from layout import *
import f1, f2, g2, aux, hazard

NAME = "gated_mix__spectral_gfnet__swiglu_ffn__prompt_kernel"
pAX, pWR, pWI, pBX, pWG, pWU, pWD, pGW, pOUT, pDBG, pWS = 68, 70, 72, 74, 76, 78, 80, 82, 84, 86, 88
sNONCE, srdF, sSPIN, sTMP, sID = 90, 92, 96, 97, 98
srdD = 0
SPIN_MAX = 20000
import os
if os.environ.get('NOSPIN'): SPIN_MAX = 0

class Gen:
    def __init__(self, stamps=False, order="AB", gemm_first=True, exp="", ta2=11, tf1=-1, d2=2, nwa2=7, early3=True, npre=3, dep2at=9, wput=2, wputr=4, codepf=1, tlbpf=0, twt=-1, wsbase=0, map48=True, ahead=4, pro=2, xpf=None, outsc='', dbgsel=None, spread=True, dyn=False, lean=0, w1=0, wepi=3, pk2=True, cpfirst=True, zfirst=False, ovl=True, plead=2, p3r=-1, rgmap=True, gw=False, early0=1, hsc=' sc1', f3now=False, p2st=17, pp=False, elem1st=False, f4s=(1, 6, 10), wl2=True):
        self.wl2 = wl2
        self.f4s = f4s
        self.elem1st = elem1st
        self.pp = pp
        self.p2st = p2st
        self.f3now = f3now
        self.hsc = hsc
        self.early0 = early0
        self.gw = gw
        self.rgmap = rgmap
        self.plead = plead; self.p3r = p3r
        f2.OVL = ovl
        self.zfirst = zfirst
        self.cpfirst = cpfirst
        aux.PK2 = pk2
        self.wepi = wepi
        self.w1 = w1
        if w1:
            f1.R.opF = 'a'; f1.R.opA = (0, 20); f1.R.opB = (12, 32)
        else:
            f1.R.opF = 'v'; f1.R.opA = (16, 36); f1.R.opB = (28, 48)
        self.lean = lean
        self.dyn = dyn and stamps != 'dbg'
        f1.SPREAD = spread
        f2.OUTSC = outsc
        self.xpf = xpf
        self.pro = pro
        f2.MAP48 = map48; f2.AHEAD = ahead
        self.wsbase = wsbase
        self.twt = twt
        self.tlbpf = tlbpf
        self.codepf = codepf
        self.wput = wput; self.wputr = wputr
        self.dep2at = dep2at
        self.early3 = early3; self.npre = npre
        self.exp = exp; self.ta2 = ta2; self.tf1 = tf1; self.d2 = d2; self.nwa2 = nwa2
        self.A = Asm("K"); self.stamps = stamps; self.ns = 0; self.names = {}
        self.gemm_first = gemm_first
        self.dbg_sel = {"gemm": [(0,"start",1),(1,"consts",0),(2,"core",0),(3,"a1",0),(4,"preps",0),(5,"flag1",0),(6,"dep1",0),(7,"a2 start",0),(8,"a2 end",0),
                                 (9,"f1 loop end",0),(10,"f1 epi",0),(11,"dep2",0),(12,"a3 elem",0),(13,"a3 core",0),(14,"f2 loop end",0),(15,"end",0)]}
        if dbgsel: self.dbg_sel = {'gemm': [(i, n, 1 if i == 0 else 0) for i, n in enumerate(dbgsel)]}
        g2.ORDER = order; g2.STG = g2.stages()
    def stamp(self, name=None):
        if not self.stamps: return
        if self.stamps == "min" and name not in ("start", "end"): return
        A = self.A
        A("s_memrealtime s[100:101]")
        A("s_waitcnt lgkmcnt(0)")
        A(f"v_writelane_b32 v255, s100, {self.ns}")
        self.names.setdefault(self.role, []).append((self.ns, name))
        self.ns += 1
    def dump_stamps(self):
        if not self.stamps: return
        A = self.A
        if self.stamps == "dbg":
            sel = self.dbg_sel[self.role]
            A("s_waitcnt vmcnt(0) lgkmcnt(0)")
            A.srd(8, pDBG, 256)
            lab = A.label("nd")
            A("s_cmp_lg_u32 s20, 0")
            A(f"s_cbranch_scc1 {lab}")
            names = {nm: idx for idx, nm in self.names[self.role]}
            A("v_mov_b32 v2, 0")
            A("v_mov_b32 v3, 0x40000000")
            for slot, nm, inv in sel:
                A(f"v_readlane_b32 s30, v255, {names[nm]}")
                if inv: A("s_not_b32 s30, s30")
                A(f"s_mov_b32 s31, {4*slot}")
                A(f"v_writelane_b32 v2, s30, {slot}")
                A(f"v_writelane_b32 v3, s31, {slot}")
            A("buffer_atomic_umax v2, v3, s[8:11], 0 offen")
            A(f"{lab}:")
            return
        A("s_waitcnt vmcnt(0) lgkmcnt(0)")
        A.srd(8, pDBG, 1 << 20)
        A("v_lshlrev_b32 v1, 2, v0")
        A(f"s_lshl_b32 s30, s{sID}, 10")
        A("s_add_u32 s30, s30, 4096")
        A("buffer_store_dword v255, v1, s[8:11], s30 offen")
    def flag_store(self, off, s_idx):
        A = self.A
        lab = A.label("sig")
        A(f"s_cmp_lg_u32 s20, 0")
        A(f"s_cbranch_scc1 {lab}")
        A(f"s_lshl_b32 s{sTMP}, s{s_idx}, 2")
        A(f"s_add_u32 s{sTMP}, s{sTMP}, {off}")
        A(f"v_mov_b32 v249, s{sNONCE}")
        A(f"v_mov_b32 v254, 0")
        A("s_mov_b64 exec, 1")
        A(f"buffer_store_dword v249, v254, {srd(srdF)}, s{sTMP} offen sc1")
        A("s_mov_b64 exec, -1")
        A(f"{lab}:")
    def flag_store_all(self, vm, off, s_idx):
        A = self.A
        A(f"s_lshl_b32 s{sTMP}, s{s_idx}, 2")
        A(f"s_add_u32 s{sTMP}, s{sTMP}, {off}")
        A(f"s_cmp_eq_u32 s20, 0")
        A(f"s_cselect_b32 s{sTMP}, s{sTMP}, 0x40000000")
        A(f"v_mov_b32 v249, s{sNONCE}")
        A(f"v_mov_b32 v254, 0")
        A("s_mov_b64 exec, 1")
        A(f"buffer_store_dword v249, v254, {srd(srdF)}, s{sTMP} offen sc1")
        A("s_mov_b64 exec, -1")
        vm.issue("flag")
    def arrive(self, vm, phase):
        A = self.A
        off = (OFF_FLAG1, OFF_FLAG2, OFF_FLAG1B)[phase]
        A(f"s_lshl_b32 s{sTMP}, s{sID}, 2")
        A(f"s_add_u32 s{sTMP}, s{sTMP}, {off}")
        A(f"s_cmp_eq_u32 s20, 0")
        A(f"s_cselect_b32 s{sTMP}, s{sTMP}, 0x40000000")
        A(f"v_mov_b32 v249, s{sNONCE}")
        A(f"v_and_b32 v254, 7, v0")
        A(f"v_lshlrev_b32 v254, 10, v254")
        A("s_mov_b64 exec, 0xff")
        A(f"buffer_store_dword v249, v254, {srd(srdF)}, s{sTMP} offen sc1")
        A("s_mov_b64 exec, -1")
        vm.issue("flag")
    def cpoll_issue(self, vm, phase):
        A = self.A
        off = (OFF_FLAG1, OFF_FLAG2, OFF_FLAG1B)[phase]
        A(f"v_and_b32 v254, 63, v0")
        A(f"v_lshlrev_b32 v254, 4, v254")
        A(f"s_and_b32 s{sTMP}, s{sID}, 7")
        A(f"s_lshl_b32 s{sTMP}, s{sTMP}, 10")
        A(f"s_add_u32 s{sTMP}, s{sTMP}, {off}")
        A(f"s_cmp_eq_u32 s20, 0")
        A(f"s_cselect_b32 s{sTMP}, s{sTMP}, 0x40000000")
        A(f"buffer_load_dwordx4 v[250:253], v254, {srd(srdF)}, s{sTMP} offen sc1")
        vm.issue("cpoll")
    def cpoll_check(self, vm, phase):
        A = self.A
        off = (OFF_FLAG1, OFF_FLAG2, OFF_FLAG1B)[phase]
        lo, ok = A.label("w"), A.label("wok")
        A(f"s_waitcnt vmcnt({vm.wait({'cpoll'})})")
        A(f"s_cmp_lg_u32 s20, 0")
        A(f"s_cbranch_scc1 {ok}")
        A(f"s_mov_b32 s{sSPIN}, 0")
        A(f"{lo}:")
        for k in range(4): A(f"v_xor_b32 v{250+k}, s{sNONCE}, v{250+k}")
        A(f"v_or3_b32 v250, v250, v251, v252")
        A(f"v_or_b32 v250, v250, v253")
        A(f"v_cmp_ne_u32 vcc, 0, v250")
        A(f"s_cbranch_vccz {ok}")
        A(f"s_add_u32 s{sSPIN}, s{sSPIN}, 1")
        A(f"s_cmp_gt_u32 s{sSPIN}, {SPIN_MAX}")
        A(f"s_cbranch_scc1 {ok}")
        A(f"v_and_b32 v254, 63, v0")
        A(f"v_lshlrev_b32 v254, 4, v254")
        A(f"s_and_b32 s{sTMP}, s{sID}, 7")
        A(f"s_lshl_b32 s{sTMP}, s{sTMP}, 10")
        A(f"s_add_u32 s{sTMP}, s{sTMP}, {off}")
        if self.pp:
            A(f"buffer_load_dwordx4 v[244:247], v254, {srd(srdF)}, s{sTMP} offen sc1")
            A("s_sleep 6")
            A(f"buffer_load_dwordx4 v[250:253], v254, {srd(srdF)}, s{sTMP} offen sc1")
            A("s_waitcnt vmcnt(1)")
            for k in range(4): A(f"v_xor_b32 v{244+k}, s{sNONCE}, v{244+k}")
            A(f"v_or3_b32 v244, v244, v245, v246")
            A(f"v_or_b32 v244, v244, v247")
            A(f"v_cmp_ne_u32 vcc, 0, v244")
            A(f"s_cbranch_vccz {ok}")
            A("s_waitcnt vmcnt(0)")
        else:
            A("s_sleep 2")
            A(f"buffer_load_dwordx4 v[250:253], v254, {srd(srdF)}, s{sTMP} offen sc1")
            A("s_waitcnt vmcnt(0)")
        A(f"s_branch {lo}")
        A(f"{ok}:")
    def flag_store_wave(self, vm, off, s_idx):
        A = self.A
        A(f"s_lshl_b32 s{sTMP}, s{s_idx}, 2")
        A(f"s_add_u32 s{sTMP}, s{sTMP}, {off}")
        A(f"v_mov_b32 v249, s{sNONCE}")
        A(f"v_mov_b32 v254, 0")
        A("s_mov_b64 exec, 1")
        A(f"buffer_store_dword v249, v254, {srd(srdF)}, s{sTMP} offen sc1")
        A("s_mov_b64 exec, -1")
        vm.issue("flag")
    def signal(self, vm, off, s_idx):
        A = self.A
        A("s_waitcnt vmcnt(0)")
        A("s_barrier")
        vm.q = []
        self.flag_store_all(vm, off, s_idx)
    def poll_issue(self, vm, off):
        A = self.A
        A(f"v_and_b32 v254, 63, v0")
        A(f"v_lshlrev_b32 v254, 4, v254")
        A(f"s_mov_b32 s{sTMP}, {off}")
        A(f"buffer_load_dwordx4 v[250:253], v254, {srd(srdF)}, s{sTMP} offen sc1")
        vm.issue("poll")
    def poll_check(self, vm, off):
        A = self.A
        lo, ok = A.label("w"), A.label("wok")
        A(f"s_waitcnt vmcnt({vm.wait({'poll'})})")
        A(f"s_mov_b32 s{sSPIN}, 0")
        A(f"{lo}:")
        for k in range(4): A(f"v_xor_b32 v{250+k}, s{sNONCE}, v{250+k}")
        A(f"v_or3_b32 v250, v250, v251, v252")
        A(f"v_or_b32 v250, v250, v253")
        A(f"v_cmp_ne_u32 vcc, 0, v250")
        A(f"s_cbranch_vccz {ok}")
        A(f"s_add_u32 s{sSPIN}, s{sSPIN}, 1")
        A(f"s_cmp_gt_u32 s{sSPIN}, {SPIN_MAX}")
        A(f"s_cbranch_scc1 {ok}")
        A("s_sleep 4")
        A(f"s_mov_b32 s{sTMP}, {off}")
        A(f"buffer_load_dwordx4 v[250:253], v254, {srd(srdF)}, s{sTMP} offen sc1")
        A("s_waitcnt vmcnt(0)")
        A(f"s_branch {lo}")
        A(f"{ok}:")
    def wait_all(self, vm, off):
        self.poll_issue(vm, off); self.poll_check(vm, off)
    def wait_idx(self, vm, off, v_idx_code):
        A = self.A
        lo, ok = A.label("w"), A.label("wok")
        v_idx_code()
        A(f"s_mov_b32 s{sSPIN}, 0")
        A(f"s_mov_b32 s{sTMP}, {off}")
        A(f"{lo}:")
        A(f"buffer_load_dword v250, v254, {srd(srdF)}, s{sTMP} offen sc1")
        A("s_waitcnt vmcnt(0)")
        A(f"v_cmp_ne_u32 vcc, s{sNONCE}, v250")
        A(f"s_cbranch_vccz {ok}")
        A(f"s_add_u32 s{sSPIN}, s{sSPIN}, 1")
        A(f"s_cmp_gt_u32 s{sSPIN}, {SPIN_MAX}")
        A(f"s_cbranch_scc1 {ok}")
        A("s_sleep 4")
        A(f"s_branch {lo}")
        A(f"{ok}:")
        vm.q = []

    def body(self):
        A = self.A; self.role = "gemm"; self.ns = 0
        vm = VM()
        TA2 = self.ta2
        self.stamp("start")
        X = self.exp.split("+")
        aux.setup(A, pAX, pWR, pWI, pWD, pGW, pWS)
        issued = set()
        def iss(*ks):
            for k in ks:
                f1.issue(A, vm, *k); issued.add(k)
        def mid():
            if "nopf" not in X and "pflate" not in X and "pfmid" not in X and "pf2" not in X and "pf0" not in X and "pf3" not in X and "pf4" not in X: f1.l2_prefetch(A, vm, pWG, pWU)
        if "pf0" in X: f1.l2_prefetch(A, vm, pWG, pWU)
        aux.issue_loads(A, vm, mid, wd=("wdlate" not in X and "wdmid" not in X and "wd2" not in X and "wd3" not in X))
        self.stamp("issued")
        aux.consts_a1(A)
        if self.lean == 0:
            f1.setup(A, sID, pAX, pWG, pWU, pWS)
            aux.setup_out(A, pWS)
            f1.setup_reads(A)
            A(aux.consts_a2_fill())
            aux.phase1_pre(A)
        if "wdmid" in X: aux.issue_wd(A, vm)
        if "pfmid" in X: f1.l2_prefetch(A, vm, pWG, pWU)
        self.stamp("consts")
        aux.a1_core(A, vm)
        self.stamp("core")
        if self.lean >= 1:
            A('s_waitcnt lgkmcnt(0)')
            aux.setup_out(A, pWS)
            aux.phase1_pre(A)
            f1.setup(A, sID, pAX, pWG, pWU, pWS)
            f1.setup_reads(A)
            if self.lean == 1: A(aux.consts_a2_fill())
        if "wdlate" in X: aux.issue_wd(A, vm)
        if "pflate" in X: f1.l2_prefetch(A, vm, pWG, pWU)
        A("s_waitcnt lgkmcnt(0)")
        A(f"s_add_u32 s{sNONCE}, s{sNONCE}, 1")
        if self.elem1st:
            aux.a1_elem(A, vm)
            self.stamp("a1e")
            if self.early0 >= 1: iss(("x", 0), ("w", 0))
            if self.early0 >= 2: iss(("w", 1))
            A(f"s_waitcnt vmcnt({vm.wait({'ws', 'gw', 'wd'})})")
            self.stamp("wswait")
            A("s_barrier")
        else:
            A(f"s_waitcnt vmcnt({vm.wait({'ws', 'gw'} | (set() if ('wdlate' in X or 'wdmid' in X or 'wd2' in X or 'wd3' in X) else {'wd'}))})")
            if "pf2" in X: f1.l2_prefetch(A, vm, pWG, pWU)
            if "wd2" in X: aux.issue_wd(A, vm)
            if self.early0 >= 1: iss(("x", 0), ("w", 0))
            if self.early0 >= 2: iss(("w", 1))
            self.stamp("wswait")
            aux.a1_elem(A, vm)
        self.stamp("a1")
        if "nop1" not in self.exp and "nopreps" not in self.exp:
            late_dma = "pf3" in X or "pf4" in X
            if not late_dma and self.early0 < 1: iss(("x", 0), ("w", 0))
            self.stamp("x0w0")
            aux.wprep(A, vm)
            self.stamp("wp")
            if not late_dma and self.early0 < 2: iss(("w", 1))
            if "wdlate" in X or "wdmid" in X:
                A(f"s_waitcnt vmcnt({vm.wait({'wd'})})")
                A("s_barrier")
            if self.twt < 0: aux.wtprep(A, vm)
            self.stamp("wprep")
            if late_dma:
                if "pf3" in X:
                    iss(("x", 0), ("w", 0)); f1.l2_prefetch(A, vm, pWG, pWU); iss(("w", 1))
                else:
                    f1.l2_prefetch(A, vm, pWG, pWU); iss(("x", 0), ("w", 0), ("w", 1))
            iss(("x", 1), ("w", 2))
            if self.pro >= 1 and f1.NWS == 6: iss(("w", 3))
            if self.pro >= 2: iss(("x", 2))
            if not self.gw: aux.gate(A, vm)

        if 'nop1' in self.exp: A('s_waitcnt vmcnt(0)')
        self.stamp("preps")
        class Hooks(dict):
            def __setitem__(self, k, fn):
                old = self.get(k)
                dict.__setitem__(self, k, fn if old is None else (lambda o=old, n=fn: (o(), n())))
        class Tags(dict):
            def __setitem__(self, k, tags):
                dict.__setitem__(self, k, set(self.get(k, ())) | set(tags))
        after, pause, extra, before = Hooks(), Hooks(), Tags(), Hooks()
        extra[self.tf1] = {'st'}
        after[self.tf1] = lambda: (self.arrive(vm, 0), self.stamp("flag1"), aux.issue_wd(A, vm) if 'wd3' in X else None)
        if self.gw:
            after[0] = lambda: aux.gate_reads(A)
            after[1] = lambda: aux.gate(A, vm, 1)
            after[2] = lambda: aux.gate(A, vm, 2)
        if self.xpf is not None: after[self.xpf] = lambda: f1.x_prefetch(A, vm)
        if self.dyn:
            TT = TA2 - 6
            def t_take():
                A.srd(4, pDBG, 256)
                A(f"s_and_b32 s{sTMP}, s{sID}, 7")
                A(f"s_lshl_b32 s{sTMP}, s{sTMP}, 5")
                A(f"s_cmp_eq_u32 s20, 0")
                A(f"s_cselect_b32 s{sTMP}, s{sTMP}, 0x40000000")
                A(f"v_mov_b32 v248, 1")
                A(f"v_mov_b32 v247, 0")
                A("s_mov_b64 exec, 1")
                A(f"buffer_atomic_add v248, v247, s[4:7], s{sTMP} offen sc0 sc1")
                A("s_mov_b64 exec, -1")
                vm.issue("tick")
            def t_share():
                A(f"s_lshl_b32 s{sTMP}, s20, 6")
                A(f"s_add_u32 s{sTMP}, s{sTMP}, {aux.L_GW}")
                A(f"v_mov_b32 v247, s{sTMP}")
                A("s_mov_b64 exec, 1")
                A("ds_write_b32 v247, v248")
                A("s_mov_b64 exec, -1")
                A("s_waitcnt lgkmcnt(0)")
            def t_read():
                A(f"v_mov_b32 v247, {aux.L_GW}")
                A("ds_read_b32 v248, v247")
            def t_use():
                A(f"v_readfirstlane_b32 s{aux.R.sa2}, v248")
                A(f"s_lshl_b32 s{aux.R.sa2}, s{aux.R.sa2}, 3")
                A(f"s_and_b32 s{sTMP}, s{sID}, 7")
                A(f"s_add_u32 s{aux.R.sa2}, s{aux.R.sa2}, s{sTMP}")
            after[TT] = t_take
            extra[TT+2] = {"tick"}
            before[TT+2] = t_share
            after[TT+2] = t_read
            after[TT+3] = t_use
        else:
            after[0] = lambda: A(f"s_mov_b32 s{aux.R.sa2}, s{sID}")
        def a2_issue():
            A(f"s_or_b32 s{sTMP}, s{sID}, s20")
            A(f"s_cmp_eq_u32 s{sTMP}, 0")
            A(f"s_cselect_b32 s{sTMP}, 0, 0x40000000")
            A(f"v_mov_b32 v249, s{sNONCE}")
            A(f"v_mov_b32 v254, 0")
            A("s_mov_b64 exec, 1")
            A(f"buffer_store_dword v249, v254, {srd(srdF)}, s{sTMP} offen sc1")
            A("s_mov_b64 exec, -1")
            vm.issue("flag")
            self.stamp("dep1")
            aux.a2_loads(A, vm, pWS)
            if not self.w1: f2.setup_w(A, sID, pWS)
        NW_A2 = self.nwa2
        watoms = f2.w_loads(range(NW_A2))
        def a2_run():
            lab, lab2 = A.label("noa2"), A.label("a2d")
            self.stamp("a2 start")
            A(f"s_waitcnt vmcnt({vm.wait({'a2in'})})")
            A(f"s_cmp_ge_u32 s{aux.R.sa2}, {0 if 'noa2' in self.exp else 162}")
            A(f"s_cbranch_scc1 {lab}")
            v2 = VM()
            def st2(T, n):
                if self.stamps and "a2fine" in self.exp:
                    keep = self.A; self.A = T; self.stamp(n); self.A = keep
            aux.a2(A, v2, pWS, waited=True, weave=list(watoms), stamp=st2)
            A(f"s_branch {lab2}")
            A(f"{lab}:")
            for ins in watoms: A(ins)
            A(f"{lab2}:")
            for k in range(len(watoms)): vm.issue(f"W{k//5}")
            vm.mark('zst')
            self.stamp("a2 end")
        weave = None
        if self.w1:
            T0 = self.w1
            after[T0-6] = lambda: self.cpoll_issue(vm, 0)
            before[T0-3] = lambda: self.cpoll_check(vm, 0)
            after[T0-3] = a2_issue
            extra[T0] = {'a2in'}
            def skip(label):
                A(f"s_cmp_ge_u32 s{aux.R.sa2}, 162")
                A(f"s_cbranch_scc1 {label}")
            weave = dict(ts=T0, te=T0+6, bundles=aux.a2_bundles(pWS, T0), skip=skip, mark='zst')
            if T0 + 8 <= 18:
                extra[T0+8] = {'zst', 'gst'}
                after[T0+8] = lambda: self.arrive(vm, 1)
        else:
            after[TA2-1-self.plead] = lambda: self.cpoll_issue(vm, 0)
            before[TA2-1] = lambda: self.cpoll_check(vm, 0)
            after[TA2-1] = a2_issue
            pause[TA2] = a2_run
            if self.twt >= 0:
                if 'wd2' in X or 'wd3' in X: extra[self.twt] = set(extra.get(self.twt, ())) | {'wd'}
                pause[self.twt] = lambda: aux.wtprep(A, vm, tag='wtst')
                extra[self.twt + 3] = {'wtst'}
                after[self.twt + 3] = lambda: self.arrive(vm, 2)
                after[TA2-1] = lambda: self.cpoll_issue(vm, 2)
                before[TA2] = lambda: self.cpoll_check(vm, 2)
            extra[TA2+self.d2] = {'zst', 'gst'}
            after[TA2+self.d2] = lambda: self.arrive(vm, 1)
        if self.f3now and 0 <= self.dep2at < 9: after[self.p2st] = lambda: self.cpoll_issue(vm, 1)
        if self.dep2at < 0:
            after[16] = lambda: self.cpoll_issue(vm, 1)
            before[18] = lambda: self.cpoll_check(vm, 1)
        if "fine" in self.exp:
            for t in range(0, 19, 2):
                def mk(t, old):
                    def f():
                        if old: old()
                        self.stamp(f"bar{t}")
                    return f
                after[t] = (lambda t=t: self.stamp(f"bar{t}"))
        fl = aux.consts_a2_fill() if self.lean == 2 else []
        f1.main(A, vm, issued, fill=fl, after_barrier=after, pause=pause, late=[k for k in ([("w", 3), ("x", 2), ("w", 4), ("w", 5)] if f1.NWS == 6 else [("w", 3), ("x", 3), ("w", 4)]) if k not in issued], extra_need=extra, before_barrier=before, weave=weave)
        if self.w1 and self.w1 + 8 > 18:
            A(f"s_waitcnt vmcnt({vm.wait({'zst', 'gst'})})")
            A("s_barrier")
            self.arrive(vm, 1)
        self.stamp("f1 loop end")
        if self.w1: f2.setup_w(A, sID, pWS)
        f2.setup(A, sID, pWS, pOUT)
        if self.dep2at < 0:
            self.stamp("dep2")
            aux.a3_loads(A, vm, pWS)
        nw0 = 0 if self.w1 else self.nwa2
        atoms = [(ins, f"W{nw0 + k//5}") for k, ins in enumerate(f2.w_loads(range(nw0, 10)))]
        def put(n):
            for _ in range(n):
                if atoms:
                    ins, tag = atoms.pop(0); A(ins); vm.issue(tag)
        def btw(k):
            if self.dep2at == 9:
                if k == 3: self.cpoll_issue(vm, 1)
                if self.w1: put(self.wepi)
                return
            if (self.dep2at < 0 or k > self.dep2at) and not self.f3now: put(self.wput)
            if self.dep2at >= 0:
                if k == max(0, self.dep2at - 2) and not self.f3now: self.cpoll_issue(vm, 1)
                if k == self.dep2at:
                    self.cpoll_check(vm, 1)
                    A("s_barrier")
                    self.stamp("dep2")
                    aux.a3_loads(A, vm, pWS)
        f1.epilogue(A, vm, pWS, sc=self.hsc, between=btw)
        self.stamp("f1 epi")
        A(f"s_lshl_b32 s{sTMP}, s{f1.R.smt}, 1")
        A(f"s_lshr_b32 s99, s20, 1")
        A(f"s_add_u32 s{sTMP}, s{sTMP}, s99")
        A(f"s_lshl_b32 s{sTMP}, s{sTMP}, 5")
        A(f"s_lshl_b32 s99, s{f1.R.sft}, 1")
        A(f"s_add_u32 s{sTMP}, s{sTMP}, s99")
        A(f"s_and_b32 s99, s20, 1")
        A(f"s_add_u32 s99, s{sTMP}, s99")
        if self.dep2at == 9:
            aux.a3_pre(A)
            f2.setup2(A, pWS, pOUT)
            if not self.zfirst:
                A(f"s_waitcnt vmcnt({vm.wait({'hst'})})")
                self.flag_store_wave(vm, OFF_FLAG3, 99)
            self.cpoll_check(vm, 1)
            A("s_barrier")
            self.stamp("dep2")
            aux.a3_loads(A, vm, pWS)
            if self.zfirst:
                put(self.wput*2)
                A(f"s_waitcnt vmcnt({vm.wait({'hst', 'zl'})})")
                self.flag_store_wave(vm, OFF_FLAG3, 99)
                put(self.wput)
            else:
                put(self.wput*3)
        def poll3_issue():
            A(f"v_and_b32 v254, 31, v0")
            A(f"s_lshl_b32 s{sTMP}, s{f2.R.sT}, 5")
            A(f"v_add_u32 v254, s{sTMP}, v254")
            A(f"v_lshlrev_b32 v254, 2, v254")
            A(f"s_mov_b32 s{sTMP}, {OFF_FLAG3}")
            A(f"buffer_load_dword v250, v254, {srd(srdF)}, s{sTMP} offen sc1")
            vm.issue("poll3")
        if self.f3now and self.dep2at != 9:
            aux.a3_pre(A)
            f2.setup2(A, pWS, pOUT)
            A(f"s_waitcnt vmcnt({vm.wait({'hst'})})")
            self.flag_store_wave(vm, OFF_FLAG3, 99)
            put(self.wput*3)
        def extra(rnd):
            if rnd == self.p3r: poll3_issue()
            if rnd > 0: put(self.wputr)
            if rnd == 1 and self.dep2at != 9 and not self.f3now:
                A(f"s_waitcnt vmcnt({vm.wait({'hst'})})")
                self.flag_store_wave(vm, OFF_FLAG3, 99)
        if self.dep2at != 9 and not self.f3now: aux.a3_pre(A)
        aux.a3_elem(A, vm, extra)
        put(100)
        A("s_barrier")
        self.stamp("a3 elem")
        if self.dep2at != 9 and not self.f3now: f2.setup2(A, pWS, pOUT)
        def check_one(tag, off):
            lo, ok = A.label("w"), A.label("wok")
            A(f"s_waitcnt vmcnt({vm.wait({tag})})")
            A(f"s_mov_b32 s{sSPIN}, 0")
            A(f"{lo}:")
            A(f"v_cmp_ne_u32 vcc, s{sNONCE}, v250")
            A(f"s_cbranch_vccz {ok}")
            A(f"s_add_u32 s{sSPIN}, s{sSPIN}, 1")
            A(f"s_cmp_gt_u32 s{sSPIN}, {SPIN_MAX}")
            A(f"s_cbranch_scc1 {ok}")
            A(f"s_mov_b32 s{sTMP}, {off}")
            if self.pp:
                A(f"buffer_load_dword v251, v254, {srd(srdF)}, s{sTMP} offen sc1")
                A("s_sleep 6")
                A(f"buffer_load_dword v250, v254, {srd(srdF)}, s{sTMP} offen sc1")
                A("s_waitcnt vmcnt(1)")
                A(f"v_cmp_ne_u32 vcc, s{sNONCE}, v251")
                A(f"s_cbranch_vccz {ok}")
                A("s_waitcnt vmcnt(0)")
            else:
                A("s_sleep 4")
                A(f"buffer_load_dword v250, v254, {srd(srdF)}, s{sTMP} offen sc1")
                A("s_waitcnt vmcnt(0)")
            A(f"s_branch {lo}")
            A(f"{ok}:")
        npre = self.npre
        if self.early3:
            if self.p3r < 0: poll3_issue()
            def mid():
                check_one("poll3", OFF_FLAG3)
                for i in range(npre):
                    A(f2.h_loads(i)); vm.issue(f"h{i}", 4)
            aux.a3_core(A, vm, pWS, mid=mid)
        else:
            aux.a3_core(A, vm, pWS, mid=(poll3_issue if self.p3r < 0 else None))
        wlate = [(ins, f"W{10 + k//5}") for k, ins in enumerate(f2.w_loads((10, 11)))]
        if not self.wl2:
            for ins, tag in wlate:
                A(ins); vm.issue(tag)
            wlate = []
        self.stamp("a3 core")
        if not self.early3:
            check_one("poll3", OFF_FLAG3)
            npre = 0
        self.stamp("dep3")
        def flag4():
            A(f"s_waitcnt vmcnt({vm.wait({'gast'})})")
            A(f"s_lshl_b32 s99, s{aux.R.srg}, 2")
            A(f"s_add_u32 s99, s99, s20")
            self.flag_store_wave(vm, OFF_FLAG4, 99)
        def code4():
            A(f"v_and_b32 v254, 63, v0")
            A(f"s_and_b32 s{sTMP}, s{f2.R.sT}, 15")
            A(f"s_lshl_b32 s{sTMP}, s{sTMP}, 6")
            A(f"v_add_u32 v254, s{sTMP}, v254")
            A(f"v_lshlrev_b32 v254, 2, v254")
        def h_issue4():
            code4()
            A(f"s_mov_b32 s{sTMP}, {OFF_FLAG4}")
            A(f"buffer_load_dword v250, v254, {srd(srdF)}, s{sTMP} offen sc1")
            vm.issue("poll4")
        def h_check4():
            check_one("poll4", OFF_FLAG4)
            f2.final_loads(A, vm)
        hk = {self.f4s[0]: flag4, self.f4s[1]: h_issue4, self.f4s[2]: h_check4}
        if "f2fine" in self.exp:
            for i_ in (0, 1, 2, 3, 4, 6, 8, 10, 11):
                hk[i_] = (lambda o=hk.get(i_), i_=i_: ((o() if o else None), self.stamp(f"f2s{i_}")))
        f2.main(A, vm, hooks=hk, pre_issued=npre, extra=wlate)
        self.stamp("f2 loop end")
        f2.epilogue(A, vm)
        self.stamp("end")
        self.dump_stamps()
        A("s_endpgm")

    def build(self):
        A = self.A
        A(f"s_cmp_ge_u32 s2, 256")
        A(f"s_cbranch_scc1 K_exit")
        A(f"s_load_dwordx16 s[68:83], s[0:1], 0")
        A(f"s_load_dwordx4 s[84:87], s[0:1], 64")
        A(f"s_load_dwordx2 s[88:89], s[0:1], 80")
        if self.cpfirst:
            if self.codepf:
                A("s_getpc_b64 s[4:5]")
                A("K_pc:")
                A("s_and_b32 s5, s5, 0xffff")
                A("s_mov_b32 s6, K_exit-K_pc")
                A("s_mov_b32 s7, 0x20000")
                A("v_lshlrev_b32 v4, 7, v0")
                for k in range(self.codepf):
                    A(f"s_mov_b32 s28, {32768*k}")
                    A(f"buffer_load_dword v229, v4, s[4:7], s28 offen")

        if self.stamps: A("v_mov_b32 v255, 0")
        A(f"s_mov_b32 s{sID}, s2")
        if self.rgmap:
            A(f"s_and_b32 s3, s2, 7")
            A(f"s_lshl_b32 s3, s3, 1")
            A(f"s_bfe_u32 s28, s2, {3 | (1 << 16)}")
            A(f"s_add_u32 s3, s3, s28")
            A(f"s_and_b32 s28, s2, 0xf0")
            A(f"s_add_u32 s3, s3, s28")
        else:
            A(f"s_mov_b32 s3, s2")
        A(f"v_lshrrev_b32 v4, 6, v0")
        A("s_nop 0")
        A(f"v_readfirstlane_b32 s20, v4")
        A("s_waitcnt lgkmcnt(0)")
        if self.wsbase:
            A(f"s_add_u32 s{pWS}, s{pWS}, {hex(self.wsbase)}")
            A(f"s_addc_u32 s{pWS+1}, s{pWS+1}, 0")
        A(f"s_load_dword s{sNONCE}, s[{pWS}:{pWS+1}], {OFF_EPOCH}")
        if not self.cpfirst:
            if self.codepf:
                A("s_getpc_b64 s[4:5]")
                A("K_pc:")
                A("s_and_b32 s5, s5, 0xffff")
                A("s_mov_b32 s6, K_exit-K_pc")
                A("s_mov_b32 s7, 0x20000")
                A("v_lshlrev_b32 v4, 7, v0")
                for k in range(self.codepf):
                    A(f"s_mov_b32 s28, {32768*k}")
                    A(f"buffer_load_dword v229, v4, s[4:7], s28 offen")
        if self.tlbpf:
            A.srd(4, pWS, 28 << 20)
            A("v_and_b32 v4, 63, v0")
            A("v_lshlrev_b32 v4, 19, v4")
            A("v_add_u32 v4, 0x7ff80, v4")
            A(f"buffer_load_dword v229, v4, s[4:7], 0 offen")
            A.srd(4, pOUT, 2048*640*2)
            A("v_and_b32 v4, 63, v0")
            A("v_lshlrev_b32 v4, 16, v4")
            A(f"buffer_load_dword v229, v4, s[4:7], 0 offen")
        A.srd(srdF, pWS, SZ_FLAGS)
        self.body()
        A("K_exit:")
        A("s_endpgm")
        if os.environ.get('NOST'):
            out = []
            for l in A.l:
                if 'buffer_store' in l and ('s[36:39]' in l or 's[48:51]' in l or 's[56:59]' in l): l = '  s_nop 0'
                out.append(l)
            A.l = out
        lines, n = hazard.fix(A.l)
        return lines

HEADER = open(os.path.join(os.path.dirname(os.path.abspath(__file__)), "header.txt")).read()
def full_source(**kw):
    g = Gen(**kw)
    body = "\n".join(g.build())
    src = HEADER + f"""; @launch grid=(256,1,1) block=(256,1,1) lds=163840
;
; One persistent launch, one workgroup (4 waves, 512 registers each, 160 KB LDS) per CU.  Generated by my own script.
;   out = g * irfft2(rfft2(x) * W) + (1 - g) * (silu(x Wg) * (x Wu)) Wd ,  g = sigmoid(x . gate_w)
; Every workgroup runs, in this order:
;   phase 1  row FFT of 4 row pairs (s, s+1024): 320-point complex FFT as two MFMA steps (32 x 10), real-FFT unmixing and the
;            radix-2 step of the column FFT -> X1 ; transposition of the filter -> WF ; Wd in MFMA fragment order -> WT ; gate
;   F1       128 x 96 tile of silu(x Wg) * (x Wu), operands through LDS rings filled by LDS-DMA -> H (fragment order)
;   A2       (inside F1, workgroups 0..161) four 1024-point column FFTs, filter, inverse FFTs, all as 32x32 MFMA steps -> Z
;   A3       inverse of phase 1 for the same row pairs, times g -> GA
;   F2       64 x 80 tile of H Wd, K split over the waves, Wd fragments resident in AGPRs, combined with GA -> out
; Hand-offs between workgroups go through d_ws with write-through (sc1) stores, sc1 loads and flag words tagged with
; (epoch word found in d_ws) + 1; every spin is bounded.
.amdgcn_target "amdgcn-amd-amdhsa--gfx950"
.text
.globl {NAME}
.p2align 8
.type {NAME},@function
{NAME}:
{body}
.section .rodata,"a"
.p2align 6
.amdhsa_kernel {NAME}
  .amdhsa_next_free_vgpr 512
  .amdhsa_next_free_sgpr 102
  .amdhsa_accum_offset 256
  .amdhsa_group_segment_fixed_size 0
  .amdhsa_kernarg_size 88
  .amdhsa_user_sgpr_count 2
  .amdhsa_user_sgpr_kernarg_segment_ptr 1
  .amdhsa_system_sgpr_workgroup_id_x 1
.end_amdhsa_kernel
"""
    return src, g
if __name__ == "__main__":
    kw = {}
    for o in sys.argv[2:]:
        k, v_ = o.split("="); kw[k] = eval(v_)
    src, g = full_source(**kw)
    out = sys.argv[1] if len(sys.argv) > 1 else "gated_mix__spectral_gfnet__swiglu_ffn__prompt.s"
    open(out, "w").write(src)
    print("wrote", out, len(src), "bytes")
```

```python
import sys, os
sys.path.insert(0, os.path.dirname(os.path.abspath(__file__)))
from asmlib import *
from layout import *
import f1, f2, g2, aux, hazard

NAME = "gated_mix__spectral_gfnet__swiglu_ffn__prompt_kernel"
pAX, pWR, pWI, pBX, pWG, pWU, pWD, pGW, pOUT, pDBG, pWS = 68, 70, 72, 74, 76, 78, 80, 82, 84, 86, 88
sNONCE, srdF, sSPIN, sTMP, sID = 90, 92, 96, 97, 98
srdD = 0
SPIN_MAX = 20000
import os
if os.environ.get('NOSPIN'): SPIN_MAX = 0

class Gen:
    def __init__(self, stamps=False, order="AB", gemm_first=True, exp="", ta2=11, tf1=-1, d2=2, nwa2=7, early3=True, npre=3, dep2at=9, wput=2, wputr=4, codepf=1, tlbpf=0, twt=-1, wsbase=0, map48=True, ahead=4, pro=2, xpf=None, outsc='', dbgsel=None, spread=True, dyn=False, lean=0, w1=0, wepi=3, pk2=True, cpfirst=True, zfirst=False, ovl=True, plead=2, p3r=-1, rgmap=True, gw=False, early0=1, hsc=' sc1', f3now=False, p2st=17, pp=False):
        self.pp = pp
        self.p2st = p2st
        self.f3now = f3now
        self.hsc = hsc
        self.early0 = early0
        self.gw = gw
        self.rgmap = rgmap
        self.plead = plead; self.p3r = p3r
        f2.OVL = ovl
        self.zfirst = zfirst
        self.cpfirst = cpfirst
        aux.PK2 = pk2
        self.wepi = wepi
        self.w1 = w1
        if w1:
            f1.R.opF = 'a'; f1.R.opA = (0, 20); f1.R.opB = (12, 32)
        else:
            f1.R.opF = 'v'; f1.R.opA = (16, 36); f1.R.opB = (28, 48)
        self.lean = lean
        self.dyn = dyn and stamps != 'dbg'
        f1.SPREAD = spread
        f2.OUTSC = outsc
        self.xpf = xpf
        self.pro = pro
        f2.MAP48 = map48; f2.AHEAD = ahead
        self.wsbase = wsbase
        self.twt = twt
        self.tlbpf = tlbpf
        self.codepf = codepf
        self.wput = wput; self.wputr = wputr
        self.dep2at = dep2at
        self.early3 = early3; self.npre = npre
        self.exp = exp; self.ta2 = ta2; self.tf1 = tf1; self.d2 = d2; self.nwa2 = nwa2
        self.A = Asm("K"); self.stamps = stamps; self.ns = 0; self.names = {}
        self.gemm_first = gemm_first
        self.dbg_sel = {"gemm": [(0,"start",1),(1,"consts",0),(2,"core",0),(3,"a1",0),(4,"preps",0),(5,"flag1",0),(6,"dep1",0),(7,"a2 start",0),(8,"a2 end",0),
                                 (9,"f1 loop end",0),(10,"f1 epi",0),(11,"dep2",0),(12,"a3 elem",0),(13,"a3 core",0),(14,"f2 loop end",0),(15,"end",0)]}
        if dbgsel: self.dbg_sel = {'gemm': [(i, n, 1 if i == 0 else 0) for i, n in enumerate(dbgsel)]}
        g2.ORDER = order; g2.STG = g2.stages()
    def stamp(self, name=None):
        if not self.stamps: return
        if self.stamps == "min" and name not in ("start", "end"): return
        A = self.A
        A("s_memrealtime s[100:101]")
        A("s_waitcnt lgkmcnt(0)")
        A(f"v_writelane_b32 v255, s100, {self.ns}")
        self.names.setdefault(self.role, []).append((self.ns, name))
        self.ns += 1
    def dump_stamps(self):
        if not self.stamps: return
        A = self.A
        if self.stamps == "dbg":
            sel = self.dbg_sel[self.role]
            A("s_waitcnt vmcnt(0) lgkmcnt(0)")
            A.srd(8, pDBG, 256)
            lab = A.label("nd")
            A("s_cmp_lg_u32 s20, 0")
            A(f"s_cbranch_scc1 {lab}")
            names = {nm: idx for idx, nm in self.names[self.role]}
            A("v_mov_b32 v2, 0")
            A("v_mov_b32 v3, 0x40000000")
            for slot, nm, inv in sel:
                A(f"v_readlane_b32 s30, v255, {names[nm]}")
                if inv: A("s_not_b32 s30, s30")
                A(f"s_mov_b32 s31, {4*slot}")
                A(f"v_writelane_b32 v2, s30, {slot}")
                A(f"v_writelane_b32 v3, s31, {slot}")
            A("buffer_atomic_umax v2, v3, s[8:11], 0 offen")
            A(f"{lab}:")
            return
        A("s_waitcnt vmcnt(0) lgkmcnt(0)")
        A.srd(8, pDBG, 1 << 20)
        A("v_lshlrev_b32 v1, 2, v0")
        A(f"s_lshl_b32 s30, s{sID}, 10")
        A("s_add_u32 s30, s30, 4096")
        A("buffer_store_dword v255, v1, s[8:11], s30 offen")
    def flag_store(self, off, s_idx):
        A = self.A
        lab = A.label("sig")
        A(f"s_cmp_lg_u32 s20, 0")
        A(f"s_cbranch_scc1 {lab}")
        A(f"s_lshl_b32 s{sTMP}, s{s_idx}, 2")
        A(f"s_add_u32 s{sTMP}, s{sTMP}, {off}")
        A(f"v_mov_b32 v249, s{sNONCE}")
        A(f"v_mov_b32 v254, 0")
        A("s_mov_b64 exec, 1")
        A(f"buffer_store_dword v249, v254, {srd(srdF)}, s{sTMP} offen sc1")
        A("s_mov_b64 exec, -1")
        A(f"{lab}:")
    def flag_store_all(self, vm, off, s_idx):
        A = self.A
        A(f"s_lshl_b32 s{sTMP}, s{s_idx}, 2")
        A(f"s_add_u32 s{sTMP}, s{sTMP}, {off}")
        A(f"s_cmp_eq_u32 s20, 0")
        A(f"s_cselect_b32 s{sTMP}, s{sTMP}, 0x40000000")
        A(f"v_mov_b32 v249, s{sNONCE}")
        A(f"v_mov_b32 v254, 0")
        A("s_mov_b64 exec, 1")
        A(f"buffer_store_dword v249, v254, {srd(srdF)}, s{sTMP} offen sc1")
        A("s_mov_b64 exec, -1")
        vm.issue("flag")
    def arrive(self, vm, phase):
        A = self.A
        off = (OFF_FLAG1, OFF_FLAG2, OFF_FLAG1B)[phase]
        A(f"s_lshl_b32 s{sTMP}, s{sID}, 2")
        A(f"s_add_u32 s{sTMP}, s{sTMP}, {off}")
        A(f"s_cmp_eq_u32 s20, 0")
        A(f"s_cselect_b32 s{sTMP}, s{sTMP}, 0x40000000")
        A(f"v_mov_b32 v249, s{sNONCE}")
        A(f"v_and_b32 v254, 7, v0")
        A(f"v_lshlrev_b32 v254, 10, v254")
        A("s_mov_b64 exec, 0xff")
        A(f"buffer_store_dword v249, v254, {srd(srdF)}, s{sTMP} offen sc1")
        A("s_mov_b64 exec, -1")
        vm.issue("flag")
    def cpoll_issue(self, vm, phase):
        A = self.A
        off = (OFF_FLAG1, OFF_FLAG2, OFF_FLAG1B)[phase]
        A(f"v_and_b32 v254, 63, v0")
        A(f"v_lshlrev_b32 v254, 4, v254")
        A(f"s_and_b32 s{sTMP}, s{sID}, 7")
        A(f"s_lshl_b32 s{sTMP}, s{sTMP}, 10")
        A(f"s_add_u32 s{sTMP}, s{sTMP}, {off}")
        A(f"s_cmp_eq_u32 s20, 0")
        A(f"s_cselect_b32 s{sTMP}, s{sTMP}, 0x40000000")
        A(f"buffer_load_dwordx4 v[250:253], v254, {srd(srdF)}, s{sTMP} offen sc1")
        vm.issue("cpoll")
    def cpoll_check(self, vm, phase):
        A = self.A
        off = (OFF_FLAG1, OFF_FLAG2, OFF_FLAG1B)[phase]
        lo, ok = A.label("w"), A.label("wok")
        A(f"s_waitcnt vmcnt({vm.wait({'cpoll'})})")
        A(f"s_cmp_lg_u32 s20, 0")
        A(f"s_cbranch_scc1 {ok}")
        A(f"s_mov_b32 s{sSPIN}, 0")
        A(f"{lo}:")
        for k in range(4): A(f"v_xor_b32 v{250+k}, s{sNONCE}, v{250+k}")
        A(f"v_or3_b32 v250, v250, v251, v252")
        A(f"v_or_b32 v250, v250, v253")
        A(f"v_cmp_ne_u32 vcc, 0, v250")
        A(f"s_cbranch_vccz {ok}")
        A(f"s_add_u32 s{sSPIN}, s{sSPIN}, 1")
        A(f"s_cmp_gt_u32 s{sSPIN}, {SPIN_MAX}")
        A(f"s_cbranch_scc1 {ok}")
        A(f"v_and_b32 v254, 63, v0")
        A(f"v_lshlrev_b32 v254, 4, v254")
        A(f"s_and_b32 s{sTMP}, s{sID}, 7")
        A(f"s_lshl_b32 s{sTMP}, s{sTMP}, 10")
        A(f"s_add_u32 s{sTMP}, s{sTMP}, {off}")
        if self.pp:
            A(f"buffer_load_dwordx4 v[244:247], v254, {srd(srdF)}, s{sTMP} offen sc1")
            A("s_sleep 6")
            A(f"buffer_load_dwordx4 v[250:253], v254, {srd(srdF)}, s{sTMP} offen sc1")
            A("s_waitcnt vmcnt(1)")
            for k in range(4): A(f"v_xor_b32 v{244+k}, s{sNONCE}, v{244+k}")
            A(f"v_or3_b32 v244, v244, v245, v246")
            A(f"v_or_b32 v244, v244, v247")
            A(f"v_cmp_ne_u32 vcc, 0, v244")
            A(f"s_cbranch_vccz {ok}")
            A("s_waitcnt vmcnt(0)")
        else:
            A("s_sleep 2")
            A(f"buffer_load_dwordx4 v[250:253], v254, {srd(srdF)}, s{sTMP} offen sc1")
            A("s_waitcnt vmcnt(0)")
        A(f"s_branch {lo}")
        A(f"{ok}:")
    def flag_store_wave(self, vm, off, s_idx):
        A = self.A
        A(f"s_lshl_b32 s{sTMP}, s{s_idx}, 2")
        A(f"s_add_u32 s{sTMP}, s{sTMP}, {off}")
        A(f"v_mov_b32 v249, s{sNONCE}")
        A(f"v_mov_b32 v254, 0")
        A("s_mov_b64 exec, 1")
        A(f"buffer_store_dword v249, v254, {srd(srdF)}, s{sTMP} offen sc1")
        A("s_mov_b64 exec, -1")
        vm.issue("flag")
    def signal(self, vm, off, s_idx):
        A = self.A
        A("s_waitcnt vmcnt(0)")
        A("s_barrier")
        vm.q = []
        self.flag_store_all(vm, off, s_idx)
    def poll_issue(self, vm, off):
        A = self.A
        A(f"v_and_b32 v254, 63, v0")
        A(f"v_lshlrev_b32 v254, 4, v254")
        A(f"s_mov_b32 s{sTMP}, {off}")
        A(f"buffer_load_dwordx4 v[250:253], v254, {srd(srdF)}, s{sTMP} offen sc1")
        vm.issue("poll")
    def poll_check(self, vm, off):
        A = self.A
        lo, ok = A.label("w"), A.label("wok")
        A(f"s_waitcnt vmcnt({vm.wait({'poll'})})")
        A(f"s_mov_b32 s{sSPIN}, 0")
        A(f"{lo}:")
        for k in range(4): A(f"v_xor_b32 v{250+k}, s{sNONCE}, v{250+k}")
        A(f"v_or3_b32 v250, v250, v251, v252")
        A(f"v_or_b32 v250, v250, v253")
        A(f"v_cmp_ne_u32 vcc, 0, v250")
        A(f"s_cbranch_vccz {ok}")
        A(f"s_add_u32 s{sSPIN}, s{sSPIN}, 1")
        A(f"s_cmp_gt_u32 s{sSPIN}, {SPIN_MAX}")
        A(f"s_cbranch_scc1 {ok}")
        A("s_sleep 4")
        A(f"s_mov_b32 s{sTMP}, {off}")
        A(f"buffer_load_dwordx4 v[250:253], v254, {srd(srdF)}, s{sTMP} offen sc1")
        A("s_waitcnt vmcnt(0)")
        A(f"s_branch {lo}")
        A(f"{ok}:")
    def wait_all(self, vm, off):
        self.poll_issue(vm, off); self.poll_check(vm, off)
    def wait_idx(self, vm, off, v_idx_code):
        A = self.A
        lo, ok = A.label("w"), A.label("wok")
        v_idx_code()
        A(f"s_mov_b32 s{sSPIN}, 0")
        A(f"s_mov_b32 s{sTMP}, {off}")
        A(f"{lo}:")
        A(f"buffer_load_dword v250, v254, {srd(srdF)}, s{sTMP} offen sc1")
        A("s_waitcnt vmcnt(0)")
        A(f"v_cmp_ne_u32 vcc, s{sNONCE}, v250")
        A(f"s_cbranch_vccz {ok}")
        A(f"s_add_u32 s{sSPIN}, s{sSPIN}, 1")
        A(f"s_cmp_gt_u32 s{sSPIN}, {SPIN_MAX}")
        A(f"s_cbranch_scc1 {ok}")
        A("s_sleep 4")
        A(f"s_branch {lo}")
        A(f"{ok}:")
        vm.q = []

    def body(self):
        A = self.A; self.role = "gemm"; self.ns = 0
        vm = VM()
        TA2 = self.ta2
        self.stamp("start")
        X = self.exp.split("+")
        aux.setup(A, pAX, pWR, pWI, pWD, pGW, pWS)
        issued = set()
        def iss(*ks):
            for k in ks:
                f1.issue(A, vm, *k); issued.add(k)
        def mid():
            if "nopf" not in X and "pflate" not in X and "pfmid" not in X and "pf2" not in X and "pf0" not in X and "pf3" not in X and "pf4" not in X: f1.l2_prefetch(A, vm, pWG, pWU)
        if "pf0" in X: f1.l2_prefetch(A, vm, pWG, pWU)
        aux.issue_loads(A, vm, mid, wd=("wdlate" not in X and "wdmid" not in X and "wd2" not in X and "wd3" not in X))
        self.stamp("issued")
        aux.consts_a1(A)
        if self.lean == 0:
            f1.setup(A, sID, pAX, pWG, pWU, pWS)
            aux.setup_out(A, pWS)
            f1.setup_reads(A)
            A(aux.consts_a2_fill())
            aux.phase1_pre(A)
        if "wdmid" in X: aux.issue_wd(A, vm)
        if "pfmid" in X: f1.l2_prefetch(A, vm, pWG, pWU)
        self.stamp("consts")
        aux.a1_core(A, vm)
        self.stamp("core")
        if self.lean >= 1:
            A('s_waitcnt lgkmcnt(0)')
            aux.setup_out(A, pWS)
            aux.phase1_pre(A)
            f1.setup(A, sID, pAX, pWG, pWU, pWS)
            f1.setup_reads(A)
            if self.lean == 1: A(aux.consts_a2_fill())
        if "wdlate" in X: aux.issue_wd(A, vm)
        if "pflate" in X: f1.l2_prefetch(A, vm, pWG, pWU)
        A("s_waitcnt lgkmcnt(0)")
        A(f"s_add_u32 s{sNONCE}, s{sNONCE}, 1")
        A(f"s_waitcnt vmcnt({vm.wait({'ws', 'gw'} | (set() if ('wdlate' in X or 'wdmid' in X or 'wd2' in X or 'wd3' in X) else {'wd'}))})")
        if "pf2" in X: f1.l2_prefetch(A, vm, pWG, pWU)
        if "wd2" in X: aux.issue_wd(A, vm)
        if self.early0 >= 1: iss(("x", 0), ("w", 0))
        if self.early0 >= 2: iss(("w", 1))
        self.stamp("wswait")
        aux.a1_elem(A, vm)
        self.stamp("a1")
        if "nop1" not in self.exp and "nopreps" not in self.exp:
            late_dma = "pf3" in X or "pf4" in X
            if not late_dma and self.early0 < 1: iss(("x", 0), ("w", 0))
            self.stamp("x0w0")
            aux.wprep(A, vm)
            self.stamp("wp")
            if not late_dma and self.early0 < 2: iss(("w", 1))
            if "wdlate" in X or "wdmid" in X:
                A(f"s_waitcnt vmcnt({vm.wait({'wd'})})")
                A("s_barrier")
            if self.twt < 0: aux.wtprep(A, vm)
            self.stamp("wprep")
            if late_dma:
                if "pf3" in X:
                    iss(("x", 0), ("w", 0)); f1.l2_prefetch(A, vm, pWG, pWU); iss(("w", 1))
                else:
                    f1.l2_prefetch(A, vm, pWG, pWU); iss(("x", 0), ("w", 0), ("w", 1))
            iss(("x", 1), ("w", 2))
            if self.pro >= 1 and f1.NWS == 6: iss(("w", 3))
            if self.pro >= 2: iss(("x", 2))
            if not self.gw: aux.gate(A, vm)

        if 'nop1' in self.exp: A('s_waitcnt vmcnt(0)')
        self.stamp("preps")
        class Hooks(dict):
            def __setitem__(self, k, fn):
                old = self.get(k)
                dict.__setitem__(self, k, fn if old is None else (lambda o=old, n=fn: (o(), n())))
        class Tags(dict):
            def __setitem__(self, k, tags):
                dict.__setitem__(self, k, set(self.get(k, ())) | set(tags))
        after, pause, extra, before = Hooks(), Hooks(), Tags(), Hooks()
        extra[self.tf1] = {'st'}
        after[self.tf1] = lambda: (self.arrive(vm, 0), self.stamp("flag1"), aux.issue_wd(A, vm) if 'wd3' in X else None)
        if self.gw:
            after[0] = lambda: aux.gate_reads(A)
            after[1] = lambda: aux.gate(A, vm, 1)
            after[2] = lambda: aux.gate(A, vm, 2)
        if self.xpf is not None: after[self.xpf] = lambda: f1.x_prefetch(A, vm)
        if self.dyn:
            TT = TA2 - 6
            def t_take():
                A.srd(4, pDBG, 256)
                A(f"s_and_b32 s{sTMP}, s{sID}, 7")
                A(f"s_lshl_b32 s{sTMP}, s{sTMP}, 5")
                A(f"s_cmp_eq_u32 s20, 0")
                A(f"s_cselect_b32 s{sTMP}, s{sTMP}, 0x40000000")
                A(f"v_mov_b32 v248, 1")
                A(f"v_mov_b32 v247, 0")
                A("s_mov_b64 exec, 1")
                A(f"buffer_atomic_add v248, v247, s[4:7], s{sTMP} offen sc0 sc1")
                A("s_mov_b64 exec, -1")
                vm.issue("tick")
            def t_share():
                A(f"s_lshl_b32 s{sTMP}, s20, 6")
                A(f"s_add_u32 s{sTMP}, s{sTMP}, {aux.L_GW}")
                A(f"v_mov_b32 v247, s{sTMP}")
                A("s_mov_b64 exec, 1")
                A("ds_write_b32 v247, v248")
                A("s_mov_b64 exec, -1")
                A("s_waitcnt lgkmcnt(0)")
            def t_read():
                A(f"v_mov_b32 v247, {aux.L_GW}")
                A("ds_read_b32 v248, v247")
            def t_use():
                A(f"v_readfirstlane_b32 s{aux.R.sa2}, v248")
                A(f"s_lshl_b32 s{aux.R.sa2}, s{aux.R.sa2}, 3")
                A(f"s_and_b32 s{sTMP}, s{sID}, 7")
                A(f"s_add_u32 s{aux.R.sa2}, s{aux.R.sa2}, s{sTMP}")
            after[TT] = t_take
            extra[TT+2] = {"tick"}
            before[TT+2] = t_share
            after[TT+2] = t_read
            after[TT+3] = t_use
        else:
            after[0] = lambda: A(f"s_mov_b32 s{aux.R.sa2}, s{sID}")
        def a2_issue():
            A(f"s_or_b32 s{sTMP}, s{sID}, s20")
            A(f"s_cmp_eq_u32 s{sTMP}, 0")
            A(f"s_cselect_b32 s{sTMP}, 0, 0x40000000")
            A(f"v_mov_b32 v249, s{sNONCE}")
            A(f"v_mov_b32 v254, 0")
            A("s_mov_b64 exec, 1")
            A(f"buffer_store_dword v249, v254, {srd(srdF)}, s{sTMP} offen sc1")
            A("s_mov_b64 exec, -1")
            vm.issue("flag")
            self.stamp("dep1")
            aux.a2_loads(A, vm, pWS)
            if not self.w1: f2.setup_w(A, sID, pWS)
        NW_A2 = self.nwa2
        watoms = f2.w_loads(range(NW_A2))
        def a2_run():
            lab, lab2 = A.label("noa2"), A.label("a2d")
            self.stamp("a2 start")
            A(f"s_waitcnt vmcnt({vm.wait({'a2in'})})")
            A(f"s_cmp_ge_u32 s{aux.R.sa2}, {0 if 'noa2' in self.exp else 162}")
            A(f"s_cbranch_scc1 {lab}")
            v2 = VM()
            def st2(T, n):
                if self.stamps and "a2fine" in self.exp:
                    keep = self.A; self.A = T; self.stamp(n); self.A = keep
            aux.a2(A, v2, pWS, waited=True, weave=list(watoms), stamp=st2)
            A(f"s_branch {lab2}")
            A(f"{lab}:")
            for ins in watoms: A(ins)
            A(f"{lab2}:")
            for k in range(len(watoms)): vm.issue(f"W{k//5}")
            vm.mark('zst')
            self.stamp("a2 end")
        weave = None
        if self.w1:
            T0 = self.w1
            after[T0-6] = lambda: self.cpoll_issue(vm, 0)
            before[T0-3] = lambda: self.cpoll_check(vm, 0)
            after[T0-3] = a2_issue
            extra[T0] = {'a2in'}
            def skip(label):
                A(f"s_cmp_ge_u32 s{aux.R.sa2}, 162")
                A(f"s_cbranch_scc1 {label}")
            weave = dict(ts=T0, te=T0+6, bundles=aux.a2_bundles(pWS, T0), skip=skip, mark='zst')
            if T0 + 8 <= 18:
                extra[T0+8] = {'zst', 'gst'}
                after[T0+8] = lambda: self.arrive(vm, 1)
        else:
            after[TA2-1-self.plead] = lambda: self.cpoll_issue(vm, 0)
            before[TA2-1] = lambda: self.cpoll_check(vm, 0)
            after[TA2-1] = a2_issue
            pause[TA2] = a2_run
            if self.twt >= 0:
                if 'wd2' in X or 'wd3' in X: extra[self.twt] = set(extra.get(self.twt, ())) | {'wd'}
                pause[self.twt] = lambda: aux.wtprep(A, vm, tag='wtst')
                extra[self.twt + 3] = {'wtst'}
                after[self.twt + 3] = lambda: self.arrive(vm, 2)
                after[TA2-1] = lambda: self.cpoll_issue(vm, 2)
                before[TA2] = lambda: self.cpoll_check(vm, 2)
            extra[TA2+self.d2] = {'zst', 'gst'}
            after[TA2+self.d2] = lambda: self.arrive(vm, 1)
        if self.f3now and 0 <= self.dep2at < 9: after[self.p2st] = lambda: self.cpoll_issue(vm, 1)
        if self.dep2at < 0:
            after[16] = lambda: self.cpoll_issue(vm, 1)
            before[18] = lambda: self.cpoll_check(vm, 1)
        if "fine" in self.exp:
            for t in range(0, 19, 2):
                def mk(t, old):
                    def f():
                        if old: old()
                        self.stamp(f"bar{t}")
                    return f
                after[t] = (lambda t=t: self.stamp(f"bar{t}"))
        fl = aux.consts_a2_fill() if self.lean == 2 else []
        f1.main(A, vm, issued, fill=fl, after_barrier=after, pause=pause, late=[k for k in ([("w", 3), ("x", 2), ("w", 4), ("w", 5)] if f1.NWS == 6 else [("w", 3), ("x", 3), ("w", 4)]) if k not in issued], extra_need=extra, before_barrier=before, weave=weave)
        if self.w1 and self.w1 + 8 > 18:
            A(f"s_waitcnt vmcnt({vm.wait({'zst', 'gst'})})")
            A("s_barrier")
            self.arrive(vm, 1)
        self.stamp("f1 loop end")
        if self.w1: f2.setup_w(A, sID, pWS)
        f2.setup(A, sID, pWS, pOUT)
        if self.dep2at < 0:
            self.stamp("dep2")
            aux.a3_loads(A, vm, pWS)
        nw0 = 0 if self.w1 else self.nwa2
        atoms = [(ins, f"W{nw0 + k//5}") for k, ins in enumerate(f2.w_loads(range(nw0, 10)))]
        def put(n):
            for _ in range(n):
                if atoms:
                    ins, tag = atoms.pop(0); A(ins); vm.issue(tag)
        def btw(k):
            if self.dep2at == 9:
                if k == 3: self.cpoll_issue(vm, 1)
                if self.w1: put(self.wepi)
                return
            if (self.dep2at < 0 or k > self.dep2at) and not self.f3now: put(self.wput)
            if self.dep2at >= 0:
                if k == max(0, self.dep2at - 2) and not self.f3now: self.cpoll_issue(vm, 1)
                if k == self.dep2at:
                    self.cpoll_check(vm, 1)
                    A("s_barrier")
                    self.stamp("dep2")
                    aux.a3_loads(A, vm, pWS)
        f1.epilogue(A, vm, pWS, sc=self.hsc, between=btw)
        self.stamp("f1 epi")
        A(f"s_lshl_b32 s{sTMP}, s{f1.R.smt}, 1")
        A(f"s_lshr_b32 s99, s20, 1")
        A(f"s_add_u32 s{sTMP}, s{sTMP}, s99")
        A(f"s_lshl_b32 s{sTMP}, s{sTMP}, 5")
        A(f"s_lshl_b32 s99, s{f1.R.sft}, 1")
        A(f"s_add_u32 s{sTMP}, s{sTMP}, s99")
        A(f"s_and_b32 s99, s20, 1")
        A(f"s_add_u32 s99, s{sTMP}, s99")
        if self.dep2at == 9:
            aux.a3_pre(A)
            f2.setup2(A, pWS, pOUT)
            if not self.zfirst:
                A(f"s_waitcnt vmcnt({vm.wait({'hst'})})")
                self.flag_store_wave(vm, OFF_FLAG3, 99)
            self.cpoll_check(vm, 1)
            A("s_barrier")
            self.stamp("dep2")
            aux.a3_loads(A, vm, pWS)
            if self.zfirst:
                put(self.wput*2)
                A(f"s_waitcnt vmcnt({vm.wait({'hst', 'zl'})})")
                self.flag_store_wave(vm, OFF_FLAG3, 99)
                put(self.wput)
            else:
                put(self.wput*3)
        def poll3_issue():
            A(f"v_and_b32 v254, 31, v0")
            A(f"s_lshl_b32 s{sTMP}, s{f2.R.sT}, 5")
            A(f"v_add_u32 v254, s{sTMP}, v254")
            A(f"v_lshlrev_b32 v254, 2, v254")
            A(f"s_mov_b32 s{sTMP}, {OFF_FLAG3}")
            A(f"buffer_load_dword v250, v254, {srd(srdF)}, s{sTMP} offen sc1")
            vm.issue("poll3")
        if self.f3now and self.dep2at != 9:
            aux.a3_pre(A)
            f2.setup2(A, pWS, pOUT)
            A(f"s_waitcnt vmcnt({vm.wait({'hst'})})")
            self.flag_store_wave(vm, OFF_FLAG3, 99)
            put(self.wput*3)
        def extra(rnd):
            if rnd == self.p3r: poll3_issue()
            if rnd > 0: put(self.wputr)
            if rnd == 1 and self.dep2at != 9 and not self.f3now:
                A(f"s_waitcnt vmcnt({vm.wait({'hst'})})")
                self.flag_store_wave(vm, OFF_FLAG3, 99)
        if self.dep2at != 9 and not self.f3now: aux.a3_pre(A)
        aux.a3_elem(A, vm, extra)
        put(100)
        A("s_barrier")
        self.stamp("a3 elem")
        if self.dep2at != 9 and not self.f3now: f2.setup2(A, pWS, pOUT)
        def check_one(tag, off):
            lo, ok = A.label("w"), A.label("wok")
            A(f"s_waitcnt vmcnt({vm.wait({tag})})")
            A(f"s_mov_b32 s{sSPIN}, 0")
            A(f"{lo}:")
            A(f"v_cmp_ne_u32 vcc, s{sNONCE}, v250")
            A(f"s_cbranch_vccz {ok}")
            A(f"s_add_u32 s{sSPIN}, s{sSPIN}, 1")
            A(f"s_cmp_gt_u32 s{sSPIN}, {SPIN_MAX}")
            A(f"s_cbranch_scc1 {ok}")
            A(f"s_mov_b32 s{sTMP}, {off}")
            if self.pp:
                A(f"buffer_load_dword v251, v254, {srd(srdF)}, s{sTMP} offen sc1")
                A("s_sleep 6")
                A(f"buffer_load_dword v250, v254, {srd(srdF)}, s{sTMP} offen sc1")
                A("s_waitcnt vmcnt(1)")
                A(f"v_cmp_ne_u32 vcc, s{sNONCE}, v251")
                A(f"s_cbranch_vccz {ok}")
                A("s_waitcnt vmcnt(0)")
            else:
                A("s_sleep 4")
                A(f"buffer_load_dword v250, v254, {srd(srdF)}, s{sTMP} offen sc1")
                A("s_waitcnt vmcnt(0)")
            A(f"s_branch {lo}")
            A(f"{ok}:")
        npre = self.npre
        if self.early3:
            if self.p3r < 0: poll3_issue()
            def mid():
                check_one("poll3", OFF_FLAG3)
                for i in range(npre):
                    A(f2.h_loads(i)); vm.issue(f"h{i}", 4)
            aux.a3_core(A, vm, pWS, mid=mid)
        else:
            aux.a3_core(A, vm, pWS, mid=(poll3_issue if self.p3r < 0 else None))
        for k, ins in enumerate(f2.w_loads((10, 11))):
            A(ins); vm.issue(f"W{10 + k//5}")
        self.stamp("a3 core")
        if not self.early3:
            check_one("poll3", OFF_FLAG3)
            npre = 0
        self.stamp("dep3")
        def flag4():
            A(f"s_waitcnt vmcnt({vm.wait({'gast'})})")
            A(f"s_lshl_b32 s99, s{aux.R.srg}, 2")
            A(f"s_add_u32 s99, s99, s20")
            self.flag_store_wave(vm, OFF_FLAG4, 99)
        def code4():
            A(f"v_and_b32 v254, 63, v0")
            A(f"s_and_b32 s{sTMP}, s{f2.R.sT}, 15")
            A(f"s_lshl_b32 s{sTMP}, s{sTMP}, 6")
            A(f"v_add_u32 v254, s{sTMP}, v254")
            A(f"v_lshlrev_b32 v254, 2, v254")
        def h_issue4():
            code4()
            A(f"s_mov_b32 s{sTMP}, {OFF_FLAG4}")
            A(f"buffer_load_dword v250, v254, {srd(srdF)}, s{sTMP} offen sc1")
            vm.issue("poll4")
        def h_check4():
            check_one("poll4", OFF_FLAG4)
            f2.final_loads(A, vm)
        hk = {1: flag4, 6: h_issue4, 10: h_check4}
        if "f2fine" in self.exp:
            for i_ in (0, 2, 4, 8, 11):
                hk[i_] = (lambda o=hk.get(i_), i_=i_: ((o() if o else None), self.stamp(f"f2s{i_}")))
        f2.main(A, vm, hooks=hk, pre_issued=npre)
        self.stamp("f2 loop end")
        f2.epilogue(A, vm)
        self.stamp("end")
        self.dump_stamps()
        A("s_endpgm")

    def build(self):
        A = self.A
        A(f"s_cmp_ge_u32 s2, 256")
        A(f"s_cbranch_scc1 K_exit")
        A(f"s_load_dwordx16 s[68:83], s[0:1], 0")
        A(f"s_load_dwordx4 s[84:87], s[0:1], 64")
        A(f"s_load_dwordx2 s[88:89], s[0:1], 80")
        if self.cpfirst:
            if self.codepf:
                A("s_getpc_b64 s[4:5]")
                A("K_pc:")
                A("s_and_b32 s5, s5, 0xffff")
                A("s_mov_b32 s6, K_exit-K_pc")
                A("s_mov_b32 s7, 0x20000")
                A("v_lshlrev_b32 v4, 7, v0")
                for k in range(self.codepf):
                    A(f"s_mov_b32 s28, {32768*k}")
                    A(f"buffer_load_dword v229, v4, s[4:7], s28 offen")

        if self.stamps: A("v_mov_b32 v255, 0")
        A(f"s_mov_b32 s{sID}, s2")
        if self.rgmap:
            A(f"s_and_b32 s3, s2, 7")
            A(f"s_lshl_b32 s3, s3, 1")
            A(f"s_bfe_u32 s28, s2, {3 | (1 << 16)}")
            A(f"s_add_u32 s3, s3, s28")
            A(f"s_and_b32 s28, s2, 0xf0")
            A(f"s_add_u32 s3, s3, s28")
        else:
            A(f"s_mov_b32 s3, s2")
        A(f"v_lshrrev_b32 v4, 6, v0")
        A("s_nop 0")
        A(f"v_readfirstlane_b32 s20, v4")
        A("s_waitcnt lgkmcnt(0)")
        if self.wsbase:
            A(f"s_add_u32 s{pWS}, s{pWS}, {hex(self.wsbase)}")
            A(f"s_addc_u32 s{pWS+1}, s{pWS+1}, 0")
        A(f"s_load_dword s{sNONCE}, s[{pWS}:{pWS+1}], {OFF_EPOCH}")
        if not self.cpfirst:
            if self.codepf:
                A("s_getpc_b64 s[4:5]")
                A("K_pc:")
                A("s_and_b32 s5, s5, 0xffff")
                A("s_mov_b32 s6, K_exit-K_pc")
                A("s_mov_b32 s7, 0x20000")
                A("v_lshlrev_b32 v4, 7, v0")
                for k in range(self.codepf):
                    A(f"s_mov_b32 s28, {32768*k}")
                    A(f"buffer_load_dword v229, v4, s[4:7], s28 offen")
        if self.tlbpf:
            A.srd(4, pWS, 28 << 20)
            A("v_and_b32 v4, 63, v0")
            A("v_lshlrev_b32 v4, 19, v4")
            A("v_add_u32 v4, 0x7ff80, v4")
            A(f"buffer_load_dword v229, v4, s[4:7], 0 offen")
            A.srd(4, pOUT, 2048*640*2)
            A("v_and_b32 v4, 63, v0")
            A("v_lshlrev_b32 v4, 16, v4")
            A(f"buffer_load_dword v229, v4, s[4:7], 0 offen")
        A.srd(srdF, pWS, SZ_FLAGS)
        self.body()
        A("K_exit:")
        A("s_endpgm")
        if os.environ.get('NOST'):
            out = []
            for l in A.l:
                if 'buffer_store' in l and ('s[36:39]' in l or 's[48:51]' in l or 's[56:59]' in l): l = '  s_nop 0'
                out.append(l)
            A.l = out
        lines, n = hazard.fix(A.l)
        return lines

HEADER = open(os.path.join(os.path.dirname(os.path.abspath(__file__)), "header.txt")).read()
def full_source(**kw):
    g = Gen(**kw)
    body = "\n".join(g.build())
    src = HEADER + f"""; @launch grid=(256,1,1) block=(256,1,1) lds=163840
;
; One persistent launch, one workgroup (4 waves, 512 registers each, 160 KB LDS) per CU.  Generated by my own script.
;   out = g * irfft2(rfft2(x) * W) + (1 - g) * (silu(x Wg) * (x Wu)) Wd ,  g = sigmoid(x . gate_w)
; Every workgroup runs, in this order:
;   phase 1  row FFT of 4 row pairs (s, s+1024): 320-point complex FFT as two MFMA steps (32 x 10), real-FFT unmixing and the
;            radix-2 step of the column FFT -> X1 ; transposition of the filter -> WF ; Wd in MFMA fragment order -> WT ; gate
;   F1       128 x 96 tile of silu(x Wg) * (x Wu), operands through LDS rings filled by LDS-DMA -> H (fragment order)
;   A2       (inside F1, workgroups 0..161) four 1024-point column FFTs, filter, inverse FFTs, all as 32x32 MFMA steps -> Z
;   A3       inverse of phase 1 for the same row pairs, times g -> GA
;   F2       64 x 80 tile of H Wd, K split over the waves, Wd fragments resident in AGPRs, combined with GA -> out
; Hand-offs between workgroups go through d_ws with write-through (sc1) stores, sc1 loads and flag words tagged with
; (epoch word found in d_ws) + 1; every spin is bounded.
.amdgcn_target "amdgcn-amd-amdhsa--gfx950"
.text
.globl {NAME}
.p2align 8
.type {NAME},@function
{NAME}:
{body}
.section .rodata,"a"
.p2align 6
.amdhsa_kernel {NAME}
  .amdhsa_next_free_vgpr 512
  .amdhsa_next_free_sgpr 102
  .amdhsa_accum_offset 256
  .amdhsa_group_segment_fixed_size 0
  .amdhsa_kernarg_size 88
  .amdhsa_user_sgpr_count 2
  .amdhsa_user_sgpr_kernarg_segment_ptr 1
  .amdhsa_system_sgpr_workgroup_id_x 1
.end_amdhsa_kernel
"""
    return src, g
if __name__ == "__main__":
    kw = {}
    for o in sys.argv[2:]:
        k, v_ = o.split("="); kw[k] = eval(v_)
    src, g = full_source(**kw)
    out = sys.argv[1] if len(sys.argv) > 1 else "gated_mix__spectral_gfnet__swiglu_ffn__prompt.s"
    open(out, "w").write(src)
    print("wrote", out, len(src), "bytes")
```

```python
from asmlib import *
from layout import *
import struct
def fb(x): return hex(struct.unpack('<I', struct.pack('<f', x))[0])

import os
SC = os.environ.get('AUXSC', ' sc1')
NOST = os.environ.get('NOST')
PK2 = True
class R:
    vl = 1
    vn = 2
    vh = 3
    TWr, TWi = 160, 176
    t3r, t3i = 192, 198
    T2r, T2i = 0, 16
    CRe, CIm, F10 = 216, 232, 248
    sw = 20
    sc = 98
    sa2 = 63
    srg = 3
    srdAX, srdX1, srdWR, srdWI, srdWF, srdWD, srdWT, srdGW, srdG, srdFT, srdZ = 32, 36, 40, 44, 48, 52, 56, 60, 64, 4, 4
    st = 28
    st2 = 99

import f1 as _f1
AUXB   = _f1.WBASE + _f1.NWS*_f1.WSLOT
L_XR   = AUXB
L_GW   = AUXB + 12288
if _f1.NXS == 4:
    L_WS = 3*_f1.XSLOT
    L_WD = AUXB + 14336
else:
    L_WS = AUXB + 14336
    L_WD = AUXB + 32768
L_Z    = _f1.WBASE + (_f1.NWS-2)*_f1.WSLOT
ZROW, ZWAVE = 2560, 5184
WSG = 8*192 + 16
L_X    = AUXB
L_F    = AUXB + 16384

def setup(A, pAX, pWR, pWI, pWD, pGW, pWS):
    A.c("---- aux setup ----")
    A(f"v_and_b32 v{R.vl}, 63, v0")
    A(f"v_and_b32 v{R.vn}, 31, v{R.vl}")
    A(f"v_lshrrev_b32 v{R.vh}, 5, v{R.vl}")
    A.srd(R.srdAX, pAX, 2048*640*2)

def setup_out(A, pWS):
    A.srd(R.srdX1, pWS, SZ_X1, OFF_X1)
    A.srd(R.srdWF, pWS, SZ_WF, OFF_WF)
    A.srd(R.srdWT, pWS, SZ_WT, OFF_WT)
    A.srd(R.srdG, pWS, 8192, OFF_G)

XA = 16
def issue_wd(A, vm, pWD=80):
    st = R.st
    A.c("Wd tile DMA (workgroups >= 240 fall off the end of the buffer and get zeros)")
    A.srd(R.srdWD, pWD, 1536*640*2)
    A(f"s_mul_i32 s{st+2}, s{R.sc}, 52429")
    A(f"s_lshr_b32 s{st+2}, s{st+2}, 18")
    A(f"s_mul_i32 s{st+3}, s{st+2}, 5")
    A(f"s_sub_u32 s{st+3}, s{R.sc}, s{st+3}")
    A(f"s_lshl_b32 s{st}, s{st+2}, 5")
    A(f"s_lshl_b32 s{st+1}, s{R.sw}, 3")
    A(f"s_add_u32 s{st}, s{st}, s{st+1}")
    A(f"s_mul_i32 s{st}, s{st}, 1280")
    A(f"s_lshl_b32 s{st+1}, s{st+3}, 8")
    A(f"s_add_u32 s{st}, s{st}, s{st+1}")
    A(f"v_lshrrev_b32 v5, 4, v{R.vl}")
    A(f"v_mul_u32_u24 v5, 1280, v5")
    A(f"v_and_b32 v6, 15, v{R.vl}")
    A(f"v_lshl_add_u32 v5, v6, 4, v5")
    A(f"s_lshl_b32 s{st+1}, s{R.sw}, 11")
    A(f"s_add_u32 m0, s{st+1}, {L_WD}")
    A(f"v_add_u32 v6, {4*1280-1024}, v5")
    A(f"buffer_load_dwordx4 v5, {srd(R.srdWD)}, s{st} offen lds")
    A(f"buffer_load_dwordx4 v6, {srd(R.srdWD)}, s{st} offen offset:1024 lds")
    vm.issue('wd', 2)

def issue_loads(A, vm, mid=None, pWR=70, pWI=72, pWD=80, pGW=82, wd=True):
    st = R.st
    A.c("x rows: chunk i = 64j + l ; i<80 row s', i<160 row s'+1024, else out of range (zeros)")
    A(f"s_lshl_b32 s{st}, s{R.srg}, 2")
    A(f"s_add_u32 s{st}, s{st}, s{R.sw}")
    A(f"s_mul_i32 s{st}, s{st}, 1280")
    A(f"s_mul_i32 s{st+1}, s{R.sw}, 3072")
    A(f"s_add_u32 m0, s{st+1}, {L_XR}")
    A(f"v_lshlrev_b32 v4, 4, v{R.vl}")
    A(f"buffer_load_dwordx4 v4, {srd(R.srdAX)}, s{st} offen lds")
    A(f"v_add_u32 v5, {1024-1024}, v4")
    A(f"v_add_u32 v6, {1024*1280 - 256 - 1024}, v4")
    A(f"v_cmp_gt_u32 vcc, 16, v{R.vl}")
    A(f"v_cndmask_b32 v5, v6, v5, vcc")
    A(f"buffer_load_dwordx4 v5, {srd(R.srdAX)}, s{st} offen offset:1024 lds")
    A(f"v_add_u32 v5, {1024*1280 + 48*16 - 2048}, v4")
    A(f"v_mov_b32 v6, 0x40000000")
    A(f"v_cmp_gt_u32 vcc, 32, v{R.vl}")
    A(f"v_cndmask_b32 v5, v6, v5, vcc")
    A(f"buffer_load_dwordx4 v5, {srd(R.srdAX)}, s{st} offen offset:2048 lds")
    vm.issue('xr', 3)
    A.srd(R.srdWR, pWR, 2048*321*2)
    A.srd(R.srdWI, pWI, 2048*321*2)
    A.c("filter staging: rho=b&63 (rows 32 rho + e), cq=b>>6 ; wave: array = w>>1, rows 16(w&1) + 4j + l/12, chunk l%12 (48 lanes)")
    A(f"s_and_b32 s{st}, s{R.sc}, 63")
    A(f"s_lshl_b32 s{st}, s{st}, 5")
    A(f"s_and_b32 s{st+1}, s{R.sw}, 1")
    A(f"s_lshl_b32 s{st+2}, s{st+1}, 4")
    A(f"s_add_u32 s{st}, s{st}, s{st+2}")
    A(f"s_mul_i32 s{st+2}, s{st+1}, {2*WSG}")
    A(f"s_lshr_b32 s{st+3}, s{R.sw}, 1")
    A(f"s_mul_i32 s{st+3}, s{st+3}, {4*WSG}")
    A(f"s_add_u32 s{st+2}, s{st+2}, s{st+3}")
    A(f"s_add_u32 s{st+2}, s{st+2}, {L_WS}")
    A(f"s_lshr_b32 s{st+1}, s{R.sc}, 6")
    A(f"s_mul_i32 s{st+1}, s{st+1}, 162")
    A(f"s_cmp_lt_u32 s{R.sw}, 2")
    A(f"s_cselect_b32 s4, s{R.srdWR}, s{R.srdWI}")
    A(f"s_cselect_b32 s5, s{R.srdWR+1}, s{R.srdWI+1}")
    A(f"s_mov_b32 s6, {hex(2048*321*2)}")
    A(f"s_mov_b32 s7, 0x20000")
    A(f"v_mul_u32_u24 v6, 5462, v{R.vl}")
    A(f"v_lshrrev_b32 v5, 16, v6")
    A(f"v_mul_u32_u24 v7, 12, v5")
    A(f"v_sub_u32 v7, v{R.vl}, v7")
    A(f"v_add_u32 v5, s{st}, v5")
    A(f"v_mul_u32_u24 v5, 642, v5")
    A(f"v_add_u32 v5, s{st+1}, v5")
    A("s_mov_b32 exec_hi, 0xffff")
    for j in range(4):
        A(f"v_add_u32 v6, {4*642*j}, v5")
        A(f"v_and_b32 v6, -16, v6")
        A(f"v_lshl_add_u32 v6, v7, 4, v6")
        A(f"s_add_u32 m0, s{st+2}, {(j >> 1)*WSG + (j & 1)*768}")
        A("s_nop 0")
        A(f"buffer_load_dwordx4 v6, s[4:7], 0 offen lds")
    A("s_mov_b64 exec, -1")
    vm.issue('ws', 4)
    if wd: issue_wd(A, vm, pWD)
    A.c("gate_w: 80 chunks ; wave w loads chunks 64w.. (out of range -> zeros)")
    A.srd(R.srdGW, pGW, 640*2)
    A(f"s_lshl_b32 s{st}, s{R.sw}, 10")
    A(f"s_min_u32 s{st}, s{st}, 1024")
    A(f"s_add_u32 m0, s{st}, {L_GW}")
    A(f"buffer_load_dwordx4 v4, {srd(R.srdGW)}, s{st} offen lds")
    vm.issue('gw', 1)
    if mid: mid()

def consts_a1(A):
    A.c("constants: F32 interleaved, tw320, F10")
    n, h = R.vn, R.vh
    A(f"v_cvt_f32_u32 v4, v{n}")
    A(f"v_cvt_f32_u32 v5, v{h}")
    A(f"v_mul_f32 v6, {fb(1/32)}, v4")
    A(f"v_mul_f32 v7, 4.0, v5")
    A(f"v_mul_f32 v8, v7, v6")
    for i in range(4):
        for q in range(4):
            A(f"v_fmamk_f32 v9, v6, {fb(float(8*i+q))}, v8")
            A(f"v_fract_f32 v9, v9")
            A(f"v_sin_f32 v10, v9")
            A(f"v_cos_f32 v11, v9")
            A("s_nop 0")
            A(f"v_cvt_pk_bf16_f32 v12, v11, v10")
            A(f"v_cvt_pk_bf16_f32 v13, -v10, v11")
            A(f"v_accvgpr_write_b32 a{R.CRe+4*i+q}, v12")
            A(f"v_accvgpr_write_b32 a{R.CIm+4*i+q}, v13")
    A(f"v_mul_f32 v6, {fb(1/320)}, v4")
    A(f"v_mul_f32 v8, v7, v6")
    for idx, (e, j) in enumerate([(0,0),(0,1),(0,2),(0,3),(1,0),(1,1)]):
        A(f"v_fmamk_f32 v9, v6, {fb(float(8*e+j))}, v8")
        A(f"v_cos_f32 v{R.t3r+idx}, v9")
        A(f"v_sin_f32 v{R.t3i+idx}, -v9")
    A(f"v_lshrrev_b32 v9, 3, v{n}")
    A(f"v_lshlrev_b32 v9, 2, v9")
    A(f"v_bfe_u32 v10, v{n}, 2, 1")
    A(f"v_lshl_add_u32 v9, v10, 1, v9")
    A(f"v_bfe_u32 v10, v{n}, 1, 1")
    A(f"v_add_u32 v9, v9, v10")
    A(f"v_cmp_gt_u32 s[{R.st}:{R.st+1}], 10, v9")
    A(f"v_cvt_f32_u32 v9, v9")
    A(f"v_mul_f32 v9, {fb(0.1)}, v9")
    A(f"v_and_b32 v10, 1, v{n}")
    A(f"v_cvt_f32_u32 v10, v10")
    A(f"v_mul_f32 v10, 0.25, v10" if False else f"v_mul_f32 v10, {fb(0.25)}, v10")
    A(f"v_fma_f32 v10, v7, v9, v10")
    A(f"v_cmp_eq_u32 vcc, 0, v{h}")
    A(f"s_and_b64 s[{R.st+2}:{R.st+3}], vcc, s[{R.st}:{R.st+1}]")
    for e in range(2):
        for q in range(4):
            d = R.F10 + 4*e + q
            if e == 1 and q >= 2:
                A(f"v_accvgpr_write_b32 a{d}, 0"); continue
            A(f"v_fmamk_f32 v11, v9, {fb(float(8*e+q))}, v10")
            A(f"v_fract_f32 v11, v11")
            A(f"v_cos_f32 v12, v11")
            A(f"v_sin_f32 v13, v11")
            A("s_nop 0")
            A(f"v_cvt_pk_bf16_f32 v12, v12, v13")
            m = R.st if e == 0 else R.st+2
            A(f"v_cndmask_b32 v12, 0, v12, s[{m}:{m+1}]")
            A(f"v_accvgpr_write_b32 a{d}, v12")

def consts_a2_fill():
    n, h = R.vn, R.vh
    t0, t1, t2, t3, t4, t5 = 243, 244, 245, 246, 247, 248
    L = [f"v_cvt_f32_u32 v{t0}, v{n}", f"v_cvt_f32_u32 v{t1}, v{h}", f"v_mul_f32 v{t1}, 4.0, v{t1}",
         f"v_mul_f32 v{t2}, {fb(1/1024)}, v{t0}", f"v_mul_f32 v{t3}, v{t1}, v{t2}"]
    for i in range(4):
        for j in range(4):
            L += [f"v_fmamk_f32 v{t4}, v{t2}, {fb(float(8*i+j))}, v{t3}",
                  f"v_cos_f32 v{R.TWr+4*i+j}, v{t4}", f"v_sin_f32 v{R.TWi+4*i+j}, -v{t4}"]
    return L

def cmulp(A, d, a, c, t, conj_out=False):
    A(f"v_pk_mul_f32 v[{t}:{t+1}], v[{a}:{a+1}], v[{c}:{c+1}] op_sel:[1,1] op_sel_hi:[1,0]")
    A(f"v_pk_fma_f32 v[{d}:{d+1}], v[{a}:{a+1}], v[{c}:{c+1}], v[{t}:{t+1}] op_sel:[0,0,0] op_sel_hi:[0,1,1] neg_lo:[0,0,1]")

def cmul(A, dr, di, ar, ai, br, bi, t):
    A(f"v_mul_f32 v{t}, v{ai}, v{bi}")
    A(f"v_mul_f32 v{di}, v{ai}, v{br}") if di == ai else A(f"v_mul_f32 v{di}, v{ai}, v{br}")
    A(f"v_fmac_f32 v{di}, v{ar}, v{bi}")
    A(f"v_fma_f32 v{dr}, v{ar}, v{br}, -v{t}")

D1r, D1i, PK, D2 = 32, 48, 96, (32, 48)
def fft320_core(A, xa=XA, tmp=(4, 6), mid=None):
    for i in range(4):
        c = "0" if i == 0 else f"v[{D1r}:{D1r+15}]"
        A(f"v_mfma_f32_32x32x16_bf16 v[{D1r}:{D1r+15}], v[{xa+4*i}:{xa+4*i+3}], a[{R.CRe+4*i}:{R.CRe+4*i+3}], {c}")
        c = "0" if i == 0 else f"v[{D1i}:{D1i+15}]"
        A(f"v_mfma_f32_32x32x16_bf16 v[{D1i}:{D1i+15}], v[{xa+4*i}:{xa+4*i+3}], a[{R.CIm+4*i}:{R.CIm+4*i+3}], {c}")
    for r in range(2):
        A(f"v_mov_b32 v{PK+8*r+6}, 0")
        A(f"v_mov_b32 v{PK+8*r+7}, 0")
    if mid: mid()
    t0, t1 = tmp
    for r in range(2):
        for idx, (e, j) in ((0, (0, 0)), (2, (0, 2)), (4, (1, 0))):
            reg = 4*(2*r+e) + j
            ar, ai = D1r+reg, D1i+reg
            tr, ti = R.t3r+idx, R.t3i+idx
            A(f"v_pk_mul_f32 v[{t0}:{t0+1}], v[{ai}:{ai+1}], v[{ti}:{ti+1}]")
            A(f"v_pk_mul_f32 v[{t1}:{t1+1}], v[{ai}:{ai+1}], v[{tr}:{tr+1}]")
            A(f"v_pk_fma_f32 v[{t0}:{t0+1}], v[{ar}:{ar+1}], v[{tr}:{tr+1}], v[{t0}:{t0+1}] neg_lo:[0,0,1] neg_hi:[0,0,1]")
            A(f"v_pk_fma_f32 v[{t1}:{t1+1}], v[{ar}:{ar+1}], v[{ti}:{ti+1}], v[{t1}:{t1+1}]")
            A(f"v_cvt_pk_bf16_f32 v{PK+8*r+4*e+j}, v{t0}, v{t1}")
            A(f"v_cvt_pk_bf16_f32 v{PK+8*r+4*e+j+1}, v{t0+1}, v{t1+1}")
    for r in range(2):
        for e in range(2):
            c = "0" if e == 0 else f"v[{D2[r]}:{D2[r]+15}]"
            A(f"v_mfma_f32_32x32x16_bf16 v[{D2[r]}:{D2[r]+15}], a[{R.F10+4*e}:{R.F10+4*e+3}], v[{PK+8*r+4*e}:{PK+8*r+4*e+3}], {c}")

def a1_core(A, vm):
    st = R.st
    A.c("---- A1 core ----")
    A(f"s_waitcnt vmcnt({vm.wait({'xr'})})")
    A(f"v_bfe_u32 v4, v{R.vl}, 4, 1")
    A(f"v_mul_u32_u24 v4, 1280, v4")
    A(f"v_and_b32 v5, 15, v{R.vl}")
    A(f"v_lshl_add_u32 v4, v5, 2, v4")
    A(f"v_mul_u32_u24 v5, 160, v{R.vh}")
    A(f"s_mul_i32 s{st}, s{R.sw}, 3072")
    A(f"s_add_u32 s{st}, s{st}, {L_XR}")
    A(f"v_add3_u32 v4, v4, v5, s{st}")
    for i in range(4):
        for q in range(4):
            A(f"ds_read_b32 v{XA+4*i+q}, v4 offset:{320*i+40*q}")
    A("s_waitcnt lgkmcnt(0)")
    fft320_core(A)
    A(f"s_mul_i32 s{st}, s{R.sw}, {ZWAVE}")
    A(f"s_add_u32 s{st}, s{st}, {L_Z}")
    A(f"v_lshl_add_u32 v4, v{R.vh}, 6, v{R.vn}")
    A(f"v_lshl_add_u32 v4, v4, 3, s{st}")
    for i in range(3):
        if i == 2: A("s_mov_b64 exec, 0xffffffff")
        for r in range(2):
            for jj in range(2):
                d = D2[r] + 4*i + 2*jj
                A(f"ds_write_b64 v4, v[{d}:{d+1}] offset:{r*ZROW + (128*i + 32*jj)*8}")
    A("s_mov_b64 exec, -1")

P_AP, P_AQ0, P_AQ, P_ST0, P_ST2 = 112, 113, 114, 115, 116
P_C = 118
P_TAU = 124
P_WA = 126
P_WS = 130
P_WD = 228
P_GA, P_GB = 226, 227
def phase1_pre(A):
    st = R.st
    A.c("---- phase 1: addresses and constants prepared ahead ----")
    A(f"v_and_b32 v4, 3, v0")
    A(f"v_mul_u32_u24 v5, {ZWAVE}, v4")
    A(f"v_add_u32 v5, {L_Z}, v5")
    A(f"v_lshrrev_b32 v7, 2, v0")
    A(f"v_lshl_add_u32 v{P_AP}, v7, 3, v5")
    A(f"v_sub_u32 v8, 192, v7")
    A(f"v_lshl_add_u32 v{P_AQ}, v8, 3, v5")
    A(f"v_add_u32 v9, {128*8}, v{P_AQ}")
    A(f"v_cmp_eq_u32 vcc, 0, v7")
    A(f"v_cndmask_b32 v{P_AQ0}, v9, v5, vcc")
    A(f"s_lshl_b32 s{st}, s{R.srg}, 2")
    A(f"v_add_u32 v6, s{st}, v4")
    A(f"v_cvt_f32_u32 v9, v6")
    A(f"v_mul_f32 v9, {fb(1/2048)}, v9")
    A(f"v_cos_f32 v{P_TAU}, v9")
    A(f"v_sin_f32 v{P_TAU+1}, -v9")
    A(f"v_lshrrev_b32 v10, 1, v7")
    A(f"v_lshlrev_b32 v10, 15, v10")
    A(f"v_and_b32 v11, 1, v7")
    A(f"v_lshl_add_u32 v10, v11, 3, v10")
    A(f"v_lshl_add_u32 v{P_ST0}, v6, 4, v10")
    A(f"v_mov_b32 v11, 0x40000000")
    A(f"v_cmp_gt_u32 vcc, 34, v7")
    A(f"v_cndmask_b32 v{P_ST2}, v11, v{P_ST0}, vcc")
    A(f"v_cvt_f32_u32 v9, v7")
    for rnd in range(3):
        A(f"v_add_f32 v10, {fb(64.0*rnd)}, v9")
        A(f"v_mul_f32 v10, {fb(1/640)}, v10")
        A(f"v_sin_f32 v{P_C+2*rnd}, -v10")
        A(f"v_cos_f32 v10, v10")
        A(f"v_sub_f32 v{P_C+2*rnd+1}, 0, v10")
    A(f"v_bfe_u32 v5, v0, 2, 1")
    A(f"v_lshrrev_b32 v6, 3, v0")
    A(f"v_mul_u32_u24 v7, {WSG}, v4")
    A(f"v_mul_u32_u24 v8, 192, v5")
    A(f"v_add_u32 v7, v7, v8")
    A(f"v_lshl_add_u32 v7, v6, 1, v7")
    A(f"v_add_u32 v7, {L_WS}, v7")
    A(f"s_lshr_b32 s{st}, s{R.sc}, 6")
    A(f"v_add_u32 v8, s{st}, v5")
    A(f"v_lshlrev_b32 v8, 1, v8")
    for jj in range(4):
        A(f"v_add_u32 v9, {4*jj}, v8")
        A(f"v_and_b32 v9, 15, v9")
        A(f"v_add_u32 v{P_WA+jj}, v7, v9")
    A(f"s_mul_i32 s{st+1}, s{st}, 81")
    A(f"s_and_b32 s{st+2}, s{R.sc}, 63")
    A(f"s_lshl_b32 s{st+2}, s{st+2}, 6")
    A(f"v_lshlrev_b32 v7, 14, v5")
    A(f"v_lshl_add_u32 v7, v4, 4, v7")
    A(f"v_add_u32 v7, s{st+2}, v7")
    A(f"v_mov_b32 v14, 0x40000000")
    for rnd in range(3):
        A(f"v_add_u32 v8, {32*rnd}, v6")
        A(f"v_add_u32 v9, s{st+1}, v8")
        A(f"v_sub_u32 v10, 320, v9")
        A(f"v_cmp_lt_u32 vcc, 160, v9")
        A(f"v_cndmask_b32 v11, v9, v10, vcc")
        A(f"v_cndmask_b32_e64 v10, 0, 1, vcc")
        A(f"v_and_b32 v12, 1, v11")
        A(f"v_lshl_add_u32 v10, v12, 1, v10")
        A(f"v_lshrrev_b32 v11, 1, v11")
        A(f"v_lshl_add_u32 v11, v11, 3, v10")
        A(f"v_lshl_add_u32 v11, v11, 12, v7")
        if rnd == 2:
            A(f"v_cmp_gt_u32 vcc, 81, v8")
            A(f"v_cndmask_b32 v11, v14, v11, vcc")
            A(f"v_cmp_ge_u32 vcc, 320, v9")
            A(f"v_cndmask_b32 v{P_WS+2}, v14, v11, vcc")
            A(f"v_add_u32 v11, 4096, v11")
            A(f"v_cmp_eq_u32 vcc, 160, v9")
            A(f"v_cndmask_b32 v{P_WS+3}, v14, v11, vcc")
        else:
            A(f"v_mov_b32 v{P_WS+rnd}, v11")
    A(f"v_bfe_u32 v4, v{R.vl}, 5, 1")
    A(f"v_lshlrev_b32 v4, 4, v4")
    A(f"v_bfe_u32 v5, v{R.vl}, 4, 1")
    A(f"v_lshl_add_u32 v4, v5, 2, v4")
    A(f"v_bfe_u32 v5, v{R.vl}, 2, 2")
    A(f"v_add_u32 v4, v4, v5")
    A(f"v_lshlrev_b32 v4, 8, v4")
    A(f"v_and_b32 v5, 3, v{R.vl}")
    A(f"v_lshl_add_u32 v4, v5, 3, v4")
    A(f"s_lshl_b32 s{st}, s{R.sw}, 6")
    A(f"s_add_u32 s{st}, s{st}, {L_WD}")
    A(f"v_add_u32 v{P_WD}, s{st}, v4")
    A(f"s_mul_i32 s{st}, s{R.sw}, 3072")
    A(f"s_add_u32 s{st}, s{st}, {L_XR}")
    A(f"v_lshl_add_u32 v{P_GA}, v{R.vl}, 2, s{st}")
    A(f"v_lshlrev_b32 v7, 2, v{R.vl}")
    A(f"v_add_u32 v{P_GB}, {L_GW}, v7")

def a1_elem(A, vm):
    st = R.st
    A.c("---- A1 elementwise ----")
    A("s_waitcnt lgkmcnt(0)")
    A("s_barrier")
    ZB = 16
    for rnd in range(3):
        z = ZB + 8*rnd
        aq, oq = (P_AQ0, 0) if rnd == 0 else (P_AQ, 512*(2-rnd))
        A(f"ds_read_b64 v[{z}:{z+1}], v{P_AP} offset:{512*rnd}")
        A(f"ds_read_b64 v[{z+2}:{z+3}], v{aq} offset:{oq}")
        A(f"ds_read_b64 v[{z+4}:{z+5}], v{P_AP} offset:{512*rnd + ZROW}")
        A(f"ds_read_b64 v[{z+6}:{z+7}], v{aq} offset:{oq + ZROW}")
    for rnd in range(3):
        z = ZB + 8*rnd
        Zp0, Zq0, Zp1, Zq1 = z, z+2, z+4, z+6
        A(f"s_waitcnt lgkmcnt({8 - 4*rnd})")
        Up, Uq, Vp, Vq = 40, 42, 44, 46
        for (u, vv, z0, z1) in ((Up, Vp, Zp0, Zp1), (Uq, Vq, Zq0, Zq1)):
            A(f"v_pk_add_f32 v[{u}:{u+1}], v[{z0}:{z0+1}], v[{z1}:{z1+1}]")
            A(f"v_pk_add_f32 v[{vv}:{vv+1}], v[{z0}:{z0+1}], v[{z1}:{z1+1}] neg_lo:[0,1] neg_hi:[0,1]")
        E, O, T, X = (48, 50), (52, 54), (56, 58), ((60, 62), (64, 66))
        for pi, (P, Q) in enumerate(((Up, Uq), (Vp, Vq))):
            A(f"v_pk_add_f32 v[{E[pi]}:{E[pi]+1}], v[{P}:{P+1}], v[{Q}:{Q+1}] neg_hi:[0,1]")
            A(f"v_pk_add_f32 v[{O[pi]}:{O[pi]+1}], v[{P}:{P+1}], v[{Q}:{Q+1}] neg_lo:[0,1]")
        c = P_C + 2*rnd
        for pi in range(2): A(f"v_pk_mul_f32 v[{T[pi]}:{T[pi]+1}], v[{O[pi]}:{O[pi]+1}], v[{c}:{c+1}] op_sel:[1,1] op_sel_hi:[1,0]")
        for pi in range(2): A(f"v_pk_fma_f32 v[{T[pi]}:{T[pi]+1}], v[{O[pi]}:{O[pi]+1}], v[{c}:{c+1}], v[{T[pi]}:{T[pi]+1}] op_sel:[0,0,0] op_sel_hi:[0,1,1] neg_lo:[0,0,1]")
        for pi in range(2):
            Xp, Xq = X[pi]
            A(f"v_pk_add_f32 v[{Xp}:{Xp+1}], v[{E[pi]}:{E[pi]+1}], v[{T[pi]}:{T[pi]+1}]")
            A(f"v_pk_add_f32 v[{Xq}:{Xq+1}], v[{E[pi]}:{E[pi]+1}], v[{T[pi]}:{T[pi]+1}] neg_lo:[0,1] neg_hi:[1,0]")
        for k, Xr in enumerate(X[1]): A(f"v_pk_mul_f32 v[{E[k]}:{E[k]+1}], v[{Xr}:{Xr+1}], v[{P_TAU}:{P_TAU+1}] op_sel:[1,1] op_sel_hi:[1,0]")
        for k, Xr in enumerate(X[1]): A(f"v_pk_fma_f32 v[{Xr}:{Xr+1}], v[{Xr}:{Xr+1}], v[{P_TAU}:{P_TAU+1}], v[{E[k]}:{E[k]+1}] op_sel:[0,0,0] op_sel_hi:[0,1,1] neg_lo:[0,0,1]")
        o = 68 + 4*rnd
        for pi in range(2):
            Xp, Xq = X[pi]
            A(f"v_cvt_pk_bf16_f32 v{o+2*pi}, v{Xp}, v{Xp+1}")
            A(f"v_cvt_pk_bf16_f32 v{o+2*pi+1}, v{Xq}, v{Xq+1}")
        if rnd == 2:
            A(f"v_lshrrev_b32 v7, 2, v0")
            A(f"v_cmp_eq_u32 vcc, 33, v7")
            for k in range(4): A(f"v_cndmask_b32_e64 v{o+k}, v{o+k}, 0, vcc")
        va = P_ST2 if rnd == 2 else P_ST0
        A(f"s_mov_b32 s{st}, {rnd << 20}")
        A(f"buffer_store_dwordx2 v[{o}:{o+1}], v{va}, {srd(R.srdX1)}, s{st} offen{SC}")
        A(f"s_mov_b32 s{st+1}, {(rnd << 20) + 16384}")
        A(f"buffer_store_dwordx2 v[{o+2}:{o+3}], v{va}, {srd(R.srdX1)}, s{st+1} offen{SC}")
        vm.issue('st', 2)

sG0, sG1 = 27, 91
GXR = 204
def gate_reads(A):
    GX = GXR
    for t in range(5):
        A(f"ds_read_b32 v{GX+t}, v{P_GA} offset:{256*t}")
        A(f"ds_read_b32 v{GX+5+t}, v{P_GA} offset:{1280+256*t}")
        A(f"ds_read_b32 v{GX+10+t}, v{P_GB} offset:{256*t}")

def gate(A, vm, part=0):
    st = R.st
    GX = GXR
    if part == 0:
        A.c("---- gate ----")
        gate_reads(A)
        A("s_waitcnt lgkmcnt(0)")
    if part in (0, 1): gate_sum(A, GX)
    if part in (0, 2): gate_fin(A, vm, st)

def gate_sum(A, GX):
    for r in range(2):
        A(f"v_mov_b32 v{4+r}, 0")
        for t in range(5):
            A(f"v_dot2c_f32_bf16 v{4+r}, v{GX+5*r+t}, v{GX+10+t}")
    for mod in ("quad_perm:[1,0,3,2]", "quad_perm:[2,3,0,1]", "row_half_mirror", "row_mirror"):
        for r in range(2):
            A(f"v_add_f32_dpp v{4+r}, v{4+r}, v{4+r} {mod} row_mask:0xf bank_mask:0xf")
    for r in range(2):
        for k in range(4): A(f"v_readlane_b32 s{16+k}, v{4+r}, {16*k}")
        A(f"v_mov_b32 v{4+r}, s16")
        for k in range(1, 4): A(f"v_add_f32 v{4+r}, s{16+k}, v{4+r}")

def gate_fin(A, vm, st):
    A(f"v_and_b32 v6, 1, v{R.vl}")
    A(f"v_cmp_eq_u32 vcc, 1, v6")
    A(f"v_cndmask_b32 v4, v4, v5, vcc")
    A(f"v_cvt_pk_bf16_f32 v4, v4, v4")
    A(f"v_and_b32 v4, 0xffff0000, v4")
    A(f"v_mul_f32 v4, 0xbfb8aa3b, v4")
    A(f"v_exp_f32 v4, v4")
    A(f"v_add_f32 v4, 1.0, v4")
    A(f"v_rcp_f32 v4, v4")
    A(f"v_cvt_pk_bf16_f32 v4, v4, v4")
    A(f"v_and_b32 v4, 0xffff0000, v4")
    A(f"v_readlane_b32 s{sG0}, v4, 0")
    A(f"v_readlane_b32 s{sG1}, v4, 1")
    A(f"s_lshl_b32 s{st}, s{R.srg}, 2")
    A(f"s_add_u32 s{st}, s{st}, s{R.sw}")
    A(f"s_lshl_b32 s{st}, s{st}, 2")
    A(f"v_lshlrev_b32 v6, 12, v6")
    A(f"v_add_u32 v6, s{st}, v6")
    A(f"v_mov_b32 v7, 0x40000000")
    A(f"v_cmp_gt_u32 vcc, 2, v{R.vl}")
    A(f"v_cndmask_b32 v6, v7, v6, vcc")
    A(f"buffer_store_dword v4, v6, {srd(R.srdG)}, 0 offen{SC}")
    vm.issue('gst')

def wprep(A, vm):
    A.c("---- filter prep ----")
    W = 16
    for rnd in range(3):
        for jj in range(4):
            A(f"ds_read_u16 v{W+8*rnd+jj}, v{P_WA+jj} offset:{2*192*jj + 64*rnd}")
            A(f"ds_read_u16 v{W+8*rnd+4+jj}, v{P_WA+jj} offset:{4*WSG + 2*192*jj + 64*rnd}")
        if rnd == 0: pass
    for rnd in range(3):
        A(f"s_waitcnt lgkmcnt({min(15, 16 - 8*rnd) if rnd < 2 else 0})")
        w = W + 8*rnd
        for jj in range(4): A(f"v_lshl_or_b32 v{w+jj}, v{w+4+jj}, 16, v{w+jj}")
        A(f"buffer_store_dwordx4 v[{w}:{w+3}], v{P_WS+rnd}, {srd(R.srdWF)}, 0 offen{SC}")
        vm.issue('st')
        if rnd == 2:
            A(f"buffer_store_dwordx4 v[{w}:{w+3}], v{P_WS+3}, {srd(R.srdWF)}, 0 offen{SC}")
            vm.issue('st')

def wtprep(A, vm, tag='st'):
    st = R.st
    A.c("---- Wd fragment prep ----")
    A(f"s_mul_i32 s{st+2}, s{R.sc}, 52429")
    A(f"s_lshr_b32 s{st+2}, s{st+2}, 18")
    A(f"s_mul_i32 s{st+3}, s{st+2}, 5")
    A(f"s_sub_u32 s{st+3}, s{R.sc}, s{st+3}")
    for k in range(2):
        A(f"ds_read_b64_tr_b16 v[{40+4*k}:{41+4*k}], v{P_WD} offset:{32*k}")
        A(f"ds_read_b64_tr_b16 v[{42+4*k}:{43+4*k}], v{P_WD} offset:{32*k + 8*256}")
    A(f"s_mul_i32 s{st+2}, s{st+2}, 40")
    A(f"s_lshl_b32 s{st+3}, s{st+3}, 3")
    A(f"s_add_u32 s{st+2}, s{st+2}, s{st+3}")
    A(f"s_lshl_b32 s{st+3}, s{R.sw}, 1")
    A(f"s_add_u32 s{st+2}, s{st+2}, s{st+3}")
    A(f"s_lshl_b32 s{st+2}, s{st+2}, 10")
    A(f"v_lshlrev_b32 v5, 4, v{R.vl}")
    A("s_waitcnt lgkmcnt(0)")
    A(f"buffer_store_dwordx4 v[40:43], v5, {srd(R.srdWT)}, s{st+2} offen{SC}")
    A(f"buffer_store_dwordx4 v[44:47], v5, {srd(R.srdWT)}, s{st+2} offen offset:1024{SC}")
    vm.issue(tag, 2)

def ftgen(A, vm, pWS):
    st = R.st
    A.c("---- F table ----")
    A.srd(R.srdFT, pWS, SZ_FT, OFF_FT)
    lab = A.label("noft")
    A(f"s_lshl_b32 s{st}, s{R.sw}, 8")
    A(f"s_add_u32 s{st}, s{st}, s{R.sc}")
    A(f"s_cmp_ge_u32 s{st}, 840")
    A(f"s_cbranch_scc1 {lab}")
    A(f"s_mul_i32 s{st+1}, s{st}, 52429")
    A(f"s_lshr_b32 s{st+1}, s{st+1}, 21")
    A(f"s_mul_i32 s{st+2}, s{st+1}, 40")
    A(f"s_sub_u32 s{st+2}, s{st}, s{st+2}")
    A(f"s_lshl_b32 s{st+2}, s{st+2}, 4")
    A(f"v_and_b32 v4, 15, v{R.vl}")
    A(f"v_add_u32 v4, s{st+2}, v4")
    A(f"s_lshl_b32 s{st+1}, s{st+1}, 2")
    A(f"v_lshrrev_b32 v5, 4, v{R.vl}")
    A(f"v_add_u32 v5, s{st+1}, v5")
    A(f"v_lshlrev_b32 v6, 1, v5")
    A(f"s_mov_b32 s{st+3}, 6710887")
    for c in range(4):
        if c == 0: A(f"v_mov_b32 v7, v6")
        if c == 1: A(f"v_sub_u32 v7, 320, v6")
        if c == 2: A(f"v_add_u32 v7, 1, v6")
        if c == 3: A(f"v_sub_u32 v7, 319, v6")
        A(f"v_mul_u32_u24 v8, v7, v4")
        A(f"v_mul_hi_u32 v9, v8, s{st+3}")
        A(f"v_mul_u32_u24 v9, 640, v9")
        A(f"v_sub_u32 v8, v8, v9")
        A(f"v_cvt_f32_u32 v8, v8")
        A(f"v_mul_f32 v8, {fb(1/640)}, v8")
        A(f"v_cos_f32 v9, v8")
        A(f"v_sin_f32 v10, -v8")
        if c < 2:
            A(f"v_cmp_eq_u32 vcc, 0, v5")
            A(f"v_mul_f32 v11, 0.5, v9")
            A(f"v_cndmask_b32 v9, v9, v11, vcc")
            A(f"v_cndmask_b32_e64 v10, v10, 0, vcc")
        A(f"v_cvt_pk_bf16_f32 v{16+c}, v9, v10")
        A(f"v_cmp_gt_u32 vcc, {81 if c == 0 else 80}, v5")
        A(f"v_cndmask_b32 v{16+c}, 0, v{16+c}, vcc")
    A(f"s_lshl_b32 s{st}, s{st}, 10")
    A(f"v_lshlrev_b32 v5, 4, v{R.vl}")
    A(f"buffer_store_dwordx4 v[16:19], v5, {srd(R.srdFT)}, s{st} offen{SC}")
    A(f"{lab}:")

def a2_loads(A, vm, pWS):
    st = R.st
    A.c("---- A2 loads ----")
    A(f"s_lshl_b32 s{st}, s{R.sa2}, 14")
    A(f"s_lshl_b32 s{st+1}, s{R.sw}, 12")
    A(f"s_add_u32 s{st}, s{st}, s{st+1}")
    A(f"s_add_u32 m0, s{st+1}, {L_X}")
    A(f"v_lshlrev_b32 v4, 4, v{R.vl}")
    for j in range(4):
        A(f"buffer_load_dwordx4 v4, {srd(R.srdX1)}, s{st} offen offset:{1024*j} sc1 lds")
    A(f"s_add_u32 m0, s{st+1}, {L_F}")
    A("s_nop 0")
    for j in range(4):
        A(f"buffer_load_dwordx4 v4, {srd(R.srdWF)}, s{st} offen offset:{1024*j} sc1 lds")
    vm.issue('a2in', 8)

def a2(A0, vm, pWS, waited=False, weave=None, stamp=None):
    st = R.st
    A = Asm(A0.prefix + 'a2')
    A.c("---- A2 ----")
    D0r, D0i, D1r, D1i, XA_, WQ = 32, 48, 204, 16, 16, (220, 224)
    A.srd(R.srdZ, pWS, SZ_Z, OFF_Z)
    if not waited: A(f"s_waitcnt vmcnt({vm.wait({'a2in'})})")
    A("s_barrier")
    A(f"v_lshlrev_b32 v4, 11, v{R.vh}")
    A(f"v_lshl_add_u32 v4, v{R.vn}, 4, v4")
    A(f"s_lshl_b32 s{st}, s{R.sw}, 2")
    A(f"s_add_u32 s{st}, s{st}, {L_X}")
    A(f"v_add_u32 v8, s{st}, v4")
    for i in range(4):
        for q in range(4):
            A(f"ds_read_b32 v{XA_+4*i+q}, v8 offset:{(8*i+q)*512}")
    A(f"s_lshl_b32 s{st}, s{R.sw}, 12")
    A(f"s_add_u32 s{st}, s{st}, {L_F}")
    A(f"v_lshlrev_b32 v5, 9, v{R.vh}")
    A(f"v_lshl_add_u32 v5, v{R.vn}, 2, v5")
    A(f"v_add_u32 v5, s{st}, v5")
    def mm(i, data_is_a, src, Dr, Di):
        for (dst, cc) in ((Dr, R.CRe), (Di, R.CIm)):
            c = "0" if i == 0 else f"v[{dst}:{dst+15}]"
            d, k = f"v[{src+4*i}:{src+4*i+3}]", f"a[{cc+4*i}:{cc+4*i+3}]"
            a_, b_ = (d, k) if data_is_a else (k, d)
            A(f"v_mfma_f32_32x32x16_bf16 v[{dst}:{dst+15}], {a_}, {b_}, {c}")
    def tw_quad(i, Dr, Di):
        if PK2: return tw_quad_pk(i, Dr, Di)
        for j in range(4):
            x = 4*i + j
            t, u = ((6, 7), (10, 11), (12, 13), (14, 15))[j]
            A(f"v_mul_f32 v{t}, v{Di+x}, v{R.TWi+x}")
            A(f"v_mul_f32 v{u}, v{Di+x}, v{R.TWr+x}")
        for j in range(4):
            x = 4*i + j
            t, u = ((6, 7), (10, 11), (12, 13), (14, 15))[j]
            A(f"v_fma_f32 v{t}, v{Dr+x}, v{R.TWr+x}, -v{t}")
            A(f"v_fmac_f32 v{u}, v{Dr+x}, v{R.TWi+x}")
        for j in range(4):
            x = 4*i + j
            t, u = ((6, 7), (10, 11), (12, 13), (14, 15))[j]
            A(f"v_cvt_pk_bf16_f32 v{Dr+x}, v{t}, v{u}")
    def filt_quad(i, Dr, Di):
        if PK2: return filt_quad_pk(i, Dr, Di)
        w = WQ[i & 1]
        for j in range(4):
            x = 4*i + j
            A(f"v_lshlrev_b32 v6, 16, v{w+j}")
            A(f"v_and_b32 v7, 0xffff0000, v{w+j}")
            t, u = ((10, 11), (12, 13))[j & 1]
            A(f"v_mul_f32 v{t}, v{Di+x}, v7")
            A(f"v_mul_f32 v{u}, v{Di+x}, v6")
            A(f"v_fma_f32 v{t}, v{Dr+x}, v6, -v{t}")
            A(f"v_fmac_f32 v{u}, v{Dr+x}, v7")
            A(f"v_cvt_pk_bf16_f32 v{Dr+x}, v{t}, -v{u}")
    def tw_quad_pk(i, Dr, Di):
        for h2 in range(2):
            x = 4*i + 2*h2
            t, u = (6, 10) if h2 == 0 else (12, 14)
            A(f"v_pk_mul_f32 v[{t}:{t+1}], v[{Di+x}:{Di+x+1}], v[{R.TWi+x}:{R.TWi+x+1}]")
            A(f"v_pk_mul_f32 v[{u}:{u+1}], v[{Di+x}:{Di+x+1}], v[{R.TWr+x}:{R.TWr+x+1}]")
            A(f"v_pk_fma_f32 v[{t}:{t+1}], v[{Dr+x}:{Dr+x+1}], v[{R.TWr+x}:{R.TWr+x+1}], v[{t}:{t+1}] neg_lo:[0,0,1] neg_hi:[0,0,1]")
            A(f"v_pk_fma_f32 v[{u}:{u+1}], v[{Dr+x}:{Dr+x+1}], v[{R.TWi+x}:{R.TWi+x+1}], v[{u}:{u+1}]")
        for h2 in range(2):
            x = 4*i + 2*h2
            t, u = (6, 10) if h2 == 0 else (12, 14)
            A(f"v_cvt_pk_bf16_f32 v{Dr+x}, v{t}, v{u}")
            A(f"v_cvt_pk_bf16_f32 v{Dr+x+1}, v{t+1}, v{u+1}")
    def wf_read(i):
        for j in range(4): A(f"ds_read_b32 v{WQ[i & 1]+j}, v5 offset:{(8*i+j)*128}")
    def filt_quad_pk(i, Dr, Di):
        w = WQ[i & 1]
        for h2 in range(2):
            x = 4*i + 2*h2
            ww = w + 2*h2
            A(f"v_lshlrev_b32 v6, 16, v{ww}");     A(f"v_lshlrev_b32 v7, 16, v{ww+1}")
            A(f"v_and_b32 v10, 0xffff0000, v{ww}"); A(f"v_and_b32 v11, 0xffff0000, v{ww+1}")
            A(f"v_pk_mul_f32 v[12:13], v[{Di+x}:{Di+x+1}], v[10:11]")
            A(f"v_pk_mul_f32 v[14:15], v[{Di+x}:{Di+x+1}], v[6:7]")
            A(f"v_pk_fma_f32 v[12:13], v[{Dr+x}:{Dr+x+1}], v[6:7], v[12:13] neg_lo:[0,0,1] neg_hi:[0,0,1]")
            A(f"v_pk_fma_f32 v[14:15], v[{Dr+x}:{Dr+x+1}], v[10:11], v[14:15]")
            A(f"v_cvt_pk_bf16_f32 v{Dr+x}, v12, -v14")
            A(f"v_cvt_pk_bf16_f32 v{Dr+x+1}, v13, -v15")
    def S(n):
        if stamp: stamp(A, n)
    S("x_issued")
    A("s_waitcnt lgkmcnt(0)")
    S("x_read")
    for i in range(4): mm(i, True, XA_, D0r, D0i)
    wf_read(0)
    for i in range(4):
        tw_quad(i, D0r, D0i); mm(i, False, D0r, D1r, D1i)
    S("s3")
    for i in range(4):
        if i < 3: wf_read(i+1)
        A(f"s_waitcnt lgkmcnt({4 if i < 3 else 0})")
        filt_quad(i, D1r, D1i); mm(i, True, D1r, D0r, D0i)
    S("s4")
    for i in range(4):
        tw_quad(i, D0r, D0i); mm(i, False, D0r, D1r, D1i)
    S("s6")
    A(f"v_lshlrev_b32 v4, 9, v{R.vh}")
    A(f"v_lshl_add_u32 v4, v{R.vn}, 2, v4")
    A(f"s_lshl_b32 s{st}, s{R.sw}, 12")
    A(f"s_add_u32 s{st}, s{st}, {L_F}")
    A(f"v_add_u32 v4, s{st}, v4")
    for x in range(16):
        A(f"v_cvt_pk_bf16_f32 v{D0r+x}, v{D1r+x}, -v{D1i+x}")
        A(f"ds_write_b32 v4, v{D0r+x} offset:{(8*(x>>2)+(x&3))*128}")
    A(f"s_lshl_b32 s{st+1}, s{R.sw}, 10")
    A(f"s_add_u32 s{st+2}, s{st+1}, {L_F}")
    A(f"v_lshl_add_u32 v4, v{R.vl}, 2, s{st+2}")
    A("s_waitcnt lgkmcnt(0)")
    S("wr")
    A("s_barrier")
    for j in range(4):
        for c in range(4):
            A(f"ds_read_b32 v{16+4*j+c}, v4 offset:{c*4096 + j*256}")
    A(f"s_lshl_b32 s{st}, s{R.sa2}, 14")
    A(f"s_lshl_b32 s{st+1}, s{R.sw}, 12")
    A(f"s_add_u32 s{st}, s{st}, s{st+1}")
    A(f"v_lshlrev_b32 v5, 4, v{R.vl}")
    for j in range(4):
        A(f"s_waitcnt lgkmcnt({12 - 4*j})")
        A(f"buffer_store_dwordx4 v[{16+4*j}:{19+4*j}], v5, {srd(R.srdZ)}, s{st} offen offset:{1024*j}{SC}")
    vm.issue('zst', 4)
    lines = A.l
    if weave:
        first = next(i for i, l in enumerate(lines) if "v_mfma" in l)
        last = max(i for i, l in enumerate(lines) if "ds_write_b32" in l)
        n = len(weave); out = lines[:first]
        span = last - first
        k = 0
        for j in range(first, len(lines)):
            out.append(lines[j])
            while k < n and j < last and (j - first + 1)*n >= (k + 1)*span:
                out += ["  " + x for x in weave[k]]; k += 1
        out += ["  " + x for w in weave[k:] for x in w]
        assert k == n
        lines = out
    A0.l += lines

def a2_bundles(pWS, t0):
    st = R.st
    D0r, D0i, D1r, D1i, XA_, WQ = 32, 48, 204, 16, 16, (220, 224)
    def cap(fn):
        T = Asm("tmp"); fn(T); return [l.strip() for l in T.l if not l.strip().startswith(";")]
    def one(lines): return [([l], None) for l in lines]
    def mm(i, data_is_a, src, Dr, Di):
        L = []
        for (dst, cc) in ((Dr, R.CRe), (Di, R.CIm)):
            c = "0" if i == 0 else f"v[{dst}:{dst+15}]"
            d, k = f"v[{src+4*i}:{src+4*i+3}]", f"a[{cc+4*i}:{cc+4*i+3}]"
            a_, b_ = (d, k) if data_is_a else (k, d)
            L.append(f"v_mfma_f32_32x32x16_bf16 v[{dst}:{dst+15}], {a_}, {b_}, {c}")
        return L
    def tw(i, Dr, Di):
        L = []
        for h2 in range(2):
            x = 4*i + 2*h2
            t, u = (6, 10) if h2 == 0 else (12, 14)
            L += [f"v_pk_mul_f32 v[{t}:{t+1}], v[{Di+x}:{Di+x+1}], v[{R.TWi+x}:{R.TWi+x+1}]",
                  f"v_pk_mul_f32 v[{u}:{u+1}], v[{Di+x}:{Di+x+1}], v[{R.TWr+x}:{R.TWr+x+1}]",
                  f"v_pk_fma_f32 v[{t}:{t+1}], v[{Dr+x}:{Dr+x+1}], v[{R.TWr+x}:{R.TWr+x+1}], v[{t}:{t+1}] neg_lo:[0,0,1] neg_hi:[0,0,1]",
                  f"v_pk_fma_f32 v[{u}:{u+1}], v[{Dr+x}:{Dr+x+1}], v[{R.TWi+x}:{R.TWi+x+1}], v[{u}:{u+1}]"]
        for h2 in range(2):
            x = 4*i + 2*h2
            t, u = (6, 10) if h2 == 0 else (12, 14)
            L += [f"v_cvt_pk_bf16_f32 v{Dr+x}, v{t}, v{u}", f"v_cvt_pk_bf16_f32 v{Dr+x+1}, v{t+1}, v{u+1}"]
        return L
    def wf(i): return [f"ds_read_b32 v{WQ[i & 1]+j}, v5 offset:{(8*i+j)*128}" for j in range(4)]
    def filt(i, Dr, Di):
        L = []
        w = WQ[i & 1]
        for h2 in range(2):
            x = 4*i + 2*h2
            ww = w + 2*h2
            L += [f"v_lshlrev_b32 v6, 16, v{ww}", f"v_lshlrev_b32 v7, 16, v{ww+1}",
                  f"v_and_b32 v10, 0xffff0000, v{ww}", f"v_and_b32 v11, 0xffff0000, v{ww+1}",
                  f"v_pk_mul_f32 v[12:13], v[{Di+x}:{Di+x+1}], v[10:11]",
                  f"v_pk_mul_f32 v[14:15], v[{Di+x}:{Di+x+1}], v[6:7]",
                  f"v_pk_fma_f32 v[12:13], v[{Dr+x}:{Dr+x+1}], v[6:7], v[12:13] neg_lo:[0,0,1] neg_hi:[0,0,1]",
                  f"v_pk_fma_f32 v[14:15], v[{Dr+x}:{Dr+x+1}], v[10:11], v[14:15]",
                  f"v_cvt_pk_bf16_f32 v{Dr+x}, v12, -v14", f"v_cvt_pk_bf16_f32 v{Dr+x+1}, v13, -v15"]
        return L
    H = {}
    def h0(T):
        T(f"v_lshlrev_b32 v4, 11, v{R.vh}")
        T(f"v_lshl_add_u32 v4, v{R.vn}, 4, v4")
        T(f"s_lshl_b32 s{st}, s{R.sw}, 2")
        T(f"s_add_u32 s{st}, s{st}, {L_X}")
        T(f"v_add_u32 v8, s{st}, v4")
        for i in range(4):
            for q in range(4): T(f"ds_read_b32 v{XA_+4*i+q}, v8 offset:{(8*i+q)*512}")
        T(f"s_lshl_b32 s{st}, s{R.sw}, 12")
        T(f"s_add_u32 s{st}, s{st}, {L_F}")
        T(f"v_lshlrev_b32 v5, 9, v{R.vh}")
        T(f"v_lshl_add_u32 v5, v{R.vn}, 2, v5")
        T(f"v_add_u32 v5, s{st}, v5")
    H[0] = one(cap(h0))
    H[1] = one(sum((mm(i, True, XA_, D0r, D0i) for i in range(4)), []) + wf(0) + wf(1))
    H[2] = one(tw(0, D0r, D0i) + mm(0, False, D0r, D1r, D1i) + tw(1, D0r, D0i) + mm(1, False, D0r, D1r, D1i))
    H[3] = one(tw(2, D0r, D0i) + mm(2, False, D0r, D1r, D1i) + tw(3, D0r, D0i) + mm(3, False, D0r, D1r, D1i))
    H[4] = one(filt(0, D1r, D1i) + wf(2) + mm(0, True, D1r, D0r, D0i) + filt(1, D1r, D1i) + wf(3) + mm(1, True, D1r, D0r, D0i))
    H[5] = one(filt(2, D1r, D1i) + mm(2, True, D1r, D0r, D0i) + filt(3, D1r, D1i) + mm(3, True, D1r, D0r, D0i))
    H[6] = one(tw(0, D0r, D0i) + mm(0, False, D0r, D1r, D1i) + tw(1, D0r, D0i) + mm(1, False, D0r, D1r, D1i))
    H[7] = one(tw(2, D0r, D0i) + mm(2, False, D0r, D1r, D1i) + tw(3, D0r, D0i) + mm(3, False, D0r, D1r, D1i))
    L = []
    for x in range(16):
        L += [f"v_cvt_pk_bf16_f32 v{D0r+x}, v{D1r+x}, -v{D1i+x}", f"ds_write_b32 v8, v{D0r+x} offset:{(8*(x>>2)+(x&3))*512}"]
    H[8] = one(L)
    def h10(T):
        T(f"s_lshl_b32 s{st+1}, s{R.sw}, 12")
        T(f"s_add_u32 s{st+2}, s{st+1}, {L_X}")
        T(f"v_lshl_add_u32 v4, v{R.vl}, 4, s{st+2}")
        for j in range(4): T(f"ds_read_b128 v[{16+4*j}:{19+4*j}], v4 offset:{1024*j}")
        T(f"s_lshl_b32 s{st}, s{R.sa2}, 14")
        T(f"s_add_u32 s{st}, s{st}, s{st+1}")
        T(f"v_lshlrev_b32 v5, 4, v{R.vl}")
    H[10] = [(cap(lambda T: T.srd(R.srdZ, pWS, SZ_Z, OFF_Z)), None)] + one(cap(h10))
    H[11] = [([f"buffer_store_dwordx4 v[{16+4*j}:{19+4*j}], v5, {srd(R.srdZ)}, s{st} offen offset:{1024*j}{SC}"], "zst") for j in range(4)]
    out = {}
    for h, atoms in H.items():
        t, ph = (t0 + (h + 1)//2, 'A' if h % 2 else 'B')
        out[(t, ph)] = atoms
    return out

ZL = 204
L_ZB, ZBW = AUXB, 3104
L_GO = AUXB + 12800
sG0, sG1 = 27, 91
def a3_loads(A, vm, pWS):
    st = R.st
    A.c("---- A3 loads ----")
    A.srd(R.srdZ, pWS, SZ_Z, OFF_Z)
    st = 62
    A(f"v_lshrrev_b32 v4, 2, v0")
    A(f"v_lshrrev_b32 v5, 1, v4")
    A(f"v_lshlrev_b32 v5, 15, v5")
    A(f"v_and_b32 v4, 1, v4")
    A(f"v_lshl_add_u32 v5, v4, 3, v5")
    A(f"v_and_b32 v4, 3, v0")
    A(f"s_lshl_b32 s{st}, s{R.srg}, 2")
    A(f"v_add_u32 v4, s{st}, v4")
    A(f"v_lshl_add_u32 v5, v4, 4, v5")
    for rnd in range(3):
        for pi in range(2):
            A(f"s_mov_b32 s{st}, {(rnd << 20) + pi*16384}")
            A(f"buffer_load_dwordx2 v[{ZL+4*rnd+2*pi}:{ZL+4*rnd+2*pi+1}], v5, {srd(R.srdZ)}, s{st} offen sc1")
    vm.issue('zl', 6)

Q_C, Q_AP, Q_AQ = 64, 70, 73
def a3_pre(A):
    st = R.st
    A.c("---- A3 preparation ----")
    A(f"v_and_b32 v{R.vl}, 63, v0")
    A(f"v_and_b32 v{R.vn}, 31, v{R.vl}")
    A(f"v_lshrrev_b32 v{R.vh}, 5, v{R.vl}")
    A(f"v_and_b32 v14, 3, v0")
    A(f"v_mul_u32_u24 v15, {ZBW}, v14")
    A(f"v_add_u32 v15, {L_ZB}, v15")
    A(f"s_mul_i32 s{st}, s{R.sw}, {ZBW}")
    A(f"s_add_u32 s{st}, s{st}, {L_ZB + 2560}")
    A(f"v_and_b32 v6, 7, v{R.vl}")
    A(f"v_lshl_add_u32 v6, v6, 2, s{st}")
    A(f"v_mov_b32 v7, 0")
    A(f"ds_write_b32 v6, v7")
    A(f"s_lshl_b32 s{st}, s{R.srg}, 2")
    A(f"v_add_u32 v6, s{st}, v14")
    A(f"v_cvt_f32_u32 v7, v6")
    A(f"v_mul_f32 v7, {fb(1/2048)}, v7")
    A(f"v_cos_f32 v12, v7")
    A(f"v_sin_f32 v13, v7")
    A(f"v_lshrrev_b32 v7, 2, v0")
    A(f"v_cvt_f32_u32 v9, v7")
    for rnd in range(3):
        A(f"v_add_f32 v10, {fb(64.0*rnd)}, v9")
        A(f"v_mul_f32 v10, {fb(1/640)}, v10")
        A(f"v_sin_f32 v{Q_C+2*rnd}, -v10")
        A(f"v_cos_f32 v{Q_C+2*rnd+1}, v10")
        A(f"v_add_u32 v8, {64*rnd}, v7")
        A(f"v_lshl_add_u32 v{Q_AP+rnd}, v8, 2, v15")
        A(f"v_sub_u32 v8, 320, v8")
        A(f"v_lshl_add_u32 v{Q_AQ+rnd}, v8, 2, v15")
    A(f"v_cmp_eq_u32 vcc, 0, v7")
    A(f"v_cndmask_b32 v{Q_AQ}, v{Q_AQ}, v15, vcc")
    A(f"v_mov_b32 v9, {L_ZB + 4*ZBW}")
    A(f"v_cmp_lt_u32 vcc, 32, v7")
    A(f"v_cndmask_b32 v{Q_AP+2}, v{Q_AP+2}, v9, vcc")
    A(f"v_cndmask_b32 v{Q_AQ+2}, v{Q_AQ+2}, v9, vcc")

def a3_elem(A, vm, extra=None):
    st = R.st
    A.c("---- A3 elementwise ----")
    A(f"v_lshrrev_b32 v7, 2, v0")
    A(f"v_cmp_eq_u32 vcc, 0, v7")
    A(f"s_waitcnt vmcnt({vm.wait({'zl'})})")
    for rnd in range(3):
        z = ZL + 4*rnd
        if extra: extra(rnd)
        Up, Uq, Vp, Vq = 32, 34, 36, 38
        for (d, src) in ((Up, z), (Uq, z+1), (Vp, z+2), (Vq, z+3)):
            A(f"v_lshlrev_b32 v{d}, 16, v{src}")
            A(f"v_and_b32 v{d+1}, 0xffff0000, v{src}")
        for k, X in enumerate((Vp, Vq)): A(f"v_pk_mul_f32 v[{60+2*k}:{61+2*k}], v[{X}:{X+1}], v[12:13] op_sel:[1,1] op_sel_hi:[1,0]")
        for k, X in enumerate((Vp, Vq)): A(f"v_pk_fma_f32 v[{X}:{X+1}], v[{X}:{X+1}], v[12:13], v[{60+2*k}:{61+2*k}] op_sel:[0,0,0] op_sel_hi:[0,1,1] neg_lo:[0,0,1]")
        Ap0, Aq0, Ap1, Aq1 = 40, 42, 44, 46
        A(f"v_pk_add_f32 v[{Ap0}:{Ap0+1}], v[{Up}:{Up+1}], v[{Vp}:{Vp+1}]")
        A(f"v_pk_add_f32 v[{Aq0}:{Aq0+1}], v[{Uq}:{Uq+1}], v[{Vq}:{Vq+1}]")
        A(f"v_pk_add_f32 v[{Ap1}:{Ap1+1}], v[{Up}:{Up+1}], v[{Vp}:{Vp+1}] neg_lo:[0,1] neg_hi:[0,1]")
        A(f"v_pk_add_f32 v[{Aq1}:{Aq1+1}], v[{Uq}:{Uq+1}], v[{Vq}:{Vq+1}] neg_lo:[0,1] neg_hi:[0,1]")
        if rnd == 0:
            for X in (Ap0, Aq0, Ap1, Aq1): A(f"v_cndmask_b32_e64 v{X+1}, v{X+1}, 0, vcc")
        E, O, T = (48, 50), (52, 54), (56, 58)
        rows = ((Ap0, Aq0), (Ap1, Aq1))
        c = Q_C + 2*rnd
        for r, (P, Q) in enumerate(rows):
            A(f"v_pk_add_f32 v[{E[r]}:{E[r]+1}], v[{P}:{P+1}], v[{Q}:{Q+1}] neg_hi:[0,1]")
            A(f"v_pk_add_f32 v[{O[r]}:{O[r]+1}], v[{P}:{P+1}], v[{Q}:{Q+1}] neg_lo:[0,1]")
        for r in range(2): A(f"v_pk_mul_f32 v[{T[r]}:{T[r]+1}], v[{O[r]}:{O[r]+1}], v[{c}:{c+1}] op_sel:[1,1] op_sel_hi:[1,0]")
        for r in range(2): A(f"v_pk_fma_f32 v[{T[r]}:{T[r]+1}], v[{O[r]}:{O[r]+1}], v[{c}:{c+1}], v[{T[r]}:{T[r]+1}] op_sel:[0,0,0] op_sel_hi:[0,1,1] neg_lo:[0,0,1]")
        for r in range(2):
            A(f"v_pk_add_f32 v[{32+4*r}:{33+4*r}], v[{E[r]}:{E[r]+1}], v[{T[r]}:{T[r]+1}] neg_hi:[1,1]")
            A(f"v_pk_add_f32 v[{34+4*r}:{35+4*r}], v[{E[r]}:{E[r]+1}], v[{T[r]}:{T[r]+1}] neg_lo:[0,1] neg_hi:[0,1]")
        for r in range(2):
            A(f"v_cvt_pk_bf16_f32 v{60+2*r}, v{32+4*r}, v{33+4*r}")
            A(f"v_cvt_pk_bf16_f32 v{61+2*r}, v{34+4*r}, v{35+4*r}")
        for r in range(2):
            off = f" offset:{1280*r}" if r else ""
            A(f"ds_write_b32 v{Q_AP+rnd}, v{60+2*r}{off}")
            A(f"ds_write_b32 v{Q_AQ+rnd}, v{61+2*r}{off}")
    A("s_waitcnt lgkmcnt(0)")

def a3_core(A, vm, pWS, mid=None):
    st = R.st
    A.c("---- A3 core ----")
    A(f"v_bfe_u32 v4, v{R.vl}, 4, 1")
    A(f"v_mul_u32_u24 v4, 1280, v4")
    A(f"v_and_b32 v5, 15, v{R.vl}")
    A(f"v_lshl_add_u32 v4, v5, 2, v4")
    A(f"v_mul_u32_u24 v5, 160, v{R.vh}")
    A(f"s_mul_i32 s{st}, s{R.sw}, {ZBW}")
    A(f"s_add_u32 s{st}, s{st}, {L_ZB}")
    A(f"v_add3_u32 v4, v4, v5, s{st}")
    for i in range(4):
        for q in range(4):
            A(f"ds_read_b32 v{XA+4*i+q}, v4 offset:{320*i+40*q}")
    A(f"v_mov_b32 v6, {fb(0.5/(2048*640))}")
    A(f"v_mul_f32 v8, s{sG0}, v6")
    A(f"v_mul_f32 v10, s{sG1}, v6")
    A(f"v_sub_f32 v9, 0, v8")
    A(f"v_sub_f32 v11, 0, v10")
    A("s_waitcnt lgkmcnt(0)")
    fft320_core(A, tmp=(12, 14), mid=mid)
    A(f"s_mul_i32 s{st}, s{R.sw}, 2560")
    A(f"s_add_u32 s{st}, s{st}, {L_GO}")
    A(f"v_lshl_add_u32 v4, v{R.vh}, 6, v{R.vn}")
    A(f"v_lshl_add_u32 v4, v4, 2, s{st}")
    for i in range(3):
        if i == 2: A("s_mov_b64 exec, 0xffffffff")
        for r in range(2):
            sc = 8 + 2*r
            for jj in range(2):
                d = D2[r] + 4*i + 2*jj
                A(f"v_pk_mul_f32 v[{d}:{d+1}], v[{d}:{d+1}], v[{sc}:{sc+1}]")
                A(f"v_cvt_pk_bf16_f32 v{d}, v{d}, v{d+1}")
                A(f"ds_write_b32 v4, v{d} offset:{r*1280 + (128*i + 32*jj)*4}")
    A("s_mov_b64 exec, -1")
    A.srd(R.srdZ, pWS, SZ_GA, OFF_GA)
    A(f"v_lshl_add_u32 v4, v{R.vl}, 4, s{st}")
    A("s_waitcnt lgkmcnt(0)")
    for j in range(3): A(f"ds_read_b128 v[{16+4*j}:{19+4*j}], v4 offset:{1024*j}")
    A(f"s_lshl_b32 s{st}, s{R.srg}, 2")
    A(f"s_add_u32 s{st}, s{st}, s{R.sw}")
    A(f"s_mul_i32 s{st}, s{st}, 1280")
    A(f"v_lshlrev_b32 v4, 4, v{R.vl}")
    A(f"v_add_u32 v5, 1024, v4")
    A(f"v_add_u32 v6, {1024*1280 - 256}, v4")
    A(f"v_cmp_gt_u32 vcc, 16, v{R.vl}")
    A(f"v_cndmask_b32 v5, v6, v5, vcc")
    A(f"v_add_u32 v7, {1024*1280 + 48*16}, v4")
    A(f"v_mov_b32 v6, 0x40000000")
    A(f"v_cmp_gt_u32 vcc, 32, v{R.vl}")
    A(f"v_cndmask_b32 v7, v6, v7, vcc")
    A("s_waitcnt lgkmcnt(0)")
    A(f"buffer_store_dwordx4 v[16:19], v4, {srd(R.srdZ)}, s{st} offen{SC}")
    A(f"buffer_store_dwordx4 v[20:23], v5, {srd(R.srdZ)}, s{st} offen{SC}")
    A(f"buffer_store_dwordx4 v[24:27], v7, {srd(R.srdZ)}, s{st} offen{SC}")
    vm.issue('gast', 3)
```

```python
from asmlib import *
from layout import *

NST = 20
SPREAD = True
BAR2 = False
import os
RING = os.environ.get('RING', '36')
NXS, NWS = (4, 5) if RING == '45' else (3, 6)
XSLOT, WSLOT = 16384, 12288
WBASE = NXS*XSLOT
ACC = 64

class R:
    vxo = (230, 231, 232, 233)
    vwo = (234, 235, 236)
    vx = (237, 238, 239, 240)
    vw, vw2 = 241, 242
    vt = 56
    opA = (16, 36)
    opB = (28, 48)
    opF = 'v'
    srdX, srdW, srdH = 8, 12, 16
    sw = 20
    skx, skw = 21, 22
    smx, smw = 23, 24
    smt, sft = 25, 26
    st = 28

def setup(A, s_b, pBX, pWG, pWU, pWS):
    st, t = R.st, R.vt
    A.c("---- F1 setup ----")
    A(f"s_and_b32 s{st}, s{s_b}, 1")
    A(f"s_lshl_b32 s{st}, s{st}, 3")
    A(f"s_lshr_b32 s{st+1}, s{s_b}, 3")
    A(f"s_and_b32 s{st+1}, s{st+1}, 7")
    A(f"s_add_u32 s{R.smt}, s{st}, s{st+1}")
    A(f"s_lshr_b32 s{st+1}, s{s_b}, 1")
    A(f"s_and_b32 s{st+1}, s{st+1}, 3")
    A(f"s_lshl_b32 s{st+1}, s{st+1}, 2")
    A(f"s_lshr_b32 s{st+2}, s{s_b}, 6")
    A(f"s_add_u32 s{R.sft}, s{st+1}, s{st+2}")
    A.srd(R.srdX, pBX, 2048*640*2)
    A(f"s_cmp_lt_u32 s{R.sw}, 2")
    A(f"s_cselect_b32 s{R.srdW}, s{pWG}, s{pWU}")
    A(f"s_cselect_b32 s{R.srdW+1}, s{pWG+1}, s{pWU+1}")
    A(f"s_and_b32 s{R.srdW+1}, s{R.srdW+1}, 0xffff")
    A(f"s_mov_b32 s{R.srdW+2}, {hex(640*1536*2)}")
    A(f"s_mov_b32 s{R.srdW+3}, 0x20000")
    A(f"v_and_b32 v{t}, 63, v0")
    A(f"s_lshl_b32 s{st}, s{R.smt}, 7")
    A(f"s_lshl_b32 s{st+1}, s{R.sw}, 5")
    A(f"s_add_u32 s{st}, s{st}, s{st+1}")
    A(f"s_mul_i32 s{st}, s{st}, 1280")
    A(f"v_lshrrev_b32 v{t+1}, 3, v{t}")
    A(f"v_mul_u32_u24 v{t+1}, 1280, v{t+1}")
    A(f"v_add_u32 v{t+1}, s{st}, v{t+1}")
    A(f"v_lshrrev_b32 v{t+2}, 4, v{t}")
    A(f"v_xor_b32 v{t+2}, v{t+2}, v{t}")
    A(f"v_and_b32 v{t+2}, 7, v{t+2}")
    A(f"v_lshl_add_u32 v{R.vxo[0]}, v{t+2}, 4, v{t+1}")
    A(f"v_xor_b32 v{t+2}, 4, v{t+2}")
    A(f"v_lshl_add_u32 v{R.vxo[1]}, v{t+2}, 4, v{t+1}")
    A(f"v_add_u32 v{R.vxo[1]}, {8*1280-1024}, v{R.vxo[1]}")
    A(f"v_add_u32 v{R.vxo[2]}, {16*1280-2048}, v{R.vxo[0]}")
    A(f"v_add_u32 v{R.vxo[3]}, {16*1280-2048}, v{R.vxo[1]}")
    A(f"s_and_b32 s{st}, s{R.sw}, 1")
    A(f"s_mul_i32 s{st}, s{st}, {16*3072}")
    A(f"s_mul_i32 s{st+1}, s{R.sft}, 192")
    A(f"s_add_u32 s{st}, s{st}, s{st+1}")
    A(f"s_lshr_b32 s{st+1}, s{R.sw}, 1")
    A(f"s_mul_i32 s{st+1}, s{st+1}, 10")
    for j in range(3):
        A(f"v_add_u32 v{t+1}, {64*j}, v{t}")
        A(f"v_mul_u32_u24 v{t+2}, 5462, v{t+1}")
        A(f"v_lshrrev_b32 v{t+2}, 16, v{t+2}")
        A(f"v_mul_u32_u24 v{t+3}, 12, v{t+2}")
        A(f"v_sub_u32 v{t+3}, v{t+1}, v{t+3}")
        A(f"v_add_u32 v{t+3}, s{st+1}, v{t+3}")
        A(f"v_subrev_u32 v{t+4}, 12, v{t+3}")
        A(f"v_min_u32 v{t+3}, v{t+3}, v{t+4}")
        A(f"v_mul_u32_u24 v{t+2}, 3072, v{t+2}")
        A(f"v_lshl_add_u32 v{t+2}, v{t+3}, 4, v{t+2}")
        A(f"v_add_u32 v{t+2}, s{st}, v{t+2}")
        A(f"v_subrev_u32 v{R.vwo[j]}, {1024*j}, v{t+2}")
    A(f"s_lshl_b32 s{R.smx}, s{R.sw}, 12")
    A(f"s_mul_i32 s{R.smw}, s{R.sw}, 3072")
    A(f"s_add_u32 s{R.smw}, s{R.smw}, {WBASE}")

def setup_reads(A):
    st, t = R.st, R.vt
    A(f"v_and_b32 v{t}, 63, v0")
    A(f"s_lshr_b32 s{st}, s{R.sw}, 1")
    A(f"s_lshl_b32 s{st}, s{st}, 13")
    A(f"v_and_b32 v{t+1}, 31, v{t}")
    A(f"v_lshrrev_b32 v{t+2}, 5, v{t}")
    A(f"v_bfe_u32 v{t+3}, v{t+1}, 1, 3")
    A(f"v_xor_b32 v{t+3}, v{t+3}, v{t+2}")
    A(f"v_lshlrev_b32 v{t+4}, 7, v{t+1}")
    A(f"v_add_u32 v{t+4}, s{st}, v{t+4}")
    A(f"v_lshl_add_u32 v{R.vx[0]}, v{t+3}, 4, v{t+4}")
    for k in range(1, 4): A(f"v_xor_b32 v{R.vx[k]}, {32*k}, v{R.vx[0]}")
    A(f"s_and_b32 s{st}, s{R.sw}, 1")
    A(f"s_mul_i32 s{st+1}, s{st}, 96")
    A(f"s_add_u32 s{st+1}, s{st+1}, {WBASE}")
    A(f"v_lshrrev_b32 v{t+1}, 5, v{t}")
    A(f"v_lshlrev_b32 v{t+1}, 3, v{t+1}")
    A(f"v_bfe_u32 v{t+2}, v{t}, 2, 2")
    A(f"v_add_u32 v{t+1}, v{t+1}, v{t+2}")
    A(f"v_mul_u32_u24 v{t+1}, 192, v{t+1}")
    A(f"v_bfe_u32 v{t+2}, v{t}, 4, 1")
    A(f"v_lshl_add_u32 v{t+1}, v{t+2}, 4, v{t+1}")
    A(f"v_and_b32 v{t+2}, 1, v{t}")
    A(f"v_lshl_add_u32 v{t+1}, v{t+2}, 3, v{t+1}")
    A(f"v_bfe_u32 v{t+2}, v{t}, 1, 1")
    A(f"v_mul_u32_u24 v{t+3}, {6144+32}, v{t+2}")
    A(f"v_add_u32 v{t+1}, v{t+1}, v{t+3}")
    A(f"v_add_u32 v{R.vw}, s{st+1}, v{t+1}")
    A(f"s_mul_i32 s{st+1}, s{st}, 192")
    A(f"v_mul_u32_u24 v{t+3}, s{st+1}, v{t+2}")
    A(f"v_sub_u32 v{R.vw2}, v{R.vw}, v{t+3}")

def dma_x(c):
    L = []
    for j in range(4):
        off = f" offset:{1024*j}" if j else ""
        L.append([f"s_add_u32 m0, s{R.smx}, {(c % NXS)*XSLOT}", f"s_mov_b32 s{R.skx}, {c*128}",
                  f"buffer_load_dwordx4 v{R.vxo[j]}, {srd(R.srdX)}, s{R.skx} offen{off} lds"])
    return L
def dma_w(t):
    L = []
    for j in range(3):
        off = f" offset:{1024*j}" if j else ""
        L.append([f"s_add_u32 m0, s{R.smw}, {(t % NWS)*WSLOT}", f"s_mov_b32 s{R.skw}, {t*32*3072}",
                  f"buffer_load_dwordx4 v{R.vwo[j]}, {srd(R.srdW)}, s{R.skw} offen{off} lds"])
    return L

def reads(t, kk, setn):
    a0, b0 = R.opA[setn], R.opB[setn]
    vx = R.vx[2*(t & 1) + kk]
    xs = ((t >> 1) % NXS)*XSLOT
    wsl = (t % NWS)*WSLOT
    def rdA(tt):
        vw = R.vw2 if tt == 2 else R.vw
        return [f"ds_read_b64_tr_b16 {R.opF}[{a0+4*tt+2*rd}:{a0+4*tt+2*rd+1}], v{vw} offset:{wsl + kk*3072 + rd*768 + tt*32}" for rd in range(2)]
    def rdB(tt):
        return [f"ds_read_b128 {R.opF}[{b0+4*tt}:{b0+4*tt+3}], v{vx} offset:{xs + 4096*tt}"]
    return rdA(0) + rdB(0) + rdB(1) + rdA(1) + rdA(2)

def mfmas(setn, first=False):
    a0, b0 = R.opA[setn], R.opB[setn]
    L = []
    for tt in range(3):
        for t in range(2):
            d = ACC + (tt*2 + t)*16
            L.append(f"v_mfma_f32_32x32x16_bf16 v[{d}:{d+15}], {R.opF}[{a0+4*tt}:{a0+4*tt+3}], {R.opF}[{b0+4*t}:{b0+4*t+3}], " + ("0" if first else f"v[{d}:{d+15}]"))
    return L

def issue(A, vm, kind, i):
    for g in (dma_x(i) if kind == "x" else dma_w(i)): A(g)
    vm.issue(f"{kind}{i}", 4 if kind == "x" else 3)

def l2_prefetch(A, vm, pWG, pWU):
    A.c("---- L2 prefetch of Wg / Wu ----")
    A(f"s_cmp_lt_u32 s{R.sw}, 2")
    A(f"s_cselect_b32 s4, s{pWG}, s{pWU}")
    A(f"s_cselect_b32 s5, s{pWG+1}, s{pWU+1}")
    A(f"s_and_b32 s5, s5, 0xffff")
    A(f"s_mov_b32 s6, {hex(640*1536*2)}")
    A(f"s_mov_b32 s7, 0x20000")
    A(f"s_lshr_b32 s28, s98, 3")
    A(f"s_lshl_b32 s28, s28, 1")
    A(f"s_and_b32 s29, s{R.sw}, 1")
    A(f"s_add_u32 s28, s28, s29")
    A(f"s_mul_i32 s28, s28, 60")
    A(f"v_and_b32 v56, 63, v0")
    A(f"v_min_u32 v56, 59, v56")
    A(f"v_add_u32 v56, s28, v56")
    A(f"v_mul_u32_u24 v57, 10923, v56")
    A(f"v_lshrrev_b32 v57, 16, v57")
    A(f"v_mul_u32_u24 v58, 6, v57")
    A(f"v_sub_u32 v58, v56, v58")
    A(f"v_mul_u32_u24 v57, 3072, v57")
    A(f"v_lshl_add_u32 v57, v58, 7, v57")
    A(f"s_lshr_b32 s28, s98, 1")
    A(f"s_and_b32 s28, s28, 3")
    A(f"s_mul_i32 s28, s28, 768")
    A(f"buffer_load_dword v229, v57, s[4:7], s28 offen")
    vm.issue('pf', 1)

def x_prefetch(A, vm, first_chunk=3):
    A.c("---- L2 prefetch of x ----")
    A(f"s_lshr_b32 s28, s98, 3")
    A(f"s_lshl_b32 s28, s28, 2")
    A(f"s_add_u32 s28, s28, s{R.sw}")
    A(f"s_lshl_b32 s28, s28, 6")
    A(f"v_and_b32 v56, 63, v0")
    A(f"v_add_u32 v56, s28, v56")
    A(f"v_lshrrev_b32 v57, 10, v56")
    A(f"v_add_u32 v57, {first_chunk}, v57")
    A(f"v_min_u32 v57, 9, v57")
    A(f"v_and_b32 v56, 1023, v56")
    A(f"v_mul_u32_u24 v56, 1280, v56")
    A(f"v_lshl_add_u32 v56, v57, 7, v56")
    A(f"s_and_b32 s28, s98, 1")
    A(f"s_mul_i32 s28, s28, {1024*1280}")
    A(f"buffer_load_dword v229, v56, {srd(R.srdX)}, s28 offen")
    vm.issue('pfx', 1)

def main(A, vm, issued, fill=None, after_barrier=None, pause=None, late=None, extra_need=None, before_barrier=None, weave=None):
    fill = list(fill or []); after_barrier = after_barrier or {}; pause = pause or {}; extra_need = extra_need or {}; before_barrier = before_barrier or {}
    A(f"s_waitcnt vmcnt({vm.wait(({'x0','w0','w1'} if BAR2 else {'x0','w0'}) | set(extra_need.get(-1, ())))})")
    A("s_barrier")
    if -1 in after_barrier: after_barrier[-1]()
    A(reads(0, 0, 0))
    rdpos = ((0, 3), (1, 3), (2, 2))
    def split(rd):
        g = [[] for _ in range(6)]
        k = 0
        for gi, n in rdpos:
            g[gi] += [(x, None) for x in rd[k:k+n]]; k += n
        return g
    def addfill(g, n=1, start=3):
        for gi in range(start, 6):
            k = n if len(g[gi]) < 2 else max(0, n - 1)
            for _ in range(k):
                if fill: g[gi].append((fill.pop(0), None))
    st = {"queue": [], "need_reads0": False}
    def enqueue(kind, i):
        atoms = dma_x(i) if kind == "x" else dma_w(i)
        st["queue"].extend((ins, f"{kind}{i}") for ins in atoms)
        issued.add((kind, i))
    for k in (late or []): enqueue(*k)
    def drain(g, slots):
        for gi in slots:
            if st["queue"]:
                ins, tag = st["queue"].pop(0)
                g[gi] += [(x, None) for x in ins[:-1]] + [(ins[-1], tag)]
    def add_bundle(g, atoms):
        n = len(atoms)
        for k, (lines, tag) in enumerate(atoms):
            gi = min(5, (k*6)//n)
            g[gi] += [(x, None) for x in lines[:-1]] + [(lines[-1], tag)]
    def emit(mf, g):
        for i, m in enumerate(mf):
            A(m)
            for line, tag in g[i]:
                A(line)
                if tag: vm.issue(tag)
    def stage(t, bundles):
        A.c(f"F1 stage {t}")
        queue = st["queue"]
        if st["need_reads0"]:
            A(reads(t, 0, 0)); st["need_reads0"] = False
        g = split(reads(t, 1, 1))
        many = len(queue) > 4
        drain(g, (0, 1, 2, 3, 4, 5) if many else (1, 3, 5))
        if (t, 'A') in bundles: add_bundle(g, bundles[(t, 'A')])
        addfill(g)
        A("s_waitcnt lgkmcnt(0)")
        emit(mfmas(0, first=(t == 0)), g)
        if t + 1 < NST:
            has_bar = (not BAR2) or (t & 1)
            if has_bar:
                need = {f'w{t+1}'}
                if BAR2 and t + 2 < NST: need.add(f'w{t+2}')
                if (t + 1) % 2 == 0: need.add(f'x{(t+1)//2}')
                need |= set(extra_need.get(t, ()))
                while any(tag in need for _, tag in queue):
                    ins, tag = queue.pop(0); A(ins); vm.issue(tag)
                A(f"s_waitcnt vmcnt({vm.wait(need)}) lgkmcnt(0)")
                if t in before_barrier: before_barrier[t]()
                A("s_barrier")
            else:
                assert t not in before_barrier and t not in extra_need, t
                A("s_waitcnt lgkmcnt(0)")
            hook = []
            if t in after_barrier:
                keep = A.l; A.l = []
                after_barrier[t]()
                hook, A.l = A.l, keep
                if not SPREAD or any(l.strip().endswith(":") or "s_cbranch" in l or "s_waitcnt" in l for l in hook):
                    A.l += hook; hook = []
            paused = t in pause
            g = [[] for _ in range(6)] if paused else split(reads(t+1, 0, 0))
            if hook:
                hook = [l.strip() for l in hook if not l.strip().startswith(";")]
                atoms_, cur, masked = [], [], False
                for l in hook:
                    cur.append(l)
                    if l.startswith("s_mov_b64 exec"): masked = not l.endswith("-1")
                    if not masked: atoms_.append(cur); cur = []
                assert not cur
                ng = 4
                per = -(-len(hook)//ng)
                gi, n = 0, 0
                for at in atoms_:
                    g[gi] += [(x, None) for x in at]; n += len(at)
                    if n >= per*(gi + 1) and gi < ng - 1: gi += 1
            if (t & 1) and (t >> 1) + NXS < NST//2 and ("x", (t >> 1) + NXS) not in issued: enqueue("x", (t >> 1) + NXS)
            if BAR2:
                if t & 1:
                    for tw in (t - 1 + NWS, t + NWS):
                        if tw < NST and ("w", tw) not in issued: enqueue("w", tw)
            elif t + NWS < NST and ("w", t + NWS) not in issued: enqueue("w", t + NWS)
            many = len(queue) > (3 if BAR2 else 4)
            drain(g, (4, 5) if hook else ((0, 1, 2, 3, 4, 5) if many else (1, 3, 5)))
            if (t, 'B') in bundles:
                assert not any("buffer_" in x for lines, _ in bundles[(t, 'B')] for x in lines) or not hook
                add_bundle(g, bundles[(t, 'B')])
            addfill(g)
            emit(mfmas(1), g)
            if paused:
                pause[t](); st["need_reads0"] = True
        else:
            A("s_waitcnt lgkmcnt(0)")
            A(mfmas(1))
    t = 0
    while t < NST:
        if weave and t == weave["ts"]:
            plain, join = A.label("plain"), A.label("join")
            snap = (list(vm.q), list(st["queue"]), st["need_reads0"], set(issued), list(fill))
            weave["skip"](plain)
            for tt in range(weave["ts"], weave["te"] + 1): stage(tt, weave["bundles"])
            A(f"s_branch {join}")
            qa = list(vm.q); end_a = (list(st["queue"]), st["need_reads0"])
            vm.q, st["queue"], st["need_reads0"] = list(snap[0]), list(snap[1]), snap[2]
            issued.clear(); issued.update(snap[3]); fill[:] = snap[4]
            A(f"{plain}:")
            for tt in range(weave["ts"], weave["te"] + 1): stage(tt, {})
            A(f"{join}:")
            assert end_a == (list(st["queue"]), st["need_reads0"])
            mk = weave["mark"]
            last = max(i for i, x in enumerate(qa) if x == mk)
            k = len(qa) - 1 - last
            assert vm.q[len(vm.q)-k:] == qa[last+1:] if k else True
            vm.q = vm.q[:len(vm.q)-k] + ["?" + mk] + vm.q[len(vm.q)-k:]
            t = weave["te"] + 1
            continue
        stage(t, {})
        t += 1
    assert not st["queue"] and not fill, (len(st["queue"]), len(fill))

def epilogue(A, vm, pWS, sc=" sc1", between=None):
    st, t = R.st, R.vt
    A.c("---- F1 epilogue ----")
    A.srd(R.srdH, pWS, SZ_H, OFF_H)
    A(f"s_lshr_b32 s{st}, s{R.sw}, 1")
    A(f"s_lshl_b32 s{st}, s{st}, 1")
    A(f"s_lshl_b32 s{st+1}, s{R.smt}, 2")
    A(f"s_add_u32 s{st}, s{st}, s{st+1}")
    A(f"s_mul_i32 s{st}, s{st}, 96")
    A(f"s_mul_i32 s{st+1}, s{R.sft}, 6")
    A(f"s_add_u32 s{st}, s{st}, s{st+1}")
    A(f"s_and_b32 s{st+1}, s{R.sw}, 1")
    A(f"s_mul_i32 s{st+1}, s{st+1}, 3")
    A(f"s_add_u32 s{st}, s{st}, s{st+1}")
    A(f"s_lshl_b32 s{st}, s{st}, 10")
    A(f"v_and_b32 v{t}, 63, v0")
    A(f"v_lshlrev_b32 v{t}, 4, v{t}")
    A(f"s_mov_b32 s{st+2}, 0xbfb8aa3b")
    A(f"s_mov_b32 s{st+3}, 0xbfb8aa3b")
    A.nop(4)
    E, O = 16, 32
    for tt in range(3):
        for tc in range(2):
            d = ACC + (tt*2 + tc)*16
            o = O + 4*((tt*2+tc) & 1)
            gi = [0, 2, 8, 10]
            for k, g in enumerate(gi): A(f"v_pk_mul_f32 v[{E+2*k}:{E+2*k+1}], v[{d+g}:{d+g+1}], s[{st+2}:{st+3}]")
            for k in range(8): A(f"v_exp_f32 v{E+k}, v{E+k}")
            for k, g in enumerate(gi): A(f"v_pk_mul_f32 v[{d+g+4}:{d+g+5}], v[{d+g}:{d+g+1}], v[{d+g+4}:{d+g+5}]")
            for k in range(4): A(f"v_pk_add_f32 v[{E+2*k}:{E+2*k+1}], v[{E+2*k}:{E+2*k+1}], 1.0 op_sel_hi:[1,0]")
            for k in range(8): A(f"v_rcp_f32 v{E+k}, v{E+k}")
            A("s_nop 0")
            for k, g in enumerate(gi): A(f"v_pk_mul_f32 v[{d+g+4}:{d+g+5}], v[{d+g+4}:{d+g+5}], v[{E+2*k}:{E+2*k+1}]")
            for k, g in enumerate(gi): A(f"v_cvt_pk_bf16_f32 v{o+k}, v{d+g+4}, v{d+g+5}")
            off = (tc*96 + tt)*1024
            A(f"s_add_u32 s{st+1}, s{st}, {off}")
            A(f"buffer_store_dwordx4 v[{o}:{o+3}], v{t}, {srd(R.srdH)}, s{st+1} offen{sc}")
            vm.issue('hst')
            if between: between(tt*2 + tc)
```

```python
import sys, os
sys.path.insert(0, os.path.dirname(os.path.abspath(__file__)))
from asmlib import *
from layout import *
import f1, f2, g2, aux, hazard

NAME = "gated_mix__spectral_gfnet__swiglu_ffn__prompt_kernel"
pAX, pWR, pWI, pBX, pWG, pWU, pWD, pGW, pOUT, pDBG, pWS = 68, 70, 72, 74, 76, 78, 80, 82, 84, 86, 88
sNONCE, srdF, sSPIN, sTMP, sID = 90, 92, 96, 97, 98
srdD = 0
SPIN_MAX = 20000
import os
if os.environ.get('NOSPIN'): SPIN_MAX = 0

class Gen:
    def __init__(self, stamps=False, order="AB", gemm_first=True, exp="", ta2=11, tf1=-1, d2=2, nwa2=7, early3=True, npre=3, dep2at=9, wput=2, wputr=4, codepf=1, tlbpf=0, twt=-1, wsbase=0, map48=True, ahead=4, pro=2, xpf=None, outsc='', dbgsel=None, spread=True, dyn=False, lean=0, w1=0, wepi=3, pk2=True, cpfirst=True, zfirst=False, ovl=True, plead=2, p3r=-1, rgmap=True, gw=False, early0=1, hsc=' sc1', f3now=False, p2st=17, pp=False, elem1st=False, f4s=(1, 6, 10), wl2=True, bar2=False, wspad=16, map162=False):
        f1.MAP162 = map162
        aux.WSG = 8*192 + wspad
        f1.BAR2 = bar2
        self.wl2 = wl2
        self.f4s = f4s
        self.elem1st = elem1st
        self.pp = pp
        self.p2st = p2st
        self.f3now = f3now
        self.hsc = hsc
        self.early0 = early0
        self.gw = gw
        self.rgmap = rgmap
        self.plead = plead; self.p3r = p3r
        f2.OVL = ovl
        self.zfirst = zfirst
        self.cpfirst = cpfirst
        aux.PK2 = pk2
        self.wepi = wepi
        self.w1 = w1
        if w1:
            f1.R.opF = 'a'; f1.R.opA = (0, 20); f1.R.opB = (12, 32)
        else:
            f1.R.opF = 'v'; f1.R.opA = (16, 36); f1.R.opB = (28, 48)
        self.lean = lean
        self.dyn = dyn and stamps != 'dbg'
        f1.SPREAD = spread
        f2.OUTSC = outsc
        self.xpf = xpf
        self.pro = pro
        f2.MAP48 = map48; f2.AHEAD = ahead
        self.wsbase = wsbase
        self.twt = twt
        self.tlbpf = tlbpf
        self.codepf = codepf
        self.wput = wput; self.wputr = wputr
        self.dep2at = dep2at
        self.early3 = early3; self.npre = npre
        self.exp = exp; self.ta2 = ta2; self.tf1 = tf1; self.d2 = d2; self.nwa2 = nwa2
        self.A = Asm("K"); self.stamps = stamps; self.ns = 0; self.names = {}
        self.gemm_first = gemm_first
        self.dbg_sel = {"gemm": [(0,"start",1),(1,"consts",0),(2,"core",0),(3,"a1",0),(4,"preps",0),(5,"flag1",0),(6,"dep1",0),(7,"a2 start",0),(8,"a2 end",0),
                                 (9,"f1 loop end",0),(10,"f1 epi",0),(11,"dep2",0),(12,"a3 elem",0),(13,"a3 core",0),(14,"f2 loop end",0),(15,"end",0)]}
        if dbgsel: self.dbg_sel = {'gemm': [(i, n, 1 if i == 0 else 0) for i, n in enumerate(dbgsel)]}
        g2.ORDER = order; g2.STG = g2.stages()
    def stamp(self, name=None):
        if not self.stamps: return
        if self.stamps == "min" and name not in ("start", "end"): return
        A = self.A
        A("s_memrealtime s[100:101]")
        A("s_waitcnt lgkmcnt(0)")
        A(f"v_writelane_b32 v255, s100, {self.ns}")
        self.names.setdefault(self.role, []).append((self.ns, name))
        self.ns += 1
    def dump_stamps(self):
        if not self.stamps: return
        A = self.A
        if self.stamps == "dbg":
            sel = self.dbg_sel[self.role]
            A("s_waitcnt vmcnt(0) lgkmcnt(0)")
            A.srd(8, pDBG, 256)
            lab = A.label("nd")
            A("s_cmp_lg_u32 s20, 0")
            A(f"s_cbranch_scc1 {lab}")
            names = {nm: idx for idx, nm in self.names[self.role]}
            A("v_mov_b32 v2, 0")
            A("v_mov_b32 v3, 0x40000000")
            for slot, nm, inv in sel:
                A(f"v_readlane_b32 s30, v255, {names[nm]}")
                if inv: A("s_not_b32 s30, s30")
                A(f"s_mov_b32 s31, {4*slot}")
                A(f"v_writelane_b32 v2, s30, {slot}")
                A(f"v_writelane_b32 v3, s31, {slot}")
            A("buffer_atomic_umax v2, v3, s[8:11], 0 offen")
            A(f"{lab}:")
            return
        A("s_waitcnt vmcnt(0) lgkmcnt(0)")
        A.srd(8, pDBG, 1 << 20)
        A("v_lshlrev_b32 v1, 2, v0")
        A(f"s_lshl_b32 s30, s{sID}, 10")
        A("s_add_u32 s30, s30, 4096")
        A("buffer_store_dword v255, v1, s[8:11], s30 offen")
    def flag_store(self, off, s_idx):
        A = self.A
        lab = A.label("sig")
        A(f"s_cmp_lg_u32 s20, 0")
        A(f"s_cbranch_scc1 {lab}")
        A(f"s_lshl_b32 s{sTMP}, s{s_idx}, 2")
        A(f"s_add_u32 s{sTMP}, s{sTMP}, {off}")
        A(f"v_mov_b32 v249, s{sNONCE}")
        A(f"v_mov_b32 v254, 0")
        A("s_mov_b64 exec, 1")
        A(f"buffer_store_dword v249, v254, {srd(srdF)}, s{sTMP} offen sc1")
        A("s_mov_b64 exec, -1")
        A(f"{lab}:")
    def flag_store_all(self, vm, off, s_idx):
        A = self.A
        A(f"s_lshl_b32 s{sTMP}, s{s_idx}, 2")
        A(f"s_add_u32 s{sTMP}, s{sTMP}, {off}")
        A(f"s_cmp_eq_u32 s20, 0")
        A(f"s_cselect_b32 s{sTMP}, s{sTMP}, 0x40000000")
        A(f"v_mov_b32 v249, s{sNONCE}")
        A(f"v_mov_b32 v254, 0")
        A("s_mov_b64 exec, 1")
        A(f"buffer_store_dword v249, v254, {srd(srdF)}, s{sTMP} offen sc1")
        A("s_mov_b64 exec, -1")
        vm.issue("flag")
    def arrive(self, vm, phase):
        A = self.A
        off = (OFF_FLAG1, OFF_FLAG2, OFF_FLAG1B)[phase]
        A(f"s_lshl_b32 s{sTMP}, s{sID}, 2")
        A(f"s_add_u32 s{sTMP}, s{sTMP}, {off}")
        A(f"s_cmp_eq_u32 s20, 0")
        A(f"s_cselect_b32 s{sTMP}, s{sTMP}, 0x40000000")
        A(f"v_mov_b32 v249, s{sNONCE}")
        A(f"v_and_b32 v254, 7, v0")
        A(f"v_lshlrev_b32 v254, 10, v254")
        A("s_mov_b64 exec, 0xff")
        A(f"buffer_store_dword v249, v254, {srd(srdF)}, s{sTMP} offen sc1")
        A("s_mov_b64 exec, -1")
        vm.issue("flag")
    def cpoll_issue(self, vm, phase):
        A = self.A
        off = (OFF_FLAG1, OFF_FLAG2, OFF_FLAG1B)[phase]
        A(f"v_and_b32 v254, 63, v0")
        A(f"v_lshlrev_b32 v254, 4, v254")
        A(f"s_and_b32 s{sTMP}, s{sID}, 7")
        A(f"s_lshl_b32 s{sTMP}, s{sTMP}, 10")
        A(f"s_add_u32 s{sTMP}, s{sTMP}, {off}")
        A(f"s_cmp_eq_u32 s20, 0")
        A(f"s_cselect_b32 s{sTMP}, s{sTMP}, 0x40000000")
        A(f"buffer_load_dwordx4 v[250:253], v254, {srd(srdF)}, s{sTMP} offen sc1")
        vm.issue("cpoll")
    def cpoll_check(self, vm, phase):
        A = self.A
        off = (OFF_FLAG1, OFF_FLAG2, OFF_FLAG1B)[phase]
        lo, ok = A.label("w"), A.label("wok")
        A(f"s_waitcnt vmcnt({vm.wait({'cpoll'})})")
        A(f"s_cmp_lg_u32 s20, 0")
        A(f"s_cbranch_scc1 {ok}")
        A(f"s_mov_b32 s{sSPIN}, 0")
        A(f"{lo}:")
        for k in range(4): A(f"v_xor_b32 v{250+k}, s{sNONCE}, v{250+k}")
        A(f"v_or3_b32 v250, v250, v251, v252")
        A(f"v_or_b32 v250, v250, v253")
        A(f"v_cmp_ne_u32 vcc, 0, v250")
        A(f"s_cbranch_vccz {ok}")
        A(f"s_add_u32 s{sSPIN}, s{sSPIN}, 1")
        A(f"s_cmp_gt_u32 s{sSPIN}, {SPIN_MAX}")
        A(f"s_cbranch_scc1 {ok}")
        A(f"v_and_b32 v254, 63, v0")
        A(f"v_lshlrev_b32 v254, 4, v254")
        A(f"s_and_b32 s{sTMP}, s{sID}, 7")
        A(f"s_lshl_b32 s{sTMP}, s{sTMP}, 10")
        A(f"s_add_u32 s{sTMP}, s{sTMP}, {off}")
        if self.pp:
            A(f"buffer_load_dwordx4 v[244:247], v254, {srd(srdF)}, s{sTMP} offen sc1")
            A("s_sleep 6")
            A(f"buffer_load_dwordx4 v[250:253], v254, {srd(srdF)}, s{sTMP} offen sc1")
            A("s_waitcnt vmcnt(1)")
            for k in range(4): A(f"v_xor_b32 v{244+k}, s{sNONCE}, v{244+k}")
            A(f"v_or3_b32 v244, v244, v245, v246")
            A(f"v_or_b32 v244, v244, v247")
            A(f"v_cmp_ne_u32 vcc, 0, v244")
            A(f"s_cbranch_vccz {ok}")
            A("s_waitcnt vmcnt(0)")
        else:
            A("s_sleep 2")
            A(f"buffer_load_dwordx4 v[250:253], v254, {srd(srdF)}, s{sTMP} offen sc1")
            A("s_waitcnt vmcnt(0)")
        A(f"s_branch {lo}")
        A(f"{ok}:")
    def flag_store_wave(self, vm, off, s_idx):
        A = self.A
        A(f"s_lshl_b32 s{sTMP}, s{s_idx}, 2")
        A(f"s_add_u32 s{sTMP}, s{sTMP}, {off}")
        A(f"v_mov_b32 v249, s{sNONCE}")
        A(f"v_mov_b32 v254, 0")
        A("s_mov_b64 exec, 1")
        A(f"buffer_store_dword v249, v254, {srd(srdF)}, s{sTMP} offen sc1")
        A("s_mov_b64 exec, -1")
        vm.issue("flag")
    def signal(self, vm, off, s_idx):
        A = self.A
        A("s_waitcnt vmcnt(0)")
        A("s_barrier")
        vm.q = []
        self.flag_store_all(vm, off, s_idx)
    def poll_issue(self, vm, off):
        A = self.A
        A(f"v_and_b32 v254, 63, v0")
        A(f"v_lshlrev_b32 v254, 4, v254")
        A(f"s_mov_b32 s{sTMP}, {off}")
        A(f"buffer_load_dwordx4 v[250:253], v254, {srd(srdF)}, s{sTMP} offen sc1")
        vm.issue("poll")
    def poll_check(self, vm, off):
        A = self.A
        lo, ok = A.label("w"), A.label("wok")
        A(f"s_waitcnt vmcnt({vm.wait({'poll'})})")
        A(f"s_mov_b32 s{sSPIN}, 0")
        A(f"{lo}:")
        for k in range(4): A(f"v_xor_b32 v{250+k}, s{sNONCE}, v{250+k}")
        A(f"v_or3_b32 v250, v250, v251, v252")
        A(f"v_or_b32 v250, v250, v253")
        A(f"v_cmp_ne_u32 vcc, 0, v250")
        A(f"s_cbranch_vccz {ok}")
        A(f"s_add_u32 s{sSPIN}, s{sSPIN}, 1")
        A(f"s_cmp_gt_u32 s{sSPIN}, {SPIN_MAX}")
        A(f"s_cbranch_scc1 {ok}")
        A("s_sleep 4")
        A(f"s_mov_b32 s{sTMP}, {off}")
        A(f"buffer_load_dwordx4 v[250:253], v254, {srd(srdF)}, s{sTMP} offen sc1")
        A("s_waitcnt vmcnt(0)")
        A(f"s_branch {lo}")
        A(f"{ok}:")
    def wait_all(self, vm, off):
        self.poll_issue(vm, off); self.poll_check(vm, off)
    def wait_idx(self, vm, off, v_idx_code):
        A = self.A
        lo, ok = A.label("w"), A.label("wok")
        v_idx_code()
        A(f"s_mov_b32 s{sSPIN}, 0")
        A(f"s_mov_b32 s{sTMP}, {off}")
        A(f"{lo}:")
        A(f"buffer_load_dword v250, v254, {srd(srdF)}, s{sTMP} offen sc1")
        A("s_waitcnt vmcnt(0)")
        A(f"v_cmp_ne_u32 vcc, s{sNONCE}, v250")
        A(f"s_cbranch_vccz {ok}")
        A(f"s_add_u32 s{sSPIN}, s{sSPIN}, 1")
        A(f"s_cmp_gt_u32 s{sSPIN}, {SPIN_MAX}")
        A(f"s_cbranch_scc1 {ok}")
        A("s_sleep 4")
        A(f"s_branch {lo}")
        A(f"{ok}:")
        vm.q = []

    def body(self):
        A = self.A; self.role = "gemm"; self.ns = 0
        vm = VM()
        TA2 = self.ta2
        self.stamp("start")
        X = self.exp.split("+")
        aux.setup(A, pAX, pWR, pWI, pWD, pGW, pWS)
        issued = set()
        def iss(*ks):
            for k in ks:
                f1.issue(A, vm, *k); issued.add(k)
        def mid():
            if "nopf" not in X and "pflate" not in X and "pfmid" not in X and "pf2" not in X and "pf0" not in X and "pf3" not in X and "pf4" not in X: f1.l2_prefetch(A, vm, pWG, pWU)
        if "pf0" in X: f1.l2_prefetch(A, vm, pWG, pWU)
        aux.issue_loads(A, vm, mid, wd=("wdlate" not in X and "wdmid" not in X and "wd2" not in X and "wd3" not in X))
        self.stamp("issued")
        aux.consts_a1(A)
        if self.lean == 0:
            f1.setup(A, sID, pAX, pWG, pWU, pWS)
            aux.setup_out(A, pWS)
            f1.setup_reads(A)
            A(aux.consts_a2_fill())
            aux.phase1_pre(A)
        if "wdmid" in X: aux.issue_wd(A, vm)
        if "pfmid" in X: f1.l2_prefetch(A, vm, pWG, pWU)
        self.stamp("consts")
        aux.a1_core(A, vm)
        self.stamp("core")
        if self.lean >= 1:
            A('s_waitcnt lgkmcnt(0)')
            aux.setup_out(A, pWS)
            aux.phase1_pre(A)
            f1.setup(A, sID, pAX, pWG, pWU, pWS)
            f1.setup_reads(A)
            if self.lean == 1: A(aux.consts_a2_fill())
        if "wdlate" in X: aux.issue_wd(A, vm)
        if "pflate" in X: f1.l2_prefetch(A, vm, pWG, pWU)
        A("s_waitcnt lgkmcnt(0)")
        A(f"s_add_u32 s{sNONCE}, s{sNONCE}, 1")
        if self.elem1st:
            aux.a1_elem(A, vm)
            self.stamp("a1e")
            if self.early0 >= 1: iss(("x", 0), ("w", 0))
            if self.early0 >= 2: iss(("w", 1))
            A(f"s_waitcnt vmcnt({vm.wait({'ws', 'gw', 'wd'})})")
            self.stamp("wswait")
            A("s_barrier")
        else:
            A(f"s_waitcnt vmcnt({vm.wait({'ws', 'gw'} | (set() if ('wdlate' in X or 'wdmid' in X or 'wd2' in X or 'wd3' in X) else {'wd'}))})")
            if "pf2" in X: f1.l2_prefetch(A, vm, pWG, pWU)
            if "wd2" in X: aux.issue_wd(A, vm)
            if self.early0 >= 1: iss(("x", 0), ("w", 0))
            if self.early0 >= 2: iss(("w", 1))
            self.stamp("wswait")
            aux.a1_elem(A, vm)
        self.stamp("a1")
        if "nop1" not in self.exp and "nopreps" not in self.exp:
            late_dma = "pf3" in X or "pf4" in X
            if not late_dma and self.early0 < 1: iss(("x", 0), ("w", 0))
            self.stamp("x0w0")
            aux.wprep(A, vm)
            self.stamp("wp")
            if not late_dma and self.early0 < 2: iss(("w", 1))
            if "wdlate" in X or "wdmid" in X:
                A(f"s_waitcnt vmcnt({vm.wait({'wd'})})")
                A("s_barrier")
            if self.twt < 0: aux.wtprep(A, vm)
            self.stamp("wprep")
            if late_dma:
                if "pf3" in X:
                    iss(("x", 0), ("w", 0)); f1.l2_prefetch(A, vm, pWG, pWU); iss(("w", 1))
                else:
                    f1.l2_prefetch(A, vm, pWG, pWU); iss(("x", 0), ("w", 0), ("w", 1))
            iss(("x", 1), ("w", 2))
            if self.pro >= 1 and f1.NWS == 6: iss(("w", 3))
            if self.pro >= 2: iss(("x", 2))
            if not self.gw: aux.gate(A, vm)

        if 'nop1' in self.exp: A('s_waitcnt vmcnt(0)')
        self.stamp("preps")
        class Hooks(dict):
            def __setitem__(self, k, fn):
                old = self.get(k)
                dict.__setitem__(self, k, fn if old is None else (lambda o=old, n=fn: (o(), n())))
        class Tags(dict):
            def __setitem__(self, k, tags):
                dict.__setitem__(self, k, set(self.get(k, ())) | set(tags))
        after, pause, extra, before = Hooks(), Hooks(), Tags(), Hooks()
        extra[self.tf1] = {'st'}
        after[self.tf1] = lambda: (self.arrive(vm, 0), self.stamp("flag1"), aux.issue_wd(A, vm) if 'wd3' in X else None)
        if self.gw:
            after[0] = lambda: aux.gate_reads(A)
            after[1] = lambda: aux.gate(A, vm, 1)
            after[2] = lambda: aux.gate(A, vm, 2)
        if self.xpf is not None: after[self.xpf] = lambda: f1.x_prefetch(A, vm)
        if self.dyn:
            TT = TA2 - 6
            def t_take():
                A.srd(4, pDBG, 256)
                A(f"s_and_b32 s{sTMP}, s{sID}, 7")
                A(f"s_lshl_b32 s{sTMP}, s{sTMP}, 5")
                A(f"s_cmp_eq_u32 s20, 0")
                A(f"s_cselect_b32 s{sTMP}, s{sTMP}, 0x40000000")
                A(f"v_mov_b32 v248, 1")
                A(f"v_mov_b32 v247, 0")
                A("s_mov_b64 exec, 1")
                A(f"buffer_atomic_add v248, v247, s[4:7], s{sTMP} offen sc0 sc1")
                A("s_mov_b64 exec, -1")
                vm.issue("tick")
            def t_share():
                A(f"s_lshl_b32 s{sTMP}, s20, 6")
                A(f"s_add_u32 s{sTMP}, s{sTMP}, {aux.L_GW}")
                A(f"v_mov_b32 v247, s{sTMP}")
                A("s_mov_b64 exec, 1")
                A("ds_write_b32 v247, v248")
                A("s_mov_b64 exec, -1")
                A("s_waitcnt lgkmcnt(0)")
            def t_read():
                A(f"v_mov_b32 v247, {aux.L_GW}")
                A("ds_read_b32 v248, v247")
            def t_use():
                A(f"v_readfirstlane_b32 s{aux.R.sa2}, v248")
                A(f"s_lshl_b32 s{aux.R.sa2}, s{aux.R.sa2}, 3")
                A(f"s_and_b32 s{sTMP}, s{sID}, 7")
                A(f"s_add_u32 s{aux.R.sa2}, s{aux.R.sa2}, s{sTMP}")
            after[TT] = t_take
            extra[TT+2] = {"tick"}
            before[TT+2] = t_share
            after[TT+2] = t_read
            after[TT+3] = t_use
        else:
            after[0] = lambda: A(f"s_mov_b32 s{aux.R.sa2}, s{sID}")
        def a2_issue():
            A(f"s_or_b32 s{sTMP}, s{sID}, s20")
            A(f"s_cmp_eq_u32 s{sTMP}, 0")
            A(f"s_cselect_b32 s{sTMP}, 0, 0x40000000")
            A(f"v_mov_b32 v249, s{sNONCE}")
            A(f"v_mov_b32 v254, 0")
            A("s_mov_b64 exec, 1")
            A(f"buffer_store_dword v249, v254, {srd(srdF)}, s{sTMP} offen sc1")
            A("s_mov_b64 exec, -1")
            vm.issue("flag")
            self.stamp("dep1")
            aux.a2_loads(A, vm, pWS)
            if not self.w1: f2.setup_w(A, sID, pWS)
        NW_A2 = self.nwa2
        watoms = f2.w_loads(range(NW_A2))
        def a2_run():
            lab, lab2 = A.label("noa2"), A.label("a2d")
            self.stamp("a2 start")
            A(f"s_waitcnt vmcnt({vm.wait({'a2in'})})")
            A(f"s_cmp_ge_u32 s{aux.R.sa2}, {0 if 'noa2' in self.exp else 162}")
            A(f"s_cbranch_scc1 {lab}")
            v2 = VM()
            def st2(T, n):
                if self.stamps and "a2fine" in self.exp:
                    keep = self.A; self.A = T; self.stamp(n); self.A = keep
            aux.a2(A, v2, pWS, waited=True, weave=list(watoms), stamp=st2)
            A(f"s_branch {lab2}")
            A(f"{lab}:")
            for ins in watoms: A(ins)
            A(f"{lab2}:")
            for k in range(len(watoms)): vm.issue(f"W{k//5}")
            vm.mark('zst')
            self.stamp("a2 end")
        weave = None
        if self.w1:
            T0 = self.w1
            after[T0-6] = lambda: self.cpoll_issue(vm, 0)
            before[T0-3] = lambda: self.cpoll_check(vm, 0)
            after[T0-3] = a2_issue
            extra[T0] = {'a2in'}
            def skip(label):
                A(f"s_cmp_ge_u32 s{aux.R.sa2}, 162")
                A(f"s_cbranch_scc1 {label}")
            weave = dict(ts=T0, te=T0+6, bundles=aux.a2_bundles(pWS, T0), skip=skip, mark='zst')
            if T0 + 8 <= 18:
                extra[T0+8] = {'zst', 'gst'}
                after[T0+8] = lambda: self.arrive(vm, 1)
        else:
            after[TA2-1-self.plead] = lambda: self.cpoll_issue(vm, 0)
            before[TA2-1] = lambda: self.cpoll_check(vm, 0)
            after[TA2-1] = a2_issue
            pause[TA2] = a2_run
            if self.twt >= 0:
                if 'wd2' in X or 'wd3' in X: extra[self.twt] = set(extra.get(self.twt, ())) | {'wd'}
                pause[self.twt] = lambda: aux.wtprep(A, vm, tag='wtst')
                extra[self.twt + 3] = {'wtst'}
                after[self.twt + 3] = lambda: self.arrive(vm, 2)
                after[TA2-1] = lambda: self.cpoll_issue(vm, 2)
                before[TA2] = lambda: self.cpoll_check(vm, 2)
            extra[TA2+self.d2] = {'zst', 'gst'}
            after[TA2+self.d2] = lambda: self.arrive(vm, 1)
        if self.f3now and 0 <= self.dep2at < 9: after[self.p2st] = lambda: self.cpoll_issue(vm, 1)
        if self.dep2at < 0:
            after[16] = lambda: self.cpoll_issue(vm, 1)
            before[18] = lambda: self.cpoll_check(vm, 1)
        if "fine" in self.exp:
            for t in range(0, 19, 2):
                def mk(t, old):
                    def f():
                        if old: old()
                        self.stamp(f"bar{t}")
                    return f
                after[t] = (lambda t=t: self.stamp(f"bar{t}"))
        fl = aux.consts_a2_fill() if self.lean == 2 else []
        f1.main(A, vm, issued, fill=fl, after_barrier=after, pause=pause, late=[k for k in ([("w", 3), ("x", 2), ("w", 4), ("w", 5)] if f1.NWS == 6 else [("w", 3), ("x", 3), ("w", 4)]) if k not in issued], extra_need=extra, before_barrier=before, weave=weave)
        if self.w1 and self.w1 + 8 > 18:
            A(f"s_waitcnt vmcnt({vm.wait({'zst', 'gst'})})")
            A("s_barrier")
            self.arrive(vm, 1)
        self.stamp("f1 loop end")
        if self.w1: f2.setup_w(A, sID, pWS)
        f2.setup(A, sID, pWS, pOUT)
        if self.dep2at < 0:
            self.stamp("dep2")
            aux.a3_loads(A, vm, pWS)
        nw0 = 0 if self.w1 else self.nwa2
        atoms = [(ins, f"W{nw0 + k//5}") for k, ins in enumerate(f2.w_loads(range(nw0, 10)))]
        def put(n):
            for _ in range(n):
                if atoms:
                    ins, tag = atoms.pop(0); A(ins); vm.issue(tag)
        def btw(k):
            if self.dep2at == 9:
                if k == 3: self.cpoll_issue(vm, 1)
                if self.w1: put(self.wepi)
                return
            if (self.dep2at < 0 or k > self.dep2at) and not self.f3now: put(self.wput)
            if self.dep2at >= 0:
                if k == max(0, self.dep2at - 2) and not self.f3now: self.cpoll_issue(vm, 1)
                if k == self.dep2at:
                    self.cpoll_check(vm, 1)
                    A("s_barrier")
                    self.stamp("dep2")
                    aux.a3_loads(A, vm, pWS)
        f1.epilogue(A, vm, pWS, sc=self.hsc, between=btw)
        self.stamp("f1 epi")
        A(f"s_lshl_b32 s{sTMP}, s{f1.R.smt}, 1")
        A(f"s_lshr_b32 s99, s20, 1")
        A(f"s_add_u32 s{sTMP}, s{sTMP}, s99")
        A(f"s_lshl_b32 s{sTMP}, s{sTMP}, 5")
        A(f"s_lshl_b32 s99, s{f1.R.sft}, 1")
        A(f"s_add_u32 s{sTMP}, s{sTMP}, s99")
        A(f"s_and_b32 s99, s20, 1")
        A(f"s_add_u32 s99, s{sTMP}, s99")
        if self.dep2at == 9:
            aux.a3_pre(A)
            f2.setup2(A, pWS, pOUT)
            if not self.zfirst:
                A(f"s_waitcnt vmcnt({vm.wait({'hst'})})")
                self.flag_store_wave(vm, OFF_FLAG3, 99)
            self.cpoll_check(vm, 1)
            A("s_barrier")
            self.stamp("dep2")
            aux.a3_loads(A, vm, pWS)
            if self.zfirst:
                put(self.wput*2)
                A(f"s_waitcnt vmcnt({vm.wait({'hst', 'zl'})})")
                self.flag_store_wave(vm, OFF_FLAG3, 99)
                put(self.wput)
            else:
                put(self.wput*3)
        def poll3_issue():
            A(f"v_and_b32 v254, 31, v0")
            A(f"s_lshl_b32 s{sTMP}, s{f2.R.sT}, 5")
            A(f"v_add_u32 v254, s{sTMP}, v254")
            A(f"v_lshlrev_b32 v254, 2, v254")
            A(f"s_mov_b32 s{sTMP}, {OFF_FLAG3}")
            A(f"buffer_load_dword v250, v254, {srd(srdF)}, s{sTMP} offen sc1")
            vm.issue("poll3")
        if self.f3now and self.dep2at != 9:
            aux.a3_pre(A)
            f2.setup2(A, pWS, pOUT)
            A(f"s_waitcnt vmcnt({vm.wait({'hst'})})")
            self.flag_store_wave(vm, OFF_FLAG3, 99)
            put(self.wput*3)
        def extra(rnd):
            if rnd == self.p3r: poll3_issue()
            if rnd > 0: put(self.wputr)
            if rnd == 1 and self.dep2at != 9 and not self.f3now:
                A(f"s_waitcnt vmcnt({vm.wait({'hst'})})")
                self.flag_store_wave(vm, OFF_FLAG3, 99)
        if self.dep2at != 9 and not self.f3now: aux.a3_pre(A)
        aux.a3_elem(A, vm, extra)
        put(100)
        A("s_barrier")
        self.stamp("a3 elem")
        if self.dep2at != 9 and not self.f3now: f2.setup2(A, pWS, pOUT)
        def check_one(tag, off):
            lo, ok = A.label("w"), A.label("wok")
            A(f"s_waitcnt vmcnt({vm.wait({tag})})")
            A(f"s_mov_b32 s{sSPIN}, 0")
            A(f"{lo}:")
            A(f"v_cmp_ne_u32 vcc, s{sNONCE}, v250")
            A(f"s_cbranch_vccz {ok}")
            A(f"s_add_u32 s{sSPIN}, s{sSPIN}, 1")
            A(f"s_cmp_gt_u32 s{sSPIN}, {SPIN_MAX}")
            A(f"s_cbranch_scc1 {ok}")
            A(f"s_mov_b32 s{sTMP}, {off}")
            if self.pp:
                A(f"buffer_load_dword v251, v254, {srd(srdF)}, s{sTMP} offen sc1")
                A("s_sleep 6")
                A(f"buffer_load_dword v250, v254, {srd(srdF)}, s{sTMP} offen sc1")
                A("s_waitcnt vmcnt(1)")
                A(f"v_cmp_ne_u32 vcc, s{sNONCE}, v251")
                A(f"s_cbranch_vccz {ok}")
                A("s_waitcnt vmcnt(0)")
            else:
                A("s_sleep 4")
                A(f"buffer_load_dword v250, v254, {srd(srdF)}, s{sTMP} offen sc1")
                A("s_waitcnt vmcnt(0)")
            A(f"s_branch {lo}")
            A(f"{ok}:")
        npre = self.npre
        if self.early3:
            if self.p3r < 0: poll3_issue()
            def mid():
                check_one("poll3", OFF_FLAG3)
                for i in range(npre):
                    A(f2.h_loads(i)); vm.issue(f"h{i}", 4)
            aux.a3_core(A, vm, pWS, mid=mid)
        else:
            aux.a3_core(A, vm, pWS, mid=(poll3_issue if self.p3r < 0 else None))
        wlate = [(ins, f"W{10 + k//5}") for k, ins in enumerate(f2.w_loads((10, 11)))]
        if not self.wl2:
            for ins, tag in wlate:
                A(ins); vm.issue(tag)
            wlate = []
        self.stamp("a3 core")
        if not self.early3:
            check_one("poll3", OFF_FLAG3)
            npre = 0
        self.stamp("dep3")
        def flag4():
            A(f"s_waitcnt vmcnt({vm.wait({'gast'})})")
            A(f"s_lshl_b32 s99, s{aux.R.srg}, 2")
            A(f"s_add_u32 s99, s99, s20")
            self.flag_store_wave(vm, OFF_FLAG4, 99)
        def code4():
            A(f"v_and_b32 v254, 63, v0")
            A(f"s_and_b32 s{sTMP}, s{f2.R.sT}, 15")
            A(f"s_lshl_b32 s{sTMP}, s{sTMP}, 6")
            A(f"v_add_u32 v254, s{sTMP}, v254")
            A(f"v_lshlrev_b32 v254, 2, v254")
        def h_issue4():
            code4()
            A(f"s_mov_b32 s{sTMP}, {OFF_FLAG4}")
            A(f"buffer_load_dword v250, v254, {srd(srdF)}, s{sTMP} offen sc1")
            vm.issue("poll4")
        def h_check4():
            check_one("poll4", OFF_FLAG4)
            f2.final_loads(A, vm)
        hk = {self.f4s[0]: flag4, self.f4s[1]: h_issue4, self.f4s[2]: h_check4}
        if "f2fine" in self.exp:
            for i_ in (0, 1, 2, 3, 4, 6, 8, 10, 11):
                hk[i_] = (lambda o=hk.get(i_), i_=i_: ((o() if o else None), self.stamp(f"f2s{i_}")))
        f2.main(A, vm, hooks=hk, pre_issued=npre, extra=wlate)
        self.stamp("f2 loop end")
        f2.epilogue(A, vm)
        self.stamp("end")
        self.dump_stamps()
        A("s_endpgm")

    def build(self):
        A = self.A
        A(f"s_cmp_ge_u32 s2, 256")
        A(f"s_cbranch_scc1 K_exit")
        A(f"s_load_dwordx16 s[68:83], s[0:1], 0")
        A(f"s_load_dwordx4 s[84:87], s[0:1], 64")
        A(f"s_load_dwordx2 s[88:89], s[0:1], 80")
        if self.cpfirst:
            if self.codepf:
                A("s_getpc_b64 s[4:5]")
                A("K_pc:")
                A("s_and_b32 s5, s5, 0xffff")
                A("s_mov_b32 s6, K_exit-K_pc")
                A("s_mov_b32 s7, 0x20000")
                A("v_lshlrev_b32 v4, 7, v0")
                for k in range(self.codepf):
                    A(f"s_mov_b32 s28, {32768*k}")
                    A(f"buffer_load_dword v229, v4, s[4:7], s28 offen")

        if self.stamps: A("v_mov_b32 v255, 0")
        A(f"s_mov_b32 s{sID}, s2")
        if self.rgmap:
            A(f"s_and_b32 s3, s2, 7")
            A(f"s_lshl_b32 s3, s3, 1")
            A(f"s_bfe_u32 s28, s2, {3 | (1 << 16)}")
            A(f"s_add_u32 s3, s3, s28")
            A(f"s_and_b32 s28, s2, 0xf0")
            A(f"s_add_u32 s3, s3, s28")
        else:
            A(f"s_mov_b32 s3, s2")
        A(f"v_lshrrev_b32 v4, 6, v0")
        A("s_nop 0")
        A(f"v_readfirstlane_b32 s20, v4")
        A("s_waitcnt lgkmcnt(0)")
        if self.wsbase:
            A(f"s_add_u32 s{pWS}, s{pWS}, {hex(self.wsbase)}")
            A(f"s_addc_u32 s{pWS+1}, s{pWS+1}, 0")
        A(f"s_load_dword s{sNONCE}, s[{pWS}:{pWS+1}], {OFF_EPOCH}")
        if not self.cpfirst:
            if self.codepf:
                A("s_getpc_b64 s[4:5]")
                A("K_pc:")
                A("s_and_b32 s5, s5, 0xffff")
                A("s_mov_b32 s6, K_exit-K_pc")
                A("s_mov_b32 s7, 0x20000")
                A("v_lshlrev_b32 v4, 7, v0")
                for k in range(self.codepf):
                    A(f"s_mov_b32 s28, {32768*k}")
                    A(f"buffer_load_dword v229, v4, s[4:7], s28 offen")
        if self.tlbpf:
            A.srd(4, pWS, 28 << 20)
            A("v_and_b32 v4, 63, v0")
            A("v_lshlrev_b32 v4, 19, v4")
            A("v_add_u32 v4, 0x7ff80, v4")
            A(f"buffer_load_dword v229, v4, s[4:7], 0 offen")
            A.srd(4, pOUT, 2048*640*2)
            A("v_and_b32 v4, 63, v0")
            A("v_lshlrev_b32 v4, 16, v4")
            A(f"buffer_load_dword v229, v4, s[4:7], 0 offen")
        A.srd(srdF, pWS, SZ_FLAGS)
        self.body()
        A("K_exit:")
        A("s_endpgm")
        if os.environ.get('NOST'):
            out = []
            for l in A.l:
                if 'buffer_store' in l and ('s[36:39]' in l or 's[48:51]' in l or 's[56:59]' in l): l = '  s_nop 0'
                out.append(l)
            A.l = out
        lines, n = hazard.fix(A.l)
        return lines

HEADER = open(os.path.join(os.path.dirname(os.path.abspath(__file__)), "header.txt")).read()
def full_source(**kw):
    g = Gen(**kw)
    body = "\n".join(g.build())
    src = HEADER + f"""; @launch grid=(256,1,1) block=(256,1,1) lds=163840
;
; One persistent launch, one workgroup (4 waves, 512 registers each, 160 KB LDS) per CU.  Generated by my own script.
;   out = g * irfft2(rfft2(x) * W) + (1 - g) * (silu(x Wg) * (x Wu)) Wd ,  g = sigmoid(x . gate_w)
; Every workgroup runs, in this order:
;   phase 1  row FFT of 4 row pairs (s, s+1024): 320-point complex FFT as two MFMA steps (32 x 10), real-FFT unmixing and the
;            radix-2 step of the column FFT -> X1 ; transposition of the filter -> WF ; Wd in MFMA fragment order -> WT ; gate
;   F1       128 x 96 tile of silu(x Wg) * (x Wu), operands through LDS rings filled by LDS-DMA -> H (fragment order)
;   A2       (inside F1, workgroups 0..161) four 1024-point column FFTs, filter, inverse FFTs, all as 32x32 MFMA steps -> Z
;   A3       inverse of phase 1 for the same row pairs, times g -> GA
;   F2       64 x 80 tile of H Wd, K split over the waves, Wd fragments resident in AGPRs, combined with GA -> out
; Hand-offs between workgroups go through d_ws with write-through (sc1) stores, sc1 loads and flag words tagged with
; (epoch word found in d_ws) + 1; every spin is bounded.
.amdgcn_target "amdgcn-amd-amdhsa--gfx950"
.text
.globl {NAME}
.p2align 8
.type {NAME},@function
{NAME}:
{body}
.section .rodata,"a"
.p2align 6
.amdhsa_kernel {NAME}
  .amdhsa_next_free_vgpr 512
  .amdhsa_next_free_sgpr 102
  .amdhsa_accum_offset 256
  .amdhsa_group_segment_fixed_size 0
  .amdhsa_kernarg_size 88
  .amdhsa_user_sgpr_count 2
  .amdhsa_user_sgpr_kernarg_segment_ptr 1
  .amdhsa_system_sgpr_workgroup_id_x 1
.end_amdhsa_kernel
"""
    return src, g
if __name__ == "__main__":
    kw = {}
    for o in sys.argv[2:]:
        k, v_ = o.split("="); kw[k] = eval(v_)
    src, g = full_source(**kw)
    out = sys.argv[1] if len(sys.argv) > 1 else "gated_mix__spectral_gfnet__swiglu_ffn__prompt.s"
    open(out, "w").write(src)
    print("wrote", out, len(src), "bytes")
```

```python
from asmlib import *
from layout import *

NST = 20
SPREAD = True
MAP162 = False
BAR2 = False
import os
RING = os.environ.get('RING', '36')
NXS, NWS = (4, 5) if RING == '45' else (3, 6)
XSLOT, WSLOT = 16384, 12288
WBASE = NXS*XSLOT
ACC = 64

class R:
    vxo = (230, 231, 232, 233)
    vwo = (234, 235, 236)
    vx = (237, 238, 239, 240)
    vw, vw2 = 241, 242
    vt = 56
    opA = (16, 36)
    opB = (28, 48)
    opF = 'v'
    srdX, srdW, srdH = 8, 12, 16
    sw = 20
    skx, skw = 21, 22
    smx, smw = 23, 24
    smt, sft = 25, 26
    st = 28

def setup(A, s_b, pBX, pWG, pWU, pWS):
    st, t = R.st, R.vt
    A.c("---- F1 setup ----")
    if MAP162:
        A(f"s_lshr_b32 s{st}, s{s_b}, 3")
        A(f"s_and_b32 s{R.smt}, s{st}, 15")
        A(f"s_and_b32 s{st+1}, s{s_b}, 7")
        A(f"s_lshl_b32 s{st+1}, s{st+1}, 1")
        A(f"s_lshr_b32 s{st+2}, s{s_b}, 7")
        A(f"s_add_u32 s{R.sft}, s{st+1}, s{st+2}")
    else:
        A(f"s_and_b32 s{st}, s{s_b}, 1")
        A(f"s_lshl_b32 s{st}, s{st}, 3")
        A(f"s_lshr_b32 s{st+1}, s{s_b}, 3")
        A(f"s_and_b32 s{st+1}, s{st+1}, 7")
        A(f"s_add_u32 s{R.smt}, s{st}, s{st+1}")
        A(f"s_lshr_b32 s{st+1}, s{s_b}, 1")
        A(f"s_and_b32 s{st+1}, s{st+1}, 3")
        A(f"s_lshl_b32 s{st+1}, s{st+1}, 2")
        A(f"s_lshr_b32 s{st+2}, s{s_b}, 6")
        A(f"s_add_u32 s{R.sft}, s{st+1}, s{st+2}")
    A.srd(R.srdX, pBX, 2048*640*2)
    A(f"s_cmp_lt_u32 s{R.sw}, 2")
    A(f"s_cselect_b32 s{R.srdW}, s{pWG}, s{pWU}")
    A(f"s_cselect_b32 s{R.srdW+1}, s{pWG+1}, s{pWU+1}")
    A(f"s_and_b32 s{R.srdW+1}, s{R.srdW+1}, 0xffff")
    A(f"s_mov_b32 s{R.srdW+2}, {hex(640*1536*2)}")
    A(f"s_mov_b32 s{R.srdW+3}, 0x20000")
    A(f"v_and_b32 v{t}, 63, v0")
    A(f"s_lshl_b32 s{st}, s{R.smt}, 7")
    A(f"s_lshl_b32 s{st+1}, s{R.sw}, 5")
    A(f"s_add_u32 s{st}, s{st}, s{st+1}")
    A(f"s_mul_i32 s{st}, s{st}, 1280")
    A(f"v_lshrrev_b32 v{t+1}, 3, v{t}")
    A(f"v_mul_u32_u24 v{t+1}, 1280, v{t+1}")
    A(f"v_add_u32 v{t+1}, s{st}, v{t+1}")
    A(f"v_lshrrev_b32 v{t+2}, 4, v{t}")
    A(f"v_xor_b32 v{t+2}, v{t+2}, v{t}")
    A(f"v_and_b32 v{t+2}, 7, v{t+2}")
    A(f"v_lshl_add_u32 v{R.vxo[0]}, v{t+2}, 4, v{t+1}")
    A(f"v_xor_b32 v{t+2}, 4, v{t+2}")
    A(f"v_lshl_add_u32 v{R.vxo[1]}, v{t+2}, 4, v{t+1}")
    A(f"v_add_u32 v{R.vxo[1]}, {8*1280-1024}, v{R.vxo[1]}")
    A(f"v_add_u32 v{R.vxo[2]}, {16*1280-2048}, v{R.vxo[0]}")
    A(f"v_add_u32 v{R.vxo[3]}, {16*1280-2048}, v{R.vxo[1]}")
    A(f"s_and_b32 s{st}, s{R.sw}, 1")
    A(f"s_mul_i32 s{st}, s{st}, {16*3072}")
    A(f"s_mul_i32 s{st+1}, s{R.sft}, 192")
    A(f"s_add_u32 s{st}, s{st}, s{st+1}")
    A(f"s_lshr_b32 s{st+1}, s{R.sw}, 1")
    A(f"s_mul_i32 s{st+1}, s{st+1}, 10")
    for j in range(3):
        A(f"v_add_u32 v{t+1}, {64*j}, v{t}")
        A(f"v_mul_u32_u24 v{t+2}, 5462, v{t+1}")
        A(f"v_lshrrev_b32 v{t+2}, 16, v{t+2}")
        A(f"v_mul_u32_u24 v{t+3}, 12, v{t+2}")
        A(f"v_sub_u32 v{t+3}, v{t+1}, v{t+3}")
        A(f"v_add_u32 v{t+3}, s{st+1}, v{t+3}")
        A(f"v_subrev_u32 v{t+4}, 12, v{t+3}")
        A(f"v_min_u32 v{t+3}, v{t+3}, v{t+4}")
        A(f"v_mul_u32_u24 v{t+2}, 3072, v{t+2}")
        A(f"v_lshl_add_u32 v{t+2}, v{t+3}, 4, v{t+2}")
        A(f"v_add_u32 v{t+2}, s{st}, v{t+2}")
        A(f"v_subrev_u32 v{R.vwo[j]}, {1024*j}, v{t+2}")
    A(f"s_lshl_b32 s{R.smx}, s{R.sw}, 12")
    A(f"s_mul_i32 s{R.smw}, s{R.sw}, 3072")
    A(f"s_add_u32 s{R.smw}, s{R.smw}, {WBASE}")

def setup_reads(A):
    st, t = R.st, R.vt
    A(f"v_and_b32 v{t}, 63, v0")
    A(f"s_lshr_b32 s{st}, s{R.sw}, 1")
    A(f"s_lshl_b32 s{st}, s{st}, 13")
    A(f"v_and_b32 v{t+1}, 31, v{t}")
    A(f"v_lshrrev_b32 v{t+2}, 5, v{t}")
    A(f"v_bfe_u32 v{t+3}, v{t+1}, 1, 3")
    A(f"v_xor_b32 v{t+3}, v{t+3}, v{t+2}")
    A(f"v_lshlrev_b32 v{t+4}, 7, v{t+1}")
    A(f"v_add_u32 v{t+4}, s{st}, v{t+4}")
    A(f"v_lshl_add_u32 v{R.vx[0]}, v{t+3}, 4, v{t+4}")
    for k in range(1, 4): A(f"v_xor_b32 v{R.vx[k]}, {32*k}, v{R.vx[0]}")
    A(f"s_and_b32 s{st}, s{R.sw}, 1")
    A(f"s_mul_i32 s{st+1}, s{st}, 96")
    A(f"s_add_u32 s{st+1}, s{st+1}, {WBASE}")
    A(f"v_lshrrev_b32 v{t+1}, 5, v{t}")
    A(f"v_lshlrev_b32 v{t+1}, 3, v{t+1}")
    A(f"v_bfe_u32 v{t+2}, v{t}, 2, 2")
    A(f"v_add_u32 v{t+1}, v{t+1}, v{t+2}")
    A(f"v_mul_u32_u24 v{t+1}, 192, v{t+1}")
    A(f"v_bfe_u32 v{t+2}, v{t}, 4, 1")
    A(f"v_lshl_add_u32 v{t+1}, v{t+2}, 4, v{t+1}")
    A(f"v_and_b32 v{t+2}, 1, v{t}")
    A(f"v_lshl_add_u32 v{t+1}, v{t+2}, 3, v{t+1}")
    A(f"v_bfe_u32 v{t+2}, v{t}, 1, 1")
    A(f"v_mul_u32_u24 v{t+3}, {6144+32}, v{t+2}")
    A(f"v_add_u32 v{t+1}, v{t+1}, v{t+3}")
    A(f"v_add_u32 v{R.vw}, s{st+1}, v{t+1}")
    A(f"s_mul_i32 s{st+1}, s{st}, 192")
    A(f"v_mul_u32_u24 v{t+3}, s{st+1}, v{t+2}")
    A(f"v_sub_u32 v{R.vw2}, v{R.vw}, v{t+3}")

def dma_x(c):
    L = []
    for j in range(4):
        off = f" offset:{1024*j}" if j else ""
        L.append([f"s_add_u32 m0, s{R.smx}, {(c % NXS)*XSLOT}", f"s_mov_b32 s{R.skx}, {c*128}",
                  f"buffer_load_dwordx4 v{R.vxo[j]}, {srd(R.srdX)}, s{R.skx} offen{off} lds"])
    return L
def dma_w(t):
    L = []
    for j in range(3):
        off = f" offset:{1024*j}" if j else ""
        L.append([f"s_add_u32 m0, s{R.smw}, {(t % NWS)*WSLOT}", f"s_mov_b32 s{R.skw}, {t*32*3072}",
                  f"buffer_load_dwordx4 v{R.vwo[j]}, {srd(R.srdW)}, s{R.skw} offen{off} lds"])
    return L

def reads(t, kk, setn):
    a0, b0 = R.opA[setn], R.opB[setn]
    vx = R.vx[2*(t & 1) + kk]
    xs = ((t >> 1) % NXS)*XSLOT
    wsl = (t % NWS)*WSLOT
    def rdA(tt):
        vw = R.vw2 if tt == 2 else R.vw
        return [f"ds_read_b64_tr_b16 {R.opF}[{a0+4*tt+2*rd}:{a0+4*tt+2*rd+1}], v{vw} offset:{wsl + kk*3072 + rd*768 + tt*32}" for rd in range(2)]
    def rdB(tt):
        return [f"ds_read_b128 {R.opF}[{b0+4*tt}:{b0+4*tt+3}], v{vx} offset:{xs + 4096*tt}"]
    return rdA(0) + rdB(0) + rdB(1) + rdA(1) + rdA(2)

def mfmas(setn, first=False):
    a0, b0 = R.opA[setn], R.opB[setn]
    L = []
    for tt in range(3):
        for t in range(2):
            d = ACC + (tt*2 + t)*16
            L.append(f"v_mfma_f32_32x32x16_bf16 v[{d}:{d+15}], {R.opF}[{a0+4*tt}:{a0+4*tt+3}], {R.opF}[{b0+4*t}:{b0+4*t+3}], " + ("0" if first else f"v[{d}:{d+15}]"))
    return L

def issue(A, vm, kind, i):
    for g in (dma_x(i) if kind == "x" else dma_w(i)): A(g)
    vm.issue(f"{kind}{i}", 4 if kind == "x" else 3)

def l2_prefetch(A, vm, pWG, pWU):
    A.c("---- L2 prefetch of Wg / Wu ----")
    A(f"s_cmp_lt_u32 s{R.sw}, 2")
    A(f"s_cselect_b32 s4, s{pWG}, s{pWU}")
    A(f"s_cselect_b32 s5, s{pWG+1}, s{pWU+1}")
    A(f"s_and_b32 s5, s5, 0xffff")
    A(f"s_mov_b32 s6, {hex(640*1536*2)}")
    A(f"s_mov_b32 s7, 0x20000")
    if MAP162:
        A(f"s_lshr_b32 s28, s98, 3")
        A(f"s_lshl_b32 s28, s28, 1")
        A(f"s_and_b32 s29, s{R.sw}, 1")
        A(f"s_add_u32 s28, s28, s29")
        A(f"s_mul_i32 s28, s28, 30")
        A(f"v_and_b32 v56, 63, v0")
        A(f"v_min_u32 v56, 29, v56")
        A(f"v_add_u32 v56, s28, v56")
        A(f"v_mul_u32_u24 v57, 21846, v56")
        A(f"v_lshrrev_b32 v57, 16, v57")
        A(f"v_mul_u32_u24 v58, 3, v57")
        A(f"v_sub_u32 v58, v56, v58")
        A(f"v_mul_u32_u24 v57, 3072, v57")
        A(f"v_lshl_add_u32 v57, v58, 7, v57")
        A(f"s_and_b32 s28, s98, 7")
        A(f"s_mul_i32 s28, s28, 384")
        A(f"buffer_load_dword v229, v57, s[4:7], s28 offen")
    else:
        A(f"s_lshr_b32 s28, s98, 3")
        A(f"s_lshl_b32 s28, s28, 1")
        A(f"s_and_b32 s29, s{R.sw}, 1")
        A(f"s_add_u32 s28, s28, s29")
        A(f"s_mul_i32 s28, s28, 60")
        A(f"v_and_b32 v56, 63, v0")
        A(f"v_min_u32 v56, 59, v56")
        A(f"v_add_u32 v56, s28, v56")
        A(f"v_mul_u32_u24 v57, 10923, v56")
        A(f"v_lshrrev_b32 v57, 16, v57")
        A(f"v_mul_u32_u24 v58, 6, v57")
        A(f"v_sub_u32 v58, v56, v58")
        A(f"v_mul_u32_u24 v57, 3072, v57")
        A(f"v_lshl_add_u32 v57, v58, 7, v57")
        A(f"s_lshr_b32 s28, s98, 1")
        A(f"s_and_b32 s28, s28, 3")
        A(f"s_mul_i32 s28, s28, 768")
        A(f"buffer_load_dword v229, v57, s[4:7], s28 offen")
    vm.issue('pf', 1)

def x_prefetch(A, vm, first_chunk=3):
    A.c("---- L2 prefetch of x ----")
    A(f"s_lshr_b32 s28, s98, 3")
    A(f"s_lshl_b32 s28, s28, 2")
    A(f"s_add_u32 s28, s28, s{R.sw}")
    A(f"s_lshl_b32 s28, s28, 6")
    A(f"v_and_b32 v56, 63, v0")
    A(f"v_add_u32 v56, s28, v56")
    A(f"v_lshrrev_b32 v57, 10, v56")
    A(f"v_add_u32 v57, {first_chunk}, v57")
    A(f"v_min_u32 v57, 9, v57")
    A(f"v_and_b32 v56, 1023, v56")
    A(f"v_mul_u32_u24 v56, 1280, v56")
    A(f"v_lshl_add_u32 v56, v57, 7, v56")
    A(f"s_and_b32 s28, s98, 1")
    A(f"s_mul_i32 s28, s28, {1024*1280}")
    A(f"buffer_load_dword v229, v56, {srd(R.srdX)}, s28 offen")
    vm.issue('pfx', 1)

def main(A, vm, issued, fill=None, after_barrier=None, pause=None, late=None, extra_need=None, before_barrier=None, weave=None):
    fill = list(fill or []); after_barrier = after_barrier or {}; pause = pause or {}; extra_need = extra_need or {}; before_barrier = before_barrier or {}
    A(f"s_waitcnt vmcnt({vm.wait(({'x0','w0','w1'} if BAR2 else {'x0','w0'}) | set(extra_need.get(-1, ())))})")
    A("s_barrier")
    if -1 in after_barrier: after_barrier[-1]()
    A(reads(0, 0, 0))
    rdpos = ((0, 3), (1, 3), (2, 2))
    def split(rd):
        g = [[] for _ in range(6)]
        k = 0
        for gi, n in rdpos:
            g[gi] += [(x, None) for x in rd[k:k+n]]; k += n
        return g
    def addfill(g, n=1, start=3):
        for gi in range(start, 6):
            k = n if len(g[gi]) < 2 else max(0, n - 1)
            for _ in range(k):
                if fill: g[gi].append((fill.pop(0), None))
    st = {"queue": [], "need_reads0": False}
    def enqueue(kind, i):
        atoms = dma_x(i) if kind == "x" else dma_w(i)
        st["queue"].extend((ins, f"{kind}{i}") for ins in atoms)
        issued.add((kind, i))
    for k in (late or []): enqueue(*k)
    def drain(g, slots):
        for gi in slots:
            if st["queue"]:
                ins, tag = st["queue"].pop(0)
                g[gi] += [(x, None) for x in ins[:-1]] + [(ins[-1], tag)]
    def add_bundle(g, atoms):
        n = len(atoms)
        for k, (lines, tag) in enumerate(atoms):
            gi = min(5, (k*6)//n)
            g[gi] += [(x, None) for x in lines[:-1]] + [(lines[-1], tag)]
    def emit(mf, g):
        for i, m in enumerate(mf):
            A(m)
            for line, tag in g[i]:
                A(line)
                if tag: vm.issue(tag)
    def stage(t, bundles):
        A.c(f"F1 stage {t}")
        queue = st["queue"]
        if st["need_reads0"]:
            A(reads(t, 0, 0)); st["need_reads0"] = False
        g = split(reads(t, 1, 1))
        many = len(queue) > 4
        drain(g, (0, 1, 2, 3, 4, 5) if many else (1, 3, 5))
        if (t, 'A') in bundles: add_bundle(g, bundles[(t, 'A')])
        addfill(g)
        A("s_waitcnt lgkmcnt(0)")
        emit(mfmas(0, first=(t == 0)), g)
        if t + 1 < NST:
            has_bar = (not BAR2) or (t & 1)
            if has_bar:
                need = {f'w{t+1}'}
                if BAR2 and t + 2 < NST: need.add(f'w{t+2}')
                if (t + 1) % 2 == 0: need.add(f'x{(t+1)//2}')
                need |= set(extra_need.get(t, ()))
                while any(tag in need for _, tag in queue):
                    ins, tag = queue.pop(0); A(ins); vm.issue(tag)
                A(f"s_waitcnt vmcnt({vm.wait(need)}) lgkmcnt(0)")
                if t in before_barrier: before_barrier[t]()
                A("s_barrier")
            else:
                assert t not in before_barrier and t not in extra_need, t
                A("s_waitcnt lgkmcnt(0)")
            hook = []
            if t in after_barrier:
                keep = A.l; A.l = []
                after_barrier[t]()
                hook, A.l = A.l, keep
                if not SPREAD or any(l.strip().endswith(":") or "s_cbranch" in l or "s_waitcnt" in l for l in hook):
                    A.l += hook; hook = []
            paused = t in pause
            g = [[] for _ in range(6)] if paused else split(reads(t+1, 0, 0))
            if hook:
                hook = [l.strip() for l in hook if not l.strip().startswith(";")]
                atoms_, cur, masked = [], [], False
                for l in hook:
                    cur.append(l)
                    if l.startswith("s_mov_b64 exec"): masked = not l.endswith("-1")
                    if not masked: atoms_.append(cur); cur = []
                assert not cur
                ng = 4
                per = -(-len(hook)//ng)
                gi, n = 0, 0
                for at in atoms_:
                    g[gi] += [(x, None) for x in at]; n += len(at)
                    if n >= per*(gi + 1) and gi < ng - 1: gi += 1
            if (t & 1) and (t >> 1) + NXS < NST//2 and ("x", (t >> 1) + NXS) not in issued: enqueue("x", (t >> 1) + NXS)
            if BAR2:
                if t & 1:
                    for tw in (t - 1 + NWS, t + NWS):
                        if tw < NST and ("w", tw) not in issued: enqueue("w", tw)
            elif t + NWS < NST and ("w", t + NWS) not in issued: enqueue("w", t + NWS)
            many = len(queue) > (3 if BAR2 else 4)
            drain(g, (4, 5) if hook else ((0, 1, 2, 3, 4, 5) if many else (1, 3, 5)))
            if (t, 'B') in bundles:
                assert not any("buffer_" in x for lines, _ in bundles[(t, 'B')] for x in lines) or not hook
                add_bundle(g, bundles[(t, 'B')])
            addfill(g)
            emit(mfmas(1), g)
            if paused:
                pause[t](); st["need_reads0"] = True
        else:
            A("s_waitcnt lgkmcnt(0)")
            A(mfmas(1))
    t = 0
    while t < NST:
        if weave and t == weave["ts"]:
            plain, join = A.label("plain"), A.label("join")
            snap = (list(vm.q), list(st["queue"]), st["need_reads0"], set(issued), list(fill))
            weave["skip"](plain)
            for tt in range(weave["ts"], weave["te"] + 1): stage(tt, weave["bundles"])
            A(f"s_branch {join}")
            qa = list(vm.q); end_a = (list(st["queue"]), st["need_reads0"])
            vm.q, st["queue"], st["need_reads0"] = list(snap[0]), list(snap[1]), snap[2]
            issued.clear(); issued.update(snap[3]); fill[:] = snap[4]
            A(f"{plain}:")
            for tt in range(weave["ts"], weave["te"] + 1): stage(tt, {})
            A(f"{join}:")
            assert end_a == (list(st["queue"]), st["need_reads0"])
            mk = weave["mark"]
            last = max(i for i, x in enumerate(qa) if x == mk)
            k = len(qa) - 1 - last
            assert vm.q[len(vm.q)-k:] == qa[last+1:] if k else True
            vm.q = vm.q[:len(vm.q)-k] + ["?" + mk] + vm.q[len(vm.q)-k:]
            t = weave["te"] + 1
            continue
        stage(t, {})
        t += 1
    assert not st["queue"] and not fill, (len(st["queue"]), len(fill))

def epilogue(A, vm, pWS, sc=" sc1", between=None):
    st, t = R.st, R.vt
    A.c("---- F1 epilogue ----")
    A.srd(R.srdH, pWS, SZ_H, OFF_H)
    A(f"s_lshr_b32 s{st}, s{R.sw}, 1")
    A(f"s_lshl_b32 s{st}, s{st}, 1")
    A(f"s_lshl_b32 s{st+1}, s{R.smt}, 2")
    A(f"s_add_u32 s{st}, s{st}, s{st+1}")
    A(f"s_mul_i32 s{st}, s{st}, 96")
    A(f"s_mul_i32 s{st+1}, s{R.sft}, 6")
    A(f"s_add_u32 s{st}, s{st}, s{st+1}")
    A(f"s_and_b32 s{st+1}, s{R.sw}, 1")
    A(f"s_mul_i32 s{st+1}, s{st+1}, 3")
    A(f"s_add_u32 s{st}, s{st}, s{st+1}")
    A(f"s_lshl_b32 s{st}, s{st}, 10")
    A(f"v_and_b32 v{t}, 63, v0")
    A(f"v_lshlrev_b32 v{t}, 4, v{t}")
    A(f"s_mov_b32 s{st+2}, 0xbfb8aa3b")
    A(f"s_mov_b32 s{st+3}, 0xbfb8aa3b")
    A.nop(4)
    E, O = 16, 32
    for tt in range(3):
        for tc in range(2):
            d = ACC + (tt*2 + tc)*16
            o = O + 4*((tt*2+tc) & 1)
            gi = [0, 2, 8, 10]
            for k, g in enumerate(gi): A(f"v_pk_mul_f32 v[{E+2*k}:{E+2*k+1}], v[{d+g}:{d+g+1}], s[{st+2}:{st+3}]")
            for k in range(8): A(f"v_exp_f32 v{E+k}, v{E+k}")
            for k, g in enumerate(gi): A(f"v_pk_mul_f32 v[{d+g+4}:{d+g+5}], v[{d+g}:{d+g+1}], v[{d+g+4}:{d+g+5}]")
            for k in range(4): A(f"v_pk_add_f32 v[{E+2*k}:{E+2*k+1}], v[{E+2*k}:{E+2*k+1}], 1.0 op_sel_hi:[1,0]")
            for k in range(8): A(f"v_rcp_f32 v{E+k}, v{E+k}")
            A("s_nop 0")
            for k, g in enumerate(gi): A(f"v_pk_mul_f32 v[{d+g+4}:{d+g+5}], v[{d+g+4}:{d+g+5}], v[{E+2*k}:{E+2*k+1}]")
            for k, g in enumerate(gi): A(f"v_cvt_pk_bf16_f32 v{o+k}, v{d+g+4}, v{d+g+5}")
            off = (tc*96 + tt)*1024
            A(f"s_add_u32 s{st+1}, s{st}, {off}")
            A(f"buffer_store_dwordx4 v[{o}:{o+3}], v{t}, {srd(R.srdH)}, s{st+1} offen{sc}")
            vm.issue('hst')
            if between: between(tt*2 + tc)
```
